```python
import torch

def _softmax(x, axis=-1):
    return torch.softmax(x, dim=axis)
def _gelu(x):
    return torch.nn.functional.gelu(x, approximate="tanh")
def _silu(x):
    return torch.nn.functional.silu(x)
def _sigmoid(x):
    return torch.sigmoid(x)
def _layernorm(x, axis=-1, eps=1e-5):
    m = x.mean(dim=axis, keepdim=True)
    v = x.var(dim=axis, keepdim=True, unbiased=False)
    return (x - m) / torch.sqrt(v + eps)
def _scatter_add(tgt, idx, src, axis=0):
    return tgt.clone().index_add_(axis, idx, src)
def _segment_sum(src, seg, n):
    out = torch.zeros((n,) + src.shape[1:], dtype=src.dtype)
    return out.index_add_(0, seg, src)
def _pad(x, pw):
    flat = tuple(v for pair in reversed(pw) for v in pair)
    return torch.nn.functional.pad(x, flat)

kernel_name = 'standalone__cheap_equivariant_egnn__graph'

def setup_inputs():

    _w = (lambda a: (lambda t: t.to(torch.bfloat16) if t.is_floating_point() else t)(torch.as_tensor(a)))
    N, deg, D, De = 10000, 64, 64, max(0, 1)
    E = N * deg
    return {
        "h": _w((lambda *s: torch.randn(*s, dtype=torch.bfloat16) * 0.1)(N, D)),
        "pos": _w((lambda *s: torch.randn(*s, dtype=torch.bfloat16) * 0.8)(N, 3)),
        "e_attr": _w((lambda *s: torch.randn(*s, dtype=torch.bfloat16) * 0.8)(E, De)),
        "src": _w((lambda lo, hi, *s: torch.randint(lo, hi, s))(0, N, E).to(torch.int64)),
        "dst": _w((lambda lo, hi, *s: torch.randint(lo, hi, s))(0, N, E).to(torch.int64)),
        "w_e": _w(0.1 * (lambda *s: torch.randn(*s, dtype=torch.bfloat16) * 0.8)(2 * D + 1 + De, D)),
        "w_x": _w(0.1 * (lambda *s: torch.randn(*s, dtype=torch.bfloat16) * 0.1)(D, 1)),
        "w_h": _w(0.1 * (lambda *s: torch.randn(*s, dtype=torch.bfloat16) * 0.1)(2 * D, D)),
    }

def reference(h, pos, e_attr, src, dst, w_e, w_x, w_h):
    N, D = h.shape[0], h.shape[1]
    diff = pos[dst] - pos[src]
    dist2 = torch.sum(diff * diff, axis=-1, keepdims=True)
    e_in = torch.concatenate([h[dst], h[src], dist2, e_attr], axis=-1)
    m_ij = _silu(e_in @ w_e)
    coord_scale = m_ij @ w_x
    pos_new = pos + _segment_sum(diff * coord_scale, dst, N)
    m_i = _segment_sum(m_ij, dst, N)
    h_new = h + _silu(torch.concatenate([h, m_i], axis=-1) @ w_h)
    return h_new, pos_new
```

```python
import re

class Emit:
    def __init__(self):
        self.lines = []
    def __call__(self, s=""):
        for l in s.split("\n"):
            l = l.strip()
            if l:
                self.lines.append(l)
    def label(self, n):
        self.lines.append(n + ":")
    def text(self):
        out = []
        for l in self.lines:
            out.append(l if l.endswith(":") or l.startswith(".") else "    " + l)
        return "\n".join(out) + "\n"

def v(a, n=1):
    return f"v{a}" if n == 1 else f"v[{a}:{a+n-1}]"
def s(a, n=1):
    return f"s{a}" if n == 1 else f"s[{a}:{a+n-1}]"

TRANS = ("v_exp_", "v_log_", "v_rcp_", "v_rsq_", "v_sqrt_", "v_sin_", "v_cos_")
def regs_of(tok):
    tok = tok.strip().lstrip("-").replace("|", "")
    m = re.fullmatch(r"([vs])(\d+)", tok)
    if m: return [(m.group(1), int(m.group(2)))]
    m = re.fullmatch(r"([vs])\[(\d+):(\d+)\]", tok)
    if m: return [(m.group(1), i) for i in range(int(m.group(2)), int(m.group(3)) + 1)]
    if tok == "vcc": return [("s", 106), ("s", 107)]
    if tok == "exec": return [("s", 126), ("s", 127)]
    if tok == "m0": return [("s", 124)]
    return []

def parse(line):
    line = line.split(";")[0].strip()
    parts = line.split(None, 1)
    op = parts[0]
    rest = parts[1] if len(parts) > 1 else ""
    toks = []
    depth = 0; cur = ""
    for ch in rest:
        if ch == "[": depth += 1
        if ch == "]": depth -= 1
        if ch == "," and depth == 0:
            toks.append(cur.strip()); cur = ""
        else:
            cur += ch
    if cur.strip(): toks.append(cur.strip())
    mods = ""
    if toks:
        last = toks[-1].split(None, 1)
        toks[-1] = last[0]
        mods = last[1] if len(last) > 1 else ""
    return op, toks, mods

def classify(line):
    op, toks, mods = parse(line)
    d = dict(op=op, line=line, w=[], r=[], kind="other", ws=1, mods=mods)
    R = lambda ts: [x for t in ts for x in regs_of(t)]
    if op == "s_nop":
        d["ws"] = int(toks[0], 0) + 1; d["kind"] = "salu"
    elif op.startswith("v_mfma"):
        d["kind"] = "mfma"; d["w"] = R(toks[:1]); d["a"] = R(toks[1:3]); d["c"] = R(toks[3:4]); d["r"] = d["a"] + d["c"]
        d["passes"] = 16 if "_2b" in op else (8 if "32x32" in op else (4 if "16x16" in op else 2))
    elif op.startswith("v_"):
        d["kind"] = "valu"
        nd = 1
        if op.startswith(("v_add_co", "v_sub_co", "v_addc_co", "v_subb_co")): nd = 2
        d["w"] = R(toks[:nd]); d["r"] = R(toks[nd:])
        if op.startswith(("v_fmac", "v_mac", "v_writelane")) or "dpp" in op or "UNUSED_PRESERVE" in mods: d["r"] += R(toks[:1])
        if op.startswith("v_permlane") : d["w"] = R(toks[:2]); d["r"] = R(toks[:2])
        if op.startswith("v_cmpx"): d["w"] += regs_of("exec")
        d["trans"] = op.startswith(TRANS)
        d["dot"] = op.startswith("v_dot")
        d["dpp"] = "dpp" in op or "row_" in mods or "quad_perm" in mods
        d["rl"] = op.startswith(("v_readlane", "v_readfirstlane", "v_writelane"))
    elif op.startswith("ds_"):
        d["kind"] = "ds"
        if op.startswith(("ds_read", "ds_bpermute", "ds_permute", "ds_swizzle")) or "_rtn" in op:
            d["w"] = R(toks[:1]); d["r"] = R(toks[1:])
        else:
            d["r"] = R(toks)
    elif op.startswith(("buffer_", "global_")):
        d["kind"] = "vmem"
        lds = (" lds" in " " + mods) or "_lds_" in op
        d["lds"] = lds
        if "load" in op and not lds:
            d["w"] = R(toks[:1]); d["r"] = R(toks[1:])
        else:
            d["r"] = R(toks)
        d["wide_store"] = ("store" in op) and ("x3" in op or "x4" in op)
        if d["wide_store"]:
            d["data"] = R(toks[:1]) if op.startswith("buffer_") else R(toks[1:2])
    elif op.startswith("s_"):
        d["kind"] = "salu"
        if op.startswith(("s_cmp", "s_waitcnt", "s_barrier", "s_branch", "s_cbranch", "s_endpgm", "s_setprio", "s_sleep", "s_bitcmp")):
            d["r"] = R(toks)
        else:
            d["w"] = R(toks[:1]); d["r"] = R(toks[1:])
            if "saveexec" in op: d["w"] += regs_of("exec")
    return d

def check_seq(seq, name=""):
    ins = [classify(l) for l in seq if not l.endswith(":") and not l.startswith(".") and not l.startswith(";")]
    probs = []
    for j, c in enumerate(ins):
        dist = 0
        for i in range(j - 1, max(-1, j - 24), -1):
            p = ins[i]
            need = 0
            pw = set(p["w"]); cr = set(c["r"]); cw = set(c["w"])
            vw = {x for x in pw if x[0] == "v"}; sw = {x for x in pw if x[0] == "s"}
            if p["kind"] == "valu":
                if c["kind"] == "mfma" and vw & cr: need = max(need, 3 if p.get("dot") else 2)
                if c["kind"] == "valu":
                    if p["trans"] and not c["trans"] and vw & cr: need = max(need, 1)
                    if c["dpp"] and vw & cr: need = max(need, 2)
                    if c["rl"] and vw & cr: need = max(need, 1)
                    if c["op"].startswith("v_permlane") and vw & cr: need = max(need, 2)
                    if sw & cr: need = max(need, 4 if c["rl"] else 2)
                    if ("s", 126) in sw:
                        if c["dpp"]: need = max(need, 5)
                        if c["rl"]: need = max(need, 4)
                    if p.get("dot") and vw & (cr | cw):
                        same = p["op"] == c["op"]
                        toks = parse(c["line"])[1]
                        srcc = set(regs_of(toks[-1]))
                        ab = set(x for t in toks[1:3] for x in regs_of(t))
                        if not (same and not (vw & ab)): need = max(need, 3)
                if c["kind"] in ("ds", "vmem") and p.get("dot") and vw & cr: need = max(need, 3)
                if c["kind"] in ("ds", "vmem") and p["trans"] and vw & cr: need = max(need, 1)
                if c["kind"] == "vmem" and sw & cr: need = max(need, 5)
                if c["kind"] == "mfma" and ("s", 126) in sw: need = max(need, 4)
            if p["kind"] == "mfma":
                ps = p["passes"]
                t_rd = {2: 5, 4: 8, 8: 12, 16: 20}[ps]
                t_ov = {2: 4, 4: 6, 8: 10, 16: 18}[ps]
                t_war = {2: 1, 4: 3, 8: 7, 16: 15}[ps]
                if c["kind"] == "mfma":
                    if pw & set(c["a"]): need = max(need, t_rd)
                    if pw & set(c["c"]):
                        if c["c"] == p["w"] and c["passes"] == ps: need = max(need, 2 if ps == 2 else 0)
                        else: need = max(need, t_ov)
                    elif pw & cw and c["passes"] < ps: need = max(need, t_ov)
                elif c["kind"] in ("valu", "ds", "vmem"):
                    if pw & (cr | cw): need = max(need, t_rd)
                    if c["kind"] == "valu" and set(p["c"]) & cw: need = max(need, t_war)
            if p["kind"] == "vmem" and p.get("wide_store") and set(p["data"]) & cw and c["kind"] != "salu":
                need = max(need, 2 if c["kind"] in ("valu", "mfma") else 1)
            if p["kind"] == "salu" and ("s", 124) in pw and c["kind"] == "vmem" and c.get("lds"): need = max(need, 1)
            if p["kind"] == "salu" and ("s", 124) in pw and "addtid" in c["op"]: need = max(need, 1)
            if need > dist:
                probs.append(f"[{name}] need {need} have {dist}: '{p['line']}' -> '{c['line']}'")
            dist += p["ws"]
            if dist >= 21: break
    return probs

def check_cfg(lines, name="cfg"):
    code = [l for l in lines if not l.startswith(".") and not l.startswith(";")]
    labels = {l[:-1]: i for i, l in enumerate(code) if l.endswith(":")}
    probs = []
    seg = []
    for l in code:
        seg.append(l)
        if l.startswith(("s_branch", "s_endpgm", "s_setpc")):
            probs += check_seq(seg, name); seg = []
    probs += check_seq(seg, name)
    def before(i, n=24):
        out = []
        k = i
        while k >= 0 and len(out) < n:
            if k != i and code[k].startswith(("s_branch", "s_endpgm", "s_setpc")): break
            out.append(code[k]); k -= 1
        return out[::-1]
    def after(i, n=24, depth=0):
        out = []
        k = i
        while k < len(code) and len(out) < n:
            l = code[k]
            out.append(l)
            if l.startswith("s_branch") and depth < 3:
                return out + after(labels[l.split()[1]], n - len(out), depth + 1)
            if l.startswith(("s_endpgm", "s_setpc")): break
            k += 1
        return out
    for i, l in enumerate(code):
        if l.startswith(("s_branch", "s_cbranch")):
            t = l.split()[1]
            probs += check_seq(before(i) + after(labels[t]), name + ":" + t)
    return sorted(set(probs))
```

```python
import sys, struct
from asmlib import Emit, v, s, check_cfg

KN = "standalone__cheap_equivariant_egnn__graph"
OPT = dict(stamps=False, prio=True)
for a in sys.argv[2:]:
    k, _, val = a.partition("=")
    OPT[k] = eval(val) if val else True

def fbits(x): return struct.unpack("<I", struct.pack("<f", x))[0]
LOG2E = 1.4426950408889634; LN2 = 0.6931471805599453

NWG = 250; CH = 2560; NB = 40
CNT1 = 0x0; OFF1 = 0x400; CNT2 = 0x800; BASE2 = 0x900; PD = 0xA00
POS = 0xD00; SORT2 = POS + 61440; CAPB = 3072 * 8
R1 = SORT2 + CAPB + 512; R2 = R1 + 8192; ACC = R2 + 32768; ACCS = 656
AT = ACC + NB * ACCS; ATS = 104; LDS_END = AT + 64 * ATS
WE = SORT2; WH = SORT2 + 16384
LDS_SIZE = 163840
assert LDS_END <= LDS_SIZE and WH + 16384 <= R2 and R2 % 64 == 0
PADB = 21 * 8
WS_FLAG = 0x1000; WS_OFF = 0x10000; WS_BP = 0x100000; WS_REC = 0x300000; WS_STAMP = 0x1000000
TAGC = 0x9E3779B1
sH, sPOS, sE, sSRC, sDST, sWE, sWX, sWH, sOUT, sDBG, sWS = 4, 6, 8, 10, 12, 14, 16, 18, 20, 22, 24
sW, sB = 26, 27
srdBP, srdPOS, srdH = 28, 32, 36
sTAG, sTAGR, sBUD, sR0, sS, sN0, sNG, sCHF = 40, 41, 42, 43, 44, 45, 46, 47
sOHC, sM10, sM01, sCNT, sBASE, sNF, sNL, sNEG, sMORE, sVAL = 48, 50, 51, 52, 53, 54, 55, 56, 57, 58
sT = 60
sMK = 64
sRB = 8
sT2 = 96
T = [16, 32]; E = [48, 64]; AC = [80, 96]; M = [112, 116]; G = [120, 128, 136, 144]; S = [152, 156, 160, 164]
R1OP = 168; WX = 172; I0 = 176; I1 = 180; ONE = 184; IDX = 186
aIdx, aRec, aR1r, aS0, aS1, aR1w, aR2b, aR2, aATb, aAT = 188, 189, 190, 191, 192, 193, 194, 195, 196, 197
vH4, vLA = 198, 199
REC = 200; R2V = 204; PS = 206; PDV = 208; BT = 211; ZP = 216; vIdxL = 218; vPosOwn = 219
SEG = 220; WX0 = 224; WX1 = 225; H1 = 226; HRES = 234; WH2 = 238; vLane = 254; vAItem = 255

e = Emit()
nstamp = [0]
def stamp(i):
    if not OPT["stamps"]: return
    e(f"s_memrealtime s[98:99]")
    e(f"s_waitcnt lgkmcnt(0)")
    e(f"v_mov_b32 v14, s98")
    e(f"s_lshl_b32 s100, s2, 3")
    e(f"s_add_u32 s100, s100, s{sW}")
    e(f"s_lshl_b32 s100, s100, 7")
    e(f"s_add_u32 s100, s100, {WS_STAMP + 4*i}")
    e(f"v_mov_b32 v15, s100")
    e(f"global_store_dword v15, v14, s[{sWS}:{sWS+1}]")

def scan(r):
    for m in ("row_shr:1", "row_shr:2", "row_shr:4", "row_shr:8"):
        e("s_nop 1")
        e(f"v_add_u32_dpp v{r}, v{r}, v{r} {m} row_mask:0xf bank_mask:0xf bound_ctrl:1")
    e("s_nop 1")
    e(f"v_add_u32_dpp v{r}, v{r}, v{r} row_bcast:15 row_mask:0xa bank_mask:0xf")
    e("s_nop 1")
    e(f"v_add_u32_dpp v{r}, v{r}, v{r} row_bcast:31 row_mask:0xc bank_mask:0xf")

SD = "dst_sel:DWORD dst_unused:UNUSED_PAD"

DSTR = 16; SRCR = 24; ER = 32; XW = 36; B4 = 48; RK = 56
e(f"s_cmp_ge_u32 s2, {NWG}")
e("s_cbranch_scc1 L_end")
e("s_load_dwordx16 s[4:19], s[0:1], 0")
e("s_load_dwordx4 s[20:23], s[0:1], 64")
e("s_load_dwordx2 s[24:25], s[0:1], 80")
e(f"s_mul_i32 s3, s2, {CH*4}")
e("v_lshl_add_u32 v1, v0, 4, s3")
e(f"s_add_u32 s60, s3, 8192")
e("v_lshl_add_u32 v2, v0, 2, s60")
e("s_lshr_b32 s3, s3, 1")
e("v_lshl_add_u32 v3, v0, 3, s3")
e("s_add_u32 s60, s3, 4096")
e("v_lshl_add_u32 v4, v0, 1, s60")
e("v_lshrrev_b32 v5, 6, v0")
e(f"v_and_b32 v{vLane}, 63, v0")
e(f"v_readfirstlane_b32 s{sW}, v5")
e("s_waitcnt lgkmcnt(0)")
e(f"global_load_dwordx4 {v(DSTR,4)}, v1, {s(sDST,2)}")
e(f"global_load_dword v{DSTR+4}, v2, {s(sDST,2)}")
e(f"global_load_dwordx4 {v(SRCR,4)}, v1, {s(sSRC,2)}")
e(f"global_load_dword v{SRCR+4}, v2, {s(sSRC,2)}")
e(f"global_load_dwordx2 {v(ER,2)}, v3, {s(sE,2)}")
e(f"global_load_short_d16_hi v{ER+2}, v4, {s(sE,2)}")
e(f"s_load_dword s{sTAG}, {s(sWS,2)}, 0")
stamp(0)
for i in range(4): e(f"v_mov_b32 v{8+i}, 0")
e("v_lshlrev_b32 v12, 4, v0")
e(f"s_cmp_ge_u32 s{sW}, 3")
e("s_cbranch_scc1 L_nozc")
e("ds_write_b128 v12, v[8:11]")
e.label("L_nozc")
e(f"v_add_u32 v1, {R2}, v12")
for i in range(8): e(f"ds_write_b128 v1, v[8:11] offset:{i*8192}")
e("s_and_b32 s60, s2, 7")
e(f"s_mul_i32 s{sB}, s60, 31")
e("s_min_u32 s60, s60, 2")
e(f"s_add_u32 s{sB}, s{sB}, s60")
e("s_lshr_b32 s60, s2, 3")
e(f"s_add_u32 s{sB}, s{sB}, s60")
e(f"s_mul_i32 s{sN0}, s{sB}, {NB}")
e(f"s_mul_i32 s{sCHF}, s{sW}, 86")
e(f"s_lshr_b32 s{sCHF}, s{sCHF}, 8")
e(f"s_mul_i32 s60, s{sCHF}, 3")
e(f"s_sub_u32 s{sNG}, s{sW}, s60")
e(f"s_add_u32 s{srdBP}, s{sWS}, {WS_BP}")
e(f"s_addc_u32 s{srdBP+1}, s{sWS+1}, 0")
e(f"s_and_b32 s{srdBP+1}, s{srdBP+1}, 0xffff")
e(f"s_or_b32 s{srdBP+1}, s{srdBP+1}, 0x800000")
e(f"s_mov_b32 s{srdBP+2}, 10000")
e(f"s_mov_b32 s{srdBP+3}, 0x20000")
e(f"s_mov_b32 s{srdPOS}, s{sPOS}")
e(f"s_and_b32 s{srdPOS+1}, s{sPOS+1}, 0xffff")
e(f"s_mov_b32 s{srdPOS+2}, 60000")
e(f"s_mov_b32 s{srdPOS+3}, 0x20000")
e(f"s_mov_b32 s{srdH}, s{sH}")
e(f"s_and_b32 s{srdH+1}, s{sH+1}, 0xffff")
e(f"s_mov_b32 s{srdH+2}, 1280000")
e(f"s_mov_b32 s{srdH+3}, 0x20000")
e(f"s_mov_b32 s{sBUD}, 200000")
e(f"s_mov_b32 s{sR0}, 0")
e(f"s_mov_b32 s{sS}, 256")
e(f"s_mov_b32 s{sOHC}, 0x3f80")
e(f"s_mov_b32 s{sOHC+1}, 0")
e(f"s_mov_b32 s{sM10}, 0x0000bf80")
e(f"s_mov_b32 s{sM01}, 0xbf800000")
L = vLane
e(f"v_mov_b32 v{ZP}, 0")
e(f"v_mov_b32 v{ZP+1}, 0")
e(f"v_lshrrev_b32 v1, 5, v{L}")
e(f"v_and_b32 v2, 1, v{L}")
e(f"v_lshlrev_b32 v{vH4}, 2, v1")
e(f"v_lshlrev_b32 v3, 5, v1")
e(f"v_lshl_add_u32 v{IDX+1}, v2, 4, v3")
e(f"v_bfe_u32 v3, v{L}, 2, 1")
e(f"v_bfe_u32 v4, v{L}, 3, 2")
e(f"v_bfe_u32 v5, v{L}, 1, 1")
e("v_lshl_add_u32 v4, v4, 1, v5")
e("v_lshl_add_u32 v4, v3, 3, v4")
e(f"v_lshlrev_b32 v{vIdxL}, 3, v4")
e(f"s_lshl_b32 s60, s{sW}, 10")
e(f"s_add_u32 s60, s60, {R1}")
e(f"v_lshl_add_u32 v{aR1r}, v4, 4, s60")
e("v_xor_b32 v5, v1, v2")
e(f"v_lshl_add_u32 v{aR1r}, v5, 20, v{aR1r}")
e(f"v_lshl_add_u32 v{aR1w}, v{L}, 4, s60")
e(f"s_lshl_b32 s60, s{sW}, 12")
e(f"s_add_u32 s60, s60, {R2}")
e(f"v_bfe_u32 v3, v{L}, 1, 3")
e(f"v_lshl_add_u32 v4, v{L}, 6, s60")
e(f"v_lshl_add_u32 v{aR2b}, v3, 3, v4")
e(f"v_mov_b32 v{aR2}, v{aR2b}")
e(f"v_bfe_u32 v3, v{L}, 2, 2")
e(f"v_and_b32 v4, 3, v{L}")
e(f"v_bfe_u32 v5, v{L}, 4, 1")
e("v_lshl_add_u32 v5, v5, 2, v4")
e("v_lshrrev_b32 v6, 1, v3")
e(f"v_add_u32 v6, v6, v{vH4}")
e("v_xor_b32 v5, v5, v6")
e("v_lshl_add_u32 v6, v1, 3, v3")
e("v_lshl_add_u32 v6, v6, 6, s60")
e(f"v_lshl_add_u32 v{aS0}, v5, 3, v6")
e(f"v_xor_b32 v{aS1}, 16, v{aS0}")
e(f"v_add_u32 v{aS1}, 256, v{aS1}")
e(f"v_and_b32 v6, 31, v{L}")
e("v_lshlrev_b32 v7, 3, v1")
e("v_sub_u32 v7, v6, v7")
e("v_lshlrev_b32 v13, 4, v2")
e(f"v_lshlrev_b32 v13, v13, s{sOHC}")
e("v_ashrrev_i32 v7, 1, v7")
for u, I in ((0, I0), (1, I1)):
    for d in range(4):
        e(f"v_cmp_eq_u32 vcc, {8*u+d}, v7")
        e("s_nop 1")
        e(f"v_cndmask_b32 v{I+d}, 0, v13, vcc")
e("v_cmp_eq_u32 vcc, 0, v1")
e(f"v_mov_b32 v7, 0x3f80")
e(f"v_mov_b32 v{ONE+1}, 0")
e(f"v_cndmask_b32 v{ONE}, 0, v7, vcc")
e(f"v_lshlrev_b32 v{vLA}, 2, v6")
e(f"v_add_u32 v{vLA}, {ACC}, v{vLA}")
e("v_and_b32 v7, 3, v6")
e("v_lshrrev_b32 v13, 3, v6")
e("v_lshlrev_b32 v13, 2, v13")
e("v_lshl_add_u32 v7, v7, 4, v13")
e("v_bfe_u32 v13, v6, 2, 1")
e("v_add_u32 v7, v7, v13")
CA0 = 64; CA1 = 65; HA = 66; PA = 67; WA1 = 68
e(f"v_lshlrev_b32 v{CA0}, 1, v7")
e("v_lshl_add_u32 v7, v1, 1, v7")
e(f"v_lshlrev_b32 v{CA1}, 1, v7")
e(f"v_add_u32 v{CA1}, 16384, v{CA1}")
e(f"v_mul_u32_u24 v{aATb}, {ATS}, v7")
e(f"v_add_u32 v{aATb}, {AT}, v{aATb}")
e(f"s_lshl_b32 s60, s{sNG}, 4")
e(f"s_add_u32 s60, s60, s{sN0}")
e(f"v_and_b32 v7, 15, v{L}")
e("v_add_u32 v7, s60, v7")
e(f"v_lshrrev_b32 v13, 4, v{L}")
e("v_lshlrev_b32 v13, 4, v13")
e(f"v_lshl_add_u32 v{HA}, v7, 7, v13")
e("v_and_b32 v7, 127, v0")
e(f"v_min_u32 v{vAItem}, 119, v7")
e(f"s_mul_i32 s60, s{sB}, 240")
e(f"v_lshl_add_u32 v{PA}, v{vAItem}, 1, s60")
e(f"v_add_u32 v{WA1}, 8192, v12")
e("v_mov_b32 v13, 8")
e("s_mov_b32 s61, 52429")
e("s_movk_i32 s62, -40")
e("s_waitcnt lgkmcnt(0)")
e(f"s_add_u32 s{sTAG}, s{sTAG}, {TAGC}")
e(f"s_and_b32 s{sTAGR}, s{sTAG}, 0xffffff00")
e("s_barrier")
nst = 1 if OPT["stamps"] else 0
e(f"s_waitcnt vmcnt({4+nst})")
for i in range(5): e(f"v_mul_u32_u24 v{B4+i}, s61, v{DSTR+i}")
for i in range(5): e(f"v_lshrrev_b32 v{B4+i}, 21, v{B4+i}")
for i in range(5):
    e(f"v_lshlrev_b32 v{B4+i}, 2, v{B4+i}")
    e(f"ds_add_rtn_u32 v{RK+i}, v{B4+i}, v13 offset:{CNT1}")
stamp(1)
HF = 72
e(f"s_lshl_b32 s60, s{sW}, 10")
e(f"s_add_u32 m0, s60, {WE}")
e("s_nop 0")
e(f"global_load_lds_dwordx4 v12, {s(sWE,2)}")
e(f"s_add_u32 m0, s60, {WE+8192}")
e("s_nop 0")
e(f"global_load_lds_dwordx4 v{WA1}, {s(sWE,2)}")
e(f"s_add_u32 m0, s60, {WH}")
e("s_nop 0")
e(f"global_load_lds_dwordx4 v12, {s(sWH,2)}")
e(f"s_add_u32 m0, s60, {WH+8192}")
e("s_nop 0")
e(f"global_load_lds_dwordx4 v{WA1}, {s(sWH,2)}")
e(f"buffer_load_dwordx4 {v(HF,4)}, v{HA}, {s(srdH,4)}, 0 offen")
e(f"buffer_load_dwordx4 {v(HF+4,4)}, v{HA}, {s(srdH,4)}, 0 offen offset:64")
e(f"global_load_short_d16_hi v{vPosOwn}, v{PA}, {s(sPOS,2)}")
e(f"global_load_short_d16_hi v{WX}, v{CA1}, {s(sWE,2)}")
e(f"global_load_short_d16_hi v{WX+1}, v{CA1}, {s(sWE,2)} offset:128")
e(f"global_load_short_d16_hi v{WX0}, v{CA0}, {s(sWX,2)}")
e(f"global_load_short_d16_hi v{WX1}, v{CA0}, {s(sWX,2)} offset:4")
for i in range(5): e(f"v_lshl_add_u32 v{XW+2*i}, v{DSTR+i}, 2, s{sTAGR}")
for i in range(5): e(f"v_mad_i32_i24 v{XW+2*i}, v{B4+i}, s62, v{XW+2*i}")
e(f"v_lshlrev_b32 v1, 4, v{L}")
e("s_waitcnt lgkmcnt(0)")
e("s_barrier")
e(f"ds_read_b128 v[4:7], v1 offset:{CNT1}")
e(f"s_lshl_b32 s60, s2, 10")
e(f"s_add_u32 s60, s60, {WS_OFF}")
e("v_add_u32 v2, s60, v1")
e(f"s_lshl_b32 s60, s{sW}, 3")
e("s_lshl_b64 s[62:63], 0xff, s60")
e("s_waitcnt lgkmcnt(0)")
e("v_add_u32 v5, v4, v5")
e("v_add_u32 v6, v5, v6")
e("v_add_u32 v7, v6, v7")
e("v_mov_b32 v3, v7")
scan(3)
e("v_sub_u32 v8, v3, v7")
e("v_add_u32 v9, v8, v4")
e("v_add_u32 v10, v8, v5")
e("v_add_u32 v11, v8, v6")
e(f"ds_write_b128 v1, v[8:11] offset:{OFF1}")
for i in range(5): e(f"ds_read_b32 v{B4+i}, v{B4+i} offset:{OFF1}")
e("v_lshl_or_b32 v4, v9, 16, v8")
e("v_lshl_or_b32 v5, v11, 16, v10")
e("v_mov_b32 v6, v3")
e(f"v_mov_b32 v7, s{sTAG}")
e("s_mov_b64 exec, s[62:63]")
e(f"global_store_dwordx4 v2, v[4:7], {s(sWS,2)} sc1")
e("s_mov_b64 exec, -1")
e("s_mov_b32 s60, 0xffff0000")
e(f"s_waitcnt vmcnt({12+nst})")
e(f"v_lshl_or_b32 v{XW+1}, v{ER}, 16, v{SRCR}")
e(f"v_and_or_b32 v{XW+3}, v{ER}, s60, v{SRCR+1}")
e(f"v_lshl_or_b32 v{XW+5}, v{ER+1}, 16, v{SRCR+2}")
e(f"v_and_or_b32 v{XW+7}, v{ER+1}, s60, v{SRCR+3}")
e(f"v_or_b32 v{XW+9}, v{ER+2}, v{SRCR+4}")
for i in range(5):
    e(f"s_waitcnt lgkmcnt({4-i+min(i,1)*0 if False else 0})") if i == 0 else None
    e(f"v_add_u32 v{B4+i}, v{B4+i}, v{RK+i}")
    e(f"ds_write_b64 v{B4+i}, {v(XW+2*i,2)} offset:{POS}")
PA4 = 16; PL = 32
e("v_lshrrev_b32 v1, 3, v0")
e(f"s_lshr_b32 s60, s{sB}, 2")
e("s_lshl_b32 s60, s60, 4")
e(f"s_add_u32 s60, s60, {WS_OFF}")
e(f"v_lshl_add_u32 v{PA4}, v1, 10, s60")
e(f"v_add_u32 v{PA4+1}, {64*1024}, v{PA4}")
e(f"v_add_u32 v{PA4+2}, {128*1024}, v{PA4}")
e("v_add_u32 v1, 192, v1")
e(f"v_min_u32 v1, {NWG-1}, v1")
e(f"v_lshl_add_u32 v{PA4+3}, v1, 10, s60")
e(f"s_mul_i32 s60, s2, {CH*8}")
e(f"s_add_u32 s60, s60, {WS_REC}")
e("v_add_u32 v2, s60, v12")
e("v_add_u32 v3, 8192, v2")
e("v_add_u32 v4, 16384, v2")
e("s_waitcnt vmcnt(1) lgkmcnt(0)")
e("s_barrier")
stamp(2)
ST = 48
e(f"ds_read_b128 {v(ST,4)}, v12 offset:{POS}")
e(f"ds_read_b128 {v(ST+4,4)}, v12 offset:{POS+8192}")
e(f"ds_read_b128 {v(ST+8,4)}, v12 offset:{POS+16384}")
def poll_loads():
    for p in range(4): e(f"global_load_dwordx4 {v(PL+4*p,4)}, v{PA4+p}, {s(sWS,2)} sc1")
poll_loads()
e("s_waitcnt lgkmcnt(2)")
e(f"global_store_dwordx4 v2, {v(ST,4)}, {s(sWS,2)} sc1")
e("s_waitcnt lgkmcnt(1)")
e(f"global_store_dwordx4 v3, {v(ST+4,4)}, {s(sWS,2)} sc1")
e("s_waitcnt lgkmcnt(0)")
e(f"s_lshl_b32 s60, s{sW}, 10")
e(f"s_cmp_ge_u32 s{sW}, 4")
e("s_cbranch_scc1 L_no3")
e(f"global_store_dwordx4 v4, {v(ST+8,4)}, {s(sWS,2)} sc1")
e(f"s_add_u32 m0, s60, {POS+7*8192}")
e(f"s_mov_b32 s61, {7*8192}")
e(f"buffer_load_dwordx4 v12, {s(srdPOS,4)}, s61 offen lds")
e.label("L_no3")
e(f"s_cmp_lg_u32 s2, {NWG-1}")
e("s_cbranch_scc1 L_nodummy")
e(f"v_mov_b32 v5, {WS_REC + NWG*CH*8}")
e(f"v_mov_b32 v6, s{sTAGR}")
e(f"global_store_dword v5, v6, {s(sWS,2)} sc1")
e.label("L_nodummy")
for i in range(7):
    e(f"s_add_u32 m0, s60, {POS+i*8192}")
    e(f"s_mov_b32 s61, {i*8192}")
    e(f"buffer_load_dwordx4 v12, {s(srdPOS,4)}, s61 offen lds")
e(f"v_mul_f32 v{WX}, {hex(fbits(-LOG2E))}, v{WX}")
e(f"v_mul_f32 v{WX+1}, {hex(fbits(-LOG2E))}, v{WX+1}")
e(f"v_cvt_pk_bf16_f32 v1, v{WX}, v{WX}")
e("v_and_b32 v1, 0xffff0000, v1")
e(f"v_sub_f32 v2, v{WX}, v1")
e(f"v_cvt_pk_bf16_f32 v{WX}, v1, v2")
e(f"v_cvt_pk_bf16_f32 v{WX+1}, 0, v{WX+1}")
e(f"s_cmp_ge_u32 s{sW}, 6")
e("s_cbranch_scc1 L_w67")
WT = 80; DT = 112; W1T = 128
e(f"v_bfe_u32 v1, v{L}, 2, 2")
e(f"v_and_b32 v2, 3, v{L}")
e(f"v_lshrrev_b32 v3, 4, v{L}")
e("v_lshl_add_u32 v4, v3, 3, v1")
e(f"s_xor_b32 s60, s{sCHF}, 1")
e("s_lshl_b32 s60, s60, 13")
e(f"s_add_u32 s60, s60, {WE}")
e("v_lshl_add_u32 v5, v4, 7, s60")
e("v_lshl_add_u32 v5, v2, 3, v5")
for t in range(4):
    for ks in range(2):
        for rd in range(2):
            e(f"ds_read_b64_tr_b16 {v(WT+8*t+4*ks+2*rd,2)}, v5 offset:{ks*4096+rd*512+t*32}")
e(f"s_lshl_b32 s60, s{sCHF}, 6")
e(f"s_add_u32 s60, s60, {WH}")
e("v_lshl_add_u32 v6, v2, 4, s60")
e("v_lshl_add_u32 v5, v4, 7, v6")
e("v_lshl_add_u32 v4, v1, 2, v3")
e("v_lshl_add_u32 v6, v4, 9, v6")
e("s_waitcnt lgkmcnt(0)")
for t in range(2):
    for ks in range(2):
        for rd in range(2):
            e(f"ds_read_b64_tr_b16 {v(W1T+8*t+4*ks+2*rd,2)}, v5 offset:{ks*4096+rd*512+t*8}")
for t in range(4):
    e(f"v_mfma_f32_16x16x32_bf16 {v(DT+4*t,4)}, {v(HF,4)}, {v(WT+8*t,4)}, 0")
    e(f"v_mfma_f32_16x16x32_bf16 {v(DT+4*t,4)}, {v(HF+4,4)}, {v(WT+8*t+4,4)}, {v(DT+4*t,4)}")
e("s_waitcnt lgkmcnt(0)")
for t in range(2):
    for c in range(2):
        for rd in range(2):
            e(f"ds_read_b64_tr_b16 {v(WH2+8*t+4*c+2*rd,2)}, v6 offset:{8192+c*256+rd*128+t*8}")
for t in range(2):
    e(f"v_mfma_f32_16x16x32_bf16 {v(H1+4*t,4)}, {v(W1T+8*t,4)}, {v(HF,4)}, 0")
    e(f"v_mfma_f32_16x16x32_bf16 {v(H1+4*t,4)}, {v(W1T+8*t+4,4)}, {v(HF+4,4)}, {v(H1+4*t,4)}")
for i in range(16): e(f"v_mul_f32 v{DT+i}, {hex(fbits(-LOG2E))}, v{DT+i}")
e(f"v_and_b32 v1, 15, v{L}")
e(f"s_cmp_ge_u32 s{sW}, 3")
e("s_cbranch_scc1 L_w345")
for r in range(4):
    e(f"v_cvt_pk_bf16_f32 v{WT+2*r}, v{DT+r}, v{DT+4+r}")
    e(f"v_cvt_pk_bf16_f32 v{WT+2*r+1}, v{DT+8+r}, v{DT+12+r}")
e(f"s_lshl_b32 s60, s{sNG}, 4")
e(f"s_add_u32 s60, s60, s{sN0}")
e("s_lshl_b32 s60, s60, 7")
e(f"s_add_u32 s60, s60, {WS_BP}")
e("v_lshl_add_u32 v2, v3, 9, s60")
e("v_lshl_add_u32 v2, v1, 3, v2")
for i in range(4): e(f"v_mov_b32 v{HRES+i}, v{HF+i}")
e(f"s_cmp_eq_u32 s{sNG}, 2")
e("s_cselect_b32 exec_hi, 0, -1")
for r in range(4): e(f"global_store_dwordx2 v2, {v(WT+2*r,2)}, {s(sWS,2)} offset:{r*128} sc1")
e("s_mov_b64 exec, -1")
e("s_branch L_wdone")
e.label("L_w345")
for t in range(4):
    e(f"v_cvt_pk_bf16_f32 v{WT+2*t}, v{DT+4*t}, v{DT+4*t+1}")
    e(f"v_cvt_pk_bf16_f32 v{WT+2*t+1}, v{DT+4*t+2}, v{DT+4*t+3}")
e(f"s_lshl_b32 s60, s{sNG}, 5")
e(f"s_add_u32 s60, s60, {AT}")
e("v_lshl_add_u32 v2, v3, 3, s60")
e(f"v_mul_u32_u24 v1, {ATS}, v1")
e("v_add_u32 v2, v1, v2")
for i in range(4): e(f"v_mov_b32 v{HRES+i}, v{HF+4+i}")
for t in range(4): e(f"ds_write_b64 v2, {v(WT+2*t,2)} offset:{t*16*ATS}")
e("s_branch L_wdone")
e.label("L_w67")
e(f"v_mul_u32_u24 v1, 171, v{vAItem}")
e("v_lshrrev_b32 v1, 9, v1")
e(f"v_mad_i32_i24 v2, v1, -3, v{vAItem}")
e("v_lshlrev_b32 v3, 8, v2")
e("v_lshl_add_u32 v3, v1, 2, v3")
e(f"ds_write_b32 v3, v{vPosOwn} offset:{PD}")
e(f"v_mul_u32_u24 v1, {ACCS}, v1")
e("v_lshl_add_u32 v1, v2, 7, v1")
e(f"v_add_u32 v{H1}, {ACC+256}, v1")
e.label("L_wdone")
stamp(3)
e("s_waitcnt vmcnt(0)")
e(f"s_cmp_ge_u32 s{sW}, 3")
e("s_cbranch_scc1 L_chkoff")
e("s_lshl_b32 s60, s2, 7")
e(f"s_lshl_b32 s61, s{sW}, 2")
e("s_add_u32 s60, s60, s61")
e(f"s_add_u32 s60, s60, {WS_FLAG}")
e("v_mov_b32 v1, s60")
e(f"v_mov_b32 v2, s{sTAG}")
e("s_mov_b64 exec, 1")
e(f"global_store_dword v1, v2, {s(sWS,2)} sc1")
e("s_mov_b64 exec, -1")
e.label("L_chkoff")
e(f"v_cmp_ne_u32 s[60:61], s{sTAG}, v{PL+3}")
e(f"v_cmp_ne_u32 s[62:63], s{sTAG}, v{PL+7}")
e(f"v_cmp_ne_u32 s[96:97], s{sTAG}, v{PL+11}")
e(f"v_cmp_ne_u32 vcc, s{sTAG}, v{PL+15}")
e("s_or_b64 s[60:61], s[60:61], s[62:63]")
e("s_or_b64 s[96:97], s[96:97], vcc")
e("s_or_b64 s[60:61], s[60:61], s[96:97]")
e("s_cbranch_scc0 L_gotoff")
e(f"s_cmp_eq_u32 s{sBUD}, 0")
e("s_cbranch_scc1 L_gotoff")
e(f"s_sub_u32 s{sBUD}, s{sBUD}, 1")
poll_loads()
e("s_waitcnt vmcnt(0)")
e("s_branch L_chkoff")
e.label("L_gotoff")
stamp(4)
e(f"s_and_b32 s60, s{sB}, 1")
e("s_lshl_b32 s60, s60, 4")
e(f"s_bitcmp1_b32 s{sB}, 1")
e("s_cbranch_scc1 L_hi2")
for p in range(4): e(f"v_alignbit_b32 v{SEG+p}, v{PL+4*p+1}, v{PL+4*p}, s60")
e("s_branch L_segs")
e.label("L_hi2")
for p in range(4): e(f"v_alignbit_b32 v{SEG+p}, v{PL+4*p+2}, v{PL+4*p+1}, s60")
e.label("L_segs")
e(f"v_cmp_gt_u32 vcc, {(NWG-192)*8}, v0")
e("s_nop 1")
e(f"v_cndmask_b32 v{SEG+3}, 0, v{SEG+3}, vcc")
RA = 16; RB = 32; KA = 48; KB = 56; AD = 64; LM = 68; FL = 72
mk = lambda rnd, p, h: sMK + 2 * (rnd * 8 + p * 2 + h)
e.label("L_batch")
e("v_lshrrev_b32 v1, 3, v0")
e("v_and_b32 v2, 7, v0")
e("v_lshlrev_b32 v2, 4, v2")
e(f"v_mul_u32_u24 v1, {CH*8}, v1")
e("v_add_u32 v1, v1, v2")
for p in range(4):
    e(f"s_add_u32 s60, s{sR0}, {WS_REC + p*64*CH*8}")
    e(f"s_add_u32 s{sRB+2*p}, s{sWS}, s60")
    e(f"s_addc_u32 s{sRB+2*p+1}, s{sWS+1}, 0")
for p in range(4):
    e(f"v_sub_u32_sdwa v{LM+p}, v{SEG+p}, v{SEG+p} {SD} src0_sel:WORD_1 src1_sel:WORD_0")
    e(f"v_add_u32_sdwa v{AD+p}, v{SEG+p}, v1 {SD} src0_sel:WORD_0 src1_sel:DWORD")
    e(f"v_subrev_u32 v{LM+p}, s{sR0}, v{LM+p}")
e(f"v_max3_i32 v3, v{LM}, v{LM+1}, v{LM+2}")
e(f"v_max_i32 v3, v3, v{LM+3}")
for p in range(4):
    e(f"v_min_i32 v{LM+p}, s{sS}, v{LM+p}")
    e(f"v_sub_u32 v{LM+p}, v{LM+p}, v2")
e("s_movk_i32 s60, 128")
e("s_movk_i32 s61, 136")
for p in range(4):
    e(f"v_cmp_lt_i32 {s(mk(0,p,0),2)}, 0, v{LM+p}")
    e(f"v_cmp_lt_i32 {s(mk(1,p,0),2)}, s60, v{LM+p}")
e.label("L_fetch")
for p in range(4):
    e(f"v_mov_b32 v{RA+4*p}, s{sTAGR}")
    e(f"v_mov_b32 v{RA+4*p+2}, s{sTAGR}")
    e(f"s_mov_b64 exec, {s(mk(0,p,0),2)}")
    e(f"global_load_dwordx4 {v(RA+4*p,4)}, v{AD+p}, {s(sRB+2*p,2)} sc1")
    e("s_mov_b64 exec, -1")
for p in range(4):
    e(f"v_mov_b32 v{RB+4*p}, s{sTAGR}")
    e(f"v_mov_b32 v{RB+4*p+2}, s{sTAGR}")
    e(f"s_mov_b64 exec, {s(mk(1,p,0),2)}")
    e(f"s_cbranch_execz L_nlb{p}")
    e(f"global_load_dwordx4 {v(RB+4*p,4)}, v{AD+p}, {s(sRB+2*p,2)} offset:128 sc1")
    e.label(f"L_nlb{p}")
    e("s_mov_b64 exec, -1")
for p in range(4):
    e(f"v_cmp_lt_i32 {s(mk(0,p,1),2)}, 8, v{LM+p}")
    e(f"v_cmp_lt_i32 {s(mk(1,p,1),2)}, s61, v{LM+p}")
e("v_mov_b32 v13, 8")
e("s_waitcnt vmcnt(0)")
for i in range(16): e(f"v_xor_b32 v{RA+2*i}, s{sTAGR}, v{RA+2*i}")
e(f"v_or3_b32 v4, v{RA}, v{RA+2}, v{RA+4}")
e(f"v_or3_b32 v5, v{RA+6}, v{RA+8}, v{RA+10}")
for i in range(6, 16, 2): e(f"v_or3_b32 v{4+(i//2)%2}, v{4+(i//2)%2}, v{RA+2*i}, v{RA+2*i+2}")
e("v_or_b32 v4, v4, v5")
e("v_cmp_lt_u32 vcc, 0xff, v4")
e("s_and_b64 vcc, vcc, vcc")
e("s_cbranch_scc0 L_gotrec")
e(f"s_cmp_eq_u32 s{sBUD}, 0")
e("s_cbranch_scc1 L_gotrec")
e(f"s_sub_u32 s{sBUD}, s{sBUD}, 1")
e("s_branch L_fetch")
e.label("L_gotrec")
stamp(5)
for p in range(4):
    for h in range(2):
        e(f"s_mov_b64 exec, {s(mk(0,p,h),2)}")
        e(f"ds_add_rtn_u32 v{KA+2*p+h}, v{RA+4*p+2*h}, v13 offset:{CNT2}")
for p in range(4):
    e(f"s_mov_b64 exec, {s(mk(1,p,0),2)}")
    e(f"s_cbranch_execz L_nab{p}")
    e(f"ds_add_rtn_u32 v{KB+2*p}, v{RB+4*p}, v13 offset:{CNT2}")
    e(f"s_mov_b64 exec, {s(mk(1,p,1),2)}")
    e(f"ds_add_rtn_u32 v{KB+2*p+1}, v{RB+4*p+2}, v13 offset:{CNT2}")
    e.label(f"L_nab{p}")
e("s_mov_b64 exec, -1")
e(f"v_cmp_lt_i32 vcc, s{sS}, v3")
e(f"v_min_u32 v1, {NWG-1}, v0")
e(f"v_lshlrev_b32 v1, 7, v1")
e(f"v_add_u32 v{FL+3}, {WS_FLAG}, v1")
e("s_mov_b64 exec, vcc")
e(f"ds_write_b32 v{ZP}, v13 offset:{CNT2+252}")
e("s_mov_b64 exec, -1")
e(f"s_cmp_ge_u32 s{sW}, 4")
e("s_cbranch_scc1 L_nofl")
e(f"global_load_dwordx3 {v(FL,3)}, v{FL+3}, {s(sWS,2)} sc1")
e.label("L_nofl")
e(f"v_lshlrev_b32 v1, 2, v{L}")
e(f"v_cmp_gt_u32 vcc, {NB}, v{L}")
e("s_waitcnt lgkmcnt(0)")
e("s_barrier")
e(f"ds_read_b32 v2, v1 offset:{CNT2}")
e("s_waitcnt lgkmcnt(0)")
e(f"v_max_u32 v4, {PADB}, v2")
e(f"v_readlane_b32 s{sMORE}, v2, 63")
e("v_cndmask_b32 v4, 0, v4, vcc")
e("v_mov_b32 v5, v4")
scan(5)
e(f"v_sub_u32 v6, v5, v4")
e(f"v_add_u32 v6, {SORT2}, v6")
e(f"v_readlane_b32 s3, v5, 63")
e(f"ds_write_b32 v1, v6 offset:{BASE2}")
e(f"s_cmp_gt_u32 s3, {CAPB}")
e("s_cbranch_scc1 L_redo")
LK = 80
for i in range(8): e(f"ds_read_b32 v{LK+i}, v{RA+2*i} offset:{BASE2}")
e(f"s_cmp_lg_u32 s{sW}, 0")
e("s_cbranch_scc1 L_nomark")
e(f"s_add_u32 s60, s3, {SORT2}")
e("v_lshl_add_u32 v7, v1, 1, s60")
e(f"v_mov_b32 v8, {(NB-1)*4}")
e("v_mov_b32 v9, 10000")
e("ds_write_b64 v7, v[8:9]")
e("v_cmp_lt_u32 vcc, v2, v4")
e("v_mov_b32 v8, v1")
e("s_and_b64 exec, vcc, vcc")
e("s_cbranch_scc0 L_nopad")
e.label("L_pad")
e("v_add_u32 v7, v6, v2")
e("v_add_u32 v2, 8, v2")
e("ds_write_b64 v7, v[8:9]")
e("v_cmp_lt_u32 vcc, v2, v4")
e("s_and_b64 exec, vcc, vcc")
e("s_cbranch_scc1 L_pad")
e.label("L_nopad")
e("s_mov_b64 exec, -1")
e("s_cmp_lg_u32 s2, 0")
e("s_cbranch_scc1 L_nomark")
e(f"v_mov_b32 v7, s{sTAG}")
e("s_mov_b64 exec, 1")
e(f"global_store_dword v{ZP}, v7, {s(sWS,2)}")
e("s_mov_b64 exec, -1")
e.label("L_nomark")
e("s_add_u32 s3, s3, 127")
e("s_lshr_b32 s3, s3, 7")
e("s_lshr_b32 s60, s3, 3")
e("s_and_b32 s61, s3, 7")
e(f"s_mul_i32 s62, s60, s{sW}")
e(f"s_min_u32 s63, s61, s{sW}")
e("s_add_u32 s62, s62, s63")
e(f"s_cmp_lt_u32 s{sW}, s61")
e(f"s_addc_u32 s{sCNT}, s60, 0")
e("s_lshl_b32 s62, s62, 7")
e(f"s_add_u32 s62, s62, {SORT2}")
e(f"v_lshl_add_u32 v{aRec}, v{L}, 3, s62")
e("s_add_u32 s62, s62, 4")
e(f"v_add_u32 v{aIdx}, s62, v{vIdxL}")
e("s_waitcnt lgkmcnt(0)")
for p in range(4):
    for h in range(2):
        i = 2*p+h
        e(f"s_mov_b64 exec, {s(mk(0,p,h),2)}")
        e(f"v_add_u32 v{LK+i}, v{LK+i}, v{KA+i}")
        e(f"ds_write_b64 v{LK+i}, {v(RA+2*i,2)}")
for p in range(4):
    e(f"s_mov_b64 exec, {s(mk(1,p,0),2)}")
    e(f"s_cbranch_execz L_nsb{p}")
    e(f"ds_read_b32 v4, v{RB+4*p} offset:{BASE2}")
    e(f"ds_read_b32 v5, v{RB+4*p+2} offset:{BASE2}")
    e("s_waitcnt lgkmcnt(0)")
    e(f"v_add_u32 v4, v4, v{KB+2*p}")
    e(f"v_add_u32 v5, v5, v{KB+2*p+1}")
    e(f"ds_write_b64 v4, {v(RB+4*p,2)}")
    e(f"s_mov_b64 exec, {s(mk(1,p,1),2)}")
    e(f"ds_write_b64 v5, {v(RB+4*p+2,2)}")
    e.label(f"L_nsb{p}")
e("s_mov_b64 exec, -1")
e(f"s_cmp_ge_u32 s{sW}, 4")
e("s_cbranch_scc1 L_gotfl")
e.label("L_chkfl")
e("s_waitcnt vmcnt(0)")
e(f"v_cmp_ne_u32 s[60:61], s{sTAG}, v{FL}")
e(f"v_cmp_ne_u32 s[62:63], s{sTAG}, v{FL+1}")
e(f"v_cmp_ne_u32 vcc, s{sTAG}, v{FL+2}")
e("s_or_b64 s[60:61], s[60:61], s[62:63]")
e("s_or_b64 s[60:61], s[60:61], vcc")
e("s_cbranch_scc0 L_gotfl")
e(f"s_cmp_eq_u32 s{sBUD}, 0")
e("s_cbranch_scc1 L_gotfl")
e(f"s_sub_u32 s{sBUD}, s{sBUD}, 1")
e(f"global_load_dwordx3 {v(FL,3)}, v{FL+3}, {s(sWS,2)} sc1")
e("s_branch L_chkfl")
e.label("L_gotfl")
e("s_waitcnt lgkmcnt(0)")
e("s_barrier")
stamp(6)
e(f"ds_write_b32 v1, v{ZP} offset:{CNT2}")
e(f"s_cmp_eq_u32 s{sCNT}, 0")
e("s_cbranch_scc1 L_b6")
e(f"s_sub_u32 s{sCNT}, s{sCNT}, 1")
def gather(b, pair):
    return [f"buffer_load_dwordx4 {v(G[b],4)}, {v(pair,2)}, {s(srdBP,4)}, 0 idxen offen",
            f"buffer_load_dwordx4 {v(G[b]+4,4)}, {v(pair,2)}, {s(srdBP,4)}, 0 idxen offen offset:64"]
def build1():
    return [f"v_mul_u32_u24_sdwa v{BT}, 6, v{REC+1} {SD} src0_sel:DWORD src1_sel:WORD_0",
            f"ds_read2st64_b32 {v(PDV,2)}, v{REC} offset0:{PD//256} offset1:{PD//256+1}",
            f"ds_read_b64 {v(PS,2)}, v{BT} offset:{POS}",
            f"ds_read_b32 v{PDV+2}, v{REC} offset:{PD+512}",
            f"v_readlane_b32 s{sNF}, v{REC}, 0",
            f"v_readlane_b32 s{sNL}, v{REC}, 63",
            f"v_cmp_ne_u32 vcc, 60000, v{BT}",
            f"v_add_u32 v{BT+1}, v{REC}, v{REC}",
            f"s_mul_i32 s{sNEG}, s{sNF}, -4",
            f"s_lshr_b32 s60, s{sNF}, 1",
            f"s_mov_b64 {s(sVAL,2)}, vcc",
            f"v_lshl_add_u32 v{BT+2}, v{REC}, 2, s{sNEG}",
            f"v_add_u32 v{aAT}, s60, v{aATb}",
            f"v_lshlrev_b64 {v(REC+2,2)}, v{BT+2}, {s(sOHC,2)}"]
def build2():
    return [f"v_dot2_f32_bf16 v{PDV}, v{PS}, s{sM10}, v{PDV}",
            f"v_dot2_f32_bf16 v{PDV+1}, v{PS}, s{sM01}, v{PDV+1}",
            f"v_dot2_f32_bf16 v{PDV+2}, v{PS+1}, s{sM10}, v{PDV+2}",
            None, None,
            f"v_cvt_pk_bf16_f32 v{R2V}, v{PDV}, v{PDV+1}",
            f"v_cvt_pk_bf16_f32 v{R2V+1}, v{PDV+2}, 1.0",
            f"v_dot2_f32_bf16 v{BT}, v{R2V}, v{R2V}, 0",
            f"v_lshlrev_b32 v{BT+2}, 16, v{R2V+1}",
            None, None,
            f"v_fmac_f32 v{BT}, v{BT+2}, v{BT+2}",
            f"v_cvt_pk_bf16_f32 v{REC}, v{BT}, v{BT}"]
def build3():
    return [f"ds_write_b64 v{aR2}, {v(ZP,2)}",
            f"v_bitop3_b32 v{aR2}, v{BT+1}, 56, v{aR2b} bitop3:0x6a",
            f"ds_write_b128 v{aR1w}, {v(REC,4)}",
            f"s_mov_b64 exec, {s(sVAL,2)}\nds_write_b64 v{aR2}, {v(R2V,2)}\ns_mov_b64 exec, -1",
            f"ds_read_b64 {v(WX+2,2)}, v{aAT}"]
def opreads(n):
    return [f"ds_read_b128 {v(R1OP,4)}, v{aR1r} offset:{n*256}",
            f"ds_read_b64_tr_b16 {v(S[n],2)}, v{aS0} offset:{n*1024}",
            f"ds_read_b64_tr_b16 {v(S[n]+2,2)}, v{aS1} offset:{n*1024}"]
def stage1(n):
    t = T[n & 1]
    return [f"v_mfma_f32_32x32x16_bf16 {v(t,16)}, {v(R1OP,4)}, {v(WX,4)}, 0",
            f"v_mfma_f32_32x32x16_bf16 {v(t,16)}, {v(G[n],4)}, {v(I0,4)}, {v(t,16)}",
            f"v_mfma_f32_32x32x16_bf16 {v(t,16)}, {v(G[n]+4,4)}, {v(I1,4)}, {v(t,16)}"]
def stage2(n):
    return [f"v_mfma_f32_32x32x16_bf16 {v(AC[c],16)}, {v(S[n],4)}, {v(M[c],4)}, {v(AC[c],16)}" for c in range(2)]
def mulcvt(q):
    L_ = []
    for a in range(4):
        for r in range(4): L_.append(f"v_mul_f32 v{E[q]+4*a+r}, v{E[q]+4*a+r}, v{T[q]+4*a+r}")
        for c in range(2): L_.append(f"v_cvt_pk_bf16_f32 v{M[c]+a}, v{E[q]+4*a+c}, v{E[q]+4*a+2+c}")
    return L_
def flushchk(lbl):
    e(f"s_sub_u32 s60, s{sNL}, s{sBASE}")
    e("s_cmp_ge_u32 s60, 32")
    e(f"s_cbranch_scc1 L_flush_{lbl}")
    e.label(f"L_flret_{lbl}")
def flush(zero):
    e("s_movk_i32 s61, 164")
    for a in range(4):
        e(f"s_sub_u32 s60, {8*a}, s{sBASE}")
        e(f"v_add_u32 v{1+a}, s60, v{vH4}")
        e(f"v_and_b32 v{1+a}, 28, v{1+a}")
        e(f"v_add_u32 v{1+a}, s{sBASE}, v{1+a}")
        e(f"v_min_u32 v{1+a}, {(NB-1)*4}, v{1+a}")
        e(f"v_mad_u32_u24 v{1+a}, v{1+a}, s61, v{vLA}")
    for a in range(4):
        e(f"ds_add_f32 v{1+a}, v{AC[0]+4*a+3}")
        e(f"ds_add_f32 v{1+a}, v{AC[1]+4*a+3} offset:128")
        for r in range(3):
            e(f"v_mul_f32 v{AC[0]+4*a+r}, v{AC[0]+4*a+r}, v{WX0}")
            e(f"v_fmac_f32 v{AC[0]+4*a+r}, v{AC[1]+4*a+r}, v{WX1}")
            e(f"ds_add_f32 v{1+a}, v{AC[0]+4*a+r} offset:{256+128*r}")
    if zero:
        e("s_waitcnt lgkmcnt(0)")
        for i in range(32): e(f"v_mov_b32 v{AC[0]+i}, 0")
        e(f"s_mov_b32 s{sBASE}, s{sNF}")

def step(sidx, first=False):
    q = sidx & 1; n1 = (sidx + 1) & 3
    side = gather(sidx, IDX) + [f"ds_read_u16 v{IDX}, v{aIdx} offset:{(sidx+5)*128}"]
    if sidx == 3:
        side += build3()
    side += opreads(n1)
    if sidx == 0: side += [f"ds_read_b64 {v(REC,2)}, v{aRec} offset:512"]
    if sidx == 1: side += build1()
    if sidx == 2: side += build2()
    if sidx == 3: side += [f"v_add_u32 v{aIdx}, 512, v{aIdx}", f"v_add_u32 v{aRec}, 512, v{aRec}"]
    if sidx == 1: flushchk("mid")
    if sidx == 0 and OPT["prio"] and not first:
        e(f"s_cmp_gt_u32 s{sCNT}, 8")
        e("s_cbranch_scc1 L_pr")
        e("s_setprio 1")
        e(f"s_cmp_gt_u32 s{sCNT}, 4")
        e("s_cbranch_scc1 L_pr")
        e("s_setprio 0")
        e.label("L_pr")
    exps = [f"v_exp_f32 v{E[q]+i}, v{T[q]+i}" for i in range(16)]
    k = 0
    per = -(-len(side) // 15)
    for i, x in enumerate(exps):
        e(x)
        if i < 15:
            for _ in range(per):
                if k < len(side):
                    if side[k] is None:
                        k += 1; break
                    e(side[k]); k += 1
    rest = side[k:]
    mc = [] if first else mulcvt(1 - q)
    if first:
        e("s_nop 1")
    else:
        e(mc[0]); e(mc[1]); mc = mc[2:]
    e(f"v_mfma_f32_32x32x8_bf16 {v(E[q],16)}, {v(ONE,2)}, {v(ONE,2)}, {v(E[q],16)}")
    k = 0
    for x in mc:
        e(x)
        if k < len(rest):
            if rest[k] is not None: e(rest[k])
            k += 1
    assert k == len(rest)
    if first: e("s_nop 9")
    e("s_waitcnt vmcnt(6) lgkmcnt(0)")
    mf = stage1(n1) + ([] if first else stage2((sidx - 1) & 3))
    rc = [f"v_rcp_f32 v{E[q]+i}, v{E[q]+i}" for i in range(16)]
    for i, x in enumerate(rc):
        if i % 3 == 0 and i // 3 < len(mf): e(mf[i // 3])
        e(x)
    e(f"s_sub_u32 s{sCNT}, s{sCNT}, 1")
    e(f"s_cbranch_scc1 L_drain{sidx}")

PI = E[0]
for n in range(4): e(f"ds_read_u16 v{PI+2*n}, v{aIdx} offset:{n*128}")
e(f"ds_read_b64 {v(REC,2)}, v{aRec}")
e(f"ds_read_u16 v{IDX}, v{aIdx} offset:{4*128}")
for n in range(4): e(f"v_mov_b32 v{PI+2*n+1}, v{IDX+1}")
if OPT["prio"]: e("s_setprio 2")
e("s_waitcnt lgkmcnt(1)")
b1 = build1()
for x in b1[:4]: e(x)
for n in range(4):
    for x in gather(n, PI + 2*n): e(x)
for x in b1[4:]: e(x)
e(f"s_mov_b32 s{sBASE}, s{sNF}")
for i in range(16): e(f"v_mov_b32 v{AC[0]+i}, 0")
e("s_waitcnt lgkmcnt(0)")
zi = 16
for x in build2():
    if x is None:
        e(f"v_mov_b32 v{AC[0]+zi}, 0"); zi += 1
    else: e(x)
for x in build3(): e(x)
for x in opreads(0): e(x)
for i in range(zi, 32): e(f"v_mov_b32 v{AC[0]+i}, 0")
e("s_waitcnt vmcnt(6) lgkmcnt(0)")
for x in stage1(0): e(x)
e("s_nop 11")
stamp(7)
step(0, first=True)
e("s_branch L_s1")
e.label("L_s0")
step(0)
e.label("L_s1")
step(1)
step(2)
step(3)
e("s_branch L_s0")
for sidx in range(4):
    e.label(f"L_drain{sidx}")
    if sidx == 0: flushchk("dr")
    for x in mulcvt(sidx & 1): e(x)
    e("s_nop 1")
    for x in stage2(sidx): e(x)
    if sidx < 3: e("s_branch L_final_flush")
e.label("L_final_flush")
stamp(8)
flush(False)
e.label("L_b6")
e("s_setprio 0")
e("s_waitcnt vmcnt(0) lgkmcnt(0)")
e("s_barrier")
stamp(9)
e(f"s_cmp_eq_u32 s{sMORE}, 0")
e("s_cbranch_scc1 L_fin")
e(f"s_add_u32 s{sR0}, s{sR0}, s{sS}")
e(f"s_mov_b32 s{sS}, 256")
e("s_branch L_batch")
e.label("L_fin")
e(f"s_cmp_ge_u32 s{sW}, 6")
e("s_cbranch_scc1 L_finpos")
e(f"v_and_b32 v1, 15, v{L}")
e(f"v_lshrrev_b32 v2, 4, v{L}")
e(f"s_lshl_b32 s60, s{sNG}, 4")
e("v_add_u32 v1, s60, v1")
e(f"v_mul_u32_u24 v3, {ACCS}, v1")
e("v_lshl_add_u32 v3, v2, 5, v3")
e(f"v_add_u32 v3, {ACC}, v3")
MR = 16; MB = 32; Y = 40; YE = 48
for c in range(2):
    for hf in range(2):
        e(f"ds_read_b128 {v(MR+8*c+4*hf,4)}, v3 offset:{c*128+hf*16}")
e(f"v_cmp_gt_u32 vcc, {NB}, v1")
e(f"v_add_u32 v1, s{sN0}, v1")
e(f"s_lshl_b32 s60, s{sCHF}, 6")
e("v_lshl_add_u32 v2, v2, 4, s60")
e("v_lshl_add_u32 v1, v1, 7, v2")
e(f"s_mov_b32 s60, {hex(fbits(-LN2))}")
for c in range(2):
    e(f"s_waitcnt lgkmcnt({2-2*c})")
    for d in range(4): e(f"v_cvt_pk_bf16_f32 v{MB+4*c+d}, v{MR+8*c+2*d}, v{MR+8*c+2*d+1}")
e("s_nop 1")
for t in range(2):
    e(f"v_mfma_f32_16x16x32_bf16 {v(Y+4*t,4)}, {v(WH2+8*t,4)}, {v(MB,4)}, 0")
    e(f"v_mfma_f32_16x16x32_bf16 {v(Y+4*t,4)}, {v(WH2+8*t+4,4)}, {v(MB+4,4)}, {v(Y+4*t,4)}")
HU = 56
for d in range(4):
    e(f"v_lshlrev_b32 v{HU+2*d}, 16, v{HRES+d}")
    e(f"v_and_b32 v{HU+2*d+1}, 0xffff0000, v{HRES+d}")
for i in range(8): e(f"v_fma_f32 v{Y+i}, v{Y+i}, s60, v{H1+i}")
for i in range(8): e(f"v_mul_f32 v{YE+i}, {hex(fbits(-LOG2E))}, v{Y+i}")
for i in range(8): e(f"v_exp_f32 v{YE+i}, v{YE+i}")
for i in range(8): e(f"v_add_f32 v{YE+i}, 1.0, v{YE+i}")
for i in range(8): e(f"v_rcp_f32 v{YE+i}, v{YE+i}")
for i in range(8): e(f"v_fmac_f32 v{HU+i}, v{Y+i}, v{YE+i}")
for d in range(4): e(f"v_cvt_pk_bf16_f32 v{Y+d}, v{HU+2*d}, v{HU+2*d+1}")
e("s_mov_b64 exec, vcc")
e(f"global_store_dwordx4 v1, {v(Y,4)}, {s(sOUT,2)}")
stamp(10)
e("s_endpgm")
e.label("L_finpos")
for i in range(8): e(f"ds_read_b128 {v(16+4*i,4)}, v{H1} offset:{i*16}")
e("v_and_b32 v1, 127, v0")
e("v_cmp_gt_u32 vcc, 120, v1")
e(f"s_mul_i32 s60, s{sB}, 240")
e("s_add_u32 s60, s60, 1280000")
e("v_lshl_add_u32 v1, v1, 1, s60")
for i in range(1, 8):
    e(f"s_waitcnt lgkmcnt({7-i})")
    for d in range(4): e(f"v_add_f32 v{16+d}, v{16+d}, v{16+4*i+d}")
e("v_add_f32 v16, v16, v17")
e("v_add_f32 v18, v18, v19")
e("v_add_f32 v16, v16, v18")
e(f"v_fmac_f32 v{vPosOwn}, {hex(fbits(-LN2))}, v16")
e(f"v_cvt_pk_bf16_f32 v2, v{vPosOwn}, v{vPosOwn}")
e("s_mov_b64 exec, vcc")
e(f"global_store_short v1, v2, {s(sOUT,2)}")
stamp(10)
e("s_endpgm")
for lbl in ("mid", "dr"):
    e.label(f"L_flush_{lbl}")
    flush(True)
    e(f"s_branch L_flret_{lbl}")
e.label("L_redo")
e(f"s_cmp_eq_u32 s{sS}, 64")
e("s_cbranch_scc1 L_end")
e("s_waitcnt vmcnt(0) lgkmcnt(0)")
e("s_barrier")
e(f"ds_write_b32 v1, v{ZP} offset:{CNT2}")
e(f"s_mov_b32 s{sS}, 64")
e("s_waitcnt lgkmcnt(0)")
e("s_barrier")
e("s_branch L_batch")
e.label("L_end")
e("s_endpgm")

probs = check_cfg(e.lines)
for p in probs: print("HAZARD", p, file=sys.stderr)

ref = open("cdna_kernels/" + KN + ".s.ref").read().split("\n")
hdr = []
for l in ref:
    if l.startswith("; Override launch"): break
    hdr.append(l)
out = "\n".join(hdr) + f"""
; One persistent launch: 250 workgroups (one per CU) bin the edges by destination bucket, hand the bins
; over through d_ws (tagged with a per-launch epoch), then each workgroup updates its 40 nodes.
; @launch grid=({NWG},1,1) block=(512,1,1) lds={LDS_SIZE}
.amdgcn_target "amdgcn-amd-amdhsa--gfx950"
.text
.globl {KN}_kernel
.p2align 8
.type {KN}_kernel,@function
{KN}_kernel:
{e.text()}.section .rodata,"a"
.p2align 6
.amdhsa_kernel {KN}_kernel
  .amdhsa_next_free_vgpr 256
  .amdhsa_next_free_sgpr 102
  .amdhsa_accum_offset 256
  .amdhsa_group_segment_fixed_size 0
  .amdhsa_kernarg_size 88
  .amdhsa_user_sgpr_count 2
  .amdhsa_user_sgpr_kernarg_segment_ptr 1
  .amdhsa_system_sgpr_workgroup_id_x 1
  .amdhsa_float_denorm_mode_32 3
.end_amdhsa_kernel
"""
open(sys.argv[1], "w").write(out)
print("wrote", sys.argv[1], len(e.lines), "lines;", len(probs), "hazards", file=sys.stderr)
```

```python
import sys, struct
from asmlib import Emit, v, s, check_cfg

KN = "standalone__cheap_equivariant_egnn__graph"
OPT = dict(stamps=False, prio=True, posat="window")
for a in sys.argv[2:]:
    k, _, val = a.partition("=")
    try: OPT[k] = eval(val) if val else True
    except Exception: OPT[k] = val

def fbits(x): return struct.unpack("<I", struct.pack("<f", x))[0]
LOG2E = 1.4426950408889634; LN2 = 0.6931471805599453
NL2E = hex(fbits(-LOG2E)); NLN2 = hex(fbits(-LN2))

NWG = 250; CH = 2560; NB = 40
CNT1 = 0x0; OFF1 = 0x400; CNT2 = 0x800; LNK = 0x900; BASE2 = 0xA00; PD = 0xB00; WXT = 0xE00
POS = 0xF00; SORT2 = POS + 61440; CAPB = 3072 * 8
R1 = SORT2 + CAPB + 512; R2 = R1 + 8192; ACC = R2 + 32768; ACCS = 304
BF = ACC + NB * ACCS; AT = BF + 8 * ACCS; ATS = 104; LDS_END = AT + 64 * ATS
STG = R2; WE = SORT2; WH = SORT2 + 16384
OOB = 0x100000
LDS_SIZE = 163840
assert LDS_END <= LDS_SIZE and WH + 16384 <= R2 and R2 % 64 == 0
PADB = 32 * 8; SFALL = 48
WS_FLAG = 0x1000; WS_OFF = 0x10000; WS_BP = 0x100000; WS_REC = 0x300000; WS_STAMP = 0x1000000
TAGC = 0x9E3779B1
sH, sPOS, sE, sSRC, sDST, sWE, sWX, sWH, sOUT, sDBG, sWS = 4, 6, 8, 10, 12, 14, 16, 18, 20, 22, 24
sW, sB = 26, 27
srdBP, srdPOS, srdH = 28, 32, 36
sTAG, sTAGR, sBUD, sR0, sS, sN0, sNG, sCHF = 40, 41, 42, 43, 44, 45, 46, 47
sOHC, sNFW, sNLW, sCNT, sBASE, sNF, sNL, sNEG, sMORE, sVAL = 48, 50, 51, 52, 53, 54, 55, 56, 57, 58
sSLOW = 16
sMK = 64
sRB = 8
T = [16, 32]; E = [48, 64]; AC = [80, 96]; M = [112, 116]; G = [120, 128, 136, 144]; S = [152, 156, 160, 164]
R1OP = 168; WX = 172; I0 = 176; I1 = 180; ONE = 184; IDX = 186
aIdx, aRec, aR1r, aS0, aS1, aR1w, aR2b, aR2, aATb, aAT = 188, 189, 190, 191, 192, 193, 194, 195, 196, 197
vRowM, vRowP = 198, 199
REC = 200; R2V = 204; PS = 206; PDV = 210; BT = 213; ZP = 216; vIdxL = 218; vPosOwn = 219
SEG = 220; vMask = 224; vWxa = 225; H1 = 226; HRES = 234; WH2 = 238; vLane = 254; vAItem = 255
L = vLane

e = Emit()
def stamp(i, last=False):
    if not OPT["stamps"]: return
    if i > 0:
        e("s_mov_b32 m0, s101")
        e("v_writelane_b32 v15, s98, m0")
    e("s_memrealtime s[98:99]")
    e(f"s_mov_b32 s101, {i}")
    if last:
        e("s_mov_b64 exec, -1")
        e("s_waitcnt lgkmcnt(0)")
        e(f"v_writelane_b32 v15, s98, {i}")
        e("s_lshl_b32 s100, s2, 3")
        e(f"s_add_u32 s100, s100, s{sW}")
        e("s_lshl_b32 s100, s100, 7")
        e(f"s_add_u32 s100, s100, {WS_STAMP}")
        e(f"v_lshl_add_u32 v14, v{L}, 2, s100")
        e("s_mov_b64 exec, 0xffff")
        e(f"global_store_dword v14, v15, {s(sWS,2)}")

def scan(r):
    for m in ("row_shr:1", "row_shr:2", "row_shr:4", "row_shr:8"):
        e("s_nop 1")
        e(f"v_add_u32_dpp v{r}, v{r}, v{r} {m} row_mask:0xf bank_mask:0xf bound_ctrl:1")
    e("s_nop 1")
    e(f"v_add_u32_dpp v{r}, v{r}, v{r} row_bcast:15 row_mask:0xa bank_mask:0xf")
    e("s_nop 1")
    e(f"v_add_u32_dpp v{r}, v{r}, v{r} row_bcast:31 row_mask:0xc bank_mask:0xf")

SD = "dst_sel:DWORD dst_unused:UNUSED_PAD"

def posdma():
    e(f"s_lshl_b32 s60, s{sW}, 10")
    for i in range(8):
        if i == 7:
            e(f"s_cmp_ge_u32 s{sW}, 4")
            e("s_cbranch_scc1 L_nop8")
        e(f"s_add_u32 m0, s60, {POS+i*8192}")
        e(f"s_mov_b32 s61, {i*8192}")
        e(f"buffer_load_dwordx4 v12, {s(srdPOS,4)}, s61 offen lds")
    e.label("L_nop8")

DSTR = 16; SRCR = 24; ER = 32; XW = 36; B4 = 48; RK = 56
stamp(0)
e(f"s_cmp_ge_u32 s2, {NWG}")
e("s_cbranch_scc1 L_end")
e("s_load_dwordx16 s[4:19], s[0:1], 0")
e("s_load_dwordx4 s[20:23], s[0:1], 64")
e("s_load_dwordx2 s[24:25], s[0:1], 80")
e(f"s_mul_i32 s3, s2, {CH*4}")
e("v_lshl_add_u32 v1, v0, 4, s3")
e(f"s_add_u32 s60, s3, 8192")
e("v_lshl_add_u32 v2, v0, 2, s60")
e("s_lshr_b32 s3, s3, 1")
e("v_lshl_add_u32 v3, v0, 3, s3")
e("s_add_u32 s60, s3, 4096")
e("v_lshl_add_u32 v4, v0, 1, s60")
e("v_lshrrev_b32 v5, 6, v0")
e(f"v_and_b32 v{L}, 63, v0")
e(f"v_readfirstlane_b32 s{sW}, v5")
for i in range(4): e(f"v_mov_b32 v{8+i}, 0")
e("v_lshlrev_b32 v12, 4, v0")
e("s_waitcnt lgkmcnt(0)")
e(f"global_load_dwordx4 {v(DSTR,4)}, v1, {s(sDST,2)}")
e(f"global_load_dword v{DSTR+4}, v2, {s(sDST,2)}")
e(f"global_load_dwordx4 {v(SRCR,4)}, v1, {s(sSRC,2)}")
e(f"global_load_dword v{SRCR+4}, v2, {s(sSRC,2)}")
e(f"global_load_dwordx2 {v(ER,2)}, v3, {s(sE,2)}")
e(f"global_load_short_d16_hi v{ER+2}, v4, {s(sE,2)}")
e(f"s_load_dword s{sTAG}, {s(sWS,2)}, 0")
e(f"s_cmp_ge_u32 s{sW}, 3")
e("s_cbranch_scc1 L_nozc")
e("ds_write_b128 v12, v[8:11]")
e.label("L_nozc")
e(f"v_add_u32 v1, {R2}, v12")
assert R2 + 6*8192 >= AT and R2 + 6*8192 <= LDS_SIZE
for i in range(2, 6): e(f"ds_write_b128 v1, v[8:11] offset:{i*8192}")
e("s_and_b32 s60, s2, 7")
e(f"s_mul_i32 s{sB}, s60, 31")
e("s_min_u32 s60, s60, 2")
e(f"s_add_u32 s{sB}, s{sB}, s60")
e("s_lshr_b32 s60, s2, 3")
e(f"s_add_u32 s{sB}, s{sB}, s60")
e(f"s_mul_i32 s{sN0}, s{sB}, {NB}")
e(f"s_mul_i32 s{sCHF}, s{sW}, 86")
e(f"s_lshr_b32 s{sCHF}, s{sCHF}, 8")
e(f"s_mul_i32 s60, s{sCHF}, 3")
e(f"s_sub_u32 s{sNG}, s{sW}, s60")
e(f"s_mov_b32 s{srdH}, s{sH}")
e(f"s_and_b32 s{srdH+1}, s{sH+1}, 0xffff")
e(f"s_mov_b32 s{srdH+2}, 1280000")
e(f"s_mov_b32 s{srdH+3}, 0x20000")
CA0 = 64; CA1 = 65; HA = 66; PA = 67; WA1 = 68; HF = 72
e(f"v_add_u32 v{WA1}, 8192, v12")
e(f"s_lshl_b32 s60, s{sW}, 10")
for base, ptr in ((WE, sWE), (WH, sWH)):
    for k2, a in ((0, 12), (8192, WA1)):
        e(f"s_add_u32 m0, s60, {base+k2}")
        e("s_nop 0")
        e(f"global_load_lds_dwordx4 v{a}, {s(ptr,2)}")
e(f"s_lshl_b32 s60, s{sNG}, 4")
e(f"s_add_u32 s60, s60, s{sN0}")
e(f"v_and_b32 v7, 15, v{L}")
e("v_add_u32 v7, s60, v7")
e(f"v_and_b32 v13, 48, v{L}")
e(f"v_lshl_add_u32 v{HA}, v7, 7, v13")
e(f"buffer_load_dwordx4 {v(HF,4)}, v{HA}, {s(srdH,4)}, 0 offen")
e(f"buffer_load_dwordx4 {v(HF+4,4)}, v{HA}, {s(srdH,4)}, 0 offen offset:64")
e("v_and_b32 v7, 127, v0")
e(f"v_min_u32 v{vAItem}, 119, v7")
e(f"s_mul_i32 s60, s{sB}, 240")
e(f"v_lshl_add_u32 v{PA}, v{vAItem}, 1, s60")
e(f"global_load_short_d16_hi v{vPosOwn}, v{PA}, {s(sPOS,2)}")
e(f"v_lshrrev_b32 v1, 5, v{L}")
e(f"v_and_b32 v2, 1, v{L}")
e(f"v_and_b32 v6, 31, v{L}")
e("v_and_b32 v7, 3, v6")
e("v_lshrrev_b32 v13, 3, v6")
e("v_lshlrev_b32 v13, 2, v13")
e("v_lshl_add_u32 v7, v7, 4, v13")
e("v_bfe_u32 v13, v6, 2, 1")
e("v_add_u32 v7, v7, v13")
e("v_lshl_add_u32 v7, v1, 1, v7")
e(f"v_lshlrev_b32 v{CA0}, 1, v7")
e(f"v_add_u32 v{CA1}, 16384, v{CA0}")
e(f"global_load_short_d16_hi v{WX}, v{CA1}, {s(sWE,2)}")
e(f"global_load_short_d16_hi v{WX+1}, v{CA1}, {s(sWE,2)} offset:128")
e(f"global_load_short_d16_hi v{vMask}, v{CA0}, {s(sWX,2)}")
NAUX = 10
e(f"v_mul_u32_u24 v{aATb}, {ATS}, v7")
e(f"v_add_u32 v{aATb}, {AT}, v{aATb}")
e(f"s_add_u32 s{srdBP}, s{sWS}, {WS_BP}")
e(f"s_addc_u32 s{srdBP+1}, s{sWS+1}, 0")
e(f"s_and_b32 s{srdBP+1}, s{srdBP+1}, 0xffff")
e(f"s_or_b32 s{srdBP+1}, s{srdBP+1}, 0x800000")
e(f"s_mov_b32 s{srdBP+2}, 10000")
e(f"s_mov_b32 s{srdBP+3}, 0x20000")
e(f"s_mov_b32 s{srdPOS}, s{sPOS}")
e(f"s_and_b32 s{srdPOS+1}, s{sPOS+1}, 0xffff")
e(f"s_mov_b32 s{srdPOS+2}, 60000")
e(f"s_mov_b32 s{srdPOS+3}, 0x20000")
e(f"s_mov_b32 s{sBUD}, 200000")
e(f"s_mov_b32 s{sR0}, 0")
e(f"s_mov_b32 s{sS}, 256")
e(f"s_mov_b32 s{sOHC}, 0x3f80")
e(f"s_mov_b32 s{sOHC+1}, 0")
e(f"v_mov_b32 v{ZP}, 0")
e(f"v_mov_b32 v{ZP+1}, 0")
e(f"v_lshlrev_b32 v{vWxa}, 7, v1")
e(f"v_lshlrev_b32 v3, 5, v1")
e(f"v_lshl_add_u32 v{IDX+1}, v2, 4, v3")
e(f"v_bfe_u32 v4, v{L}, 3, 2")
e(f"v_bfe_u32 v5, v{L}, 1, 1")
e("v_lshl_add_u32 v4, v4, 1, v5")
e("v_lshl_add_u32 v4, v13, 3, v4")
e(f"v_lshlrev_b32 v{vIdxL}, 3, v4")
e(f"s_lshl_b32 s60, s{sW}, 10")
e(f"s_add_u32 s60, s60, {R1}")
e(f"v_lshl_add_u32 v{aR1r}, v4, 4, s60")
e("v_xor_b32 v5, v1, v2")
e(f"v_lshl_add_u32 v{aR1r}, v5, 20, v{aR1r}")
e(f"v_lshl_add_u32 v{aR1w}, v{L}, 4, s60")
e(f"s_lshl_b32 s60, s{sW}, 12")
e(f"s_add_u32 s60, s60, {R2}")
e(f"v_bfe_u32 v3, v{L}, 1, 3")
e(f"v_lshl_add_u32 v4, v{L}, 6, s60")
e(f"v_lshl_add_u32 v{aR2b}, v3, 3, v4")
e(f"v_mov_b32 v{aR2}, v{aR2b}")
e(f"v_bfe_u32 v3, v{L}, 2, 2")
e(f"v_and_b32 v4, 3, v{L}")
e(f"v_bfe_u32 v5, v{L}, 4, 1")
e("v_lshl_add_u32 v5, v5, 2, v4")
e("v_lshrrev_b32 v7, 1, v3")
e("v_lshl_add_u32 v7, v1, 2, v7")
e("v_xor_b32 v5, v5, v7")
e("v_lshl_add_u32 v7, v1, 3, v3")
e("v_lshl_add_u32 v7, v7, 6, s60")
e(f"v_lshl_add_u32 v{aS0}, v5, 3, v7")
e(f"v_xor_b32 v{aS1}, 16, v{aS0}")
e(f"v_add_u32 v{aS1}, 256, v{aS1}")
e("v_lshlrev_b32 v7, 3, v1")
e("v_sub_u32 v7, v6, v7")
e("v_lshlrev_b32 v13, 4, v2")
e(f"v_lshlrev_b32 v13, v13, s{sOHC}")
e("v_ashrrev_i32 v7, 1, v7")
for u, I in ((0, I0), (1, I1)):
    for d in range(4): e(f"v_cmp_eq_u32 {s(sMK+2*d,2)}, {8*u+d}, v7")
    for d in range(4): e(f"v_cndmask_b32 v{I+d}, 0, v13, {s(sMK+2*d,2)}")
e("v_xor_b32 v7, 1, v1")
e(f"v_mul_u32_u24 v{ONE}, 0x3f80, v7")
e(f"v_mov_b32 v{ONE+1}, 0")
e("v_mov_b32 v13, 8")
e("s_mov_b32 s61, 52429")
e("s_movk_i32 s62, -40")
e("s_waitcnt lgkmcnt(0)")
e(f"s_add_u32 s{sTAG}, s{sTAG}, {TAGC}")
e(f"s_and_b32 s{sTAGR}, s{sTAG}, 0xffffff00")
e("s_barrier")
stamp(1)
e(f"s_waitcnt vmcnt({4+NAUX})")
for i in range(5): e(f"v_mul_u32_u24 v{B4+i}, s61, v{DSTR+i}")
for i in range(5): e(f"v_lshrrev_b32 v{B4+i}, 21, v{B4+i}")
for i in range(5):
    e(f"v_lshlrev_b32 v{B4+i}, 2, v{B4+i}")
    e(f"ds_add_rtn_u32 v{RK+i}, v{B4+i}, v13 offset:{CNT1}")
for i in range(5): e(f"v_lshl_add_u32 v{XW+2*i}, v{DSTR+i}, 2, s{sTAGR}")
for i in range(5): e(f"v_mad_i32_i24 v{XW+2*i}, v{B4+i}, s62, v{XW+2*i}")
e(f"v_lshlrev_b32 v1, 4, v{L}")
e("s_waitcnt lgkmcnt(0)")
e("s_barrier")
stamp(2)
e(f"ds_read_b128 v[4:7], v1 offset:{CNT1}")
e(f"s_lshl_b32 s60, s2, 10")
e(f"s_add_u32 s60, s60, {WS_OFF}")
e("v_add_u32 v2, s60, v1")
e(f"s_lshl_b32 s60, s{sW}, 3")
e("s_lshl_b64 s[62:63], 0xff, s60")
for i in range(5): e(f"v_add_u32 v{RK+i}, {STG}, v{RK+i}")
e("s_waitcnt lgkmcnt(0)")
e("v_add_u32 v5, v4, v5")
e("v_add_u32 v6, v5, v6")
e("v_add_u32 v7, v6, v7")
e("v_mov_b32 v3, v7")
scan(3)
e("v_sub_u32 v8, v3, v7")
e("v_add_u32 v9, v8, v4")
e("v_add_u32 v10, v8, v5")
e("v_add_u32 v11, v8, v6")
e(f"ds_write_b128 v1, v[8:11] offset:{OFF1}")
for i in range(5): e(f"ds_read_b32 v{B4+i}, v{B4+i} offset:{OFF1}")
e("v_lshl_or_b32 v4, v9, 16, v8")
e("v_lshl_or_b32 v5, v11, 16, v10")
e("v_mov_b32 v6, v3")
e(f"v_mov_b32 v7, s{sTAG}")
e("s_mov_b64 exec, s[62:63]")
e(f"global_store_dwordx4 v2, v[4:7], {s(sWS,2)} sc1")
e("s_mov_b64 exec, -1")
e("s_mov_b32 s60, 0xffff0000")
e(f"s_waitcnt vmcnt({NAUX+1})")
e(f"v_lshl_or_b32 v{XW+1}, v{ER}, 16, v{SRCR}")
e(f"v_and_or_b32 v{XW+3}, v{ER}, s60, v{SRCR+1}")
e(f"v_lshl_or_b32 v{XW+5}, v{ER+1}, 16, v{SRCR+2}")
e(f"v_and_or_b32 v{XW+7}, v{ER+1}, s60, v{SRCR+3}")
e(f"v_or_b32 v{XW+9}, v{ER+2}, v{SRCR+4}")
for i in range(5):
    e("s_waitcnt lgkmcnt(4)")
    e(f"v_add_u32 v{B4+i}, v{B4+i}, v{RK+i}")
    e(f"ds_write_b64 v{B4+i}, {v(XW+2*i,2)}")
PA4 = 16; PL = 32
e("v_lshrrev_b32 v1, 3, v0")
e(f"s_lshr_b32 s60, s{sB}, 2")
e("s_lshl_b32 s60, s60, 4")
e(f"s_add_u32 s60, s60, {WS_OFF}")
e(f"v_lshl_add_u32 v{PA4}, v1, 10, s60")
e(f"v_add_u32 v{PA4+1}, {64*1024}, v{PA4}")
e(f"v_add_u32 v{PA4+2}, {128*1024}, v{PA4}")
e("v_add_u32 v1, 192, v1")
e(f"v_min_u32 v1, {NWG-1}, v1")
e(f"v_lshl_add_u32 v{PA4+3}, v1, 10, s60")
e(f"s_mul_i32 s60, s2, {CH*8}")
e(f"s_add_u32 s60, s60, {WS_REC}")
e("v_add_u32 v2, s60, v12")
e("v_add_u32 v3, 8192, v2")
e("v_add_u32 v4, 16384, v2")
e(f"v_add_u32 v5, {STG}, v12")
for i in range(4): e(f"v_mov_b32 v{8+i}, 0")
e("s_waitcnt vmcnt(1) lgkmcnt(0)")
e("s_barrier")
stamp(3)
ST = 48
for i in range(3): e(f"ds_read_b128 {v(ST+4*i,4)}, v5 offset:{i*8192}")
def poll_loads():
    for p in range(4): e(f"global_load_dwordx4 {v(PL+4*p,4)}, v{PA4+p}, {s(sWS,2)} sc1")
poll_loads()
e("s_waitcnt lgkmcnt(2)")
e(f"global_store_dwordx4 v2, {v(ST,4)}, {s(sWS,2)} sc1")
e("s_waitcnt lgkmcnt(1)")
e(f"global_store_dwordx4 v3, {v(ST+4,4)}, {s(sWS,2)} sc1")
e("s_waitcnt lgkmcnt(0)")
e(f"s_cmp_ge_u32 s{sW}, 4")
e("s_cbranch_scc1 L_no3")
e(f"global_store_dwordx4 v4, {v(ST+8,4)}, {s(sWS,2)} sc1")
e.label("L_no3")
for i in range(3): e(f"ds_write_b128 v5, v[8:11] offset:{i*8192}")
e(f"s_cmp_lg_u32 s2, {NWG-1}")
e("s_cbranch_scc1 L_nodummy")
e(f"v_mov_b32 v5, {WS_REC + NWG*CH*8}")
e(f"v_mov_b32 v6, s{sTAGR}")
e(f"global_store_dword v5, v6, {s(sWS,2)} sc1")
e.label("L_nodummy")
e(f"v_mul_f32 v{WX}, {NL2E}, v{WX}")
e(f"v_mul_f32 v{WX+1}, {NL2E}, v{WX+1}")
e(f"v_cvt_pk_bf16_f32 v1, v{WX}, v{WX}")
e("v_and_b32 v1, 0xffff0000, v1")
e(f"v_sub_f32 v2, v{WX}, v1")
e(f"v_cvt_pk_bf16_f32 v{WX}, v1, v2")
e(f"v_cvt_pk_bf16_f32 v{WX+1}, 0, v{WX+1}")
e(f"s_cmp_ge_u32 s{sW}, 6")
e("s_cbranch_scc1 L_w67")
WT = 80; DT = 112; W1T = 128
e(f"v_bfe_u32 v1, v{L}, 2, 2")
e(f"v_and_b32 v2, 3, v{L}")
e(f"v_lshrrev_b32 v3, 4, v{L}")
e("v_lshl_add_u32 v4, v3, 3, v1")
e(f"s_xor_b32 s60, s{sCHF}, 1")
e("s_lshl_b32 s60, s60, 13")
e(f"s_add_u32 s60, s60, {WE}")
e("v_lshl_add_u32 v5, v4, 7, s60")
e("v_lshl_add_u32 v5, v2, 3, v5")
for t in range(4):
    for ks in range(2):
        for rd in range(2):
            e(f"ds_read_b64_tr_b16 {v(WT+8*t+4*ks+2*rd,2)}, v5 offset:{ks*4096+rd*512+t*32}")
e(f"s_lshl_b32 s60, s{sCHF}, 6")
e(f"s_add_u32 s60, s60, {WH}")
e("v_lshl_add_u32 v6, v2, 4, s60")
e("v_lshl_add_u32 v5, v4, 7, v6")
e("v_lshl_add_u32 v4, v1, 2, v3")
e("v_lshl_add_u32 v6, v4, 9, v6")
e("s_waitcnt lgkmcnt(0)")
for t in range(2):
    for ks in range(2):
        for rd in range(2):
            e(f"ds_read_b64_tr_b16 {v(W1T+8*t+4*ks+2*rd,2)}, v5 offset:{ks*4096+rd*512+t*8}")
for t in range(4):
    e(f"v_mfma_f32_16x16x32_bf16 {v(DT+4*t,4)}, {v(HF,4)}, {v(WT+8*t,4)}, 0")
    e(f"v_mfma_f32_16x16x32_bf16 {v(DT+4*t,4)}, {v(HF+4,4)}, {v(WT+8*t+4,4)}, {v(DT+4*t,4)}")
e("s_waitcnt lgkmcnt(0)")
for t in range(2):
    for c in range(2):
        for rd in range(2):
            e(f"ds_read_b64_tr_b16 {v(WH2+8*t+4*c+2*rd,2)}, v6 offset:{8192+c*256+rd*128+t*8}")
for t in range(2):
    e(f"v_mfma_f32_16x16x32_bf16 {v(H1+4*t,4)}, {v(W1T+8*t,4)}, {v(HF,4)}, 0")
    e(f"v_mfma_f32_16x16x32_bf16 {v(H1+4*t,4)}, {v(W1T+8*t+4,4)}, {v(HF+4,4)}, {v(H1+4*t,4)}")
e(f"s_mov_b32 s61, {NL2E}")
for i in range(16): e(f"v_mul_f32 v{DT+i}, s61, v{DT+i}")
e(f"v_and_b32 v1, 15, v{L}")
e(f"s_cmp_ge_u32 s{sW}, 3")
e("s_cbranch_scc1 L_w345")
for r in range(4):
    e(f"v_cvt_pk_bf16_f32 v{WT+2*r}, v{DT+r}, v{DT+4+r}")
    e(f"v_cvt_pk_bf16_f32 v{WT+2*r+1}, v{DT+8+r}, v{DT+12+r}")
e(f"s_lshl_b32 s60, s{sNG}, 4")
e(f"s_add_u32 s60, s60, s{sN0}")
e("s_lshl_b32 s60, s60, 7")
e(f"s_add_u32 s60, s60, {WS_BP}")
e("v_lshl_add_u32 v2, v3, 9, s60")
e("v_lshl_add_u32 v2, v1, 3, v2")
for i in range(4): e(f"v_mov_b32 v{HRES+i}, v{HF+i}")
e(f"s_cmp_eq_u32 s{sNG}, 2")
e("s_cselect_b32 exec_hi, 0, -1")
for r in range(4): e(f"global_store_dwordx2 v2, {v(WT+2*r,2)}, {s(sWS,2)} offset:{r*128} sc1")
e("s_mov_b64 exec, -1")
e("s_branch L_wdone")
e.label("L_w345")
for t in range(4):
    e(f"v_cvt_pk_bf16_f32 v{WT+2*t}, v{DT+4*t}, v{DT+4*t+1}")
    e(f"v_cvt_pk_bf16_f32 v{WT+2*t+1}, v{DT+4*t+2}, v{DT+4*t+3}")
e(f"s_lshl_b32 s60, s{sNG}, 5")
e(f"s_add_u32 s60, s60, {AT}")
e("v_lshl_add_u32 v2, v3, 3, s60")
e(f"v_mul_u32_u24 v1, {ATS}, v1")
e("v_add_u32 v2, v1, v2")
for i in range(4): e(f"v_mov_b32 v{HRES+i}, v{HF+4+i}")
for t in range(4): e(f"ds_write_b64 v2, {v(WT+2*t,2)} offset:{t*16*ATS}")
e("s_branch L_wdone")
e.label("L_w67")
e(f"v_mul_u32_u24 v1, 171, v{vAItem}")
e("v_lshrrev_b32 v1, 9, v1")
e(f"v_mad_i32_i24 v2, v1, -3, v{vAItem}")
e(f"v_lshlrev_b32 v{H1+2}, 2, v1")
e(f"v_lshl_add_u32 v3, v2, 8, v{H1+2}")
e(f"ds_write_b32 v3, v{vPosOwn} offset:{PD}")
e(f"v_lshlrev_b32 v{H1+1}, 3, v2")
e(f"v_add_u32 v{H1+1}, 256, v{H1+1}")
e(f"v_mul_u32_u24 v1, {ACCS}, v1")
e(f"v_add_u32 v1, {ACC}, v1")
e(f"v_add_u32 v{H1}, v1, v{H1+1}")
e(f"v_mul_f32 v4, {NLN2}, v{vMask}")
e(f"v_bfe_u32 v1, v{L}, 2, 1")
e(f"v_lshrrev_b32 v2, 3, v{L}")
e(f"v_and_b32 v3, 3, v{L}")
e("v_lshl_add_u32 v2, v2, 2, v3")
e("v_lshl_add_u32 v2, v1, 5, v2")
e("v_lshlrev_b32 v2, 2, v2")
e(f"ds_write_b32 v2, v4 offset:{WXT}")
e.label("L_wdone")
if OPT["stamps"]: e("s_waitcnt lgkmcnt(0)")
stamp(4)
if OPT["posat"] == "window": posdma()
e("s_waitcnt vmcnt(0)")
if OPT["stamps"]: e("s_waitcnt lgkmcnt(0)")
stamp(5)
e(f"s_cmp_ge_u32 s{sW}, 3")
e("s_cbranch_scc1 L_chkoff")
e("s_lshl_b32 s60, s2, 7")
e(f"s_lshl_b32 s61, s{sW}, 2")
e("s_add_u32 s60, s60, s61")
e(f"s_add_u32 s60, s60, {WS_FLAG}")
e("v_mov_b32 v1, s60")
e(f"v_mov_b32 v2, s{sTAG}")
e("s_mov_b64 exec, 1")
e(f"global_store_dword v1, v2, {s(sWS,2)} sc1")
e("s_mov_b64 exec, -1")
e.label("L_chkoff")
e(f"v_cmp_ne_u32 s[60:61], s{sTAG}, v{PL+3}")
e(f"v_cmp_ne_u32 s[62:63], s{sTAG}, v{PL+7}")
e(f"v_cmp_ne_u32 s[96:97], s{sTAG}, v{PL+11}")
e(f"v_cmp_ne_u32 vcc, s{sTAG}, v{PL+15}")
e("s_or_b64 s[60:61], s[60:61], s[62:63]")
e("s_or_b64 s[96:97], s[96:97], vcc")
e("s_or_b64 s[60:61], s[60:61], s[96:97]")
e("s_cbranch_scc0 L_gotoff")
e(f"s_cmp_eq_u32 s{sBUD}, 0")
e("s_cbranch_scc1 L_gotoff")
e(f"s_sub_u32 s{sBUD}, s{sBUD}, 1")
poll_loads()
e("s_waitcnt vmcnt(0)")
e("s_branch L_chkoff")
e.label("L_gotoff")
if OPT["stamps"]: e("s_waitcnt lgkmcnt(0)")
stamp(6)
e(f"s_and_b32 s60, s{sB}, 1")
e("s_lshl_b32 s60, s60, 4")
e(f"v_cmp_gt_u32 vcc, {(NWG-192)*8}, v0")
e(f"s_bitcmp1_b32 s{sB}, 1")
e("s_cbranch_scc1 L_hi2")
for p in range(4): e(f"v_alignbit_b32 v{SEG+p}, v{PL+4*p+1}, v{PL+4*p}, s60")
e("s_branch L_segs")
e.label("L_hi2")
for p in range(4): e(f"v_alignbit_b32 v{SEG+p}, v{PL+4*p+2}, v{PL+4*p+1}, s60")
e.label("L_segs")
e(f"v_cndmask_b32 v{SEG+3}, 0, v{SEG+3}, vcc")
RA = 16; RB = 32; KA = 48; KB = 56; AD = 64; LM = 68; FL = 72
mk = lambda rnd, p, h: sMK + 2 * (rnd * 8 + p * 2 + h)
e.label("L_batch")
e("v_lshrrev_b32 v1, 3, v0")
e("v_and_b32 v2, 7, v0")
e("v_lshlrev_b32 v2, 4, v2")
e(f"v_mul_u32_u24 v1, {CH*8}, v1")
e("v_add_u32 v1, v1, v2")
for p in range(4):
    e(f"s_add_u32 s60, s{sR0}, {WS_REC + p*64*CH*8}")
    e(f"s_add_u32 s{sRB+2*p}, s{sWS}, s60")
    e(f"s_addc_u32 s{sRB+2*p+1}, s{sWS+1}, 0")
for p in range(4):
    e(f"v_sub_u32_sdwa v{LM+p}, v{SEG+p}, v{SEG+p} {SD} src0_sel:WORD_1 src1_sel:WORD_0")
    e(f"v_add_u32_sdwa v{AD+p}, v{SEG+p}, v1 {SD} src0_sel:WORD_0 src1_sel:DWORD")
    e(f"v_subrev_u32 v{LM+p}, s{sR0}, v{LM+p}")
e(f"v_max3_i32 v3, v{LM}, v{LM+1}, v{LM+2}")
e(f"v_max_i32 v3, v3, v{LM+3}")
for p in range(4):
    e(f"v_min_i32 v{LM+p}, s{sS}, v{LM+p}")
    e(f"v_sub_u32 v{LM+p}, v{LM+p}, v2")
e("s_movk_i32 s60, 128")
e("s_movk_i32 s61, 136")
for p in range(4):
    e(f"v_cmp_lt_i32 {s(mk(0,p,0),2)}, 0, v{LM+p}")
    e(f"v_cmp_lt_i32 {s(mk(1,p,0),2)}, s60, v{LM+p}")
e.label("L_fetch")
for p in range(4):
    e(f"v_mov_b32 v{RA+4*p}, s{sTAGR}")
    e(f"v_mov_b32 v{RA+4*p+2}, s{sTAGR}")
    e(f"s_mov_b64 exec, {s(mk(0,p,0),2)}")
    e(f"global_load_dwordx4 {v(RA+4*p,4)}, v{AD+p}, {s(sRB+2*p,2)} sc1")
    e("s_mov_b64 exec, -1")
for p in range(4):
    e(f"v_mov_b32 v{RB+4*p}, s{sTAGR}")
    e(f"v_mov_b32 v{RB+4*p+2}, s{sTAGR}")
    e(f"s_mov_b64 exec, {s(mk(1,p,0),2)}")
    e(f"s_cbranch_execz L_nlb{p}")
    e(f"global_load_dwordx4 {v(RB+4*p,4)}, v{AD+p}, {s(sRB+2*p,2)} offset:128 sc1")
    e.label(f"L_nlb{p}")
    e("s_mov_b64 exec, -1")
for p in range(4):
    e(f"v_cmp_lt_i32 {s(mk(0,p,1),2)}, 8, v{LM+p}")
    e(f"v_cmp_lt_i32 {s(mk(1,p,1),2)}, s61, v{LM+p}")
e("v_mov_b32 v13, 8")
e("s_waitcnt vmcnt(0)")
for i in range(16): e(f"v_xor_b32 v{RA+2*i}, s{sTAGR}, v{RA+2*i}")
e(f"v_or3_b32 v4, v{RA}, v{RA+2}, v{RA+4}")
e(f"v_or3_b32 v5, v{RA+6}, v{RA+8}, v{RA+10}")
for i in range(6, 16, 2): e(f"v_or3_b32 v{4+(i//2)%2}, v{4+(i//2)%2}, v{RA+2*i}, v{RA+2*i+2}")
e("v_or_b32 v4, v4, v5")
e("v_cmp_lt_u32 vcc, 0xff, v4")
e("s_and_b64 vcc, vcc, vcc")
e("s_cbranch_scc0 L_gotrec")
e(f"s_cmp_eq_u32 s{sBUD}, 0")
e("s_cbranch_scc1 L_gotrec")
e(f"s_sub_u32 s{sBUD}, s{sBUD}, 1")
e("s_branch L_fetch")
e.label("L_gotrec")
if OPT["stamps"]: e("s_waitcnt lgkmcnt(0)")
stamp(7)
for p in range(4):
    for h in range(2):
        e(f"s_mov_b64 exec, {s(mk(0,p,h),2)}")
        e(f"ds_add_rtn_u32 v{KA+2*p+h}, v{RA+4*p+2*h}, v13 offset:{CNT2}")
for p in range(4):
    e(f"s_mov_b64 exec, {s(mk(1,p,0),2)}")
    e(f"s_cbranch_execz L_nab{p}")
    e(f"ds_add_rtn_u32 v{KB+2*p}, v{RB+4*p}, v13 offset:{CNT2}")
    e(f"s_mov_b64 exec, {s(mk(1,p,1),2)}")
    e(f"ds_add_rtn_u32 v{KB+2*p+1}, v{RB+4*p+2}, v13 offset:{CNT2}")
    e.label(f"L_nab{p}")
e("s_mov_b64 exec, -1")
e(f"v_cmp_lt_i32 vcc, s{sS}, v3")
e(f"v_min_u32 v1, {NWG-1}, v0")
e(f"v_lshlrev_b32 v1, 7, v1")
e(f"v_add_u32 v{FL+3}, {WS_FLAG}, v1")
e("s_mov_b64 exec, vcc")
e(f"ds_write_b32 v{ZP}, v13 offset:{CNT2+252}")
e("s_mov_b64 exec, -1")
e(f"s_cmp_ge_u32 s{sW}, 4")
e("s_cbranch_scc1 L_nofl")
e(f"global_load_dwordx3 {v(FL,3)}, v{FL+3}, {s(sWS,2)} sc1")
e.label("L_nofl")
e(f"v_lshlrev_b32 v1, 2, v{L}")
e(f"v_cmp_gt_u32 vcc, {NB}, v{L}")
e("s_waitcnt lgkmcnt(0)")
e("s_barrier")
stamp(8)
e(f"ds_read_b32 v2, v1 offset:{CNT2}")
e("s_waitcnt lgkmcnt(0)")
e(f"v_max_u32 v4, {PADB}, v2")
e(f"v_readlane_b32 s{sMORE}, v2, 63")
e("v_cndmask_b32 v4, 0, v4, vcc")
e("v_mov_b32 v5, v4")
scan(5)
e(f"v_sub_u32 v6, v5, v4")
e(f"v_add_u32 v6, {SORT2}, v6")
e(f"v_readlane_b32 s3, v5, 63")
e(f"ds_write_b32 v1, v6 offset:{BASE2}")
e(f"s_cmp_gt_u32 s3, {CAPB}")
e("s_cbranch_scc1 L_redo")
LK = 80
for i in range(8): e(f"ds_read_b32 v{LK+i}, v{RA+2*i} offset:{BASE2}")
e(f"s_cmp_lg_u32 s{sW}, 0")
e("s_cbranch_scc1 L_nomark")
e(f"s_add_u32 s60, s3, {SORT2}")
e("v_lshl_add_u32 v7, v1, 1, s60")
e(f"v_mov_b32 v8, {(NB-1)*4}")
e("v_mov_b32 v9, 10000")
e("ds_write_b64 v7, v[8:9]")
e("v_cmp_lt_u32 vcc, v2, v4")
e("v_mov_b32 v8, v1")
e("s_and_b64 exec, vcc, vcc")
e("s_cbranch_scc0 L_nopad")
e.label("L_pad")
e("v_add_u32 v7, v6, v2")
e("v_add_u32 v2, 8, v2")
e("ds_write_b64 v7, v[8:9]")
e("v_cmp_lt_u32 vcc, v2, v4")
e("s_and_b64 exec, vcc, vcc")
e("s_cbranch_scc1 L_pad")
e.label("L_nopad")
e("s_mov_b64 exec, -1")
e("s_cmp_lg_u32 s2, 0")
e("s_cbranch_scc1 L_nomark")
e(f"v_mov_b32 v7, s{sTAG}")
e("s_mov_b64 exec, 1")
e(f"global_store_dword v{ZP}, v7, {s(sWS,2)}")
e("s_mov_b64 exec, -1")
e.label("L_nomark")
e("s_add_u32 s3, s3, 127")
e("s_lshr_b32 s3, s3, 7")
e("s_lshr_b32 s60, s3, 3")
e("s_and_b32 s61, s3, 7")
e(f"s_mul_i32 s62, s60, s{sW}")
e(f"s_min_u32 s63, s61, s{sW}")
e("s_add_u32 s62, s62, s63")
e(f"s_cmp_lt_u32 s{sW}, s61")
e(f"s_addc_u32 s{sCNT}, s60, 0")
e("s_lshl_b32 s62, s62, 7")
e(f"s_lshl_b32 s63, s{sCNT}, 7")
e("s_add_u32 s63, s63, s62")
e("v_cmp_ge_u32 vcc, s62, v5")
e("v_cmp_gt_u32 s[60:61], s63, v5")
e(f"s_add_u32 s62, s62, {SORT2}")
e(f"v_lshl_add_u32 v{aRec}, v{L}, 3, s62")
e("s_add_u32 s62, s62, 4")
e(f"v_add_u32 v{aIdx}, s62, v{vIdxL}")
e(f"s_bcnt1_i32_b64 s{sNFW}, vcc")
e(f"s_bcnt1_i32_b64 s{sNLW}, s[60:61]")
e(f"s_min_u32 s{sNLW}, s{sNLW}, {NB-1}")
e(f"s_lshl_b32 s{sNFW}, s{sNFW}, 2")
e(f"s_lshl_b32 s{sNLW}, s{sNLW}, 2")
e(f"s_mov_b32 s{sBASE}, s{sNFW}")
e(f"s_or_b32 s{sSLOW}, s{sR0}, s{sMORE}")
e(f"s_cselect_b32 s{sNFW}, -1, s{sNFW}")
e(f"s_cmp_eq_u32 s{sCNT}, 0")
e(f"s_cselect_b32 s{sNFW}, -1, s{sNFW}")
e(f"s_lshl_b32 s60, 1, s{sW}")
e(f"s_min_u32 s61, s{sNFW}, 252")
e("v_mov_b32 v7, s61")
e("v_mov_b32 v8, s60")
e("s_waitcnt lgkmcnt(0)")
e("s_mov_b64 exec, 1")
e(f"ds_or_b32 v7, v8 offset:{LNK}")
for p in range(4):
    for h in range(2):
        i = 2*p+h
        e(f"s_mov_b64 exec, {s(mk(0,p,h),2)}")
        e(f"v_add_u32 v{LK+i}, v{LK+i}, v{KA+i}")
        e(f"ds_write_b64 v{LK+i}, {v(RA+2*i,2)}")
for p in range(4):
    e(f"s_mov_b64 exec, {s(mk(1,p,0),2)}")
    e(f"s_cbranch_execz L_nsb{p}")
    e(f"ds_read_b32 v4, v{RB+4*p} offset:{BASE2}")
    e(f"ds_read_b32 v5, v{RB+4*p+2} offset:{BASE2}")
    e("s_waitcnt lgkmcnt(0)")
    e(f"v_add_u32 v4, v4, v{KB+2*p}")
    e(f"v_add_u32 v5, v5, v{KB+2*p+1}")
    e(f"ds_write_b64 v4, {v(RB+4*p,2)}")
    e(f"s_mov_b64 exec, {s(mk(1,p,1),2)}")
    e(f"ds_write_b64 v5, {v(RB+4*p+2,2)}")
    e.label(f"L_nsb{p}")
e("s_mov_b64 exec, -1")
e(f"s_lshl_b32 s60, s{sNG}, 6")
e("v_and_b32 v2, 60, v1")
e("v_add_u32 v2, s60, v2")
e(f"s_cmp_ge_u32 s{sW}, 6")
e("s_cbranch_scc0 L_lnk")
e(f"v_mov_b32 v2, v{H1+2}")
e.label("L_lnk")
e(f"s_cmp_ge_u32 s{sW}, 4")
e("s_cbranch_scc1 L_gotfl")
e.label("L_chkfl")
e("s_waitcnt vmcnt(0)")
e(f"v_cmp_ne_u32 s[60:61], s{sTAG}, v{FL}")
e(f"v_cmp_ne_u32 s[62:63], s{sTAG}, v{FL+1}")
e(f"v_cmp_ne_u32 vcc, s{sTAG}, v{FL+2}")
e("s_or_b64 s[60:61], s[60:61], s[62:63]")
e("s_or_b64 s[60:61], s[60:61], vcc")
e("s_cbranch_scc0 L_gotfl")
e(f"s_cmp_eq_u32 s{sBUD}, 0")
e("s_cbranch_scc1 L_gotfl")
e(f"s_sub_u32 s{sBUD}, s{sBUD}, 1")
e(f"global_load_dwordx3 {v(FL,3)}, v{FL+3}, {s(sWS,2)} sc1")
e("s_branch L_chkfl")
e.label("L_gotfl")
e("s_waitcnt lgkmcnt(0)")
e("s_barrier")
stamp(9)
def gather(b, pair):
    return [f"buffer_load_dwordx4 {v(G[b],4)}, {v(pair,2)}, {s(srdBP,4)}, 0 idxen offen",
            f"buffer_load_dwordx4 {v(G[b]+4,4)}, {v(pair,2)}, {s(srdBP,4)}, 0 idxen offen offset:64"]
def build1():
    return [f"v_mul_u32_u24_sdwa v{BT}, 6, v{REC+1} {SD} src0_sel:DWORD src1_sel:WORD_0",
            f"ds_read2st64_b32 {v(PDV,2)}, v{REC} offset0:{PD//256} offset1:{PD//256+1}",
            f"ds_read_u16_d16_hi v{PS}, v{BT} offset:{POS}",
            f"ds_read_u16_d16_hi v{PS+1}, v{BT} offset:{POS+2}",
            f"ds_read_u16_d16_hi v{PS+2}, v{BT} offset:{POS+4}",
            f"ds_read_b32 v{PDV+2}, v{REC} offset:{PD+512}",
            f"v_readlane_b32 s{sNF}, v{REC}, 0",
            f"v_readlane_b32 s{sNL}, v{REC}, 63",
            f"v_cmp_ne_u32 vcc, 60000, v{BT}",
            f"v_add_u32 v{BT+1}, v{REC}, v{REC}",
            f"s_and_b32 s60, s{sNF}, -8",
            f"s_mul_i32 s{sNEG}, s60, -4",
            f"s_lshr_b32 s60, s60, 1",
            f"s_mov_b64 {s(sVAL,2)}, vcc",
            f"v_lshl_add_u32 v{BT+2}, v{REC}, 2, s{sNEG}",
            f"v_add_u32 v{aAT}, s60, v{aATb}",
            f"v_lshlrev_b64 {v(REC+2,2)}, v{BT+2}, {s(sOHC,2)}"]
def build2():
    return [f"v_sub_f32 v{PDV}, v{PDV}, v{PS}",
            f"v_sub_f32 v{PDV+1}, v{PDV+1}, v{PS+1}",
            f"v_sub_f32 v{PDV+2}, v{PDV+2}, v{PS+2}",
            f"v_cvt_pk_bf16_f32 v{R2V}, v{PDV}, v{PDV+1}",
            f"v_cvt_pk_bf16_f32 v{R2V+1}, v{PDV+2}, 1.0",
            f"v_dot2_f32_bf16 v{BT}, v{R2V}, v{R2V}, 0",
            f"v_lshlrev_b32 v{BT+2}, 16, v{R2V+1}",
            None, None,
            f"v_fmac_f32 v{BT}, v{BT+2}, v{BT+2}",
            f"v_cvt_pk_bf16_f32 v{REC}, v{BT}, v{BT}"]
def build3():
    return [f"ds_write_b64 v{aR2}, {v(ZP,2)}",
            f"v_bitop3_b32 v{aR2}, v{BT+1}, 56, v{aR2b} bitop3:0x6a",
            f"ds_write_b128 v{aR1w}, {v(REC,4)}",
            f"s_mov_b64 exec, {s(sVAL,2)}\nds_write_b64 v{aR2}, {v(R2V,2)}\ns_mov_b64 exec, -1",
            f"ds_read2_b32 {v(WX+2,2)}, v{aAT} offset1:1"]
def opreads(n):
    return [f"ds_read_b128 {v(R1OP,4)}, v{aR1r} offset:{n*256}",
            f"ds_read_b64_tr_b16 {v(S[n],2)}, v{aS0} offset:{n*1024}",
            f"ds_read_b64_tr_b16 {v(S[n]+2,2)}, v{aS1} offset:{n*1024}"]
def stage1(n):
    t = T[n & 1]
    return [f"v_mfma_f32_32x32x16_bf16 {v(t,16)}, {v(R1OP,4)}, {v(WX,4)}, 0",
            f"v_mfma_f32_32x32x16_bf16 {v(t,16)}, {v(G[n],4)}, {v(I0,4)}, {v(t,16)}",
            f"v_mfma_f32_32x32x16_bf16 {v(t,16)}, {v(G[n]+4,4)}, {v(I1,4)}, {v(t,16)}"]
def stage2(n):
    return [f"v_mfma_f32_32x32x16_bf16 {v(AC[c],16)}, {v(M[c],4)}, {v(S[n],4)}, {v(AC[c],16)}" for c in range(2)]
def mulcvt(q):
    L_ = []
    for a in range(4):
        for r in range(4): L_.append(f"v_mul_f32 v{E[q]+4*a+r}, v{E[q]+4*a+r}, v{T[q]+4*a+r}")
        for c in range(2): L_.append(f"v_cvt_pk_bf16_f32 v{M[c]+a}, v{E[q]+4*a+c}, v{E[q]+4*a+2+c}")
    return L_
def flushchk(lbl):
    e(f"s_min_u32 s60, s{sNL}, s{sNLW}")
    e(f"s_sub_u32 s60, s60, s{sBASE}")
    e("s_cmp_ge_u32 s60, 32")
    e(f"s_cbranch_scc1 L_flush_{lbl}")
    e.label(f"L_flret_{lbl}")
def rowaddr():
    return [f"v_subrev_u32 v1, s{sBASE}, v{L}",
            "v_and_b32 v1, 28, v1",
            f"v_add_u32 v1, s{sBASE}, v1",
            f"v_cmp_eq_u32 vcc, s{sNFW}, v1",
            f"v_cmp_lt_u32 s[62:63], s{sNLW}, v1",
            f"s_lshl_b32 s61, s{sW}, 2",
            f"s_add_u32 s61, s61, {NB*4}",
            "v_mov_b32 v2, s61",
            "v_cndmask_b32 v1, v1, v2, vcc",
            f"v_mov_b32 v2, {OOB//64}",
            "v_cndmask_b32 v1, v1, v2, s[62:63]",
            f"v_mul_u32_u24 v1, {ACCS//4}, v1",
            f"v_add_u32 v1, {ACC}, v1",
            f"v_lshrrev_b32 v2, 5, v{L}",
            f"v_lshl_add_u32 v{vRowM}, v2, 4, v1",
            f"v_lshl_add_u32 v1, v2, 2, v1",
            f"v_and_b32 v2, 3, v{L}",
            f"v_lshl_add_u32 v{vRowP}, v2, 3, v1"]
def mmask():
    e("s_mov_b32 exec_lo, 0x88888888")
    e("s_mov_b32 exec_hi, 0x88888888")
def flush_slow():
    e("s_nop 7")
    e("v_mov_b32 v2, 0")
    for i in range(8):
        e(f"ds_read_b128 v[4:7], v{vWxa} offset:{WXT+16*i}")
        e("s_waitcnt lgkmcnt(0)")
        for r in range(4): e(f"v_fmac_f32 v2, v{AC[0]+4*i+r}, v{4+r}")
    e(f"ds_add_f32 v{vRowP}, v2 offset:256")
    mmask()
    for i in range(32): e(f"ds_add_f32 v{vRowM}, v{AC[0]+i} offset:{(i//4)*32+(i%4)*4}")
    e("s_mov_b64 exec, -1")

def step(sidx, first=False):
    q = sidx & 1; n1 = (sidx + 1) & 3
    side = gather(sidx, IDX) + [f"ds_read_u16 v{IDX}, v{aIdx} offset:{(sidx+5)*128}"]
    if sidx == 3:
        side += build3()
    side += opreads(n1)
    if sidx == 0: side += [f"ds_read_b64 {v(REC,2)}, v{aRec} offset:512"]
    if sidx == 1: side += build1()
    if sidx == 2: side += build2()
    if sidx == 3: side += [f"v_add_u32 v{aIdx}, 512, v{aIdx}", f"v_add_u32 v{aRec}, 512, v{aRec}"]
    if sidx == 1: flushchk("mid")
    if sidx == 0 and OPT["prio"] and not first:
        e(f"s_cmp_gt_u32 s{sCNT}, 8")
        e("s_cbranch_scc1 L_pr")
        e("s_setprio 1")
        e(f"s_cmp_gt_u32 s{sCNT}, 4")
        e("s_cbranch_scc1 L_pr")
        e("s_setprio 0")
        e.label("L_pr")
    exps = [f"v_exp_f32 v{E[q]+i}, v{T[q]+i}" for i in range(16)]
    k = 0
    per = -(-len(side) // 15)
    for i, x in enumerate(exps):
        e(x)
        if i < 15:
            for _ in range(per):
                if k < len(side):
                    if side[k] is None:
                        k += 1; break
                    e(side[k]); k += 1
    rest = side[k:]
    mc = [] if first else mulcvt(1 - q)
    if first:
        e("s_nop 1")
    else:
        e(mc[0]); e(mc[1]); mc = mc[2:]
    e(f"v_mfma_f32_32x32x8_bf16 {v(E[q],16)}, {v(ONE,2)}, {v(ONE,2)}, {v(E[q],16)}")
    k = 0
    for x in mc:
        e(x)
        if k < len(rest):
            if rest[k] is not None: e(rest[k])
            k += 1
    assert k == len(rest)
    if first: e("s_nop 9")
    e("s_waitcnt vmcnt(6) lgkmcnt(0)")
    mf = stage1(n1) + ([] if first else stage2((sidx - 1) & 3))
    rc = [f"v_rcp_f32 v{E[q]+i}, v{E[q]+i}" for i in range(16)]
    for i, x in enumerate(rc):
        if i % 3 == 0 and i // 3 < len(mf): e(mf[i // 3])
        e(x)
    e(f"s_sub_u32 s{sCNT}, s{sCNT}, 1")
    e(f"s_cbranch_scc1 L_drain{sidx}")

PI = E[0]
e(f"ds_read_b64 {v(REC,2)}, v{aRec}")
for n in range(4): e(f"ds_read_u16 v{PI+2*n}, v{aIdx} offset:{n*128}")
e(f"ds_read_u16 v{IDX}, v{aIdx} offset:{4*128}")
e(f"ds_read_b32 v{vMask}, v2 offset:{LNK}")
e(f"ds_write_b32 v1, v{ZP} offset:{CNT2}")
e(f"s_sub_u32 s{sCNT}, s{sCNT}, 1")
e("s_cbranch_scc1 L_b6")
for n in range(4): e(f"v_mov_b32 v{PI+2*n+1}, v{IDX+1}")
if OPT["prio"]: e("s_setprio 2")
e("s_waitcnt lgkmcnt(3)")
b1 = build1()
for x in b1[:6]: e(x)
for n in range(4):
    for x in gather(n, PI + 2*n): e(x)
for x in b1[6:]: e(x)
for i in range(16): e(f"v_mov_b32 v{AC[0]+i}, 0")
e("s_waitcnt lgkmcnt(0)")
zi = 16
for x in build2():
    if x is None:
        e(f"v_mov_b32 v{AC[0]+zi}, 0"); zi += 1
    else: e(x)
for x in build3(): e(x)
for x in opreads(0): e(x)
for i in range(zi, 32): e(f"v_mov_b32 v{AC[0]+i}, 0")
e("s_waitcnt vmcnt(6) lgkmcnt(0)")
for x in stage1(0): e(x)
for x in rowaddr(): e(x)
stamp(10)
step(0, first=True)
e("s_branch L_s1")
e.label("L_s0")
step(0)
e.label("L_s1")
step(1)
step(2)
step(3)
e("s_branch L_s0")
for sidx in range(4):
    q = sidx & 1
    e.label(f"L_drain{sidx}")
    if sidx == 0: flushchk("dr")
    for i in range(4): e(f"ds_read_b128 {v(E[1-q]+4*i,4)}, v{vWxa} offset:{WXT+16*i}")
    for i in range(4): e(f"ds_read_b128 {v(T[1-q]+4*i,4)}, v{vWxa} offset:{WXT+64+16*i}")
    for x in mulcvt(q): e(x)
    e(f"s_cmp_lg_u32 s{sSLOW}, 0")
    e("s_nop 0")
    for x in stage2(sidx): e(x)
    e("s_cbranch_scc1 L_slow_final")
    if sidx < 2: e(f"s_branch L_final_flush{q}")
    else:
        e.label(f"L_final_flush{q}")
        stamp(11)
        e("s_waitcnt lgkmcnt(0)")
        e("s_nop 6")
        mmask()
        for i in range(4): e(f"ds_write_b128 v{vRowM}, {v(AC[0]+4*i,4)} offset:{i*32}")
        e("s_mov_b64 exec, -1")
        e(f"v_mul_f32 v2, v{AC[0]}, v{E[1-q]}")
        for i in range(1, 16): e(f"v_fmac_f32 v2, v{AC[0]+i}, v{E[1-q]+i}")
        mmask()
        for i in range(4): e(f"ds_write_b128 v{vRowM}, {v(AC[1]+4*i,4)} offset:{128+i*32}")
        e("s_mov_b64 exec, -1")
        for i in range(16): e(f"v_fmac_f32 v2, v{AC[1]+i}, v{T[1-q]+i}")
        e(f"ds_write_b32 v{vRowP}, v2 offset:256")
        if sidx == 2: e("s_branch L_b6")
e.label("L_b6")
e("s_setprio 0")
def bfaddr(dst):
    e(f"v_ffbl_b32 v5, v{vMask}")
    e(f"v_add_u32 v6, -1, v{vMask}")
    e(f"v_min_u32 v5, {OOB//256}, v5")
    e(f"v_and_b32 v{vMask}, v6, v{vMask}")
    e(f"v_mul_u32_u24 v5, {ACCS}, v5")
    e(f"v_add_u32 v{dst}, {BF}, v5")
e(f"v_and_b32 v1, 15, v{L}")
e(f"v_lshrrev_b32 v2, 4, v{L}")
e(f"s_lshl_b32 s60, s{sNG}, 4")
e("v_add_u32 v1, s60, v1")
e(f"v_mul_u32_u24 v3, {ACCS}, v1")
e("v_lshl_add_u32 v3, v2, 5, v3")
e(f"v_add_u32 v3, {ACC}, v3")
e("s_waitcnt lgkmcnt(0)")
bfaddr(4)
e("s_barrier")
stamp(12)
e(f"s_cmp_lg_u32 s{sMORE}, 0")
e("s_cbranch_scc1 L_more")
e(f"s_cmp_ge_u32 s{sW}, 6")
e("s_cbranch_scc1 L_finpos")
MR = 16; MB = 32; Y = 40; YE = 48; HU = 56; MX = 64
for c in range(2):
    for hf in range(2):
        e(f"ds_read_b128 {v(MR+8*c+4*hf,4)}, v3 offset:{c*128+hf*16}")
e.label("L_finbf")
e("v_lshl_add_u32 v4, v2, 5, v4")
for c in range(2):
    for hf in range(2):
        e(f"ds_read_b128 {v(MX+8*c+4*hf,4)}, v4 offset:{c*128+hf*16}")
e(f"v_cmp_ne_u32 vcc, 0, v{vMask}")
for d in range(4):
    e(f"v_lshlrev_b32 v{HU+2*d}, 16, v{HRES+d}")
    e(f"v_and_b32 v{HU+2*d+1}, 0xffff0000, v{HRES+d}")
for i in range(4):
    e(f"s_waitcnt lgkmcnt({3-i})")
    for d in range(4): e(f"v_add_f32 v{MR+4*i+d}, v{MR+4*i+d}, v{MX+4*i+d}")
e("s_cbranch_vccnz L_finbf_more")
for c in range(2):
    for d in range(4): e(f"v_cvt_pk_bf16_f32 v{MB+4*c+d}, v{MR+8*c+2*d}, v{MR+8*c+2*d+1}")
e(f"s_mov_b32 s60, {NLN2}")
e(f"s_mov_b32 s61, {NL2E}")
for t in range(2):
    e(f"v_mfma_f32_16x16x32_bf16 {v(Y+4*t,4)}, {v(WH2+8*t,4)}, {v(MB,4)}, 0")
    e(f"v_mfma_f32_16x16x32_bf16 {v(Y+4*t,4)}, {v(WH2+8*t+4,4)}, {v(MB+4,4)}, {v(Y+4*t,4)}")
e(f"v_cmp_gt_u32 vcc, {NB}, v1")
e(f"v_add_u32 v1, s{sN0}, v1")
e(f"s_lshl_b32 s62, s{sCHF}, 6")
e("v_lshl_add_u32 v2, v2, 4, s62")
e("v_lshl_add_u32 v1, v1, 7, v2")
e("s_nop 0")
for i in range(8): e(f"v_fma_f32 v{Y+i}, v{Y+i}, s60, v{H1+i}")
for i in range(8): e(f"v_mul_f32 v{YE+i}, s61, v{Y+i}")
for i in range(8): e(f"v_exp_f32 v{YE+i}, v{YE+i}")
for i in range(8): e(f"v_add_f32 v{YE+i}, 1.0, v{YE+i}")
for i in range(8): e(f"v_rcp_f32 v{YE+i}, v{YE+i}")
for i in range(8): e(f"v_fmac_f32 v{HU+i}, v{Y+i}, v{YE+i}")
for d in range(4): e(f"v_cvt_pk_bf16_f32 v{Y+d}, v{HU+2*d}, v{HU+2*d+1}")
e("s_mov_b64 exec, vcc")
e(f"global_store_dwordx4 v1, {v(Y,4)}, {s(sOUT,2)}")
stamp(13, last=True)
e("s_endpgm")
e.label("L_finpos")
e(f"ds_read_b64 v[16:17], v{H1}")
e.label("L_posbf")
e(f"v_add_u32 v4, v4, v{H1+1}")
e("ds_read_b64 v[18:19], v4")
e(f"v_cmp_ne_u32 vcc, 0, v{vMask}")
e("s_waitcnt lgkmcnt(0)")
e("v_add_f32 v16, v16, v18")
e("v_add_f32 v17, v17, v19")
e("s_cbranch_vccnz L_posbf_more")
e("v_and_b32 v1, 127, v0")
e("v_cmp_gt_u32 vcc, 120, v1")
e(f"s_mul_i32 s60, s{sB}, 240")
e("s_add_u32 s60, s60, 1280000")
e("v_lshl_add_u32 v1, v1, 1, s60")
e("v_add_f32 v16, v16, v17")
e(f"v_add_f32 v{vPosOwn}, v{vPosOwn}, v16")
e(f"v_cvt_pk_bf16_f32 v2, v{vPosOwn}, v{vPosOwn}")
e("s_mov_b64 exec, vcc")
e(f"global_store_short v1, v2, {s(sOUT,2)}")
stamp(13, last=True)
e("s_endpgm")
for lbl in ("mid", "dr"):
    e.label(f"L_flush_{lbl}")
    flush_slow()
    e("s_waitcnt lgkmcnt(0)")
    for i in range(32): e(f"v_mov_b32 v{AC[0]+i}, 0")
    e(f"s_mov_b32 s{sBASE}, s{sNF}")
    e(f"s_mov_b32 s{sSLOW}, 1")
    for x in rowaddr(): e(x)
    e(f"s_branch L_flret_{lbl}")
e.label("L_slow_final")
flush_slow()
e("s_branch L_b6")
e.label("L_finbf_more")
bfaddr(4)
e("s_branch L_finbf")
e.label("L_posbf_more")
bfaddr(4)
e("s_branch L_posbf")
e.label("L_more")
e("s_waitcnt vmcnt(0)")
e(f"s_add_u32 s{sR0}, s{sR0}, s{sS}")
e(f"s_mov_b32 s{sS}, 256")
e("s_branch L_batch")
e.label("L_redo")
e(f"s_cmp_eq_u32 s{sS}, {SFALL}")
e("s_cbranch_scc1 L_end")
e("s_waitcnt vmcnt(0) lgkmcnt(0)")
e("s_barrier")
e(f"ds_write_b32 v1, v{ZP} offset:{CNT2}")
e(f"s_mov_b32 s{sS}, {SFALL}")
e("s_waitcnt lgkmcnt(0)")
e("s_barrier")
e("s_branch L_batch")
e.label("L_end")
e("s_endpgm")

probs = check_cfg(e.lines)
for p in probs: print("HAZARD", p, file=sys.stderr)

ref = open("cdna_kernels/" + KN + ".s.ref").read().split("\n")
hdr = []
for l in ref:
    if l.startswith("; Override launch"): break
    hdr.append(l)
out = "\n".join(hdr) + f"""
; One persistent launch: 250 workgroups (one per CU) bin the edges by destination bucket, hand the bins
; over through d_ws (tagged with a per-launch epoch), then each workgroup updates its 40 nodes.
; @launch grid=({NWG},1,1) block=(512,1,1) lds={LDS_SIZE}
.amdgcn_target "amdgcn-amd-amdhsa--gfx950"
.text
.globl {KN}_kernel
.p2align 8
.type {KN}_kernel,@function
{KN}_kernel:
{e.text()}.section .rodata,"a"
.p2align 6
.amdhsa_kernel {KN}_kernel
  .amdhsa_next_free_vgpr 256
  .amdhsa_next_free_sgpr 102
  .amdhsa_accum_offset 256
  .amdhsa_group_segment_fixed_size 0
  .amdhsa_kernarg_size 88
  .amdhsa_user_sgpr_count 2
  .amdhsa_user_sgpr_kernarg_segment_ptr 1
  .amdhsa_system_sgpr_workgroup_id_x 1
  .amdhsa_float_denorm_mode_32 3
.end_amdhsa_kernel
"""
open(sys.argv[1], "w").write(out)
print("wrote", sys.argv[1], len(e.lines), "lines;", len(probs), "hazards", file=sys.stderr)
```

```python
import sys, struct
from asmlib import Emit, v, s, check_cfg

KN = "standalone__cheap_equivariant_egnn__graph"
OPT = dict(stamps=False, prio=True, posat="window")
for a in sys.argv[2:]:
    k, _, val = a.partition("=")
    try: OPT[k] = eval(val) if val else True
    except Exception: OPT[k] = val

def fbits(x): return struct.unpack("<I", struct.pack("<f", x))[0]
LOG2E = 1.4426950408889634; LN2 = 0.6931471805599453
NL2E = hex(fbits(-LOG2E)); NLN2 = hex(fbits(-LN2))

NWG = 250; CH = 2560; NB = 40
CNT1 = 0x0; OFF1 = 0x400; CNT2 = 0x800; LNK = 0x900; BASE2 = 0xA00; PD = 0xB00; WXT = 0xE00
POS = 0xF00; SORT2 = POS + 61440; CAPB = 3072 * 8
R1 = SORT2 + CAPB + 512; R2 = R1 + 8192; ACC = R2 + 32768; ACCS = 304
BF = ACC + NB * ACCS; AT = BF + 8 * ACCS; ATS = 104; LDS_END = AT + 64 * ATS
STG = R2; WE = SORT2; WH = SORT2 + 16384
OOB = 0x100000
LDS_SIZE = 163840
assert LDS_END <= LDS_SIZE and WH + 16384 <= R2 and R2 % 64 == 0
PADB = 32 * 8; SFALL = 48
WS_FLAG = 0x1000; WS_OFF = 0x10000; WS_BP = 0x100000; WS_REC = 0x300000; WS_STAMP = 0x1000000
TAGC = 0x9E3779B1
sH, sPOS, sE, sSRC, sDST, sWE, sWX, sWH, sOUT, sDBG, sWS = 4, 6, 8, 10, 12, 14, 16, 18, 20, 22, 24
sW, sB = 26, 27
srdBP, srdPOS, srdH = 28, 32, 36
sTAG, sTAGR, sBUD, sR0, sS, sN0, sNG, sCHF = 40, 41, 42, 43, 44, 45, 46, 47
sOHC, sNFW, sNLW, sCNT, sBASE, sNF, sNL, sNEG, sMORE, sVAL = 48, 50, 51, 52, 53, 54, 55, 56, 57, 58
sSLOW = 16
sMK = 64
sRB = 8
T = [16, 32]; E = [48, 64]; AC = [80, 96]; M = [112, 116]; G = [120, 128, 136, 144]; S = [152, 156, 160, 164]
R1OP = 168; WX = 172; I0 = 176; I1 = 180; ONE = 184; IDX = 186
aIdx, aRec, aR1r, aS0, aS1, aR1w, aR2b, aR2, aATb, aAT = 188, 189, 190, 191, 192, 193, 194, 195, 196, 197
vRowM, vRowP = 198, 199
REC = 200; R2V = 204; PS = 206; PDV = 210; BT = 213; ZP = 216; vIdxL = 218; vPosOwn = 219
SEG = 220; vMask = 224; vWxa = 225; H1 = 226; HRES = 234; WH2 = 238; vLane = 254; vAItem = 255
L = vLane

e = Emit()
def stamp(i, last=False):
    if OPT.get("diag") is not None:
        if i == 0:
            e("s_memrealtime s[98:99]")
            e("s_waitcnt lgkmcnt(0)")
            e("s_mov_b32 s100, s98")
            e("s_mov_b32 s101, s98")
        elif i == OPT["diag"]:
            e("s_memrealtime s[98:99]")
            e("s_waitcnt lgkmcnt(0)")
            e("s_mov_b32 s101, s98")
        if last:
            stamp.n = getattr(stamp, "n", 0) + 1
            e("s_sub_u32 s101, s101, s100")
            e("s_lshl_b32 s101, s101, 2")
            e("s_add_u32 s101, s101, 3000")
            e.label(f"L_spin{stamp.n}")
            e("s_memrealtime s[98:99]")
            e("s_waitcnt lgkmcnt(0)")
            e("s_sub_u32 s98, s98, s100")
            e("s_cmp_lt_u32 s98, s101")
            e(f"s_cbranch_scc1 L_spin{stamp.n}")
        return
    if not OPT["stamps"]: return
    if i > 0:
        e("s_mov_b32 m0, s101")
        e("v_writelane_b32 v15, s98, m0")
    e("s_memrealtime s[98:99]")
    e(f"s_mov_b32 s101, {i}")
    if last:
        e("s_mov_b64 exec, -1")
        e("s_waitcnt lgkmcnt(0)")
        e(f"v_writelane_b32 v15, s98, {i}")
        e("s_lshl_b32 s100, s2, 3")
        e(f"s_add_u32 s100, s100, s{sW}")
        e("s_lshl_b32 s100, s100, 7")
        e(f"s_add_u32 s100, s100, {WS_STAMP}")
        e(f"v_lshl_add_u32 v14, v{L}, 2, s100")
        e("s_mov_b64 exec, 0xffff")
        e(f"global_store_dword v14, v15, {s(sWS,2)}")

def scan(r):
    for m in ("row_shr:1", "row_shr:2", "row_shr:4", "row_shr:8"):
        e("s_nop 1")
        e(f"v_add_u32_dpp v{r}, v{r}, v{r} {m} row_mask:0xf bank_mask:0xf bound_ctrl:1")
    e("s_nop 1")
    e(f"v_add_u32_dpp v{r}, v{r}, v{r} row_bcast:15 row_mask:0xa bank_mask:0xf")
    e("s_nop 1")
    e(f"v_add_u32_dpp v{r}, v{r}, v{r} row_bcast:31 row_mask:0xc bank_mask:0xf")

SD = "dst_sel:DWORD dst_unused:UNUSED_PAD"

def posdma():
    e(f"s_lshl_b32 s60, s{sW}, 10")
    for i in range(8):
        if i == 7:
            e(f"s_cmp_ge_u32 s{sW}, 4")
            e("s_cbranch_scc1 L_nop8")
        e(f"s_add_u32 m0, s60, {POS+i*8192}")
        e(f"s_mov_b32 s61, {i*8192}")
        e(f"buffer_load_dwordx4 v12, {s(srdPOS,4)}, s61 offen lds")
    e.label("L_nop8")

DSTR = 16; SRCR = 24; ER = 32; XW = 36; B4 = 48; RK = 56
stamp(0)
e(f"s_cmp_ge_u32 s2, {NWG}")
e("s_cbranch_scc1 L_end")
e("s_load_dwordx16 s[4:19], s[0:1], 0")
e("s_load_dwordx4 s[20:23], s[0:1], 64")
e("s_load_dwordx2 s[24:25], s[0:1], 80")
e(f"s_mul_i32 s3, s2, {CH*4}")
e("v_lshl_add_u32 v1, v0, 4, s3")
e(f"s_add_u32 s60, s3, 8192")
e("v_lshl_add_u32 v2, v0, 2, s60")
e("s_lshr_b32 s3, s3, 1")
e("v_lshl_add_u32 v3, v0, 3, s3")
e("s_add_u32 s60, s3, 4096")
e("v_lshl_add_u32 v4, v0, 1, s60")
e("v_lshrrev_b32 v5, 6, v0")
e(f"v_and_b32 v{L}, 63, v0")
e(f"v_readfirstlane_b32 s{sW}, v5")
for i in range(4): e(f"v_mov_b32 v{8+i}, 0")
e("v_lshlrev_b32 v12, 4, v0")
e("s_waitcnt lgkmcnt(0)")
e(f"global_load_dwordx4 {v(DSTR,4)}, v1, {s(sDST,2)}")
e(f"global_load_dword v{DSTR+4}, v2, {s(sDST,2)}")
e(f"global_load_dwordx4 {v(SRCR,4)}, v1, {s(sSRC,2)}")
e(f"global_load_dword v{SRCR+4}, v2, {s(sSRC,2)}")
e(f"global_load_dwordx2 {v(ER,2)}, v3, {s(sE,2)}")
e(f"global_load_short_d16_hi v{ER+2}, v4, {s(sE,2)}")
e(f"s_load_dword s{sTAG}, {s(sWS,2)}, 0")
e(f"s_cmp_ge_u32 s{sW}, 3")
e("s_cbranch_scc1 L_nozc")
e("ds_write_b128 v12, v[8:11]")
e.label("L_nozc")
e(f"v_add_u32 v1, {R2}, v12")
assert R2 + 6*8192 >= AT and R2 + 6*8192 <= LDS_SIZE
for i in range(2, 6): e(f"ds_write_b128 v1, v[8:11] offset:{i*8192}")
e("s_and_b32 s60, s2, 7")
e(f"s_mul_i32 s{sB}, s60, 31")
e("s_min_u32 s60, s60, 2")
e(f"s_add_u32 s{sB}, s{sB}, s60")
e("s_lshr_b32 s60, s2, 3")
e(f"s_add_u32 s{sB}, s{sB}, s60")
e(f"s_mul_i32 s{sN0}, s{sB}, {NB}")
e(f"s_mul_i32 s{sCHF}, s{sW}, 86")
e(f"s_lshr_b32 s{sCHF}, s{sCHF}, 8")
e(f"s_mul_i32 s60, s{sCHF}, 3")
e(f"s_sub_u32 s{sNG}, s{sW}, s60")
e(f"s_mov_b32 s{srdH}, s{sH}")
e(f"s_and_b32 s{srdH+1}, s{sH+1}, 0xffff")
e(f"s_mov_b32 s{srdH+2}, 1280000")
e(f"s_mov_b32 s{srdH+3}, 0x20000")
CA0 = 64; CA1 = 65; HA = 66; PA = 67; WA1 = 68; HF = 72
e(f"v_add_u32 v{WA1}, 8192, v12")
e(f"s_lshl_b32 s60, s{sW}, 10")
for base, ptr in ((WE, sWE), (WH, sWH)):
    for k2, a in ((0, 12), (8192, WA1)):
        e(f"s_add_u32 m0, s60, {base+k2}")
        e("s_nop 0")
        e(f"global_load_lds_dwordx4 v{a}, {s(ptr,2)}")
e(f"s_lshl_b32 s60, s{sNG}, 4")
e(f"s_add_u32 s60, s60, s{sN0}")
e(f"v_and_b32 v7, 15, v{L}")
e("v_add_u32 v7, s60, v7")
e(f"v_and_b32 v13, 48, v{L}")
e(f"v_lshl_add_u32 v{HA}, v7, 7, v13")
e(f"buffer_load_dwordx4 {v(HF,4)}, v{HA}, {s(srdH,4)}, 0 offen")
e(f"buffer_load_dwordx4 {v(HF+4,4)}, v{HA}, {s(srdH,4)}, 0 offen offset:64")
e("v_and_b32 v7, 127, v0")
e(f"v_min_u32 v{vAItem}, 119, v7")
e(f"s_mul_i32 s60, s{sB}, 240")
e(f"v_lshl_add_u32 v{PA}, v{vAItem}, 1, s60")
e(f"global_load_short_d16_hi v{vPosOwn}, v{PA}, {s(sPOS,2)}")
e(f"v_lshrrev_b32 v1, 5, v{L}")
e(f"v_and_b32 v2, 1, v{L}")
e(f"v_and_b32 v6, 31, v{L}")
e("v_and_b32 v7, 3, v6")
e("v_lshrrev_b32 v13, 3, v6")
e("v_lshlrev_b32 v13, 2, v13")
e("v_lshl_add_u32 v7, v7, 4, v13")
e("v_bfe_u32 v13, v6, 2, 1")
e("v_add_u32 v7, v7, v13")
e("v_lshl_add_u32 v7, v1, 1, v7")
e(f"v_lshlrev_b32 v{CA0}, 1, v7")
e(f"v_add_u32 v{CA1}, 16384, v{CA0}")
e(f"global_load_short_d16_hi v{WX}, v{CA1}, {s(sWE,2)}")
e(f"global_load_short_d16_hi v{WX+1}, v{CA1}, {s(sWE,2)} offset:128")
e(f"global_load_short_d16_hi v{vMask}, v{CA0}, {s(sWX,2)}")
NAUX = 10
e(f"v_mul_u32_u24 v{aATb}, {ATS}, v7")
e(f"v_add_u32 v{aATb}, {AT}, v{aATb}")
e(f"s_add_u32 s{srdBP}, s{sWS}, {WS_BP}")
e(f"s_addc_u32 s{srdBP+1}, s{sWS+1}, 0")
e(f"s_and_b32 s{srdBP+1}, s{srdBP+1}, 0xffff")
e(f"s_or_b32 s{srdBP+1}, s{srdBP+1}, 0x800000")
e(f"s_mov_b32 s{srdBP+2}, 10000")
e(f"s_mov_b32 s{srdBP+3}, 0x20000")
e(f"s_mov_b32 s{srdPOS}, s{sPOS}")
e(f"s_and_b32 s{srdPOS+1}, s{sPOS+1}, 0xffff")
e(f"s_mov_b32 s{srdPOS+2}, 60000")
e(f"s_mov_b32 s{srdPOS+3}, 0x20000")
e(f"s_mov_b32 s{sBUD}, 200000")
e(f"s_mov_b32 s{sR0}, 0")
e(f"s_mov_b32 s{sS}, 256")
e(f"s_mov_b32 s{sOHC}, 0x3f80")
e(f"s_mov_b32 s{sOHC+1}, 0")
e(f"v_mov_b32 v{ZP}, 0")
e(f"v_mov_b32 v{ZP+1}, 0")
e(f"v_lshlrev_b32 v{vWxa}, 7, v1")
e(f"v_lshlrev_b32 v3, 5, v1")
e(f"v_lshl_add_u32 v{IDX+1}, v2, 4, v3")
e(f"v_bfe_u32 v4, v{L}, 3, 2")
e(f"v_bfe_u32 v5, v{L}, 1, 1")
e("v_lshl_add_u32 v4, v4, 1, v5")
e("v_lshl_add_u32 v4, v13, 3, v4")
e(f"v_lshlrev_b32 v{vIdxL}, 3, v4")
e(f"s_lshl_b32 s60, s{sW}, 10")
e(f"s_add_u32 s60, s60, {R1}")
e(f"v_lshl_add_u32 v{aR1r}, v4, 4, s60")
e("v_xor_b32 v5, v1, v2")
e(f"v_lshl_add_u32 v{aR1r}, v5, 20, v{aR1r}")
e(f"v_lshl_add_u32 v{aR1w}, v{L}, 4, s60")
e(f"s_lshl_b32 s60, s{sW}, 12")
e(f"s_add_u32 s60, s60, {R2}")
e(f"v_bfe_u32 v3, v{L}, 1, 3")
e(f"v_lshl_add_u32 v4, v{L}, 6, s60")
e(f"v_lshl_add_u32 v{aR2b}, v3, 3, v4")
e(f"v_mov_b32 v{aR2}, v{aR2b}")
e(f"v_bfe_u32 v3, v{L}, 2, 2")
e(f"v_and_b32 v4, 3, v{L}")
e(f"v_bfe_u32 v5, v{L}, 4, 1")
e("v_lshl_add_u32 v5, v5, 2, v4")
e("v_lshrrev_b32 v7, 1, v3")
e("v_lshl_add_u32 v7, v1, 2, v7")
e("v_xor_b32 v5, v5, v7")
e("v_lshl_add_u32 v7, v1, 3, v3")
e("v_lshl_add_u32 v7, v7, 6, s60")
e(f"v_lshl_add_u32 v{aS0}, v5, 3, v7")
e(f"v_xor_b32 v{aS1}, 16, v{aS0}")
e(f"v_add_u32 v{aS1}, 256, v{aS1}")
e("v_lshlrev_b32 v7, 3, v1")
e("v_sub_u32 v7, v6, v7")
e("v_lshlrev_b32 v13, 4, v2")
e(f"v_lshlrev_b32 v13, v13, s{sOHC}")
e("v_ashrrev_i32 v7, 1, v7")
for u, I in ((0, I0), (1, I1)):
    for d in range(4): e(f"v_cmp_eq_u32 {s(sMK+2*d,2)}, {8*u+d}, v7")
    for d in range(4): e(f"v_cndmask_b32 v{I+d}, 0, v13, {s(sMK+2*d,2)}")
e("v_xor_b32 v7, 1, v1")
e(f"v_mul_u32_u24 v{ONE}, 0x3f80, v7")
e(f"v_mov_b32 v{ONE+1}, 0")
e("v_mov_b32 v13, 8")
e("s_mov_b32 s61, 52429")
e("s_movk_i32 s62, -40")
e("s_waitcnt lgkmcnt(0)")
e(f"s_add_u32 s{sTAG}, s{sTAG}, {TAGC}")
e(f"s_and_b32 s{sTAGR}, s{sTAG}, 0xffffff00")
e("s_barrier")
stamp(1)
e(f"s_waitcnt vmcnt({4+NAUX})")
for i in range(5): e(f"v_mul_u32_u24 v{B4+i}, s61, v{DSTR+i}")
for i in range(5): e(f"v_lshrrev_b32 v{B4+i}, 21, v{B4+i}")
for i in range(5):
    e(f"v_lshlrev_b32 v{B4+i}, 2, v{B4+i}")
    e(f"ds_add_rtn_u32 v{RK+i}, v{B4+i}, v13 offset:{CNT1}")
for i in range(5): e(f"v_lshl_add_u32 v{XW+2*i}, v{DSTR+i}, 2, s{sTAGR}")
for i in range(5): e(f"v_mad_i32_i24 v{XW+2*i}, v{B4+i}, s62, v{XW+2*i}")
e(f"v_lshlrev_b32 v1, 4, v{L}")
e("s_waitcnt lgkmcnt(0)")
e("s_barrier")
stamp(2)
e(f"ds_read_b128 v[4:7], v1 offset:{CNT1}")
e(f"s_lshl_b32 s60, s2, 10")
e(f"s_add_u32 s60, s60, {WS_OFF}")
e("v_add_u32 v2, s60, v1")
e(f"s_lshl_b32 s60, s{sW}, 3")
e("s_lshl_b64 s[62:63], 0xff, s60")
for i in range(5): e(f"v_add_u32 v{RK+i}, {STG}, v{RK+i}")
e("s_waitcnt lgkmcnt(0)")
e("v_add_u32 v5, v4, v5")
e("v_add_u32 v6, v5, v6")
e("v_add_u32 v7, v6, v7")
e("v_mov_b32 v3, v7")
scan(3)
e("v_sub_u32 v8, v3, v7")
e("v_add_u32 v9, v8, v4")
e("v_add_u32 v10, v8, v5")
e("v_add_u32 v11, v8, v6")
e(f"ds_write_b128 v1, v[8:11] offset:{OFF1}")
for i in range(5): e(f"ds_read_b32 v{B4+i}, v{B4+i} offset:{OFF1}")
e("v_lshl_or_b32 v4, v9, 16, v8")
e("v_lshl_or_b32 v5, v11, 16, v10")
e("v_mov_b32 v6, v3")
e(f"v_mov_b32 v7, s{sTAG}")
e("s_mov_b64 exec, s[62:63]")
e(f"global_store_dwordx4 v2, v[4:7], {s(sWS,2)} sc1")
e("s_mov_b64 exec, -1")
e("s_mov_b32 s60, 0xffff0000")
e(f"s_waitcnt vmcnt({NAUX+1})")
e(f"v_lshl_or_b32 v{XW+1}, v{ER}, 16, v{SRCR}")
e(f"v_and_or_b32 v{XW+3}, v{ER}, s60, v{SRCR+1}")
e(f"v_lshl_or_b32 v{XW+5}, v{ER+1}, 16, v{SRCR+2}")
e(f"v_and_or_b32 v{XW+7}, v{ER+1}, s60, v{SRCR+3}")
e(f"v_or_b32 v{XW+9}, v{ER+2}, v{SRCR+4}")
for i in range(5):
    e("s_waitcnt lgkmcnt(4)")
    e(f"v_add_u32 v{B4+i}, v{B4+i}, v{RK+i}")
    e(f"ds_write_b64 v{B4+i}, {v(XW+2*i,2)}")
PA4 = 16; PL = 32
e("v_lshrrev_b32 v1, 3, v0")
e(f"s_lshr_b32 s60, s{sB}, 2")
e("s_lshl_b32 s60, s60, 4")
e(f"s_add_u32 s60, s60, {WS_OFF}")
e(f"v_lshl_add_u32 v{PA4}, v1, 10, s60")
e(f"v_add_u32 v{PA4+1}, {64*1024}, v{PA4}")
e(f"v_add_u32 v{PA4+2}, {128*1024}, v{PA4}")
e("v_add_u32 v1, 192, v1")
e(f"v_min_u32 v1, {NWG-1}, v1")
e(f"v_lshl_add_u32 v{PA4+3}, v1, 10, s60")
e(f"s_mul_i32 s60, s2, {CH*8}")
e(f"s_add_u32 s60, s60, {WS_REC}")
e("v_add_u32 v2, s60, v12")
e("v_add_u32 v3, 8192, v2")
e("v_add_u32 v4, 16384, v2")
e(f"v_add_u32 v5, {STG}, v12")
for i in range(4): e(f"v_mov_b32 v{8+i}, 0")
e("s_waitcnt vmcnt(1) lgkmcnt(0)")
e("s_barrier")
stamp(3)
ST = 48
for i in range(3): e(f"ds_read_b128 {v(ST+4*i,4)}, v5 offset:{i*8192}")
def poll_loads():
    for p in range(4): e(f"global_load_dwordx4 {v(PL+4*p,4)}, v{PA4+p}, {s(sWS,2)} sc1")
poll_loads()
e("s_waitcnt lgkmcnt(2)")
e(f"global_store_dwordx4 v2, {v(ST,4)}, {s(sWS,2)} sc1")
e("s_waitcnt lgkmcnt(1)")
e(f"global_store_dwordx4 v3, {v(ST+4,4)}, {s(sWS,2)} sc1")
e("s_waitcnt lgkmcnt(0)")
e(f"s_cmp_ge_u32 s{sW}, 4")
e("s_cbranch_scc1 L_no3")
e(f"global_store_dwordx4 v4, {v(ST+8,4)}, {s(sWS,2)} sc1")
e.label("L_no3")
for i in range(3): e(f"ds_write_b128 v5, v[8:11] offset:{i*8192}")
e(f"s_cmp_lg_u32 s2, {NWG-1}")
e("s_cbranch_scc1 L_nodummy")
e(f"v_mov_b32 v5, {WS_REC + NWG*CH*8}")
e(f"v_mov_b32 v6, s{sTAGR}")
e(f"global_store_dword v5, v6, {s(sWS,2)} sc1")
e.label("L_nodummy")
e(f"v_mul_f32 v{WX}, {NL2E}, v{WX}")
e(f"v_mul_f32 v{WX+1}, {NL2E}, v{WX+1}")
e(f"v_cvt_pk_bf16_f32 v1, v{WX}, v{WX}")
e("v_and_b32 v1, 0xffff0000, v1")
e(f"v_sub_f32 v2, v{WX}, v1")
e(f"v_cvt_pk_bf16_f32 v{WX}, v1, v2")
e(f"v_cvt_pk_bf16_f32 v{WX+1}, 0, v{WX+1}")
e(f"s_cmp_ge_u32 s{sW}, 6")
e("s_cbranch_scc1 L_w67")
WT = 80; DT = 112; W1T = 128
e(f"v_bfe_u32 v1, v{L}, 2, 2")
e(f"v_and_b32 v2, 3, v{L}")
e(f"v_lshrrev_b32 v3, 4, v{L}")
e("v_lshl_add_u32 v4, v3, 3, v1")
e(f"s_xor_b32 s60, s{sCHF}, 1")
e("s_lshl_b32 s60, s60, 13")
e(f"s_add_u32 s60, s60, {WE}")
e("v_lshl_add_u32 v5, v4, 7, s60")
e("v_lshl_add_u32 v5, v2, 3, v5")
for t in range(4):
    for ks in range(2):
        for rd in range(2):
            e(f"ds_read_b64_tr_b16 {v(WT+8*t+4*ks+2*rd,2)}, v5 offset:{ks*4096+rd*512+t*32}")
e(f"s_lshl_b32 s60, s{sCHF}, 6")
e(f"s_add_u32 s60, s60, {WH}")
e("v_lshl_add_u32 v6, v2, 4, s60")
e("v_lshl_add_u32 v5, v4, 7, v6")
e("v_lshl_add_u32 v4, v1, 2, v3")
e("v_lshl_add_u32 v6, v4, 9, v6")
e("s_waitcnt lgkmcnt(0)")
for t in range(2):
    for ks in range(2):
        for rd in range(2):
            e(f"ds_read_b64_tr_b16 {v(W1T+8*t+4*ks+2*rd,2)}, v5 offset:{ks*4096+rd*512+t*8}")
for t in range(4):
    e(f"v_mfma_f32_16x16x32_bf16 {v(DT+4*t,4)}, {v(HF,4)}, {v(WT+8*t,4)}, 0")
    e(f"v_mfma_f32_16x16x32_bf16 {v(DT+4*t,4)}, {v(HF+4,4)}, {v(WT+8*t+4,4)}, {v(DT+4*t,4)}")
e("s_waitcnt lgkmcnt(0)")
for t in range(2):
    for c in range(2):
        for rd in range(2):
            e(f"ds_read_b64_tr_b16 {v(WH2+8*t+4*c+2*rd,2)}, v6 offset:{8192+c*256+rd*128+t*8}")
for t in range(2):
    e(f"v_mfma_f32_16x16x32_bf16 {v(H1+4*t,4)}, {v(W1T+8*t,4)}, {v(HF,4)}, 0")
    e(f"v_mfma_f32_16x16x32_bf16 {v(H1+4*t,4)}, {v(W1T+8*t+4,4)}, {v(HF+4,4)}, {v(H1+4*t,4)}")
e(f"s_mov_b32 s61, {NL2E}")
for i in range(16): e(f"v_mul_f32 v{DT+i}, s61, v{DT+i}")
e(f"v_and_b32 v1, 15, v{L}")
e(f"s_cmp_ge_u32 s{sW}, 3")
e("s_cbranch_scc1 L_w345")
for r in range(4):
    e(f"v_cvt_pk_bf16_f32 v{WT+2*r}, v{DT+r}, v{DT+4+r}")
    e(f"v_cvt_pk_bf16_f32 v{WT+2*r+1}, v{DT+8+r}, v{DT+12+r}")
e(f"s_lshl_b32 s60, s{sNG}, 4")
e(f"s_add_u32 s60, s60, s{sN0}")
e("s_lshl_b32 s60, s60, 7")
e(f"s_add_u32 s60, s60, {WS_BP}")
e("v_lshl_add_u32 v2, v3, 9, s60")
e("v_lshl_add_u32 v2, v1, 3, v2")
for i in range(4): e(f"v_mov_b32 v{HRES+i}, v{HF+i}")
e(f"s_cmp_eq_u32 s{sNG}, 2")
e("s_cselect_b32 exec_hi, 0, -1")
for r in range(4): e(f"global_store_dwordx2 v2, {v(WT+2*r,2)}, {s(sWS,2)} offset:{r*128} sc1")
e("s_mov_b64 exec, -1")
e("s_branch L_wdone")
e.label("L_w345")
for t in range(4):
    e(f"v_cvt_pk_bf16_f32 v{WT+2*t}, v{DT+4*t}, v{DT+4*t+1}")
    e(f"v_cvt_pk_bf16_f32 v{WT+2*t+1}, v{DT+4*t+2}, v{DT+4*t+3}")
e(f"s_lshl_b32 s60, s{sNG}, 5")
e(f"s_add_u32 s60, s60, {AT}")
e("v_lshl_add_u32 v2, v3, 3, s60")
e(f"v_mul_u32_u24 v1, {ATS}, v1")
e("v_add_u32 v2, v1, v2")
for i in range(4): e(f"v_mov_b32 v{HRES+i}, v{HF+4+i}")
for t in range(4): e(f"ds_write_b64 v2, {v(WT+2*t,2)} offset:{t*16*ATS}")
e("s_branch L_wdone")
e.label("L_w67")
e(f"v_mul_u32_u24 v1, 171, v{vAItem}")
e("v_lshrrev_b32 v1, 9, v1")
e(f"v_mad_i32_i24 v2, v1, -3, v{vAItem}")
e(f"v_lshlrev_b32 v{H1+2}, 2, v1")
e(f"v_lshl_add_u32 v3, v2, 8, v{H1+2}")
e(f"ds_write_b32 v3, v{vPosOwn} offset:{PD}")
e(f"v_lshlrev_b32 v{H1+1}, 3, v2")
e(f"v_add_u32 v{H1+1}, 256, v{H1+1}")
e(f"v_mul_u32_u24 v1, {ACCS}, v1")
e(f"v_add_u32 v1, {ACC}, v1")
e(f"v_add_u32 v{H1}, v1, v{H1+1}")
e(f"v_mul_f32 v4, {NLN2}, v{vMask}")
e(f"v_bfe_u32 v1, v{L}, 2, 1")
e(f"v_lshrrev_b32 v2, 3, v{L}")
e(f"v_and_b32 v3, 3, v{L}")
e("v_lshl_add_u32 v2, v2, 2, v3")
e("v_lshl_add_u32 v2, v1, 5, v2")
e("v_lshlrev_b32 v2, 2, v2")
e(f"ds_write_b32 v2, v4 offset:{WXT}")
e.label("L_wdone")
if OPT["stamps"]: e("s_waitcnt lgkmcnt(0)")
stamp(4)
if OPT["posat"] == "window": posdma()
e("s_waitcnt vmcnt(0)")
if OPT["stamps"]: e("s_waitcnt lgkmcnt(0)")
stamp(5)
e(f"s_cmp_ge_u32 s{sW}, 3")
e("s_cbranch_scc1 L_chkoff")
e("s_lshl_b32 s60, s2, 7")
e(f"s_lshl_b32 s61, s{sW}, 2")
e("s_add_u32 s60, s60, s61")
e(f"s_add_u32 s60, s60, {WS_FLAG}")
e("v_mov_b32 v1, s60")
e(f"v_mov_b32 v2, s{sTAG}")
e("s_mov_b64 exec, 1")
e(f"global_store_dword v1, v2, {s(sWS,2)} sc1")
e("s_mov_b64 exec, -1")
e.label("L_chkoff")
e(f"v_cmp_ne_u32 s[60:61], s{sTAG}, v{PL+3}")
e(f"v_cmp_ne_u32 s[62:63], s{sTAG}, v{PL+7}")
e(f"v_cmp_ne_u32 s[96:97], s{sTAG}, v{PL+11}")
e(f"v_cmp_ne_u32 vcc, s{sTAG}, v{PL+15}")
e("s_or_b64 s[60:61], s[60:61], s[62:63]")
e("s_or_b64 s[96:97], s[96:97], vcc")
e("s_or_b64 s[60:61], s[60:61], s[96:97]")
e("s_cbranch_scc0 L_gotoff")
e(f"s_cmp_eq_u32 s{sBUD}, 0")
e("s_cbranch_scc1 L_gotoff")
e(f"s_sub_u32 s{sBUD}, s{sBUD}, 1")
poll_loads()
e("s_waitcnt vmcnt(0)")
e("s_branch L_chkoff")
e.label("L_gotoff")
if OPT["stamps"]: e("s_waitcnt lgkmcnt(0)")
stamp(6)
e(f"s_and_b32 s60, s{sB}, 1")
e("s_lshl_b32 s60, s60, 4")
e(f"v_cmp_gt_u32 vcc, {(NWG-192)*8}, v0")
e(f"s_bitcmp1_b32 s{sB}, 1")
e("s_cbranch_scc1 L_hi2")
for p in range(4): e(f"v_alignbit_b32 v{SEG+p}, v{PL+4*p+1}, v{PL+4*p}, s60")
e("s_branch L_segs")
e.label("L_hi2")
for p in range(4): e(f"v_alignbit_b32 v{SEG+p}, v{PL+4*p+2}, v{PL+4*p+1}, s60")
e.label("L_segs")
e(f"v_cndmask_b32 v{SEG+3}, 0, v{SEG+3}, vcc")
RA = 16; RB = 32; KA = 48; KB = 56; AD = 64; LM = 68; FL = 72
mk = lambda rnd, p, h: sMK + 2 * (rnd * 8 + p * 2 + h)
e.label("L_batch")
e("v_lshrrev_b32 v1, 3, v0")
e("v_and_b32 v2, 7, v0")
e("v_lshlrev_b32 v2, 4, v2")
e(f"v_mul_u32_u24 v1, {CH*8}, v1")
e("v_add_u32 v1, v1, v2")
for p in range(4):
    e(f"s_add_u32 s60, s{sR0}, {WS_REC + p*64*CH*8}")
    e(f"s_add_u32 s{sRB+2*p}, s{sWS}, s60")
    e(f"s_addc_u32 s{sRB+2*p+1}, s{sWS+1}, 0")
for p in range(4):
    e(f"v_sub_u32_sdwa v{LM+p}, v{SEG+p}, v{SEG+p} {SD} src0_sel:WORD_1 src1_sel:WORD_0")
    e(f"v_add_u32_sdwa v{AD+p}, v{SEG+p}, v1 {SD} src0_sel:WORD_0 src1_sel:DWORD")
    e(f"v_subrev_u32 v{LM+p}, s{sR0}, v{LM+p}")
e(f"v_max3_i32 v3, v{LM}, v{LM+1}, v{LM+2}")
e(f"v_max_i32 v3, v3, v{LM+3}")
for p in range(4):
    e(f"v_min_i32 v{LM+p}, s{sS}, v{LM+p}")
    e(f"v_sub_u32 v{LM+p}, v{LM+p}, v2")
e("s_movk_i32 s60, 128")
e("s_movk_i32 s61, 136")
for p in range(4):
    e(f"v_cmp_lt_i32 {s(mk(0,p,0),2)}, 0, v{LM+p}")
    e(f"v_cmp_lt_i32 {s(mk(1,p,0),2)}, s60, v{LM+p}")
e.label("L_fetch")
for p in range(4):
    e(f"v_mov_b32 v{RA+4*p}, s{sTAGR}")
    e(f"v_mov_b32 v{RA+4*p+2}, s{sTAGR}")
    e(f"s_mov_b64 exec, {s(mk(0,p,0),2)}")
    e(f"global_load_dwordx4 {v(RA+4*p,4)}, v{AD+p}, {s(sRB+2*p,2)} sc1")
    e("s_mov_b64 exec, -1")
for p in range(4):
    e(f"v_mov_b32 v{RB+4*p}, s{sTAGR}")
    e(f"v_mov_b32 v{RB+4*p+2}, s{sTAGR}")
    e(f"s_mov_b64 exec, {s(mk(1,p,0),2)}")
    e(f"s_cbranch_execz L_nlb{p}")
    e(f"global_load_dwordx4 {v(RB+4*p,4)}, v{AD+p}, {s(sRB+2*p,2)} offset:128 sc1")
    e.label(f"L_nlb{p}")
    e("s_mov_b64 exec, -1")
for p in range(4):
    e(f"v_cmp_lt_i32 {s(mk(0,p,1),2)}, 8, v{LM+p}")
    e(f"v_cmp_lt_i32 {s(mk(1,p,1),2)}, s61, v{LM+p}")
e("v_mov_b32 v13, 8")
e("s_waitcnt vmcnt(0)")
for i in range(16): e(f"v_xor_b32 v{RA+2*i}, s{sTAGR}, v{RA+2*i}")
e(f"v_or3_b32 v4, v{RA}, v{RA+2}, v{RA+4}")
e(f"v_or3_b32 v5, v{RA+6}, v{RA+8}, v{RA+10}")
for i in range(6, 16, 2): e(f"v_or3_b32 v{4+(i//2)%2}, v{4+(i//2)%2}, v{RA+2*i}, v{RA+2*i+2}")
e("v_or_b32 v4, v4, v5")
e("v_cmp_lt_u32 vcc, 0xff, v4")
e("s_and_b64 vcc, vcc, vcc")
e("s_cbranch_scc0 L_gotrec")
e(f"s_cmp_eq_u32 s{sBUD}, 0")
e("s_cbranch_scc1 L_gotrec")
e(f"s_sub_u32 s{sBUD}, s{sBUD}, 1")
e("s_branch L_fetch")
e.label("L_gotrec")
if OPT["stamps"]: e("s_waitcnt lgkmcnt(0)")
stamp(7)
for p in range(4):
    for h in range(2):
        e(f"s_mov_b64 exec, {s(mk(0,p,h),2)}")
        e(f"ds_add_rtn_u32 v{KA+2*p+h}, v{RA+4*p+2*h}, v13 offset:{CNT2}")
for p in range(4):
    e(f"s_mov_b64 exec, {s(mk(1,p,0),2)}")
    e(f"s_cbranch_execz L_nab{p}")
    e(f"ds_add_rtn_u32 v{KB+2*p}, v{RB+4*p}, v13 offset:{CNT2}")
    e(f"s_mov_b64 exec, {s(mk(1,p,1),2)}")
    e(f"ds_add_rtn_u32 v{KB+2*p+1}, v{RB+4*p+2}, v13 offset:{CNT2}")
    e.label(f"L_nab{p}")
e("s_mov_b64 exec, -1")
e(f"v_cmp_lt_i32 vcc, s{sS}, v3")
e(f"v_min_u32 v1, {NWG-1}, v0")
e(f"v_lshlrev_b32 v1, 7, v1")
e(f"v_add_u32 v{FL+3}, {WS_FLAG}, v1")
e("s_mov_b64 exec, vcc")
e(f"ds_write_b32 v{ZP}, v13 offset:{CNT2+252}")
e("s_mov_b64 exec, -1")
e(f"s_cmp_ge_u32 s{sW}, 4")
e("s_cbranch_scc1 L_nofl")
e(f"global_load_dwordx3 {v(FL,3)}, v{FL+3}, {s(sWS,2)} sc1")
e.label("L_nofl")
e(f"v_lshlrev_b32 v1, 2, v{L}")
e(f"v_cmp_gt_u32 vcc, {NB}, v{L}")
e("s_waitcnt lgkmcnt(0)")
e("s_barrier")
stamp(8)
e(f"ds_read_b32 v2, v1 offset:{CNT2}")
e("s_waitcnt lgkmcnt(0)")
e(f"v_max_u32 v4, {PADB}, v2")
e(f"v_readlane_b32 s{sMORE}, v2, 63")
e("v_cndmask_b32 v4, 0, v4, vcc")
e("v_mov_b32 v5, v4")
scan(5)
e(f"v_sub_u32 v6, v5, v4")
e(f"v_add_u32 v6, {SORT2}, v6")
e(f"v_readlane_b32 s3, v5, 63")
e(f"ds_write_b32 v1, v6 offset:{BASE2}")
e(f"s_cmp_gt_u32 s3, {CAPB}")
e("s_cbranch_scc1 L_redo")
LK = 80
for i in range(8): e(f"ds_read_b32 v{LK+i}, v{RA+2*i} offset:{BASE2}")
e(f"s_cmp_lg_u32 s{sW}, 0")
e("s_cbranch_scc1 L_nomark")
e(f"s_add_u32 s60, s3, {SORT2}")
e("v_lshl_add_u32 v7, v1, 1, s60")
e(f"v_mov_b32 v8, {(NB-1)*4}")
e("v_mov_b32 v9, 10000")
e("ds_write_b64 v7, v[8:9]")
e("v_cmp_lt_u32 vcc, v2, v4")
e("v_mov_b32 v8, v1")
e("s_and_b64 exec, vcc, vcc")
e("s_cbranch_scc0 L_nopad")
e.label("L_pad")
e("v_add_u32 v7, v6, v2")
e("v_add_u32 v2, 8, v2")
e("ds_write_b64 v7, v[8:9]")
e("v_cmp_lt_u32 vcc, v2, v4")
e("s_and_b64 exec, vcc, vcc")
e("s_cbranch_scc1 L_pad")
e.label("L_nopad")
e("s_mov_b64 exec, -1")
e("s_cmp_lg_u32 s2, 0")
e("s_cbranch_scc1 L_nomark")
e(f"v_mov_b32 v7, s{sTAG}")
e("s_mov_b64 exec, 1")
e(f"global_store_dword v{ZP}, v7, {s(sWS,2)}")
e("s_mov_b64 exec, -1")
e.label("L_nomark")
e("s_add_u32 s3, s3, 127")
e("s_lshr_b32 s3, s3, 7")
e("s_lshr_b32 s60, s3, 3")
e("s_and_b32 s61, s3, 7")
e(f"s_mul_i32 s62, s60, s{sW}")
e(f"s_min_u32 s63, s61, s{sW}")
e("s_add_u32 s62, s62, s63")
e(f"s_cmp_lt_u32 s{sW}, s61")
e(f"s_addc_u32 s{sCNT}, s60, 0")
e("s_lshl_b32 s62, s62, 7")
e(f"s_lshl_b32 s63, s{sCNT}, 7")
e("s_add_u32 s63, s63, s62")
e("v_cmp_ge_u32 vcc, s62, v5")
e("v_cmp_gt_u32 s[60:61], s63, v5")
e(f"s_add_u32 s62, s62, {SORT2}")
e(f"v_lshl_add_u32 v{aRec}, v{L}, 3, s62")
e("s_add_u32 s62, s62, 4")
e(f"v_add_u32 v{aIdx}, s62, v{vIdxL}")
e(f"s_bcnt1_i32_b64 s{sNFW}, vcc")
e(f"s_bcnt1_i32_b64 s{sNLW}, s[60:61]")
e(f"s_min_u32 s{sNLW}, s{sNLW}, {NB-1}")
e(f"s_lshl_b32 s{sNFW}, s{sNFW}, 2")
e(f"s_lshl_b32 s{sNLW}, s{sNLW}, 2")
e(f"s_mov_b32 s{sBASE}, s{sNFW}")
e(f"s_or_b32 s{sSLOW}, s{sR0}, s{sMORE}")
e(f"s_cselect_b32 s{sNFW}, -1, s{sNFW}")
e(f"s_cmp_eq_u32 s{sCNT}, 0")
e(f"s_cselect_b32 s{sNFW}, -1, s{sNFW}")
e(f"s_lshl_b32 s60, 1, s{sW}")
e(f"s_min_u32 s61, s{sNFW}, 252")
e("v_mov_b32 v7, s61")
e("v_mov_b32 v8, s60")
e("s_waitcnt lgkmcnt(0)")
e("s_mov_b64 exec, 1")
e(f"ds_or_b32 v7, v8 offset:{LNK}")
for p in range(4):
    for h in range(2):
        i = 2*p+h
        e(f"s_mov_b64 exec, {s(mk(0,p,h),2)}")
        e(f"v_add_u32 v{LK+i}, v{LK+i}, v{KA+i}")
        e(f"ds_write_b64 v{LK+i}, {v(RA+2*i,2)}")
for p in range(4):
    e(f"s_mov_b64 exec, {s(mk(1,p,0),2)}")
    e(f"s_cbranch_execz L_nsb{p}")
    e(f"ds_read_b32 v4, v{RB+4*p} offset:{BASE2}")
    e(f"ds_read_b32 v5, v{RB+4*p+2} offset:{BASE2}")
    e("s_waitcnt lgkmcnt(0)")
    e(f"v_add_u32 v4, v4, v{KB+2*p}")
    e(f"v_add_u32 v5, v5, v{KB+2*p+1}")
    e(f"ds_write_b64 v4, {v(RB+4*p,2)}")
    e(f"s_mov_b64 exec, {s(mk(1,p,1),2)}")
    e(f"ds_write_b64 v5, {v(RB+4*p+2,2)}")
    e.label(f"L_nsb{p}")
e("s_mov_b64 exec, -1")
e(f"s_lshl_b32 s60, s{sNG}, 6")
e("v_and_b32 v2, 60, v1")
e("v_add_u32 v2, s60, v2")
e(f"s_cmp_ge_u32 s{sW}, 6")
e("s_cbranch_scc0 L_lnk")
e(f"v_mov_b32 v2, v{H1+2}")
e.label("L_lnk")
e(f"s_cmp_ge_u32 s{sW}, 4")
e("s_cbranch_scc1 L_gotfl")
e.label("L_chkfl")
e("s_waitcnt vmcnt(0)")
e(f"v_cmp_ne_u32 s[60:61], s{sTAG}, v{FL}")
e(f"v_cmp_ne_u32 s[62:63], s{sTAG}, v{FL+1}")
e(f"v_cmp_ne_u32 vcc, s{sTAG}, v{FL+2}")
e("s_or_b64 s[60:61], s[60:61], s[62:63]")
e("s_or_b64 s[60:61], s[60:61], vcc")
e("s_cbranch_scc0 L_gotfl")
e(f"s_cmp_eq_u32 s{sBUD}, 0")
e("s_cbranch_scc1 L_gotfl")
e(f"s_sub_u32 s{sBUD}, s{sBUD}, 1")
e(f"global_load_dwordx3 {v(FL,3)}, v{FL+3}, {s(sWS,2)} sc1")
e("s_branch L_chkfl")
e.label("L_gotfl")
e("s_waitcnt lgkmcnt(0)")
e("s_barrier")
stamp(9)
def gather(b, pair):
    return [f"buffer_load_dwordx4 {v(G[b],4)}, {v(pair,2)}, {s(srdBP,4)}, 0 idxen offen",
            f"buffer_load_dwordx4 {v(G[b]+4,4)}, {v(pair,2)}, {s(srdBP,4)}, 0 idxen offen offset:64"]
def build1():
    return [f"v_mul_u32_u24_sdwa v{BT}, 6, v{REC+1} {SD} src0_sel:DWORD src1_sel:WORD_0",
            f"ds_read2st64_b32 {v(PDV,2)}, v{REC} offset0:{PD//256} offset1:{PD//256+1}",
            f"ds_read_u16_d16_hi v{PS}, v{BT} offset:{POS}",
            f"ds_read_u16_d16_hi v{PS+1}, v{BT} offset:{POS+2}",
            f"ds_read_u16_d16_hi v{PS+2}, v{BT} offset:{POS+4}",
            f"ds_read_b32 v{PDV+2}, v{REC} offset:{PD+512}",
            f"v_readlane_b32 s{sNF}, v{REC}, 0",
            f"v_readlane_b32 s{sNL}, v{REC}, 63",
            f"v_cmp_ne_u32 vcc, 60000, v{BT}",
            f"v_add_u32 v{BT+1}, v{REC}, v{REC}",
            f"s_and_b32 s60, s{sNF}, -8",
            f"s_mul_i32 s{sNEG}, s60, -4",
            f"s_lshr_b32 s60, s60, 1",
            f"s_mov_b64 {s(sVAL,2)}, vcc",
            f"v_lshl_add_u32 v{BT+2}, v{REC}, 2, s{sNEG}",
            f"v_add_u32 v{aAT}, s60, v{aATb}",
            f"v_lshlrev_b64 {v(REC+2,2)}, v{BT+2}, {s(sOHC,2)}"]
def build2():
    return [f"v_sub_f32 v{PDV}, v{PDV}, v{PS}",
            f"v_sub_f32 v{PDV+1}, v{PDV+1}, v{PS+1}",
            f"v_sub_f32 v{PDV+2}, v{PDV+2}, v{PS+2}",
            f"v_cvt_pk_bf16_f32 v{R2V}, v{PDV}, v{PDV+1}",
            f"v_cvt_pk_bf16_f32 v{R2V+1}, v{PDV+2}, 1.0",
            f"v_dot2_f32_bf16 v{BT}, v{R2V}, v{R2V}, 0",
            f"v_lshlrev_b32 v{BT+2}, 16, v{R2V+1}",
            None, None,
            f"v_fmac_f32 v{BT}, v{BT+2}, v{BT+2}",
            f"v_cvt_pk_bf16_f32 v{REC}, v{BT}, v{BT}"]
def build3():
    return [f"ds_write_b64 v{aR2}, {v(ZP,2)}",
            f"v_bitop3_b32 v{aR2}, v{BT+1}, 56, v{aR2b} bitop3:0x6a",
            f"ds_write_b128 v{aR1w}, {v(REC,4)}",
            f"s_mov_b64 exec, {s(sVAL,2)}\nds_write_b64 v{aR2}, {v(R2V,2)}\ns_mov_b64 exec, -1",
            f"ds_read2_b32 {v(WX+2,2)}, v{aAT} offset1:1"]
def opreads(n):
    return [f"ds_read_b128 {v(R1OP,4)}, v{aR1r} offset:{n*256}",
            f"ds_read_b64_tr_b16 {v(S[n],2)}, v{aS0} offset:{n*1024}",
            f"ds_read_b64_tr_b16 {v(S[n]+2,2)}, v{aS1} offset:{n*1024}"]
def stage1(n):
    t = T[n & 1]
    return [f"v_mfma_f32_32x32x16_bf16 {v(t,16)}, {v(R1OP,4)}, {v(WX,4)}, 0",
            f"v_mfma_f32_32x32x16_bf16 {v(t,16)}, {v(G[n],4)}, {v(I0,4)}, {v(t,16)}",
            f"v_mfma_f32_32x32x16_bf16 {v(t,16)}, {v(G[n]+4,4)}, {v(I1,4)}, {v(t,16)}"]
def stage2(n):
    return [f"v_mfma_f32_32x32x16_bf16 {v(AC[c],16)}, {v(M[c],4)}, {v(S[n],4)}, {v(AC[c],16)}" for c in range(2)]
def mulcvt(q):
    L_ = []
    for a in range(4):
        for r in range(4): L_.append(f"v_mul_f32 v{E[q]+4*a+r}, v{E[q]+4*a+r}, v{T[q]+4*a+r}")
        for c in range(2): L_.append(f"v_cvt_pk_bf16_f32 v{M[c]+a}, v{E[q]+4*a+c}, v{E[q]+4*a+2+c}")
    return L_
def flushchk(lbl):
    e(f"s_min_u32 s60, s{sNL}, s{sNLW}")
    e(f"s_sub_u32 s60, s60, s{sBASE}")
    e("s_cmp_ge_u32 s60, 32")
    e(f"s_cbranch_scc1 L_flush_{lbl}")
    e.label(f"L_flret_{lbl}")
def rowaddr():
    return [f"v_subrev_u32 v1, s{sBASE}, v{L}",
            "v_and_b32 v1, 28, v1",
            f"v_add_u32 v1, s{sBASE}, v1",
            f"v_cmp_eq_u32 vcc, s{sNFW}, v1",
            f"v_cmp_lt_u32 s[62:63], s{sNLW}, v1",
            f"s_lshl_b32 s61, s{sW}, 2",
            f"s_add_u32 s61, s61, {NB*4}",
            "v_mov_b32 v2, s61",
            "v_cndmask_b32 v1, v1, v2, vcc",
            f"v_mov_b32 v2, {OOB//64}",
            "v_cndmask_b32 v1, v1, v2, s[62:63]",
            f"v_mul_u32_u24 v1, {ACCS//4}, v1",
            f"v_add_u32 v1, {ACC}, v1",
            f"v_lshrrev_b32 v2, 5, v{L}",
            f"v_lshl_add_u32 v{vRowM}, v2, 4, v1",
            f"v_lshl_add_u32 v1, v2, 2, v1",
            f"v_and_b32 v2, 3, v{L}",
            f"v_lshl_add_u32 v{vRowP}, v2, 3, v1"]
def mmask():
    e("s_mov_b32 exec_lo, 0x88888888")
    e("s_mov_b32 exec_hi, 0x88888888")
def flush_slow():
    e("s_nop 7")
    e("v_mov_b32 v2, 0")
    for i in range(8):
        e(f"ds_read_b128 v[4:7], v{vWxa} offset:{WXT+16*i}")
        e("s_waitcnt lgkmcnt(0)")
        for r in range(4): e(f"v_fmac_f32 v2, v{AC[0]+4*i+r}, v{4+r}")
    e(f"ds_add_f32 v{vRowP}, v2 offset:256")
    mmask()
    for i in range(32): e(f"ds_add_f32 v{vRowM}, v{AC[0]+i} offset:{(i//4)*32+(i%4)*4}")
    e("s_mov_b64 exec, -1")

def step(sidx, first=False):
    q = sidx & 1; n1 = (sidx + 1) & 3
    side = gather(sidx, IDX) + [f"ds_read_u16 v{IDX}, v{aIdx} offset:{(sidx+5)*128}"]
    if sidx == 3:
        side += build3()
    side += opreads(n1)
    if sidx == 0: side += [f"ds_read_b64 {v(REC,2)}, v{aRec} offset:512"]
    if sidx == 1: side += build1()
    if sidx == 2: side += build2()
    if sidx == 3: side += [f"v_add_u32 v{aIdx}, 512, v{aIdx}", f"v_add_u32 v{aRec}, 512, v{aRec}"]
    if sidx == 1: flushchk("mid")
    if sidx == 0 and OPT["prio"] and not first:
        e(f"s_cmp_gt_u32 s{sCNT}, 8")
        e("s_cbranch_scc1 L_pr")
        e("s_setprio 1")
        e(f"s_cmp_gt_u32 s{sCNT}, 4")
        e("s_cbranch_scc1 L_pr")
        e("s_setprio 0")
        e.label("L_pr")
    exps = [f"v_exp_f32 v{E[q]+i}, v{T[q]+i}" for i in range(16)]
    k = 0
    per = -(-len(side) // 15)
    for i, x in enumerate(exps):
        e(x)
        if i < 15:
            for _ in range(per):
                if k < len(side):
                    if side[k] is None:
                        k += 1; break
                    e(side[k]); k += 1
    rest = side[k:]
    mc = [] if first else mulcvt(1 - q)
    if first:
        e("s_nop 1")
    else:
        e(mc[0]); e(mc[1]); mc = mc[2:]
    e(f"v_mfma_f32_32x32x8_bf16 {v(E[q],16)}, {v(ONE,2)}, {v(ONE,2)}, {v(E[q],16)}")
    k = 0
    for x in mc:
        e(x)
        if k < len(rest):
            if rest[k] is not None: e(rest[k])
            k += 1
    assert k == len(rest)
    if first: e("s_nop 9")
    e("s_waitcnt vmcnt(6) lgkmcnt(0)")
    mf = stage1(n1) + ([] if first else stage2((sidx - 1) & 3))
    rc = [f"v_rcp_f32 v{E[q]+i}, v{E[q]+i}" for i in range(16)]
    for i, x in enumerate(rc):
        if i % 3 == 0 and i // 3 < len(mf): e(mf[i // 3])
        e(x)
    e(f"s_sub_u32 s{sCNT}, s{sCNT}, 1")
    e(f"s_cbranch_scc1 L_drain{sidx}")

PI = E[0]
e(f"ds_read_b64 {v(REC,2)}, v{aRec}")
for n in range(4): e(f"ds_read_u16 v{PI+2*n}, v{aIdx} offset:{n*128}")
e(f"ds_read_u16 v{IDX}, v{aIdx} offset:{4*128}")
e(f"ds_read_b32 v{vMask}, v2 offset:{LNK}")
e(f"ds_write_b32 v1, v{ZP} offset:{CNT2}")
e(f"s_sub_u32 s{sCNT}, s{sCNT}, 1")
e("s_cbranch_scc1 L_b6")
for n in range(4): e(f"v_mov_b32 v{PI+2*n+1}, v{IDX+1}")
if OPT["prio"]: e("s_setprio 2")
e("s_waitcnt lgkmcnt(3)")
b1 = build1()
for x in b1[:6]: e(x)
for n in range(4):
    for x in gather(n, PI + 2*n): e(x)
for x in b1[6:]: e(x)
for i in range(16): e(f"v_mov_b32 v{AC[0]+i}, 0")
e("s_waitcnt lgkmcnt(0)")
zi = 16
for x in build2():
    if x is None:
        e(f"v_mov_b32 v{AC[0]+zi}, 0"); zi += 1
    else: e(x)
for x in build3(): e(x)
for x in opreads(0): e(x)
for i in range(zi, 32): e(f"v_mov_b32 v{AC[0]+i}, 0")
e("s_waitcnt vmcnt(6) lgkmcnt(0)")
for x in stage1(0): e(x)
for x in rowaddr(): e(x)
stamp(10)
step(0, first=True)
e("s_branch L_s1")
e.label("L_s0")
step(0)
e.label("L_s1")
step(1)
step(2)
step(3)
e("s_branch L_s0")
for sidx in range(4):
    q = sidx & 1
    e.label(f"L_drain{sidx}")
    if sidx == 0: flushchk("dr")
    for i in range(4): e(f"ds_read_b128 {v(E[1-q]+4*i,4)}, v{vWxa} offset:{WXT+16*i}")
    for i in range(4): e(f"ds_read_b128 {v(T[1-q]+4*i,4)}, v{vWxa} offset:{WXT+64+16*i}")
    for x in mulcvt(q): e(x)
    e(f"s_cmp_lg_u32 s{sSLOW}, 0")
    e("s_nop 0")
    for x in stage2(sidx): e(x)
    e("s_cbranch_scc1 L_slow_final")
    if sidx < 2: e(f"s_branch L_final_flush{q}")
    else:
        e.label(f"L_final_flush{q}")
        stamp(11)
        e("s_waitcnt lgkmcnt(0)")
        e("s_nop 6")
        mmask()
        for i in range(4): e(f"ds_write_b128 v{vRowM}, {v(AC[0]+4*i,4)} offset:{i*32}")
        e("s_mov_b64 exec, -1")
        e(f"v_mul_f32 v2, v{AC[0]}, v{E[1-q]}")
        for i in range(1, 16): e(f"v_fmac_f32 v2, v{AC[0]+i}, v{E[1-q]+i}")
        mmask()
        for i in range(4): e(f"ds_write_b128 v{vRowM}, {v(AC[1]+4*i,4)} offset:{128+i*32}")
        e("s_mov_b64 exec, -1")
        for i in range(16): e(f"v_fmac_f32 v2, v{AC[1]+i}, v{T[1-q]+i}")
        e(f"ds_write_b32 v{vRowP}, v2 offset:256")
        if sidx == 2: e("s_branch L_b6")
e.label("L_b6")
e("s_setprio 0")
def bfaddr(dst):
    e(f"v_ffbl_b32 v5, v{vMask}")
    e(f"v_add_u32 v6, -1, v{vMask}")
    e(f"v_min_u32 v5, {OOB//256}, v5")
    e(f"v_and_b32 v{vMask}, v6, v{vMask}")
    e(f"v_mul_u32_u24 v5, {ACCS}, v5")
    e(f"v_add_u32 v{dst}, {BF}, v5")
e(f"v_and_b32 v1, 15, v{L}")
e(f"v_lshrrev_b32 v2, 4, v{L}")
e(f"s_lshl_b32 s60, s{sNG}, 4")
e("v_add_u32 v1, s60, v1")
e(f"v_mul_u32_u24 v3, {ACCS}, v1")
e("v_lshl_add_u32 v3, v2, 5, v3")
e(f"v_add_u32 v3, {ACC}, v3")
e("s_waitcnt lgkmcnt(0)")
bfaddr(4)
e("s_barrier")
stamp(12)
e(f"s_cmp_lg_u32 s{sMORE}, 0")
e("s_cbranch_scc1 L_more")
e(f"s_cmp_ge_u32 s{sW}, 6")
e("s_cbranch_scc1 L_finpos")
MR = 16; MB = 32; Y = 40; YE = 48; HU = 56; MX = 64
for c in range(2):
    for hf in range(2):
        e(f"ds_read_b128 {v(MR+8*c+4*hf,4)}, v3 offset:{c*128+hf*16}")
e.label("L_finbf")
e("v_lshl_add_u32 v4, v2, 5, v4")
for c in range(2):
    for hf in range(2):
        e(f"ds_read_b128 {v(MX+8*c+4*hf,4)}, v4 offset:{c*128+hf*16}")
e(f"v_cmp_ne_u32 vcc, 0, v{vMask}")
for d in range(4):
    e(f"v_lshlrev_b32 v{HU+2*d}, 16, v{HRES+d}")
    e(f"v_and_b32 v{HU+2*d+1}, 0xffff0000, v{HRES+d}")
for i in range(4):
    e(f"s_waitcnt lgkmcnt({3-i})")
    for d in range(4): e(f"v_add_f32 v{MR+4*i+d}, v{MR+4*i+d}, v{MX+4*i+d}")
e("s_cbranch_vccnz L_finbf_more")
for c in range(2):
    for d in range(4): e(f"v_cvt_pk_bf16_f32 v{MB+4*c+d}, v{MR+8*c+2*d}, v{MR+8*c+2*d+1}")
e(f"s_mov_b32 s60, {NLN2}")
e(f"s_mov_b32 s61, {NL2E}")
for t in range(2):
    e(f"v_mfma_f32_16x16x32_bf16 {v(Y+4*t,4)}, {v(WH2+8*t,4)}, {v(MB,4)}, 0")
    e(f"v_mfma_f32_16x16x32_bf16 {v(Y+4*t,4)}, {v(WH2+8*t+4,4)}, {v(MB+4,4)}, {v(Y+4*t,4)}")
e(f"v_cmp_gt_u32 vcc, {NB}, v1")
e(f"v_add_u32 v1, s{sN0}, v1")
e(f"s_lshl_b32 s62, s{sCHF}, 6")
e("v_lshl_add_u32 v2, v2, 4, s62")
e("v_lshl_add_u32 v1, v1, 7, v2")
e("s_nop 0")
for i in range(8): e(f"v_fma_f32 v{Y+i}, v{Y+i}, s60, v{H1+i}")
for i in range(8): e(f"v_mul_f32 v{YE+i}, s61, v{Y+i}")
for i in range(8): e(f"v_exp_f32 v{YE+i}, v{YE+i}")
for i in range(8): e(f"v_add_f32 v{YE+i}, 1.0, v{YE+i}")
for i in range(8): e(f"v_rcp_f32 v{YE+i}, v{YE+i}")
for i in range(8): e(f"v_fmac_f32 v{HU+i}, v{Y+i}, v{YE+i}")
for d in range(4): e(f"v_cvt_pk_bf16_f32 v{Y+d}, v{HU+2*d}, v{HU+2*d+1}")
e("s_mov_b64 exec, vcc")
e(f"global_store_dwordx4 v1, {v(Y,4)}, {s(sOUT,2)}")
stamp(13, last=True)
e("s_endpgm")
e.label("L_finpos")
e(f"ds_read_b64 v[16:17], v{H1}")
e.label("L_posbf")
e(f"v_add_u32 v4, v4, v{H1+1}")
e("ds_read_b64 v[18:19], v4")
e(f"v_cmp_ne_u32 vcc, 0, v{vMask}")
e("s_waitcnt lgkmcnt(0)")
e("v_add_f32 v16, v16, v18")
e("v_add_f32 v17, v17, v19")
e("s_cbranch_vccnz L_posbf_more")
e("v_and_b32 v1, 127, v0")
e("v_cmp_gt_u32 vcc, 120, v1")
e(f"s_mul_i32 s60, s{sB}, 240")
e("s_add_u32 s60, s60, 1280000")
e("v_lshl_add_u32 v1, v1, 1, s60")
e("v_add_f32 v16, v16, v17")
e(f"v_add_f32 v{vPosOwn}, v{vPosOwn}, v16")
e(f"v_cvt_pk_bf16_f32 v2, v{vPosOwn}, v{vPosOwn}")
e("s_mov_b64 exec, vcc")
e(f"global_store_short v1, v2, {s(sOUT,2)}")
stamp(13, last=True)
e("s_endpgm")
for lbl in ("mid", "dr"):
    e.label(f"L_flush_{lbl}")
    flush_slow()
    e("s_waitcnt lgkmcnt(0)")
    for i in range(32): e(f"v_mov_b32 v{AC[0]+i}, 0")
    e(f"s_mov_b32 s{sBASE}, s{sNF}")
    e(f"s_mov_b32 s{sSLOW}, 1")
    for x in rowaddr(): e(x)
    e(f"s_branch L_flret_{lbl}")
e.label("L_slow_final")
flush_slow()
e("s_branch L_b6")
e.label("L_finbf_more")
bfaddr(4)
e("s_branch L_finbf")
e.label("L_posbf_more")
bfaddr(4)
e("s_branch L_posbf")
e.label("L_more")
e("s_waitcnt vmcnt(0)")
e(f"s_add_u32 s{sR0}, s{sR0}, s{sS}")
e(f"s_mov_b32 s{sS}, 256")
e("s_branch L_batch")
e.label("L_redo")
e(f"s_cmp_eq_u32 s{sS}, {SFALL}")
e("s_cbranch_scc1 L_end")
e("s_waitcnt vmcnt(0) lgkmcnt(0)")
e("s_barrier")
e(f"ds_write_b32 v1, v{ZP} offset:{CNT2}")
e(f"s_mov_b32 s{sS}, {SFALL}")
e("s_waitcnt lgkmcnt(0)")
e("s_barrier")
e("s_branch L_batch")
e.label("L_end")
e("s_endpgm")

probs = check_cfg(e.lines)
for p in probs: print("HAZARD", p, file=sys.stderr)

ref = open("cdna_kernels/" + KN + ".s.ref").read().split("\n")
hdr = []
for l in ref:
    if l.startswith("; Override launch"): break
    hdr.append(l)
out = "\n".join(hdr) + f"""
; One persistent launch: 250 workgroups (one per CU) bin the edges by destination bucket, hand the bins
; over through d_ws (tagged with a per-launch epoch), then each workgroup updates its 40 nodes.
; @launch grid=({NWG},1,1) block=(512,1,1) lds={LDS_SIZE}
.amdgcn_target "amdgcn-amd-amdhsa--gfx950"
.text
.globl {KN}_kernel
.p2align 8
.type {KN}_kernel,@function
{KN}_kernel:
{e.text()}.section .rodata,"a"
.p2align 6
.amdhsa_kernel {KN}_kernel
  .amdhsa_next_free_vgpr 256
  .amdhsa_next_free_sgpr 102
  .amdhsa_accum_offset 256
  .amdhsa_group_segment_fixed_size 0
  .amdhsa_kernarg_size 88
  .amdhsa_user_sgpr_count 2
  .amdhsa_user_sgpr_kernarg_segment_ptr 1
  .amdhsa_system_sgpr_workgroup_id_x 1
  .amdhsa_float_denorm_mode_32 3
.end_amdhsa_kernel
"""
open(sys.argv[1], "w").write(out)
print("wrote", sys.argv[1], len(e.lines), "lines;", len(probs), "hazards", file=sys.stderr)
```

```python
import sys, struct
from asmlib import Emit, v, s, check_cfg

KN = "standalone__cheap_equivariant_egnn__graph"
OPT = dict(stamps=False, prio=True, posat="poll", touch=False, x="", ackwait=True, place="burst", lut=0, pr=(5,2,0), pk=True, bpf=True)
for a in sys.argv[2:]:
    k, _, val = a.partition("=")
    try: OPT[k] = eval(val) if val else True
    except Exception: OPT[k] = val

def fbits(x): return struct.unpack("<I", struct.pack("<f", x))[0]
LOG2E = 1.4426950408889634; LN2 = 0.6931471805599453
NL2E = hex(fbits(-LOG2E)); NLN2 = hex(fbits(-LN2))

NWG = 250; CH = 2560; NB = 40
CNT1 = 0x0; OFF1 = 0x400; CNT2 = 0x800; LNK = 0x900; BASE2 = 0xA00; PD = 0xB00; WXT = 0xE00
POS = 0xF00; SORT2 = POS + 61440; CAPB = 3072 * 8
R1 = SORT2 + CAPB + 512; R2 = R1 + 8192; ACC = R2 + 32768; ACCS = 304
BF = ACC + NB * ACCS; AT = BF + 8 * ACCS; ATS = 104; HB = AT + 64 * ATS; WL = HB + 6144; WXL = WL + 256; LDS_END = WXL + 128
STG = R2; WE = SORT2; WH = SORT2 + 16384
OOB = 0x100000
LDS_SIZE = 163840
assert LDS_END <= LDS_SIZE and WH + 16384 <= R2 and R2 % 64 == 0 and WE % 128 == 0 and HB % 128 == 0
PADB = 32 * 8; SFALL = 48
WS_FLAG = 0x1000; WS_OFF = 0x10000; WS_BP = 0x100000; WS_REC = 0x300000; WS_STAMP = 0x1000000
TAGC = 0x9E3779B1
sH, sPOS, sE, sSRC, sDST, sWE, sWX, sWH, sOUT, sDBG, sWS = 4, 6, 8, 10, 12, 14, 16, 18, 20, 22, 24
sW, sB = 26, 27
srdBP, srdPOS, srdH = 28, 32, 36
sTAG, sTAGR, sBUD, sR0, sS, sN0, sNG, sCHF = 40, 41, 42, 43, 44, 45, 46, 47
sOHC, sNFW, sNLW, sCNT, sBASE, sNF, sNL, sNEG, sMORE, sVAL = 48, 50, 51, 52, 53, 54, 55, 56, 57, 58
sONCE = 17
sSLOW = 16
sMK = 64
sRB = 8
T = [16, 32]; E = [48, 64]; AC = [80, 96]; M = [112, 116]; G = [120, 128, 136, 144]; S = [152, 156, 160, 164]
R1OP = 168; WX = 172; I0 = 176; I1 = 180; ONE = 184; IDX = 186
aIdx, aRec, aR1r, aS0, aS1, aR1w, aR2b, aR2, aATb, aAT = 188, 189, 190, 191, 192, 193, 194, 195, 196, 197
vRowM, vRowP = 198, 199
REC = 200; R2V = 204; PS = 206; PDV = 210; BT = 213; ZP = 216; vIdxL = 218; vPosOwn = 219
SEG = 220; vMask = 224; vWxa = 225; H1 = 226; HRES = 234; WH2 = 238; vLane = 254; vAItem = 255
L = vLane

e = Emit()
def stamp(i, last=False):
    if OPT.get("diag") is not None:
        if i == 0:
            e("s_memrealtime s[98:99]")
            e("s_waitcnt lgkmcnt(0)")
            e("s_mov_b32 s100, s98")
            e("s_mov_b32 s101, s98")
        elif i == OPT["diag"]:
            e("s_memrealtime s[98:99]")
            e("s_waitcnt lgkmcnt(0)")
            e("s_mov_b32 s101, s98")
        if last:
            stamp.n = getattr(stamp, "n", 0) + 1
            e("s_sub_u32 s101, s101, s100")
            e("s_lshl_b32 s101, s101, 2")
            e("s_add_u32 s101, s101, 3000")
            e.label(f"L_spin{stamp.n}")
            e("s_memrealtime s[98:99]")
            e("s_waitcnt lgkmcnt(0)")
            e("s_sub_u32 s98, s98, s100")
            e("s_cmp_lt_u32 s98, s101")
            e(f"s_cbranch_scc1 L_spin{stamp.n}")
        return
    if not OPT["stamps"]: return
    if i > 0:
        e("s_mov_b32 m0, s101")
        e("v_writelane_b32 v15, s98, m0")
        e("v_writelane_b32 v14, s22, m0")
    e("s_memrealtime s[98:99]")
    if i > 0: e("s_memtime s[22:23]")
    e(f"s_mov_b32 s101, {i}")
    if i in (6, 7, 9): e(f"v_writelane_b32 v15, s{sBUD}, {16+i}")
    if i == 10: e(f"v_writelane_b32 v15, s{sCNT}, 26")
    if last:
        e("s_mov_b64 exec, -1")
        e("s_waitcnt lgkmcnt(0)")
        e(f"v_writelane_b32 v15, s98, {i}")
        e(f"v_writelane_b32 v14, s22, {i}")
        e("s_lshl_b32 s100, s2, 3")
        e(f"s_add_u32 s100, s100, s{sW}")
        e("s_lshl_b32 s100, s100, 7")
        e(f"s_add_u32 s100, s100, {WS_STAMP}")
        e(f"v_lshl_add_u32 v13, v{L}, 2, s100")
        e("s_mov_b32 exec_hi, 0")
        e(f"global_store_dword v13, v15, {s(sWS,2)}")
        e("v_add_u32 v13, 0x100000, v13")
        e(f"global_store_dword v13, v14, {s(sWS,2)}")

def scan(r, fill=()):
    fill = list(fill)
    for m in ("row_shr:1 row_mask:0xf bank_mask:0xf bound_ctrl:1", "row_shr:2 row_mask:0xf bank_mask:0xf bound_ctrl:1",
              "row_shr:4 row_mask:0xf bank_mask:0xf bound_ctrl:1", "row_shr:8 row_mask:0xf bank_mask:0xf bound_ctrl:1",
              "row_bcast:15 row_mask:0xa bank_mask:0xf", "row_bcast:31 row_mask:0xc bank_mask:0xf"):
        if len(fill) >= 2:
            e(fill.pop(0)); e(fill.pop(0))
        else: e("s_nop 1")
        e(f"v_add_u32_dpp v{r}, v{r}, v{r} {m}")
    assert not fill

SD = "dst_sel:DWORD dst_unused:UNUSED_PAD"

def posdma():
    e(f"s_lshl_b32 s60, s{sW}, 10")
    for i in range(8):
        if i == 7:
            e(f"s_cmp_ge_u32 s{sW}, 4")
            e("s_cbranch_scc1 L_nop8")
        e(f"s_add_u32 m0, s60, {POS+i*8192}")
        e(f"s_mov_b32 s61, {i*8192}")
        e(f"buffer_load_dwordx4 v12, {s(srdPOS,4)}, s61 offen lds")
    e.label("L_nop8")

DSTR = 16; SRCR = 24; ER = 32; XW = 36; B4 = 48; RK = 56
WA0 = 64; WA1 = 65; WA2 = 66; HA = 67; CA0 = 68; PBA = 69; TCH = 70; HF = 72
WT = 80; DT = 112; W1T = 128; aWH = 144; aWT = 148
stamp(0)
e.label("L_entry")
e(f"s_cmp_ge_u32 s2, {NWG}")
e("s_cbranch_scc1 L_end")
e("s_load_dwordx16 s[4:19], s[0:1], 0")
e("s_load_dwordx4 s[20:23], s[0:1], 64")
e("s_load_dwordx2 s[24:25], s[0:1], 80")
e(f"s_mul_i32 s3, s2, {CH*4}")
e("v_lshl_add_u32 v1, v0, 4, s3")
e(f"s_add_u32 s60, s3, 8192")
e("v_lshl_add_u32 v2, v0, 2, s60")
e("s_lshr_b32 s3, s3, 1")
e("v_lshl_add_u32 v3, v0, 3, s3")
e("s_add_u32 s60, s3, 4096")
e("v_lshl_add_u32 v4, v0, 1, s60")
e("v_lshrrev_b32 v5, 6, v0")
e(f"v_and_b32 v{L}, 63, v0")
e(f"v_readfirstlane_b32 s{sW}, v5")
e(f"v_mov_b32 v{ZP}, 0")
e(f"v_mov_b32 v{ZP+1}, 0")
e("v_lshlrev_b32 v12, 4, v0")
e("v_lshlrev_b32 v5, 3, v0")
e(f"ds_write_b64 v5, {v(ZP,2)}")
e("s_and_b32 s60, s2, 7")
e(f"s_mul_i32 s{sB}, s60, 31")
e("s_min_u32 s60, s60, 2")
e(f"s_add_u32 s{sB}, s{sB}, s60")
e("s_lshr_b32 s96, s2, 3")
e(f"s_add_u32 s{sB}, s{sB}, s96")
e(f"s_mul_i32 s{sN0}, s{sB}, {NB}")
e(f"v_and_b32 v5, 16, v{L}")
e("v_and_b32 v6, 64, v0")
e("v_lshl_or_b32 v5, v5, 1, v6")
e(f"v_xor_b32 v{WA0}, v5, v12")
e(f"v_add_u32 v{WA1}, 8192, v{WA0}")
e(f"v_lshlrev_b32 v5, 1, v{L}")
e(f"s_lshl_b32 s60, s{sN0}, 7")
e("v_and_b32 v5, 0x70, v5")
e(f"v_xad_u32 v{HA}, v5, v12, s60")
e(f"s_lshl_b32 s60, s{sW}, 10")
e(f"s_add_u32 m0, s60, {WE+8192}")
e("s_waitcnt lgkmcnt(0)")
e(f"global_load_dwordx4 {v(DSTR,4)}, v1, {s(sDST,2)}")
e(f"global_load_dword v{DSTR+4}, v2, {s(sDST,2)}")
e(f"s_mov_b32 s{srdH}, s{sH}")
e(f"s_and_b32 s{srdH+1}, s{sH+1}, 0xffff")
e(f"s_mov_b32 s{srdH+2}, 1280000")
e(f"s_mov_b32 s{srdH+3}, 0x20000")
e(f"s_mov_b32 s{srdPOS}, s{sPOS}")
e(f"s_and_b32 s{srdPOS+1}, s{sPOS+1}, 0xffff")
e(f"s_mov_b32 s{srdPOS+2}, 60000")
e(f"s_mov_b32 s{srdPOS+3}, 0x20000")
e(f"s_cmp_ge_u32 s{sW}, 6")
e(f"global_load_lds_dwordx4 v{WA1}, {s(sWE,2)}")
e("s_cbranch_scc1 L_d67")
e(f"s_add_u32 m0, s60, {HB}")
e("s_nop 0")
e(f"buffer_load_dwordx4 v{HA}, {s(srdH,4)}, 0 offen lds")
e.label("L_ddone")
e("s_barrier")
e(f"global_load_dwordx4 {v(SRCR,4)}, v1, {s(sSRC,2)}")
e(f"global_load_dword v{SRCR+4}, v2, {s(sSRC,2)}")
e(f"global_load_dwordx2 {v(ER,2)}, v3, {s(sE,2)}")
e(f"global_load_short_d16_hi v{ER+2}, v4, {s(sE,2)}")
e(f"global_load_dword v71, v{ZP}, {s(sWS,2)}")
stamp(1)
if OPT["touch"]:
    e(f"s_cmp_eq_u32 s{sW}, 3")
    e("s_cbranch_scc0 L_t45")
    e("s_lshl_b32 s61, s96, 11")
    e(f"v_lshl_add_u32 v5, v{L}, 7, s61")
    e("s_mov_b64 exec, 0xffff")
    e(f"buffer_load_dword v{TCH}, v5, {s(srdPOS,4)}, 0 offen")
    e("s_mov_b64 exec, -1")
    e.label("L_t45")
    e(f"s_and_b32 s61, s{sW}, 6")
    e("s_cmp_eq_u32 s61, 4")
    e("s_cbranch_scc0 L_tdone")
    e("s_getpc_b64 s[62:63]")
    e.label("L_pc")
    e("v_and_b32 v5, 127, v0")
    e("v_lshlrev_b32 v5, 7, v5")
    e("v_min_u32 v5, L_end-L_pc, v5")
    e(f"global_load_dword v{TCH}, v5, s[62:63]")
    e.label("L_tdone")
e(f"s_mul_i32 s{sCHF}, s{sW}, 86")
e(f"s_lshr_b32 s{sCHF}, s{sCHF}, 8")
e(f"s_mul_i32 s61, s{sCHF}, 3")
e(f"s_sub_u32 s{sNG}, s{sW}, s61")
e(f"s_and_b32 s61, s{sW}, 3")
e("s_lshl_b32 s61, s61, 1")
e(f"s_lshr_b32 s62, s{sW}, 2")
e("s_add_u32 s61, s61, s62")
e("s_lshl_b32 s61, s61, 8")
e("s_add_u32 s61, s61, 8192")
e(f"v_and_b32 v5, 0x70, v{WA0}")
e(f"v_bfe_u32 v6, v{L}, 3, 2")
e("v_lshl_add_u32 v5, v6, 11, v5")
e(f"v_lshrrev_b32 v6, 5, v{L}")
e("v_lshl_add_u32 v5, v6, 7, v5")
e(f"v_add_u32 v{WA2}, s61, v5")
e(f"v_and_b32 v1, 15, v{L}")
e(f"v_lshrrev_b32 v3, 4, v{L}")
e(f"s_lshl_b32 s61, s{sNG}, 11")
e(f"s_add_u32 s61, s61, {HB}")
e(f"v_and_b32 v2, 7, v{L}")
e("v_xor_b32 v2, v2, v3")
e("v_lshl_add_u32 v4, v1, 7, s61")
e(f"v_lshl_add_u32 v{aWH+1}, v2, 4, v4")
e(f"v_xor_b32 v{aWH+2}, 64, v{aWH+1}")
e(f"v_bfe_u32 v6, v{L}, 2, 2")
e(f"v_and_b32 v2, 3, v{L}")
e("v_lshl_add_u32 v4, v3, 3, v6")
e(f"v_lshlrev_b32 v7, 2, v{L}")
e("v_and_b32 v7, 0x60, v7")
e(f"s_xor_b32 s61, s{sCHF}, 1")
e("s_lshl_b32 s61, s61, 13")
e(f"s_add_u32 s61, s61, {WE}")
e("v_lshl_add_u32 v5, v4, 7, s61")
e("v_lshl_add_u32 v5, v2, 3, v5")
e(f"v_xor_b32 v{aWT}, v7, v5")
for t in range(1, 4): e(f"v_xor_b32 v{aWT+t}, {32*t}, v{aWT}")
e(f"s_lshl_b32 s61, s{sCHF}, 6")
e(f"s_add_u32 s61, s61, {WH}")
e("v_lshl_add_u32 v6, v2, 4, s61")
e("v_lshl_add_u32 v5, v4, 7, v6")
e(f"v_xor_b32 v{aWH}, v7, v5")
e(f"s_lshl_b32 s61, s{sNG}, 4")
e(f"s_add_u32 s61, s61, s{sN0}")
e("s_lshl_b32 s61, s61, 7")
e(f"s_add_u32 s61, s61, {WS_BP}")
e("v_lshl_add_u32 v2, v3, 9, s61")
e(f"v_lshl_add_u32 v{aWH+3}, v1, 3, v2")
e("v_mov_b32 v13, 8")
e("s_mov_b32 s61, 52429")
e("s_movk_i32 s62, -40")
e("s_waitcnt vmcnt(7)")
if OPT["stamps"]: e("s_waitcnt lgkmcnt(0)")
stamp(14)
for i in range(5): e(f"v_mul_u32_u24 v{B4+i}, s61, v{DSTR+i}")
for i in range(5): e(f"v_lshrrev_b32 v{B4+i}, 21, v{B4+i}")
for i in range(5):
    e(f"v_lshlrev_b32 v{B4+i}, 2, v{B4+i}")
    e(f"ds_add_rtn_u32 v{RK+i}, v{B4+i}, v13 offset:{CNT1}")
e(f"v_lshlrev_b32 v1, 4, v{L}")
e("s_waitcnt vmcnt(5) lgkmcnt(0)")
e("s_barrier")
stamp(2)
e(f"ds_read_b128 v[4:7], v1 offset:{CNT1}")
def nodeprod_reads():
    e(f"ds_read_b128 {v(HF,4)}, v{aWH+1}")
    e(f"ds_read_b128 {v(HF+4,4)}, v{aWH+2}")
    for t in range(4):
        for ks in range(2):
            for rd in range(2):
                e(f"ds_read_b64_tr_b16 {v(WT+8*t+4*ks+2*rd,2)}, v{aWT+t} offset:{ks*4096+rd*512}")
def nodeprod():
    e(f"s_mov_b32 s61, {NL2E}")
    for t in range(4):
        e(f"v_mfma_f32_16x16x32_bf16 {v(DT+4*t,4)}, {v(HF,4)}, {v(WT+8*t,4)}, 0")
        e(f"v_mfma_f32_16x16x32_bf16 {v(DT+4*t,4)}, {v(HF+4,4)}, {v(WT+8*t+4,4)}, {v(DT+4*t,4)}")
    e("s_nop 1")
    for i in range(16): e(f"v_mul_f32 v{DT+i}, s61, v{DT+i}")
for base, a, ptr in ((WE, WA0, sWE), (WH, WA0, sWH), (WH+8192, WA2, sWH)):
    e(f"s_add_u32 m0, s60, {base}")
    e("s_nop 0")
    e(f"global_load_lds_dwordx4 v{a}, {s(ptr,2)}")
e("s_waitcnt lgkmcnt(0)")
e(f"s_cmp_ge_u32 s{sW}, 3")
e("s_cbranch_scc1 L_nobr")
nodeprod_reads()
e.label("L_nobr")
e("v_add_u32 v5, v4, v5")
e("v_add_u32 v6, v5, v6")
e("v_add_u32 v7, v6, v7")
e("v_mov_b32 v3, v7")
fill = [f"v_lshlrev_b32 v{XW+2*i}, 2, v{DSTR+i}" for i in range(5)] + \
       [f"v_mad_i32_i24 v{XW+2*i}, v{B4+i}, s62, v{XW+2*i}" for i in range(5)] + \
       [f"v_add_u32 v{RK+i}, {STG}, v{RK+i}" for i in range(5)]
scan(3, fill[:12])
e("v_sub_u32 v8, v3, v7")
e("v_add_u32 v9, v8, v4")
e("v_add_u32 v10, v8, v5")
e("v_add_u32 v11, v8, v6")
e(f"ds_write_b128 v1, v[8:11] offset:{OFF1}")
for i in range(5): e(f"ds_read_b32 v{B4+i}, v{B4+i} offset:{OFF1}")
for x in fill[12:]: e(x)
PB = 20
e(f"v_lshl_or_b32 v{PB}, v9, 16, v8")
e(f"v_lshl_or_b32 v{PB+1}, v11, 16, v10")
e(f"v_mov_b32 v{PB+2}, v3")
e("s_mov_b32 s63, 0xffff0000")
e("s_cbranch_scc1 L_nobp")
e("s_waitcnt lgkmcnt(6)")
nodeprod()
for r in range(4):
    e(f"v_cvt_pk_bf16_f32 v{WT+2*r}, v{DT+r}, v{DT+4+r}")
    e(f"v_cvt_pk_bf16_f32 v{WT+2*r+1}, v{DT+8+r}, v{DT+12+r}")
e(f"s_cmp_eq_u32 s{sNG}, 2")
e("s_cselect_b32 exec_hi, 0, -1")
for r in range(4): e(f"global_store_dwordx2 v{aWH+3}, {v(WT+2*r,2)}, {s(sWS,2)} offset:{r*128} sc1")
e("s_mov_b64 exec, -1")
e("s_waitcnt vmcnt(8)")
e("s_branch L_bpdone")
e.label("L_nobp")
e("s_waitcnt vmcnt(4)")
e.label("L_bpdone")
e(f"v_lshl_or_b32 v{XW+1}, v{ER}, 16, v{SRCR}")
e(f"v_and_or_b32 v{XW+3}, v{ER}, s63, v{SRCR+1}")
e(f"v_lshl_or_b32 v{XW+5}, v{ER+1}, 16, v{SRCR+2}")
e(f"v_and_or_b32 v{XW+7}, v{ER+1}, s63, v{SRCR+3}")
e(f"v_or_b32 v{XW+9}, v{ER+2}, v{SRCR+4}")
for i in range(5):
    e("s_waitcnt lgkmcnt(4)")
    e(f"v_add_u32 v{B4+i}, v{B4+i}, v{RK+i}")
    e(f"ds_write_b64 v{B4+i}, {v(XW+2*i,2)}")
e(f"s_mul_i32 s60, s2, {CH*8}")
e(f"s_add_u32 s60, s60, {WS_REC}")
e("v_add_u32 v2, s60, v12")
e("v_add_u32 v3, 8192, v2")
e("v_add_u32 v4, 16384, v2")
e(f"v_add_u32 v5, {STG}, v12")
e(f"s_lshl_b32 s60, s2, 10")
e(f"s_add_u32 s60, s60, {WS_OFF}")
e(f"v_add_u32 v{PBA}, s60, v1")
e(f"s_lshl_b32 s60, s{sW}, 3")
e("s_lshl_b64 s[62:63], 0xff, s60")
e(f"s_cmp_ge_u32 s{sW}, 3")
e("s_cbranch_scc1 L_tw3")
e("s_waitcnt vmcnt(7)")
e("s_branch L_tw")
e.label("L_tw3")
e("s_waitcnt vmcnt(3)")
e.label("L_tw")
e(f"v_add_u32 v{PB+3}, {TAGC}, v71")
e(f"v_and_b32 v71, 0xffffff00, v{PB+3}")
e(f"s_cmp_ge_u32 s{sW}, 4")
e(f"v_readfirstlane_b32 s{sTAG}, v{PB+3}")
e(f"v_readfirstlane_b32 s{sTAGR}, v71")
e("s_waitcnt lgkmcnt(0)")
e("s_barrier")
stamp(3)
ST = 48
for i in range(3): e(f"ds_read_b128 {v(ST+4*i,4)}, v5 offset:{i*8192}")
for i in range(4): e(f"v_mov_b32 v{8+i}, 0")
def tagit(r):
    e(f"v_or_b32 v{r}, v71, v{r}")
    e(f"v_or_b32 v{r+2}, v71, v{r+2}")
e("s_waitcnt lgkmcnt(2)")
tagit(ST)
e(f"global_store_dwordx4 v2, {v(ST,4)}, {s(sWS,2)} sc1")
e("s_waitcnt lgkmcnt(1)")
tagit(ST+4)
e(f"global_store_dwordx4 v3, {v(ST+4,4)}, {s(sWS,2)} sc1")
e("s_cbranch_scc1 L_no3")
e("s_waitcnt lgkmcnt(0)")
tagit(ST+8)
e(f"global_store_dwordx4 v4, {v(ST+8,4)}, {s(sWS,2)} sc1")
e("s_waitcnt vmcnt(3)")
e("s_branch L_st3")
e.label("L_no3")
e("s_waitcnt vmcnt(2)")
e.label("L_st3")
e("s_barrier")
e("s_mov_b64 exec, s[62:63]")
e(f"global_store_dwordx4 v{PBA}, {v(PB,4)}, {s(sWS,2)} sc1")
e("s_mov_b64 exec, -1")
if OPT["stamps"]: e("s_waitcnt lgkmcnt(0)")
stamp(15)
e(f"s_cmp_lg_u32 s2, {NWG-1}")
e("s_cbranch_scc1 L_nodummy")
e(f"v_mov_b32 v6, {WS_REC + NWG*CH*8}")
e(f"v_mov_b32 v7, s{sTAGR}")
e(f"global_store_dword v6, v7, {s(sWS,2)} sc1")
e.label("L_nodummy")
if OPT["posat"] == "window": posdma()
assert R2 + 6*8192 >= AT and R2 + 5*8192 <= AT
for i in range(5): e(f"ds_write_b128 v5, v[8:11] offset:{i*8192}")
e(f"v_cmp_gt_u32 vcc, {(AT - R2 - 5*8192)//16}, v0")
e("s_mov_b64 exec, vcc")
e(f"ds_write_b128 v5, v[8:11] offset:{5*8192}")
e("s_mov_b64 exec, -1")
PA4 = 16; PL = 32
e("v_lshrrev_b32 v1, 3, v0")
e(f"s_lshr_b32 s60, s{sB}, 2")
e("s_lshl_b32 s60, s60, 4")
e(f"s_add_u32 s60, s60, {WS_OFF}")
e(f"v_lshl_add_u32 v{PA4}, v1, 10, s60")
e(f"v_add_u32 v{PA4+1}, {64*1024}, v{PA4}")
e(f"v_add_u32 v{PA4+2}, {128*1024}, v{PA4}")
e("v_add_u32 v1, 192, v1")
e(f"v_min_u32 v1, {NWG-1}, v1")
e(f"v_lshl_add_u32 v{PA4+3}, v1, 10, s60")
e(f"s_mov_b32 s{sBUD}, 200000")
def poll_loads():
    for p in range(4): e(f"global_load_dwordx4 {v(PL+4*p,4)}, v{PA4+p}, {s(sWS,2)} sc1")
e(f"v_lshrrev_b32 v1, 5, v{L}")
e(f"v_and_b32 v6, 31, v{L}")
e("v_and_b32 v7, 3, v6")
e("v_lshrrev_b32 v13, 3, v6")
e("v_lshlrev_b32 v13, 2, v13")
e("v_lshl_add_u32 v7, v7, 4, v13")
e("v_bfe_u32 v13, v6, 2, 1")
e("v_add_u32 v7, v7, v13")
e("v_lshl_add_u32 v7, v1, 1, v7")
e(f"v_lshlrev_b32 v{CA0}, 1, v7")
e(f"v_add_u32 v{CA0}, {WL}, v{CA0}")
e(f"v_mul_u32_u24 v{aATb}, {ATS}, v7")
e(f"v_add_u32 v{aATb}, {AT}, v{aATb}")
e(f"ds_read_u16_d16_hi v{WX}, v{CA0}")
e(f"ds_read_u16_d16_hi v{WX+1}, v{CA0} offset:128")
e(f"s_cmp_ge_u32 s{sW}, 6")
e("s_cbranch_scc1 L_w67")
e(f"s_cmp_ge_u32 s{sW}, 3")
e("s_cbranch_scc1 L_w345")
for i in range(4): e(f"v_mov_b32 v{HRES+i}, v{HF+i}")
e("s_branch L_wdone")
e.label("L_d67")
e(f"v_lshlrev_b32 v5, 4, v{L}")
e(f"s_cmp_eq_u32 s{sW}, 7")
e("s_cbranch_scc1 L_d7")
e(f"s_mov_b32 m0, {WL}")
e("v_add_u32 v5, 16384, v5")
e("s_mov_b64 exec, 0xffff")
e(f"global_load_lds_dwordx4 v5, {s(sWE,2)}")
e("s_mov_b64 exec, -1")
e("s_branch L_ddone")
e.label("L_d7")
e(f"s_mov_b32 m0, {WXL}")
e("s_mov_b64 exec, 0xff")
e(f"global_load_lds_dwordx4 v5, {s(sWX,2)}")
e("s_mov_b64 exec, -1")
e("s_branch L_ddone")
e.label("L_w345")
nodeprod_reads()
e(f"v_and_b32 v1, 15, v{L}")
e(f"v_lshrrev_b32 v3, 4, v{L}")
e(f"s_lshl_b32 s60, s{sNG}, 5")
e(f"s_add_u32 s60, s60, {AT}")
e("v_lshl_add_u32 v2, v3, 3, s60")
e(f"v_mul_u32_u24 v1, {ATS}, v1")
e("v_add_u32 v2, v1, v2")
e("s_waitcnt lgkmcnt(0)")
nodeprod()
for t in range(4):
    e(f"v_cvt_pk_bf16_f32 v{WT+2*t}, v{DT+4*t}, v{DT+4*t+1}")
    e(f"v_cvt_pk_bf16_f32 v{WT+2*t+1}, v{DT+4*t+2}, v{DT+4*t+3}")
for i in range(4): e(f"v_mov_b32 v{HRES+i}, v{HF+4+i}")
for t in range(4): e(f"ds_write_b64 v2, {v(WT+2*t,2)} offset:{t*16*ATS}")
e("s_branch L_wdone")
e.label("L_w67")
e(f"ds_read_u16_d16_hi v4, v{CA0} offset:256")
e("v_and_b32 v7, 127, v0")
e(f"v_min_u32 v7, 119, v7")
e(f"s_mul_i32 s60, s{sB}, 240")
e(f"v_lshl_add_u32 v1, v7, 1, s60")
e(f"global_load_short_d16_hi v{vPosOwn}, v1, {s(sPOS,2)}")
e(f"v_mul_u32_u24 v1, 171, v7")
e("v_lshrrev_b32 v1, 9, v1")
e(f"v_mad_i32_i24 v2, v1, -3, v7")
e(f"v_lshlrev_b32 v{H1+2}, 2, v1")
e(f"v_lshl_add_u32 v{H1+3}, v2, 8, v{H1+2}")
e(f"v_lshlrev_b32 v{H1+1}, 3, v2")
e(f"v_add_u32 v{H1+1}, 256, v{H1+1}")
e(f"v_mul_u32_u24 v1, {ACCS}, v1")
e(f"v_add_u32 v1, {ACC}, v1")
e(f"v_add_u32 v{H1}, v1, v{H1+1}")
e(f"v_bfe_u32 v1, v{L}, 2, 1")
e(f"v_lshrrev_b32 v2, 3, v{L}")
e(f"v_and_b32 v3, 3, v{L}")
e("v_lshl_add_u32 v2, v2, 2, v3")
e("v_lshl_add_u32 v2, v1, 5, v2")
e("v_lshlrev_b32 v2, 2, v2")
e("s_waitcnt lgkmcnt(0)")
e(f"v_mul_f32 v4, {NLN2}, v4")
e(f"ds_write_b32 v2, v4 offset:{WXT}")
e.label("L_wdone")
if OPT["stamps"]: e("s_waitcnt lgkmcnt(0)")
stamp(4)
def laneconsts():
    e(f"s_add_u32 s{srdBP}, s{sWS}, {WS_BP}")
    e(f"s_addc_u32 s{srdBP+1}, s{sWS+1}, 0")
    e(f"s_and_b32 s{srdBP+1}, s{srdBP+1}, 0xffff")
    e(f"s_or_b32 s{srdBP+1}, s{srdBP+1}, 0x800000")
    e(f"s_mov_b32 s{srdBP+2}, 10000")
    e(f"s_mov_b32 s{srdBP+3}, 0x20000")
    e(f"s_mov_b32 s{sR0}, 0")
    e(f"s_mov_b32 s{sS}, 256")
    e(f"s_mov_b32 s{sOHC}, 0x3f80")
    e(f"s_mov_b32 s{sOHC+1}, 0")
    e(f"v_lshrrev_b32 v1, 5, v{L}")
    e(f"v_and_b32 v2, 1, v{L}")
    e(f"v_lshlrev_b32 v{vWxa}, 7, v1")
    e(f"v_lshlrev_b32 v3, 5, v1")
    e(f"v_lshl_add_u32 v{IDX+1}, v2, 4, v3")
    e(f"v_bfe_u32 v4, v{L}, 3, 2")
    e(f"v_bfe_u32 v5, v{L}, 1, 1")
    e("v_lshl_add_u32 v4, v4, 1, v5")
    e(f"v_bfe_u32 v5, v{L}, 2, 1")
    e("v_lshl_add_u32 v4, v5, 3, v4")
    e(f"v_lshlrev_b32 v{vIdxL}, 3, v4")
    e(f"s_lshl_b32 s60, s{sW}, 10")
    e(f"s_add_u32 s60, s60, {R1}")
    e(f"v_lshl_add_u32 v{aR1r}, v4, 4, s60")
    e("v_xor_b32 v5, v1, v2")
    e(f"v_lshl_add_u32 v{aR1r}, v5, 20, v{aR1r}")
    e(f"v_lshl_add_u32 v{aR1w}, v{L}, 4, s60")
    e(f"s_lshl_b32 s60, s{sW}, 12")
    e(f"s_add_u32 s60, s60, {R2}")
    e(f"v_bfe_u32 v3, v{L}, 1, 3")
    e(f"v_lshl_add_u32 v4, v{L}, 6, s60")
    e(f"v_lshl_add_u32 v{aR2b}, v3, 3, v4")
    e(f"v_mov_b32 v{aR2}, v{aR2b}")
    e(f"v_bfe_u32 v3, v{L}, 2, 2")
    e(f"v_and_b32 v4, 3, v{L}")
    e(f"v_bfe_u32 v5, v{L}, 4, 1")
    e("v_lshl_add_u32 v5, v5, 2, v4")
    e("v_lshrrev_b32 v7, 1, v3")
    e("v_lshl_add_u32 v7, v1, 2, v7")
    e("v_xor_b32 v5, v5, v7")
    e("v_lshl_add_u32 v7, v1, 3, v3")
    e("v_lshl_add_u32 v7, v7, 6, s60")
    e(f"v_lshl_add_u32 v{aS0}, v5, 3, v7")
    e(f"v_xor_b32 v{aS1}, 16, v{aS0}")
    e(f"v_add_u32 v{aS1}, 256, v{aS1}")
    e(f"v_and_b32 v6, 31, v{L}")
    e("v_lshlrev_b32 v7, 3, v1")
    e("v_sub_u32 v7, v6, v7")
    e("v_lshlrev_b32 v6, 4, v2")
    e(f"v_lshlrev_b32 v6, v6, s{sOHC}")
    e("v_ashrrev_i32 v7, 1, v7")
    for u, I in ((0, I0), (1, I1)):
        for d in range(4): e(f"v_cmp_eq_u32 {s(sMK+2*d,2)}, {8*u+d}, v7")
        for d in range(4): e(f"v_cndmask_b32 v{I+d}, 0, v6, {s(sMK+2*d,2)}")
    e("v_xor_b32 v7, 1, v1")
    e(f"v_mul_u32_u24 v{ONE}, 0x3f80, v7")
    e(f"v_mov_b32 v{ONE+1}, 0")
if OPT["ackwait"]: e("s_waitcnt vmcnt(0)")
if OPT["stamps"]: e("s_waitcnt lgkmcnt(0)")
stamp(5)
poll_loads()
if OPT["posat"] == "poll": posdma()
laneconsts()
RA = 80; RB = 96; KA = 48; KB = 56; AD = 64; LN = 112; LK = 16; vSB = 68; vJ = 116
mk = lambda rnd, p, h: sMK + 2 * (rnd * 8 + p * 2 + h)
def presets():
    for p in range(4):
        e(f"v_mov_b32 v{RA+4*p}, s{sTAGR}")
        e(f"v_mov_b32 v{RA+4*p+2}, s{sTAGR}")
def batchsetup(general):
    e("v_lshrrev_b32 v1, 3, v0")
    e("v_and_b32 v2, 7, v0")
    e(f"v_lshlrev_b32 v{vJ}, 4, v2")
    e(f"v_mul_u32_u24 v1, {CH*8}, v1")
    e(f"v_add_u32 v{vSB}, v1, v{vJ}")
    for p in range(4):
        e(f"s_add_u32 s60, s{sR0}, {WS_REC + p*64*CH*8}")
        e(f"s_add_u32 s{sRB+2*p}, s{sWS}, s60")
        e(f"s_addc_u32 s{sRB+2*p+1}, s{sWS+1}, 0")
    for k2, o in ((1, 8), (2, 128), (3, 136)): e(f"v_add_u32 v{vJ+k2}, {o}, v{vJ}")
    if general:
        e(f"v_mov_b32 v1, {OOB}")
        for k2 in range(4):
            e(f"v_cmp_gt_u32 vcc, s{sS}, v{vJ+k2}")
            e(f"v_add_u32 v{vJ+k2}, s{sR0}, v{vJ+k2}")
            e("s_nop 0")
            e(f"v_cndmask_b32 v{vJ+k2}, v1, v{vJ+k2}, vcc")
    presets()
batchsetup(False)
e(f"s_mov_b32 s{sONCE}, 0")
e(f"s_and_b32 s3, s{sB}, 1")
e("s_lshl_b32 s3, s3, 4")
e(f"s_movk_i32 s60, {(NWG-192)*8}")
e(f"v_cmp_gt_u32 {s(sVAL,2)}, s60, v0")
e("s_waitcnt vmcnt(7)" if OPT["posat"] == "poll" else "s_waitcnt vmcnt(0)")
e.label("L_chkoff")
e(f"v_cmp_ne_u32 s[60:61], s{sTAG}, v{PL+3}")
e(f"v_cmp_ne_u32 s[62:63], s{sTAG}, v{PL+7}")
e(f"v_cmp_ne_u32 s[96:97], s{sTAG}, v{PL+11}")
e(f"v_cmp_ne_u32 vcc, s{sTAG}, v{PL+15}")
e("s_or_b64 s[60:61], s[60:61], s[62:63]")
e("s_or_b64 s[96:97], s[96:97], vcc")
e("s_or_b64 s[60:61], s[60:61], s[96:97]")
e("s_cbranch_scc0 L_gotoff")
e(f"s_cmp_eq_u32 s{sBUD}, 0")
e("s_cbranch_scc1 L_gotoff")
e(f"s_sub_u32 s{sBUD}, s{sBUD}, 1")
poll_loads()
e("s_waitcnt vmcnt(0)")
e("s_branch L_chkoff")
e.label("L_gotoff")
if OPT["stamps"]: e("s_waitcnt lgkmcnt(0)")
stamp(6)
e(f"s_bitcmp1_b32 s{sB}, 1")
e("s_cbranch_scc1 L_hi2")
for p in range(4): e(f"v_alignbit_b32 v{SEG+p}, v{PL+4*p+1}, v{PL+4*p}, s3")
e.label("L_segs")
e(f"v_cndmask_b32 v{SEG+3}, 0, v{SEG+3}, {s(sVAL,2)}")
e.label("L_fetch")
for p in range(4):
    e(f"v_sub_u32_sdwa v{LN+p}, v{SEG+p}, v{SEG+p} {SD} src0_sel:WORD_1 src1_sel:WORD_0")
    e(f"v_add_u32_sdwa v{AD+p}, v{SEG+p}, v{vSB} {SD} src0_sel:WORD_0 src1_sel:DWORD")
    e(f"v_cmp_lt_i32 {s(mk(0,p,0),2)}, v{vJ}, v{LN+p}")
for p in range(4):
    e(f"s_mov_b64 exec, {s(mk(0,p,0),2)}")
    e(f"global_load_dwordx4 {v(RA+4*p,4)}, v{AD+p}, {s(sRB+2*p,2)} sc1")
e("s_mov_b64 exec, -1")
for p in range(4): e(f"v_cmp_lt_i32 {s(mk(1,p,0),2)}, v{vJ+2}, v{LN+p}")
for p in range(4):
    e(f"s_mov_b64 exec, {s(mk(1,p,0),2)}")
    e(f"s_cbranch_execz L_nlb{p}")
    e(f"global_load_dwordx4 {v(RB+4*p,4)}, v{AD+p}, {s(sRB+2*p,2)} offset:128 sc1")
    e.label(f"L_nlb{p}")
e("s_mov_b64 exec, -1")
for p in range(4):
    e(f"v_cmp_lt_i32 {s(mk(0,p,1),2)}, v{vJ+1}, v{LN+p}")
    e(f"v_cmp_lt_i32 {s(mk(1,p,1),2)}, v{vJ+3}, v{LN+p}")
e(f"v_max3_i32 v3, v{LN}, v{LN+1}, v{LN+2}")
e(f"v_max_i32 v3, v3, v{LN+3}")
e(f"s_add_u32 s60, s{sR0}, s{sS}")
e("v_mov_b32 v13, 8")
e("v_cmp_lt_i32 vcc, s60, v3")
e("s_mov_b64 exec, vcc")
e(f"ds_write_b32 v{ZP}, v13 offset:{CNT2+252}")
e("s_mov_b64 exec, -1")
e(f"s_cmp_lg_u32 s{sONCE}, 0")
e("s_cbranch_scc1 L_notfirst")
e(f"s_mov_b32 s{sONCE}, 1")
e(f"s_cmp_ge_u32 s{sW}, 6")
e("s_cbranch_scc1 L_p67")
for t in range(2):
    for ks in range(2):
        for rd in range(2):
            e(f"ds_read_b64_tr_b16 {v(W1T+8*t+4*ks+2*rd,2)}, v{aWH} offset:{ks*4096+rd*512+t*8}")
for t in range(2):
    for c in range(2):
        for rd in range(2):
            e(f"ds_read_b64_tr_b16 {v(WH2+8*t+4*c+2*rd,2)}, v{aWH} offset:{(2+c)*4096+rd*512+t*8}")
e(f"s_lshl_b32 s60, s{sNG}, 4")
e(f"v_and_b32 v1, 15, v{L}")
e(f"v_add_lshl_u32 v{vAItem}, v1, s60, 2")
e("s_waitcnt lgkmcnt(8)")
for t in range(2):
    e(f"v_mfma_f32_16x16x32_bf16 {v(H1+4*t,4)}, {v(W1T+8*t,4)}, {v(HF,4)}, 0")
    e(f"v_mfma_f32_16x16x32_bf16 {v(H1+4*t,4)}, {v(W1T+8*t+4,4)}, {v(HF+4,4)}, {v(H1+4*t,4)}")
e("s_branch L_pdone")
e.label("L_p67")
e(f"ds_write_b32 v{H1+3}, v{vPosOwn} offset:{PD}")
e(f"v_mov_b32 v{vAItem}, v{H1+2}")
e.label("L_pdone")
e(f"v_mul_f32 v{WX}, {NL2E}, v{WX}")
e(f"v_mul_f32 v{WX+1}, {NL2E}, v{WX+1}")
e(f"v_cvt_pk_bf16_f32 v1, v{WX}, v{WX}")
e("v_and_b32 v1, 0xffff0000, v1")
e(f"v_sub_f32 v2, v{WX}, v1")
e(f"v_cvt_pk_bf16_f32 v{WX}, v1, v2")
e(f"v_cvt_pk_bf16_f32 v{WX+1}, 0, v{WX+1}")
e.label("L_notfirst")
e("s_lshr_b32 s60, s2, 3")
e("s_lshl_b32 s60, s60, 3")
e(f"s_add_u32 s60, s60, s{sW}")
e("s_mul_i32 s60, s60, 41")
e(f"v_add_u32 v6, s60, v{L}")
e(f"v_lshlrev_b32 v1, 2, v{L}")
e(f"v_cmp_gt_u32 {s(sVAL,2)}, {NB}, v{L}")
e("s_waitcnt vmcnt(0)")
for i in range(8): e(f"v_xor_b32 v{RA+2*i}, s{sTAGR}, v{RA+2*i}")
e(f"v_or3_b32 v4, v{RA}, v{RA+2}, v{RA+4}")
e(f"v_or3_b32 v5, v{RA+6}, v{RA+8}, v{RA+10}")
e(f"v_or3_b32 v4, v4, v{RA+12}, v{RA+14}")
def bsite(name):
    for p in range(4):
        e(f"s_mov_b64 exec, {s(mk(1,p,0),2)}")
        e(f"s_cbranch_execnz L_{name}{p}")
        e.label(f"L_{name}r{p}")
    e("s_mov_b64 exec, -1")
bsite("bx")
e("v_or_b32 v4, v4, v5")
e("v_cmp_lt_u32 vcc, 0xff, v4")
e("s_cbranch_vccnz L_stale")
e.label("L_gotrec")
if OPT["stamps"]: e("s_waitcnt lgkmcnt(0)")
stamp(7)
for p in range(4):
    for h in range(2):
        e(f"s_mov_b64 exec, {s(mk(0,p,h),2)}")
        e(f"ds_add_rtn_u32 v{KA+2*p+h}, v{RA+4*p+2*h}, v13 offset:{CNT2}")
bsite("ba")
if OPT["bpf"]:
    e("s_mov_b32 exec_hi, 0x1ff")
    e(f"buffer_load_dword v{TCH}, v6, {s(srdBP,4)}, 0 idxen")
    e("s_mov_b64 exec, -1")
e("s_waitcnt lgkmcnt(0)")
e("s_barrier")
stamp(8)
e(f"ds_read_b32 v2, v1 offset:{CNT2}")
e("s_waitcnt lgkmcnt(0)")
e(f"v_max_u32 v4, {PADB}, v2")
e(f"v_cndmask_b32 v5, 0, v4, {s(sVAL,2)}")
scan(5, [f"v_readlane_b32 s{sMORE}, v2, 63", f"v_cmp_lt_u32 vcc, v2, v4"])
e(f"v_sub_u32 v6, v5, v4")
e(f"ds_write_b32 v1, v6 offset:{BASE2}")
for i in range(8): e(f"ds_read_b32 v{LK+i}, v{RA+2*i} offset:{BASE2}")
e(f"v_readlane_b32 s3, v5, 63")
bsite("bl")
e(f"s_cmp_gt_u32 s3, {CAPB}")
e("s_cbranch_scc1 L_redo")
e(f"s_and_b64 vcc, vcc, {s(sVAL,2)}")
e("s_cbranch_scc1 L_pad0")
e.label("L_nopad")
e("s_add_u32 s96, s3, 127")
e("s_lshr_b32 s60, s96, 10")
e("s_bfe_u32 s61, s96, 0x30007")
e(f"s_mul_i32 s62, s60, s{sW}")
e(f"s_min_u32 s63, s61, s{sW}")
e("s_add_u32 s62, s62, s63")
e(f"s_cmp_lt_u32 s{sW}, s61")
e(f"s_addc_u32 s{sCNT}, s60, 0")
e("s_lshl_b32 s62, s62, 7")
e("v_cmp_ge_u32 vcc, s62, v5")
e(f"s_lshl_b32 s63, s{sCNT}, 7")
e("s_add_u32 s63, s63, s62")
e("v_cmp_gt_u32 s[60:61], s63, v5")
e("s_waitcnt lgkmcnt(0)")
for p in range(4):
    for h in range(2):
        i = 2*p+h
        e(f"s_mov_b64 exec, {s(mk(0,p,h),2)}")
        e(f"v_add_u32 v{LK+i}, v{LK+i}, v{KA+i}")
        e(f"ds_write_b64 v{LK+i}, {v(RA+2*i,2)} offset:{SORT2}")
bsite("bw")
e(f"s_bcnt1_i32_b64 s{sNFW}, vcc")
e(f"s_lshl_b32 s{sBASE}, s{sNFW}, 2")
e(f"s_or_b32 s{sSLOW}, s{sR0}, s{sMORE}")
e(f"s_cselect_b32 s{sNFW}, 252, s{sBASE}")
e(f"s_cmp_eq_u32 s{sCNT}, 0")
e(f"s_cselect_b32 s{sNFW}, 252, s{sNFW}")
e(f"s_lshl_b32 s63, 1, s{sW}")
e(f"v_mov_b32 v7, s{sNFW}")
e("v_mov_b32 v8, s63")
e(f"s_add_u32 s3, s3, {SORT2}")
e(f"s_lshl_b32 s63, s{sW}, 6")
e("s_add_u32 s3, s3, s63")
e("v_lshl_add_u32 v9, v1, 1, s3")
e(f"v_mov_b32 v10, {(NB-1)*4}")
e("v_mov_b32 v11, 10000")
e("s_mov_b64 exec, 1")
e(f"ds_or_b32 v7, v8 offset:{LNK}")
e("s_mov_b64 exec, 0xff")
e("ds_write_b64 v9, v[10:11]")
e("s_mov_b64 exec, -1")
e(f"s_add_u32 s62, s62, {SORT2}")
e(f"v_lshl_add_u32 v{aRec}, v{L}, 3, s62")
e(f"v_add3_u32 v{aIdx}, s62, 4, v{vIdxL}")
e(f"s_bcnt1_i32_b64 s{sNLW}, s[60:61]")
e(f"s_min_u32 s{sNLW}, s{sNLW}, {NB-1}")
e(f"s_lshl_b32 s{sNLW}, s{sNLW}, 2")
e("s_waitcnt lgkmcnt(0)")
e("s_barrier")
stamp(9)
def gather(b, pair):
    return [f"buffer_load_dwordx4 {v(G[b],4)}, {v(pair,2)}, {s(srdBP,4)}, 0 idxen offen",
            f"buffer_load_dwordx4 {v(G[b]+4,4)}, {v(pair,2)}, {s(srdBP,4)}, 0 idxen offen offset:64"]
def build1():
    return [f"v_mul_u32_u24_sdwa v{BT}, 6, v{REC+1} {SD} src0_sel:DWORD src1_sel:WORD_0",
            f"ds_read2st64_b32 {v(PDV,2)}, v{REC} offset0:{PD//256} offset1:{PD//256+1}",
            f"ds_read_u16_d16_hi v{PS}, v{BT} offset:{POS}",
            f"ds_read_u16_d16_hi v{PS+1}, v{BT} offset:{POS+2}",
            f"ds_read_u16_d16_hi v{PS+2}, v{BT} offset:{POS+4}",
            f"ds_read_b32 v{PDV+2}, v{REC} offset:{PD+512}",
            f"v_readlane_b32 s{sNF}, v{REC}, 0",
            f"v_readlane_b32 s{sNL}, v{REC}, 63",
            f"v_cmp_ne_u32 vcc, 60000, v{BT}",
            f"v_add_u32 v{BT+1}, v{REC}, v{REC}",
            f"s_and_b32 s60, s{sNF}, -8",
            f"s_mul_i32 s{sNEG}, s60, -4",
            f"s_lshr_b32 s60, s60, 1",
            f"s_mov_b64 {s(sVAL,2)}, vcc",
            f"v_lshl_add_u32 v{BT+2}, v{REC}, 2, s{sNEG}",
            f"v_add_u32 v{aAT}, s60, v{aATb}",
            f"v_lshlrev_b64 {v(REC+2,2)}, v{BT+2}, {s(sOHC,2)}"]
def build2():
    return [f"v_sub_f32 v{PDV}, v{PDV}, v{PS}",
            f"v_sub_f32 v{PDV+1}, v{PDV+1}, v{PS+1}",
            f"v_sub_f32 v{PDV+2}, v{PDV+2}, v{PS+2}",
            f"v_cvt_pk_bf16_f32 v{R2V}, v{PDV}, v{PDV+1}",
            f"v_cvt_pk_bf16_f32 v{R2V+1}, v{PDV+2}, 1.0",
            f"v_dot2_f32_bf16 v{BT}, v{R2V}, v{R2V}, 0",
            f"v_lshlrev_b32 v{BT+2}, 16, v{R2V+1}",
            None, None,
            f"v_fmac_f32 v{BT}, v{BT+2}, v{BT+2}",
            f"v_cvt_pk_bf16_f32 v{REC}, v{BT}, v{BT}"]
def build3():
    return [f"ds_write_b64 v{aR2}, {v(ZP,2)}",
            f"v_bitop3_b32 v{aR2}, v{BT+1}, 56, v{aR2b} bitop3:0x6a",
            f"ds_write_b128 v{aR1w}, {v(REC,4)}",
            f"s_mov_b64 exec, {s(sVAL,2)}\nds_write_b64 v{aR2}, {v(R2V,2)}\ns_mov_b64 exec, -1",
            f"ds_read2_b32 {v(WX+2,2)}, v{aAT} offset1:1"]
def opreads(n):
    return [f"ds_read_b128 {v(R1OP,4)}, v{aR1r} offset:{n*256}",
            f"ds_read_b64_tr_b16 {v(S[n],2)}, v{aS0} offset:{n*1024}",
            f"ds_read_b64_tr_b16 {v(S[n]+2,2)}, v{aS1} offset:{n*1024}"]
def stage1(n):
    t = T[n & 1]
    return [f"v_mfma_f32_32x32x16_bf16 {v(t,16)}, {v(R1OP,4)}, {v(WX,4)}, 0",
            f"v_mfma_f32_32x32x16_bf16 {v(t,16)}, {v(G[n],4)}, {v(I0,4)}, {v(t,16)}",
            f"v_mfma_f32_32x32x16_bf16 {v(t,16)}, {v(G[n]+4,4)}, {v(I1,4)}, {v(t,16)}"]
def stage2(n):
    return [f"v_mfma_f32_32x32x16_bf16 {v(AC[c],16)}, {v(M[c],4)}, {v(S[n],4)}, {v(AC[c],16)}" for c in range(2)]
def mulcvt(q):
    L_ = []
    for a in range(4):
        if 4*a >= 16 - OPT["lut"]:
            for c in range(2): L_.append(f"v_or_b32 v{M[c]+a}, v{T[q]+4*a+c}, v{T[q]+4*a+2+c}")
            continue
        for r in range(4): L_.append(f"v_mul_f32 v{E[q]+4*a+r}, v{E[q]+4*a+r}, v{T[q]+4*a+r}")
        for c in range(2): L_.append(f"v_cvt_pk_bf16_f32 v{M[c]+a}, v{E[q]+4*a+c}, v{E[q]+4*a+2+c}")
    return L_
def flushchk(lbl):
    e(f"s_min_u32 s60, s{sNL}, s{sNLW}")
    e(f"s_sub_u32 s60, s60, s{sBASE}")
    e("s_cmp_ge_u32 s60, 32")
    e(f"s_cbranch_scc1 L_flush_{lbl}")
    e.label(f"L_flret_{lbl}")
def rowaddr():
    return [f"v_subrev_u32 v1, s{sBASE}, v{L}",
            "v_and_b32 v1, 28, v1",
            f"v_add_u32 v1, s{sBASE}, v1",
            f"v_cmp_eq_u32 vcc, s{sNFW}, v1",
            f"v_cmp_lt_u32 s[62:63], s{sNLW}, v1",
            f"s_lshl_b32 s61, s{sW}, 2",
            f"s_add_u32 s61, s61, {NB*4}",
            "v_mov_b32 v2, s61",
            "v_cndmask_b32 v1, v1, v2, vcc",
            f"v_mov_b32 v2, {OOB//64}",
            "v_cndmask_b32 v1, v1, v2, s[62:63]",
            f"v_mul_u32_u24 v1, {ACCS//4}, v1",
            f"v_add_u32 v1, {ACC}, v1",
            f"v_lshrrev_b32 v2, 5, v{L}",
            f"v_lshl_add_u32 v{vRowM}, v2, 4, v1",
            f"v_lshl_add_u32 v1, v2, 2, v1",
            f"v_and_b32 v2, 3, v{L}",
            f"v_lshl_add_u32 v{vRowP}, v2, 3, v1"]
def mmask():
    e("s_mov_b32 exec_lo, 0x88888888")
    e("s_mov_b32 exec_hi, 0x88888888")
def flush_slow():
    e("s_nop 7")
    e("v_mov_b32 v2, 0")
    for i in range(8):
        e(f"ds_read_b128 v[4:7], v{vWxa} offset:{WXT+16*i}")
        e("s_waitcnt lgkmcnt(0)")
        for r in range(4): e(f"v_fmac_f32 v2, v{AC[0]+4*i+r}, v{4+r}")
    e(f"ds_add_f32 v{vRowP}, v2 offset:256")
    mmask()
    for i in range(32): e(f"ds_add_f32 v{vRowM}, v{AC[0]+i} offset:{(i//4)*32+(i%4)*4}")
    e("s_mov_b64 exec, -1")

def pkmul(q): return [f"v_pk_mul_f32 {v(E[q]+2*i,2)}, {v(E[q]+2*i,2)}, {v(T[q]+2*i,2)}" for i in range(8)]
def mul(q): return [f"v_mul_f32 v{E[q]+i}, v{E[q]+i}, v{T[q]+i}" for i in range(16)]
def cvt(q): return [f"v_cvt_pk_bf16_f32 v{M[c]+a}, v{E[q]+4*a+c}, v{E[q]+4*a+2+c}" for a in range(4) for c in range(2)]

def step(sidx, first=False):
    q = sidx & 1; n1 = (sidx + 1) & 3
    side = gather(sidx, IDX) + [f"ds_read_u16 v{IDX}, v{aIdx} offset:{(sidx+5)*128}"]
    if sidx == 3:
        side += build3()
    side += opreads(n1)
    if sidx == 0: side += [f"ds_read_b64 {v(REC,2)}, v{aRec} offset:512"]
    if sidx == 1: side += build1()
    if sidx == 2: side += build2()
    if sidx == 3: side += [f"v_add_u32 v{aIdx}, 512, v{aIdx}", f"v_add_u32 v{aRec}, 512, v{aRec}"]
    if sidx == 1: flushchk("mid")
    if OPT["prio"] and not first:
        e(f"s_cmp_gt_u32 s{sCNT}, {OPT['pr'][0]}")
        e(f"s_cbranch_scc0 L_prio{sidx}")
        e.label(f"L_prret{sidx}")
    exps = [f"v_exp_f32 v{E[q]+i}, v{T[q]+i}" for i in range(16)]
    pre = [y for y in side if y is not None and ("sdwa" in y or "readlane" in y or "v_cmp" in y)]
    mem = [y for y in side if y is not None and (y.startswith(("ds_", "buffer_", "s_")) or "bitop3" in y)]
    oth = [y for y in side if y is None or (y not in pre and y not in mem)]
    for y in pre: e(y)
    for y in mem: e(y)
    k = 0
    for i, x in enumerate(exps):
        e(x)
        if k < len(oth):
            if oth[k] is not None: e(oth[k])
            k += 1
    assert k == len(oth)
    addone = f"v_mfma_f32_32x32x8_bf16 {v(E[q],16)}, {v(ONE,2)}, {v(ONE,2)}, {v(E[q],16)}"
    if first:
        e("s_nop 1"); e(addone); e("s_nop 7")
    elif OPT["pk"]:
        for x in pkmul(1 - q): e(x)
        e(addone)
        for x in cvt(1 - q): e(x)
    else:
        mc = mulcvt(1 - q)
        e(mc[0]); e(mc[1]); e(addone)
        for x in mc[2:]: e(x)
    e(f"s_sub_u32 s{sCNT}, s{sCNT}, 1")
    e("s_waitcnt vmcnt(6) lgkmcnt(0)")
    mf = stage1(n1) + ([] if first else stage2((sidx - 1) & 3))
    rc = [f"v_rcp_f32 v{E[q]+i}, v{E[q]+i}" for i in range(16)]
    for i, x in enumerate(rc):
        if i % 3 == 0 and i // 3 < len(mf):
            e(mf[i // 3])
            if i == 0 and (OPT["pk"] or first): e("s_nop 0")
        e(x)
    if first: e("s_nop 0")
    e(f"s_cbranch_scc1 L_drain{sidx}")

PI = E[0]
e(f"ds_read_b64 {v(REC,2)}, v{aRec}")
for n in range(4): e(f"ds_read_u16 v{PI+2*n}, v{aIdx} offset:{n*128}")
e(f"ds_read_u16 v{IDX}, v{aIdx} offset:{4*128}")
e(f"ds_read_b32 v{vMask}, v{vAItem} offset:{LNK}")
e(f"ds_write_b32 v1, v{ZP} offset:{CNT2}")
e(f"s_sub_u32 s{sCNT}, s{sCNT}, 1")
e("s_cbranch_scc1 L_b6")
for n in range(4): e(f"v_mov_b32 v{PI+2*n+1}, v{IDX+1}")
if OPT["prio"]: e("s_setprio 3")
e("s_waitcnt lgkmcnt(3)")
b1 = build1()
for x in gather(0, PI): e(x)
for x in b1: e(x)
for i in range(16): e(f"v_mov_b32 v{AC[0]+i}, 0")
e("s_waitcnt lgkmcnt(0)")
zi = 16
for x in build2():
    if x is None:
        e(f"v_mov_b32 v{AC[0]+zi}, 0"); zi += 1
    else: e(x)
for x in build3(): e(x)
for x in opreads(0): e(x)
for x in gather(1, PI + 2): e(x)
for i in range(zi, 32): e(f"v_mov_b32 v{AC[0]+i}, 0")
e("s_waitcnt vmcnt(2) lgkmcnt(0)")
for x in stage1(0): e(x)
for n in (2, 3):
    for x in gather(n, PI + 2*n): e(x)
for x in rowaddr(): e(x)
stamp(10)
step(0, first=True)
e("s_branch L_s1")
e.label("L_s0")
step(0)
e.label("L_s1")
step(1)
step(2)
step(3)
e("s_branch L_s0")
for sidx in range(4):
    q = sidx & 1
    e.label(f"L_drain{sidx}")
    if sidx == 0: flushchk("dr")
    for i in range(4): e(f"ds_read_b128 {v(E[1-q]+4*i,4)}, v{vWxa} offset:{WXT+16*i}")
    for i in range(4): e(f"ds_read_b128 {v(T[1-q]+4*i,4)}, v{vWxa} offset:{WXT+64+16*i}")
    for x in mulcvt(q): e(x)
    e(f"s_cmp_lg_u32 s{sSLOW}, 0")
    e("s_nop 0")
    for x in stage2(sidx): e(x)
    e("s_cbranch_scc1 L_slow_final")
    if sidx < 2: e(f"s_branch L_final_flush{q}")
    else:
        e.label(f"L_final_flush{q}")
        stamp(11)
        e("s_waitcnt lgkmcnt(0)")
        e("s_nop 6")
        mmask()
        for i in range(4): e(f"ds_write_b128 v{vRowM}, {v(AC[0]+4*i,4)} offset:{i*32}")
        e("s_mov_b64 exec, -1")
        e(f"v_mul_f32 v2, v{AC[0]}, v{E[1-q]}")
        for i in range(1, 16): e(f"v_fmac_f32 v2, v{AC[0]+i}, v{E[1-q]+i}")
        mmask()
        for i in range(4): e(f"ds_write_b128 v{vRowM}, {v(AC[1]+4*i,4)} offset:{128+i*32}")
        e("s_mov_b64 exec, -1")
        for i in range(16): e(f"v_fmac_f32 v2, v{AC[1]+i}, v{T[1-q]+i}")
        e(f"ds_write_b32 v{vRowP}, v2 offset:256")
        if sidx == 2: e("s_branch L_b6")
e.label("L_b6")
e("s_setprio 0")
def bfaddr(dst):
    e(f"v_ffbl_b32 v5, v{vMask}")
    e(f"v_add_u32 v6, -1, v{vMask}")
    e(f"v_min_u32 v5, {OOB//256}, v5")
    e(f"v_and_b32 v{vMask}, v6, v{vMask}")
    e(f"v_mul_u32_u24 v5, {ACCS}, v5")
    e(f"v_add_u32 v{dst}, {BF}, v5")
e(f"v_and_b32 v1, 15, v{L}")
e(f"v_lshrrev_b32 v2, 4, v{L}")
e(f"s_lshl_b32 s60, s{sNG}, 4")
e("v_add_u32 v1, s60, v1")
e(f"v_mul_u32_u24 v3, {ACCS}, v1")
e("v_lshl_add_u32 v3, v2, 5, v3")
e(f"v_add_u32 v3, {ACC}, v3")
e("s_waitcnt lgkmcnt(0)")
bfaddr(4)
e("s_barrier")
stamp(12)
e(f"s_cmp_lg_u32 s{sMORE}, 0")
e("s_cbranch_scc1 L_more")
e(f"s_cmp_ge_u32 s{sW}, 6")
e("s_cbranch_scc1 L_finpos")
MR = 16; MB = 32; Y = 40; YE = 48; HU = 56; MX = 64
for c in range(2):
    for hf in range(2):
        e(f"ds_read_b128 {v(MR+8*c+4*hf,4)}, v3 offset:{c*128+hf*16}")
e.label("L_finbf")
e("v_lshl_add_u32 v4, v2, 5, v4")
for c in range(2):
    for hf in range(2):
        e(f"ds_read_b128 {v(MX+8*c+4*hf,4)}, v4 offset:{c*128+hf*16}")
e(f"v_cmp_ne_u32 vcc, 0, v{vMask}")
for d in range(4):
    e(f"v_lshlrev_b32 v{HU+2*d}, 16, v{HRES+d}")
    e(f"v_and_b32 v{HU+2*d+1}, 0xffff0000, v{HRES+d}")
for i in range(4):
    e(f"s_waitcnt lgkmcnt({3-i})")
    for d in range(4): e(f"v_add_f32 v{MR+4*i+d}, v{MR+4*i+d}, v{MX+4*i+d}")
e("s_cbranch_vccnz L_finbf_more")
for c in range(2):
    for d in range(4): e(f"v_cvt_pk_bf16_f32 v{MB+4*c+d}, v{MR+8*c+2*d}, v{MR+8*c+2*d+1}")
e(f"s_mov_b32 s60, {NLN2}")
e(f"s_mov_b32 s61, {NL2E}")
for t in range(2):
    e(f"v_mfma_f32_16x16x32_bf16 {v(Y+4*t,4)}, {v(WH2+8*t,4)}, {v(MB,4)}, 0")
    e(f"v_mfma_f32_16x16x32_bf16 {v(Y+4*t,4)}, {v(WH2+8*t+4,4)}, {v(MB+4,4)}, {v(Y+4*t,4)}")
e(f"v_cmp_gt_u32 vcc, {NB}, v1")
e(f"v_add_u32 v1, s{sN0}, v1")
e(f"s_lshl_b32 s62, s{sCHF}, 6")
e("v_lshl_add_u32 v2, v2, 4, s62")
e("v_lshl_add_u32 v1, v1, 7, v2")
e("s_nop 0")
for i in range(8): e(f"v_fma_f32 v{Y+i}, v{Y+i}, s60, v{H1+i}")
for i in range(8): e(f"v_mul_f32 v{YE+i}, s61, v{Y+i}")
for i in range(8): e(f"v_exp_f32 v{YE+i}, v{YE+i}")
for i in range(8): e(f"v_add_f32 v{YE+i}, 1.0, v{YE+i}")
for i in range(8): e(f"v_rcp_f32 v{YE+i}, v{YE+i}")
for i in range(8): e(f"v_fmac_f32 v{HU+i}, v{Y+i}, v{YE+i}")
for d in range(4): e(f"v_cvt_pk_bf16_f32 v{Y+d}, v{HU+2*d}, v{HU+2*d+1}")
e("s_mov_b64 exec, vcc")
e(f"global_store_dwordx4 v1, {v(Y,4)}, {s(sOUT,2)}")
stamp(13, last=True)
e("s_endpgm")
e.label("L_finpos")
e("s_cmp_lg_u32 s2, 0")
e("s_cbranch_scc1 L_noep")
e(f"v_mov_b32 v7, s{sTAG}")
e("s_mov_b64 exec, 1")
e(f"global_store_dword v{ZP}, v7, {s(sWS,2)}")
e("s_mov_b64 exec, -1")
e.label("L_noep")
e(f"ds_read_b64 v[16:17], v{H1}")
e.label("L_posbf")
e(f"v_add_u32 v4, v4, v{H1+1}")
e("ds_read_b64 v[18:19], v4")
e(f"v_cmp_ne_u32 vcc, 0, v{vMask}")
e("s_waitcnt lgkmcnt(0)")
e("v_add_f32 v16, v16, v18")
e("v_add_f32 v17, v17, v19")
e("s_cbranch_vccnz L_posbf_more")
e("v_and_b32 v1, 127, v0")
e("v_cmp_gt_u32 vcc, 120, v1")
e(f"s_mul_i32 s60, s{sB}, 240")
e("s_add_u32 s60, s60, 1280000")
e("v_lshl_add_u32 v1, v1, 1, s60")
e("v_add_f32 v16, v16, v17")
e(f"v_add_f32 v{vPosOwn}, v{vPosOwn}, v16")
e(f"v_cvt_pk_bf16_f32 v2, v{vPosOwn}, v{vPosOwn}")
e("s_mov_b64 exec, vcc")
e(f"global_store_short v1, v2, {s(sOUT,2)}")
stamp(13, last=True)
e("s_endpgm")
for lbl in ("mid", "dr"):
    e.label(f"L_flush_{lbl}")
    flush_slow()
    e("s_waitcnt lgkmcnt(0)")
    for i in range(32): e(f"v_mov_b32 v{AC[0]+i}, 0")
    e(f"s_mov_b32 s{sBASE}, s{sNF}")
    e(f"s_mov_b32 s{sSLOW}, 1")
    for x in rowaddr(): e(x)
    e(f"s_branch L_flret_{lbl}")
if OPT["prio"]:
    for sidx in range(4):
        p3, p2, p1 = OPT["pr"]
        e.label(f"L_prio{sidx}")
        e("s_setprio 2")
        e(f"s_cmp_gt_i32 s{sCNT}, {p2}")
        e(f"s_cbranch_scc1 L_prret{sidx}")
        e("s_setprio 1")
        e(f"s_cmp_gt_i32 s{sCNT}, {p1}")
        e(f"s_cbranch_scc1 L_prret{sidx}")
        e("s_setprio 0")
        e(f"s_branch L_prret{sidx}")
e.label("L_slow_final")
flush_slow()
e("s_branch L_b6")
e.label("L_finbf_more")
bfaddr(4)
e("s_branch L_finbf")
e.label("L_posbf_more")
bfaddr(4)
e("s_branch L_posbf")
e.label("L_hi2")
for p in range(4): e(f"v_alignbit_b32 v{SEG+p}, v{PL+4*p+2}, v{PL+4*p+1}, s3")
e("s_branch L_segs")
for p in range(4):
    e.label(f"L_bx{p}")
    e(f"v_xor_b32 v{RB+4*p}, s{sTAGR}, v{RB+4*p}")
    e(f"v_xor_b32 v{RB+4*p+2}, s{sTAGR}, v{RB+4*p+2}")
    e(f"v_or3_b32 v5, v5, v{RB+4*p}, v{RB+4*p+2}")
    e(f"s_branch L_bxr{p}")
    e.label(f"L_ba{p}")
    e(f"ds_add_rtn_u32 v{KB+2*p}, v{RB+4*p}, v13 offset:{CNT2}")
    e(f"s_mov_b64 exec, {s(mk(1,p,1),2)}")
    e(f"ds_add_rtn_u32 v{KB+2*p+1}, v{RB+4*p+2}, v13 offset:{CNT2}")
    e(f"s_branch L_bar{p}")
    e.label(f"L_bl{p}")
    e(f"ds_read_b32 v{LK+8+2*p}, v{RB+4*p} offset:{BASE2}")
    e(f"ds_read_b32 v{LK+9+2*p}, v{RB+4*p+2} offset:{BASE2}")
    e(f"s_branch L_blr{p}")
    e.label(f"L_bw{p}")
    e(f"v_add_u32 v7, v{LK+8+2*p}, v{KB+2*p}")
    e(f"v_add_u32 v8, v{LK+9+2*p}, v{KB+2*p+1}")
    e(f"ds_write_b64 v7, {v(RB+4*p,2)} offset:{SORT2}")
    e(f"s_mov_b64 exec, {s(mk(1,p,1),2)}")
    e(f"ds_write_b64 v8, {v(RB+4*p+2,2)} offset:{SORT2}")
    e(f"s_branch L_bwr{p}")
e.label("L_stale")
e(f"s_cmp_eq_u32 s{sBUD}, 0")
e("s_cbranch_scc1 L_gotrec")
e(f"s_sub_u32 s{sBUD}, s{sBUD}, 1")
presets()
e("s_branch L_fetch")
e.label("L_pad0")
e("v_mov_b32 v8, v1")
e("v_mov_b32 v9, 10000")
e("s_mov_b64 exec, vcc")
e.label("L_pad")
e("v_add_u32 v7, v6, v2")
e("v_add_u32 v2, 8, v2")
e(f"ds_write_b64 v7, v[8:9] offset:{SORT2}")
e("v_cmp_lt_u32 vcc, v2, v4")
e("s_and_b64 exec, vcc, vcc")
e("s_cbranch_scc1 L_pad")
e("s_mov_b64 exec, -1")
e("s_branch L_nopad")
e.label("L_more")
e("s_waitcnt vmcnt(0)")
e(f"s_add_u32 s{sR0}, s{sR0}, s{sS}")
e(f"s_mov_b32 s{sS}, 256")
e.label("L_batch")
batchsetup(True)
e("s_branch L_fetch")
e.label("L_redo")
e(f"s_cmp_eq_u32 s{sS}, {SFALL}")
e("s_cbranch_scc1 L_end")
e("s_waitcnt vmcnt(0) lgkmcnt(0)")
e("s_barrier")
e(f"ds_write_b32 v1, v{ZP} offset:{CNT2}")
e(f"s_mov_b32 s{sS}, {SFALL}")
e("s_waitcnt lgkmcnt(0)")
e("s_barrier")
e("s_branch L_batch")
e.label("L_end")
e("s_endpgm")

probs = check_cfg(e.lines)
for p in probs: print("HAZARD", p, file=sys.stderr)

ref = open("cdna_kernels/" + KN + ".s.ref").read().split("\n")
hdr = []
for l in ref:
    if l.startswith("; Override launch"): break
    hdr.append(l)
out = "\n".join(hdr) + f"""
; One persistent launch: 250 workgroups (one per CU) bin the edges by destination bucket, hand the bins
; over through d_ws (tagged with a per-launch epoch), then each workgroup updates its 40 nodes.
; @launch grid=({NWG},1,1) block=(512,1,1) lds={LDS_SIZE}
.amdgcn_target "amdgcn-amd-amdhsa--gfx950"
.text
.globl {KN}_kernel
.p2align 8
.type {KN}_kernel,@function
{KN}_kernel:
{e.text()}.section .rodata,"a"
.p2align 6
.amdhsa_kernel {KN}_kernel
  .amdhsa_next_free_vgpr 256
  .amdhsa_next_free_sgpr 102
  .amdhsa_accum_offset 256
  .amdhsa_group_segment_fixed_size 0
  .amdhsa_kernarg_size 88
  .amdhsa_user_sgpr_count 2
  .amdhsa_user_sgpr_kernarg_segment_ptr 1
  .amdhsa_system_sgpr_workgroup_id_x 1
  .amdhsa_float_denorm_mode_32 3
.end_amdhsa_kernel
"""
open(sys.argv[1], "w").write(out)
print("wrote", sys.argv[1], len(e.lines), "lines;", len(probs), "hazards", file=sys.stderr)
```

```python
import sys, struct
from asmlib import Emit, v, s, check_cfg

KN = "standalone__cheap_equivariant_egnn__graph"
OPT = dict(stamps=False, prio=True, posat="poll", touch=False, x="", ackwait=True, place="burst", lut=0, pr=(5,2,0), pk=True, bpf=True)
for a in sys.argv[2:]:
    k, _, val = a.partition("=")
    try: OPT[k] = eval(val) if val else True
    except Exception: OPT[k] = val

def fbits(x): return struct.unpack("<I", struct.pack("<f", x))[0]
LOG2E = 1.4426950408889634; LN2 = 0.6931471805599453
NL2E = hex(fbits(-LOG2E)); NLN2 = hex(fbits(-LN2))

NWG = 250; CH = 2560; NB = 40
CNT1 = 0x0; OFF1 = 0x400; CNT2 = 0x800; LNK = 0x900; BASE2 = 0xA00; PD = 0xB00; WXT = 0xE00
POS = 0xF00; SORT2 = POS + 61440; CAPB = 3072 * 8
R1 = SORT2 + CAPB + 512; R2 = R1 + 8192; ACC = R2 + 32768; ACCS = 304
BF = ACC + NB * ACCS; AT = BF + 8 * ACCS; ATS = 104; HB = AT + 64 * ATS; WL = HB + 6144; WXL = WL + 256; LDS_END = WXL + 128
STG = R2; WE = SORT2; WH = SORT2 + 16384
OOB = 0x100000
LDS_SIZE = 163840
assert LDS_END <= LDS_SIZE and WH + 16384 <= R2 and R2 % 64 == 0 and WE % 128 == 0 and HB % 128 == 0
PADB = 32 * 8; SFALL = 48
WS_FLAG = 0x1000; WS_OFF = 0x10000; WS_BP = 0x100000; WS_REC = 0x300000; WS_STAMP = 0x1000000
TAGC = 0x9E3779B1
sH, sPOS, sE, sSRC, sDST, sWE, sWX, sWH, sOUT, sDBG, sWS = 4, 6, 8, 10, 12, 14, 16, 18, 20, 22, 24
sW, sB = 26, 27
srdBP, srdPOS, srdH = 28, 32, 36
sTAG, sTAGR, sBUD, sR0, sS, sN0, sNG, sCHF = 40, 41, 42, 43, 44, 45, 46, 47
sOHC, sNFW, sNLW, sCNT, sBASE, sNF, sNL, sNEG, sMORE, sVAL = 48, 50, 51, 52, 53, 54, 55, 56, 57, 58
sONCE = 17
sSLOW = 16
sMK = 64
sRB = 8
T = [16, 32]; E = [48, 64]; AC = [80, 96]; M = [112, 116]; G = [120, 128, 136, 144]; S = [152, 156, 160, 164]
R1OP = 168; WX = 172; I0 = 176; I1 = 180; ONE = 184; IDX = 186
aIdx, aRec, aR1r, aS0, aS1, aR1w, aR2b, aR2, aATb, aAT = 188, 189, 190, 191, 192, 193, 194, 195, 196, 197
vRowM, vRowP = 198, 199
REC = 200; R2V = 204; PS = 206; PDV = 210; BT = 213; ZP = 216; vIdxL = 218; vPosOwn = 219
SEG = 220; vMask = 224; vWxa = 225; H1 = 226; HRES = 234; WH2 = 238; vLane = 254; vAItem = 255
L = vLane

e = Emit()
def stamp(i, last=False):
    if OPT.get("diag") is not None:
        if i == 0:
            e("s_memrealtime s[98:99]")
            e("s_waitcnt lgkmcnt(0)")
            e("s_mov_b32 s100, s98")
            e("s_mov_b32 s101, s98")
        elif i == OPT["diag"]:
            e("s_memrealtime s[98:99]")
            e("s_waitcnt lgkmcnt(0)")
            e("s_mov_b32 s101, s98")
        if last:
            stamp.n = getattr(stamp, "n", 0) + 1
            e("s_sub_u32 s101, s101, s100")
            e("s_lshl_b32 s101, s101, 2")
            e("s_add_u32 s101, s101, 3000")
            e.label(f"L_spin{stamp.n}")
            e("s_memrealtime s[98:99]")
            e("s_waitcnt lgkmcnt(0)")
            e("s_sub_u32 s98, s98, s100")
            e("s_cmp_lt_u32 s98, s101")
            e(f"s_cbranch_scc1 L_spin{stamp.n}")
        return
    if not OPT["stamps"]: return
    if i > 0:
        e("s_mov_b32 m0, s101")
        e("v_writelane_b32 v15, s98, m0")
        e("v_writelane_b32 v14, s22, m0")
    e("s_memrealtime s[98:99]")
    if i > 0: e("s_memtime s[22:23]")
    e(f"s_mov_b32 s101, {i}")
    if i in (6, 7, 9): e(f"v_writelane_b32 v15, s{sBUD}, {16+i}")
    if i == 10: e(f"v_writelane_b32 v15, s{sCNT}, 26")
    if last:
        e("s_mov_b64 exec, -1")
        e("s_waitcnt lgkmcnt(0)")
        e(f"v_writelane_b32 v15, s98, {i}")
        e(f"v_writelane_b32 v14, s22, {i}")
        e("s_lshl_b32 s100, s2, 3")
        e(f"s_add_u32 s100, s100, s{sW}")
        e("s_lshl_b32 s100, s100, 7")
        e(f"s_add_u32 s100, s100, {WS_STAMP}")
        e(f"v_lshl_add_u32 v13, v{L}, 2, s100")
        e("s_mov_b32 exec_hi, 0")
        e(f"global_store_dword v13, v15, {s(sWS,2)}")
        e("v_add_u32 v13, 0x100000, v13")
        e(f"global_store_dword v13, v14, {s(sWS,2)}")

def scan(r, fill=()):
    fill = list(fill)
    for m in ("row_shr:1 row_mask:0xf bank_mask:0xf bound_ctrl:1", "row_shr:2 row_mask:0xf bank_mask:0xf bound_ctrl:1",
              "row_shr:4 row_mask:0xf bank_mask:0xf bound_ctrl:1", "row_shr:8 row_mask:0xf bank_mask:0xf bound_ctrl:1",
              "row_bcast:15 row_mask:0xa bank_mask:0xf", "row_bcast:31 row_mask:0xc bank_mask:0xf"):
        if len(fill) >= 2:
            e(fill.pop(0)); e(fill.pop(0))
        else: e("s_nop 1")
        e(f"v_add_u32_dpp v{r}, v{r}, v{r} {m}")
    assert not fill

SD = "dst_sel:DWORD dst_unused:UNUSED_PAD"

def posdma(lo=0, hi=8):
    e(f"s_lshl_b32 s96, s{sW}, 10")
    for i in range(lo, hi):
        if i == 7:
            e(f"s_cmp_ge_u32 s{sW}, 4")
            e("s_cbranch_scc1 L_nop8")
        e(f"s_add_u32 m0, s96, {POS+i*8192}")
        e(f"s_mov_b32 s97, {i*8192}")
        e(f"buffer_load_dwordx4 v12, {s(srdPOS,4)}, s97 offen lds")
    if hi == 8: e.label("L_nop8")

DSTR = 16; SRCR = 24; ER = 32; XW = 36; B4 = 48; RK = 56
WA0 = 64; WA1 = 65; WA2 = 66; HA = 67; CA0 = 68; PBA = 69; TCH = 70; HF = 72
WT = 80; DT = 112; W1T = 128; aWH = 144; aWT = 148
stamp(0)
e.label("L_entry")
e(f"s_cmp_ge_u32 s2, {NWG}")
e("s_cbranch_scc1 L_end")
e("s_load_dwordx16 s[4:19], s[0:1], 0")
e("s_load_dwordx4 s[20:23], s[0:1], 64")
e("s_load_dwordx2 s[24:25], s[0:1], 80")
e(f"s_mul_i32 s3, s2, {CH*4}")
e("v_lshl_add_u32 v1, v0, 4, s3")
e(f"s_add_u32 s60, s3, 8192")
e("v_lshl_add_u32 v2, v0, 2, s60")
e("s_lshr_b32 s3, s3, 1")
e("v_lshl_add_u32 v3, v0, 3, s3")
e("s_add_u32 s60, s3, 4096")
e("v_lshl_add_u32 v4, v0, 1, s60")
e("v_lshrrev_b32 v5, 6, v0")
e(f"v_and_b32 v{L}, 63, v0")
e(f"v_readfirstlane_b32 s{sW}, v5")
e(f"v_mov_b32 v{ZP}, 0")
e(f"v_mov_b32 v{ZP+1}, 0")
e("v_lshlrev_b32 v12, 4, v0")
e("v_lshlrev_b32 v5, 3, v0")
e(f"ds_write_b64 v5, {v(ZP,2)}")
e("s_and_b32 s60, s2, 7")
e(f"s_mul_i32 s{sB}, s60, 31")
e("s_min_u32 s60, s60, 2")
e(f"s_add_u32 s{sB}, s{sB}, s60")
e("s_lshr_b32 s96, s2, 3")
e(f"s_add_u32 s{sB}, s{sB}, s96")
e(f"s_mul_i32 s{sN0}, s{sB}, {NB}")
e(f"v_and_b32 v5, 16, v{L}")
e("v_and_b32 v6, 64, v0")
e("v_lshl_or_b32 v5, v5, 1, v6")
e(f"v_xor_b32 v{WA0}, v5, v12")
e(f"v_add_u32 v{WA1}, 8192, v{WA0}")
e(f"v_lshlrev_b32 v5, 1, v{L}")
e(f"s_lshl_b32 s60, s{sN0}, 7")
e("v_and_b32 v5, 0x70, v5")
e(f"v_xad_u32 v{HA}, v5, v12, s60")
e(f"s_lshl_b32 s60, s{sW}, 10")
e(f"s_add_u32 m0, s60, {WE+8192}")
e("s_waitcnt lgkmcnt(0)")
e(f"global_load_dwordx4 {v(DSTR,4)}, v1, {s(sDST,2)}")
e(f"global_load_dword v{DSTR+4}, v2, {s(sDST,2)}")
e(f"s_mov_b32 s{srdH}, s{sH}")
e(f"s_and_b32 s{srdH+1}, s{sH+1}, 0xffff")
e(f"s_mov_b32 s{srdH+2}, 1280000")
e(f"s_mov_b32 s{srdH+3}, 0x20000")
e(f"s_mov_b32 s{srdPOS}, s{sPOS}")
e(f"s_and_b32 s{srdPOS+1}, s{sPOS+1}, 0xffff")
e(f"s_mov_b32 s{srdPOS+2}, 60000")
e(f"s_mov_b32 s{srdPOS+3}, 0x20000")
e(f"s_cmp_ge_u32 s{sW}, 6")
e(f"global_load_lds_dwordx4 v{WA1}, {s(sWE,2)}")
e("s_cbranch_scc1 L_d67")
e(f"s_add_u32 m0, s60, {HB}")
e("s_nop 0")
e(f"buffer_load_dwordx4 v{HA}, {s(srdH,4)}, 0 offen lds")
e.label("L_ddone")
e("s_barrier")
e(f"global_load_dwordx4 {v(SRCR,4)}, v1, {s(sSRC,2)}")
e(f"global_load_dword v{SRCR+4}, v2, {s(sSRC,2)}")
e(f"global_load_dwordx2 {v(ER,2)}, v3, {s(sE,2)}")
e(f"global_load_short_d16_hi v{ER+2}, v4, {s(sE,2)}")
e(f"global_load_dword v71, v{ZP}, {s(sWS,2)}")
NPW = 1 if OPT.get("prew") else 0
if NPW:
    e("s_lshl_b32 s61, s2, 10")
    e(f"s_lshr_b32 s62, s60, 3")
    e("s_add_u32 s61, s61, s62")
    e(f"s_add_u32 s61, s61, {WS_OFF}")
    e(f"v_lshl_add_u32 v5, v{L}, 3, s61")
    e("s_mov_b64 exec, 0xffff")
    e(f"global_store_dwordx2 v5, {v(ZP,2)}, {s(sWS,2)} sc1")
    e("s_mov_b64 exec, -1")
stamp(1)
if OPT["touch"]:
    e(f"s_cmp_eq_u32 s{sW}, 3")
    e("s_cbranch_scc0 L_t45")
    e("s_lshl_b32 s61, s96, 11")
    e(f"v_lshl_add_u32 v5, v{L}, 7, s61")
    e("s_mov_b64 exec, 0xffff")
    e(f"buffer_load_dword v{TCH}, v5, {s(srdPOS,4)}, 0 offen")
    e("s_mov_b64 exec, -1")
    e.label("L_t45")
    e(f"s_and_b32 s61, s{sW}, 6")
    e("s_cmp_eq_u32 s61, 4")
    e("s_cbranch_scc0 L_tdone")
    e("s_getpc_b64 s[62:63]")
    e.label("L_pc")
    e("v_and_b32 v5, 127, v0")
    e("v_lshlrev_b32 v5, 7, v5")
    e("v_min_u32 v5, L_end-L_pc, v5")
    e(f"global_load_dword v{TCH}, v5, s[62:63]")
    e.label("L_tdone")
e(f"s_mul_i32 s{sCHF}, s{sW}, 86")
e(f"s_lshr_b32 s{sCHF}, s{sCHF}, 8")
e(f"s_mul_i32 s61, s{sCHF}, 3")
e(f"s_sub_u32 s{sNG}, s{sW}, s61")
e(f"s_and_b32 s61, s{sW}, 3")
e("s_lshl_b32 s61, s61, 1")
e(f"s_lshr_b32 s62, s{sW}, 2")
e("s_add_u32 s61, s61, s62")
e("s_lshl_b32 s61, s61, 8")
e("s_add_u32 s61, s61, 8192")
e(f"v_and_b32 v5, 0x70, v{WA0}")
e(f"v_bfe_u32 v6, v{L}, 3, 2")
e("v_lshl_add_u32 v5, v6, 11, v5")
e(f"v_lshrrev_b32 v6, 5, v{L}")
e("v_lshl_add_u32 v5, v6, 7, v5")
e(f"v_add_u32 v{WA2}, s61, v5")
e(f"v_and_b32 v1, 15, v{L}")
e(f"v_lshrrev_b32 v3, 4, v{L}")
e(f"s_lshl_b32 s61, s{sNG}, 11")
e(f"s_add_u32 s61, s61, {HB}")
e(f"v_and_b32 v2, 7, v{L}")
e("v_xor_b32 v2, v2, v3")
e("v_lshl_add_u32 v4, v1, 7, s61")
e(f"v_lshl_add_u32 v{aWH+1}, v2, 4, v4")
e(f"v_xor_b32 v{aWH+2}, 64, v{aWH+1}")
e(f"v_bfe_u32 v6, v{L}, 2, 2")
e(f"v_and_b32 v2, 3, v{L}")
e("v_lshl_add_u32 v4, v3, 3, v6")
e(f"v_lshlrev_b32 v7, 2, v{L}")
e("v_and_b32 v7, 0x60, v7")
e(f"s_xor_b32 s61, s{sCHF}, 1")
e("s_lshl_b32 s61, s61, 13")
e(f"s_add_u32 s61, s61, {WE}")
e("v_lshl_add_u32 v5, v4, 7, s61")
e("v_lshl_add_u32 v5, v2, 3, v5")
e(f"v_xor_b32 v{aWT}, v7, v5")
for t in range(1, 4): e(f"v_xor_b32 v{aWT+t}, {32*t}, v{aWT}")
e(f"s_lshl_b32 s61, s{sCHF}, 6")
e(f"s_add_u32 s61, s61, {WH}")
e("v_lshl_add_u32 v6, v2, 4, s61")
e("v_lshl_add_u32 v5, v4, 7, v6")
e(f"v_xor_b32 v{aWH}, v7, v5")
e(f"s_lshl_b32 s61, s{sNG}, 4")
e(f"s_add_u32 s61, s61, s{sN0}")
e("s_lshl_b32 s61, s61, 7")
e(f"s_add_u32 s61, s61, {WS_BP}")
e("v_lshl_add_u32 v2, v3, 9, s61")
e(f"v_lshl_add_u32 v{aWH+3}, v1, 3, v2")
e("v_mov_b32 v13, 8")
e("s_mov_b32 s61, 52429")
e("s_movk_i32 s62, -40")
e(f"s_waitcnt vmcnt({7+NPW})")
if OPT["stamps"]: e("s_waitcnt lgkmcnt(0)")
stamp(14)
for i in range(5): e(f"v_mul_u32_u24 v{B4+i}, s61, v{DSTR+i}")
for i in range(5): e(f"v_lshrrev_b32 v{B4+i}, 21, v{B4+i}")
for i in range(5):
    e(f"v_lshlrev_b32 v{B4+i}, 2, v{B4+i}")
    e(f"ds_add_rtn_u32 v{RK+i}, v{B4+i}, v13 offset:{CNT1}")
e(f"v_lshlrev_b32 v1, 4, v{L}")
e(f"s_waitcnt vmcnt({5+NPW}) lgkmcnt(0)")
e("s_barrier")
stamp(2)
e(f"ds_read_b128 v[4:7], v1 offset:{CNT1}")
def nodeprod_reads():
    e(f"ds_read_b128 {v(HF,4)}, v{aWH+1}")
    e(f"ds_read_b128 {v(HF+4,4)}, v{aWH+2}")
    for t in range(4):
        for ks in range(2):
            for rd in range(2):
                e(f"ds_read_b64_tr_b16 {v(WT+8*t+4*ks+2*rd,2)}, v{aWT+t} offset:{ks*4096+rd*512}")
def nodeprod():
    e(f"s_mov_b32 s61, {NL2E}")
    for t in range(4):
        e(f"v_mfma_f32_16x16x32_bf16 {v(DT+4*t,4)}, {v(HF,4)}, {v(WT+8*t,4)}, 0")
        e(f"v_mfma_f32_16x16x32_bf16 {v(DT+4*t,4)}, {v(HF+4,4)}, {v(WT+8*t+4,4)}, {v(DT+4*t,4)}")
    e("s_nop 1")
    for i in range(16): e(f"v_mul_f32 v{DT+i}, s61, v{DT+i}")
for base, a, ptr in ((WE, WA0, sWE), (WH, WA0, sWH), (WH+8192, WA2, sWH)):
    e(f"s_add_u32 m0, s60, {base}")
    e("s_nop 0")
    e(f"global_load_lds_dwordx4 v{a}, {s(ptr,2)}")
e("s_waitcnt lgkmcnt(0)")
e(f"s_cmp_ge_u32 s{sW}, 3")
e("s_cbranch_scc1 L_nobr")
nodeprod_reads()
e.label("L_nobr")
e("v_add_u32 v5, v4, v5")
e("v_add_u32 v6, v5, v6")
e("v_add_u32 v7, v6, v7")
e("v_mov_b32 v3, v7")
fill = [f"v_lshlrev_b32 v{XW+2*i}, 2, v{DSTR+i}" for i in range(5)] + \
       [f"v_mad_i32_i24 v{XW+2*i}, v{B4+i}, s62, v{XW+2*i}" for i in range(5)] + \
       [f"v_add_u32 v{RK+i}, {STG}, v{RK+i}" for i in range(5)]
scan(3, fill[:12])
e("v_sub_u32 v8, v3, v7")
e("v_add_u32 v9, v8, v4")
e("v_add_u32 v10, v8, v5")
e("v_add_u32 v11, v8, v6")
e(f"ds_write_b128 v1, v[8:11] offset:{OFF1}")
for i in range(5): e(f"ds_read_b32 v{B4+i}, v{B4+i} offset:{OFF1}")
for x in fill[12:]: e(x)
PB = 20
e(f"v_lshl_or_b32 v{PB}, v9, 16, v8")
e(f"v_lshl_or_b32 v{PB+1}, v11, 16, v10")
e(f"v_mov_b32 v{PB+2}, v3")
e("s_mov_b32 s63, 0xffff0000")
e("s_cbranch_scc1 L_nobp")
e("s_waitcnt lgkmcnt(6)")
nodeprod()
for r in range(4):
    e(f"v_cvt_pk_bf16_f32 v{WT+2*r}, v{DT+r}, v{DT+4+r}")
    e(f"v_cvt_pk_bf16_f32 v{WT+2*r+1}, v{DT+8+r}, v{DT+12+r}")
e(f"s_cmp_eq_u32 s{sNG}, 2")
e("s_cselect_b32 exec_hi, 0, -1")
for r in range(4): e(f"global_store_dwordx2 v{aWH+3}, {v(WT+2*r,2)}, {s(sWS,2)} offset:{r*128} sc1")
e("s_mov_b64 exec, -1")
e(f"s_waitcnt vmcnt({8+NPW})")
e("s_branch L_bpdone")
e.label("L_nobp")
e(f"s_waitcnt vmcnt({4+NPW})")
e.label("L_bpdone")
e(f"v_lshl_or_b32 v{XW+1}, v{ER}, 16, v{SRCR}")
e(f"v_and_or_b32 v{XW+3}, v{ER}, s63, v{SRCR+1}")
e(f"v_lshl_or_b32 v{XW+5}, v{ER+1}, 16, v{SRCR+2}")
e(f"v_and_or_b32 v{XW+7}, v{ER+1}, s63, v{SRCR+3}")
e(f"v_or_b32 v{XW+9}, v{ER+2}, v{SRCR+4}")
for i in range(5):
    e("s_waitcnt lgkmcnt(4)")
    e(f"v_add_u32 v{B4+i}, v{B4+i}, v{RK+i}")
    e(f"ds_write_b64 v{B4+i}, {v(XW+2*i,2)}")
e(f"s_mul_i32 s60, s2, {CH*8}")
e(f"s_add_u32 s60, s60, {WS_REC}")
e("v_add_u32 v2, s60, v12")
e("v_add_u32 v3, 8192, v2")
e("v_add_u32 v4, 16384, v2")
e(f"v_add_u32 v5, {STG}, v12")
e(f"s_lshl_b32 s60, s2, 10")
e(f"s_add_u32 s60, s60, {WS_OFF}")
e(f"v_add_u32 v{PBA}, s60, v1")
e(f"s_lshl_b32 s60, s{sW}, 3")
e("s_lshl_b64 s[62:63], 0xff, s60")
e(f"s_cmp_ge_u32 s{sW}, 3")
e("s_cbranch_scc1 L_tw3")
e(f"s_waitcnt vmcnt({7+NPW})")
e("s_branch L_tw")
e.label("L_tw3")
e(f"s_waitcnt vmcnt({3+NPW})")
e.label("L_tw")
e(f"v_add_u32 v{PB+3}, {TAGC}, v71")
e(f"v_and_b32 v71, 0xffffff00, v{PB+3}")
e(f"s_cmp_ge_u32 s{sW}, 4")
e(f"v_readfirstlane_b32 s{sTAG}, v{PB+3}")
e(f"v_readfirstlane_b32 s{sTAGR}, v71")
e("s_waitcnt lgkmcnt(0)")
e("s_barrier")
stamp(3)
ST = 48
for i in range(3): e(f"ds_read_b128 {v(ST+4*i,4)}, v5 offset:{i*8192}")
for i in range(4): e(f"v_mov_b32 v{8+i}, 0")
def tagit(r):
    e(f"v_or_b32 v{r}, v71, v{r}")
    e(f"v_or_b32 v{r+2}, v71, v{r+2}")
e("s_waitcnt lgkmcnt(2)")
tagit(ST)
e(f"global_store_dwordx4 v2, {v(ST,4)}, {s(sWS,2)} sc1")
e("s_waitcnt lgkmcnt(1)")
tagit(ST+4)
e(f"global_store_dwordx4 v3, {v(ST+4,4)}, {s(sWS,2)} sc1")
e("s_cbranch_scc1 L_no3")
e("s_waitcnt lgkmcnt(0)")
tagit(ST+8)
e(f"global_store_dwordx4 v4, {v(ST+8,4)}, {s(sWS,2)} sc1")
e("s_waitcnt vmcnt(3)")
e("s_branch L_st3")
e.label("L_no3")
e("s_waitcnt vmcnt(2)")
e.label("L_st3")
e("s_barrier")
e("s_mov_b64 exec, s[62:63]")
e(f"global_store_dwordx4 v{PBA}, {v(PB,4)}, {s(sWS,2)} sc1")
e("s_mov_b64 exec, -1")
if OPT["stamps"]: e("s_waitcnt lgkmcnt(0)")
stamp(15)
e(f"s_cmp_lg_u32 s2, {NWG-1}")
e("s_cbranch_scc1 L_nodummy")
e(f"v_mov_b32 v6, {WS_REC + NWG*CH*8}")
e(f"v_mov_b32 v7, s{sTAGR}")
e(f"global_store_dword v6, v7, {s(sWS,2)} sc1")
e.label("L_nodummy")
if OPT["posat"] == "window": posdma()
assert R2 + 6*8192 >= AT and R2 + 5*8192 <= AT
for i in range(5): e(f"ds_write_b128 v5, v[8:11] offset:{i*8192}")
e(f"v_cmp_gt_u32 vcc, {(AT - R2 - 5*8192)//16}, v0")
e("s_mov_b64 exec, vcc")
e(f"ds_write_b128 v5, v[8:11] offset:{5*8192}")
e("s_mov_b64 exec, -1")
PA4 = 16; PL = 32
e("v_lshrrev_b32 v1, 3, v0")
e(f"s_lshr_b32 s60, s{sB}, 2")
e("s_lshl_b32 s60, s60, 4")
e(f"s_add_u32 s60, s60, {WS_OFF}")
e(f"v_lshl_add_u32 v{PA4}, v1, 10, s60")
e(f"v_add_u32 v{PA4+1}, {64*1024}, v{PA4}")
e(f"v_add_u32 v{PA4+2}, {128*1024}, v{PA4}")
e("v_add_u32 v1, 192, v1")
e(f"v_min_u32 v1, {NWG-1}, v1")
e(f"v_lshl_add_u32 v{PA4+3}, v1, 10, s60")
e(f"s_mov_b32 s{sBUD}, 200000")
def poll_loads():
    for p in range(4): e(f"global_load_dwordx4 {v(PL+4*p,4)}, v{PA4+p}, {s(sWS,2)} sc1")
e(f"v_lshrrev_b32 v1, 5, v{L}")
e(f"v_and_b32 v6, 31, v{L}")
e("v_and_b32 v7, 3, v6")
e("v_lshrrev_b32 v13, 3, v6")
e("v_lshlrev_b32 v13, 2, v13")
e("v_lshl_add_u32 v7, v7, 4, v13")
e("v_bfe_u32 v13, v6, 2, 1")
e("v_add_u32 v7, v7, v13")
e("v_lshl_add_u32 v7, v1, 1, v7")
e(f"v_lshlrev_b32 v{CA0}, 1, v7")
e(f"v_add_u32 v{CA0}, {WL}, v{CA0}")
e(f"v_mul_u32_u24 v{aATb}, {ATS}, v7")
e(f"v_add_u32 v{aATb}, {AT}, v{aATb}")
e(f"ds_read_u16_d16_hi v{WX}, v{CA0}")
e(f"ds_read_u16_d16_hi v{WX+1}, v{CA0} offset:128")
e(f"s_cmp_ge_u32 s{sW}, 6")
e("s_cbranch_scc1 L_w67")
e(f"s_cmp_ge_u32 s{sW}, 3")
e("s_cbranch_scc1 L_w345")
for i in range(4): e(f"v_mov_b32 v{HRES+i}, v{HF+i}")
e("s_branch L_wdone")
e.label("L_d67")
e(f"v_lshlrev_b32 v5, 4, v{L}")
e(f"s_cmp_eq_u32 s{sW}, 7")
e("s_cbranch_scc1 L_d7")
e(f"s_mov_b32 m0, {WL}")
e("v_add_u32 v5, 16384, v5")
e("s_mov_b64 exec, 0xffff")
e(f"global_load_lds_dwordx4 v5, {s(sWE,2)}")
e("s_mov_b64 exec, -1")
e("s_branch L_ddone")
e.label("L_d7")
e(f"s_mov_b32 m0, {WXL}")
e("s_mov_b64 exec, 0xff")
e(f"global_load_lds_dwordx4 v5, {s(sWX,2)}")
e("s_mov_b64 exec, -1")
e("s_branch L_ddone")
e.label("L_w345")
nodeprod_reads()
e(f"v_and_b32 v1, 15, v{L}")
e(f"v_lshrrev_b32 v3, 4, v{L}")
e(f"s_lshl_b32 s60, s{sNG}, 5")
e(f"s_add_u32 s60, s60, {AT}")
e("v_lshl_add_u32 v2, v3, 3, s60")
e(f"v_mul_u32_u24 v1, {ATS}, v1")
e("v_add_u32 v2, v1, v2")
e("s_waitcnt lgkmcnt(0)")
nodeprod()
for t in range(4):
    e(f"v_cvt_pk_bf16_f32 v{WT+2*t}, v{DT+4*t}, v{DT+4*t+1}")
    e(f"v_cvt_pk_bf16_f32 v{WT+2*t+1}, v{DT+4*t+2}, v{DT+4*t+3}")
for i in range(4): e(f"v_mov_b32 v{HRES+i}, v{HF+4+i}")
for t in range(4): e(f"ds_write_b64 v2, {v(WT+2*t,2)} offset:{t*16*ATS}")
e("s_branch L_wdone")
e.label("L_w67")
e(f"ds_read_u16_d16_hi v4, v{CA0} offset:256")
e("v_and_b32 v7, 127, v0")
e(f"v_min_u32 v7, 119, v7")
e(f"s_mul_i32 s60, s{sB}, 240")
e(f"v_lshl_add_u32 v1, v7, 1, s60")
e(f"global_load_short_d16_hi v{vPosOwn}, v1, {s(sPOS,2)}")
e(f"v_mul_u32_u24 v1, 171, v7")
e("v_lshrrev_b32 v1, 9, v1")
e(f"v_mad_i32_i24 v2, v1, -3, v7")
e(f"v_lshlrev_b32 v{H1+2}, 2, v1")
e(f"v_lshl_add_u32 v{H1+3}, v2, 8, v{H1+2}")
e(f"v_lshlrev_b32 v{H1+1}, 3, v2")
e(f"v_add_u32 v{H1+1}, 256, v{H1+1}")
e(f"v_mul_u32_u24 v1, {ACCS}, v1")
e(f"v_add_u32 v1, {ACC}, v1")
e(f"v_add_u32 v{H1}, v1, v{H1+1}")
e(f"v_bfe_u32 v1, v{L}, 2, 1")
e(f"v_lshrrev_b32 v2, 3, v{L}")
e(f"v_and_b32 v3, 3, v{L}")
e("v_lshl_add_u32 v2, v2, 2, v3")
e("v_lshl_add_u32 v2, v1, 5, v2")
e("v_lshlrev_b32 v2, 2, v2")
e("s_waitcnt lgkmcnt(0)")
e(f"v_mul_f32 v4, {NLN2}, v4")
e(f"ds_write_b32 v2, v4 offset:{WXT}")
e.label("L_wdone")
if OPT["stamps"]: e("s_waitcnt lgkmcnt(0)")
stamp(4)
def laneconsts():
    e(f"s_add_u32 s{srdBP}, s{sWS}, {WS_BP}")
    e(f"s_addc_u32 s{srdBP+1}, s{sWS+1}, 0")
    e(f"s_and_b32 s{srdBP+1}, s{srdBP+1}, 0xffff")
    e(f"s_or_b32 s{srdBP+1}, s{srdBP+1}, 0x800000")
    e(f"s_mov_b32 s{srdBP+2}, 10000")
    e(f"s_mov_b32 s{srdBP+3}, 0x20000")
    e(f"s_mov_b32 s{sR0}, 0")
    e(f"s_mov_b32 s{sS}, 256")
    e(f"s_mov_b32 s{sOHC}, 0x3f80")
    e(f"s_mov_b32 s{sOHC+1}, 0")
    e(f"v_lshrrev_b32 v1, 5, v{L}")
    e(f"v_and_b32 v2, 1, v{L}")
    e(f"v_lshlrev_b32 v{vWxa}, 7, v1")
    e(f"v_lshlrev_b32 v3, 5, v1")
    e(f"v_lshl_add_u32 v{IDX+1}, v2, 4, v3")
    e(f"v_bfe_u32 v4, v{L}, 3, 2")
    e(f"v_bfe_u32 v5, v{L}, 1, 1")
    e("v_lshl_add_u32 v4, v4, 1, v5")
    e(f"v_bfe_u32 v5, v{L}, 2, 1")
    e("v_lshl_add_u32 v4, v5, 3, v4")
    e(f"v_lshlrev_b32 v{vIdxL}, 3, v4")
    e(f"s_lshl_b32 s60, s{sW}, 10")
    e(f"s_add_u32 s60, s60, {R1}")
    e(f"v_lshl_add_u32 v{aR1r}, v4, 4, s60")
    e("v_xor_b32 v5, v1, v2")
    e(f"v_lshl_add_u32 v{aR1r}, v5, 20, v{aR1r}")
    e(f"v_lshl_add_u32 v{aR1w}, v{L}, 4, s60")
    e(f"s_lshl_b32 s60, s{sW}, 12")
    e(f"s_add_u32 s60, s60, {R2}")
    e(f"v_bfe_u32 v3, v{L}, 1, 3")
    e(f"v_lshl_add_u32 v4, v{L}, 6, s60")
    e(f"v_lshl_add_u32 v{aR2b}, v3, 3, v4")
    e(f"v_mov_b32 v{aR2}, v{aR2b}")
    e(f"v_bfe_u32 v3, v{L}, 2, 2")
    e(f"v_and_b32 v4, 3, v{L}")
    e(f"v_bfe_u32 v5, v{L}, 4, 1")
    e("v_lshl_add_u32 v5, v5, 2, v4")
    e("v_lshrrev_b32 v7, 1, v3")
    e("v_lshl_add_u32 v7, v1, 2, v7")
    e("v_xor_b32 v5, v5, v7")
    e("v_lshl_add_u32 v7, v1, 3, v3")
    e("v_lshl_add_u32 v7, v7, 6, s60")
    e(f"v_lshl_add_u32 v{aS0}, v5, 3, v7")
    e(f"v_xor_b32 v{aS1}, 16, v{aS0}")
    e(f"v_add_u32 v{aS1}, 256, v{aS1}")
    e(f"v_and_b32 v6, 31, v{L}")
    e("v_lshlrev_b32 v7, 3, v1")
    e("v_sub_u32 v7, v6, v7")
    e("v_lshlrev_b32 v6, 4, v2")
    e(f"v_lshlrev_b32 v6, v6, s{sOHC}")
    e("v_ashrrev_i32 v7, 1, v7")
    for u, I in ((0, I0), (1, I1)):
        for d in range(4): e(f"v_cmp_eq_u32 {s(sMK+2*d,2)}, {8*u+d}, v7")
        for d in range(4): e(f"v_cndmask_b32 v{I+d}, 0, v6, {s(sMK+2*d,2)}")
    e("v_xor_b32 v7, 1, v1")
    e(f"v_mul_u32_u24 v{ONE}, 0x3f80, v7")
    e(f"v_mov_b32 v{ONE+1}, 0")
if OPT["ackwait"]: e("s_waitcnt vmcnt(0)")
if OPT["stamps"]: e("s_waitcnt lgkmcnt(0)")
stamp(5)
poll_loads()
if OPT["posat"] == "poll": posdma()
laneconsts()
RA = 80; RB = 96; KA = 48; KB = 56; AD = 64; LN = 112; LK = 16; vSB = 68; vJ = 116
mk = lambda rnd, p, h: sMK + 2 * (rnd * 8 + p * 2 + h)
def presets():
    for p in range(4):
        e(f"v_mov_b32 v{RA+4*p}, s{sTAGR}")
        e(f"v_mov_b32 v{RA+4*p+2}, s{sTAGR}")
def batchsetup(general):
    e("v_lshrrev_b32 v1, 3, v0")
    e("v_and_b32 v2, 7, v0")
    e(f"v_lshlrev_b32 v{vJ}, 4, v2")
    e(f"v_mul_u32_u24 v1, {CH*8}, v1")
    e(f"v_add_u32 v{vSB}, v1, v{vJ}")
    for p in range(4):
        e(f"s_add_u32 s60, s{sR0}, {WS_REC + p*64*CH*8}")
        e(f"s_add_u32 s{sRB+2*p}, s{sWS}, s60")
        e(f"s_addc_u32 s{sRB+2*p+1}, s{sWS+1}, 0")
    for k2, o in ((1, 8), (2, 128), (3, 136)): e(f"v_add_u32 v{vJ+k2}, {o}, v{vJ}")
    if general:
        e(f"v_mov_b32 v1, {OOB}")
        for k2 in range(4):
            e(f"v_cmp_gt_u32 vcc, s{sS}, v{vJ+k2}")
            e(f"v_add_u32 v{vJ+k2}, s{sR0}, v{vJ+k2}")
            e("s_nop 0")
            e(f"v_cndmask_b32 v{vJ+k2}, v1, v{vJ+k2}, vcc")
    presets()
batchsetup(False)
e(f"s_mov_b32 s{sONCE}, 0")
e(f"s_and_b32 s3, s{sB}, 1")
e("s_lshl_b32 s3, s3, 4")
e(f"s_movk_i32 s60, {(NWG-192)*8}")
e(f"v_cmp_gt_u32 {s(sVAL,2)}, s60, v0")
e("s_waitcnt vmcnt(7)" if OPT["posat"] == "poll" else "s_waitcnt vmcnt(0)")
e.label("L_chkoff")
e(f"v_cmp_ne_u32 s[60:61], s{sTAG}, v{PL+3}")
e(f"v_cmp_ne_u32 s[62:63], s{sTAG}, v{PL+7}")
e(f"v_cmp_ne_u32 s[96:97], s{sTAG}, v{PL+11}")
e(f"v_cmp_ne_u32 vcc, s{sTAG}, v{PL+15}")
e("s_or_b64 s[60:61], s[60:61], s[62:63]")
e("s_or_b64 s[96:97], s[96:97], vcc")
e("s_or_b64 s[60:61], s[60:61], s[96:97]")
e("s_cbranch_scc0 L_gotoff")
e(f"s_cmp_eq_u32 s{sBUD}, 0")
e("s_cbranch_scc1 L_gotoff")
e(f"s_sub_u32 s{sBUD}, s{sBUD}, 1")
poll_loads()
e("s_waitcnt vmcnt(0)")
e("s_branch L_chkoff")
e.label("L_gotoff")
if OPT["stamps"]: e("s_waitcnt lgkmcnt(0)")
stamp(6)
e(f"s_bitcmp1_b32 s{sB}, 1")
e("s_cbranch_scc1 L_hi2")
for p in range(4): e(f"v_alignbit_b32 v{SEG+p}, v{PL+4*p+1}, v{PL+4*p}, s3")
e.label("L_segs")
e(f"v_cndmask_b32 v{SEG+3}, 0, v{SEG+3}, {s(sVAL,2)}")
e.label("L_fetch")
for p in range(4):
    e(f"v_sub_u32_sdwa v{LN+p}, v{SEG+p}, v{SEG+p} {SD} src0_sel:WORD_1 src1_sel:WORD_0")
    e(f"v_add_u32_sdwa v{AD+p}, v{SEG+p}, v{vSB} {SD} src0_sel:WORD_0 src1_sel:DWORD")
    e(f"v_cmp_lt_i32 {s(mk(0,p,0),2)}, v{vJ}, v{LN+p}")
for p in range(4):
    e(f"s_mov_b64 exec, {s(mk(0,p,0),2)}")
    e(f"global_load_dwordx4 {v(RA+4*p,4)}, v{AD+p}, {s(sRB+2*p,2)} sc1")
e("s_mov_b64 exec, -1")
for p in range(4): e(f"v_cmp_lt_i32 {s(mk(1,p,0),2)}, v{vJ+2}, v{LN+p}")
for p in range(4):
    e(f"s_mov_b64 exec, {s(mk(1,p,0),2)}")
    e(f"s_cbranch_execz L_nlb{p}")
    e(f"global_load_dwordx4 {v(RB+4*p,4)}, v{AD+p}, {s(sRB+2*p,2)} offset:128 sc1")
    e.label(f"L_nlb{p}")
e("s_mov_b64 exec, -1")
for p in range(4):
    e(f"v_cmp_lt_i32 {s(mk(0,p,1),2)}, v{vJ+1}, v{LN+p}")
    e(f"v_cmp_lt_i32 {s(mk(1,p,1),2)}, v{vJ+3}, v{LN+p}")
e(f"v_max3_i32 v3, v{LN}, v{LN+1}, v{LN+2}")
e(f"v_max_i32 v3, v3, v{LN+3}")
e(f"s_add_u32 s60, s{sR0}, s{sS}")
e("v_mov_b32 v13, 8")
e("v_cmp_lt_i32 vcc, s60, v3")
e("s_mov_b64 exec, vcc")
e(f"ds_write_b32 v{ZP}, v13 offset:{CNT2+252}")
e("s_mov_b64 exec, -1")
e(f"s_cmp_lg_u32 s{sONCE}, 0")
e("s_cbranch_scc1 L_notfirst")
e(f"s_mov_b32 s{sONCE}, 1")
e(f"s_cmp_ge_u32 s{sW}, 6")
e("s_cbranch_scc1 L_p67")
for t in range(2):
    for ks in range(2):
        for rd in range(2):
            e(f"ds_read_b64_tr_b16 {v(W1T+8*t+4*ks+2*rd,2)}, v{aWH} offset:{ks*4096+rd*512+t*8}")
for t in range(2):
    for c in range(2):
        for rd in range(2):
            e(f"ds_read_b64_tr_b16 {v(WH2+8*t+4*c+2*rd,2)}, v{aWH} offset:{(2+c)*4096+rd*512+t*8}")
e(f"s_lshl_b32 s60, s{sNG}, 4")
e(f"v_and_b32 v1, 15, v{L}")
e(f"v_add_lshl_u32 v{vAItem}, v1, s60, 2")
e("s_waitcnt lgkmcnt(8)")
for t in range(2):
    e(f"v_mfma_f32_16x16x32_bf16 {v(H1+4*t,4)}, {v(W1T+8*t,4)}, {v(HF,4)}, 0")
    e(f"v_mfma_f32_16x16x32_bf16 {v(H1+4*t,4)}, {v(W1T+8*t+4,4)}, {v(HF+4,4)}, {v(H1+4*t,4)}")
e("s_branch L_pdone")
e.label("L_p67")
e(f"ds_write_b32 v{H1+3}, v{vPosOwn} offset:{PD}")
e(f"v_mov_b32 v{vAItem}, v{H1+2}")
e.label("L_pdone")
e(f"v_mul_f32 v{WX}, {NL2E}, v{WX}")
e(f"v_mul_f32 v{WX+1}, {NL2E}, v{WX+1}")
e(f"v_cvt_pk_bf16_f32 v1, v{WX}, v{WX}")
e("v_and_b32 v1, 0xffff0000, v1")
e(f"v_sub_f32 v2, v{WX}, v1")
e(f"v_cvt_pk_bf16_f32 v{WX}, v1, v2")
e(f"v_cvt_pk_bf16_f32 v{WX+1}, 0, v{WX+1}")
e.label("L_notfirst")
e("s_lshr_b32 s60, s2, 3")
e("s_lshl_b32 s60, s60, 3")
e(f"s_add_u32 s60, s60, s{sW}")
e("s_mul_i32 s60, s60, 41")
e(f"v_add_u32 v6, s60, v{L}")
e(f"v_lshlrev_b32 v1, 2, v{L}")
e(f"v_cmp_gt_u32 {s(sVAL,2)}, {NB}, v{L}")
e("s_waitcnt vmcnt(0)")
for i in range(8): e(f"v_xor_b32 v{RA+2*i}, s{sTAGR}, v{RA+2*i}")
e(f"v_or3_b32 v4, v{RA}, v{RA+2}, v{RA+4}")
e(f"v_or3_b32 v5, v{RA+6}, v{RA+8}, v{RA+10}")
e(f"v_or3_b32 v4, v4, v{RA+12}, v{RA+14}")
def bsite(name):
    for p in range(4):
        e(f"s_mov_b64 exec, {s(mk(1,p,0),2)}")
        e(f"s_cbranch_execnz L_{name}{p}")
        e.label(f"L_{name}r{p}")
    e("s_mov_b64 exec, -1")
bsite("bx")
e("v_or_b32 v4, v4, v5")
e("v_cmp_lt_u32 vcc, 0xff, v4")
e("s_cbranch_vccnz L_stale")
e.label("L_gotrec")
if OPT["stamps"]: e("s_waitcnt lgkmcnt(0)")
stamp(7)
for p in range(4):
    for h in range(2):
        e(f"s_mov_b64 exec, {s(mk(0,p,h),2)}")
        e(f"ds_add_rtn_u32 v{KA+2*p+h}, v{RA+4*p+2*h}, v13 offset:{CNT2}")
bsite("ba")
PS_ = OPT.get("psplit", (3, 5, 8))
if OPT["posat"] == "sort": posdma(0, PS_[0])
if OPT["bpf"]:
    e("s_mov_b32 exec_hi, 0x1ff")
    e(f"buffer_load_dword v{TCH}, v6, {s(srdBP,4)}, 0 idxen")
    e("s_mov_b64 exec, -1")
e("s_waitcnt lgkmcnt(0)")
e("s_barrier")
stamp(8)
e(f"ds_read_b32 v2, v1 offset:{CNT2}")
if OPT["posat"] == "sort": posdma(PS_[0], PS_[1])
e("s_waitcnt lgkmcnt(0)")
e(f"v_max_u32 v4, {PADB}, v2")
e(f"v_cndmask_b32 v5, 0, v4, {s(sVAL,2)}")
scan(5, [f"v_readlane_b32 s{sMORE}, v2, 63", f"v_cmp_lt_u32 vcc, v2, v4"])
e(f"v_sub_u32 v6, v5, v4")
e(f"ds_write_b32 v1, v6 offset:{BASE2}")
for i in range(8): e(f"ds_read_b32 v{LK+i}, v{RA+2*i} offset:{BASE2}")
e(f"v_readlane_b32 s3, v5, 63")
bsite("bl")
if OPT["posat"] == "sort" and PS_[1] < 8: posdma(PS_[1], 8)
e(f"s_cmp_gt_u32 s3, {CAPB}")
e("s_cbranch_scc1 L_redo")
e(f"s_and_b64 vcc, vcc, {s(sVAL,2)}")
e("s_cbranch_scc1 L_pad0")
e.label("L_nopad")
e("s_add_u32 s96, s3, 127")
e("s_lshr_b32 s60, s96, 10")
e("s_bfe_u32 s61, s96, 0x30007")
e(f"s_mul_i32 s62, s60, s{sW}")
e(f"s_min_u32 s63, s61, s{sW}")
e("s_add_u32 s62, s62, s63")
e(f"s_cmp_lt_u32 s{sW}, s61")
e(f"s_addc_u32 s{sCNT}, s60, 0")
e("s_lshl_b32 s62, s62, 7")
e("v_cmp_ge_u32 vcc, s62, v5")
e(f"s_lshl_b32 s63, s{sCNT}, 7")
e("s_add_u32 s63, s63, s62")
e("v_cmp_gt_u32 s[60:61], s63, v5")
e("s_waitcnt lgkmcnt(0)")
for p in range(4):
    for h in range(2):
        i = 2*p+h
        e(f"s_mov_b64 exec, {s(mk(0,p,h),2)}")
        e(f"v_add_u32 v{LK+i}, v{LK+i}, v{KA+i}")
        e(f"ds_write_b64 v{LK+i}, {v(RA+2*i,2)} offset:{SORT2}")
bsite("bw")
e(f"s_bcnt1_i32_b64 s{sNFW}, vcc")
e(f"s_lshl_b32 s{sBASE}, s{sNFW}, 2")
e(f"s_or_b32 s{sSLOW}, s{sR0}, s{sMORE}")
e(f"s_cselect_b32 s{sNFW}, 252, s{sBASE}")
e(f"s_cmp_eq_u32 s{sCNT}, 0")
e(f"s_cselect_b32 s{sNFW}, 252, s{sNFW}")
e(f"s_lshl_b32 s63, 1, s{sW}")
e(f"v_mov_b32 v7, s{sNFW}")
e("v_mov_b32 v8, s63")
e(f"s_add_u32 s3, s3, {SORT2}")
e(f"s_lshl_b32 s63, s{sW}, 6")
e("s_add_u32 s3, s3, s63")
e("v_lshl_add_u32 v9, v1, 1, s3")
e(f"v_mov_b32 v10, {(NB-1)*4}")
e("v_mov_b32 v11, 10000")
e("s_mov_b64 exec, 1")
e(f"ds_or_b32 v7, v8 offset:{LNK}")
e("s_mov_b64 exec, 0xff")
e("ds_write_b64 v9, v[10:11]")
e("s_mov_b64 exec, -1")
e(f"s_add_u32 s62, s62, {SORT2}")
e(f"v_lshl_add_u32 v{aRec}, v{L}, 3, s62")
e(f"v_add3_u32 v{aIdx}, s62, 4, v{vIdxL}")
e(f"s_bcnt1_i32_b64 s{sNLW}, s[60:61]")
e(f"s_min_u32 s{sNLW}, s{sNLW}, {NB-1}")
e(f"s_lshl_b32 s{sNLW}, s{sNLW}, 2")
e("s_waitcnt vmcnt(0) lgkmcnt(0)" if OPT["posat"] == "sort" else "s_waitcnt lgkmcnt(0)")
e("s_barrier")
stamp(9)
def gather(b, pair):
    return [f"buffer_load_dwordx4 {v(G[b],4)}, {v(pair,2)}, {s(srdBP,4)}, 0 idxen offen",
            f"buffer_load_dwordx4 {v(G[b]+4,4)}, {v(pair,2)}, {s(srdBP,4)}, 0 idxen offen offset:64"]
def build1():
    return [f"v_mul_u32_u24_sdwa v{BT}, 6, v{REC+1} {SD} src0_sel:DWORD src1_sel:WORD_0",
            f"ds_read2st64_b32 {v(PDV,2)}, v{REC} offset0:{PD//256} offset1:{PD//256+1}",
            f"ds_read_u16_d16_hi v{PS}, v{BT} offset:{POS}",
            f"ds_read_u16_d16_hi v{PS+1}, v{BT} offset:{POS+2}",
            f"ds_read_u16_d16_hi v{PS+2}, v{BT} offset:{POS+4}",
            f"ds_read_b32 v{PDV+2}, v{REC} offset:{PD+512}",
            f"v_readlane_b32 s{sNF}, v{REC}, 0",
            f"v_readlane_b32 s{sNL}, v{REC}, 63",
            f"v_cmp_ne_u32 vcc, 60000, v{BT}",
            f"v_add_u32 v{BT+1}, v{REC}, v{REC}",
            f"s_and_b32 s60, s{sNF}, -8",
            f"s_mul_i32 s{sNEG}, s60, -4",
            f"s_lshr_b32 s60, s60, 1",
            f"s_mov_b64 {s(sVAL,2)}, vcc",
            f"v_lshl_add_u32 v{BT+2}, v{REC}, 2, s{sNEG}",
            f"v_add_u32 v{aAT}, s60, v{aATb}",
            f"v_lshlrev_b64 {v(REC+2,2)}, v{BT+2}, {s(sOHC,2)}"]
def build2():
    return [f"v_sub_f32 v{PDV}, v{PDV}, v{PS}",
            f"v_sub_f32 v{PDV+1}, v{PDV+1}, v{PS+1}",
            f"v_sub_f32 v{PDV+2}, v{PDV+2}, v{PS+2}",
            f"v_cvt_pk_bf16_f32 v{R2V}, v{PDV}, v{PDV+1}",
            f"v_cvt_pk_bf16_f32 v{R2V+1}, v{PDV+2}, 1.0",
            f"v_dot2_f32_bf16 v{BT}, v{R2V}, v{R2V}, 0",
            f"v_lshlrev_b32 v{BT+2}, 16, v{R2V+1}",
            None, None,
            f"v_fmac_f32 v{BT}, v{BT+2}, v{BT+2}",
            f"v_cvt_pk_bf16_f32 v{REC}, v{BT}, v{BT}"]
def build3():
    return [f"ds_write_b64 v{aR2}, {v(ZP,2)}",
            f"v_bitop3_b32 v{aR2}, v{BT+1}, 56, v{aR2b} bitop3:0x6a",
            f"ds_write_b128 v{aR1w}, {v(REC,4)}",
            f"s_mov_b64 exec, {s(sVAL,2)}\nds_write_b64 v{aR2}, {v(R2V,2)}\ns_mov_b64 exec, -1",
            f"ds_read2_b32 {v(WX+2,2)}, v{aAT} offset1:1"]
def opreads(n):
    return [f"ds_read_b128 {v(R1OP,4)}, v{aR1r} offset:{n*256}",
            f"ds_read_b64_tr_b16 {v(S[n],2)}, v{aS0} offset:{n*1024}",
            f"ds_read_b64_tr_b16 {v(S[n]+2,2)}, v{aS1} offset:{n*1024}"]
def stage1(n):
    t = T[n & 1]
    return [f"v_mfma_f32_32x32x16_bf16 {v(t,16)}, {v(R1OP,4)}, {v(WX,4)}, 0",
            f"v_mfma_f32_32x32x16_bf16 {v(t,16)}, {v(G[n],4)}, {v(I0,4)}, {v(t,16)}",
            f"v_mfma_f32_32x32x16_bf16 {v(t,16)}, {v(G[n]+4,4)}, {v(I1,4)}, {v(t,16)}"]
def stage2(n):
    return [f"v_mfma_f32_32x32x16_bf16 {v(AC[c],16)}, {v(M[c],4)}, {v(S[n],4)}, {v(AC[c],16)}" for c in range(2)]
def mulcvt(q):
    L_ = []
    for a in range(4):
        if 4*a >= 16 - OPT["lut"]:
            for c in range(2): L_.append(f"v_or_b32 v{M[c]+a}, v{T[q]+4*a+c}, v{T[q]+4*a+2+c}")
            continue
        for r in range(4): L_.append(f"v_mul_f32 v{E[q]+4*a+r}, v{E[q]+4*a+r}, v{T[q]+4*a+r}")
        for c in range(2): L_.append(f"v_cvt_pk_bf16_f32 v{M[c]+a}, v{E[q]+4*a+c}, v{E[q]+4*a+2+c}")
    return L_
def flushchk(lbl):
    e(f"s_min_u32 s60, s{sNL}, s{sNLW}")
    e(f"s_sub_u32 s60, s60, s{sBASE}")
    e("s_cmp_ge_u32 s60, 32")
    e(f"s_cbranch_scc1 L_flush_{lbl}")
    e.label(f"L_flret_{lbl}")
def rowaddr():
    return [f"v_subrev_u32 v1, s{sBASE}, v{L}",
            "v_and_b32 v1, 28, v1",
            f"v_add_u32 v1, s{sBASE}, v1",
            f"v_cmp_eq_u32 vcc, s{sNFW}, v1",
            f"v_cmp_lt_u32 s[62:63], s{sNLW}, v1",
            f"s_lshl_b32 s61, s{sW}, 2",
            f"s_add_u32 s61, s61, {NB*4}",
            "v_mov_b32 v2, s61",
            "v_cndmask_b32 v1, v1, v2, vcc",
            f"v_mov_b32 v2, {OOB//64}",
            "v_cndmask_b32 v1, v1, v2, s[62:63]",
            f"v_mul_u32_u24 v1, {ACCS//4}, v1",
            f"v_add_u32 v1, {ACC}, v1",
            f"v_lshrrev_b32 v2, 5, v{L}",
            f"v_lshl_add_u32 v{vRowM}, v2, 4, v1",
            f"v_lshl_add_u32 v1, v2, 2, v1",
            f"v_and_b32 v2, 3, v{L}",
            f"v_lshl_add_u32 v{vRowP}, v2, 3, v1"]
def mmask():
    e("s_mov_b32 exec_lo, 0x88888888")
    e("s_mov_b32 exec_hi, 0x88888888")
def flush_slow():
    e("s_nop 7")
    e("v_mov_b32 v2, 0")
    for i in range(8):
        e(f"ds_read_b128 v[4:7], v{vWxa} offset:{WXT+16*i}")
        e("s_waitcnt lgkmcnt(0)")
        for r in range(4): e(f"v_fmac_f32 v2, v{AC[0]+4*i+r}, v{4+r}")
    e(f"ds_add_f32 v{vRowP}, v2 offset:256")
    mmask()
    for i in range(32): e(f"ds_add_f32 v{vRowM}, v{AC[0]+i} offset:{(i//4)*32+(i%4)*4}")
    e("s_mov_b64 exec, -1")

def pkmul(q): return [f"v_pk_mul_f32 {v(E[q]+2*i,2)}, {v(E[q]+2*i,2)}, {v(T[q]+2*i,2)}" for i in range(8)]
def mul(q): return [f"v_mul_f32 v{E[q]+i}, v{E[q]+i}, v{T[q]+i}" for i in range(16)]
def cvt(q): return [f"v_cvt_pk_bf16_f32 v{M[c]+a}, v{E[q]+4*a+c}, v{E[q]+4*a+2+c}" for a in range(4) for c in range(2)]

def step(sidx, first=False):
    q = sidx & 1; n1 = (sidx + 1) & 3
    side = gather(sidx, IDX) + [f"ds_read_u16 v{IDX}, v{aIdx} offset:{(sidx+5)*128}"]
    if sidx == 3:
        side += build3()
    side += opreads(n1)
    if sidx == 0: side += [f"ds_read_b64 {v(REC,2)}, v{aRec} offset:512"]
    if sidx == 1: side += build1()
    if sidx == 2: side += build2()
    if sidx == 3: side += [f"v_add_u32 v{aIdx}, 512, v{aIdx}", f"v_add_u32 v{aRec}, 512, v{aRec}"]
    if sidx == 1: flushchk("mid")
    if OPT["prio"] and not first:
        e(f"s_cmp_gt_u32 s{sCNT}, {OPT['pr'][0]}")
        e(f"s_cbranch_scc0 L_prio{sidx}")
        e.label(f"L_prret{sidx}")
    exps = [f"v_exp_f32 v{E[q]+i}, v{T[q]+i}" for i in range(16)]
    pre = [y for y in side if y is not None and ("sdwa" in y or "readlane" in y or "v_cmp" in y)]
    mem = [y for y in side if y is not None and (y.startswith(("ds_", "buffer_", "s_")) or "bitop3" in y)]
    oth = [y for y in side if y is None or (y not in pre and y not in mem)]
    for y in pre: e(y)
    for y in mem: e(y)
    k = 0
    for i, x in enumerate(exps):
        e(x)
        if k < len(oth):
            if oth[k] is not None: e(oth[k])
            k += 1
    assert k == len(oth)
    addone = f"v_mfma_f32_32x32x8_bf16 {v(E[q],16)}, {v(ONE,2)}, {v(ONE,2)}, {v(E[q],16)}"
    if first:
        e("s_nop 1"); e(addone); e("s_nop 7")
    elif OPT["pk"]:
        for x in pkmul(1 - q): e(x)
        e(addone)
        for x in cvt(1 - q): e(x)
    else:
        mc = mulcvt(1 - q)
        e(mc[0]); e(mc[1]); e(addone)
        for x in mc[2:]: e(x)
    e(f"s_sub_u32 s{sCNT}, s{sCNT}, 1")
    e("s_waitcnt vmcnt(6) lgkmcnt(0)")
    mf = stage1(n1) + ([] if first else stage2((sidx - 1) & 3))
    rc = [f"v_rcp_f32 v{E[q]+i}, v{E[q]+i}" for i in range(16)]
    for i, x in enumerate(rc):
        if i % 3 == 0 and i // 3 < len(mf):
            e(mf[i // 3])
            if i == 0 and (OPT["pk"] or first): e("s_nop 0")
        e(x)
    if first: e("s_nop 0")
    e(f"s_cbranch_scc1 L_drain{sidx}")

PI = E[0]
e(f"ds_read_b64 {v(REC,2)}, v{aRec}")
for n in range(4): e(f"ds_read_u16 v{PI+2*n}, v{aIdx} offset:{n*128}")
e(f"ds_read_u16 v{IDX}, v{aIdx} offset:{4*128}")
e(f"ds_read_b32 v{vMask}, v{vAItem} offset:{LNK}")
e(f"ds_write_b32 v1, v{ZP} offset:{CNT2}")
e(f"s_sub_u32 s{sCNT}, s{sCNT}, 1")
e("s_cbranch_scc1 L_b6")
for n in range(4): e(f"v_mov_b32 v{PI+2*n+1}, v{IDX+1}")
if OPT["prio"]: e("s_setprio 3")
e("s_waitcnt lgkmcnt(3)")
b1 = build1()
for x in gather(0, PI): e(x)
for x in b1: e(x)
for i in range(16): e(f"v_mov_b32 v{AC[0]+i}, 0")
e("s_waitcnt lgkmcnt(0)")
zi = 16
for x in build2():
    if x is None:
        e(f"v_mov_b32 v{AC[0]+zi}, 0"); zi += 1
    else: e(x)
for x in build3(): e(x)
for x in opreads(0): e(x)
for x in gather(1, PI + 2): e(x)
for i in range(zi, 32): e(f"v_mov_b32 v{AC[0]+i}, 0")
e("s_waitcnt vmcnt(2) lgkmcnt(0)")
for x in stage1(0): e(x)
for n in (2, 3):
    for x in gather(n, PI + 2*n): e(x)
for x in rowaddr(): e(x)
stamp(10)
step(0, first=True)
e("s_branch L_s1")
e.label("L_s0")
step(0)
e.label("L_s1")
step(1)
step(2)
step(3)
e("s_branch L_s0")
for sidx in range(4):
    q = sidx & 1
    e.label(f"L_drain{sidx}")
    if sidx == 0: flushchk("dr")
    for i in range(4): e(f"ds_read_b128 {v(E[1-q]+4*i,4)}, v{vWxa} offset:{WXT+16*i}")
    for i in range(4): e(f"ds_read_b128 {v(T[1-q]+4*i,4)}, v{vWxa} offset:{WXT+64+16*i}")
    for x in mulcvt(q): e(x)
    e(f"s_cmp_lg_u32 s{sSLOW}, 0")
    e("s_nop 0")
    for x in stage2(sidx): e(x)
    e("s_cbranch_scc1 L_slow_final")
    if sidx < 2: e(f"s_branch L_final_flush{q}")
    else:
        e.label(f"L_final_flush{q}")
        stamp(11)
        e("s_waitcnt lgkmcnt(0)")
        e("s_nop 6")
        mmask()
        for i in range(4): e(f"ds_write_b128 v{vRowM}, {v(AC[0]+4*i,4)} offset:{i*32}")
        e("s_mov_b64 exec, -1")
        e(f"v_mul_f32 v2, v{AC[0]}, v{E[1-q]}")
        for i in range(1, 16): e(f"v_fmac_f32 v2, v{AC[0]+i}, v{E[1-q]+i}")
        mmask()
        for i in range(4): e(f"ds_write_b128 v{vRowM}, {v(AC[1]+4*i,4)} offset:{128+i*32}")
        e("s_mov_b64 exec, -1")
        for i in range(16): e(f"v_fmac_f32 v2, v{AC[1]+i}, v{T[1-q]+i}")
        e(f"ds_write_b32 v{vRowP}, v2 offset:256")
        if sidx == 2: e("s_branch L_b6")
e.label("L_b6")
e("s_setprio 0")
def bfaddr(dst):
    e(f"v_ffbl_b32 v5, v{vMask}")
    e(f"v_add_u32 v6, -1, v{vMask}")
    e(f"v_min_u32 v5, {OOB//256}, v5")
    e(f"v_and_b32 v{vMask}, v6, v{vMask}")
    e(f"v_mul_u32_u24 v5, {ACCS}, v5")
    e(f"v_add_u32 v{dst}, {BF}, v5")
e(f"v_and_b32 v1, 15, v{L}")
e(f"v_lshrrev_b32 v2, 4, v{L}")
e(f"s_lshl_b32 s60, s{sNG}, 4")
e("v_add_u32 v1, s60, v1")
e(f"v_mul_u32_u24 v3, {ACCS}, v1")
e("v_lshl_add_u32 v3, v2, 5, v3")
e(f"v_add_u32 v3, {ACC}, v3")
e("s_waitcnt lgkmcnt(0)")
bfaddr(4)
e("s_barrier")
stamp(12)
e(f"s_cmp_lg_u32 s{sMORE}, 0")
e("s_cbranch_scc1 L_more")
e(f"s_cmp_ge_u32 s{sW}, 6")
e("s_cbranch_scc1 L_finpos")
MR = 16; MB = 32; Y = 40; YE = 48; HU = 56; MX = 64
for c in range(2):
    for hf in range(2):
        e(f"ds_read_b128 {v(MR+8*c+4*hf,4)}, v3 offset:{c*128+hf*16}")
e.label("L_finbf")
e("v_lshl_add_u32 v4, v2, 5, v4")
for c in range(2):
    for hf in range(2):
        e(f"ds_read_b128 {v(MX+8*c+4*hf,4)}, v4 offset:{c*128+hf*16}")
e(f"v_cmp_ne_u32 vcc, 0, v{vMask}")
for d in range(4):
    e(f"v_lshlrev_b32 v{HU+2*d}, 16, v{HRES+d}")
    e(f"v_and_b32 v{HU+2*d+1}, 0xffff0000, v{HRES+d}")
for i in range(4):
    e(f"s_waitcnt lgkmcnt({3-i})")
    for d in range(4): e(f"v_add_f32 v{MR+4*i+d}, v{MR+4*i+d}, v{MX+4*i+d}")
e("s_cbranch_vccnz L_finbf_more")
for c in range(2):
    for d in range(4): e(f"v_cvt_pk_bf16_f32 v{MB+4*c+d}, v{MR+8*c+2*d}, v{MR+8*c+2*d+1}")
e(f"s_mov_b32 s60, {NLN2}")
e(f"s_mov_b32 s61, {NL2E}")
for t in range(2):
    e(f"v_mfma_f32_16x16x32_bf16 {v(Y+4*t,4)}, {v(WH2+8*t,4)}, {v(MB,4)}, 0")
    e(f"v_mfma_f32_16x16x32_bf16 {v(Y+4*t,4)}, {v(WH2+8*t+4,4)}, {v(MB+4,4)}, {v(Y+4*t,4)}")
e(f"v_cmp_gt_u32 vcc, {NB}, v1")
e(f"v_add_u32 v1, s{sN0}, v1")
e(f"s_lshl_b32 s62, s{sCHF}, 6")
e("v_lshl_add_u32 v2, v2, 4, s62")
e("v_lshl_add_u32 v1, v1, 7, v2")
e("s_nop 0")
for i in range(8): e(f"v_fma_f32 v{Y+i}, v{Y+i}, s60, v{H1+i}")
for i in range(8): e(f"v_mul_f32 v{YE+i}, s61, v{Y+i}")
for i in range(8): e(f"v_exp_f32 v{YE+i}, v{YE+i}")
for i in range(8): e(f"v_add_f32 v{YE+i}, 1.0, v{YE+i}")
for i in range(8): e(f"v_rcp_f32 v{YE+i}, v{YE+i}")
for i in range(8): e(f"v_fmac_f32 v{HU+i}, v{Y+i}, v{YE+i}")
for d in range(4): e(f"v_cvt_pk_bf16_f32 v{Y+d}, v{HU+2*d}, v{HU+2*d+1}")
e("s_mov_b64 exec, vcc")
e(f"global_store_dwordx4 v1, {v(Y,4)}, {s(sOUT,2)} {OPT.get('ost','')}")
stamp(13, last=True)
e("s_endpgm")
e.label("L_finpos")
e("s_cmp_lg_u32 s2, 0")
e("s_cbranch_scc1 L_noep")
e(f"v_mov_b32 v7, s{sTAG}")
e("s_mov_b64 exec, 1")
e(f"global_store_dword v{ZP}, v7, {s(sWS,2)}")
e("s_mov_b64 exec, -1")
e.label("L_noep")
e(f"ds_read_b64 v[16:17], v{H1}")
e.label("L_posbf")
e(f"v_add_u32 v4, v4, v{H1+1}")
e("ds_read_b64 v[18:19], v4")
e(f"v_cmp_ne_u32 vcc, 0, v{vMask}")
e("s_waitcnt lgkmcnt(0)")
e("v_add_f32 v16, v16, v18")
e("v_add_f32 v17, v17, v19")
e("s_cbranch_vccnz L_posbf_more")
e("v_and_b32 v1, 127, v0")
e("v_cmp_gt_u32 vcc, 120, v1")
e(f"s_mul_i32 s60, s{sB}, 240")
e("s_add_u32 s60, s60, 1280000")
e("v_lshl_add_u32 v1, v1, 1, s60")
e("v_add_f32 v16, v16, v17")
e(f"v_add_f32 v{vPosOwn}, v{vPosOwn}, v16")
e(f"v_cvt_pk_bf16_f32 v2, v{vPosOwn}, v{vPosOwn}")
e("s_mov_b64 exec, vcc")
e(f"global_store_short v1, v2, {s(sOUT,2)}")
stamp(13, last=True)
e("s_endpgm")
for lbl in ("mid", "dr"):
    e.label(f"L_flush_{lbl}")
    flush_slow()
    e("s_waitcnt lgkmcnt(0)")
    for i in range(32): e(f"v_mov_b32 v{AC[0]+i}, 0")
    e(f"s_mov_b32 s{sBASE}, s{sNF}")
    e(f"s_mov_b32 s{sSLOW}, 1")
    for x in rowaddr(): e(x)
    e(f"s_branch L_flret_{lbl}")
if OPT["prio"]:
    for sidx in range(4):
        p3, p2, p1 = OPT["pr"]
        e.label(f"L_prio{sidx}")
        e("s_setprio 2")
        e(f"s_cmp_gt_i32 s{sCNT}, {p2}")
        e(f"s_cbranch_scc1 L_prret{sidx}")
        e("s_setprio 1")
        e(f"s_cmp_gt_i32 s{sCNT}, {p1}")
        e(f"s_cbranch_scc1 L_prret{sidx}")
        e("s_setprio 0")
        e(f"s_branch L_prret{sidx}")
e.label("L_slow_final")
flush_slow()
e("s_branch L_b6")
e.label("L_finbf_more")
bfaddr(4)
e("s_branch L_finbf")
e.label("L_posbf_more")
bfaddr(4)
e("s_branch L_posbf")
e.label("L_hi2")
for p in range(4): e(f"v_alignbit_b32 v{SEG+p}, v{PL+4*p+2}, v{PL+4*p+1}, s3")
e("s_branch L_segs")
for p in range(4):
    e.label(f"L_bx{p}")
    e(f"v_xor_b32 v{RB+4*p}, s{sTAGR}, v{RB+4*p}")
    e(f"v_xor_b32 v{RB+4*p+2}, s{sTAGR}, v{RB+4*p+2}")
    e(f"v_or3_b32 v5, v5, v{RB+4*p}, v{RB+4*p+2}")
    e(f"s_branch L_bxr{p}")
    e.label(f"L_ba{p}")
    e(f"ds_add_rtn_u32 v{KB+2*p}, v{RB+4*p}, v13 offset:{CNT2}")
    e(f"s_mov_b64 exec, {s(mk(1,p,1),2)}")
    e(f"ds_add_rtn_u32 v{KB+2*p+1}, v{RB+4*p+2}, v13 offset:{CNT2}")
    e(f"s_branch L_bar{p}")
    e.label(f"L_bl{p}")
    e(f"ds_read_b32 v{LK+8+2*p}, v{RB+4*p} offset:{BASE2}")
    e(f"ds_read_b32 v{LK+9+2*p}, v{RB+4*p+2} offset:{BASE2}")
    e(f"s_branch L_blr{p}")
    e.label(f"L_bw{p}")
    e(f"v_add_u32 v7, v{LK+8+2*p}, v{KB+2*p}")
    e(f"v_add_u32 v8, v{LK+9+2*p}, v{KB+2*p+1}")
    e(f"ds_write_b64 v7, {v(RB+4*p,2)} offset:{SORT2}")
    e(f"s_mov_b64 exec, {s(mk(1,p,1),2)}")
    e(f"ds_write_b64 v8, {v(RB+4*p+2,2)} offset:{SORT2}")
    e(f"s_branch L_bwr{p}")
e.label("L_stale")
e(f"s_cmp_eq_u32 s{sBUD}, 0")
e("s_cbranch_scc1 L_gotrec")
e(f"s_sub_u32 s{sBUD}, s{sBUD}, 1")
presets()
e("s_branch L_fetch")
e.label("L_pad0")
e("v_mov_b32 v8, v1")
e("v_mov_b32 v9, 10000")
e("s_mov_b64 exec, vcc")
e.label("L_pad")
e("v_add_u32 v7, v6, v2")
e("v_add_u32 v2, 8, v2")
e(f"ds_write_b64 v7, v[8:9] offset:{SORT2}")
e("v_cmp_lt_u32 vcc, v2, v4")
e("s_and_b64 exec, vcc, vcc")
e("s_cbranch_scc1 L_pad")
e("s_mov_b64 exec, -1")
e("s_branch L_nopad")
e.label("L_more")
e("s_waitcnt vmcnt(0)")
e(f"s_add_u32 s{sR0}, s{sR0}, s{sS}")
e(f"s_mov_b32 s{sS}, 256")
e.label("L_batch")
batchsetup(True)
e("s_branch L_fetch")
e.label("L_redo")
e(f"s_cmp_eq_u32 s{sS}, {SFALL}")
e("s_cbranch_scc1 L_end")
e("s_waitcnt vmcnt(0) lgkmcnt(0)")
e("s_barrier")
e(f"ds_write_b32 v1, v{ZP} offset:{CNT2}")
e(f"s_mov_b32 s{sS}, {SFALL}")
e("s_waitcnt lgkmcnt(0)")
e("s_barrier")
e("s_branch L_batch")
e.label("L_end")
e("s_endpgm")

probs = check_cfg(e.lines)
for p in probs: print("HAZARD", p, file=sys.stderr)

ref = open("cdna_kernels/" + KN + ".s.ref").read().split("\n")
hdr = []
for l in ref:
    if l.startswith("; Override launch"): break
    hdr.append(l)
out = "\n".join(hdr) + f"""
; One persistent launch: 250 workgroups (one per CU) bin the edges by destination bucket, hand the bins
; over through d_ws (tagged with a per-launch epoch), then each workgroup updates its 40 nodes.
; @launch grid=({NWG},1,1) block=(512,1,1) lds={LDS_SIZE}
.amdgcn_target "amdgcn-amd-amdhsa--gfx950"
.text
.globl {KN}_kernel
.p2align 8
.type {KN}_kernel,@function
{KN}_kernel:
{e.text()}.section .rodata,"a"
.p2align 6
.amdhsa_kernel {KN}_kernel
  .amdhsa_next_free_vgpr 256
  .amdhsa_next_free_sgpr 102
  .amdhsa_accum_offset 256
  .amdhsa_group_segment_fixed_size 0
  .amdhsa_kernarg_size 88
  .amdhsa_user_sgpr_count 2
  .amdhsa_user_sgpr_kernarg_segment_ptr 1
  .amdhsa_system_sgpr_workgroup_id_x 1
  .amdhsa_float_denorm_mode_32 3
.end_amdhsa_kernel
"""
open(sys.argv[1], "w").write(out)
print("wrote", sys.argv[1], len(e.lines), "lines;", len(probs), "hazards", file=sys.stderr)
```

```python
import sys, struct
from asmlib import Emit, v, s, check_cfg

KN = "standalone__cheap_equivariant_egnn__graph"
OPT = dict(stamps=False, prio=True, posat="poll", touch=True, x="", ackwait=True, place="burst", lut=0, pr=(5,2,0), pk=True, bpf=True, srcat="b0")
for a in sys.argv[2:]:
    k, _, val = a.partition("=")
    try: OPT[k] = eval(val) if val else True
    except Exception: OPT[k] = val

def fbits(x): return struct.unpack("<I", struct.pack("<f", x))[0]
LOG2E = 1.4426950408889634; LN2 = 0.6931471805599453
NL2E = hex(fbits(-LOG2E)); NLN2 = hex(fbits(-LN2))

NWG = 250; CH = 2560; NB = 40
CNT1 = 0x0; OFF1 = 0x400; CNT2 = 0x800; LNK = 0x900; BASE2 = 0xA00; PD = 0xB00; WXT = 0xE00
POS = 0xF00; SORT2 = POS + 61440; CAPB = 3072 * 8
R1 = SORT2 + CAPB + 512; R2 = R1 + 8192; ACC = R2 + 32768; ACCS = 304
BF = ACC + NB * ACCS; AT = BF + 8 * ACCS; ATS = 104; HB = AT + 64 * ATS; WL = HB + 6144; WXL = WL + 256; LDS_END = WXL + 128
STG = R2; WE = SORT2; WH = SORT2 + 16384
OOB = 0x100000
LDS_SIZE = 163840
assert LDS_END <= LDS_SIZE and WH + 16384 <= R2 and R2 % 64 == 0 and WE % 128 == 0 and HB % 128 == 0
PADB = 32 * 8; SFALL = 48
WS_FLAG = 0x1000; WS_OFF = 0x10000; WS_BP = 0x100000; WS_REC = 0x300000; WS_STAMP = 0x1000000
TAGC = 0x9E3779B1
sH, sPOS, sE, sSRC, sDST, sWE, sWX, sWH, sOUT, sDBG, sWS = 4, 6, 8, 10, 12, 14, 16, 18, 20, 22, 24
sW, sB = 26, 27
srdBP, srdPOS, srdH = 28, 32, 36
sTAG, sTAGR, sBUD, sR0, sS, sN0, sNG, sCHF = 40, 41, 42, 43, 44, 45, 46, 47
sOHC, sNFW, sNLW, sCNT, sBASE, sNF, sNL, sNEG, sMORE, sVAL = 48, 50, 51, 52, 53, 54, 55, 56, 57, 58
sONCE = 17; sANYB = 18
sSLOW = 16
sMK = 64
sRB = 8
T = [16, 32]; E = [48, 64]; AC = [80, 96]; M = [112, 116]; G = [120, 128, 136, 144]; S = [152, 156, 160, 164]
R1OP = 168; WX = 172; I0 = 176; I1 = 180; ONE = 184; IDX = 186
aIdx, aRec, aR1r, aS0, aS1, aR1w, aR2b, aR2, aATb, aAT = 188, 189, 190, 191, 192, 193, 194, 195, 196, 197
vRowM, vRowP = 198, 199
REC = 200; R2V = 204; PS = 206; PDV = 210; BT = 213; ZP = 216; vIdxL = 218; vPosOwn = 219
SEG = 220; vMask = 224; vWxa = 225; H1 = 226; HRES = 234; WH2 = 238; vLane = 254; vAItem = 255
L = vLane

e = Emit()
def stamp(i, last=False):
    if OPT.get("diag") is not None:
        if i == 0:
            e("s_memrealtime s[98:99]")
            e("s_waitcnt lgkmcnt(0)")
            e("s_mov_b32 s100, s98")
            e("s_mov_b32 s101, s98")
        elif i == OPT["diag"]:
            e("s_memrealtime s[98:99]")
            e("s_waitcnt lgkmcnt(0)")
            e("s_mov_b32 s101, s98")
        if last:
            stamp.n = getattr(stamp, "n", 0) + 1
            e("s_sub_u32 s101, s101, s100")
            e("s_lshl_b32 s101, s101, 2")
            e("s_add_u32 s101, s101, 3000")
            e.label(f"L_spin{stamp.n}")
            e("s_memrealtime s[98:99]")
            e("s_waitcnt lgkmcnt(0)")
            e("s_sub_u32 s98, s98, s100")
            e("s_cmp_lt_u32 s98, s101")
            e(f"s_cbranch_scc1 L_spin{stamp.n}")
        return
    if not OPT["stamps"]: return
    if i > 0:
        e("s_mov_b32 m0, s101")
        e("v_writelane_b32 v15, s98, m0")
        e("v_writelane_b32 v14, s22, m0")
    e("s_memrealtime s[98:99]")
    if i > 0: e("s_memtime s[22:23]")
    e(f"s_mov_b32 s101, {i}")
    if i in (6, 7, 9): e(f"v_writelane_b32 v15, s{sBUD}, {16+i}")
    if i == 10: e(f"v_writelane_b32 v15, s{sCNT}, 26")
    if last:
        e("s_mov_b64 exec, -1")
        e("s_waitcnt lgkmcnt(0)")
        e(f"v_writelane_b32 v15, s98, {i}")
        e(f"v_writelane_b32 v14, s22, {i}")
        e("s_lshl_b32 s100, s2, 3")
        e(f"s_add_u32 s100, s100, s{sW}")
        e("s_lshl_b32 s100, s100, 7")
        e(f"s_add_u32 s100, s100, {WS_STAMP}")
        e(f"v_lshl_add_u32 v13, v{L}, 2, s100")
        e("s_mov_b32 exec_hi, 0")
        e(f"global_store_dword v13, v15, {s(sWS,2)}")
        e("v_add_u32 v13, 0x100000, v13")
        e(f"global_store_dword v13, v14, {s(sWS,2)}")

def scan(r, fill=()):
    fill = list(fill)
    for m in ("row_shr:1 row_mask:0xf bank_mask:0xf bound_ctrl:1", "row_shr:2 row_mask:0xf bank_mask:0xf bound_ctrl:1",
              "row_shr:4 row_mask:0xf bank_mask:0xf bound_ctrl:1", "row_shr:8 row_mask:0xf bank_mask:0xf bound_ctrl:1",
              "row_bcast:15 row_mask:0xa bank_mask:0xf", "row_bcast:31 row_mask:0xc bank_mask:0xf"):
        if len(fill) >= 2:
            e(fill.pop(0)); e(fill.pop(0))
        else: e("s_nop 1")
        e(f"v_add_u32_dpp v{r}, v{r}, v{r} {m}")
    assert not fill

SD = "dst_sel:DWORD dst_unused:UNUSED_PAD"

def posdma(lo=0, hi=8):
    e(f"s_lshl_b32 s96, s{sW}, 10")
    for i in range(lo, hi):
        if i == 7:
            e(f"s_cmp_ge_u32 s{sW}, 4")
            e("s_cbranch_scc1 L_nop8")
        e(f"s_add_u32 m0, s96, {POS+i*8192}")
        e(f"s_mov_b32 s97, {i*8192}")
        e(f"buffer_load_dwordx4 v12, {s(srdPOS,4)}, s97 offen lds")
    if hi == 8: e.label("L_nop8")

DSTR = 16; SRCR = 24; ER = 32; XW = 36; B4 = 48; RK = 56
WA0 = 64; WA1 = 65; WA2 = 66; HA = 67; CA0 = 68; PBA = 69; TCH = 70; HF = 72
WT = 80; DT = 112; W1T = 128; aWH = 144; aWT = 148
stamp(0)
e.label("L_entry")
e(f"s_cmp_ge_u32 s2, {NWG}")
e("s_cbranch_scc1 L_end")
e("s_load_dwordx16 s[4:19], s[0:1], 0")
e("s_load_dwordx4 s[20:23], s[0:1], 64")
e("s_load_dwordx2 s[24:25], s[0:1], 80")
if OPT["touch"]:
    e("s_getpc_b64 s[62:63]")
    e.label("L_pc")
    e("v_lshlrev_b32 v5, 5, v0")
    e("v_min_u32 v5, L_end-L_pc, v5")
    e("s_mov_b32 exec_lo, 0x11111111")
    e("s_mov_b32 exec_hi, 0x11111111")
    e(f"global_load_dword v{TCH}, v5, s[62:63]")
    e("s_mov_b64 exec, -1")
e(f"s_mul_i32 s3, s2, {CH*4}")
e("v_lshl_add_u32 v8, v0, 4, s3")
e(f"s_add_u32 s60, s3, 8192")
e("v_lshl_add_u32 v9, v0, 2, s60")
e("s_lshr_b32 s3, s3, 1")
e("v_lshl_add_u32 v10, v0, 3, s3")
e("s_add_u32 s60, s3, 4096")
e("v_lshl_add_u32 v11, v0, 1, s60")
e("v_lshrrev_b32 v5, 6, v0")
e(f"v_and_b32 v{L}, 63, v0")
e(f"v_readfirstlane_b32 s{sW}, v5")
e(f"v_mov_b32 v{ZP}, 0")
e(f"v_mov_b32 v{ZP+1}, 0")
e("v_lshlrev_b32 v12, 4, v0")
e("v_lshlrev_b32 v5, 3, v0")
e(f"ds_write_b64 v5, {v(ZP,2)}")
e("s_and_b32 s60, s2, 7")
e(f"s_mul_i32 s{sB}, s60, 31")
e("s_min_u32 s60, s60, 2")
e(f"s_add_u32 s{sB}, s{sB}, s60")
e("s_lshr_b32 s96, s2, 3")
e(f"s_add_u32 s{sB}, s{sB}, s96")
e(f"s_mul_i32 s{sN0}, s{sB}, {NB}")
e(f"v_and_b32 v5, 16, v{L}")
e("v_and_b32 v6, 64, v0")
e("v_lshl_or_b32 v5, v5, 1, v6")
e(f"v_xor_b32 v{WA0}, v5, v12")
e(f"v_add_u32 v{WA1}, 8192, v{WA0}")
e(f"v_lshlrev_b32 v5, 1, v{L}")
e(f"s_lshl_b32 s60, s{sN0}, 7")
e("v_and_b32 v5, 0x70, v5")
e(f"v_xad_u32 v{HA}, v5, v12, s60")
e(f"s_lshl_b32 s60, s{sW}, 10")
e(f"s_add_u32 m0, s60, {WE+8192}")
e("s_waitcnt lgkmcnt(0)")
e(f"global_load_dwordx4 {v(DSTR,4)}, v8, {s(sDST,2)}")
e(f"global_load_dword v{DSTR+4}, v9, {s(sDST,2)}")
e(f"s_mov_b32 s{srdH}, s{sH}")
e(f"s_and_b32 s{srdH+1}, s{sH+1}, 0xffff")
e(f"s_mov_b32 s{srdH+2}, 1280000")
e(f"s_mov_b32 s{srdH+3}, 0x20000")
e(f"s_mov_b32 s{srdPOS}, s{sPOS}")
e(f"s_and_b32 s{srdPOS+1}, s{sPOS+1}, 0xffff")
e(f"s_mov_b32 s{srdPOS+2}, 60000")
e(f"s_mov_b32 s{srdPOS+3}, 0x20000")
e(f"s_cmp_ge_u32 s{sW}, 6")
e(f"global_load_lds_dwordx4 v{WA1}, {s(sWE,2)}")
e("s_cbranch_scc1 L_d67")
e(f"s_add_u32 m0, s60, {HB}")
e("s_nop 0")
e(f"buffer_load_dwordx4 v{HA}, {s(srdH,4)}, 0 offen lds")
e("s_branch L_ddone")
e.label("L_d67")
e(f"s_add_u32 s62, s{sWE}, 16384")
e(f"s_addc_u32 s63, s{sWE+1}, 0")
e(f"v_lshlrev_b32 v5, 4, v{L}")
e(f"s_cmp_eq_u32 s{sW}, 7")
e(f"s_cselect_b64 s[62:63], {s(sWX,2)}, s[62:63]")
e(f"s_cselect_b32 s61, 256, 0")
e(f"s_cselect_b32 s97, 8, 16")
e(f"s_add_u32 m0, s61, {WL}")
e("s_bfm_b64 exec, s97, 0")
e(f"global_load_lds_dwordx4 v5, s[62:63]")
e("s_mov_b64 exec, -1")
e.label("L_ddone")
e("s_barrier")
def srcloads():
    e(f"global_load_dwordx4 {v(SRCR,4)}, v8, {s(sSRC,2)}")
    e(f"global_load_dword v{SRCR+4}, v9, {s(sSRC,2)}")
    e(f"global_load_dwordx2 {v(ER,2)}, v10, {s(sE,2)}")
    e(f"global_load_short_d16_hi v{ER+2}, v11, {s(sE,2)}")
    e(f"global_load_dword v71, v{ZP}, {s(sWS,2)}")
NPW = 0
if OPT["srcat"] == "b0": srcloads()
stamp(1)
e(f"s_mul_i32 s{sCHF}, s{sW}, 86")
e(f"s_lshr_b32 s{sCHF}, s{sCHF}, 8")
e(f"s_mul_i32 s61, s{sCHF}, 3")
e(f"s_sub_u32 s{sNG}, s{sW}, s61")
e(f"s_and_b32 s61, s{sW}, 3")
e("s_lshl_b32 s61, s61, 1")
e(f"s_lshr_b32 s62, s{sW}, 2")
e("s_add_u32 s61, s61, s62")
e("s_lshl_b32 s61, s61, 8")
e("s_add_u32 s61, s61, 8192")
e(f"v_and_b32 v5, 0x70, v{WA0}")
e(f"v_bfe_u32 v6, v{L}, 3, 2")
e("v_lshl_add_u32 v5, v6, 11, v5")
e(f"v_lshrrev_b32 v6, 5, v{L}")
e("v_lshl_add_u32 v5, v6, 7, v5")
e(f"v_add_u32 v{WA2}, s61, v5")
e(f"v_and_b32 v1, 15, v{L}")
e(f"v_lshrrev_b32 v3, 4, v{L}")
e(f"s_lshl_b32 s61, s{sNG}, 11")
e(f"s_add_u32 s61, s61, {HB}")
e(f"v_and_b32 v2, 7, v{L}")
e("v_xor_b32 v2, v2, v3")
e("v_lshl_add_u32 v4, v1, 7, s61")
e(f"v_lshl_add_u32 v{aWH+1}, v2, 4, v4")
e(f"v_xor_b32 v{aWH+2}, 64, v{aWH+1}")
e(f"v_bfe_u32 v6, v{L}, 2, 2")
e(f"v_and_b32 v2, 3, v{L}")
e("v_lshl_add_u32 v4, v3, 3, v6")
e(f"v_lshlrev_b32 v7, 2, v{L}")
e("v_and_b32 v7, 0x60, v7")
e(f"s_xor_b32 s61, s{sCHF}, 1")
e("s_lshl_b32 s61, s61, 13")
e(f"s_add_u32 s61, s61, {WE}")
e("v_lshl_add_u32 v5, v4, 7, s61")
e("v_lshl_add_u32 v5, v2, 3, v5")
e(f"v_xor_b32 v{aWT}, v7, v5")
for t in range(1, 4): e(f"v_xor_b32 v{aWT+t}, {32*t}, v{aWT}")
e(f"s_lshl_b32 s61, s{sCHF}, 6")
e(f"s_add_u32 s61, s61, {WH}")
e("v_lshl_add_u32 v6, v2, 4, s61")
e("v_lshl_add_u32 v5, v4, 7, v6")
e(f"v_xor_b32 v{aWH}, v7, v5")
e(f"s_lshl_b32 s61, s{sNG}, 4")
e(f"s_add_u32 s61, s61, s{sN0}")
e("s_lshl_b32 s61, s61, 7")
e(f"s_add_u32 s61, s61, {WS_BP}")
e("v_lshl_add_u32 v2, v3, 9, s61")
e(f"v_lshl_add_u32 v{aWH+3}, v1, 3, v2")
e("v_mov_b32 v13, 8")
e("s_mov_b32 s61, 52429")
e("s_movk_i32 s62, -40")
if OPT["srcat"] == "pre": srcloads()
if OPT["srcat"] == "d1":
    e("s_waitcnt vmcnt(3)")
    srcloads()
e(f"s_waitcnt vmcnt({2 if OPT['srcat'] in ('dst', 'atom') else 7})")
if OPT["srcat"] == "dst": srcloads()
if OPT["stamps"]: e("s_waitcnt lgkmcnt(0)")
stamp(14)
for i in range(5): e(f"v_mul_u32_u24 v{B4+i}, s61, v{DSTR+i}")
for i in range(5): e(f"v_lshrrev_b32 v{B4+i}, 21, v{B4+i}")
for i in range(5):
    e(f"v_lshlrev_b32 v{B4+i}, 2, v{B4+i}")
    e(f"ds_add_rtn_u32 v{RK+i}, v{B4+i}, v13 offset:{CNT1}")
if OPT["srcat"] == "atom": srcloads()
e(f"v_lshlrev_b32 v1, 4, v{L}")
e(f"s_waitcnt vmcnt({5+NPW}) lgkmcnt(0)")
e("s_barrier")
stamp(2)
e(f"ds_read_b128 v[4:7], v1 offset:{CNT1}")
def nodeprod_reads():
    e(f"ds_read_b128 {v(HF,4)}, v{aWH+1}")
    e(f"ds_read_b128 {v(HF+4,4)}, v{aWH+2}")
    for t in range(4):
        for ks in range(2):
            for rd in range(2):
                e(f"ds_read_b64_tr_b16 {v(WT+8*t+4*ks+2*rd,2)}, v{aWT+t} offset:{ks*4096+rd*512}")
def nodeprod():
    e(f"s_mov_b32 s61, {NL2E}")
    for t in range(4):
        e(f"v_mfma_f32_16x16x32_bf16 {v(DT+4*t,4)}, {v(HF,4)}, {v(WT+8*t,4)}, 0")
        e(f"v_mfma_f32_16x16x32_bf16 {v(DT+4*t,4)}, {v(HF+4,4)}, {v(WT+8*t+4,4)}, {v(DT+4*t,4)}")
    e("s_nop 1")
    for i in range(16): e(f"v_mul_f32 v{DT+i}, s61, v{DT+i}")
for base, a, ptr in ((WE, WA0, sWE), (WH, WA0, sWH), (WH+8192, WA2, sWH)):
    e(f"s_add_u32 m0, s60, {base}")
    e("s_nop 0")
    e(f"global_load_lds_dwordx4 v{a}, {s(ptr,2)}")
e("s_waitcnt lgkmcnt(0)")
e(f"s_cmp_ge_u32 s{sW}, 3")
e("s_cbranch_scc1 L_nobr")
nodeprod_reads()
e.label("L_nobr")
e("v_add_u32 v5, v4, v5")
e("v_add_u32 v6, v5, v6")
e("v_add_u32 v7, v6, v7")
e("v_mov_b32 v3, v7")
fill = [f"v_lshlrev_b32 v{XW+2*i}, 2, v{DSTR+i}" for i in range(5)] + \
       [f"v_mad_i32_i24 v{XW+2*i}, v{B4+i}, s62, v{XW+2*i}" for i in range(5)] + \
       [f"v_add_u32 v{RK+i}, {STG}, v{RK+i}" for i in range(5)]
scan(3, fill[:12])
e("v_sub_u32 v8, v3, v7")
e("v_add_u32 v9, v8, v4")
e("v_add_u32 v10, v8, v5")
e("v_add_u32 v11, v8, v6")
e(f"ds_write_b128 v1, v[8:11] offset:{OFF1}")
for i in range(5): e(f"ds_read_b32 v{B4+i}, v{B4+i} offset:{OFF1}")
for x in fill[12:]: e(x)
PB = 20
e(f"v_lshl_or_b32 v{PB}, v9, 16, v8")
e(f"v_lshl_or_b32 v{PB+1}, v11, 16, v10")
e(f"v_mov_b32 v{PB+2}, v3")
e("s_mov_b32 s63, 0xffff0000")
e("s_cbranch_scc1 L_nobp")
e("s_waitcnt lgkmcnt(6)")
nodeprod()
for r in range(4):
    e(f"v_cvt_pk_bf16_f32 v{WT+2*r}, v{DT+r}, v{DT+4+r}")
    e(f"v_cvt_pk_bf16_f32 v{WT+2*r+1}, v{DT+8+r}, v{DT+12+r}")
e(f"s_cmp_eq_u32 s{sNG}, 2")
e("s_cselect_b32 exec_hi, 0, -1")
for r in range(4): e(f"global_store_dwordx2 v{aWH+3}, {v(WT+2*r,2)}, {s(sWS,2)} offset:{r*128} sc1")
e("s_mov_b64 exec, -1")
e(f"s_waitcnt vmcnt({8+NPW})")
e("s_branch L_bpdone")
e.label("L_nobp")
e(f"s_waitcnt vmcnt({4+NPW})")
e.label("L_bpdone")
e(f"v_lshl_or_b32 v{XW+1}, v{ER}, 16, v{SRCR}")
e(f"v_and_or_b32 v{XW+3}, v{ER}, s63, v{SRCR+1}")
e(f"v_lshl_or_b32 v{XW+5}, v{ER+1}, 16, v{SRCR+2}")
e(f"v_and_or_b32 v{XW+7}, v{ER+1}, s63, v{SRCR+3}")
e(f"v_or_b32 v{XW+9}, v{ER+2}, v{SRCR+4}")
for i in range(5):
    e("s_waitcnt lgkmcnt(4)")
    e(f"v_add_u32 v{B4+i}, v{B4+i}, v{RK+i}")
    e(f"ds_write_b64 v{B4+i}, {v(XW+2*i,2)}")
e(f"s_mul_i32 s60, s2, {CH*8}")
e(f"s_add_u32 s60, s60, {WS_REC}")
e("v_add_u32 v2, s60, v12")
e("v_add_u32 v3, 8192, v2")
e("v_add_u32 v4, 16384, v2")
e(f"v_add_u32 v5, {STG}, v12")
e(f"s_lshl_b32 s60, s2, 10")
e(f"s_add_u32 s60, s60, {WS_OFF}")
e(f"v_add_u32 v{PBA}, s60, v1")
e(f"s_lshl_b32 s60, s{sW}, 3")
e("s_lshl_b64 s[62:63], 0xff, s60")
e(f"s_cmp_ge_u32 s{sW}, 3")
e("s_cbranch_scc1 L_tw3")
e(f"s_waitcnt vmcnt({7+NPW})")
e("s_branch L_tw")
e.label("L_tw3")
e(f"s_waitcnt vmcnt({3+NPW})")
e.label("L_tw")
e(f"v_add_u32 v{PB+3}, {TAGC}, v71")
e(f"v_and_b32 v71, 0xffffff00, v{PB+3}")
e(f"s_cmp_ge_u32 s{sW}, 4")
e(f"v_readfirstlane_b32 s{sTAG}, v{PB+3}")
e(f"v_readfirstlane_b32 s{sTAGR}, v71")
e("s_waitcnt lgkmcnt(0)")
e("s_barrier")
stamp(3)
ST = 48
for i in range(3): e(f"ds_read_b128 {v(ST+4*i,4)}, v5 offset:{i*8192}")
for i in range(4): e(f"v_mov_b32 v{8+i}, 0")
def tagit(r):
    e(f"v_or_b32 v{r}, v71, v{r}")
    e(f"v_or_b32 v{r+2}, v71, v{r+2}")
e("s_waitcnt lgkmcnt(2)")
tagit(ST)
e(f"global_store_dwordx4 v2, {v(ST,4)}, {s(sWS,2)} sc1")
e("s_waitcnt lgkmcnt(1)")
tagit(ST+4)
e(f"global_store_dwordx4 v3, {v(ST+4,4)}, {s(sWS,2)} sc1")
e("s_cbranch_scc1 L_no3")
e("s_waitcnt lgkmcnt(0)")
tagit(ST+8)
e(f"global_store_dwordx4 v4, {v(ST+8,4)}, {s(sWS,2)} sc1")
e("s_waitcnt vmcnt(3)")
e("s_branch L_st3")
e.label("L_no3")
e("s_waitcnt vmcnt(2)")
e.label("L_st3")
e("s_barrier")
e("s_mov_b64 exec, s[62:63]")
e(f"global_store_dwordx4 v{PBA}, {v(PB,4)}, {s(sWS,2)} sc1")
e("s_mov_b64 exec, -1")
if OPT["stamps"]: e("s_waitcnt lgkmcnt(0)")
stamp(15)
e(f"s_cmp_lg_u32 s2, {NWG-1}")
e("s_cbranch_scc1 L_nodummy")
e(f"v_mov_b32 v6, {WS_REC + NWG*CH*8}")
e(f"v_mov_b32 v7, s{sTAGR}")
e(f"global_store_dword v6, v7, {s(sWS,2)} sc1")
e.label("L_nodummy")
if OPT["posat"] == "window": posdma()
assert R2 + 6*8192 >= AT and R2 + 5*8192 <= AT
for i in range(5): e(f"ds_write_b128 v5, v[8:11] offset:{i*8192}")
e(f"v_cmp_gt_u32 vcc, {(AT - R2 - 5*8192)//16}, v0")
e("s_mov_b64 exec, vcc")
e(f"ds_write_b128 v5, v[8:11] offset:{5*8192}")
e("s_mov_b64 exec, -1")
PA4 = 16; PL = 32
e("v_lshrrev_b32 v1, 3, v0")
e(f"s_lshr_b32 s60, s{sB}, 2")
e("s_lshl_b32 s60, s60, 4")
e(f"s_add_u32 s60, s60, {WS_OFF}")
e(f"v_lshl_add_u32 v{PA4}, v1, 10, s60")
e(f"v_add_u32 v{PA4+1}, {64*1024}, v{PA4}")
e(f"v_add_u32 v{PA4+2}, {128*1024}, v{PA4}")
e("v_add_u32 v1, 192, v1")
e(f"v_min_u32 v1, {NWG-1}, v1")
e(f"v_lshl_add_u32 v{PA4+3}, v1, 10, s60")
e(f"s_mov_b32 s{sBUD}, 200000")
def poll_loads():
    for p in range(4): e(f"global_load_dwordx4 {v(PL+4*p,4)}, v{PA4+p}, {s(sWS,2)} sc1")
e(f"v_lshrrev_b32 v1, 5, v{L}")
e(f"v_and_b32 v6, 31, v{L}")
e("v_and_b32 v7, 3, v6")
e("v_lshrrev_b32 v13, 3, v6")
e("v_lshlrev_b32 v13, 2, v13")
e("v_lshl_add_u32 v7, v7, 4, v13")
e("v_bfe_u32 v13, v6, 2, 1")
e("v_add_u32 v7, v7, v13")
e("v_lshl_add_u32 v7, v1, 1, v7")
e(f"v_lshlrev_b32 v{CA0}, 1, v7")
e(f"v_add_u32 v{CA0}, {WL}, v{CA0}")
e(f"v_mul_u32_u24 v{aATb}, {ATS}, v7")
e(f"v_add_u32 v{aATb}, {AT}, v{aATb}")
e(f"ds_read_u16_d16_hi v{WX}, v{CA0}")
e(f"ds_read_u16_d16_hi v{WX+1}, v{CA0} offset:128")
e(f"s_cmp_ge_u32 s{sW}, 6")
e("s_cbranch_scc1 L_w67")
e(f"s_cmp_ge_u32 s{sW}, 3")
e("s_cbranch_scc1 L_w345")
for i in range(4): e(f"v_mov_b32 v{HRES+i}, v{HF+i}")
e("s_branch L_wdone")
e.label("L_w345")
nodeprod_reads()
e(f"v_and_b32 v1, 15, v{L}")
e(f"v_lshrrev_b32 v3, 4, v{L}")
e(f"s_lshl_b32 s60, s{sNG}, 5")
e(f"s_add_u32 s60, s60, {AT}")
e("v_lshl_add_u32 v2, v3, 3, s60")
e(f"v_mul_u32_u24 v1, {ATS}, v1")
e("v_add_u32 v2, v1, v2")
e("s_waitcnt lgkmcnt(0)")
nodeprod()
for t in range(4):
    e(f"v_cvt_pk_bf16_f32 v{WT+2*t}, v{DT+4*t}, v{DT+4*t+1}")
    e(f"v_cvt_pk_bf16_f32 v{WT+2*t+1}, v{DT+4*t+2}, v{DT+4*t+3}")
for i in range(4): e(f"v_mov_b32 v{HRES+i}, v{HF+4+i}")
for t in range(4): e(f"ds_write_b64 v2, {v(WT+2*t,2)} offset:{t*16*ATS}")
e("s_branch L_wdone")
e.label("L_w67")
e(f"ds_read_u16_d16_hi v4, v{CA0} offset:256")
e("v_and_b32 v7, 127, v0")
e(f"v_min_u32 v7, 119, v7")
e(f"s_mul_i32 s60, s{sB}, 240")
e(f"v_lshl_add_u32 v1, v7, 1, s60")
e(f"global_load_short_d16_hi v{vPosOwn}, v1, {s(sPOS,2)}")
e(f"v_mul_u32_u24 v1, 171, v7")
e("v_lshrrev_b32 v1, 9, v1")
e(f"v_mad_i32_i24 v2, v1, -3, v7")
e(f"v_lshlrev_b32 v{H1+2}, 2, v1")
e(f"v_lshl_add_u32 v{H1+3}, v2, 8, v{H1+2}")
e(f"v_lshlrev_b32 v{H1+1}, 3, v2")
e(f"v_add_u32 v{H1+1}, 256, v{H1+1}")
e(f"v_mul_u32_u24 v1, {ACCS}, v1")
e(f"v_add_u32 v1, {ACC}, v1")
e(f"v_add_u32 v{H1}, v1, v{H1+1}")
e(f"v_bfe_u32 v1, v{L}, 2, 1")
e(f"v_lshrrev_b32 v2, 3, v{L}")
e(f"v_and_b32 v3, 3, v{L}")
e("v_lshl_add_u32 v2, v2, 2, v3")
e("v_lshl_add_u32 v2, v1, 5, v2")
e("v_lshlrev_b32 v2, 2, v2")
e("s_waitcnt lgkmcnt(0)")
e(f"v_mul_f32 v4, {NLN2}, v4")
e(f"ds_write_b32 v2, v4 offset:{WXT}")
e.label("L_wdone")
if OPT["stamps"]: e("s_waitcnt lgkmcnt(0)")
stamp(4)
def laneconsts():
    e(f"s_add_u32 s{srdBP}, s{sWS}, {WS_BP}")
    e(f"s_addc_u32 s{srdBP+1}, s{sWS+1}, 0")
    e(f"s_and_b32 s{srdBP+1}, s{srdBP+1}, 0xffff")
    e(f"s_or_b32 s{srdBP+1}, s{srdBP+1}, 0x800000")
    e(f"s_mov_b32 s{srdBP+2}, 10000")
    e(f"s_mov_b32 s{srdBP+3}, 0x20000")
    e(f"s_mov_b32 s{sR0}, 0")
    e(f"s_mov_b32 s{sS}, 256")
    e(f"s_mov_b32 s{sOHC}, 0x3f80")
    e(f"s_mov_b32 s{sOHC+1}, 0")
    e(f"v_lshrrev_b32 v1, 5, v{L}")
    e(f"v_and_b32 v2, 1, v{L}")
    e(f"v_lshlrev_b32 v{vWxa}, 7, v1")
    e(f"v_lshlrev_b32 v3, 5, v1")
    e(f"v_lshl_add_u32 v{IDX+1}, v2, 4, v3")
    e(f"v_bfe_u32 v4, v{L}, 3, 2")
    e(f"v_bfe_u32 v5, v{L}, 1, 1")
    e("v_lshl_add_u32 v4, v4, 1, v5")
    e(f"v_bfe_u32 v5, v{L}, 2, 1")
    e("v_lshl_add_u32 v4, v5, 3, v4")
    e(f"v_lshlrev_b32 v{vIdxL}, 3, v4")
    e(f"s_lshl_b32 s60, s{sW}, 10")
    e(f"s_add_u32 s60, s60, {R1}")
    e(f"v_lshl_add_u32 v{aR1r}, v4, 4, s60")
    e("v_xor_b32 v5, v1, v2")
    e(f"v_lshl_add_u32 v{aR1r}, v5, 20, v{aR1r}")
    e(f"v_lshl_add_u32 v{aR1w}, v{L}, 4, s60")
    e(f"s_lshl_b32 s60, s{sW}, 12")
    e(f"s_add_u32 s60, s60, {R2}")
    e(f"v_bfe_u32 v3, v{L}, 1, 3")
    e(f"v_lshl_add_u32 v4, v{L}, 6, s60")
    e(f"v_lshl_add_u32 v{aR2b}, v3, 3, v4")
    e(f"v_mov_b32 v{aR2}, v{aR2b}")
    e(f"v_bfe_u32 v3, v{L}, 2, 2")
    e(f"v_and_b32 v4, 3, v{L}")
    e(f"v_bfe_u32 v5, v{L}, 4, 1")
    e("v_lshl_add_u32 v5, v5, 2, v4")
    e("v_lshrrev_b32 v7, 1, v3")
    e("v_lshl_add_u32 v7, v1, 2, v7")
    e("v_xor_b32 v5, v5, v7")
    e("v_lshl_add_u32 v7, v1, 3, v3")
    e("v_lshl_add_u32 v7, v7, 6, s60")
    e(f"v_lshl_add_u32 v{aS0}, v5, 3, v7")
    e(f"v_xor_b32 v{aS1}, 16, v{aS0}")
    e(f"v_add_u32 v{aS1}, 256, v{aS1}")
    e(f"v_and_b32 v6, 31, v{L}")
    e("v_lshlrev_b32 v7, 3, v1")
    e("v_sub_u32 v7, v6, v7")
    e("v_lshlrev_b32 v6, 4, v2")
    e(f"v_lshlrev_b32 v6, v6, s{sOHC}")
    e("v_ashrrev_i32 v7, 1, v7")
    for u, I in ((0, I0), (1, I1)):
        for d in range(4): e(f"v_cmp_eq_u32 {s(sMK+2*d,2)}, {8*u+d}, v7")
        for d in range(4): e(f"v_cndmask_b32 v{I+d}, 0, v6, {s(sMK+2*d,2)}")
    e("v_xor_b32 v7, 1, v1")
    e(f"v_mul_u32_u24 v{ONE}, 0x3f80, v7")
    e(f"v_mov_b32 v{ONE+1}, 0")
if OPT["ackwait"]: e("s_waitcnt vmcnt(0)")
if OPT["stamps"]: e("s_waitcnt lgkmcnt(0)")
stamp(5)
poll_loads()
if OPT["posat"] == "poll": posdma()
laneconsts()
RA = 80; RB = 96; KA = 48; KB = 56; AD = 64; LN = 112; LK = 16; vSB = 68; vJ = 116
mk = lambda rnd, p, h: sMK + 2 * (rnd * 8 + p * 2 + h)
def presets():
    for p in range(4):
        e(f"v_mov_b32 v{RA+4*p}, s{sTAGR}")
        e(f"v_mov_b32 v{RA+4*p+2}, s{sTAGR}")
def batchsetup(general):
    e("v_lshrrev_b32 v1, 3, v0")
    e("v_and_b32 v2, 7, v0")
    e(f"v_lshlrev_b32 v{vJ}, 4, v2")
    e(f"v_mul_u32_u24 v1, {CH*8}, v1")
    e(f"v_add_u32 v{vSB}, v1, v{vJ}")
    for p in range(4):
        e(f"s_add_u32 s60, s{sR0}, {WS_REC + p*64*CH*8}")
        e(f"s_add_u32 s{sRB+2*p}, s{sWS}, s60")
        e(f"s_addc_u32 s{sRB+2*p+1}, s{sWS+1}, 0")
    for k2, o in ((1, 8), (2, 128), (3, 136)): e(f"v_add_u32 v{vJ+k2}, {o}, v{vJ}")
    if general:
        e(f"v_mov_b32 v1, {OOB}")
        for k2 in range(4):
            e(f"v_cmp_gt_u32 vcc, s{sS}, v{vJ+k2}")
            e(f"v_add_u32 v{vJ+k2}, s{sR0}, v{vJ+k2}")
            e("s_nop 0")
            e(f"v_cndmask_b32 v{vJ+k2}, v1, v{vJ+k2}, vcc")
    presets()
batchsetup(False)
e(f"s_mov_b32 s{sONCE}, 0")
e(f"s_and_b32 s3, s{sB}, 1")
e("s_lshl_b32 s3, s3, 4")
e(f"s_movk_i32 s60, {(NWG-192)*8}")
e(f"v_cmp_gt_u32 {s(sVAL,2)}, s60, v0")
e("s_waitcnt vmcnt(7)" if OPT["posat"] == "poll" else "s_waitcnt vmcnt(0)")
e.label("L_chkoff")
e(f"v_cmp_ne_u32 s[60:61], s{sTAG}, v{PL+3}")
e(f"v_cmp_ne_u32 s[62:63], s{sTAG}, v{PL+7}")
e(f"v_cmp_ne_u32 s[96:97], s{sTAG}, v{PL+11}")
e(f"v_cmp_ne_u32 vcc, s{sTAG}, v{PL+15}")
e("s_or_b64 s[60:61], s[60:61], s[62:63]")
e("s_or_b64 s[96:97], s[96:97], vcc")
e("s_or_b64 s[60:61], s[60:61], s[96:97]")
e("s_cbranch_scc0 L_gotoff")
e(f"s_cmp_eq_u32 s{sBUD}, 0")
e("s_cbranch_scc1 L_gotoff")
e(f"s_sub_u32 s{sBUD}, s{sBUD}, 1")
poll_loads()
e("s_waitcnt vmcnt(0)")
e("s_branch L_chkoff")
e.label("L_gotoff")
if OPT["stamps"]: e("s_waitcnt lgkmcnt(0)")
stamp(6)
e(f"s_bitcmp1_b32 s{sB}, 1")
e("s_cbranch_scc1 L_hi2")
for p in range(4): e(f"v_alignbit_b32 v{SEG+p}, v{PL+4*p+1}, v{PL+4*p}, s3")
e("s_branch L_segs")
e.label("L_hi2")
for p in range(4): e(f"v_alignbit_b32 v{SEG+p}, v{PL+4*p+2}, v{PL+4*p+1}, s3")
e.label("L_segs")
e(f"v_cndmask_b32 v{SEG+3}, 0, v{SEG+3}, {s(sVAL,2)}")
e.label("L_fetch")
for p in range(4):
    e(f"v_sub_u32_sdwa v{LN+p}, v{SEG+p}, v{SEG+p} {SD} src0_sel:WORD_1 src1_sel:WORD_0")
    e(f"v_add_u32_sdwa v{AD+p}, v{SEG+p}, v{vSB} {SD} src0_sel:WORD_0 src1_sel:DWORD")
    e(f"v_cmp_lt_i32 {s(mk(0,p,0),2)}, v{vJ}, v{LN+p}")
for p in range(4):
    e(f"s_mov_b64 exec, {s(mk(0,p,0),2)}")
    e(f"global_load_dwordx4 {v(RA+4*p,4)}, v{AD+p}, {s(sRB+2*p,2)} sc1")
e("s_mov_b64 exec, -1")
for p in range(4): e(f"v_cmp_lt_i32 {s(mk(1,p,0),2)}, v{vJ+2}, v{LN+p}")
for p in range(4):
    e(f"s_mov_b64 exec, {s(mk(1,p,0),2)}")
    e(f"s_cbranch_execz L_nlb{p}")
    e(f"global_load_dwordx4 {v(RB+4*p,4)}, v{AD+p}, {s(sRB+2*p,2)} offset:128 sc1")
    e.label(f"L_nlb{p}")
e("s_mov_b64 exec, -1")
for p in range(4):
    e(f"v_cmp_lt_i32 {s(mk(0,p,1),2)}, v{vJ+1}, v{LN+p}")
    e(f"v_cmp_lt_i32 {s(mk(1,p,1),2)}, v{vJ+3}, v{LN+p}")
e(f"s_or_b64 s[60:61], {s(mk(1,0,0),2)}, {s(mk(1,1,0),2)}")
e(f"s_or_b64 s[62:63], {s(mk(1,2,0),2)}, {s(mk(1,3,0),2)}")
e("s_or_b64 s[60:61], s[60:61], s[62:63]")
e(f"s_or_b32 s{sANYB}, s60, s61")
e(f"v_max3_i32 v3, v{LN}, v{LN+1}, v{LN+2}")
e(f"v_max_i32 v3, v3, v{LN+3}")
e(f"s_add_u32 s60, s{sR0}, s{sS}")
e("v_mov_b32 v13, 8")
e("v_cmp_lt_i32 vcc, s60, v3")
e("s_mov_b64 exec, vcc")
e(f"ds_write_b32 v{ZP}, v13 offset:{CNT2+252}")
e("s_mov_b64 exec, -1")
e(f"s_cmp_lg_u32 s{sONCE}, 0")
e("s_cbranch_scc1 L_notfirst")
e(f"s_mov_b32 s{sONCE}, 1")
e(f"s_cmp_ge_u32 s{sW}, 6")
e("s_cbranch_scc1 L_p67")
for t in range(2):
    for ks in range(2):
        for rd in range(2):
            e(f"ds_read_b64_tr_b16 {v(W1T+8*t+4*ks+2*rd,2)}, v{aWH} offset:{ks*4096+rd*512+t*8}")
for t in range(2):
    for c in range(2):
        for rd in range(2):
            e(f"ds_read_b64_tr_b16 {v(WH2+8*t+4*c+2*rd,2)}, v{aWH} offset:{(2+c)*4096+rd*512+t*8}")
e(f"s_lshl_b32 s60, s{sNG}, 4")
e(f"v_and_b32 v1, 15, v{L}")
e(f"v_add_lshl_u32 v{vAItem}, v1, s60, 2")
e("s_waitcnt lgkmcnt(8)")
for t in range(2):
    e(f"v_mfma_f32_16x16x32_bf16 {v(H1+4*t,4)}, {v(W1T+8*t,4)}, {v(HF,4)}, 0")
    e(f"v_mfma_f32_16x16x32_bf16 {v(H1+4*t,4)}, {v(W1T+8*t+4,4)}, {v(HF+4,4)}, {v(H1+4*t,4)}")
e("s_branch L_pdone")
e.label("L_p67")
e(f"ds_write_b32 v{H1+3}, v{vPosOwn} offset:{PD}")
e(f"v_mov_b32 v{vAItem}, v{H1+2}")
e.label("L_pdone")
e(f"v_mul_f32 v{WX}, {NL2E}, v{WX}")
e(f"v_mul_f32 v{WX+1}, {NL2E}, v{WX+1}")
e(f"v_cvt_pk_bf16_f32 v1, v{WX}, v{WX}")
e("v_and_b32 v1, 0xffff0000, v1")
e(f"v_sub_f32 v2, v{WX}, v1")
e(f"v_cvt_pk_bf16_f32 v{WX}, v1, v2")
e(f"v_cvt_pk_bf16_f32 v{WX+1}, 0, v{WX+1}")
e.label("L_notfirst")
e("s_lshr_b32 s60, s2, 3")
e("s_lshl_b32 s60, s60, 3")
e(f"s_add_u32 s60, s60, s{sW}")
e("s_mul_i32 s60, s60, 41")
e(f"v_add_u32 v6, s60, v{L}")
e(f"v_lshlrev_b32 v1, 2, v{L}")
e(f"v_cmp_gt_u32 {s(sVAL,2)}, {NB}, v{L}")
e("s_waitcnt vmcnt(0)")
for i in range(8): e(f"v_xor_b32 v{RA+2*i}, s{sTAGR}, v{RA+2*i}")
e(f"v_or3_b32 v4, v{RA}, v{RA+2}, v{RA+4}")
e(f"v_or3_b32 v5, v{RA+6}, v{RA+8}, v{RA+10}")
e(f"v_or3_b32 v4, v4, v{RA+12}, v{RA+14}")
def bsite(name):
    e(f"s_cmp_eq_u32 s{sANYB}, 0")
    e(f"s_cbranch_scc1 L_{name}")
    for p in range(4):
        e(f"s_mov_b64 exec, {s(mk(1,p,0),2)}")
        if name == "bx":
            e(f"v_xor_b32 v{RB+4*p}, s{sTAGR}, v{RB+4*p}")
            e(f"v_xor_b32 v{RB+4*p+2}, s{sTAGR}, v{RB+4*p+2}")
            e(f"v_or3_b32 v5, v5, v{RB+4*p}, v{RB+4*p+2}")
        elif name == "ba":
            e(f"ds_add_rtn_u32 v{KB+2*p}, v{RB+4*p}, v13 offset:{CNT2}")
            e(f"s_mov_b64 exec, {s(mk(1,p,1),2)}")
            e(f"ds_add_rtn_u32 v{KB+2*p+1}, v{RB+4*p+2}, v13 offset:{CNT2}")
        elif name == "bl":
            e(f"ds_read_b32 v{LK+8+2*p}, v{RB+4*p} offset:{BASE2}")
            e(f"ds_read_b32 v{LK+9+2*p}, v{RB+4*p+2} offset:{BASE2}")
        else:
            e(f"v_add_u32 v7, v{LK+8+2*p}, v{KB+2*p}")
            e(f"v_add_u32 v8, v{LK+9+2*p}, v{KB+2*p+1}")
            e(f"ds_write_b64 v7, {v(RB+4*p,2)} offset:{SORT2}")
            e(f"s_mov_b64 exec, {s(mk(1,p,1),2)}")
            e(f"ds_write_b64 v8, {v(RB+4*p+2,2)} offset:{SORT2}")
    e.label(f"L_{name}")
    e("s_mov_b64 exec, -1")
bsite("bx")
e("v_or_b32 v4, v4, v5")
e("v_cmp_lt_u32 vcc, 0xff, v4")
e("s_cbranch_vccnz L_stale")
e.label("L_gotrec")
if OPT["stamps"]: e("s_waitcnt lgkmcnt(0)")
stamp(7)
for p in range(4):
    for h in range(2):
        e(f"s_mov_b64 exec, {s(mk(0,p,h),2)}")
        e(f"ds_add_rtn_u32 v{KA+2*p+h}, v{RA+4*p+2*h}, v13 offset:{CNT2}")
bsite("ba")
PS_ = OPT.get("psplit", (3, 5, 8))
if OPT["posat"] == "sort": posdma(0, PS_[0])
if OPT["bpf"]:
    e("s_mov_b32 exec_hi, 0x1ff")
    e(f"buffer_load_dword v{TCH}, v6, {s(srdBP,4)}, 0 idxen")
    e("s_mov_b64 exec, -1")
e("s_waitcnt lgkmcnt(0)")
e("s_barrier")
stamp(8)
e(f"ds_read_b32 v2, v1 offset:{CNT2}")
if OPT["posat"] == "sort": posdma(PS_[0], PS_[1])
e("s_waitcnt lgkmcnt(0)")
e(f"v_max_u32 v4, {PADB}, v2")
e(f"v_cndmask_b32 v5, 0, v4, {s(sVAL,2)}")
scan(5, [f"v_readlane_b32 s{sMORE}, v2, 63", f"v_cmp_lt_u32 vcc, v2, v4"])
e(f"v_sub_u32 v6, v5, v4")
e(f"ds_write_b32 v1, v6 offset:{BASE2}")
for i in range(8): e(f"ds_read_b32 v{LK+i}, v{RA+2*i} offset:{BASE2}")
e(f"v_readlane_b32 s3, v5, 63")
bsite("bl")
if OPT["posat"] == "sort" and PS_[1] < 8: posdma(PS_[1], 8)
e(f"s_cmp_gt_u32 s3, {CAPB}")
e("s_cbranch_scc1 L_redo")
e(f"s_and_b64 vcc, vcc, {s(sVAL,2)}")
e("s_cbranch_scc1 L_pad0")
e.label("L_nopad")
e("s_add_u32 s96, s3, 127")
e("s_lshr_b32 s60, s96, 10")
e("s_bfe_u32 s61, s96, 0x30007")
e(f"s_mul_i32 s62, s60, s{sW}")
e(f"s_min_u32 s63, s61, s{sW}")
e("s_add_u32 s62, s62, s63")
e(f"s_cmp_lt_u32 s{sW}, s61")
e(f"s_addc_u32 s{sCNT}, s60, 0")
e("s_lshl_b32 s62, s62, 7")
e("v_cmp_ge_u32 vcc, s62, v5")
e(f"s_lshl_b32 s63, s{sCNT}, 7")
e("s_add_u32 s63, s63, s62")
e("v_cmp_gt_u32 s[60:61], s63, v5")
e("s_waitcnt lgkmcnt(0)")
for p in range(4):
    for h in range(2):
        i = 2*p+h
        e(f"s_mov_b64 exec, {s(mk(0,p,h),2)}")
        e(f"v_add_u32 v{LK+i}, v{LK+i}, v{KA+i}")
        e(f"ds_write_b64 v{LK+i}, {v(RA+2*i,2)} offset:{SORT2}")
bsite("bw")
e(f"s_bcnt1_i32_b64 s{sNFW}, vcc")
e(f"s_lshl_b32 s{sBASE}, s{sNFW}, 2")
e(f"s_or_b32 s{sSLOW}, s{sR0}, s{sMORE}")
e(f"s_cselect_b32 s{sNFW}, 252, s{sBASE}")
e(f"s_cmp_eq_u32 s{sCNT}, 0")
e(f"s_cselect_b32 s{sNFW}, 252, s{sNFW}")
e(f"s_lshl_b32 s63, 1, s{sW}")
e(f"v_mov_b32 v7, s{sNFW}")
e("v_mov_b32 v8, s63")
e(f"s_add_u32 s3, s3, {SORT2}")
e(f"s_lshl_b32 s63, s{sW}, 6")
e("s_add_u32 s3, s3, s63")
e("v_lshl_add_u32 v9, v1, 1, s3")
e(f"v_mov_b32 v10, {(NB-1)*4}")
e("v_mov_b32 v11, 10000")
e("s_mov_b64 exec, 1")
e(f"ds_or_b32 v7, v8 offset:{LNK}")
e("s_mov_b64 exec, 0xff")
e("ds_write_b64 v9, v[10:11]")
e("s_mov_b64 exec, -1")
e(f"s_add_u32 s62, s62, {SORT2}")
e(f"v_lshl_add_u32 v{aRec}, v{L}, 3, s62")
e(f"v_add3_u32 v{aIdx}, s62, 4, v{vIdxL}")
e(f"s_bcnt1_i32_b64 s{sNLW}, s[60:61]")
e(f"s_min_u32 s{sNLW}, s{sNLW}, {NB-1}")
e(f"s_lshl_b32 s{sNLW}, s{sNLW}, 2")
e("s_waitcnt vmcnt(0) lgkmcnt(0)" if OPT["posat"] == "sort" else "s_waitcnt lgkmcnt(0)")
e("s_barrier")
stamp(9)
def gather(b, pair):
    return [f"buffer_load_dwordx4 {v(G[b],4)}, {v(pair,2)}, {s(srdBP,4)}, 0 idxen offen",
            f"buffer_load_dwordx4 {v(G[b]+4,4)}, {v(pair,2)}, {s(srdBP,4)}, 0 idxen offen offset:64"]
def build1():
    return [f"v_mul_u32_u24_sdwa v{BT}, 6, v{REC+1} {SD} src0_sel:DWORD src1_sel:WORD_0",
            f"ds_read2st64_b32 {v(PDV,2)}, v{REC} offset0:{PD//256} offset1:{PD//256+1}",
            f"ds_read_u16_d16_hi v{PS}, v{BT} offset:{POS}",
            f"ds_read_u16_d16_hi v{PS+1}, v{BT} offset:{POS+2}",
            f"ds_read_u16_d16_hi v{PS+2}, v{BT} offset:{POS+4}",
            f"ds_read_b32 v{PDV+2}, v{REC} offset:{PD+512}",
            f"v_readlane_b32 s{sNF}, v{REC}, 0",
            f"v_readlane_b32 s{sNL}, v{REC}, 63",
            f"v_cmp_ne_u32 vcc, 60000, v{BT}",
            f"v_add_u32 v{BT+1}, v{REC}, v{REC}",
            f"s_and_b32 s60, s{sNF}, -8",
            f"s_mul_i32 s{sNEG}, s60, -4",
            f"s_lshr_b32 s60, s60, 1",
            f"s_mov_b64 {s(sVAL,2)}, vcc",
            f"v_lshl_add_u32 v{BT+2}, v{REC}, 2, s{sNEG}",
            f"v_add_u32 v{aAT}, s60, v{aATb}",
            f"v_lshlrev_b64 {v(REC+2,2)}, v{BT+2}, {s(sOHC,2)}"]
def build2():
    return [f"v_sub_f32 v{PDV}, v{PDV}, v{PS}",
            f"v_sub_f32 v{PDV+1}, v{PDV+1}, v{PS+1}",
            f"v_sub_f32 v{PDV+2}, v{PDV+2}, v{PS+2}",
            f"v_cvt_pk_bf16_f32 v{R2V}, v{PDV}, v{PDV+1}",
            f"v_cvt_pk_bf16_f32 v{R2V+1}, v{PDV+2}, 1.0",
            f"v_dot2_f32_bf16 v{BT}, v{R2V}, v{R2V}, 0",
            f"v_lshlrev_b32 v{BT+2}, 16, v{R2V+1}",
            None, None,
            f"v_fmac_f32 v{BT}, v{BT+2}, v{BT+2}",
            f"v_cvt_pk_bf16_f32 v{REC}, v{BT}, v{BT}"]
def build3():
    return [f"ds_write_b64 v{aR2}, {v(ZP,2)}",
            f"v_bitop3_b32 v{aR2}, v{BT+1}, 56, v{aR2b} bitop3:0x6a",
            f"ds_write_b128 v{aR1w}, {v(REC,4)}",
            f"s_mov_b64 exec, {s(sVAL,2)}\nds_write_b64 v{aR2}, {v(R2V,2)}\ns_mov_b64 exec, -1",
            f"ds_read2_b32 {v(WX+2,2)}, v{aAT} offset1:1"]
def opreads(n):
    return [f"ds_read_b128 {v(R1OP,4)}, v{aR1r} offset:{n*256}",
            f"ds_read_b64_tr_b16 {v(S[n],2)}, v{aS0} offset:{n*1024}",
            f"ds_read_b64_tr_b16 {v(S[n]+2,2)}, v{aS1} offset:{n*1024}"]
def stage1(n):
    t = T[n & 1]
    return [f"v_mfma_f32_32x32x16_bf16 {v(t,16)}, {v(R1OP,4)}, {v(WX,4)}, 0",
            f"v_mfma_f32_32x32x16_bf16 {v(t,16)}, {v(G[n],4)}, {v(I0,4)}, {v(t,16)}",
            f"v_mfma_f32_32x32x16_bf16 {v(t,16)}, {v(G[n]+4,4)}, {v(I1,4)}, {v(t,16)}"]
def stage2(n):
    return [f"v_mfma_f32_32x32x16_bf16 {v(AC[c],16)}, {v(M[c],4)}, {v(S[n],4)}, {v(AC[c],16)}" for c in range(2)]
def mulcvt(q):
    L_ = []
    for a in range(4):
        if 4*a >= 16 - OPT["lut"]:
            for c in range(2): L_.append(f"v_or_b32 v{M[c]+a}, v{T[q]+4*a+c}, v{T[q]+4*a+2+c}")
            continue
        for r in range(4): L_.append(f"v_mul_f32 v{E[q]+4*a+r}, v{E[q]+4*a+r}, v{T[q]+4*a+r}")
        for c in range(2): L_.append(f"v_cvt_pk_bf16_f32 v{M[c]+a}, v{E[q]+4*a+c}, v{E[q]+4*a+2+c}")
    return L_
def flushchk(lbl):
    e(f"s_min_u32 s60, s{sNL}, s{sNLW}")
    e(f"s_sub_u32 s60, s60, s{sBASE}")
    e("s_cmp_ge_u32 s60, 32")
    e(f"s_cbranch_scc1 L_flush_{lbl}")
    e.label(f"L_flret_{lbl}")
def rowaddr():
    return [f"v_subrev_u32 v1, s{sBASE}, v{L}",
            "v_and_b32 v1, 28, v1",
            f"v_add_u32 v1, s{sBASE}, v1",
            f"v_cmp_eq_u32 vcc, s{sNFW}, v1",
            f"v_cmp_lt_u32 s[62:63], s{sNLW}, v1",
            f"s_lshl_b32 s61, s{sW}, 2",
            f"s_add_u32 s61, s61, {NB*4}",
            "v_mov_b32 v2, s61",
            "v_cndmask_b32 v1, v1, v2, vcc",
            f"v_mov_b32 v2, {OOB//64}",
            "v_cndmask_b32 v1, v1, v2, s[62:63]",
            f"v_mul_u32_u24 v1, {ACCS//4}, v1",
            f"v_add_u32 v1, {ACC}, v1",
            f"v_lshrrev_b32 v2, 5, v{L}",
            f"v_lshl_add_u32 v{vRowM}, v2, 4, v1",
            f"v_lshl_add_u32 v1, v2, 2, v1",
            f"v_and_b32 v2, 3, v{L}",
            f"v_lshl_add_u32 v{vRowP}, v2, 3, v1"]
def mmask():
    e("s_mov_b32 exec_lo, 0x88888888")
    e("s_mov_b32 exec_hi, 0x88888888")
def flush_slow():
    e("s_nop 7")
    e("v_mov_b32 v2, 0")
    for i in range(8):
        e(f"ds_read_b128 v[4:7], v{vWxa} offset:{WXT+16*i}")
        e("s_waitcnt lgkmcnt(0)")
        for r in range(4): e(f"v_fmac_f32 v2, v{AC[0]+4*i+r}, v{4+r}")
    e(f"ds_add_f32 v{vRowP}, v2 offset:256")
    mmask()
    for i in range(32): e(f"ds_add_f32 v{vRowM}, v{AC[0]+i} offset:{(i//4)*32+(i%4)*4}")
    e("s_mov_b64 exec, -1")

def pkmul(q): return [f"v_pk_mul_f32 {v(E[q]+2*i,2)}, {v(E[q]+2*i,2)}, {v(T[q]+2*i,2)}" for i in range(8)]
def mul(q): return [f"v_mul_f32 v{E[q]+i}, v{E[q]+i}, v{T[q]+i}" for i in range(16)]
def cvt(q): return [f"v_cvt_pk_bf16_f32 v{M[c]+a}, v{E[q]+4*a+c}, v{E[q]+4*a+2+c}" for a in range(4) for c in range(2)]

def step(sidx, first=False):
    q = sidx & 1; n1 = (sidx + 1) & 3
    side = gather(sidx, IDX) + [f"ds_read_u16 v{IDX}, v{aIdx} offset:{(sidx+5)*128}"]
    if sidx == 3:
        side += build3()
    side += opreads(n1)
    if sidx == 0: side += [f"ds_read_b64 {v(REC,2)}, v{aRec} offset:512"]
    if sidx == 1: side += build1()
    if sidx == 2: side += build2()
    if sidx == 3: side += [f"v_add_u32 v{aIdx}, 512, v{aIdx}", f"v_add_u32 v{aRec}, 512, v{aRec}"]
    if sidx == 1: flushchk("mid")
    if OPT["prio"] and not first:
        e(f"s_cmp_gt_u32 s{sCNT}, {OPT['pr'][0]}")
        e(f"s_cbranch_scc0 L_prio{sidx}")
        e.label(f"L_prret{sidx}")
    exps = [f"v_exp_f32 v{E[q]+i}, v{T[q]+i}" for i in range(16)]
    pre = [y for y in side if y is not None and ("sdwa" in y or "readlane" in y or "v_cmp" in y)]
    mem = [y for y in side if y is not None and (y.startswith(("ds_", "buffer_", "s_")) or "bitop3" in y)]
    oth = [y for y in side if y is None or (y not in pre and y not in mem)]
    for y in pre: e(y)
    for y in mem: e(y)
    k = 0
    for i, x in enumerate(exps):
        e(x)
        if k < len(oth):
            if oth[k] is not None: e(oth[k])
            k += 1
    assert k == len(oth)
    addone = f"v_mfma_f32_32x32x8_bf16 {v(E[q],16)}, {v(ONE,2)}, {v(ONE,2)}, {v(E[q],16)}"
    if first:
        e("s_nop 1"); e(addone); e("s_nop 7")
    elif OPT["pk"]:
        for x in pkmul(1 - q): e(x)
        e(addone)
        for x in cvt(1 - q): e(x)
    else:
        mc = mulcvt(1 - q)
        e(mc[0]); e(mc[1]); e(addone)
        for x in mc[2:]: e(x)
    e(f"s_sub_u32 s{sCNT}, s{sCNT}, 1")
    e("s_waitcnt vmcnt(6) lgkmcnt(0)")
    mf = stage1(n1) + ([] if first else stage2((sidx - 1) & 3))
    rc = [f"v_rcp_f32 v{E[q]+i}, v{E[q]+i}" for i in range(16)]
    for i, x in enumerate(rc):
        if i % 3 == 0 and i // 3 < len(mf):
            e(mf[i // 3])
            if i == 0 and (OPT["pk"] or first): e("s_nop 0")
        e(x)
    if first: e("s_nop 0")
    e(f"s_cbranch_scc1 L_drain{sidx}")

PI = E[0]
e(f"ds_read_b64 {v(REC,2)}, v{aRec}")
for n in range(4): e(f"ds_read_u16 v{PI+2*n}, v{aIdx} offset:{n*128}")
e(f"ds_read_u16 v{IDX}, v{aIdx} offset:{4*128}")
e(f"ds_read_b32 v{vMask}, v{vAItem} offset:{LNK}")
e(f"ds_write_b32 v1, v{ZP} offset:{CNT2}")
e(f"s_sub_u32 s{sCNT}, s{sCNT}, 1")
e("s_cbranch_scc1 L_b6")
for n in range(4): e(f"v_mov_b32 v{PI+2*n+1}, v{IDX+1}")
if OPT["prio"]: e("s_setprio 3")
e("s_waitcnt lgkmcnt(3)")
b1 = build1()
for x in gather(0, PI): e(x)
for x in b1: e(x)
for i in range(16): e(f"v_mov_b32 v{AC[0]+i}, 0")
e("s_waitcnt lgkmcnt(0)")
zi = 16
for x in build2():
    if x is None:
        e(f"v_mov_b32 v{AC[0]+zi}, 0"); zi += 1
    else: e(x)
for x in build3(): e(x)
for x in opreads(0): e(x)
for x in gather(1, PI + 2): e(x)
for i in range(zi, 32): e(f"v_mov_b32 v{AC[0]+i}, 0")
e("s_waitcnt vmcnt(2) lgkmcnt(0)")
for x in stage1(0): e(x)
for n in (2, 3):
    for x in gather(n, PI + 2*n): e(x)
for x in rowaddr(): e(x)
stamp(10)
step(0, first=True)
e("s_branch L_s1")
e.label("L_s0")
step(0)
e.label("L_s1")
step(1)
step(2)
step(3)
e("s_branch L_s0")
if OPT["prio"]:
    for sidx in range(4):
        p3, p2, p1 = OPT["pr"]
        e.label(f"L_prio{sidx}")
        e("s_setprio 2")
        e(f"s_cmp_gt_i32 s{sCNT}, {p2}")
        e(f"s_cbranch_scc1 L_prret{sidx}")
        e("s_setprio 1")
        e(f"s_cmp_gt_i32 s{sCNT}, {p1}")
        e(f"s_cbranch_scc1 L_prret{sidx}")
        e("s_setprio 0")
        e(f"s_branch L_prret{sidx}")
for sidx in range(4):
    q = sidx & 1
    e.label(f"L_drain{sidx}")
    if sidx == 0: flushchk("dr")
    for i in range(4): e(f"ds_read_b128 {v(E[1-q]+4*i,4)}, v{vWxa} offset:{WXT+16*i}")
    for i in range(4): e(f"ds_read_b128 {v(T[1-q]+4*i,4)}, v{vWxa} offset:{WXT+64+16*i}")
    for x in mulcvt(q): e(x)
    e(f"s_cmp_lg_u32 s{sSLOW}, 0")
    e("s_nop 0")
    for x in stage2(sidx): e(x)
    e("s_cbranch_scc1 L_slow_final")
    if sidx < 2: e(f"s_branch L_final_flush{q}")
    else:
        e.label(f"L_final_flush{q}")
        stamp(11)
        e("s_waitcnt lgkmcnt(0)")
        e("s_nop 6")
        mmask()
        for i in range(4): e(f"ds_write_b128 v{vRowM}, {v(AC[0]+4*i,4)} offset:{i*32}")
        e("s_mov_b64 exec, -1")
        e(f"v_mul_f32 v2, v{AC[0]}, v{E[1-q]}")
        for i in range(1, 16): e(f"v_fmac_f32 v2, v{AC[0]+i}, v{E[1-q]+i}")
        mmask()
        for i in range(4): e(f"ds_write_b128 v{vRowM}, {v(AC[1]+4*i,4)} offset:{128+i*32}")
        e("s_mov_b64 exec, -1")
        for i in range(16): e(f"v_fmac_f32 v2, v{AC[1]+i}, v{T[1-q]+i}")
        e(f"ds_write_b32 v{vRowP}, v2 offset:256")
        if sidx == 2: e("s_branch L_b6")
e.label("L_b6")
e("s_setprio 0")
def bfaddr(dst):
    e(f"v_ffbl_b32 v5, v{vMask}")
    e(f"v_add_u32 v6, -1, v{vMask}")
    e(f"v_min_u32 v5, {OOB//256}, v5")
    e(f"v_and_b32 v{vMask}, v6, v{vMask}")
    e(f"v_mul_u32_u24 v5, {ACCS}, v5")
    e(f"v_add_u32 v{dst}, {BF}, v5")
e(f"v_and_b32 v1, 15, v{L}")
e(f"v_lshrrev_b32 v2, 4, v{L}")
e(f"s_lshl_b32 s60, s{sNG}, 4")
e("v_add_u32 v1, s60, v1")
e(f"v_mul_u32_u24 v3, {ACCS}, v1")
e("v_lshl_add_u32 v3, v2, 5, v3")
e(f"v_add_u32 v3, {ACC}, v3")
e("s_waitcnt lgkmcnt(0)")
bfaddr(4)
e("s_barrier")
stamp(12)
e(f"s_cmp_lg_u32 s{sMORE}, 0")
e("s_cbranch_scc1 L_more")
e(f"s_cmp_ge_u32 s{sW}, 6")
e("s_cbranch_scc1 L_finpos")
MR = 16; MB = 32; Y = 40; YE = 48; HU = 56; MX = 64
for c in range(2):
    for hf in range(2):
        e(f"ds_read_b128 {v(MR+8*c+4*hf,4)}, v3 offset:{c*128+hf*16}")
e.label("L_finbf")
e("v_lshl_add_u32 v4, v2, 5, v4")
for c in range(2):
    for hf in range(2):
        e(f"ds_read_b128 {v(MX+8*c+4*hf,4)}, v4 offset:{c*128+hf*16}")
e(f"v_cmp_ne_u32 vcc, 0, v{vMask}")
for d in range(4):
    e(f"v_lshlrev_b32 v{HU+2*d}, 16, v{HRES+d}")
    e(f"v_and_b32 v{HU+2*d+1}, 0xffff0000, v{HRES+d}")
for i in range(4):
    e(f"s_waitcnt lgkmcnt({3-i})")
    for d in range(4): e(f"v_add_f32 v{MR+4*i+d}, v{MR+4*i+d}, v{MX+4*i+d}")
e("s_cbranch_vccnz L_finbf_more")
for c in range(2):
    for d in range(4): e(f"v_cvt_pk_bf16_f32 v{MB+4*c+d}, v{MR+8*c+2*d}, v{MR+8*c+2*d+1}")
e(f"s_mov_b32 s60, {NLN2}")
e(f"s_mov_b32 s61, {NL2E}")
for t in range(2):
    e(f"v_mfma_f32_16x16x32_bf16 {v(Y+4*t,4)}, {v(WH2+8*t,4)}, {v(MB,4)}, 0")
    e(f"v_mfma_f32_16x16x32_bf16 {v(Y+4*t,4)}, {v(WH2+8*t+4,4)}, {v(MB+4,4)}, {v(Y+4*t,4)}")
e(f"v_cmp_gt_u32 vcc, {NB}, v1")
e(f"v_add_u32 v1, s{sN0}, v1")
e(f"s_lshl_b32 s62, s{sCHF}, 6")
e("v_lshl_add_u32 v2, v2, 4, s62")
e("v_lshl_add_u32 v1, v1, 7, v2")
e("s_nop 0")
for i in range(8): e(f"v_fma_f32 v{Y+i}, v{Y+i}, s60, v{H1+i}")
for i in range(8): e(f"v_mul_f32 v{YE+i}, s61, v{Y+i}")
for i in range(8): e(f"v_exp_f32 v{YE+i}, v{YE+i}")
for i in range(8): e(f"v_add_f32 v{YE+i}, 1.0, v{YE+i}")
for i in range(8): e(f"v_rcp_f32 v{YE+i}, v{YE+i}")
for i in range(8): e(f"v_fmac_f32 v{HU+i}, v{Y+i}, v{YE+i}")
for d in range(4): e(f"v_cvt_pk_bf16_f32 v{Y+d}, v{HU+2*d}, v{HU+2*d+1}")
e("s_mov_b64 exec, vcc")
e(f"global_store_dwordx4 v1, {v(Y,4)}, {s(sOUT,2)} {OPT.get('ost','')}")
stamp(13, last=True)
e("s_endpgm")
e.label("L_finpos")
e("s_cmp_lg_u32 s2, 0")
e("s_cbranch_scc1 L_noep")
e(f"v_mov_b32 v7, s{sTAG}")
e("s_mov_b64 exec, 1")
e(f"global_store_dword v{ZP}, v7, {s(sWS,2)}")
e("s_mov_b64 exec, -1")
e.label("L_noep")
e(f"ds_read_b64 v[16:17], v{H1}")
e.label("L_posbf")
e(f"v_add_u32 v4, v4, v{H1+1}")
e("ds_read_b64 v[18:19], v4")
e(f"v_cmp_ne_u32 vcc, 0, v{vMask}")
e("s_waitcnt lgkmcnt(0)")
e("v_add_f32 v16, v16, v18")
e("v_add_f32 v17, v17, v19")
e("s_cbranch_vccnz L_posbf_more")
e("v_and_b32 v1, 127, v0")
e("v_cmp_gt_u32 vcc, 120, v1")
e(f"s_mul_i32 s60, s{sB}, 240")
e("s_add_u32 s60, s60, 1280000")
e("v_lshl_add_u32 v1, v1, 1, s60")
e("v_add_f32 v16, v16, v17")
e(f"v_add_f32 v{vPosOwn}, v{vPosOwn}, v16")
e(f"v_cvt_pk_bf16_f32 v2, v{vPosOwn}, v{vPosOwn}")
e("s_mov_b64 exec, vcc")
e(f"global_store_short v1, v2, {s(sOUT,2)}")
stamp(13, last=True)
e("s_endpgm")
for lbl in ("mid", "dr"):
    e.label(f"L_flush_{lbl}")
    flush_slow()
    e("s_waitcnt lgkmcnt(0)")
    for i in range(32): e(f"v_mov_b32 v{AC[0]+i}, 0")
    e(f"s_mov_b32 s{sBASE}, s{sNF}")
    e(f"s_mov_b32 s{sSLOW}, 1")
    for x in rowaddr(): e(x)
    e(f"s_branch L_flret_{lbl}")
e.label("L_slow_final")
flush_slow()
e("s_branch L_b6")
e.label("L_finbf_more")
bfaddr(4)
e("s_branch L_finbf")
e.label("L_posbf_more")
bfaddr(4)
e("s_branch L_posbf")
e.label("L_stale")
e(f"s_cmp_eq_u32 s{sBUD}, 0")
e("s_cbranch_scc1 L_gotrec")
e(f"s_sub_u32 s{sBUD}, s{sBUD}, 1")
presets()
e("s_branch L_fetch")
e.label("L_pad0")
e("v_mov_b32 v8, v1")
e("v_mov_b32 v9, 10000")
e("s_mov_b64 exec, vcc")
e.label("L_pad")
e("v_add_u32 v7, v6, v2")
e("v_add_u32 v2, 8, v2")
e(f"ds_write_b64 v7, v[8:9] offset:{SORT2}")
e("v_cmp_lt_u32 vcc, v2, v4")
e("s_and_b64 exec, vcc, vcc")
e("s_cbranch_scc1 L_pad")
e("s_mov_b64 exec, -1")
e("s_branch L_nopad")
e.label("L_more")
e("s_waitcnt vmcnt(0)")
e(f"s_add_u32 s{sR0}, s{sR0}, s{sS}")
e(f"s_mov_b32 s{sS}, 256")
e.label("L_batch")
batchsetup(True)
e("s_branch L_fetch")
e.label("L_redo")
e(f"s_cmp_eq_u32 s{sS}, {SFALL}")
e("s_cbranch_scc1 L_end")
e("s_waitcnt vmcnt(0) lgkmcnt(0)")
e("s_barrier")
e(f"ds_write_b32 v1, v{ZP} offset:{CNT2}")
e(f"s_mov_b32 s{sS}, {SFALL}")
e("s_waitcnt lgkmcnt(0)")
e("s_barrier")
e("s_branch L_batch")
e.label("L_end")
e("s_endpgm")

probs = check_cfg(e.lines)
for p in probs: print("HAZARD", p, file=sys.stderr)

ref = open("cdna_kernels/" + KN + ".s.ref").read().split("\n")
hdr = []
for l in ref:
    if l.startswith("; Override launch"): break
    hdr.append(l)
out = "\n".join(hdr) + f"""
; One persistent launch: 250 workgroups (one per CU) bin the edges by destination bucket, hand the bins
; over through d_ws (tagged with a per-launch epoch), then each workgroup updates its 40 nodes.
; @launch grid=({NWG},1,1) block=(512,1,1) lds={LDS_SIZE}
.amdgcn_target "amdgcn-amd-amdhsa--gfx950"
.text
.globl {KN}_kernel
.p2align 8
.type {KN}_kernel,@function
{KN}_kernel:
{e.text()}.section .rodata,"a"
.p2align 6
.amdhsa_kernel {KN}_kernel
  .amdhsa_next_free_vgpr 256
  .amdhsa_next_free_sgpr 102
  .amdhsa_accum_offset 256
  .amdhsa_group_segment_fixed_size 0
  .amdhsa_kernarg_size 88
  .amdhsa_user_sgpr_count 2
  .amdhsa_user_sgpr_kernarg_segment_ptr 1
  .amdhsa_system_sgpr_workgroup_id_x 1
  .amdhsa_float_denorm_mode_32 3
.end_amdhsa_kernel
"""
open(sys.argv[1], "w").write(out)
print("wrote", sys.argv[1], len(e.lines), "lines;", len(probs), "hazards", file=sys.stderr)
```

```python
import sys, struct
from asmlib import Emit, v, s, check_cfg

KN = "standalone__cheap_equivariant_egnn__graph"
OPT = dict(stamps=False, prio=False, ramp=(3,16,34), ost="sc1", posat="poll", touch=True, x="", ackwait=True, place="burst", lut=0, pr=(5,2,0), pk=True, bpf=1, dep=2, srcat="b0", pubat=0, lcat="start", pw="pl", pa=("none","none"))
for a in sys.argv[2:]:
    k, _, val = a.partition("=")
    try: OPT[k] = eval(val) if val else True
    except Exception: OPT[k] = val

def fbits(x): return struct.unpack("<I", struct.pack("<f", x))[0]
LOG2E = 1.4426950408889634; LN2 = 0.6931471805599453
NL2E = hex(fbits(-LOG2E)); NLN2 = hex(fbits(-LN2))

NWG = 250; CH = 2560; NB = 40
CNT1 = 0x0; OFF1 = 0x400; CNT2 = 0x800; LNK = 0x900; BASE2 = 0xA00; PD = 0xB00; WXT = 0xE00
POS = 0xF00; SORT2 = POS + 61440; CAPB = 3072 * 8
R1 = SORT2 + CAPB + 512; R2 = R1 + 8192; ACC = R2 + 32768; ACCS = 304
BF = ACC + NB * ACCS; AT = BF + 8 * ACCS; ATS = 104; HB = AT + 64 * ATS; WL = HB + 6144; WXL = WL + 256; LDS_END = WXL + 128
STG = R2; WE = SORT2; WH = SORT2 + 16384
OOB = 0x100000
LDS_SIZE = 163840
assert LDS_END <= LDS_SIZE and WH + 16384 <= R2 and R2 % 64 == 0 and WE % 128 == 0 and HB % 128 == 0
PADB = 32 * 8; SFALL = 48
WB = OPT.get("wb", 0) << 20
WS_OFF = WB + 0x10000; WS_BP = WB + 0x100000; WS_REC = WB + 0x300000; WS_STAMP = 0x1000000
TAGC = 0x9E3779B1
sH, sPOS, sE, sSRC, sDST, sWE, sWX, sWH, sOUT, sDBG, sWS = 4, 6, 8, 10, 12, 14, 16, 18, 20, 22, 24
sW, sB = 26, 27
srdBP, srdPOS, srdH = 28, 32, 36
sTAG, sTAGR, sBUD, sR0, sS, sN0, sNG, sCHF = 40, 41, 42, 43, 44, 45, 46, 47
sOHC, sNFW, sNLW, sCNT, sBASE, sNF, sNL, sNEG, sMORE, sVAL = 48, 50, 51, 52, 53, 54, 55, 56, 57, 58
sONCE = 17; sANYB = 18; sOM = 4
sSLOW = 16
sMK = 64
sRB = 8
T = [16, 32]; E = [48, 64]; AC = [80, 96]; M = [112, 116]; G = [120, 128, 136, 144]; S = [152, 156, 160, 164]
R1OP = 168; WX = 172; I0 = 176; I1 = 180; ONE = 184; IDX = 186
aIdx, aRec, aR1r, aS0, aS1, aR1w, aR2b, aR2, aATb, aAT = 188, 189, 190, 191, 192, 193, 194, 195, 196, 197
vRowM, vRowP = 198, 199
REC = 200; R2V = 204; PS = 206; PDV = 210; BT = 213; ZP = 216; vIdxL = 218; vFA = 219; vFO = 209; vOA = 12; vFB = 3; vPosOwn = 230
SEG = 220; vMask = 224; vWxa = 225; H1 = 226; HRES = 234; WH2 = 238; vLane = 254; vAItem = 255
L = vLane

e = Emit()
def stamp(i, last=False):
    if OPT.get("diag") is not None:
        if i == 0:
            e("s_memrealtime s[98:99]")
            e("s_waitcnt lgkmcnt(0)")
            e("s_mov_b32 s100, s98")
            e("s_mov_b32 s101, s98")
        elif i == OPT["diag"]:
            e("s_memrealtime s[98:99]")
            e("s_waitcnt lgkmcnt(0)")
            e("s_mov_b32 s101, s98")
        if last:
            stamp.n = getattr(stamp, "n", 0) + 1
            e("s_sub_u32 s101, s101, s100")
            e("s_lshl_b32 s101, s101, 2")
            e("s_add_u32 s101, s101, 3000")
            e.label(f"L_spin{stamp.n}")
            e("s_memrealtime s[98:99]")
            e("s_waitcnt lgkmcnt(0)")
            e("s_sub_u32 s98, s98, s100")
            e("s_cmp_lt_u32 s98, s101")
            e(f"s_cbranch_scc1 L_spin{stamp.n}")
        return
    if not OPT["stamps"]: return
    if i > 0:
        e("s_mov_b32 m0, s101")
        e("v_writelane_b32 v15, s98, m0")
        e("v_writelane_b32 v14, s22, m0")
    e("s_memrealtime s[98:99]")
    if i > 0: e("s_memtime s[22:23]")
    e(f"s_mov_b32 s101, {i}")
    if i in (6, 7, 9): e(f"v_writelane_b32 v15, s{sBUD}, {16+i}")
    if i == 6: e("s_nop 0\nv_writelane_b32 v15, s7, 27")
    if i == 10: e(f"s_add_u32 s100, s{sCNT}, {OPT['dep']-4}\nv_writelane_b32 v15, s100, 26")
    if last:
        e("s_mov_b64 exec, -1")
        e("s_waitcnt lgkmcnt(0)")
        e(f"v_writelane_b32 v15, s98, {i}")
        e(f"v_writelane_b32 v14, s22, {i}")
        e("s_lshl_b32 s100, s2, 3")
        e(f"s_add_u32 s100, s100, s{sW}")
        e("s_lshl_b32 s100, s100, 7")
        e(f"s_add_u32 s100, s100, {WS_STAMP}")
        e(f"v_lshl_add_u32 v13, v{L}, 2, s100")
        e("s_mov_b32 exec_hi, 0")
        e(f"global_store_dword v13, v15, {s(sWS,2)}")
        e("v_add_u32 v13, 0x100000, v13")
        e(f"global_store_dword v13, v14, {s(sWS,2)}")

def scan(r, fill=()):
    fill = list(fill)
    for m in ("row_shr:1 row_mask:0xf bank_mask:0xf bound_ctrl:1", "row_shr:2 row_mask:0xf bank_mask:0xf bound_ctrl:1",
              "row_shr:4 row_mask:0xf bank_mask:0xf bound_ctrl:1", "row_shr:8 row_mask:0xf bank_mask:0xf bound_ctrl:1",
              "row_bcast:15 row_mask:0xa bank_mask:0xf", "row_bcast:31 row_mask:0xc bank_mask:0xf"):
        if len(fill) >= 2:
            e(fill.pop(0)); e(fill.pop(0))
        else: e("s_nop 1")
        e(f"v_add_u32_dpp v{r}, v{r}, v{r} {m}")
    assert not fill

SD = "dst_sel:DWORD dst_unused:UNUSED_PAD"

def posdma(half, vt=1):
    e(f"s_lshl_b32 s96, s{sW}, 13")
    if half:
        e("s_add_u32 s96, s96, 4096")
        e(f"s_min_u32 s96, s96, {7*8192}")
    e(f"s_add_u32 m0, s96, {POS}")
    e(f"v_lshlrev_b32 v{vt}, 4, v{L}")
    for i in range(4): e(f"buffer_load_dwordx4 v{vt}, {s(srdPOS,4)}, s96 offen offset:{i*1024} lds")
PA_ = OPT.get("pa", ("poll", "poll"))
def posat(where, vt=1):
    n = 0
    for h in range(2):
        if PA_[h] == where:
            posdma(h, vt); n += 4
    return n

DSTR = 16; SRCR = 24; ER = 32; XW = 36; B4 = 48; RK = 56
WA0 = 64; WA1 = 65; WA2 = 66; HA = 67; CA0 = 68; PBA = 69; TCH = 70; HF = 72
WT = 80; DT = 112; W1T = 128; aWH = 144; aWT = 148
stamp(0)
e.label("L_entry")
e(f"s_cmp_ge_u32 s2, {NWG}")
e("s_cbranch_scc1 L_end")
e("s_load_dwordx16 s[4:19], s[0:1], 0")
e("s_load_dwordx4 s[20:23], s[0:1], 64")
e("s_load_dwordx2 s[24:25], s[0:1], 80")
if OPT["touch"]:
    e("s_getpc_b64 s[62:63]")
    e.label("L_pc")
    e("v_lshlrev_b32 v5, 5, v0")
    e("v_min_u32 v5, L_end-L_pc, v5")
    e("s_mov_b32 exec_lo, 0x11111111")
    e("s_mov_b32 exec_hi, 0x11111111")
    e(f"global_load_dword v{TCH}, v5, s[62:63]")
    e("s_mov_b64 exec, -1")
e(f"s_mul_i32 s3, s2, {CH*4}")
e("v_lshl_add_u32 v8, v0, 4, s3")
e(f"s_add_u32 s60, s3, 8192")
e("v_lshl_add_u32 v9, v0, 2, s60")
e("s_lshr_b32 s3, s3, 1")
e("v_lshl_add_u32 v10, v0, 3, s3")
e("s_add_u32 s60, s3, 4096")
e("v_lshl_add_u32 v11, v0, 1, s60")
e("v_lshrrev_b32 v5, 6, v0")
e(f"v_and_b32 v{L}, 63, v0")
e(f"v_readfirstlane_b32 s{sW}, v5")
e(f"v_mov_b32 v{ZP}, 0")
e(f"v_mov_b32 v{ZP+1}, 0")
e("v_lshlrev_b32 v12, 4, v0")
e("v_lshlrev_b32 v5, 3, v0")
e(f"ds_write_b64 v5, {v(ZP,2)}")
e("s_and_b32 s60, s2, 7")
e(f"s_mul_i32 s{sB}, s60, 31")
e("s_min_u32 s60, s60, 2")
e(f"s_add_u32 s{sB}, s{sB}, s60")
e("s_lshr_b32 s96, s2, 3")
e(f"s_add_u32 s{sB}, s{sB}, s96")
e(f"s_mul_i32 s{sN0}, s{sB}, {NB}")
e(f"v_and_b32 v5, 16, v{L}")
e("v_and_b32 v6, 64, v0")
e("v_lshl_or_b32 v5, v5, 1, v6")
e(f"v_xor_b32 v{WA0}, v5, v12")
e(f"v_add_u32 v{WA1}, 8192, v{WA0}")
e(f"v_lshlrev_b32 v5, 1, v{L}")
e(f"s_lshl_b32 s60, s{sN0}, 7")
e("v_and_b32 v5, 0x70, v5")
e(f"v_xad_u32 v{HA}, v5, v12, s60")
e(f"s_lshl_b32 s60, s{sW}, 10")
e(f"s_add_u32 m0, s60, {WE+8192}")
e("s_waitcnt lgkmcnt(0)")
e(f"global_load_dwordx4 {v(DSTR,4)}, v8, {s(sDST,2)}")
e(f"global_load_dword v{DSTR+4}, v9, {s(sDST,2)}")
e(f"s_mov_b32 s{srdH}, s{sH}")
e(f"s_and_b32 s{srdH+1}, s{sH+1}, 0xffff")
e(f"s_mov_b32 s{srdH+2}, 1280000")
e(f"s_mov_b32 s{srdH+3}, 0x20000")
e(f"s_mov_b32 s{srdPOS}, s{sPOS}")
e(f"s_and_b32 s{srdPOS+1}, s{sPOS+1}, 0xffff")
e(f"s_mov_b32 s{srdPOS+2}, 60000")
e(f"s_mov_b32 s{srdPOS+3}, 0x20000")
e(f"s_cmp_ge_u32 s{sW}, 6")
e(f"global_load_lds_dwordx4 v{WA1}, {s(sWE,2)}")
e("s_cbranch_scc1 L_d67")
e(f"s_add_u32 m0, s60, {HB}")
e("s_nop 0")
e(f"buffer_load_dwordx4 v{HA}, {s(srdH,4)}, 0 offen lds")
e("s_branch L_ddone")
e.label("L_d67")
e(f"s_add_u32 s62, s{sWE}, 16384")
e(f"s_addc_u32 s63, s{sWE+1}, 0")
e(f"v_lshlrev_b32 v5, 4, v{L}")
e(f"s_cmp_eq_u32 s{sW}, 7")
e(f"s_cselect_b64 s[62:63], {s(sWX,2)}, s[62:63]")
e(f"s_cselect_b32 s61, 256, 0")
e(f"s_cselect_b32 s97, 8, 16")
e(f"s_add_u32 m0, s61, {WL}")
e("s_bfm_b64 exec, s97, 0")
e(f"global_load_lds_dwordx4 v5, s[62:63]")
e("s_mov_b64 exec, -1")
e.label("L_ddone")
e("s_barrier")
def srcloads():
    e(f"global_load_dwordx4 {v(SRCR,4)}, v8, {s(sSRC,2)}")
    e(f"global_load_dword v{SRCR+4}, v9, {s(sSRC,2)}")
    e(f"global_load_dwordx2 {v(ER,2)}, v10, {s(sE,2)}")
    e(f"global_load_short_d16_hi v{ER+2}, v11, {s(sE,2)}")
    e(f"global_load_dword v71, v{ZP}, {s(sWS,2)}")
NPW = 0
if OPT["srcat"] == "b0": srcloads()
stamp(1)
e(f"s_mul_i32 s{sCHF}, s{sW}, 86")
e(f"s_lshr_b32 s{sCHF}, s{sCHF}, 8")
e(f"s_mul_i32 s61, s{sCHF}, 3")
e(f"s_sub_u32 s{sNG}, s{sW}, s61")
e(f"s_and_b32 s61, s{sW}, 3")
e("s_lshl_b32 s61, s61, 1")
e(f"s_lshr_b32 s62, s{sW}, 2")
e("s_add_u32 s61, s61, s62")
e("s_lshl_b32 s61, s61, 8")
e("s_add_u32 s61, s61, 8192")
e(f"v_and_b32 v5, 0x70, v{WA0}")
e(f"v_bfe_u32 v6, v{L}, 3, 2")
e("v_lshl_add_u32 v5, v6, 11, v5")
e(f"v_lshrrev_b32 v6, 5, v{L}")
e("v_lshl_add_u32 v5, v6, 7, v5")
e(f"v_add_u32 v{WA2}, s61, v5")
e(f"v_and_b32 v1, 15, v{L}")
e(f"v_lshrrev_b32 v3, 4, v{L}")
e(f"s_lshl_b32 s61, s{sNG}, 11")
e(f"s_add_u32 s61, s61, {HB}")
e(f"v_and_b32 v2, 7, v{L}")
e("v_xor_b32 v2, v2, v3")
e("v_lshl_add_u32 v4, v1, 7, s61")
e(f"v_lshl_add_u32 v{aWH+1}, v2, 4, v4")
e(f"v_xor_b32 v{aWH+2}, 64, v{aWH+1}")
e(f"v_bfe_u32 v6, v{L}, 2, 2")
e(f"v_and_b32 v2, 3, v{L}")
e("v_lshl_add_u32 v4, v3, 3, v6")
e(f"v_lshlrev_b32 v7, 2, v{L}")
e("v_and_b32 v7, 0x60, v7")
e(f"s_xor_b32 s61, s{sCHF}, 1")
e("s_lshl_b32 s61, s61, 13")
e(f"s_add_u32 s61, s61, {WE}")
e("v_lshl_add_u32 v5, v4, 7, s61")
e("v_lshl_add_u32 v5, v2, 3, v5")
e(f"v_xor_b32 v{aWT}, v7, v5")
for t in range(1, 4): e(f"v_xor_b32 v{aWT+t}, {32*t}, v{aWT}")
e(f"s_lshl_b32 s61, s{sCHF}, 6")
e(f"s_add_u32 s61, s61, {WH}")
e("v_lshl_add_u32 v6, v2, 4, s61")
e("v_lshl_add_u32 v5, v4, 7, v6")
e(f"v_xor_b32 v{aWH}, v7, v5")
e(f"s_lshl_b32 s61, s{sNG}, 4")
e(f"s_add_u32 s61, s61, s{sN0}")
e("s_lshl_b32 s61, s61, 7")
e(f"s_add_u32 s61, s61, {WS_BP}")
e("v_lshl_add_u32 v2, v3, 9, s61")
e(f"v_lshl_add_u32 v{aWH+3}, v1, 3, v2")
def laneconsts():
    e(f"s_add_u32 s{srdBP}, s{sWS}, {WS_BP}")
    e(f"s_addc_u32 s{srdBP+1}, s{sWS+1}, 0")
    e(f"s_and_b32 s{srdBP+1}, s{srdBP+1}, 0xffff")
    e(f"s_or_b32 s{srdBP+1}, s{srdBP+1}, 0x800000")
    e(f"s_mov_b32 s{srdBP+2}, 10000")
    e(f"s_mov_b32 s{srdBP+3}, 0x20000")
    e(f"s_mov_b32 s{sR0}, 0")
    e(f"s_mov_b32 s{sS}, 256")
    e(f"s_mov_b32 s{sOHC}, 0x3f80")
    e(f"s_mov_b32 s{sOHC+1}, 0")
    e(f"v_lshrrev_b32 v1, 5, v{L}")
    e(f"v_and_b32 v2, 1, v{L}")
    e(f"v_lshlrev_b32 v{vWxa}, 7, v1")
    e(f"v_lshlrev_b32 v3, 5, v1")
    e(f"v_lshl_add_u32 v{IDX+1}, v2, 4, v3")
    e(f"v_bfe_u32 v4, v{L}, 3, 2")
    e(f"v_bfe_u32 v5, v{L}, 1, 1")
    e("v_lshl_add_u32 v4, v4, 1, v5")
    e(f"v_bfe_u32 v5, v{L}, 2, 1")
    e("v_lshl_add_u32 v4, v5, 3, v4")
    e(f"v_lshlrev_b32 v{vIdxL}, 3, v4")
    e(f"s_lshl_b32 s61, s{sW}, 10")
    e(f"s_add_u32 s61, s61, {R1}")
    e(f"v_lshl_add_u32 v{aR1r}, v4, 4, s61")
    e("v_xor_b32 v5, v1, v2")
    e(f"v_lshl_add_u32 v{aR1r}, v5, 20, v{aR1r}")
    e(f"v_lshl_add_u32 v{aR1w}, v{L}, 4, s61")
    e(f"s_lshl_b32 s61, s{sW}, 12")
    e(f"s_add_u32 s61, s61, {R2}")
    e(f"v_bfe_u32 v3, v{L}, 1, 3")
    e(f"v_lshl_add_u32 v4, v{L}, 6, s61")
    e(f"v_lshl_add_u32 v{aR2b}, v3, 3, v4")
    e(f"v_mov_b32 v{aR2}, v{aR2b}")
    e(f"v_bfe_u32 v3, v{L}, 2, 2")
    e(f"v_and_b32 v4, 3, v{L}")
    e(f"v_bfe_u32 v5, v{L}, 4, 1")
    e("v_lshl_add_u32 v5, v5, 2, v4")
    e("v_lshrrev_b32 v7, 1, v3")
    e("v_lshl_add_u32 v7, v1, 2, v7")
    e("v_xor_b32 v5, v5, v7")
    e("v_lshl_add_u32 v7, v1, 3, v3")
    e("v_lshl_add_u32 v7, v7, 6, s61")
    e(f"v_lshl_add_u32 v{aS0}, v5, 3, v7")
    e(f"v_xor_b32 v{aS1}, 16, v{aS0}")
    e(f"v_add_u32 v{aS1}, 256, v{aS1}")
    e(f"v_and_b32 v6, 31, v{L}")
    e("v_lshlrev_b32 v7, 3, v1")
    e("v_sub_u32 v7, v6, v7")
    e("v_lshlrev_b32 v6, 4, v2")
    e(f"v_lshlrev_b32 v6, v6, s{sOHC}")
    e("v_ashrrev_i32 v7, 1, v7")
    for u, I in ((0, I0), (1, I1)):
        for d in range(4): e(f"v_cmp_eq_u32 {s(sMK+2*d,2)}, {8*u+d}, v7")
        for d in range(4): e(f"v_cndmask_b32 v{I+d}, 0, v6, {s(sMK+2*d,2)}")
    e("v_xor_b32 v7, 1, v1")
    e(f"v_mul_u32_u24 v{ONE}, 0x3f80, v7")
    e(f"v_mov_b32 v{ONE+1}, 0")
if OPT["lcat"] == "start":
    for i in range(4): e(f"v_mov_b32 v{B4+i}, 0")
    e(f"v_add_u32 v5, {R2}, v12")
    for i in range(3, 5): e(f"ds_write_b128 v5, {v(B4,4)} offset:{i*8192}")
    e(f"v_cmp_gt_u32 vcc, {(AT - R2 - 5*8192)//16}, v0")
    e("s_mov_b64 exec, vcc")
    e(f"ds_write_b128 v5, {v(B4,4)} offset:{5*8192}")
    e("s_mov_b64 exec, -1")
    laneconsts()
e(f"v_lshrrev_b32 v1, 5, v{L}")
e(f"v_and_b32 v6, 31, v{L}")
e("v_and_b32 v7, 3, v6")
e("v_lshrrev_b32 v13, 3, v6")
e("v_lshlrev_b32 v13, 2, v13")
e("v_lshl_add_u32 v7, v7, 4, v13")
e("v_bfe_u32 v13, v6, 2, 1")
e("v_add_u32 v7, v7, v13")
e("v_lshl_add_u32 v7, v1, 1, v7")
e(f"v_lshlrev_b32 v{CA0}, 1, v7")
e(f"v_add_u32 v{CA0}, {WL}, v{CA0}")
e(f"v_mul_u32_u24 v{aATb}, {ATS}, v7")
e(f"v_add_u32 v{aATb}, {AT}, v{aATb}")
e("v_mov_b32 v13, 8")
e("s_mov_b32 s61, 52429")
e("s_movk_i32 s62, -40")
NPW = posat("start")
if OPT["srcat"] == "d1":
    e("s_waitcnt vmcnt(3)")
    srcloads()
e(f"s_waitcnt vmcnt({7+NPW})")
if OPT["srcat"] == "dst": srcloads()
if OPT["stamps"]: e("s_waitcnt lgkmcnt(0)")
stamp(14)
for i in range(5): e(f"v_mul_u32_u24 v{B4+i}, s61, v{DSTR+i}")
for i in range(5): e(f"v_lshrrev_b32 v{B4+i}, 21, v{B4+i}")
for i in range(5):
    e(f"v_lshlrev_b32 v{B4+i}, 2, v{B4+i}")
    e(f"ds_add_rtn_u32 v{RK+i}, v{B4+i}, v13 offset:{CNT1}")
NPW += posat("atom")
e(f"v_lshlrev_b32 v1, 4, v{L}")
e(f"s_cmp_ge_u32 s{sW}, 3")
e(f"s_waitcnt vmcnt({5+NPW}) lgkmcnt(0)")
e("s_barrier")
stamp(2)
def nodeprod_reads():
    e(f"ds_read_b128 {v(HF,4)}, v{aWH+1}")
    e(f"ds_read_b128 {v(HF+4,4)}, v{aWH+2}")
    for t in range(4):
        for ks in range(2):
            for rd in range(2):
                e(f"ds_read_b64_tr_b16 {v(WT+8*t+4*ks+2*rd,2)}, v{aWT+t} offset:{ks*4096+rd*512}")
def nodeprod(extra=0):
    e(f"s_mov_b32 s96, {NL2E}")
    for t in range(4):
        e(f"s_waitcnt lgkmcnt({12-4*t+extra})")
        e(f"v_mfma_f32_16x16x32_bf16 {v(DT+4*t,4)}, {v(HF,4)}, {v(WT+8*t,4)}, 0")
        e(f"v_mfma_f32_16x16x32_bf16 {v(DT+4*t,4)}, {v(HF+4,4)}, {v(WT+8*t+4,4)}, {v(DT+4*t,4)}")
def nodescale():
    for i in range(8): e(f"v_pk_mul_f32 {v(DT+2*i,2)}, {v(DT+2*i,2)}, s[96:97] op_sel_hi:[1,0]")
def wdma():
    for base, a, ptr in ((WE, WA0, sWE), (WH, WA0, sWH), (WH+8192, WA2, sWH)):
        e(f"s_add_u32 m0, s60, {base}")
        e("s_nop 0")
        e(f"global_load_lds_dwordx4 v{a}, {s(ptr,2)}")
    return posat("b1", 2)
e("s_cbranch_scc1 L_nobp")
nodeprod_reads()
e(f"ds_read_b128 v[4:7], v1 offset:{CNT1}")
wdma()
nodeprod(1)
e(f"s_cmp_eq_u32 s{sNG}, 2")
e("s_cselect_b32 s63, 0, -1")
nodescale()
for r in range(4):
    e(f"v_cvt_pk_bf16_f32 v{WT+2*r}, v{DT+r}, v{DT+4+r}")
    e(f"v_cvt_pk_bf16_f32 v{WT+2*r+1}, v{DT+8+r}, v{DT+12+r}")
e("s_mov_b32 exec_hi, s63")
for r in range(4): e(f"global_store_dwordx2 v{aWH+3}, {v(WT+2*r,2)}, {s(sWS,2)} offset:{r*128} sc1")
e("s_mov_b64 exec, -1")
e("s_branch L_bpdone")
e.label("L_nobp")
e(f"ds_read_b128 v[4:7], v1 offset:{CNT1}")
NPW += wdma()
e.label("L_bpdone")
e("s_waitcnt lgkmcnt(0)")
e("v_add_u32 v5, v4, v5")
e("v_add_u32 v6, v5, v6")
e("v_add_u32 v7, v6, v7")
e("v_mov_b32 v3, v7")
fill = [f"v_lshlrev_b32 v{XW+2*i}, 2, v{DSTR+i}" for i in range(5)] + \
       [f"v_mad_i32_i24 v{XW+2*i}, v{B4+i}, s62, v{XW+2*i}" for i in range(5)] + \
       [f"v_add_u32 v{RK+i}, {STG}, v{RK+i}" for i in range(5)]
scan(3, fill[:12])
e("v_sub_u32 v8, v3, v7")
e("v_add_u32 v9, v8, v4")
e("v_add_u32 v10, v8, v5")
e("v_add_u32 v11, v8, v6")
e(f"ds_write_b128 v1, v[8:11] offset:{OFF1}")
for i in range(5): e(f"ds_read_b32 v{B4+i}, v{B4+i} offset:{OFF1}")
for x in fill[12:]: e(x)
PB = 20
e(f"v_lshl_or_b32 v{PB}, v9, 16, v8")
e(f"v_lshl_or_b32 v{PB+1}, v11, 16, v10")
e(f"v_mov_b32 v{PB+2}, v3")
e("s_mov_b32 s63, 0xffff0000")
e(f"s_cmp_ge_u32 s{sW}, 3")
e(f"s_waitcnt vmcnt({8+NPW})")
e("s_cbranch_scc0 L_srcin")
e(f"s_waitcnt vmcnt({4+NPW})")
e.label("L_srcin")
e(f"v_lshl_or_b32 v{XW+1}, v{ER}, 16, v{SRCR}")
e(f"v_and_or_b32 v{XW+3}, v{ER}, s63, v{SRCR+1}")
e(f"v_lshl_or_b32 v{XW+5}, v{ER+1}, 16, v{SRCR+2}")
e(f"v_and_or_b32 v{XW+7}, v{ER+1}, s63, v{SRCR+3}")
e(f"v_or_b32 v{XW+9}, v{ER+2}, v{SRCR+4}")
for i in range(5):
    e("s_waitcnt lgkmcnt(4)")
    e(f"v_add_u32 v{B4+i}, v{B4+i}, v{RK+i}")
    e(f"ds_write_b64 v{B4+i}, {v(XW+2*i,2)}")
e(f"s_mul_i32 s60, s2, {CH*8}")
e(f"s_add_u32 s60, s60, {WS_REC+4096}")
e("v_add_u32 v2, s60, v12")
e("v_add_u32 v3, 8192, v2")
e("v_add_u32 v4, 12288, v2")
e(f"v_add_u32 v5, {STG}, v12")
e(f"s_lshl_b32 s60, s2, 10")
e(f"s_add_u32 s60, s60, {WS_OFF}")
e(f"v_add_u32 v{PBA}, s60, v1")
e("s_waitcnt vmcnt(0)")
e(f"v_add_u32 v{PB+3}, {TAGC}, v71")
e(f"v_and_b32 v71, 0xffffff00, v{PB+3}")
e(f"s_cmp_ge_u32 s{sW}, 4")
e(f"v_readfirstlane_b32 s{sTAG}, v{PB+3}")
e(f"v_readfirstlane_b32 s{sTAGR}, v71")
e("s_waitcnt lgkmcnt(0)")
e("s_barrier")
stamp(3)
ST = 48
def publish(w):
    e(f"s_cmp_lg_u32 s{sW}, {w}")
    e("s_cbranch_scc1 L_nopub")
    e(f"global_store_dwordx4 v{PBA}, {v(PB,4)}, {s(sWS,2)} sc1")
    e.label("L_nopub")
def posdma4():
    e(f"s_and_b32 s96, s{sW}, 3")
    e("s_mul_i32 s96, s96, 15360")
    e(f"v_lshlrev_b32 v1, 4, v{L}")
    for g_ in range(4):
        if g_: e("s_add_u32 s96, s96, 4096")
        e(f"s_add_u32 m0, s96, {POS}")
        e("s_nop 0")
        for i in range(4 if g_ < 3 else 3): e(f"buffer_load_dwordx4 v1, {s(srdPOS,4)}, s96 offen offset:{i*1024} lds")
e("s_cbranch_scc1 L_nost")
for i in range(5): e(f"ds_read_b128 {v(ST+4*i,4)}, v5 offset:{i*4096}")
for i in range(4): e(f"v_mov_b32 v{8+i}, 0")
for i, (a, o) in enumerate(((2, -4096), (2, 0), (3, -4096), (3, 0), (4, 0))):
    e(f"s_waitcnt lgkmcnt({4-i})")
    e(f"v_or_b32 v{ST+4*i}, v71, v{ST+4*i}")
    e(f"v_or_b32 v{ST+4*i+2}, v71, v{ST+4*i+2}")
    e(f"global_store_dwordx4 v{a}, {v(ST+4*i,4)}, {s(sWS,2)} offset:{o} sc1")
    if OPT["pubat"] == i + 1: publish(3)
e(f"s_cmp_lg_u32 s2, {NWG-1}")
e("s_cbranch_scc1 L_nodummy")
e(f"v_mov_b32 v6, {WS_REC + NWG*CH*8}")
e(f"global_store_dword v6, v71, {s(sWS,2)} sc1")
e.label("L_nodummy")
for i in range(6): e(f"ds_write_b128 v5, v[8:11] offset:{i*4096}")
e.label("L_nost")
if OPT["pubat"] == 0: publish(7)
if OPT["stamps"]: e("s_waitcnt lgkmcnt(0)")
stamp(15)
e(f"s_mov_b32 s{sBUD}, 2000000")
e(f"ds_read_u16_d16_hi v{WX}, v{CA0}")
e(f"ds_read_u16_d16_hi v{WX+1}, v{CA0} offset:128")
e(f"s_cmp_ge_u32 s{sW}, 6")
e("s_cbranch_scc1 L_w67")
e(f"s_cmp_ge_u32 s{sW}, 3")
e("s_cbranch_scc1 L_w345")
for i in range(4): e(f"v_mov_b32 v{HRES+i}, v{HF+i}")
e("s_branch L_wdone")
e.label("L_w345")
nodeprod_reads()
e(f"v_and_b32 v1, 15, v{L}")
e(f"v_lshrrev_b32 v3, 4, v{L}")
e(f"s_lshl_b32 s60, s{sNG}, 5")
e(f"s_add_u32 s60, s60, {AT}")
e("v_lshl_add_u32 v2, v3, 3, s60")
e(f"v_mul_u32_u24 v1, {ATS}, v1")
e("v_add_u32 v2, v1, v2")
nodeprod()
e("s_nop 1")
nodescale()
for t in range(4):
    e(f"v_cvt_pk_bf16_f32 v{WT+2*t}, v{DT+4*t}, v{DT+4*t+1}")
    e(f"v_cvt_pk_bf16_f32 v{WT+2*t+1}, v{DT+4*t+2}, v{DT+4*t+3}")
for i in range(4): e(f"v_mov_b32 v{HRES+i}, v{HF+4+i}")
for t in range(4): e(f"ds_write_b64 v2, {v(WT+2*t,2)} offset:{t*16*ATS}")
e("s_branch L_wdone")
e.label("L_w67")
e(f"ds_read_u16_d16_hi v4, v{CA0} offset:256")
e("v_and_b32 v7, 127, v0")
e(f"v_min_u32 v7, 119, v7")
e(f"s_mul_i32 s60, s{sB}, 240")
e(f"v_lshl_add_u32 v1, v7, 1, s60")
e(f"global_load_short_d16_hi v{vPosOwn}, v1, {s(sPOS,2)}")
e(f"v_mul_u32_u24 v1, 171, v7")
e("v_lshrrev_b32 v1, 9, v1")
e(f"v_mad_i32_i24 v2, v1, -3, v7")
e(f"v_lshlrev_b32 v{H1+2}, 2, v1")
e(f"v_lshl_add_u32 v{H1+3}, v2, 8, v{H1+2}")
e(f"v_lshlrev_b32 v{vFO}, 3, v2")
e(f"v_add_u32 v{vFO}, {BF+256}, v{vFO}")
e(f"v_bfe_u32 v1, v{L}, 2, 1")
e(f"v_lshrrev_b32 v2, 3, v{L}")
e(f"v_and_b32 v3, 3, v{L}")
e("v_lshl_add_u32 v2, v2, 2, v3")
e("v_lshl_add_u32 v2, v1, 5, v2")
e("v_lshlrev_b32 v2, 2, v2")
e("s_waitcnt lgkmcnt(0)")
e(f"v_mul_f32 v4, {NLN2}, v4")
e(f"ds_write_b32 v2, v4 offset:{WXT}")
e.label("L_wdone")
if OPT["stamps"]: e("s_waitcnt lgkmcnt(0)")
stamp(4)
if OPT["lcat"] == "win": laneconsts()
RA = 16; RB = 32; KA = 48; KB = 56; AD = 64; LN = 112; LK = 120; vSB = 70; vJ = 116
mk = lambda rnd, p, h: sMK + 2 * (rnd * 8 + p * 2 + h)
def presets():
    for p in range(4):
        e(f"v_mov_b32 v{RA+4*p}, s{sTAGR}")
        e(f"v_mov_b32 v{RA+4*p+2}, s{sTAGR}")
def batchsetup(general):
    e("v_lshrrev_b32 v1, 3, v0")
    e("v_and_b32 v2, 7, v0")
    e(f"v_lshlrev_b32 v{vJ}, 4, v2")
    e(f"v_mul_u32_u24 v1, {CH*8}, v1")
    e(f"v_add_u32 v{vSB}, v1, v{vJ}")
    for p in range(4):
        e(f"s_add_u32 s60, s{sR0}, {WS_REC + p*64*CH*8}")
        e(f"s_add_u32 s{sRB+2*p}, s{sWS}, s60")
        e(f"s_addc_u32 s{sRB+2*p+1}, s{sWS+1}, 0")
    for k2, o in ((1, 8), (2, 128), (3, 136)): e(f"v_add_u32 v{vJ+k2}, {o}, v{vJ}")
    if general:
        e(f"v_mov_b32 v1, {OOB}")
        for k2 in range(4):
            e(f"v_cmp_gt_u32 vcc, s{sS}, v{vJ+k2}")
            e(f"v_add_u32 v{vJ+k2}, s{sR0}, v{vJ+k2}")
            e("s_nop 0")
            e(f"v_cndmask_b32 v{vJ+k2}, v1, v{vJ+k2}, vcc")
    presets()
batchsetup(False)
e(f"s_mov_b32 s{sONCE}, 0")
sPF = 6
e("s_andn2_b32 s60, s2, 7")
e(f"s_add_u32 s60, s60, s{sW}")
e("s_mul_i32 s60, s60, 41")
e(f"v_add_u32 v68, s60, v{L}")
e(f"s_mov_b32 s{sPF}, -1")
e(f"s_mov_b32 s{sPF+1}, 0x1ff")
e("v_lshrrev_b32 v6, 3, v0")
e("v_lshlrev_b32 v6, 2, v6")
if OPT["stamps"]: e("s_waitcnt lgkmcnt(0)")
stamp(5)
e(f"s_cmp_ge_u32 s{sW}, 4")
e("s_cbranch_scc1 L_pollw")
if OPT["pw"] == "st": posdma4()
e("s_branch L_b3")
e.label("L_pollw")
PL = 80
if OPT["pw"] == "pl": posdma4()
e("v_and_b32 v1, 255, v0")
e(f"s_lshr_b32 s60, s{sB}, 2")
e("s_lshl_b32 s60, s60, 4")
e(f"s_add_u32 s60, s60, {WS_OFF}")
e("v_lshl_add_u32 v2, v1, 10, s60")
e(f"v_cmp_gt_u32 vcc, {NWG}, v1")
for i in range(3): e(f"v_mov_b32 v{PL+i}, 0")
e("v_lshlrev_b32 v1, 2, v1")
e(f"s_and_b32 s3, s{sB}, 1")
e("s_lshl_b32 s3, s3, 4")
e.label("L_poll")
e("s_mov_b64 exec, vcc")
e(f"global_load_dwordx4 {v(PL,4)}, v2, {s(sWS,2)} sc1")
e(f"s_sub_u32 s{sBUD}, s{sBUD}, 1")
e("s_waitcnt vmcnt(0)")
e(f"v_cmp_ne_u32 vcc, s{sTAG}, v{PL+3}")
e("s_cbranch_scc1 L_pollout")
e("s_cbranch_vccnz L_poll")
e.label("L_gotoff")
e("s_mov_b64 exec, -1")
e(f"s_bitcmp1_b32 s{sB}, 1")
e(f"v_alignbit_b32 v3, v{PL+1}, v{PL}, s3")
e(f"v_alignbit_b32 v4, v{PL+2}, v{PL+1}, s3")
e("s_cselect_b64 vcc, -1, 0")
e("v_cndmask_b32 v3, v3, v4, vcc")
e(f"ds_write_b32 v1, v3 offset:{OFF1}")
e("s_waitcnt lgkmcnt(0)")
e.label("L_b3")
e("s_barrier")
e(f"ds_read2st64_b32 {v(SEG,2)}, v6 offset0:{OFF1//256} offset1:{OFF1//256+1}")
e(f"ds_read2st64_b32 {v(SEG+2,2)}, v6 offset0:{OFF1//256+2} offset1:{OFF1//256+3}")
e("s_waitcnt lgkmcnt(0)")
stamp(6)
e.label("L_fetch")
for p in range(4):
    e(f"v_sub_u32_sdwa v{LN+p}, v{SEG+p}, v{SEG+p} {SD} src0_sel:WORD_1 src1_sel:WORD_0")
    e(f"v_add_u32_sdwa v{AD+p}, v{SEG+p}, v{vSB} {SD} src0_sel:WORD_0 src1_sel:DWORD")
    e(f"v_cmp_lt_i32 {s(mk(0,p,0),2)}, v{vJ}, v{LN+p}")
for p in range(4):
    e(f"s_mov_b64 exec, {s(mk(0,p,0),2)}")
    e(f"global_load_dwordx4 {v(RA+4*p,4)}, v{AD+p}, {s(sRB+2*p,2)} sc1")
e("s_mov_b64 exec, -1")
for p in range(4): e(f"v_cmp_lt_i32 {s(mk(1,p,0),2)}, v{vJ+2}, v{LN+p}")
for p in range(4):
    e(f"s_mov_b64 exec, {s(mk(1,p,0),2)}")
    e(f"s_cbranch_execz L_nlb{p}")
    e(f"global_load_dwordx4 {v(RB+4*p,4)}, v{AD+p}, {s(sRB+2*p,2)} offset:128 sc1")
    e.label(f"L_nlb{p}")
e("s_mov_b64 exec, -1")
for p in range(4):
    e(f"v_cmp_lt_i32 {s(mk(0,p,1),2)}, v{vJ+1}, v{LN+p}")
    e(f"v_cmp_lt_i32 {s(mk(1,p,1),2)}, v{vJ+3}, v{LN+p}")
e(f"s_or_b64 s[60:61], {s(mk(1,0,0),2)}, {s(mk(1,1,0),2)}")
e(f"s_or_b64 s[62:63], {s(mk(1,2,0),2)}, {s(mk(1,3,0),2)}")
e("s_or_b64 s[60:61], s[60:61], s[62:63]")
e(f"s_or_b32 s{sANYB}, s60, s61")
e(f"v_max3_i32 v3, v{LN}, v{LN+1}, v{LN+2}")
e(f"v_max_i32 v3, v3, v{LN+3}")
e(f"s_add_u32 s60, s{sR0}, s{sS}")
e("v_mov_b32 v13, 8")
e("v_cmp_lt_i32 vcc, s60, v3")
e("s_mov_b64 exec, vcc")
e(f"ds_write_b32 v{ZP}, v13 offset:{CNT2+252}")
e("s_mov_b64 exec, -1")
e(f"s_cmp_lg_u32 s{sONCE}, 0")
e("s_cbranch_scc1 L_notfirst")
e(f"s_mov_b32 s{sONCE}, 1")
e(f"s_cmp_ge_u32 s{sW}, 6")
e("s_cbranch_scc1 L_p67")
for t in range(2):
    for ks in range(2):
        for rd in range(2):
            e(f"ds_read_b64_tr_b16 {v(W1T+8*t+4*ks+2*rd,2)}, v{aWH} offset:{ks*4096+rd*512+t*8}")
for t in range(2):
    for c in range(2):
        for rd in range(2):
            e(f"ds_read_b64_tr_b16 {v(WH2+8*t+4*c+2*rd,2)}, v{aWH} offset:{(2+c)*4096+rd*512+t*8}")
e(f"s_lshl_b32 s60, s{sNG}, 4")
e(f"v_and_b32 v1, 15, v{L}")
e(f"v_add_lshl_u32 v{vAItem}, v1, s60, 2")
e("s_waitcnt lgkmcnt(8)")
for t in range(2):
    e(f"v_mfma_f32_16x16x32_bf16 {v(H1+4*t,4)}, {v(W1T+8*t,4)}, {v(HF,4)}, 0")
    e(f"v_mfma_f32_16x16x32_bf16 {v(H1+4*t,4)}, {v(W1T+8*t+4,4)}, {v(HF+4,4)}, {v(H1+4*t,4)}")
e(f"v_and_b32 v2, 48, v{L}")
e(f"v_lshlrev_b32 v{vFO}, 1, v2")
e(f"v_add_u32 v{vFO}, {BF}, v{vFO}")
e(f"s_lshl_b32 s60, s{sN0}, 1")
e(f"s_add_u32 s60, s60, s{sCHF}")
e("s_lshl_b32 s60, s60, 6")
e(f"v_lshl_add_u32 v2, v{vAItem}, 5, v2")
e(f"v_add_u32 v{vOA}, s60, v2")
e(f"s_movk_i32 s60, {NB*4}")
e(f"v_cmp_gt_u32 {s(sOM,2)}, s60, v{vAItem}")
e(f"s_mov_b32 s60, {NL2E}")
for i in range(8): e(f"v_mul_f32 v{H1+i}, s60, v{H1+i}")
e("s_branch L_pdone")
e.label("L_p67")
e(f"ds_write_b32 v{H1+3}, v{vPosOwn} offset:{PD}")
e(f"v_mov_b32 v{vAItem}, v{H1+2}")
e("v_and_b32 v1, 127, v0")
e("s_movk_i32 s60, 120")
e(f"v_cmp_gt_u32 {s(sOM,2)}, s60, v1")
e(f"s_mul_i32 s60, s{sB}, 240")
e("s_add_u32 s60, s60, 1280000")
e(f"v_lshl_add_u32 v{vOA}, v1, 1, s60")
e.label("L_pdone")
e(f"v_mul_u32_u24 v1, {ACCS//4}, v{vAItem}")
e(f"v_add_u32 v1, {ACC-BF}, v1")
e(f"v_add_u32 v{vFA}, v1, v{vFO}")
e(f"v_mul_f32 v{WX}, {NL2E}, v{WX}")
e(f"v_mul_f32 v{WX+1}, {NL2E}, v{WX+1}")
e(f"v_cvt_pk_bf16_f32 v1, v{WX}, v{WX}")
e("v_and_b32 v1, 0xffff0000, v1")
e(f"v_sub_f32 v2, v{WX}, v1")
e(f"v_cvt_pk_bf16_f32 v{WX}, v1, v2")
e(f"v_cvt_pk_bf16_f32 v{WX+1}, 0, v{WX+1}")
e.label("L_notfirst")
for c in range(2): e(f"v_mfma_f32_32x32x8_bf16 {v(AC[c],16)}, {v(ZP,2)}, {v(ZP,2)}, 0")
e(f"v_lshlrev_b32 v1, 2, v{L}")
e(f"v_cmp_gt_u32 {s(sVAL,2)}, {NB}, v{L}")
e("s_waitcnt vmcnt(0)")
for i in range(8): e(f"v_xor_b32 v{RA+2*i}, s{sTAGR}, v{RA+2*i}")
e(f"v_or3_b32 v4, v{RA}, v{RA+2}, v{RA+4}")
e(f"v_or3_b32 v5, v{RA+6}, v{RA+8}, v{RA+10}")
e(f"v_or3_b32 v4, v4, v{RA+12}, v{RA+14}")
def bsite(name):
    e(f"s_cmp_eq_u32 s{sANYB}, 0")
    e(f"s_cbranch_scc1 L_{name}")
    for p in range(4):
        e(f"s_mov_b64 exec, {s(mk(1,p,0),2)}")
        if name == "bx":
            e(f"v_xor_b32 v{RB+4*p}, s{sTAGR}, v{RB+4*p}")
            e(f"v_xor_b32 v{RB+4*p+2}, s{sTAGR}, v{RB+4*p+2}")
            e(f"v_or3_b32 v5, v5, v{RB+4*p}, v{RB+4*p+2}")
        elif name == "ba":
            e(f"ds_add_rtn_u32 v{KB+2*p}, v{RB+4*p}, v13 offset:{CNT2}")
            e(f"s_mov_b64 exec, {s(mk(1,p,1),2)}")
            e(f"ds_add_rtn_u32 v{KB+2*p+1}, v{RB+4*p+2}, v13 offset:{CNT2}")
        elif name == "bl":
            e(f"ds_read_b32 v{LK+8+2*p}, v{RB+4*p} offset:{BASE2}")
            e(f"ds_read_b32 v{LK+9+2*p}, v{RB+4*p+2} offset:{BASE2}")
        else:
            e(f"v_add_u32 v7, v{LK+8+2*p}, v{KB+2*p}")
            e(f"v_add_u32 v8, v{LK+9+2*p}, v{KB+2*p+1}")
            e(f"ds_write_b64 v7, {v(RB+4*p,2)} offset:{SORT2}")
            e(f"s_mov_b64 exec, {s(mk(1,p,1),2)}")
            e(f"ds_write_b64 v8, {v(RB+4*p+2,2)} offset:{SORT2}")
    e.label(f"L_{name}")
    e("s_mov_b64 exec, -1")
bsite("bx")
e("v_or_b32 v4, v4, v5")
e("v_cmp_lt_u32 vcc, 0xff, v4")
e("s_cbranch_vccnz L_stale")
e.label("L_gotrec")
if OPT["stamps"]: e("s_waitcnt lgkmcnt(0)")
stamp(7)
for p in range(4):
    for h in range(2):
        e(f"s_mov_b64 exec, {s(mk(0,p,h),2)}")
        e(f"ds_add_rtn_u32 v{KA+2*p+h}, v{RA+4*p+2*h}, v13 offset:{CNT2}")
bsite("ba")
def bpf(at):
    if OPT["bpf"] != at: return
    e(f"s_mov_b64 exec, {s(sPF,2)}")
    e(f"buffer_load_dword v69, v68, {s(srdBP,4)}, 0 idxen")
    e("s_mov_b64 exec, -1")
NL_ = posat("rec", 6)
bpf(1)
e("s_waitcnt lgkmcnt(0)")
e("s_barrier")
stamp(8)
e(f"ds_read_b32 v2, v1 offset:{CNT2}")
NL2_ = posat("b4", 6)
bpf(2)
e("s_waitcnt lgkmcnt(0)")
e(f"v_max_u32 v4, {PADB}, v2")
e(f"v_cndmask_b32 v5, 0, v4, {s(sVAL,2)}")
scan(5, [f"v_readlane_b32 s{sMORE}, v2, 63", f"v_cmp_lt_u32 vcc, v2, v4"])
e(f"v_sub_u32 v6, v5, v4")
e(f"ds_write_b32 v1, v6 offset:{BASE2}")
for i in range(8): e(f"ds_read_b32 v{LK+i}, v{RA+2*i} offset:{BASE2}")
e(f"v_readlane_b32 s3, v5, 63")
bsite("bl")
bpf(3)
e(f"s_cmp_gt_u32 s3, {CAPB}")
e("s_cbranch_scc1 L_redo")
e(f"s_and_b64 vcc, vcc, {s(sVAL,2)}")
e("s_cbranch_scc1 L_pad0")
e.label("L_nopad")
e("s_add_u32 s96, s3, 127")
e("s_lshr_b32 s60, s96, 10")
e("s_bfe_u32 s61, s96, 0x30007")
e(f"s_mul_i32 s62, s60, s{sW}")
e(f"s_min_u32 s63, s61, s{sW}")
e("s_add_u32 s62, s62, s63")
e(f"s_cmp_lt_u32 s{sW}, s61")
e(f"s_addc_u32 s{sCNT}, s60, 0")
e("s_lshl_b32 s62, s62, 7")
e("v_cmp_ge_u32 vcc, s62, v5")
e(f"s_lshl_b32 s63, s{sCNT}, 7")
e("s_add_u32 s63, s63, s62")
e("v_cmp_gt_u32 s[60:61], s63, v5")
e("s_waitcnt lgkmcnt(0)")
for p in range(4):
    for h in range(2):
        i = 2*p+h
        e(f"s_mov_b64 exec, {s(mk(0,p,h),2)}")
        e(f"v_add_u32 v{LK+i}, v{LK+i}, v{KA+i}")
        e(f"ds_write_b64 v{LK+i}, {v(RA+2*i,2)} offset:{SORT2}")
bsite("bw")
bpf(4)
e(f"s_bcnt1_i32_b64 s{sNFW}, vcc")
e(f"s_lshl_b32 s{sBASE}, s{sNFW}, 2")
e(f"s_or_b32 s{sSLOW}, s{sR0}, s{sMORE}")
e(f"s_cselect_b32 s{sNFW}, 252, s{sBASE}")
e(f"s_lshl_b32 s63, 1, s{sW}")
e(f"v_mov_b32 v7, s{sNFW}")
e("v_mov_b32 v8, s63")
e(f"s_add_u32 s3, s3, {SORT2}")
e(f"s_lshl_b32 s63, s{sW}, 6")
e("s_add_u32 s3, s3, s63")
e("v_lshl_add_u32 v9, v1, 1, s3")
e(f"v_mov_b32 v10, {(NB-1)*4}")
e("v_mov_b32 v11, 10000")
e("s_mov_b64 exec, 1")
e(f"ds_or_b32 v7, v8 offset:{LNK}")
e("s_mov_b64 exec, 0xff")
e("ds_write_b64 v9, v[10:11]")
e("s_mov_b64 exec, -1")
e(f"s_add_u32 s62, s62, {SORT2}")
e(f"v_lshl_add_u32 v{aRec}, v{L}, 3, s62")
e(f"v_add3_u32 v{aIdx}, s62, 4, v{vIdxL}")
e(f"s_bcnt1_i32_b64 s{sNLW}, s[60:61]")
e(f"s_min_u32 s{sNLW}, s{sNLW}, {NB-1}")
e(f"s_lshl_b32 s{sNLW}, s{sNLW}, 2")
def rowaddr():
    return [f"v_subrev_u32 v4, s{sBASE}, v{L}",
            "v_and_b32 v4, 28, v4",
            f"v_add_u32 v4, s{sBASE}, v4",
            f"v_cmp_eq_u32 vcc, s{sNFW}, v4",
            f"v_cmp_lt_u32 s[62:63], s{sNLW}, v4",
            f"s_lshl_b32 s61, s{sW}, 2",
            f"s_add_u32 s61, s61, {NB*4}",
            "v_mov_b32 v7, s61",
            "v_cndmask_b32 v4, v4, v7, vcc",
            f"v_mov_b32 v7, {OOB//64}",
            "v_cndmask_b32 v4, v4, v7, s[62:63]",
            f"v_mul_u32_u24 v4, {ACCS//4}, v4",
            f"v_add_u32 v4, {ACC}, v4",
            f"v_lshrrev_b32 v7, 5, v{L}",
            f"v_lshl_add_u32 v{vRowM}, v7, 4, v4",
            f"v_lshl_add_u32 v4, v7, 2, v4",
            f"v_and_b32 v7, 3, v{L}",
            f"v_lshl_add_u32 v{vRowP}, v7, 3, v4"]
PI = E[0]
DEP = OPT["dep"]
for n in range(DEP): e(f"v_mov_b32 v{PI+2*n+1}, v{IDX+1}")
e(f"s_sub_u32 s{sCNT}, s{sCNT}, {DEP+1}")
e("s_setprio 3")
if NL_ or NL2_: e(f"s_waitcnt vmcnt({1 if (OPT['bpf'] >= 2 or (OPT['bpf'] == 1 and not NL2_)) else 0})")
e("s_waitcnt lgkmcnt(0)")
e("s_barrier")
stamp(9)
def gather(b, pair):
    return [f"buffer_load_dwordx4 {v(G[b],4)}, {v(pair,2)}, {s(srdBP,4)}, 0 idxen offen",
            f"buffer_load_dwordx4 {v(G[b]+4,4)}, {v(pair,2)}, {s(srdBP,4)}, 0 idxen offen offset:64"]
def build1():
    return [f"v_mul_u32_u24_sdwa v{BT}, 6, v{REC+1} {SD} src0_sel:DWORD src1_sel:WORD_0",
            f"ds_read2st64_b32 {v(PDV,2)}, v{REC} offset0:{PD//256} offset1:{PD//256+1}",
            f"ds_read_u16_d16_hi v{PS}, v{BT} offset:{POS}",
            f"ds_read_u16_d16_hi v{PS+1}, v{BT} offset:{POS+2}",
            f"ds_read_u16_d16_hi v{PS+2}, v{BT} offset:{POS+4}",
            f"ds_read_b32 v{PDV+2}, v{REC} offset:{PD+512}",
            f"v_readlane_b32 s{sNF}, v{REC}, 0",
            f"v_readlane_b32 s{sNL}, v{REC}, 63",
            f"v_cmp_ne_u32 vcc, 60000, v{BT}",
            f"v_add_u32 v{BT+1}, v{REC}, v{REC}",
            f"s_and_b32 s60, s{sNF}, -8",
            f"s_mul_i32 s{sNEG}, s60, -4",
            f"s_lshr_b32 s60, s60, 1",
            f"s_mov_b64 {s(sVAL,2)}, vcc",
            f"v_lshl_add_u32 v{BT+2}, v{REC}, 2, s{sNEG}",
            f"v_add_u32 v{aAT}, s60, v{aATb}",
            f"v_lshlrev_b64 {v(REC+2,2)}, v{BT+2}, {s(sOHC,2)}"]
def build2():
    return [f"v_sub_f32 v{PDV}, v{PDV}, v{PS}",
            f"v_sub_f32 v{PDV+1}, v{PDV+1}, v{PS+1}",
            f"v_sub_f32 v{PDV+2}, v{PDV+2}, v{PS+2}",
            f"v_cvt_pk_bf16_f32 v{R2V}, v{PDV}, v{PDV+1}",
            f"v_cvt_pk_bf16_f32 v{R2V+1}, v{PDV+2}, 1.0",
            f"v_dot2_f32_bf16 v{BT}, v{R2V}, v{R2V}, 0",
            f"v_lshlrev_b32 v{BT+2}, 16, v{R2V+1}",
            None, None,
            f"v_fmac_f32 v{BT}, v{BT+2}, v{BT+2}",
            f"v_cvt_pk_bf16_f32 v{REC}, v{BT}, v{BT}"]
def build3():
    return [f"ds_write_b64 v{aR2}, {v(ZP,2)}",
            f"v_bitop3_b32 v{aR2}, v{BT+1}, 56, v{aR2b} bitop3:0x6a",
            f"ds_write_b128 v{aR1w}, {v(REC,4)}",
            f"s_mov_b64 exec, {s(sVAL,2)}\nds_write_b64 v{aR2}, {v(R2V,2)}\ns_mov_b64 exec, -1",
            f"ds_read2_b32 {v(WX+2,2)}, v{aAT} offset1:1"]
def opreads(n):
    return [f"ds_read_b128 {v(R1OP,4)}, v{aR1r} offset:{n*256}",
            f"ds_read_b64_tr_b16 {v(S[n],2)}, v{aS0} offset:{n*1024}",
            f"ds_read_b64_tr_b16 {v(S[n]+2,2)}, v{aS1} offset:{n*1024}"]
def stage1(n):
    t = T[n & 1]
    return [f"v_mfma_f32_32x32x16_bf16 {v(t,16)}, {v(R1OP,4)}, {v(WX,4)}, 0",
            f"v_mfma_f32_32x32x16_bf16 {v(t,16)}, {v(G[n],4)}, {v(I0,4)}, {v(t,16)}",
            f"v_mfma_f32_32x32x16_bf16 {v(t,16)}, {v(G[n]+4,4)}, {v(I1,4)}, {v(t,16)}"]
def stage2(n):
    return [f"v_mfma_f32_32x32x16_bf16 {v(AC[c],16)}, {v(M[c],4)}, {v(S[n],4)}, {v(AC[c],16)}" for c in range(2)]
def mulcvt(q):
    L_ = []
    for a in range(4):
        if 4*a >= 16 - OPT["lut"]:
            for c in range(2): L_.append(f"v_or_b32 v{M[c]+a}, v{T[q]+4*a+c}, v{T[q]+4*a+2+c}")
            continue
        for r in range(4): L_.append(f"v_mul_f32 v{E[q]+4*a+r}, v{E[q]+4*a+r}, v{T[q]+4*a+r}")
        for c in range(2): L_.append(f"v_cvt_pk_bf16_f32 v{M[c]+a}, v{E[q]+4*a+c}, v{E[q]+4*a+2+c}")
    return L_
def flushchk(lbl):
    e(f"s_min_u32 s60, s{sNL}, s{sNLW}")
    e(f"s_sub_u32 s60, s60, s{sBASE}")
    e("s_cmp_ge_u32 s60, 32")
    e(f"s_cbranch_scc1 L_flush_{lbl}")
    e.label(f"L_flret_{lbl}")
def mmask():
    e("s_mov_b32 exec_lo, 0x88888888")
    e("s_mov_b32 exec_hi, 0x88888888")
def flush_slow():
    e("s_nop 7")
    e("v_mov_b32 v2, 0")
    for i in range(8):
        e(f"ds_read_b128 v[4:7], v{vWxa} offset:{WXT+16*i}")
        e("s_waitcnt lgkmcnt(0)")
        for r in range(4): e(f"v_fmac_f32 v2, v{AC[0]+4*i+r}, v{4+r}")
    e(f"ds_add_f32 v{vRowP}, v2 offset:256")
    mmask()
    for i in range(32): e(f"ds_add_f32 v{vRowM}, v{AC[0]+i} offset:{(i//4)*32+(i%4)*4}")
    e("s_mov_b64 exec, -1")

def pkmul(q): return [f"v_pk_mul_f32 {v(E[q]+2*i,2)}, {v(E[q]+2*i,2)}, {v(T[q]+2*i,2)}" for i in range(8)]
def mul(q): return [f"v_mul_f32 v{E[q]+i}, v{E[q]+i}, v{T[q]+i}" for i in range(16)]
def cvt(q): return [f"v_cvt_pk_bf16_f32 v{M[c]+a}, v{E[q]+4*a+c}, v{E[q]+4*a+2+c}" for a in range(4) for c in range(2)]

def ramp(start):
    R = OPT.get("ramp")
    if not R: return
    body = e.lines[start:]
    out = ["s_setprio 0"]; n = -1; lvl = 0
    for l in body:
        if n < 0 and l.startswith("v_exp"): n = 0
        if n >= 0 and l.startswith("v_"):
            if lvl < len(R) and n == R[lvl]:
                lvl += 1
                if out[-1] == "s_nop 0": out.pop()
                out.append(f"s_setprio {lvl}")
            n += 1
        out.append(l)
    e.lines[start:] = out

def step(sidx, first=False):
    st0 = len(e.lines)
    step_(sidx, first)
    ramp(st0)

def step_(sidx, first=False):
    q = sidx & 1; n1 = (sidx + 1) & 3
    side = gather((sidx + DEP) & 3, IDX) + [f"ds_read_u16 v{IDX}, v{aIdx} offset:{(sidx+DEP+1)*128}"]
    if sidx == 3:
        side += build3()
    side += opreads(n1)
    if sidx == 0: side += [f"ds_read_b64 {v(REC,2)}, v{aRec} offset:512"]
    if sidx == 1: side += build1()
    if sidx == 2: side += build2()
    if sidx == 3: side += [f"v_add_u32 v{aIdx}, 512, v{aIdx}", f"v_add_u32 v{aRec}, 512, v{aRec}"]
    if sidx == 1: flushchk("mid")
    if OPT["prio"] and not first:
        e(f"s_cmp_gt_u32 s{sCNT}, {OPT['pr'][0]}")
        e(f"s_cbranch_scc0 L_prio{sidx}")
        e.label(f"L_prret{sidx}")
    exps = [f"v_exp_f32 v{E[q]+i}, v{T[q]+i}" for i in range(16)]
    pre = [y for y in side if y is not None and ("sdwa" in y or "readlane" in y or "v_cmp" in y)]
    mem = [y for y in side if y is not None and (y.startswith(("ds_", "buffer_", "s_")) or "bitop3" in y)]
    oth = [y for y in side if y is None or (y not in pre and y not in mem)]
    for y in pre: e(y)
    for y in mem: e(y)
    k = 0
    for i, x in enumerate(exps):
        e(x)
        if k < len(oth):
            if oth[k] is not None: e(oth[k])
            k += 1
    assert k == len(oth)
    addone = f"v_mfma_f32_32x32x8_bf16 {v(E[q],16)}, {v(ONE,2)}, {v(ONE,2)}, {v(E[q],16)}"
    if first:
        e("s_nop 1"); e(addone); e("s_nop 7")
    elif OPT["pk"]:
        for x in pkmul(1 - q): e(x)
        e(addone)
        for x in cvt(1 - q): e(x)
    else:
        mc = mulcvt(1 - q)
        e(mc[0]); e(mc[1]); e(addone)
        for x in mc[2:]: e(x)
    e(f"s_sub_u32 s{sCNT}, s{sCNT}, 1")
    e(f"s_waitcnt vmcnt({2*DEP-2}) lgkmcnt(0)")
    mf = stage1(n1) + ([] if first else stage2((sidx - 1) & 3))
    rc = [f"v_rcp_f32 v{E[q]+i}, v{E[q]+i}" for i in range(16)]
    for i, x in enumerate(rc):
        if i % 3 == 0 and i // 3 < len(mf):
            e(mf[i // 3])
            if i == 0 and (OPT["pk"] or first): e("s_nop 0")
        e(x)
    if first: e("s_nop 0")
    e(f"s_cbranch_scc1 L_evt{sidx}")

def bfaddr():
    return [f"v_ffbl_b32 v5, v{vMask}",
            f"v_add_u32 v6, -1, v{vMask}",
            f"v_min_u32 v5, {OOB//256}, v5",
            f"v_and_b32 v{vMask}, v6, v{vMask}",
            f"v_mul_u32_u24 v5, {ACCS}, v5",
            f"v_add_u32 v{vFB}, v{vFO}, v5"]
e(f"ds_read_u16 v{PI}, v{aIdx}")
e(f"ds_read_b64 {v(REC,2)}, v{aRec}")
for n in range(1, DEP): e(f"ds_read_u16 v{PI+2*n}, v{aIdx} offset:{n*128}")
e(f"ds_read_u16 v{IDX}, v{aIdx} offset:{DEP*128}")
e(f"s_waitcnt lgkmcnt({DEP})")
b1 = build1()
for x in b1[:6]: e(x)
for x in gather(0, PI): e(x)
for x in b1[6:]: e(x)
e("s_waitcnt lgkmcnt(0)")
b2 = build2(); g1 = gather(1, PI + 2)
for x in b2:
    e(x if x else g1.pop(0))
for x in build3(): e(x)
for x in opreads(0): e(x)
e(f"ds_read_b32 v{vMask}, v{vAItem} offset:{LNK}")
e(f"ds_write_b32 v1, v{ZP} offset:{CNT2}")
e("s_waitcnt vmcnt(2) lgkmcnt(4)")
for x in stage1(0): e(x)
for n in range(2, DEP):
    for x in gather(n, PI + 2*n): e(x)
e("s_waitcnt lgkmcnt(0)")
for x in bfaddr(): e(x)
for x in rowaddr(): e(x)
stamp(10)
step(0, first=True)
e("s_branch L_s1")
e.label("L_s0")
step(0)
e.label("L_s1")
step(1)
e.label("L_s2")
step(2)
e.label("L_s3")
step(3)
e("s_branch L_s0")
if OPT["prio"]:
    for sidx in range(4):
        p3, p2, p1 = OPT["pr"]
        e.label(f"L_prio{sidx}")
        e("s_setprio 2")
        e(f"s_cmp_gt_i32 s{sCNT}, {p2}")
        e(f"s_cbranch_scc1 L_prret{sidx}")
        e("s_setprio 1")
        e(f"s_cmp_gt_i32 s{sCNT}, {p1}")
        e(f"s_cbranch_scc1 L_prret{sidx}")
        e("s_setprio 0")
        e(f"s_branch L_prret{sidx}")
for sidx in range(4):
    q = sidx & 1
    e.label(f"L_evt{sidx}")
    e(f"s_cmp_eq_u32 s{srdBP+2}, 0")
    e(f"s_mov_b32 s{srdBP+2}, 0")
    e(f"s_mov_b32 s{sCNT}, {DEP-1}")
    e(f"s_cbranch_scc0 L_s{(sidx+1)&3}")
    e.label(f"L_drain{sidx}")
    if sidx == 0: flushchk("dr")
    for i in range(4): e(f"ds_read_b128 {v(E[1-q]+4*i,4)}, v{vWxa} offset:{WXT+16*i}")
    for i in range(4): e(f"ds_read_b128 {v(T[1-q]+4*i,4)}, v{vWxa} offset:{WXT+64+16*i}")
    for x in pkmul(q) + cvt(q): e(x)
    e(f"s_cmp_lg_u32 s{sSLOW}, 0")
    e("s_nop 0")
    for x in stage2(sidx): e(x)
    e("s_cbranch_scc1 L_slow_final")
    if sidx < 2: e(f"s_branch L_final_flush{q}")
    else:
        e.label(f"L_final_flush{q}")
        stamp(11)
        e("s_waitcnt lgkmcnt(0)")
        e("s_nop 6")
        mmask()
        for i in range(8): e(f"ds_write_b128 v{vRowM}, {v(AC[0]+4*i,4)} offset:{i*32}")
        e("s_mov_b64 exec, -1")
        e(f"v_pk_mul_f32 v[4:5], {v(AC[0],2)}, {v(E[1-q],2)}")
        e(f"v_pk_mul_f32 v[6:7], {v(AC[1],2)}, {v(T[1-q],2)}")
        for i in range(1, 8):
            e(f"v_pk_fma_f32 v[4:5], {v(AC[0]+2*i,2)}, {v(E[1-q]+2*i,2)}, v[4:5]")
            e(f"v_pk_fma_f32 v[6:7], {v(AC[1]+2*i,2)}, {v(T[1-q]+2*i,2)}, v[6:7]")
        e("v_pk_add_f32 v[4:5], v[4:5], v[6:7]")
        e("v_add_f32 v4, v4, v5")
        e(f"ds_write_b32 v{vRowP}, v4 offset:256")
        if sidx == 2: e("s_branch L_b6")
e.label("L_b6")
MR = 16; MB = 32; Y = 40; YE = 48; HU = 56; MX = 64
e(f"s_cmp_lg_u32 s{sMORE}, 0")
e(f"v_cmp_ne_u32 vcc, 0, v{vMask}")
e("s_waitcnt lgkmcnt(0)")
e("s_barrier")
stamp(12)
e("s_cbranch_scc1 L_more")
e(f"s_cmp_ge_u32 s{sW}, 6")
e("s_cbranch_scc1 L_finpos")
for i in range(4):
    e(f"ds_read_b128 {v(MR+4*i,4)}, v{vFA} offset:{(i>>1)*128+(i&1)*16}")
    e(f"ds_read_b128 {v(MX+4*i,4)}, v{vFB} offset:{(i>>1)*128+(i&1)*16}")
for d in range(4):
    e(f"v_lshlrev_b32 v{HU+2*d}, 16, v{HRES+d}")
    e(f"v_and_b32 v{HU+2*d+1}, 0xffff0000, v{HRES+d}")
e(f"s_mov_b32 s60, {NLN2}")
e("s_cbranch_vccnz L_finbf_more")
e.label("L_finbf")
for i in range(4):
    e(f"s_waitcnt lgkmcnt({6-2*i})")
    for d in range(2): e(f"v_pk_add_f32 {v(MR+4*i+2*d,2)}, {v(MR+4*i+2*d,2)}, {v(MX+4*i+2*d,2)}")
    for d in range(2): e(f"v_cvt_pk_bf16_f32 v{MB+2*i+d}, v{MR+4*i+2*d}, v{MR+4*i+2*d+1}")
for t in range(2): e(f"v_mfma_f32_16x16x32_bf16 {v(Y+4*t,4)}, {v(WH2+8*t,4)}, {v(MB,4)}, {v(H1+4*t,4)}")
for t in range(2): e(f"v_mfma_f32_16x16x32_bf16 {v(Y+4*t,4)}, {v(WH2+8*t+4,4)}, {v(MB+4,4)}, {v(Y+4*t,4)}")
e("s_nop 6")
for i in range(8): e(f"v_exp_f32 v{YE+i}, v{Y+i}")
for i in range(4): e(f"v_pk_add_f32 {v(YE+2*i,2)}, {v(YE+2*i,2)}, 1.0 op_sel_hi:[1,0]")
for i in range(4): e(f"v_pk_mul_f32 {v(Y+2*i,2)}, {v(Y+2*i,2)}, s[60:61] op_sel_hi:[1,0]")
for i in range(8): e(f"v_rcp_f32 v{YE+i}, v{YE+i}")
for i in range(4):
    e(f"v_pk_fma_f32 {v(HU+2*i,2)}, {v(Y+2*i,2)}, {v(YE+2*i,2)}, {v(HU+2*i,2)}")
for d in range(4): e(f"v_cvt_pk_bf16_f32 v{Y+d}, v{HU+2*d}, v{HU+2*d+1}")
e(f"s_mov_b64 exec, {s(sOM,2)}")
e(f"global_store_dwordx4 v{vOA}, {v(Y,4)}, {s(sOUT,2)} {OPT.get('ost','')}")
stamp(13, last=True)
e("s_endpgm")
e.label("L_finpos")
e(f"ds_read_b64 v[16:17], v{vFA}")
e.label("L_posbf")
e(f"ds_read_b64 v[18:19], v{vFB}")
e("s_waitcnt lgkmcnt(0)")
e("v_add_f32 v16, v16, v18")
e("v_add_f32 v17, v17, v19")
e("s_cbranch_vccnz L_posbf_more")
e("v_add_f32 v16, v16, v17")
e(f"v_add_f32 v{vPosOwn}, v{vPosOwn}, v16")
e(f"v_cvt_pk_bf16_f32 v2, v{vPosOwn}, v{vPosOwn}")
e(f"v_mov_b32 v7, s{sTAG}")
e(f"s_mov_b64 exec, {s(sOM,2)}")
e(f"global_store_short v{vOA}, v2, {s(sOUT,2)}")
e("s_cmp_lg_u32 s2, 0")
e("s_cbranch_scc1 L_noep")
e("s_mov_b64 exec, 1")
e(f"global_store_dword v{ZP}, v7, {s(sWS,2)}")
e.label("L_noep")
stamp(13, last=True)
e("s_endpgm")
for lbl in ("mid", "dr"):
    e.label(f"L_flush_{lbl}")
    flush_slow()
    e("s_waitcnt lgkmcnt(0)")
    for i in range(32): e(f"v_mov_b32 v{AC[0]+i}, 0")
    e(f"s_mov_b32 s{sBASE}, s{sNF}")
    e(f"s_mov_b32 s{sSLOW}, 1")
    for x in rowaddr(): e(x)
    e(f"s_branch L_flret_{lbl}")
e.label("L_slow_final")
flush_slow()
e("s_branch L_b6")
e.label("L_finbf_more")
e("s_waitcnt lgkmcnt(0)")
for i in range(16): e(f"v_add_f32 v{MR+i}, v{MR+i}, v{MX+i}")
for x in bfaddr(): e(x)
for i in range(4): e(f"ds_read_b128 {v(MX+4*i,4)}, v{vFB} offset:{(i>>1)*128+(i&1)*16}")
e(f"v_cmp_ne_u32 vcc, 0, v{vMask}")
e("s_waitcnt lgkmcnt(0)")
e("s_cbranch_vccnz L_finbf_more")
e("s_branch L_finbf")
e.label("L_posbf_more")
for x in bfaddr(): e(x)
e(f"v_cmp_ne_u32 vcc, 0, v{vMask}")
e("s_branch L_posbf")
e.label("L_pollout")
e(f"s_mov_b32 s{sBUD}, 0")
e("s_branch L_gotoff")
e.label("L_stale")
e(f"s_cmp_eq_u32 s{sBUD}, 0")
e("s_cbranch_scc1 L_gotrec")
e(f"s_sub_u32 s{sBUD}, s{sBUD}, 1")
presets()
e("s_branch L_fetch")
e.label("L_pad0")
e("v_mov_b32 v8, v1")
e("v_mov_b32 v9, 10000")
e("s_mov_b64 exec, vcc")
e.label("L_pad")
e("v_add_u32 v7, v6, v2")
e("v_add_u32 v2, 8, v2")
e(f"ds_write_b64 v7, v[8:9] offset:{SORT2}")
e("v_cmp_lt_u32 vcc, v2, v4")
e("s_and_b64 exec, vcc, vcc")
e("s_cbranch_scc1 L_pad")
e("s_mov_b64 exec, -1")
e("s_branch L_nopad")
e.label("L_more")
e("s_waitcnt vmcnt(0)")
e(f"s_add_u32 s{sR0}, s{sR0}, s{sS}")
e(f"s_mov_b32 s{sS}, 256")
e.label("L_batch")
e(f"s_mov_b64 {s(sPF,2)}, 0")
e("s_setprio 0")
e(f"s_mov_b32 s{srdBP+2}, 10000")
batchsetup(True)
e("s_branch L_fetch")
e.label("L_redo")
e(f"s_cmp_eq_u32 s{sS}, {SFALL}")
e("s_cbranch_scc1 L_end")
e("s_waitcnt vmcnt(0) lgkmcnt(0)")
e("s_barrier")
e(f"ds_write_b32 v1, v{ZP} offset:{CNT2}")
e(f"s_mov_b32 s{sS}, {SFALL}")
e("s_waitcnt lgkmcnt(0)")
e("s_barrier")
e("s_branch L_batch")
e.label("L_end")
e("s_endpgm")

probs = check_cfg(e.lines)
for p in probs: print("HAZARD", p, file=sys.stderr)

ref = open("cdna_kernels/" + KN + ".s.ref").read().split("\n")
hdr = []
for l in ref:
    if l.startswith("; Override launch"): break
    hdr.append(l)
out = "\n".join(hdr) + f"""
; One persistent launch: 250 workgroups (one per CU) bin the edges by destination bucket, hand the bins
; over through d_ws (tagged with a per-launch epoch), then each workgroup updates its 40 nodes.
; @launch grid=({NWG},1,1) block=(512,1,1) lds={LDS_SIZE}
.amdgcn_target "amdgcn-amd-amdhsa--gfx950"
.text
.globl {KN}_kernel
.p2align 8
.type {KN}_kernel,@function
{KN}_kernel:
{e.text()}.section .rodata,"a"
.p2align 6
.amdhsa_kernel {KN}_kernel
  .amdhsa_next_free_vgpr 256
  .amdhsa_next_free_sgpr 102
  .amdhsa_accum_offset 256
  .amdhsa_group_segment_fixed_size 0
  .amdhsa_kernarg_size 88
  .amdhsa_user_sgpr_count 2
  .amdhsa_user_sgpr_kernarg_segment_ptr 1
  .amdhsa_system_sgpr_workgroup_id_x 1
  .amdhsa_float_denorm_mode_32 3
.end_amdhsa_kernel
"""
open(sys.argv[1], "w").write(out)
print("wrote", sys.argv[1], len(e.lines), "lines;", len(probs), "hazards", file=sys.stderr)
```

```python
import sys, struct
from asmlib import Emit, v, s, check_cfg

KN = "standalone__cheap_equivariant_egnn__graph"
OPT = dict(stamps=False, prio=False, ramp=(3,16,34), ost="sc1", posat="poll", touch=True, x="", ackwait=True, place="burst", lut=0, pr=(5,2,0), pk=True, bpf=1, dep=2, srcat="b0", pubat=0, lcat="start", pw="pl", pa=("none","none"))
for a in sys.argv[2:]:
    k, _, val = a.partition("=")
    try: OPT[k] = eval(val) if val else True
    except Exception: OPT[k] = val

def fbits(x): return struct.unpack("<I", struct.pack("<f", x))[0]
LOG2E = 1.4426950408889634; LN2 = 0.6931471805599453
NL2E = hex(fbits(-LOG2E)); NLN2 = hex(fbits(-LN2))

NWG = 250; CH = 2560; NB = 40
CNT1 = 0x0; OFF1 = 0x400; CNT2 = 0x800; LNK = 0x900; BASE2 = 0xA00; PD = 0xB00; WXT = 0xE00
POS = 0xF00; SORT2 = POS + 61440; CAPB = 3072 * 8
R1 = SORT2 + CAPB + 512; R2 = R1 + 8192; ACC = R2 + 32768; ACCS = 304
BF = ACC + NB * ACCS; AT = BF + 8 * ACCS; ATS = 104; HB = AT + 64 * ATS; WL = HB + 6144; WXL = WL + 256; LDS_END = WXL + 128
STG = R2; WE = SORT2; WH = SORT2 + 16384
OOB = 0x100000
LDS_SIZE = 163840
assert LDS_END <= LDS_SIZE and WH + 16384 <= R2 and R2 % 64 == 0 and WE % 128 == 0 and HB % 128 == 0
PADB = 32 * 8; SFALL = 48
WB = OPT.get("wb", 0) << 20
WS_OFF = WB + 0x10000; WS_BP = WB + 0x80000; WS_REC = WB + 0x200000; WS_STAMP = 0x1000000
TAGC = 0x9E3779B1
sH, sPOS, sE, sSRC, sDST, sWE, sWX, sWH, sOUT, sDBG, sWS = 4, 6, 8, 10, 12, 14, 16, 18, 20, 22, 24
sW, sB = 26, 27
srdBP, srdPOS, srdH = 28, 32, 36
sTAG, sTAGR, sBUD, sR0, sS, sN0, sNG, sCHF = 40, 41, 42, 43, 44, 45, 46, 47
sOHC, sNFW, sNLW, sCNT, sBASE, sNF, sNL, sNEG, sMORE, sVAL = 48, 50, 51, 52, 53, 54, 55, 56, 57, 58
sONCE = 17; sANYB = 18; sOM = 4
sSLOW = 16
sMK = 64
sRB = 8
T = [16, 32]; E = [48, 64]; AC = [80, 96]; M = [112, 116]; G = [120, 128, 136, 144]; S = [152, 156, 160, 164]
R1OP = 168; WX = 172; I0 = 176; I1 = 180; ONE = 184; IDX = 186
aIdx, aRec, aR1r, aS0, aS1, aR1w, aR2b, aR2, aATb, aAT = 188, 189, 190, 191, 192, 193, 194, 195, 196, 197
vRowM, vRowP = 198, 199
REC = 200; R2V = 204; PS = 206; PDV = 210; BT = 213; ZP = 216; vIdxL = 218; vFA = 219; vFO = 209; vOA = 12; vFB = 3; vPosOwn = 230
SEG = 220; vMask = 224; vWxa = 225; H1 = 226; HRES = 234; WH2 = 238; vLane = 254; vAItem = 255
L = vLane

e = Emit()
def stamp(i, last=False):
    if OPT.get("diag") is not None:
        if i == 0:
            e("s_memrealtime s[98:99]")
            e("s_waitcnt lgkmcnt(0)")
            e("s_mov_b32 s100, s98")
            e("s_mov_b32 s101, s98")
        elif i == OPT["diag"]:
            e("s_memrealtime s[98:99]")
            e("s_waitcnt lgkmcnt(0)")
            e("s_mov_b32 s101, s98")
        if last:
            stamp.n = getattr(stamp, "n", 0) + 1
            e("s_sub_u32 s101, s101, s100")
            e("s_lshl_b32 s101, s101, 2")
            e("s_add_u32 s101, s101, 3000")
            e.label(f"L_spin{stamp.n}")
            e("s_memrealtime s[98:99]")
            e("s_waitcnt lgkmcnt(0)")
            e("s_sub_u32 s98, s98, s100")
            e("s_cmp_lt_u32 s98, s101")
            e(f"s_cbranch_scc1 L_spin{stamp.n}")
        return
    if not OPT["stamps"]: return
    if i > 0:
        e("s_mov_b32 m0, s101")
        e("v_writelane_b32 v15, s98, m0")
        e("v_writelane_b32 v14, s22, m0")
    e("s_memrealtime s[98:99]")
    if i > 0: e("s_memtime s[22:23]")
    e(f"s_mov_b32 s101, {i}")
    if i in (6, 7, 9): e(f"v_writelane_b32 v15, s{sBUD}, {16+i}")
    if i == 6: e("s_nop 0\nv_writelane_b32 v15, s7, 27")
    if i == 10: e(f"s_add_u32 s100, s{sCNT}, {OPT['dep']-4}\nv_writelane_b32 v15, s100, 26")
    if last:
        e("s_mov_b64 exec, -1")
        e("s_waitcnt lgkmcnt(0)")
        e(f"v_writelane_b32 v15, s98, {i}")
        e(f"v_writelane_b32 v14, s22, {i}")
        e("s_lshl_b32 s100, s2, 3")
        e(f"s_add_u32 s100, s100, s{sW}")
        e("s_lshl_b32 s100, s100, 7")
        e(f"s_add_u32 s100, s100, {WS_STAMP}")
        e(f"v_lshl_add_u32 v13, v{L}, 2, s100")
        e("s_mov_b32 exec_hi, 0")
        e(f"global_store_dword v13, v15, {s(sWS,2)}")
        e("v_add_u32 v13, 0x100000, v13")
        e(f"global_store_dword v13, v14, {s(sWS,2)}")

def scan(r, fill=()):
    fill = list(fill)
    for m in ("row_shr:1 row_mask:0xf bank_mask:0xf bound_ctrl:1", "row_shr:2 row_mask:0xf bank_mask:0xf bound_ctrl:1",
              "row_shr:4 row_mask:0xf bank_mask:0xf bound_ctrl:1", "row_shr:8 row_mask:0xf bank_mask:0xf bound_ctrl:1",
              "row_bcast:15 row_mask:0xa bank_mask:0xf", "row_bcast:31 row_mask:0xc bank_mask:0xf"):
        if len(fill) >= 2:
            e(fill.pop(0)); e(fill.pop(0))
        else: e("s_nop 1")
        e(f"v_add_u32_dpp v{r}, v{r}, v{r} {m}")
    assert not fill

SD = "dst_sel:DWORD dst_unused:UNUSED_PAD"

def posdma(half, vt=1):
    e(f"s_lshl_b32 s96, s{sW}, 13")
    if half:
        e("s_add_u32 s96, s96, 4096")
        e(f"s_min_u32 s96, s96, {7*8192}")
    e(f"s_add_u32 m0, s96, {POS}")
    e(f"v_lshlrev_b32 v{vt}, 4, v{L}")
    for i in range(4): e(f"buffer_load_dwordx4 v{vt}, {s(srdPOS,4)}, s96 offen offset:{i*1024} lds")
PA_ = OPT.get("pa", ("poll", "poll"))
def posat(where, vt=1):
    n = 0
    for h in range(2):
        if PA_[h] == where:
            posdma(h, vt); n += 4
    return n

DSTR = 16; SRCR = 24; ER = 32; XW = 36; B4 = 48; RK = 56
WA0 = 64; WA1 = 65; WA2 = 66; HA = 67; CA0 = 68; PBA = 69; TCH = 70; HF = 72
WT = 80; DT = 112; W1T = 128; aWH = 144; aWT = 148
stamp(0)
e.label("L_entry")
e(f"s_cmp_ge_u32 s2, {NWG}")
e("s_cbranch_scc1 L_end")
e("s_load_dwordx16 s[4:19], s[0:1], 0")
e("s_load_dwordx4 s[20:23], s[0:1], 64")
e("s_load_dwordx2 s[24:25], s[0:1], 80")
if OPT["touch"]:
    e("s_getpc_b64 s[62:63]")
    e.label("L_pc")
    e("v_lshlrev_b32 v5, 5, v0")
    e("v_min_u32 v5, L_end-L_pc, v5")
    e("s_mov_b32 exec_lo, 0x11111111")
    e("s_mov_b32 exec_hi, 0x11111111")
    e(f"global_load_dword v{TCH}, v5, s[62:63]")
    e("s_mov_b64 exec, -1")
e(f"s_mul_i32 s3, s2, {CH*4}")
e("v_lshl_add_u32 v8, v0, 4, s3")
e(f"s_add_u32 s60, s3, 8192")
e("v_lshl_add_u32 v9, v0, 2, s60")
e("s_lshr_b32 s3, s3, 1")
e("v_lshl_add_u32 v10, v0, 3, s3")
e("s_add_u32 s60, s3, 4096")
e("v_lshl_add_u32 v11, v0, 1, s60")
e("v_lshrrev_b32 v5, 6, v0")
e(f"v_and_b32 v{L}, 63, v0")
e(f"v_readfirstlane_b32 s{sW}, v5")
e(f"v_mov_b32 v{ZP}, 0")
e(f"v_mov_b32 v{ZP+1}, 0")
e("v_lshlrev_b32 v12, 4, v0")
e("v_lshlrev_b32 v5, 3, v0")
e(f"ds_write_b64 v5, {v(ZP,2)}")
e("s_and_b32 s60, s2, 7")
e(f"s_mul_i32 s{sB}, s60, 31")
e("s_min_u32 s60, s60, 2")
e(f"s_add_u32 s{sB}, s{sB}, s60")
e("s_lshr_b32 s96, s2, 3")
e(f"s_add_u32 s{sB}, s{sB}, s96")
e(f"s_mul_i32 s{sN0}, s{sB}, {NB}")
e(f"v_and_b32 v5, 16, v{L}")
e("v_and_b32 v6, 64, v0")
e("v_lshl_or_b32 v5, v5, 1, v6")
e(f"v_xor_b32 v{WA0}, v5, v12")
e(f"v_add_u32 v{WA1}, 8192, v{WA0}")
e(f"v_lshlrev_b32 v5, 1, v{L}")
e(f"s_lshl_b32 s60, s{sN0}, 7")
e("v_and_b32 v5, 0x70, v5")
e(f"v_xad_u32 v{HA}, v5, v12, s60")
e(f"s_lshl_b32 s60, s{sW}, 10")
e(f"s_add_u32 m0, s60, {WE+8192}")
e("s_waitcnt lgkmcnt(0)")
e(f"global_load_dwordx4 {v(DSTR,4)}, v8, {s(sDST,2)}")
e(f"global_load_dword v{DSTR+4}, v9, {s(sDST,2)}")
TL = OPT.get("tlb", 0)
e(f"s_mov_b32 s{srdH}, s{sH}")
e(f"s_and_b32 s{srdH+1}, s{sH+1}, 0xffff")
e(f"s_mov_b32 s{srdH+2}, 1280000")
e(f"s_mov_b32 s{srdH+3}, 0x20000")
e(f"s_mov_b32 s{srdPOS}, s{sPOS}")
e(f"s_and_b32 s{srdPOS+1}, s{sPOS+1}, 0xffff")
e(f"s_mov_b32 s{srdPOS+2}, 60000")
e(f"s_mov_b32 s{srdPOS+3}, 0x20000")
e(f"s_cmp_ge_u32 s{sW}, 6")
e(f"global_load_lds_dwordx4 v{WA1}, {s(sWE,2)}")
e("s_cbranch_scc1 L_d67")
e(f"s_add_u32 m0, s60, {HB}")
e("s_nop 0")
e(f"buffer_load_dwordx4 v{HA}, {s(srdH,4)}, 0 offen lds")
e("s_branch L_ddone")
e.label("L_d67")
e(f"s_add_u32 s62, s{sWE}, 16384")
e(f"s_addc_u32 s63, s{sWE+1}, 0")
e(f"v_lshlrev_b32 v5, 4, v{L}")
e(f"s_cmp_eq_u32 s{sW}, 7")
e(f"s_cselect_b64 s[62:63], {s(sWX,2)}, s[62:63]")
e(f"s_cselect_b32 s61, 256, 0")
e(f"s_cselect_b32 s97, 8, 16")
e(f"s_add_u32 m0, s61, {WL}")
e("s_bfm_b64 exec, s97, 0")
e(f"global_load_lds_dwordx4 v5, s[62:63]")
e("s_mov_b64 exec, -1")
e.label("L_ddone")
e("s_barrier")
def srcloads():
    e(f"global_load_dwordx4 {v(SRCR,4)}, v8, {s(sSRC,2)}")
    e(f"global_load_dword v{SRCR+4}, v9, {s(sSRC,2)}")
    e(f"global_load_dwordx2 {v(ER,2)}, v10, {s(sE,2)}")
    e(f"global_load_short_d16_hi v{ER+2}, v11, {s(sE,2)}")
    e(f"global_load_dword v71, v{ZP}, {s(sWS,2)}")
NPW = 0
if OPT["srcat"] == "b0": srcloads()
if TL:
    e(f"v_lshlrev_b32 v5, {TL}, v0")
    e(f"v_cmp_gt_u32 vcc, {min(512, 0x700000 >> TL) + (1 if TL == 21 else 0)}, v0")
    e(f"s_lshl_b32 s61, s{sN0}, 7")
    e("v_mov_b32 v6, s61")
    e("s_mov_b64 exec, vcc")
    e(f"global_load_dword v{TCH}, v5, {s(sWS,2)} sc1")
    e("s_mov_b64 exec, 1")
    e(f"global_load_dword v{TCH}, v6, {s(sOUT,2)} sc1")
    e("s_mov_b64 exec, -1")
    NPW = 2
stamp(1)
e(f"s_mul_i32 s{sCHF}, s{sW}, 86")
e(f"s_lshr_b32 s{sCHF}, s{sCHF}, 8")
e(f"s_mul_i32 s61, s{sCHF}, 3")
e(f"s_sub_u32 s{sNG}, s{sW}, s61")
e(f"s_and_b32 s61, s{sW}, 3")
e("s_lshl_b32 s61, s61, 1")
e(f"s_lshr_b32 s62, s{sW}, 2")
e("s_add_u32 s61, s61, s62")
e("s_lshl_b32 s61, s61, 8")
e("s_add_u32 s61, s61, 8192")
e(f"v_and_b32 v5, 0x70, v{WA0}")
e(f"v_bfe_u32 v6, v{L}, 3, 2")
e("v_lshl_add_u32 v5, v6, 11, v5")
e(f"v_lshrrev_b32 v6, 5, v{L}")
e("v_lshl_add_u32 v5, v6, 7, v5")
e(f"v_add_u32 v{WA2}, s61, v5")
e(f"v_and_b32 v1, 15, v{L}")
e(f"v_lshrrev_b32 v3, 4, v{L}")
e(f"s_lshl_b32 s61, s{sNG}, 11")
e(f"s_add_u32 s61, s61, {HB}")
e(f"v_and_b32 v2, 7, v{L}")
e("v_xor_b32 v2, v2, v3")
e("v_lshl_add_u32 v4, v1, 7, s61")
e(f"v_lshl_add_u32 v{aWH+1}, v2, 4, v4")
e(f"v_xor_b32 v{aWH+2}, 64, v{aWH+1}")
e(f"v_bfe_u32 v6, v{L}, 2, 2")
e(f"v_and_b32 v2, 3, v{L}")
e("v_lshl_add_u32 v4, v3, 3, v6")
e(f"v_lshlrev_b32 v7, 2, v{L}")
e("v_and_b32 v7, 0x60, v7")
e(f"s_xor_b32 s61, s{sCHF}, 1")
e("s_lshl_b32 s61, s61, 13")
e(f"s_add_u32 s61, s61, {WE}")
e("v_lshl_add_u32 v5, v4, 7, s61")
e("v_lshl_add_u32 v5, v2, 3, v5")
e(f"v_xor_b32 v{aWT}, v7, v5")
for t in range(1, 4): e(f"v_xor_b32 v{aWT+t}, {32*t}, v{aWT}")
e(f"s_lshl_b32 s61, s{sCHF}, 6")
e(f"s_add_u32 s61, s61, {WH}")
e("v_lshl_add_u32 v6, v2, 4, s61")
e("v_lshl_add_u32 v5, v4, 7, v6")
e(f"v_xor_b32 v{aWH}, v7, v5")
e(f"s_lshl_b32 s61, s{sNG}, 4")
e(f"s_add_u32 s61, s61, s{sN0}")
e("s_lshl_b32 s61, s61, 7")
e(f"s_add_u32 s61, s61, {WS_BP}")
e("v_lshl_add_u32 v2, v3, 9, s61")
e(f"v_lshl_add_u32 v{aWH+3}, v1, 3, v2")
def laneconsts():
    e(f"s_add_u32 s{srdBP}, s{sWS}, {WS_BP}")
    e(f"s_addc_u32 s{srdBP+1}, s{sWS+1}, 0")
    e(f"s_and_b32 s{srdBP+1}, s{srdBP+1}, 0xffff")
    e(f"s_or_b32 s{srdBP+1}, s{srdBP+1}, 0x800000")
    e(f"s_mov_b32 s{srdBP+2}, 10000")
    e(f"s_mov_b32 s{srdBP+3}, 0x20000")
    e(f"s_mov_b32 s{sR0}, 0")
    e(f"s_mov_b32 s{sS}, 256")
    e(f"s_mov_b32 s{sOHC}, 0x3f80")
    e(f"s_mov_b32 s{sOHC+1}, 0")
    e(f"v_lshrrev_b32 v1, 5, v{L}")
    e(f"v_and_b32 v2, 1, v{L}")
    e(f"v_lshlrev_b32 v{vWxa}, 7, v1")
    e(f"v_lshlrev_b32 v3, 5, v1")
    e(f"v_lshl_add_u32 v{IDX+1}, v2, 4, v3")
    e(f"v_bfe_u32 v4, v{L}, 3, 2")
    e(f"v_bfe_u32 v5, v{L}, 1, 1")
    e("v_lshl_add_u32 v4, v4, 1, v5")
    e(f"v_bfe_u32 v5, v{L}, 2, 1")
    e("v_lshl_add_u32 v4, v5, 3, v4")
    e(f"v_lshlrev_b32 v{vIdxL}, 3, v4")
    e(f"s_lshl_b32 s61, s{sW}, 10")
    e(f"s_add_u32 s61, s61, {R1}")
    e(f"v_lshl_add_u32 v{aR1r}, v4, 4, s61")
    e("v_xor_b32 v5, v1, v2")
    e(f"v_lshl_add_u32 v{aR1r}, v5, 20, v{aR1r}")
    e(f"v_lshl_add_u32 v{aR1w}, v{L}, 4, s61")
    e(f"s_lshl_b32 s61, s{sW}, 12")
    e(f"s_add_u32 s61, s61, {R2}")
    e(f"v_bfe_u32 v3, v{L}, 1, 3")
    e(f"v_lshl_add_u32 v4, v{L}, 6, s61")
    e(f"v_lshl_add_u32 v{aR2b}, v3, 3, v4")
    e(f"v_mov_b32 v{aR2}, v{aR2b}")
    e(f"v_bfe_u32 v3, v{L}, 2, 2")
    e(f"v_and_b32 v4, 3, v{L}")
    e(f"v_bfe_u32 v5, v{L}, 4, 1")
    e("v_lshl_add_u32 v5, v5, 2, v4")
    e("v_lshrrev_b32 v7, 1, v3")
    e("v_lshl_add_u32 v7, v1, 2, v7")
    e("v_xor_b32 v5, v5, v7")
    e("v_lshl_add_u32 v7, v1, 3, v3")
    e("v_lshl_add_u32 v7, v7, 6, s61")
    e(f"v_lshl_add_u32 v{aS0}, v5, 3, v7")
    e(f"v_xor_b32 v{aS1}, 16, v{aS0}")
    e(f"v_add_u32 v{aS1}, 256, v{aS1}")
    e(f"v_and_b32 v6, 31, v{L}")
    e("v_lshlrev_b32 v7, 3, v1")
    e("v_sub_u32 v7, v6, v7")
    e("v_lshlrev_b32 v6, 4, v2")
    e(f"v_lshlrev_b32 v6, v6, s{sOHC}")
    e("v_ashrrev_i32 v7, 1, v7")
    for u, I in ((0, I0), (1, I1)):
        for d in range(4): e(f"v_cmp_eq_u32 {s(sMK+2*d,2)}, {8*u+d}, v7")
        for d in range(4): e(f"v_cndmask_b32 v{I+d}, 0, v6, {s(sMK+2*d,2)}")
    e("v_xor_b32 v7, 1, v1")
    e(f"v_mul_u32_u24 v{ONE}, 0x3f80, v7")
    e(f"v_mov_b32 v{ONE+1}, 0")
if OPT["lcat"] == "start":
    for i in range(4): e(f"v_mov_b32 v{B4+i}, 0")
    e(f"v_add_u32 v5, {R2}, v12")
    for i in range(3, 5): e(f"ds_write_b128 v5, {v(B4,4)} offset:{i*8192}")
    e(f"v_cmp_gt_u32 vcc, {(AT - R2 - 5*8192)//16}, v0")
    e("s_mov_b64 exec, vcc")
    e(f"ds_write_b128 v5, {v(B4,4)} offset:{5*8192}")
    e("s_mov_b64 exec, -1")
    laneconsts()
e(f"v_lshrrev_b32 v1, 5, v{L}")
e(f"v_and_b32 v6, 31, v{L}")
e("v_and_b32 v7, 3, v6")
e("v_lshrrev_b32 v13, 3, v6")
e("v_lshlrev_b32 v13, 2, v13")
e("v_lshl_add_u32 v7, v7, 4, v13")
e("v_bfe_u32 v13, v6, 2, 1")
e("v_add_u32 v7, v7, v13")
e("v_lshl_add_u32 v7, v1, 1, v7")
e(f"v_lshlrev_b32 v{CA0}, 1, v7")
e(f"v_add_u32 v{CA0}, {WL}, v{CA0}")
e(f"v_mul_u32_u24 v{aATb}, {ATS}, v7")
e(f"v_add_u32 v{aATb}, {AT}, v{aATb}")
e("v_mov_b32 v13, 8")
e("s_mov_b32 s61, 52429")
e("s_movk_i32 s62, -40")
NPW += posat("start")
if OPT["srcat"] == "d1":
    e("s_waitcnt vmcnt(3)")
    srcloads()
e(f"s_waitcnt vmcnt({7+NPW})")
if OPT["srcat"] == "dst": srcloads()
if OPT["stamps"]: e("s_waitcnt lgkmcnt(0)")
stamp(14)
for i in range(5): e(f"v_mul_u32_u24 v{B4+i}, s61, v{DSTR+i}")
for i in range(5): e(f"v_lshrrev_b32 v{B4+i}, 21, v{B4+i}")
for i in range(5):
    e(f"v_lshlrev_b32 v{B4+i}, 2, v{B4+i}")
    e(f"ds_add_rtn_u32 v{RK+i}, v{B4+i}, v13 offset:{CNT1}")
NPW += posat("atom")
e(f"v_lshlrev_b32 v1, 4, v{L}")
e(f"s_cmp_ge_u32 s{sW}, 3")
e(f"s_waitcnt vmcnt({5+NPW}) lgkmcnt(0)")
e("s_barrier")
stamp(2)
def nodeprod_reads():
    e(f"ds_read_b128 {v(HF,4)}, v{aWH+1}")
    e(f"ds_read_b128 {v(HF+4,4)}, v{aWH+2}")
    for t in range(4):
        for ks in range(2):
            for rd in range(2):
                e(f"ds_read_b64_tr_b16 {v(WT+8*t+4*ks+2*rd,2)}, v{aWT+t} offset:{ks*4096+rd*512}")
def nodeprod(extra=0):
    e(f"s_mov_b32 s96, {NL2E}")
    for t in range(4):
        e(f"s_waitcnt lgkmcnt({12-4*t+extra})")
        e(f"v_mfma_f32_16x16x32_bf16 {v(DT+4*t,4)}, {v(HF,4)}, {v(WT+8*t,4)}, 0")
        e(f"v_mfma_f32_16x16x32_bf16 {v(DT+4*t,4)}, {v(HF+4,4)}, {v(WT+8*t+4,4)}, {v(DT+4*t,4)}")
def nodescale():
    for i in range(8): e(f"v_pk_mul_f32 {v(DT+2*i,2)}, {v(DT+2*i,2)}, s[96:97] op_sel_hi:[1,0]")
def wdma():
    for base, a, ptr in ((WE, WA0, sWE), (WH, WA0, sWH), (WH+8192, WA2, sWH)):
        e(f"s_add_u32 m0, s60, {base}")
        e("s_nop 0")
        e(f"global_load_lds_dwordx4 v{a}, {s(ptr,2)}")
    return posat("b1", 2)
e("s_cbranch_scc1 L_nobp")
nodeprod_reads()
e(f"ds_read_b128 v[4:7], v1 offset:{CNT1}")
wdma()
nodeprod(1)
e(f"s_cmp_eq_u32 s{sNG}, 2")
e("s_cselect_b32 s63, 0, -1")
nodescale()
for r in range(4):
    e(f"v_cvt_pk_bf16_f32 v{WT+2*r}, v{DT+r}, v{DT+4+r}")
    e(f"v_cvt_pk_bf16_f32 v{WT+2*r+1}, v{DT+8+r}, v{DT+12+r}")
e("s_mov_b32 exec_hi, s63")
for r in range(4): e(f"global_store_dwordx2 v{aWH+3}, {v(WT+2*r,2)}, {s(sWS,2)} offset:{r*128} sc1")
e("s_mov_b64 exec, -1")
e("s_branch L_bpdone")
e.label("L_nobp")
e(f"ds_read_b128 v[4:7], v1 offset:{CNT1}")
NPW += wdma()
e.label("L_bpdone")
e("s_waitcnt lgkmcnt(0)")
e("v_add_u32 v5, v4, v5")
e("v_add_u32 v6, v5, v6")
e("v_add_u32 v7, v6, v7")
e("v_mov_b32 v3, v7")
fill = [f"v_lshlrev_b32 v{XW+2*i}, 2, v{DSTR+i}" for i in range(5)] + \
       [f"v_mad_i32_i24 v{XW+2*i}, v{B4+i}, s62, v{XW+2*i}" for i in range(5)] + \
       [f"v_add_u32 v{RK+i}, {STG}, v{RK+i}" for i in range(5)]
scan(3, fill[:12])
e("v_sub_u32 v8, v3, v7")
e("v_add_u32 v9, v8, v4")
e("v_add_u32 v10, v8, v5")
e("v_add_u32 v11, v8, v6")
e(f"ds_write_b128 v1, v[8:11] offset:{OFF1}")
for i in range(5): e(f"ds_read_b32 v{B4+i}, v{B4+i} offset:{OFF1}")
for x in fill[12:]: e(x)
PB = 20
e(f"v_lshl_or_b32 v{PB}, v9, 16, v8")
e(f"v_lshl_or_b32 v{PB+1}, v11, 16, v10")
e(f"v_mov_b32 v{PB+2}, v3")
e("s_mov_b32 s63, 0xffff0000")
e(f"s_cmp_ge_u32 s{sW}, 3")
e(f"s_waitcnt vmcnt({8+NPW})")
e("s_cbranch_scc0 L_srcin")
e(f"s_waitcnt vmcnt({4+NPW})")
e.label("L_srcin")
e(f"v_lshl_or_b32 v{XW+1}, v{ER}, 16, v{SRCR}")
e(f"v_and_or_b32 v{XW+3}, v{ER}, s63, v{SRCR+1}")
e(f"v_lshl_or_b32 v{XW+5}, v{ER+1}, 16, v{SRCR+2}")
e(f"v_and_or_b32 v{XW+7}, v{ER+1}, s63, v{SRCR+3}")
e(f"v_or_b32 v{XW+9}, v{ER+2}, v{SRCR+4}")
for i in range(5):
    e("s_waitcnt lgkmcnt(4)")
    e(f"v_add_u32 v{B4+i}, v{B4+i}, v{RK+i}")
    e(f"ds_write_b64 v{B4+i}, {v(XW+2*i,2)}")
e(f"s_mul_i32 s60, s2, {CH*8}")
e(f"s_add_u32 s60, s60, {WS_REC+4096}")
e("v_add_u32 v2, s60, v12")
e("v_add_u32 v3, 8192, v2")
e("v_add_u32 v4, 12288, v2")
e(f"v_add_u32 v5, {STG}, v12")
e(f"s_lshl_b32 s60, s2, 10")
e(f"s_add_u32 s60, s60, {WS_OFF}")
e(f"v_add_u32 v{PBA}, s60, v1")
e("s_waitcnt vmcnt(0)")
e(f"v_add_u32 v{PB+3}, {TAGC}, v71")
e(f"v_and_b32 v71, 0xffffff00, v{PB+3}")
e(f"s_cmp_ge_u32 s{sW}, 4")
e(f"v_readfirstlane_b32 s{sTAG}, v{PB+3}")
e(f"v_readfirstlane_b32 s{sTAGR}, v71")
e("s_waitcnt lgkmcnt(0)")
e("s_barrier")
stamp(3)
ST = 48
def publish(w):
    e(f"s_cmp_lg_u32 s{sW}, {w}")
    e("s_cbranch_scc1 L_nopub")
    e(f"global_store_dwordx4 v{PBA}, {v(PB,4)}, {s(sWS,2)} sc1")
    e.label("L_nopub")
def posdma4():
    e(f"s_and_b32 s96, s{sW}, 3")
    e("s_mul_i32 s96, s96, 15360")
    e(f"v_lshlrev_b32 v1, 4, v{L}")
    for g_ in range(4):
        if g_: e("s_add_u32 s96, s96, 4096")
        e(f"s_add_u32 m0, s96, {POS}")
        e("s_nop 0")
        for i in range(4 if g_ < 3 else 3): e(f"buffer_load_dwordx4 v1, {s(srdPOS,4)}, s96 offen offset:{i*1024} lds")
e("s_cbranch_scc1 L_nost")
for i in range(5): e(f"ds_read_b128 {v(ST+4*i,4)}, v5 offset:{i*4096}")
for i in range(4): e(f"v_mov_b32 v{8+i}, 0")
for i, (a, o) in enumerate(((2, -4096), (2, 0), (3, -4096), (3, 0), (4, 0))):
    e(f"s_waitcnt lgkmcnt({4-i})")
    e(f"v_or_b32 v{ST+4*i}, v71, v{ST+4*i}")
    e(f"v_or_b32 v{ST+4*i+2}, v71, v{ST+4*i+2}")
    e(f"global_store_dwordx4 v{a}, {v(ST+4*i,4)}, {s(sWS,2)} offset:{o} sc1")
    if OPT["pubat"] == i + 1: publish(3)
e(f"s_cmp_lg_u32 s2, {NWG-1}")
e("s_cbranch_scc1 L_nodummy")
e(f"v_mov_b32 v6, {WS_REC + NWG*CH*8}")
e(f"global_store_dword v6, v71, {s(sWS,2)} sc1")
e.label("L_nodummy")
for i in range(6): e(f"ds_write_b128 v5, v[8:11] offset:{i*4096}")
e.label("L_nost")
if OPT["pubat"] == 0: publish(7)
if OPT["stamps"]: e("s_waitcnt lgkmcnt(0)")
stamp(15)
e(f"s_mov_b32 s{sBUD}, 2000000")
e(f"ds_read_u16_d16_hi v{WX}, v{CA0}")
e(f"ds_read_u16_d16_hi v{WX+1}, v{CA0} offset:128")
e(f"s_cmp_ge_u32 s{sW}, 6")
e("s_cbranch_scc1 L_w67")
e(f"s_cmp_ge_u32 s{sW}, 3")
e("s_cbranch_scc1 L_w345")
for i in range(4): e(f"v_mov_b32 v{HRES+i}, v{HF+i}")
e("s_branch L_wdone")
e.label("L_w345")
nodeprod_reads()
e(f"v_and_b32 v1, 15, v{L}")
e(f"v_lshrrev_b32 v3, 4, v{L}")
e(f"s_lshl_b32 s60, s{sNG}, 5")
e(f"s_add_u32 s60, s60, {AT}")
e("v_lshl_add_u32 v2, v3, 3, s60")
e(f"v_mul_u32_u24 v1, {ATS}, v1")
e("v_add_u32 v2, v1, v2")
nodeprod()
e("s_nop 1")
nodescale()
for t in range(4):
    e(f"v_cvt_pk_bf16_f32 v{WT+2*t}, v{DT+4*t}, v{DT+4*t+1}")
    e(f"v_cvt_pk_bf16_f32 v{WT+2*t+1}, v{DT+4*t+2}, v{DT+4*t+3}")
for i in range(4): e(f"v_mov_b32 v{HRES+i}, v{HF+4+i}")
for t in range(4): e(f"ds_write_b64 v2, {v(WT+2*t,2)} offset:{t*16*ATS}")
e("s_branch L_wdone")
e.label("L_w67")
e(f"ds_read_u16_d16_hi v4, v{CA0} offset:256")
e("v_and_b32 v7, 127, v0")
e(f"v_min_u32 v7, 119, v7")
e(f"s_mul_i32 s60, s{sB}, 240")
e(f"v_lshl_add_u32 v1, v7, 1, s60")
e(f"global_load_short_d16_hi v{vPosOwn}, v1, {s(sPOS,2)}")
e(f"v_mul_u32_u24 v1, 171, v7")
e("v_lshrrev_b32 v1, 9, v1")
e(f"v_mad_i32_i24 v2, v1, -3, v7")
e(f"v_lshlrev_b32 v{H1+2}, 2, v1")
e(f"v_lshl_add_u32 v{H1+3}, v2, 8, v{H1+2}")
e(f"v_lshlrev_b32 v{vFO}, 3, v2")
e(f"v_add_u32 v{vFO}, {BF+256}, v{vFO}")
e(f"v_bfe_u32 v1, v{L}, 2, 1")
e(f"v_lshrrev_b32 v2, 3, v{L}")
e(f"v_and_b32 v3, 3, v{L}")
e("v_lshl_add_u32 v2, v2, 2, v3")
e("v_lshl_add_u32 v2, v1, 5, v2")
e("v_lshlrev_b32 v2, 2, v2")
e("s_waitcnt lgkmcnt(0)")
e(f"v_mul_f32 v4, {NLN2}, v4")
e(f"ds_write_b32 v2, v4 offset:{WXT}")
e.label("L_wdone")
if OPT["stamps"]: e("s_waitcnt lgkmcnt(0)")
stamp(4)
if OPT["lcat"] == "win": laneconsts()
RA = 16; RB = 32; KA = 48; KB = 56; AD = 64; LN = 112; LK = 120; vSB = 70; vJ = 116
mk = lambda rnd, p, h: sMK + 2 * (rnd * 8 + p * 2 + h)
def presets():
    for p in range(4):
        e(f"v_mov_b32 v{RA+4*p}, s{sTAGR}")
        e(f"v_mov_b32 v{RA+4*p+2}, s{sTAGR}")
def batchsetup(general):
    e("v_lshrrev_b32 v1, 3, v0")
    e("v_and_b32 v2, 7, v0")
    e(f"v_lshlrev_b32 v{vJ}, 4, v2")
    e(f"v_mul_u32_u24 v1, {CH*8}, v1")
    e(f"v_add_u32 v{vSB}, v1, v{vJ}")
    for p in range(4):
        e(f"s_add_u32 s60, s{sR0}, {WS_REC + p*64*CH*8}")
        e(f"s_add_u32 s{sRB+2*p}, s{sWS}, s60")
        e(f"s_addc_u32 s{sRB+2*p+1}, s{sWS+1}, 0")
    for k2, o in ((1, 8), (2, 128), (3, 136)): e(f"v_add_u32 v{vJ+k2}, {o}, v{vJ}")
    if general:
        e(f"v_mov_b32 v1, {OOB}")
        for k2 in range(4):
            e(f"v_cmp_gt_u32 vcc, s{sS}, v{vJ+k2}")
            e(f"v_add_u32 v{vJ+k2}, s{sR0}, v{vJ+k2}")
            e("s_nop 0")
            e(f"v_cndmask_b32 v{vJ+k2}, v1, v{vJ+k2}, vcc")
    presets()
batchsetup(False)
e(f"s_mov_b32 s{sONCE}, 0")
sPF = 6
e("s_andn2_b32 s60, s2, 7")
e(f"s_add_u32 s60, s60, s{sW}")
e("s_mul_i32 s60, s60, 41")
e(f"v_add_u32 v68, s60, v{L}")
e(f"s_mov_b32 s{sPF}, -1")
e(f"s_mov_b32 s{sPF+1}, 0x1ff")
e("v_lshrrev_b32 v6, 3, v0")
e("v_lshlrev_b32 v6, 2, v6")
if OPT["stamps"]: e("s_waitcnt lgkmcnt(0)")
stamp(5)
e(f"s_cmp_ge_u32 s{sW}, 4")
e("s_cbranch_scc1 L_pollw")
if OPT["pw"] == "st": posdma4()
e("s_branch L_b3")
e.label("L_pollw")
PL = 80
if OPT["pw"] == "pl": posdma4()
e("v_and_b32 v1, 255, v0")
e(f"s_lshr_b32 s60, s{sB}, 2")
e("s_lshl_b32 s60, s60, 4")
e(f"s_add_u32 s60, s60, {WS_OFF}")
e("v_lshl_add_u32 v2, v1, 10, s60")
e(f"v_cmp_gt_u32 vcc, {NWG}, v1")
for i in range(3): e(f"v_mov_b32 v{PL+i}, 0")
e("v_lshlrev_b32 v1, 2, v1")
e(f"s_and_b32 s3, s{sB}, 1")
e("s_lshl_b32 s3, s3, 4")
e.label("L_poll")
e("s_mov_b64 exec, vcc")
e(f"global_load_dwordx4 {v(PL,4)}, v2, {s(sWS,2)} sc1")
e(f"s_sub_u32 s{sBUD}, s{sBUD}, 1")
e("s_waitcnt vmcnt(0)")
e(f"v_cmp_ne_u32 vcc, s{sTAG}, v{PL+3}")
e("s_cbranch_scc1 L_pollout")
e("s_cbranch_vccnz L_poll")
e.label("L_gotoff")
e("s_mov_b64 exec, -1")
e(f"s_bitcmp1_b32 s{sB}, 1")
e(f"v_alignbit_b32 v3, v{PL+1}, v{PL}, s3")
e(f"v_alignbit_b32 v4, v{PL+2}, v{PL+1}, s3")
e("s_cselect_b64 vcc, -1, 0")
e("v_cndmask_b32 v3, v3, v4, vcc")
e(f"ds_write_b32 v1, v3 offset:{OFF1}")
e("s_waitcnt lgkmcnt(0)")
e.label("L_b3")
e("s_barrier")
e(f"ds_read2st64_b32 {v(SEG,2)}, v6 offset0:{OFF1//256} offset1:{OFF1//256+1}")
e(f"ds_read2st64_b32 {v(SEG+2,2)}, v6 offset0:{OFF1//256+2} offset1:{OFF1//256+3}")
e("s_waitcnt lgkmcnt(0)")
stamp(6)
e.label("L_fetch")
for p in range(4):
    e(f"v_sub_u32_sdwa v{LN+p}, v{SEG+p}, v{SEG+p} {SD} src0_sel:WORD_1 src1_sel:WORD_0")
    e(f"v_add_u32_sdwa v{AD+p}, v{SEG+p}, v{vSB} {SD} src0_sel:WORD_0 src1_sel:DWORD")
    e(f"v_cmp_lt_i32 {s(mk(0,p,0),2)}, v{vJ}, v{LN+p}")
for p in range(4):
    e(f"s_mov_b64 exec, {s(mk(0,p,0),2)}")
    e(f"global_load_dwordx4 {v(RA+4*p,4)}, v{AD+p}, {s(sRB+2*p,2)} sc1")
e("s_mov_b64 exec, -1")
for p in range(4): e(f"v_cmp_lt_i32 {s(mk(1,p,0),2)}, v{vJ+2}, v{LN+p}")
for p in range(4):
    e(f"s_mov_b64 exec, {s(mk(1,p,0),2)}")
    e(f"s_cbranch_execz L_nlb{p}")
    e(f"global_load_dwordx4 {v(RB+4*p,4)}, v{AD+p}, {s(sRB+2*p,2)} offset:128 sc1")
    e.label(f"L_nlb{p}")
e("s_mov_b64 exec, -1")
for p in range(4):
    e(f"v_cmp_lt_i32 {s(mk(0,p,1),2)}, v{vJ+1}, v{LN+p}")
    e(f"v_cmp_lt_i32 {s(mk(1,p,1),2)}, v{vJ+3}, v{LN+p}")
e(f"s_or_b64 s[60:61], {s(mk(1,0,0),2)}, {s(mk(1,1,0),2)}")
e(f"s_or_b64 s[62:63], {s(mk(1,2,0),2)}, {s(mk(1,3,0),2)}")
e("s_or_b64 s[60:61], s[60:61], s[62:63]")
e(f"s_or_b32 s{sANYB}, s60, s61")
e(f"v_max3_i32 v3, v{LN}, v{LN+1}, v{LN+2}")
e(f"v_max_i32 v3, v3, v{LN+3}")
e(f"s_add_u32 s60, s{sR0}, s{sS}")
e("v_mov_b32 v13, 8")
e("v_cmp_lt_i32 vcc, s60, v3")
e("s_mov_b64 exec, vcc")
e(f"ds_write_b32 v{ZP}, v13 offset:{CNT2+252}")
e("s_mov_b64 exec, -1")
e(f"s_cmp_lg_u32 s{sONCE}, 0")
e("s_cbranch_scc1 L_notfirst")
e(f"s_mov_b32 s{sONCE}, 1")
e(f"s_cmp_ge_u32 s{sW}, 6")
e("s_cbranch_scc1 L_p67")
for t in range(2):
    for ks in range(2):
        for rd in range(2):
            e(f"ds_read_b64_tr_b16 {v(W1T+8*t+4*ks+2*rd,2)}, v{aWH} offset:{ks*4096+rd*512+t*8}")
for t in range(2):
    for c in range(2):
        for rd in range(2):
            e(f"ds_read_b64_tr_b16 {v(WH2+8*t+4*c+2*rd,2)}, v{aWH} offset:{(2+c)*4096+rd*512+t*8}")
e(f"s_lshl_b32 s60, s{sNG}, 4")
e(f"v_and_b32 v1, 15, v{L}")
e(f"v_add_lshl_u32 v{vAItem}, v1, s60, 2")
e("s_waitcnt lgkmcnt(8)")
for t in range(2):
    e(f"v_mfma_f32_16x16x32_bf16 {v(H1+4*t,4)}, {v(W1T+8*t,4)}, {v(HF,4)}, 0")
    e(f"v_mfma_f32_16x16x32_bf16 {v(H1+4*t,4)}, {v(W1T+8*t+4,4)}, {v(HF+4,4)}, {v(H1+4*t,4)}")
e(f"v_and_b32 v2, 48, v{L}")
e(f"v_lshlrev_b32 v{vFO}, 1, v2")
e(f"v_add_u32 v{vFO}, {BF}, v{vFO}")
e(f"s_lshl_b32 s60, s{sN0}, 1")
e(f"s_add_u32 s60, s60, s{sCHF}")
e("s_lshl_b32 s60, s60, 6")
e(f"v_lshl_add_u32 v2, v{vAItem}, 5, v2")
e(f"v_add_u32 v{vOA}, s60, v2")
e(f"s_movk_i32 s60, {NB*4}")
e(f"v_cmp_gt_u32 {s(sOM,2)}, s60, v{vAItem}")
e(f"s_mov_b32 s60, {NL2E}")
for i in range(8): e(f"v_mul_f32 v{H1+i}, s60, v{H1+i}")
e("s_branch L_pdone")
e.label("L_p67")
e(f"ds_write_b32 v{H1+3}, v{vPosOwn} offset:{PD}")
e(f"v_mov_b32 v{vAItem}, v{H1+2}")
e("v_and_b32 v1, 127, v0")
e("s_movk_i32 s60, 120")
e(f"v_cmp_gt_u32 {s(sOM,2)}, s60, v1")
e(f"s_mul_i32 s60, s{sB}, 240")
e("s_add_u32 s60, s60, 1280000")
e(f"v_lshl_add_u32 v{vOA}, v1, 1, s60")
e.label("L_pdone")
e(f"v_mul_u32_u24 v1, {ACCS//4}, v{vAItem}")
e(f"v_add_u32 v1, {ACC-BF}, v1")
e(f"v_add_u32 v{vFA}, v1, v{vFO}")
e(f"v_mul_f32 v{WX}, {NL2E}, v{WX}")
e(f"v_mul_f32 v{WX+1}, {NL2E}, v{WX+1}")
e(f"v_cvt_pk_bf16_f32 v1, v{WX}, v{WX}")
e("v_and_b32 v1, 0xffff0000, v1")
e(f"v_sub_f32 v2, v{WX}, v1")
e(f"v_cvt_pk_bf16_f32 v{WX}, v1, v2")
e(f"v_cvt_pk_bf16_f32 v{WX+1}, 0, v{WX+1}")
e.label("L_notfirst")
for c in range(2): e(f"v_mfma_f32_32x32x8_bf16 {v(AC[c],16)}, {v(ZP,2)}, {v(ZP,2)}, 0")
e(f"v_lshlrev_b32 v1, 2, v{L}")
e(f"v_cmp_gt_u32 {s(sVAL,2)}, {NB}, v{L}")
e("s_waitcnt vmcnt(0)")
for i in range(8): e(f"v_xor_b32 v{RA+2*i}, s{sTAGR}, v{RA+2*i}")
e(f"v_or3_b32 v4, v{RA}, v{RA+2}, v{RA+4}")
e(f"v_or3_b32 v5, v{RA+6}, v{RA+8}, v{RA+10}")
e(f"v_or3_b32 v4, v4, v{RA+12}, v{RA+14}")
def bsite(name):
    e(f"s_cmp_eq_u32 s{sANYB}, 0")
    e(f"s_cbranch_scc1 L_{name}")
    for p in range(4):
        e(f"s_mov_b64 exec, {s(mk(1,p,0),2)}")
        if name == "bx":
            e(f"v_xor_b32 v{RB+4*p}, s{sTAGR}, v{RB+4*p}")
            e(f"v_xor_b32 v{RB+4*p+2}, s{sTAGR}, v{RB+4*p+2}")
            e(f"v_or3_b32 v5, v5, v{RB+4*p}, v{RB+4*p+2}")
        elif name == "ba":
            e(f"ds_add_rtn_u32 v{KB+2*p}, v{RB+4*p}, v13 offset:{CNT2}")
            e(f"s_mov_b64 exec, {s(mk(1,p,1),2)}")
            e(f"ds_add_rtn_u32 v{KB+2*p+1}, v{RB+4*p+2}, v13 offset:{CNT2}")
        elif name == "bl":
            e(f"ds_read_b32 v{LK+8+2*p}, v{RB+4*p} offset:{BASE2}")
            e(f"ds_read_b32 v{LK+9+2*p}, v{RB+4*p+2} offset:{BASE2}")
        else:
            e(f"v_add_u32 v7, v{LK+8+2*p}, v{KB+2*p}")
            e(f"v_add_u32 v8, v{LK+9+2*p}, v{KB+2*p+1}")
            e(f"ds_write_b64 v7, {v(RB+4*p,2)} offset:{SORT2}")
            e(f"s_mov_b64 exec, {s(mk(1,p,1),2)}")
            e(f"ds_write_b64 v8, {v(RB+4*p+2,2)} offset:{SORT2}")
    e.label(f"L_{name}")
    e("s_mov_b64 exec, -1")
bsite("bx")
e("v_or_b32 v4, v4, v5")
e("v_cmp_lt_u32 vcc, 0xff, v4")
e("s_cbranch_vccnz L_stale")
e.label("L_gotrec")
if OPT["stamps"]: e("s_waitcnt lgkmcnt(0)")
stamp(7)
for p in range(4):
    for h in range(2):
        e(f"s_mov_b64 exec, {s(mk(0,p,h),2)}")
        e(f"ds_add_rtn_u32 v{KA+2*p+h}, v{RA+4*p+2*h}, v13 offset:{CNT2}")
bsite("ba")
def bpf(at):
    if OPT["bpf"] != at: return
    e(f"s_mov_b64 exec, {s(sPF,2)}")
    e(f"buffer_load_dword v69, v68, {s(srdBP,4)}, 0 idxen")
    e("s_mov_b64 exec, -1")
NL_ = posat("rec", 6)
bpf(1)
e("s_waitcnt lgkmcnt(0)")
e("s_barrier")
stamp(8)
e(f"ds_read_b32 v2, v1 offset:{CNT2}")
NL2_ = posat("b4", 6)
bpf(2)
e("s_waitcnt lgkmcnt(0)")
e(f"v_max_u32 v4, {PADB}, v2")
e(f"v_cndmask_b32 v5, 0, v4, {s(sVAL,2)}")
scan(5, [f"v_readlane_b32 s{sMORE}, v2, 63", f"v_cmp_lt_u32 vcc, v2, v4"])
e(f"v_sub_u32 v6, v5, v4")
e(f"ds_write_b32 v1, v6 offset:{BASE2}")
for i in range(8): e(f"ds_read_b32 v{LK+i}, v{RA+2*i} offset:{BASE2}")
e(f"v_readlane_b32 s3, v5, 63")
bsite("bl")
bpf(3)
e(f"s_cmp_gt_u32 s3, {CAPB}")
e("s_cbranch_scc1 L_redo")
e(f"s_and_b64 vcc, vcc, {s(sVAL,2)}")
e("s_cbranch_scc1 L_pad0")
e.label("L_nopad")
e("s_add_u32 s96, s3, 127")
e("s_lshr_b32 s60, s96, 10")
e("s_bfe_u32 s61, s96, 0x30007")
e(f"s_mul_i32 s62, s60, s{sW}")
e(f"s_min_u32 s63, s61, s{sW}")
e("s_add_u32 s62, s62, s63")
e(f"s_cmp_lt_u32 s{sW}, s61")
e(f"s_addc_u32 s{sCNT}, s60, 0")
e("s_lshl_b32 s62, s62, 7")
e("v_cmp_ge_u32 vcc, s62, v5")
e(f"s_lshl_b32 s63, s{sCNT}, 7")
e("s_add_u32 s63, s63, s62")
e("v_cmp_gt_u32 s[60:61], s63, v5")
e("s_waitcnt lgkmcnt(0)")
for p in range(4):
    for h in range(2):
        i = 2*p+h
        e(f"s_mov_b64 exec, {s(mk(0,p,h),2)}")
        e(f"v_add_u32 v{LK+i}, v{LK+i}, v{KA+i}")
        e(f"ds_write_b64 v{LK+i}, {v(RA+2*i,2)} offset:{SORT2}")
bsite("bw")
bpf(4)
e(f"s_bcnt1_i32_b64 s{sNFW}, vcc")
e(f"s_lshl_b32 s{sBASE}, s{sNFW}, 2")
e(f"s_or_b32 s{sSLOW}, s{sR0}, s{sMORE}")
e(f"s_cselect_b32 s{sNFW}, 252, s{sBASE}")
e(f"s_lshl_b32 s63, 1, s{sW}")
e(f"v_mov_b32 v7, s{sNFW}")
e("v_mov_b32 v8, s63")
e(f"s_add_u32 s3, s3, {SORT2}")
e(f"s_lshl_b32 s63, s{sW}, 6")
e("s_add_u32 s3, s3, s63")
e("v_lshl_add_u32 v9, v1, 1, s3")
e(f"v_mov_b32 v10, {(NB-1)*4}")
e("v_mov_b32 v11, 10000")
e("s_mov_b64 exec, 1")
e(f"ds_or_b32 v7, v8 offset:{LNK}")
e("s_mov_b64 exec, 0xff")
e("ds_write_b64 v9, v[10:11]")
e("s_mov_b64 exec, -1")
e(f"s_add_u32 s62, s62, {SORT2}")
e(f"v_lshl_add_u32 v{aRec}, v{L}, 3, s62")
e(f"v_add3_u32 v{aIdx}, s62, 4, v{vIdxL}")
e(f"s_bcnt1_i32_b64 s{sNLW}, s[60:61]")
e(f"s_min_u32 s{sNLW}, s{sNLW}, {NB-1}")
e(f"s_lshl_b32 s{sNLW}, s{sNLW}, 2")
def rowaddr():
    return [f"v_subrev_u32 v4, s{sBASE}, v{L}",
            "v_and_b32 v4, 28, v4",
            f"v_add_u32 v4, s{sBASE}, v4",
            f"v_cmp_eq_u32 vcc, s{sNFW}, v4",
            f"v_cmp_lt_u32 s[62:63], s{sNLW}, v4",
            f"s_lshl_b32 s61, s{sW}, 2",
            f"s_add_u32 s61, s61, {NB*4}",
            "v_mov_b32 v7, s61",
            "v_cndmask_b32 v4, v4, v7, vcc",
            f"v_mov_b32 v7, {OOB//64}",
            "v_cndmask_b32 v4, v4, v7, s[62:63]",
            f"v_mul_u32_u24 v4, {ACCS//4}, v4",
            f"v_add_u32 v4, {ACC}, v4",
            f"v_lshrrev_b32 v7, 5, v{L}",
            f"v_lshl_add_u32 v{vRowM}, v7, 4, v4",
            f"v_lshl_add_u32 v4, v7, 2, v4",
            f"v_and_b32 v7, 3, v{L}",
            f"v_lshl_add_u32 v{vRowP}, v7, 3, v4"]
PI = E[0]
DEP = OPT["dep"]
for n in range(DEP): e(f"v_mov_b32 v{PI+2*n+1}, v{IDX+1}")
e(f"s_sub_u32 s{sCNT}, s{sCNT}, {DEP+1}")
e("s_setprio 3")
if NL_ or NL2_: e(f"s_waitcnt vmcnt({1 if (OPT['bpf'] >= 2 or (OPT['bpf'] == 1 and not NL2_)) else 0})")
e("s_waitcnt lgkmcnt(0)")
e("s_barrier")
stamp(9)
def gather(b, pair):
    return [f"buffer_load_dwordx4 {v(G[b],4)}, {v(pair,2)}, {s(srdBP,4)}, 0 idxen offen",
            f"buffer_load_dwordx4 {v(G[b]+4,4)}, {v(pair,2)}, {s(srdBP,4)}, 0 idxen offen offset:64"]
def build1():
    return [f"v_mul_u32_u24_sdwa v{BT}, 6, v{REC+1} {SD} src0_sel:DWORD src1_sel:WORD_0",
            f"ds_read2st64_b32 {v(PDV,2)}, v{REC} offset0:{PD//256} offset1:{PD//256+1}",
            f"ds_read_u16_d16_hi v{PS}, v{BT} offset:{POS}",
            f"ds_read_u16_d16_hi v{PS+1}, v{BT} offset:{POS+2}",
            f"ds_read_u16_d16_hi v{PS+2}, v{BT} offset:{POS+4}",
            f"ds_read_b32 v{PDV+2}, v{REC} offset:{PD+512}",
            f"v_readlane_b32 s{sNF}, v{REC}, 0",
            f"v_readlane_b32 s{sNL}, v{REC}, 63",
            f"v_cmp_ne_u32 vcc, 60000, v{BT}",
            f"v_add_u32 v{BT+1}, v{REC}, v{REC}",
            f"s_and_b32 s60, s{sNF}, -8",
            f"s_mul_i32 s{sNEG}, s60, -4",
            f"s_lshr_b32 s60, s60, 1",
            f"s_mov_b64 {s(sVAL,2)}, vcc",
            f"v_lshl_add_u32 v{BT+2}, v{REC}, 2, s{sNEG}",
            f"v_add_u32 v{aAT}, s60, v{aATb}",
            f"v_lshlrev_b64 {v(REC+2,2)}, v{BT+2}, {s(sOHC,2)}"]
def build2():
    return [f"v_sub_f32 v{PDV}, v{PDV}, v{PS}",
            f"v_sub_f32 v{PDV+1}, v{PDV+1}, v{PS+1}",
            f"v_sub_f32 v{PDV+2}, v{PDV+2}, v{PS+2}",
            f"v_cvt_pk_bf16_f32 v{R2V}, v{PDV}, v{PDV+1}",
            f"v_cvt_pk_bf16_f32 v{R2V+1}, v{PDV+2}, 1.0",
            f"v_dot2_f32_bf16 v{BT}, v{R2V}, v{R2V}, 0",
            f"v_lshlrev_b32 v{BT+2}, 16, v{R2V+1}",
            None, None,
            f"v_fmac_f32 v{BT}, v{BT+2}, v{BT+2}",
            f"v_cvt_pk_bf16_f32 v{REC}, v{BT}, v{BT}"]
def build3():
    return [f"ds_write_b64 v{aR2}, {v(ZP,2)}",
            f"v_bitop3_b32 v{aR2}, v{BT+1}, 56, v{aR2b} bitop3:0x6a",
            f"ds_write_b128 v{aR1w}, {v(REC,4)}",
            f"s_mov_b64 exec, {s(sVAL,2)}\nds_write_b64 v{aR2}, {v(R2V,2)}\ns_mov_b64 exec, -1",
            f"ds_read2_b32 {v(WX+2,2)}, v{aAT} offset1:1"]
def opreads(n):
    return [f"ds_read_b128 {v(R1OP,4)}, v{aR1r} offset:{n*256}",
            f"ds_read_b64_tr_b16 {v(S[n],2)}, v{aS0} offset:{n*1024}",
            f"ds_read_b64_tr_b16 {v(S[n]+2,2)}, v{aS1} offset:{n*1024}"]
def stage1(n):
    t = T[n & 1]
    return [f"v_mfma_f32_32x32x16_bf16 {v(t,16)}, {v(R1OP,4)}, {v(WX,4)}, 0",
            f"v_mfma_f32_32x32x16_bf16 {v(t,16)}, {v(G[n],4)}, {v(I0,4)}, {v(t,16)}",
            f"v_mfma_f32_32x32x16_bf16 {v(t,16)}, {v(G[n]+4,4)}, {v(I1,4)}, {v(t,16)}"]
def stage2(n):
    return [f"v_mfma_f32_32x32x16_bf16 {v(AC[c],16)}, {v(M[c],4)}, {v(S[n],4)}, {v(AC[c],16)}" for c in range(2)]
def mulcvt(q):
    L_ = []
    for a in range(4):
        if 4*a >= 16 - OPT["lut"]:
            for c in range(2): L_.append(f"v_or_b32 v{M[c]+a}, v{T[q]+4*a+c}, v{T[q]+4*a+2+c}")
            continue
        for r in range(4): L_.append(f"v_mul_f32 v{E[q]+4*a+r}, v{E[q]+4*a+r}, v{T[q]+4*a+r}")
        for c in range(2): L_.append(f"v_cvt_pk_bf16_f32 v{M[c]+a}, v{E[q]+4*a+c}, v{E[q]+4*a+2+c}")
    return L_
def flushchk(lbl):
    e(f"s_min_u32 s60, s{sNL}, s{sNLW}")
    e(f"s_sub_u32 s60, s60, s{sBASE}")
    e("s_cmp_ge_u32 s60, 32")
    e(f"s_cbranch_scc1 L_flush_{lbl}")
    e.label(f"L_flret_{lbl}")
def mmask():
    e("s_mov_b32 exec_lo, 0x88888888")
    e("s_mov_b32 exec_hi, 0x88888888")
def flush_slow():
    e("s_nop 7")
    e("v_mov_b32 v2, 0")
    for i in range(8):
        e(f"ds_read_b128 v[4:7], v{vWxa} offset:{WXT+16*i}")
        e("s_waitcnt lgkmcnt(0)")
        for r in range(4): e(f"v_fmac_f32 v2, v{AC[0]+4*i+r}, v{4+r}")
    e(f"ds_add_f32 v{vRowP}, v2 offset:256")
    mmask()
    for i in range(32): e(f"ds_add_f32 v{vRowM}, v{AC[0]+i} offset:{(i//4)*32+(i%4)*4}")
    e("s_mov_b64 exec, -1")

def pkmul(q): return [f"v_pk_mul_f32 {v(E[q]+2*i,2)}, {v(E[q]+2*i,2)}, {v(T[q]+2*i,2)}" for i in range(8)]
def mul(q): return [f"v_mul_f32 v{E[q]+i}, v{E[q]+i}, v{T[q]+i}" for i in range(16)]
def cvt(q): return [f"v_cvt_pk_bf16_f32 v{M[c]+a}, v{E[q]+4*a+c}, v{E[q]+4*a+2+c}" for a in range(4) for c in range(2)]

def ramp(start):
    R = OPT.get("ramp")
    if not R: return
    body = e.lines[start:]
    out = ["s_setprio 0"]; n = -1; lvl = 0
    for l in body:
        if n < 0 and l.startswith("v_exp"): n = 0
        if n >= 0 and l.startswith("v_"):
            if lvl < len(R) and n == R[lvl]:
                lvl += 1
                if out[-1] == "s_nop 0": out.pop()
                out.append(f"s_setprio {lvl}")
            n += 1
        out.append(l)
    e.lines[start:] = out

def step(sidx, first=False):
    st0 = len(e.lines)
    step_(sidx, first)
    ramp(st0)

def step_(sidx, first=False):
    q = sidx & 1; n1 = (sidx + 1) & 3
    side = gather((sidx + DEP) & 3, IDX) + [f"ds_read_u16 v{IDX}, v{aIdx} offset:{(sidx+DEP+1)*128}"]
    if sidx == 3:
        side += build3()
    side += opreads(n1)
    if sidx == 0: side += [f"ds_read_b64 {v(REC,2)}, v{aRec} offset:512"]
    if sidx == 1: side += build1()
    if sidx == 2: side += build2()
    if sidx == 3: side += [f"v_add_u32 v{aIdx}, 512, v{aIdx}", f"v_add_u32 v{aRec}, 512, v{aRec}"]
    if sidx == 1: flushchk("mid")
    if OPT["prio"] and not first:
        e(f"s_cmp_gt_u32 s{sCNT}, {OPT['pr'][0]}")
        e(f"s_cbranch_scc0 L_prio{sidx}")
        e.label(f"L_prret{sidx}")
    exps = [f"v_exp_f32 v{E[q]+i}, v{T[q]+i}" for i in range(16)]
    pre = [y for y in side if y is not None and ("sdwa" in y or "readlane" in y or "v_cmp" in y)]
    mem = [y for y in side if y is not None and (y.startswith(("ds_", "buffer_", "s_")) or "bitop3" in y)]
    oth = [y for y in side if y is None or (y not in pre and y not in mem)]
    for y in pre: e(y)
    for y in mem: e(y)
    k = 0
    for i, x in enumerate(exps):
        e(x)
        if k < len(oth):
            if oth[k] is not None: e(oth[k])
            k += 1
    assert k == len(oth)
    addone = f"v_mfma_f32_32x32x8_bf16 {v(E[q],16)}, {v(ONE,2)}, {v(ONE,2)}, {v(E[q],16)}"
    if first:
        e("s_nop 1"); e(addone); e("s_nop 7")
    elif OPT["pk"]:
        for x in pkmul(1 - q): e(x)
        e(addone)
        for x in cvt(1 - q): e(x)
    else:
        mc = mulcvt(1 - q)
        e(mc[0]); e(mc[1]); e(addone)
        for x in mc[2:]: e(x)
    e(f"s_sub_u32 s{sCNT}, s{sCNT}, 1")
    e(f"s_waitcnt vmcnt({2*DEP-2}) lgkmcnt(0)")
    mf = stage1(n1) + ([] if first else stage2((sidx - 1) & 3))
    rc = [f"v_rcp_f32 v{E[q]+i}, v{E[q]+i}" for i in range(16)]
    for i, x in enumerate(rc):
        if i % 3 == 0 and i // 3 < len(mf):
            e(mf[i // 3])
            if i == 0 and (OPT["pk"] or first): e("s_nop 0")
        e(x)
    if first: e("s_nop 0")
    e(f"s_cbranch_scc1 L_evt{sidx}")

def bfaddr():
    return [f"v_ffbl_b32 v5, v{vMask}",
            f"v_add_u32 v6, -1, v{vMask}",
            f"v_min_u32 v5, {OOB//256}, v5",
            f"v_and_b32 v{vMask}, v6, v{vMask}",
            f"v_mul_u32_u24 v5, {ACCS}, v5",
            f"v_add_u32 v{vFB}, v{vFO}, v5"]
e(f"ds_read_u16 v{PI}, v{aIdx}")
e(f"ds_read_b64 {v(REC,2)}, v{aRec}")
for n in range(1, DEP): e(f"ds_read_u16 v{PI+2*n}, v{aIdx} offset:{n*128}")
e(f"ds_read_u16 v{IDX}, v{aIdx} offset:{DEP*128}")
e(f"s_waitcnt lgkmcnt({DEP})")
b1 = build1()
for x in b1[:6]: e(x)
for x in gather(0, PI): e(x)
for x in b1[6:]: e(x)
e("s_waitcnt lgkmcnt(0)")
b2 = build2(); g1 = gather(1, PI + 2)
for x in b2:
    e(x if x else g1.pop(0))
for x in build3(): e(x)
for x in opreads(0): e(x)
e(f"ds_read_b32 v{vMask}, v{vAItem} offset:{LNK}")
e(f"ds_write_b32 v1, v{ZP} offset:{CNT2}")
e("s_waitcnt vmcnt(2) lgkmcnt(4)")
for x in stage1(0): e(x)
for n in range(2, DEP):
    for x in gather(n, PI + 2*n): e(x)
e("s_waitcnt lgkmcnt(0)")
for x in bfaddr(): e(x)
for x in rowaddr(): e(x)
stamp(10)
step(0, first=True)
e("s_branch L_s1")
e.label("L_s0")
step(0)
e.label("L_s1")
step(1)
e.label("L_s2")
step(2)
e.label("L_s3")
step(3)
e("s_branch L_s0")
if OPT["prio"]:
    for sidx in range(4):
        p3, p2, p1 = OPT["pr"]
        e.label(f"L_prio{sidx}")
        e("s_setprio 2")
        e(f"s_cmp_gt_i32 s{sCNT}, {p2}")
        e(f"s_cbranch_scc1 L_prret{sidx}")
        e("s_setprio 1")
        e(f"s_cmp_gt_i32 s{sCNT}, {p1}")
        e(f"s_cbranch_scc1 L_prret{sidx}")
        e("s_setprio 0")
        e(f"s_branch L_prret{sidx}")
for sidx in range(4):
    q = sidx & 1
    e.label(f"L_evt{sidx}")
    e(f"s_cmp_eq_u32 s{srdBP+2}, 0")
    e(f"s_mov_b32 s{srdBP+2}, 0")
    e(f"s_mov_b32 s{sCNT}, {DEP-1}")
    e(f"s_cbranch_scc0 L_s{(sidx+1)&3}")
    e.label(f"L_drain{sidx}")
    if sidx == 0: flushchk("dr")
    for i in range(4): e(f"ds_read_b128 {v(E[1-q]+4*i,4)}, v{vWxa} offset:{WXT+16*i}")
    for i in range(4): e(f"ds_read_b128 {v(T[1-q]+4*i,4)}, v{vWxa} offset:{WXT+64+16*i}")
    for x in pkmul(q) + cvt(q): e(x)
    e(f"s_cmp_lg_u32 s{sSLOW}, 0")
    e("s_nop 0")
    for x in stage2(sidx): e(x)
    e("s_cbranch_scc1 L_slow_final")
    if sidx < 2: e(f"s_branch L_final_flush{q}")
    else:
        e.label(f"L_final_flush{q}")
        stamp(11)
        e("s_waitcnt lgkmcnt(0)")
        e("s_nop 6")
        mmask()
        for i in range(8): e(f"ds_write_b128 v{vRowM}, {v(AC[0]+4*i,4)} offset:{i*32}")
        e("s_mov_b64 exec, -1")
        e(f"v_pk_mul_f32 v[4:5], {v(AC[0],2)}, {v(E[1-q],2)}")
        e(f"v_pk_mul_f32 v[6:7], {v(AC[1],2)}, {v(T[1-q],2)}")
        for i in range(1, 8):
            e(f"v_pk_fma_f32 v[4:5], {v(AC[0]+2*i,2)}, {v(E[1-q]+2*i,2)}, v[4:5]")
            e(f"v_pk_fma_f32 v[6:7], {v(AC[1]+2*i,2)}, {v(T[1-q]+2*i,2)}, v[6:7]")
        e("v_pk_add_f32 v[4:5], v[4:5], v[6:7]")
        e("v_add_f32 v4, v4, v5")
        e(f"ds_write_b32 v{vRowP}, v4 offset:256")
        if sidx == 2: e("s_branch L_b6")
e.label("L_b6")
MR = 16; MB = 32; Y = 40; YE = 48; HU = 56; MX = 64
e(f"s_cmp_lg_u32 s{sMORE}, 0")
e(f"v_cmp_ne_u32 vcc, 0, v{vMask}")
e("s_waitcnt lgkmcnt(0)")
e("s_barrier")
stamp(12)
e("s_cbranch_scc1 L_more")
e(f"s_cmp_ge_u32 s{sW}, 6")
e("s_cbranch_scc1 L_finpos")
for i in range(4):
    e(f"ds_read_b128 {v(MR+4*i,4)}, v{vFA} offset:{(i>>1)*128+(i&1)*16}")
    e(f"ds_read_b128 {v(MX+4*i,4)}, v{vFB} offset:{(i>>1)*128+(i&1)*16}")
for d in range(4):
    e(f"v_lshlrev_b32 v{HU+2*d}, 16, v{HRES+d}")
    e(f"v_and_b32 v{HU+2*d+1}, 0xffff0000, v{HRES+d}")
e(f"s_mov_b32 s60, {NLN2}")
e("s_cbranch_vccnz L_finbf_more")
e.label("L_finbf")
for i in range(4):
    e(f"s_waitcnt lgkmcnt({6-2*i})")
    for d in range(2): e(f"v_pk_add_f32 {v(MR+4*i+2*d,2)}, {v(MR+4*i+2*d,2)}, {v(MX+4*i+2*d,2)}")
    for d in range(2): e(f"v_cvt_pk_bf16_f32 v{MB+2*i+d}, v{MR+4*i+2*d}, v{MR+4*i+2*d+1}")
for t in range(2): e(f"v_mfma_f32_16x16x32_bf16 {v(Y+4*t,4)}, {v(WH2+8*t,4)}, {v(MB,4)}, {v(H1+4*t,4)}")
for t in range(2): e(f"v_mfma_f32_16x16x32_bf16 {v(Y+4*t,4)}, {v(WH2+8*t+4,4)}, {v(MB+4,4)}, {v(Y+4*t,4)}")
e("s_nop 6")
for i in range(8): e(f"v_exp_f32 v{YE+i}, v{Y+i}")
for i in range(4): e(f"v_pk_add_f32 {v(YE+2*i,2)}, {v(YE+2*i,2)}, 1.0 op_sel_hi:[1,0]")
for i in range(4): e(f"v_pk_mul_f32 {v(Y+2*i,2)}, {v(Y+2*i,2)}, s[60:61] op_sel_hi:[1,0]")
for i in range(8): e(f"v_rcp_f32 v{YE+i}, v{YE+i}")
for i in range(4):
    e(f"v_pk_fma_f32 {v(HU+2*i,2)}, {v(Y+2*i,2)}, {v(YE+2*i,2)}, {v(HU+2*i,2)}")
for d in range(4): e(f"v_cvt_pk_bf16_f32 v{Y+d}, v{HU+2*d}, v{HU+2*d+1}")
e(f"s_mov_b64 exec, {s(sOM,2)}")
e(f"global_store_dwordx4 v{vOA}, {v(Y,4)}, {s(sOUT,2)} {OPT.get('ost','')}")
stamp(13, last=True)
e("s_endpgm")
e.label("L_finpos")
e(f"ds_read_b64 v[16:17], v{vFA}")
e.label("L_posbf")
e(f"ds_read_b64 v[18:19], v{vFB}")
e("s_waitcnt lgkmcnt(0)")
e("v_add_f32 v16, v16, v18")
e("v_add_f32 v17, v17, v19")
e("s_cbranch_vccnz L_posbf_more")
e("v_add_f32 v16, v16, v17")
e(f"v_add_f32 v{vPosOwn}, v{vPosOwn}, v16")
e(f"v_cvt_pk_bf16_f32 v2, v{vPosOwn}, v{vPosOwn}")
e(f"v_mov_b32 v7, s{sTAG}")
e(f"s_mov_b64 exec, {s(sOM,2)}")
e(f"global_store_short v{vOA}, v2, {s(sOUT,2)}")
e("s_cmp_lg_u32 s2, 0")
e("s_cbranch_scc1 L_noep")
e("s_mov_b64 exec, 1")
e(f"global_store_dword v{ZP}, v7, {s(sWS,2)}")
e.label("L_noep")
stamp(13, last=True)
e("s_endpgm")
for lbl in ("mid", "dr"):
    e.label(f"L_flush_{lbl}")
    flush_slow()
    e("s_waitcnt lgkmcnt(0)")
    for i in range(32): e(f"v_mov_b32 v{AC[0]+i}, 0")
    e(f"s_mov_b32 s{sBASE}, s{sNF}")
    e(f"s_mov_b32 s{sSLOW}, 1")
    for x in rowaddr(): e(x)
    e(f"s_branch L_flret_{lbl}")
e.label("L_slow_final")
flush_slow()
e("s_branch L_b6")
e.label("L_finbf_more")
e("s_waitcnt lgkmcnt(0)")
for i in range(16): e(f"v_add_f32 v{MR+i}, v{MR+i}, v{MX+i}")
for x in bfaddr(): e(x)
for i in range(4): e(f"ds_read_b128 {v(MX+4*i,4)}, v{vFB} offset:{(i>>1)*128+(i&1)*16}")
e(f"v_cmp_ne_u32 vcc, 0, v{vMask}")
e("s_waitcnt lgkmcnt(0)")
e("s_cbranch_vccnz L_finbf_more")
e("s_branch L_finbf")
e.label("L_posbf_more")
for x in bfaddr(): e(x)
e(f"v_cmp_ne_u32 vcc, 0, v{vMask}")
e("s_branch L_posbf")
e.label("L_pollout")
e(f"s_mov_b32 s{sBUD}, 0")
e("s_branch L_gotoff")
e.label("L_stale")
e(f"s_cmp_eq_u32 s{sBUD}, 0")
e("s_cbranch_scc1 L_gotrec")
e(f"s_sub_u32 s{sBUD}, s{sBUD}, 1")
presets()
e("s_branch L_fetch")
e.label("L_pad0")
e("v_mov_b32 v8, v1")
e("v_mov_b32 v9, 10000")
e("s_mov_b64 exec, vcc")
e.label("L_pad")
e("v_add_u32 v7, v6, v2")
e("v_add_u32 v2, 8, v2")
e(f"ds_write_b64 v7, v[8:9] offset:{SORT2}")
e("v_cmp_lt_u32 vcc, v2, v4")
e("s_and_b64 exec, vcc, vcc")
e("s_cbranch_scc1 L_pad")
e("s_mov_b64 exec, -1")
e("s_branch L_nopad")
e.label("L_more")
e("s_waitcnt vmcnt(0)")
e(f"s_add_u32 s{sR0}, s{sR0}, s{sS}")
e(f"s_mov_b32 s{sS}, 256")
e.label("L_batch")
e(f"s_mov_b64 {s(sPF,2)}, 0")
e("s_setprio 0")
e(f"s_mov_b32 s{srdBP+2}, 10000")
batchsetup(True)
e("s_branch L_fetch")
e.label("L_redo")
e(f"s_cmp_eq_u32 s{sS}, {SFALL}")
e("s_cbranch_scc1 L_end")
e("s_waitcnt vmcnt(0) lgkmcnt(0)")
e("s_barrier")
e(f"ds_write_b32 v1, v{ZP} offset:{CNT2}")
e(f"s_mov_b32 s{sS}, {SFALL}")
e("s_waitcnt lgkmcnt(0)")
e("s_barrier")
e("s_branch L_batch")
e.label("L_end")
e("s_endpgm")

probs = check_cfg(e.lines)
for p in probs: print("HAZARD", p, file=sys.stderr)

ref = open("cdna_kernels/" + KN + ".s.ref").read().split("\n")
hdr = []
for l in ref:
    if l.startswith("; Override launch"): break
    hdr.append(l)
out = "\n".join(hdr) + f"""
; One persistent launch: 250 workgroups (one per CU) bin the edges by destination bucket, hand the bins
; over through d_ws (tagged with a per-launch epoch), then each workgroup updates its 40 nodes.
; @launch grid=({NWG},1,1) block=(512,1,1) lds={LDS_SIZE}
.amdgcn_target "amdgcn-amd-amdhsa--gfx950"
.text
.globl {KN}_kernel
.p2align 8
.type {KN}_kernel,@function
{KN}_kernel:
{e.text()}.section .rodata,"a"
.p2align 6
.amdhsa_kernel {KN}_kernel
  .amdhsa_next_free_vgpr 256
  .amdhsa_next_free_sgpr 102
  .amdhsa_accum_offset 256
  .amdhsa_group_segment_fixed_size 0
  .amdhsa_kernarg_size 88
  .amdhsa_user_sgpr_count 2
  .amdhsa_user_sgpr_kernarg_segment_ptr 1
  .amdhsa_system_sgpr_workgroup_id_x 1
  .amdhsa_float_denorm_mode_32 3
.end_amdhsa_kernel
"""
open(sys.argv[1], "w").write(out)
print("wrote", sys.argv[1], len(e.lines), "lines;", len(probs), "hazards", file=sys.stderr)
```

```python
import sys, struct
from asmlib import Emit, v, s, check_cfg

KN = "standalone__cheap_equivariant_egnn__graph"
OPT = dict(stamps=False, prio=False, ramp=(3,16,34), ost="sc1", posat="poll", touch=True, x="", ackwait=True, place="burst", lut=0, pr=(5,2,0), pk=True, bpf=1, dep=2, srcat="b0", pubat=0, lcat="start", pw="pl", otr=True, pa=("none","none"))
for a in sys.argv[2:]:
    k, _, val = a.partition("=")
    try: OPT[k] = eval(val) if val else True
    except Exception: OPT[k] = val

def fbits(x): return struct.unpack("<I", struct.pack("<f", x))[0]
LOG2E = 1.4426950408889634; LN2 = 0.6931471805599453
NL2E = hex(fbits(-LOG2E)); NLN2 = hex(fbits(-LN2))

NWG = 250; CH = 2560; NB = 40
CNT1 = 0x0; OFF1 = 0x400; CNT2 = 0x800; LNK = 0x900; BASE2 = 0xA00; PD = 0xB00; WXT = 0xE00
POS = 0xF00; SORT2 = POS + 61440; CAPB = 3072 * 8
R1 = SORT2 + CAPB + 512; R2 = R1 + 8192; ACC = R2 + 32768; ACCS = 304
BF = ACC + NB * ACCS; AT = BF + 8 * ACCS; ATS = 104; HB = AT + 64 * ATS; WL = HB + 6144; WXL = WL + 256; LDS_END = WXL + 128
STG = R2; WE = SORT2; WH = SORT2 + 16384
OOB = 0x100000
LDS_SIZE = 163840
assert LDS_END <= LDS_SIZE and WH + 16384 <= R2 and R2 % 64 == 0 and WE % 128 == 0 and HB % 128 == 0
PADB = 32 * 8; SFALL = 48
WB = OPT.get("wb", 0) << 20
WS_OFF = WB + 0x10000; WS_BP = WB + 0x80000; WS_REC = WB + 0x200000; WS_STAMP = 0x1000000
TAGC = 0x9E3779B1
sH, sPOS, sE, sSRC, sDST, sWE, sWX, sWH, sOUT, sDBG, sWS = 4, 6, 8, 10, 12, 14, 16, 18, 20, 22, 24
sW, sB = 26, 27
srdBP, srdPOS, srdH = 28, 32, 36
sTAG, sTAGR, sBUD, sR0, sS, sN0, sNG, sCHF = 40, 41, 42, 43, 44, 45, 46, 47
sOHC, sNFW, sNLW, sCNT, sBASE, sNF, sNL, sNEG, sMORE, sVAL = 48, 50, 51, 52, 53, 54, 55, 56, 57, 58
sONCE = 17; sANYB = 18; sOM = 4
sSLOW = 16
sMK = 64
sRB = 8
T = [16, 32]; E = [48, 64]; AC = [80, 96]; M = [112, 116]; G = [120, 128, 136, 144]; S = [152, 156, 160, 164]
R1OP = 168; WX = 172; I0 = 176; I1 = 180; ONE = 184; IDX = 186
aIdx, aRec, aR1r, aS0, aS1, aR1w, aR2b, aR2, aATb, aAT = 188, 189, 190, 191, 192, 193, 194, 195, 196, 197
vRowM, vRowP = 198, 199
REC = 200; R2V = 204; PS = 206; PDV = 210; BT = 213; ZP = 216; vIdxL = 218; vFA = 219; vFO = 209; vOA = 12; vFB = 3; vPosOwn = 230
SEG = 220; vMask = 224; vWxa = 225; H1 = 226; HRES = 234; WH2 = 238; vLane = 254; vAItem = 255
L = vLane

e = Emit()
def stamp(i, last=False):
    if OPT.get("diag") is not None:
        if i == 0:
            e("s_memrealtime s[98:99]")
            e("s_waitcnt lgkmcnt(0)")
            e("s_mov_b32 s100, s98")
            e("s_mov_b32 s101, s98")
        elif i == OPT["diag"]:
            e("s_memrealtime s[98:99]")
            e("s_waitcnt lgkmcnt(0)")
            e("s_mov_b32 s101, s98")
        if last:
            stamp.n = getattr(stamp, "n", 0) + 1
            e("s_sub_u32 s101, s101, s100")
            e("s_lshl_b32 s101, s101, 2")
            e("s_add_u32 s101, s101, 3000")
            e.label(f"L_spin{stamp.n}")
            e("s_memrealtime s[98:99]")
            e("s_waitcnt lgkmcnt(0)")
            e("s_sub_u32 s98, s98, s100")
            e("s_cmp_lt_u32 s98, s101")
            e(f"s_cbranch_scc1 L_spin{stamp.n}")
        return
    if not OPT["stamps"]: return
    if i > 0:
        e("s_mov_b32 m0, s101")
        e("v_writelane_b32 v15, s98, m0")
        e("v_writelane_b32 v14, s22, m0")
    e("s_memrealtime s[98:99]")
    if i > 0: e("s_memtime s[22:23]")
    e(f"s_mov_b32 s101, {i}")
    if i in (6, 7, 9): e(f"v_writelane_b32 v15, s{sBUD}, {16+i}")
    if i == 6: e("s_nop 0\nv_writelane_b32 v15, s7, 27")
    if i == 10: e(f"s_add_u32 s100, s{sCNT}, {OPT['dep']-4}\nv_writelane_b32 v15, s100, 26")
    if last:
        e("s_mov_b64 exec, -1")
        e("s_waitcnt lgkmcnt(0)")
        e(f"v_writelane_b32 v15, s98, {i}")
        e(f"v_writelane_b32 v14, s22, {i}")
        e("s_lshl_b32 s100, s2, 3")
        e(f"s_add_u32 s100, s100, s{sW}")
        e("s_lshl_b32 s100, s100, 7")
        e(f"s_add_u32 s100, s100, {WS_STAMP}")
        e(f"v_lshl_add_u32 v13, v{L}, 2, s100")
        e("s_mov_b32 exec_hi, 0")
        e(f"global_store_dword v13, v15, {s(sWS,2)}")
        e("v_add_u32 v13, 0x100000, v13")
        e(f"global_store_dword v13, v14, {s(sWS,2)}")

def scan(r, fill=()):
    fill = list(fill)
    for m in ("row_shr:1 row_mask:0xf bank_mask:0xf bound_ctrl:1", "row_shr:2 row_mask:0xf bank_mask:0xf bound_ctrl:1",
              "row_shr:4 row_mask:0xf bank_mask:0xf bound_ctrl:1", "row_shr:8 row_mask:0xf bank_mask:0xf bound_ctrl:1",
              "row_bcast:15 row_mask:0xa bank_mask:0xf", "row_bcast:31 row_mask:0xc bank_mask:0xf"):
        if len(fill) >= 2:
            e(fill.pop(0)); e(fill.pop(0))
        else: e("s_nop 1")
        e(f"v_add_u32_dpp v{r}, v{r}, v{r} {m}")
    assert not fill

SD = "dst_sel:DWORD dst_unused:UNUSED_PAD"

def posdma(half, vt=1):
    e(f"s_lshl_b32 s96, s{sW}, 13")
    if half:
        e("s_add_u32 s96, s96, 4096")
        e(f"s_min_u32 s96, s96, {7*8192}")
    e(f"s_add_u32 m0, s96, {POS}")
    e(f"v_lshlrev_b32 v{vt}, 4, v{L}")
    for i in range(4): e(f"buffer_load_dwordx4 v{vt}, {s(srdPOS,4)}, s96 offen offset:{i*1024} lds")
PA_ = OPT.get("pa", ("poll", "poll"))
def posat(where, vt=1):
    n = 0
    for h in range(2):
        if PA_[h] == where:
            posdma(h, vt); n += 4
    return n

DSTR = 16; SRCR = 24; ER = 32; XW = 36; B4 = 48; RK = 56
WA0 = 64; WA1 = 65; WA2 = 66; HA = 67; CA0 = 68; PBA = 69; TCH = 70; HF = 72
WT = 80; DT = 112; W1T = 128; aWH = 144; aWT = 148
stamp(0)
e.label("L_entry")
e(f"s_cmp_ge_u32 s2, {NWG}")
e("s_cbranch_scc1 L_end")
e("s_load_dwordx16 s[4:19], s[0:1], 0")
e("s_load_dwordx4 s[20:23], s[0:1], 64")
e("s_load_dwordx2 s[24:25], s[0:1], 80")
if OPT["touch"]:
    e("s_getpc_b64 s[62:63]")
    e.label("L_pc")
    e("v_lshlrev_b32 v5, 5, v0")
    e("v_min_u32 v5, L_end-L_pc, v5")
    e("s_mov_b32 exec_lo, 0x11111111")
    e("s_mov_b32 exec_hi, 0x11111111")
    e(f"global_load_dword v{TCH}, v5, s[62:63]")
    e("s_mov_b64 exec, -1")
e(f"s_mul_i32 s3, s2, {CH*4}")
e("v_lshl_add_u32 v8, v0, 4, s3")
e(f"s_add_u32 s60, s3, 8192")
e("v_lshl_add_u32 v9, v0, 2, s60")
e("s_lshr_b32 s3, s3, 1")
e("v_lshl_add_u32 v10, v0, 3, s3")
e("s_add_u32 s60, s3, 4096")
e("v_lshl_add_u32 v11, v0, 1, s60")
e("v_lshrrev_b32 v5, 6, v0")
e(f"v_and_b32 v{L}, 63, v0")
e(f"v_readfirstlane_b32 s{sW}, v5")
e(f"v_mov_b32 v{ZP}, 0")
e(f"v_mov_b32 v{ZP+1}, 0")
e("v_lshlrev_b32 v12, 4, v0")
e("v_lshlrev_b32 v5, 3, v0")
e(f"ds_write_b64 v5, {v(ZP,2)}")
e("s_and_b32 s60, s2, 7")
e(f"s_mul_i32 s{sB}, s60, 31")
e("s_min_u32 s60, s60, 2")
e(f"s_add_u32 s{sB}, s{sB}, s60")
e("s_lshr_b32 s96, s2, 3")
e(f"s_add_u32 s{sB}, s{sB}, s96")
e(f"s_mul_i32 s{sN0}, s{sB}, {NB}")
e(f"v_and_b32 v5, 16, v{L}")
e("v_and_b32 v6, 64, v0")
e("v_lshl_or_b32 v5, v5, 1, v6")
e(f"v_xor_b32 v{WA0}, v5, v12")
e(f"v_add_u32 v{WA1}, 8192, v{WA0}")
e(f"v_lshlrev_b32 v5, 1, v{L}")
e(f"s_lshl_b32 s60, s{sN0}, 7")
e("v_and_b32 v5, 0x70, v5")
e(f"v_xad_u32 v{HA}, v5, v12, s60")
e(f"s_lshl_b32 s60, s{sW}, 10")
e(f"s_add_u32 m0, s60, {WE+8192}")
e("s_waitcnt lgkmcnt(0)")
e(f"global_load_dwordx4 {v(DSTR,4)}, v8, {s(sDST,2)}")
e(f"global_load_dword v{DSTR+4}, v9, {s(sDST,2)}")
TL = OPT.get("tlb", 0)
e(f"s_mov_b32 s{srdH}, s{sH}")
e(f"s_and_b32 s{srdH+1}, s{sH+1}, 0xffff")
e(f"s_mov_b32 s{srdH+2}, 1280000")
e(f"s_mov_b32 s{srdH+3}, 0x20000")
e(f"s_mov_b32 s{srdPOS}, s{sPOS}")
e(f"s_and_b32 s{srdPOS+1}, s{sPOS+1}, 0xffff")
e(f"s_mov_b32 s{srdPOS+2}, 60000")
e(f"s_mov_b32 s{srdPOS+3}, 0x20000")
e(f"s_cmp_ge_u32 s{sW}, 6")
e(f"global_load_lds_dwordx4 v{WA1}, {s(sWE,2)}")
e("s_cbranch_scc1 L_d67")
e(f"s_add_u32 m0, s60, {HB}")
e("s_nop 0")
e(f"buffer_load_dwordx4 v{HA}, {s(srdH,4)}, 0 offen lds")
e("s_branch L_ddone")
e.label("L_d67")
e(f"s_add_u32 s62, s{sWE}, 16384")
e(f"s_addc_u32 s63, s{sWE+1}, 0")
e(f"v_lshlrev_b32 v5, 4, v{L}")
e(f"s_cmp_eq_u32 s{sW}, 7")
e(f"s_cselect_b64 s[62:63], {s(sWX,2)}, s[62:63]")
e(f"s_cselect_b32 s61, 256, 0")
e(f"s_cselect_b32 s97, 8, 16")
e(f"s_add_u32 m0, s61, {WL}")
e("s_bfm_b64 exec, s97, 0")
e(f"global_load_lds_dwordx4 v5, s[62:63]")
e("s_mov_b64 exec, -1")
e.label("L_ddone")
e("s_barrier")
def srcloads():
    e(f"global_load_dwordx4 {v(SRCR,4)}, v8, {s(sSRC,2)}")
    e(f"global_load_dword v{SRCR+4}, v9, {s(sSRC,2)}")
    e(f"global_load_dwordx2 {v(ER,2)}, v10, {s(sE,2)}")
    e(f"global_load_short_d16_hi v{ER+2}, v11, {s(sE,2)}")
    e(f"global_load_dword v71, v{ZP}, {s(sWS,2)}")
NPW = 0
if OPT["srcat"] == "b0": srcloads()
if TL:
    e(f"v_lshlrev_b32 v5, {TL}, v0")
    e(f"v_cmp_gt_u32 vcc, {min(512, 0x700000 >> TL) + (1 if TL == 21 else 0)}, v0")
    e(f"s_lshl_b32 s61, s{sN0}, 7")
    e("v_mov_b32 v6, s61")
    e("s_mov_b64 exec, vcc")
    e(f"global_load_dword v{TCH}, v5, {s(sWS,2)} sc1")
    e("s_mov_b64 exec, 1")
    e(f"global_load_dword v{TCH}, v6, {s(sOUT,2)} sc1")
    e("s_mov_b64 exec, -1")
    NPW = 2
stamp(1)
e(f"s_mul_i32 s{sCHF}, s{sW}, 86")
e(f"s_lshr_b32 s{sCHF}, s{sCHF}, 8")
e(f"s_mul_i32 s61, s{sCHF}, 3")
e(f"s_sub_u32 s{sNG}, s{sW}, s61")
e(f"s_and_b32 s61, s{sW}, 3")
e("s_lshl_b32 s61, s61, 1")
e(f"s_lshr_b32 s62, s{sW}, 2")
e("s_add_u32 s61, s61, s62")
e("s_lshl_b32 s61, s61, 8")
e("s_add_u32 s61, s61, 8192")
e(f"v_and_b32 v5, 0x70, v{WA0}")
e(f"v_bfe_u32 v6, v{L}, 3, 2")
e("v_lshl_add_u32 v5, v6, 11, v5")
e(f"v_lshrrev_b32 v6, 5, v{L}")
e("v_lshl_add_u32 v5, v6, 7, v5")
e(f"v_add_u32 v{WA2}, s61, v5")
e(f"v_and_b32 v1, 15, v{L}")
e(f"v_lshrrev_b32 v3, 4, v{L}")
e(f"s_lshl_b32 s61, s{sNG}, 11")
e(f"s_add_u32 s61, s61, {HB}")
e(f"v_and_b32 v2, 7, v{L}")
e("v_xor_b32 v2, v2, v3")
e("v_lshl_add_u32 v4, v1, 7, s61")
e(f"v_lshl_add_u32 v{aWH+1}, v2, 4, v4")
e(f"v_xor_b32 v{aWH+2}, 64, v{aWH+1}")
e(f"v_bfe_u32 v6, v{L}, 2, 2")
e(f"v_and_b32 v2, 3, v{L}")
e("v_lshl_add_u32 v4, v3, 3, v6")
e(f"v_lshlrev_b32 v7, 2, v{L}")
e("v_and_b32 v7, 0x60, v7")
e(f"s_xor_b32 s61, s{sCHF}, 1")
e("s_lshl_b32 s61, s61, 13")
e(f"s_add_u32 s61, s61, {WE}")
e("v_lshl_add_u32 v5, v4, 7, s61")
e("v_lshl_add_u32 v5, v2, 3, v5")
e(f"v_xor_b32 v{aWT}, v7, v5")
for t in range(1, 4): e(f"v_xor_b32 v{aWT+t}, {32*t}, v{aWT}")
e(f"s_lshl_b32 s61, s{sCHF}, 6")
e(f"s_add_u32 s61, s61, {WH}")
e("v_lshl_add_u32 v6, v2, 4, s61")
e("v_lshl_add_u32 v5, v4, 7, v6")
e(f"v_xor_b32 v{aWH}, v7, v5")
e(f"s_lshl_b32 s61, s{sNG}, 4")
e(f"s_add_u32 s61, s61, s{sN0}")
e("s_lshl_b32 s61, s61, 7")
e(f"s_add_u32 s61, s61, {WS_BP}")
e("v_lshl_add_u32 v2, v3, 9, s61")
e(f"v_lshl_add_u32 v{aWH+3}, v1, 3, v2")
def laneconsts():
    e(f"s_add_u32 s{srdBP}, s{sWS}, {WS_BP}")
    e(f"s_addc_u32 s{srdBP+1}, s{sWS+1}, 0")
    e(f"s_and_b32 s{srdBP+1}, s{srdBP+1}, 0xffff")
    e(f"s_or_b32 s{srdBP+1}, s{srdBP+1}, 0x800000")
    e(f"s_mov_b32 s{srdBP+2}, 10000")
    e(f"s_mov_b32 s{srdBP+3}, 0x20000")
    e(f"s_mov_b32 s{sR0}, 0")
    e(f"s_mov_b32 s{sS}, 256")
    e(f"s_mov_b32 s{sOHC}, 0x3f80")
    e(f"s_mov_b32 s{sOHC+1}, 0")
    e(f"v_lshrrev_b32 v1, 5, v{L}")
    e(f"v_and_b32 v2, 1, v{L}")
    e(f"v_lshlrev_b32 v{vWxa}, 7, v1")
    e(f"v_lshlrev_b32 v3, 5, v1")
    e(f"v_lshl_add_u32 v{IDX+1}, v2, 4, v3")
    e(f"v_bfe_u32 v4, v{L}, 3, 2")
    e(f"v_bfe_u32 v5, v{L}, 1, 1")
    e("v_lshl_add_u32 v4, v4, 1, v5")
    e(f"v_bfe_u32 v5, v{L}, 2, 1")
    e("v_lshl_add_u32 v4, v5, 3, v4")
    e(f"v_lshlrev_b32 v{vIdxL}, 3, v4")
    e(f"s_lshl_b32 s61, s{sW}, 10")
    e(f"s_add_u32 s61, s61, {R1}")
    e(f"v_lshl_add_u32 v{aR1r}, v4, 4, s61")
    e("v_xor_b32 v5, v1, v2")
    e(f"v_lshl_add_u32 v{aR1r}, v5, 20, v{aR1r}")
    e(f"v_lshl_add_u32 v{aR1w}, v{L}, 4, s61")
    e(f"s_lshl_b32 s61, s{sW}, 12")
    e(f"s_add_u32 s61, s61, {R2}")
    e(f"v_bfe_u32 v3, v{L}, 1, 3")
    e(f"v_lshl_add_u32 v4, v{L}, 6, s61")
    e(f"v_lshl_add_u32 v{aR2b}, v3, 3, v4")
    e(f"v_mov_b32 v{aR2}, v{aR2b}")
    e(f"v_bfe_u32 v3, v{L}, 2, 2")
    e(f"v_and_b32 v4, 3, v{L}")
    e(f"v_bfe_u32 v5, v{L}, 4, 1")
    e("v_lshl_add_u32 v5, v5, 2, v4")
    e("v_lshrrev_b32 v7, 1, v3")
    e("v_lshl_add_u32 v7, v1, 2, v7")
    e("v_xor_b32 v5, v5, v7")
    e("v_lshl_add_u32 v7, v1, 3, v3")
    e("v_lshl_add_u32 v7, v7, 6, s61")
    e(f"v_lshl_add_u32 v{aS0}, v5, 3, v7")
    e(f"v_xor_b32 v{aS1}, 16, v{aS0}")
    e(f"v_add_u32 v{aS1}, 256, v{aS1}")
    e(f"v_and_b32 v6, 31, v{L}")
    e("v_lshlrev_b32 v7, 3, v1")
    e("v_sub_u32 v7, v6, v7")
    e("v_lshlrev_b32 v6, 4, v2")
    e(f"v_lshlrev_b32 v6, v6, s{sOHC}")
    e("v_ashrrev_i32 v7, 1, v7")
    for u, I in ((0, I0), (1, I1)):
        for d in range(4): e(f"v_cmp_eq_u32 {s(sMK+2*d,2)}, {8*u+d}, v7")
        for d in range(4): e(f"v_cndmask_b32 v{I+d}, 0, v6, {s(sMK+2*d,2)}")
    e("v_xor_b32 v7, 1, v1")
    e(f"v_mul_u32_u24 v{ONE}, 0x3f80, v7")
    e(f"v_mov_b32 v{ONE+1}, 0")
if OPT["lcat"] == "start":
    for i in range(4): e(f"v_mov_b32 v{B4+i}, 0")
    e(f"v_add_u32 v5, {R2}, v12")
    for i in range(3, 5): e(f"ds_write_b128 v5, {v(B4,4)} offset:{i*8192}")
    e(f"v_cmp_gt_u32 vcc, {(AT - R2 - 5*8192)//16}, v0")
    e("s_mov_b64 exec, vcc")
    e(f"ds_write_b128 v5, {v(B4,4)} offset:{5*8192}")
    e("s_mov_b64 exec, -1")
    laneconsts()
e(f"v_lshrrev_b32 v1, 5, v{L}")
e(f"v_and_b32 v6, 31, v{L}")
e("v_and_b32 v7, 3, v6")
e("v_lshrrev_b32 v13, 3, v6")
e("v_lshlrev_b32 v13, 2, v13")
e("v_lshl_add_u32 v7, v7, 4, v13")
e("v_bfe_u32 v13, v6, 2, 1")
e("v_add_u32 v7, v7, v13")
e("v_lshl_add_u32 v7, v1, 1, v7")
e(f"v_lshlrev_b32 v{CA0}, 1, v7")
e(f"v_add_u32 v{CA0}, {WL}, v{CA0}")
e(f"v_mul_u32_u24 v{aATb}, {ATS}, v7")
e(f"v_add_u32 v{aATb}, {AT}, v{aATb}")
e("v_mov_b32 v13, 8")
e("s_mov_b32 s61, 52429")
e("s_movk_i32 s62, -40")
NPW += posat("start")
if OPT["srcat"] == "d1":
    e("s_waitcnt vmcnt(3)")
    srcloads()
e(f"s_waitcnt vmcnt({7+NPW})")
if OPT["srcat"] == "dst": srcloads()
if OPT["stamps"]: e("s_waitcnt lgkmcnt(0)")
stamp(14)
for i in range(5): e(f"v_mul_u32_u24 v{B4+i}, s61, v{DSTR+i}")
for i in range(5): e(f"v_lshrrev_b32 v{B4+i}, 21, v{B4+i}")
for i in range(5):
    e(f"v_lshlrev_b32 v{B4+i}, 2, v{B4+i}")
    e(f"ds_add_rtn_u32 v{RK+i}, v{B4+i}, v13 offset:{CNT1}")
NPW += posat("atom")
e(f"v_lshlrev_b32 v1, 4, v{L}")
e(f"s_cmp_ge_u32 s{sW}, 3")
e(f"s_waitcnt vmcnt({5+NPW}) lgkmcnt(0)")
e("s_barrier")
stamp(2)
def nodeprod_reads():
    e(f"ds_read_b128 {v(HF,4)}, v{aWH+1}")
    e(f"ds_read_b128 {v(HF+4,4)}, v{aWH+2}")
    for t in range(4):
        for ks in range(2):
            for rd in range(2):
                e(f"ds_read_b64_tr_b16 {v(WT+8*t+4*ks+2*rd,2)}, v{aWT+t} offset:{ks*4096+rd*512}")
def nodeprod(extra=0):
    e(f"s_mov_b32 s96, {NL2E}")
    for t in range(4):
        e(f"s_waitcnt lgkmcnt({12-4*t+extra})")
        e(f"v_mfma_f32_16x16x32_bf16 {v(DT+4*t,4)}, {v(HF,4)}, {v(WT+8*t,4)}, 0")
        e(f"v_mfma_f32_16x16x32_bf16 {v(DT+4*t,4)}, {v(HF+4,4)}, {v(WT+8*t+4,4)}, {v(DT+4*t,4)}")
def nodescale():
    for i in range(8): e(f"v_pk_mul_f32 {v(DT+2*i,2)}, {v(DT+2*i,2)}, s[96:97] op_sel_hi:[1,0]")
def wdma():
    for base, a, ptr in ((WE, WA0, sWE), (WH, WA0, sWH), (WH+8192, WA2, sWH)):
        e(f"s_add_u32 m0, s60, {base}")
        e("s_nop 0")
        e(f"global_load_lds_dwordx4 v{a}, {s(ptr,2)}")
    return posat("b1", 2)
e("s_cbranch_scc1 L_nobp")
nodeprod_reads()
e(f"ds_read_b128 v[4:7], v1 offset:{CNT1}")
wdma()
nodeprod(1)
e(f"s_cmp_eq_u32 s{sNG}, 2")
e("s_cselect_b32 s63, 0, -1")
nodescale()
for r in range(4):
    e(f"v_cvt_pk_bf16_f32 v{WT+2*r}, v{DT+r}, v{DT+4+r}")
    e(f"v_cvt_pk_bf16_f32 v{WT+2*r+1}, v{DT+8+r}, v{DT+12+r}")
e("s_mov_b32 exec_hi, s63")
for r in range(4): e(f"global_store_dwordx2 v{aWH+3}, {v(WT+2*r,2)}, {s(sWS,2)} offset:{r*128} sc1")
e("s_mov_b64 exec, -1")
e("s_branch L_bpdone")
e.label("L_nobp")
e(f"ds_read_b128 v[4:7], v1 offset:{CNT1}")
NPW += wdma()
e.label("L_bpdone")
e("s_waitcnt lgkmcnt(0)")
e("v_add_u32 v5, v4, v5")
e("v_add_u32 v6, v5, v6")
e("v_add_u32 v7, v6, v7")
e("v_mov_b32 v3, v7")
fill = [f"v_lshlrev_b32 v{XW+2*i}, 2, v{DSTR+i}" for i in range(5)] + \
       [f"v_mad_i32_i24 v{XW+2*i}, v{B4+i}, s62, v{XW+2*i}" for i in range(5)] + \
       [f"v_add_u32 v{RK+i}, {STG}, v{RK+i}" for i in range(5)]
scan(3, fill[:12])
e("v_sub_u32 v8, v3, v7")
e("v_add_u32 v9, v8, v4")
e("v_add_u32 v10, v8, v5")
e("v_add_u32 v11, v8, v6")
e(f"ds_write_b128 v1, v[8:11] offset:{OFF1}")
for i in range(5): e(f"ds_read_b32 v{B4+i}, v{B4+i} offset:{OFF1}")
for x in fill[12:]: e(x)
PB = 20
e(f"v_lshl_or_b32 v{PB}, v9, 16, v8")
e(f"v_lshl_or_b32 v{PB+1}, v11, 16, v10")
e(f"v_mov_b32 v{PB+2}, v3")
e("s_mov_b32 s63, 0xffff0000")
e(f"s_cmp_ge_u32 s{sW}, 3")
e(f"s_waitcnt vmcnt({8+NPW})")
e("s_cbranch_scc0 L_srcin")
e(f"s_waitcnt vmcnt({4+NPW})")
e.label("L_srcin")
e(f"v_lshl_or_b32 v{XW+1}, v{ER}, 16, v{SRCR}")
e(f"v_and_or_b32 v{XW+3}, v{ER}, s63, v{SRCR+1}")
e(f"v_lshl_or_b32 v{XW+5}, v{ER+1}, 16, v{SRCR+2}")
e(f"v_and_or_b32 v{XW+7}, v{ER+1}, s63, v{SRCR+3}")
e(f"v_or_b32 v{XW+9}, v{ER+2}, v{SRCR+4}")
for i in range(5):
    e("s_waitcnt lgkmcnt(4)")
    e(f"v_add_u32 v{B4+i}, v{B4+i}, v{RK+i}")
    e(f"ds_write_b64 v{B4+i}, {v(XW+2*i,2)}")
e(f"s_mul_i32 s60, s2, {CH*8}")
e(f"s_add_u32 s60, s60, {WS_REC+4096}")
e("v_add_u32 v2, s60, v12")
e("v_add_u32 v3, 8192, v2")
e("v_add_u32 v4, 12288, v2")
e(f"v_add_u32 v5, {STG}, v12")
e(f"s_lshl_b32 s60, s2, 10")
e(f"s_add_u32 s60, s60, {WS_OFF}")
e(f"v_add_u32 v{PBA}, s60, v1")
e("s_waitcnt vmcnt(0)")
e(f"v_add_u32 v{PB+3}, {TAGC}, v71")
e(f"v_and_b32 v71, 0xffffff00, v{PB+3}")
e(f"s_cmp_ge_u32 s{sW}, 4")
e(f"v_readfirstlane_b32 s{sTAG}, v{PB+3}")
e(f"v_readfirstlane_b32 s{sTAGR}, v71")
e("s_waitcnt lgkmcnt(0)")
e("s_barrier")
stamp(3)
ST = 48
def publish(w):
    e(f"s_cmp_lg_u32 s{sW}, {w}")
    e("s_cbranch_scc1 L_nopub")
    e(f"global_store_dwordx4 v{PBA}, {v(PB,4)}, {s(sWS,2)} sc1")
    e.label("L_nopub")
def posdma4():
    e(f"s_and_b32 s96, s{sW}, 3")
    e("s_mul_i32 s96, s96, 15360")
    e(f"v_lshlrev_b32 v1, 4, v{L}")
    for g_ in range(4):
        if g_: e("s_add_u32 s96, s96, 4096")
        e(f"s_add_u32 m0, s96, {POS}")
        e("s_nop 0")
        for i in range(4 if g_ < 3 else 3): e(f"buffer_load_dwordx4 v1, {s(srdPOS,4)}, s96 offen offset:{i*1024} lds")
e("s_cbranch_scc1 L_nost")
for i in range(5): e(f"ds_read_b128 {v(ST+4*i,4)}, v5 offset:{i*4096}")
for i in range(4): e(f"v_mov_b32 v{8+i}, 0")
for i, (a, o) in enumerate(((2, -4096), (2, 0), (3, -4096), (3, 0), (4, 0))):
    e(f"s_waitcnt lgkmcnt({4-i})")
    e(f"v_or_b32 v{ST+4*i}, v71, v{ST+4*i}")
    e(f"v_or_b32 v{ST+4*i+2}, v71, v{ST+4*i+2}")
    e(f"global_store_dwordx4 v{a}, {v(ST+4*i,4)}, {s(sWS,2)} offset:{o} sc1")
    if OPT["pubat"] == i + 1: publish(3)
e(f"s_cmp_lg_u32 s2, {NWG-1}")
e("s_cbranch_scc1 L_nodummy")
e(f"v_mov_b32 v6, {WS_REC + NWG*CH*8}")
e(f"global_store_dword v6, v71, {s(sWS,2)} sc1")
e.label("L_nodummy")
for i in range(6): e(f"ds_write_b128 v5, v[8:11] offset:{i*4096}")
e.label("L_nost")
if OPT["pubat"] == 0: publish(7)
if OPT["stamps"]: e("s_waitcnt lgkmcnt(0)")
stamp(15)
e(f"s_mov_b32 s{sBUD}, 2000000")
e(f"ds_read_u16_d16_hi v{WX}, v{CA0}")
e(f"ds_read_u16_d16_hi v{WX+1}, v{CA0} offset:128")
e(f"s_cmp_ge_u32 s{sW}, 6")
e("s_cbranch_scc1 L_w67")
e(f"s_cmp_ge_u32 s{sW}, 3")
e("s_cbranch_scc1 L_w345")
for i in range(4): e(f"v_mov_b32 v{HRES+i}, v{HF+i}")
e("s_branch L_wdone")
e.label("L_w345")
nodeprod_reads()
e(f"v_and_b32 v1, 15, v{L}")
e(f"v_lshrrev_b32 v3, 4, v{L}")
e(f"s_lshl_b32 s60, s{sNG}, 5")
e(f"s_add_u32 s60, s60, {AT}")
e("v_lshl_add_u32 v2, v3, 3, s60")
e(f"v_mul_u32_u24 v1, {ATS}, v1")
e("v_add_u32 v2, v1, v2")
nodeprod()
e("s_nop 1")
nodescale()
for t in range(4):
    e(f"v_cvt_pk_bf16_f32 v{WT+2*t}, v{DT+4*t}, v{DT+4*t+1}")
    e(f"v_cvt_pk_bf16_f32 v{WT+2*t+1}, v{DT+4*t+2}, v{DT+4*t+3}")
for i in range(4): e(f"v_mov_b32 v{HRES+i}, v{HF+4+i}")
for t in range(4): e(f"ds_write_b64 v2, {v(WT+2*t,2)} offset:{t*16*ATS}")
e("s_branch L_wdone")
e.label("L_w67")
e(f"ds_read_u16_d16_hi v4, v{CA0} offset:256")
e("v_and_b32 v7, 127, v0")
e(f"v_min_u32 v7, 119, v7")
e(f"s_mul_i32 s60, s{sB}, 240")
e(f"v_lshl_add_u32 v1, v7, 1, s60")
e(f"global_load_short_d16_hi v{vPosOwn}, v1, {s(sPOS,2)}")
e(f"v_mul_u32_u24 v1, 171, v7")
e("v_lshrrev_b32 v1, 9, v1")
e(f"v_mad_i32_i24 v2, v1, -3, v7")
e(f"v_lshlrev_b32 v{H1+2}, 2, v1")
e(f"v_lshl_add_u32 v{H1+3}, v2, 8, v{H1+2}")
e(f"v_lshlrev_b32 v{vFO}, 3, v2")
e(f"v_add_u32 v{vFO}, {BF+256}, v{vFO}")
e(f"v_bfe_u32 v1, v{L}, 2, 1")
e(f"v_lshrrev_b32 v2, 3, v{L}")
e(f"v_and_b32 v3, 3, v{L}")
e("v_lshl_add_u32 v2, v2, 2, v3")
e("v_lshl_add_u32 v2, v1, 5, v2")
e("v_lshlrev_b32 v2, 2, v2")
e("s_waitcnt lgkmcnt(0)")
e(f"v_mul_f32 v4, {NLN2}, v4")
e(f"ds_write_b32 v2, v4 offset:{WXT}")
e.label("L_wdone")
if OPT["stamps"]: e("s_waitcnt lgkmcnt(0)")
stamp(4)
if OPT["lcat"] == "win": laneconsts()
RA = 16; RB = 32; KA = 48; KB = 56; AD = 64; LN = 112; LK = 120; vSB = 70; vJ = 116
mk = lambda rnd, p, h: sMK + 2 * (rnd * 8 + p * 2 + h)
def presets():
    for p in range(4):
        e(f"v_mov_b32 v{RA+4*p}, s{sTAGR}")
        e(f"v_mov_b32 v{RA+4*p+2}, s{sTAGR}")
def batchsetup(general):
    e("v_lshrrev_b32 v1, 3, v0")
    e("v_and_b32 v2, 7, v0")
    e(f"v_lshlrev_b32 v{vJ}, 4, v2")
    e(f"v_mul_u32_u24 v1, {CH*8}, v1")
    e(f"v_add_u32 v{vSB}, v1, v{vJ}")
    for p in range(4):
        e(f"s_add_u32 s60, s{sR0}, {WS_REC + p*64*CH*8}")
        e(f"s_add_u32 s{sRB+2*p}, s{sWS}, s60")
        e(f"s_addc_u32 s{sRB+2*p+1}, s{sWS+1}, 0")
    for k2, o in ((1, 8), (2, 128), (3, 136)): e(f"v_add_u32 v{vJ+k2}, {o}, v{vJ}")
    if general:
        e(f"v_mov_b32 v1, {OOB}")
        for k2 in range(4):
            e(f"v_cmp_gt_u32 vcc, s{sS}, v{vJ+k2}")
            e(f"v_add_u32 v{vJ+k2}, s{sR0}, v{vJ+k2}")
            e("s_nop 0")
            e(f"v_cndmask_b32 v{vJ+k2}, v1, v{vJ+k2}, vcc")
    presets()
batchsetup(False)
e(f"s_mov_b32 s{sONCE}, 0")
sPF = 6
e("s_andn2_b32 s60, s2, 7")
e(f"s_add_u32 s60, s60, s{sW}")
e("s_mul_i32 s60, s60, 41")
e(f"v_add_u32 v68, s60, v{L}")
e(f"s_mov_b32 s{sPF}, -1")
e(f"s_mov_b32 s{sPF+1}, 0x1ff")
e("v_lshrrev_b32 v6, 3, v0")
e("v_lshlrev_b32 v6, 2, v6")
if OPT["stamps"]: e("s_waitcnt lgkmcnt(0)")
stamp(5)
e(f"s_cmp_ge_u32 s{sW}, 4")
e("s_cbranch_scc1 L_pollw")
if OPT["pw"] == "st": posdma4()
e("s_branch L_b3")
e.label("L_pollw")
PL = 80
if OPT["pw"] == "pl": posdma4()
e("v_and_b32 v1, 255, v0")
e(f"s_lshr_b32 s60, s{sB}, 2")
e("s_lshl_b32 s60, s60, 4")
e(f"s_add_u32 s60, s60, {WS_OFF}")
e("v_lshl_add_u32 v2, v1, 10, s60")
e(f"v_cmp_gt_u32 vcc, {NWG}, v1")
for i in range(3): e(f"v_mov_b32 v{PL+i}, 0")
e("v_lshlrev_b32 v1, 2, v1")
e(f"s_and_b32 s3, s{sB}, 1")
e("s_lshl_b32 s3, s3, 4")
e.label("L_poll")
e("s_mov_b64 exec, vcc")
e(f"global_load_dwordx4 {v(PL,4)}, v2, {s(sWS,2)} sc1")
e(f"s_sub_u32 s{sBUD}, s{sBUD}, 1")
e("s_waitcnt vmcnt(0)")
e(f"v_cmp_ne_u32 vcc, s{sTAG}, v{PL+3}")
e("s_cbranch_scc1 L_pollout")
e("s_cbranch_vccnz L_poll")
e.label("L_gotoff")
e("s_mov_b64 exec, -1")
e(f"s_bitcmp1_b32 s{sB}, 1")
e(f"v_alignbit_b32 v3, v{PL+1}, v{PL}, s3")
e(f"v_alignbit_b32 v4, v{PL+2}, v{PL+1}, s3")
e("s_cselect_b64 vcc, -1, 0")
e("v_cndmask_b32 v3, v3, v4, vcc")
e(f"ds_write_b32 v1, v3 offset:{OFF1}")
e("s_waitcnt lgkmcnt(0)")
e.label("L_b3")
e("s_barrier")
e(f"ds_read2st64_b32 {v(SEG,2)}, v6 offset0:{OFF1//256} offset1:{OFF1//256+1}")
e(f"ds_read2st64_b32 {v(SEG+2,2)}, v6 offset0:{OFF1//256+2} offset1:{OFF1//256+3}")
e("s_waitcnt lgkmcnt(0)")
stamp(6)
e.label("L_fetch")
for p in range(4):
    e(f"v_sub_u32_sdwa v{LN+p}, v{SEG+p}, v{SEG+p} {SD} src0_sel:WORD_1 src1_sel:WORD_0")
    e(f"v_add_u32_sdwa v{AD+p}, v{SEG+p}, v{vSB} {SD} src0_sel:WORD_0 src1_sel:DWORD")
    e(f"v_cmp_lt_i32 {s(mk(0,p,0),2)}, v{vJ}, v{LN+p}")
for p in range(4):
    e(f"s_mov_b64 exec, {s(mk(0,p,0),2)}")
    e(f"global_load_dwordx4 {v(RA+4*p,4)}, v{AD+p}, {s(sRB+2*p,2)} sc1")
e("s_mov_b64 exec, -1")
for p in range(4): e(f"v_cmp_lt_i32 {s(mk(1,p,0),2)}, v{vJ+2}, v{LN+p}")
for p in range(4):
    e(f"s_mov_b64 exec, {s(mk(1,p,0),2)}")
    e(f"s_cbranch_execz L_nlb{p}")
    e(f"global_load_dwordx4 {v(RB+4*p,4)}, v{AD+p}, {s(sRB+2*p,2)} offset:128 sc1")
    e.label(f"L_nlb{p}")
e("s_mov_b64 exec, -1")
for p in range(4):
    e(f"v_cmp_lt_i32 {s(mk(0,p,1),2)}, v{vJ+1}, v{LN+p}")
    e(f"v_cmp_lt_i32 {s(mk(1,p,1),2)}, v{vJ+3}, v{LN+p}")
e(f"s_or_b64 s[60:61], {s(mk(1,0,0),2)}, {s(mk(1,1,0),2)}")
e(f"s_or_b64 s[62:63], {s(mk(1,2,0),2)}, {s(mk(1,3,0),2)}")
e("s_or_b64 s[60:61], s[60:61], s[62:63]")
e(f"s_or_b32 s{sANYB}, s60, s61")
e(f"v_max3_i32 v3, v{LN}, v{LN+1}, v{LN+2}")
e(f"v_max_i32 v3, v3, v{LN+3}")
e(f"s_add_u32 s60, s{sR0}, s{sS}")
e("v_mov_b32 v13, 8")
e("v_cmp_lt_i32 vcc, s60, v3")
e("s_mov_b64 exec, vcc")
e(f"ds_write_b32 v{ZP}, v13 offset:{CNT2+252}")
e("s_mov_b64 exec, -1")
e(f"s_cmp_lg_u32 s{sONCE}, 0")
e("s_cbranch_scc1 L_notfirst")
e(f"s_mov_b32 s{sONCE}, 1")
e(f"s_cmp_ge_u32 s{sW}, 6")
e("s_cbranch_scc1 L_p67")
for t in range(2):
    for ks in range(2):
        for rd in range(2):
            e(f"ds_read_b64_tr_b16 {v(W1T+8*t+4*ks+2*rd,2)}, v{aWH} offset:{ks*4096+rd*512+t*8}")
for t in range(2):
    for c in range(2):
        for rd in range(2):
            e(f"ds_read_b64_tr_b16 {v(WH2+8*t+4*c+2*rd,2)}, v{aWH} offset:{(2+c)*4096+rd*512+t*8}")
e(f"s_lshl_b32 s60, s{sNG}, 4")
e(f"v_and_b32 v1, 15, v{L}")
e(f"v_add_lshl_u32 v{vAItem}, v1, s60, 2")
e("s_waitcnt lgkmcnt(8)")
for t in range(2):
    e(f"v_mfma_f32_16x16x32_bf16 {v(H1+4*t,4)}, {v(W1T+8*t,4)}, {v(HF,4)}, 0")
    e(f"v_mfma_f32_16x16x32_bf16 {v(H1+4*t,4)}, {v(W1T+8*t+4,4)}, {v(HF+4,4)}, {v(H1+4*t,4)}")
e(f"v_and_b32 v2, 48, v{L}")
e(f"v_lshlrev_b32 v{vFO}, 1, v2")
e(f"v_add_u32 v{vFO}, {BF}, v{vFO}")
e(f"s_lshl_b32 s60, s{sN0}, 1")
e(f"s_add_u32 s60, s60, s{sCHF}")
e("s_lshl_b32 s60, s60, 6")
if OPT["otr"]:
    e(f"s_lshl_b32 s61, s{sNG}, 4")
    e(f"v_lshrrev_b32 v2, 2, v{L}")
    e("v_add_u32 v2, s61, v2")
    e(f"v_cmp_gt_u32 {s(sOM,2)}, {NB}, v2")
    e("v_lshl_add_u32 v2, v2, 7, s60")
    e(f"v_and_b32 v1, 3, v{L}")
    e(f"v_lshl_add_u32 v{vOA}, v1, 4, v2")
else:
    e(f"v_lshl_add_u32 v2, v{vAItem}, 5, v2")
    e(f"v_add_u32 v{vOA}, s60, v2")
    e(f"s_movk_i32 s60, {NB*4}")
    e(f"v_cmp_gt_u32 {s(sOM,2)}, s60, v{vAItem}")
e(f"s_mov_b32 s60, {NL2E}")
for i in range(8): e(f"v_mul_f32 v{H1+i}, s60, v{H1+i}")
e("s_branch L_pdone")
e.label("L_p67")
e(f"ds_write_b32 v{H1+3}, v{vPosOwn} offset:{PD}")
e(f"v_mov_b32 v{vAItem}, v{H1+2}")
e("v_and_b32 v1, 127, v0")
e("s_movk_i32 s60, 120")
e(f"v_cmp_gt_u32 {s(sOM,2)}, s60, v1")
e(f"s_mul_i32 s60, s{sB}, 240")
e("s_add_u32 s60, s60, 1280000")
e(f"v_lshl_add_u32 v{vOA}, v1, 1, s60")
e.label("L_pdone")
e(f"v_mul_u32_u24 v1, {ACCS//4}, v{vAItem}")
e(f"v_add_u32 v1, {ACC-BF}, v1")
e(f"v_add_u32 v{vFA}, v1, v{vFO}")
e(f"v_mul_f32 v{WX}, {NL2E}, v{WX}")
e(f"v_mul_f32 v{WX+1}, {NL2E}, v{WX+1}")
e(f"v_cvt_pk_bf16_f32 v1, v{WX}, v{WX}")
e("v_and_b32 v1, 0xffff0000, v1")
e(f"v_sub_f32 v2, v{WX}, v1")
e(f"v_cvt_pk_bf16_f32 v{WX}, v1, v2")
e(f"v_cvt_pk_bf16_f32 v{WX+1}, 0, v{WX+1}")
e.label("L_notfirst")
for c in range(2): e(f"v_mfma_f32_32x32x8_bf16 {v(AC[c],16)}, {v(ZP,2)}, {v(ZP,2)}, 0")
e(f"v_lshlrev_b32 v1, 2, v{L}")
e(f"v_cmp_gt_u32 {s(sVAL,2)}, {NB}, v{L}")
e("s_waitcnt vmcnt(0)")
for i in range(8): e(f"v_xor_b32 v{RA+2*i}, s{sTAGR}, v{RA+2*i}")
e(f"v_or3_b32 v4, v{RA}, v{RA+2}, v{RA+4}")
e(f"v_or3_b32 v5, v{RA+6}, v{RA+8}, v{RA+10}")
e(f"v_or3_b32 v4, v4, v{RA+12}, v{RA+14}")
def bsite(name):
    e(f"s_cmp_eq_u32 s{sANYB}, 0")
    e(f"s_cbranch_scc1 L_{name}")
    for p in range(4):
        e(f"s_mov_b64 exec, {s(mk(1,p,0),2)}")
        if name == "bx":
            e(f"v_xor_b32 v{RB+4*p}, s{sTAGR}, v{RB+4*p}")
            e(f"v_xor_b32 v{RB+4*p+2}, s{sTAGR}, v{RB+4*p+2}")
            e(f"v_or3_b32 v5, v5, v{RB+4*p}, v{RB+4*p+2}")
        elif name == "ba":
            e(f"ds_add_rtn_u32 v{KB+2*p}, v{RB+4*p}, v13 offset:{CNT2}")
            e(f"s_mov_b64 exec, {s(mk(1,p,1),2)}")
            e(f"ds_add_rtn_u32 v{KB+2*p+1}, v{RB+4*p+2}, v13 offset:{CNT2}")
        elif name == "bl":
            e(f"ds_read_b32 v{LK+8+2*p}, v{RB+4*p} offset:{BASE2}")
            e(f"ds_read_b32 v{LK+9+2*p}, v{RB+4*p+2} offset:{BASE2}")
        else:
            e(f"v_add_u32 v7, v{LK+8+2*p}, v{KB+2*p}")
            e(f"v_add_u32 v8, v{LK+9+2*p}, v{KB+2*p+1}")
            e(f"ds_write_b64 v7, {v(RB+4*p,2)} offset:{SORT2}")
            e(f"s_mov_b64 exec, {s(mk(1,p,1),2)}")
            e(f"ds_write_b64 v8, {v(RB+4*p+2,2)} offset:{SORT2}")
    e.label(f"L_{name}")
    e("s_mov_b64 exec, -1")
bsite("bx")
e("v_or_b32 v4, v4, v5")
e("v_cmp_lt_u32 vcc, 0xff, v4")
e("s_cbranch_vccnz L_stale")
e.label("L_gotrec")
if OPT["stamps"]: e("s_waitcnt lgkmcnt(0)")
stamp(7)
for p in range(4):
    for h in range(2):
        e(f"s_mov_b64 exec, {s(mk(0,p,h),2)}")
        e(f"ds_add_rtn_u32 v{KA+2*p+h}, v{RA+4*p+2*h}, v13 offset:{CNT2}")
bsite("ba")
def bpf(at):
    if OPT["bpf"] != at: return
    e(f"s_mov_b64 exec, {s(sPF,2)}")
    e(f"buffer_load_dword v69, v68, {s(srdBP,4)}, 0 idxen")
    e("s_mov_b64 exec, -1")
NL_ = posat("rec", 6)
bpf(1)
e("s_waitcnt lgkmcnt(0)")
e("s_barrier")
stamp(8)
e(f"ds_read_b32 v2, v1 offset:{CNT2}")
NL2_ = posat("b4", 6)
bpf(2)
e("s_waitcnt lgkmcnt(0)")
e(f"v_max_u32 v4, {PADB}, v2")
e(f"v_cndmask_b32 v5, 0, v4, {s(sVAL,2)}")
scan(5, [f"v_readlane_b32 s{sMORE}, v2, 63", f"v_cmp_lt_u32 vcc, v2, v4"])
e(f"v_sub_u32 v6, v5, v4")
e(f"ds_write_b32 v1, v6 offset:{BASE2}")
for i in range(8): e(f"ds_read_b32 v{LK+i}, v{RA+2*i} offset:{BASE2}")
e(f"v_readlane_b32 s3, v5, 63")
bsite("bl")
bpf(3)
e(f"s_cmp_gt_u32 s3, {CAPB}")
e("s_cbranch_scc1 L_redo")
e(f"s_and_b64 vcc, vcc, {s(sVAL,2)}")
e("s_cbranch_scc1 L_pad0")
e.label("L_nopad")
e("s_add_u32 s96, s3, 127")
e("s_lshr_b32 s60, s96, 10")
e("s_bfe_u32 s61, s96, 0x30007")
e(f"s_mul_i32 s62, s60, s{sW}")
e(f"s_min_u32 s63, s61, s{sW}")
e("s_add_u32 s62, s62, s63")
e(f"s_cmp_lt_u32 s{sW}, s61")
e(f"s_addc_u32 s{sCNT}, s60, 0")
e("s_lshl_b32 s62, s62, 7")
e("v_cmp_ge_u32 vcc, s62, v5")
e(f"s_lshl_b32 s63, s{sCNT}, 7")
e("s_add_u32 s63, s63, s62")
e("v_cmp_gt_u32 s[60:61], s63, v5")
e("s_waitcnt lgkmcnt(0)")
for p in range(4):
    for h in range(2):
        i = 2*p+h
        e(f"s_mov_b64 exec, {s(mk(0,p,h),2)}")
        e(f"v_add_u32 v{LK+i}, v{LK+i}, v{KA+i}")
        e(f"ds_write_b64 v{LK+i}, {v(RA+2*i,2)} offset:{SORT2}")
bsite("bw")
bpf(4)
e(f"s_bcnt1_i32_b64 s{sNFW}, vcc")
e(f"s_lshl_b32 s{sBASE}, s{sNFW}, 2")
e(f"s_or_b32 s{sSLOW}, s{sR0}, s{sMORE}")
e(f"s_cselect_b32 s{sNFW}, 252, s{sBASE}")
e(f"s_lshl_b32 s63, 1, s{sW}")
e(f"v_mov_b32 v7, s{sNFW}")
e("v_mov_b32 v8, s63")
e(f"s_add_u32 s3, s3, {SORT2}")
e(f"s_lshl_b32 s63, s{sW}, 6")
e("s_add_u32 s3, s3, s63")
e("v_lshl_add_u32 v9, v1, 1, s3")
e(f"v_mov_b32 v10, {(NB-1)*4}")
e("v_mov_b32 v11, 10000")
e("s_mov_b64 exec, 1")
e(f"ds_or_b32 v7, v8 offset:{LNK}")
e("s_mov_b64 exec, 0xff")
e("ds_write_b64 v9, v[10:11]")
e("s_mov_b64 exec, -1")
e(f"s_add_u32 s62, s62, {SORT2}")
e(f"v_lshl_add_u32 v{aRec}, v{L}, 3, s62")
e(f"v_add3_u32 v{aIdx}, s62, 4, v{vIdxL}")
e(f"s_bcnt1_i32_b64 s{sNLW}, s[60:61]")
e(f"s_min_u32 s{sNLW}, s{sNLW}, {NB-1}")
e(f"s_lshl_b32 s{sNLW}, s{sNLW}, 2")
def rowaddr():
    return [f"v_subrev_u32 v4, s{sBASE}, v{L}",
            "v_and_b32 v4, 28, v4",
            f"v_add_u32 v4, s{sBASE}, v4",
            f"v_cmp_eq_u32 vcc, s{sNFW}, v4",
            f"v_cmp_lt_u32 s[62:63], s{sNLW}, v4",
            f"s_lshl_b32 s61, s{sW}, 2",
            f"s_add_u32 s61, s61, {NB*4}",
            "v_mov_b32 v7, s61",
            "v_cndmask_b32 v4, v4, v7, vcc",
            f"v_mov_b32 v7, {OOB//64}",
            "v_cndmask_b32 v4, v4, v7, s[62:63]",
            f"v_mul_u32_u24 v4, {ACCS//4}, v4",
            f"v_add_u32 v4, {ACC}, v4",
            f"v_lshrrev_b32 v7, 5, v{L}",
            f"v_lshl_add_u32 v{vRowM}, v7, 4, v4",
            f"v_lshl_add_u32 v4, v7, 2, v4",
            f"v_and_b32 v7, 3, v{L}",
            f"v_lshl_add_u32 v{vRowP}, v7, 3, v4"]
PI = E[0]
DEP = OPT["dep"]
for n in range(DEP): e(f"v_mov_b32 v{PI+2*n+1}, v{IDX+1}")
e(f"s_sub_u32 s{sCNT}, s{sCNT}, {DEP+1}")
e("s_setprio 3")
if NL_ or NL2_: e(f"s_waitcnt vmcnt({1 if (OPT['bpf'] >= 2 or (OPT['bpf'] == 1 and not NL2_)) else 0})")
e("s_waitcnt lgkmcnt(0)")
e("s_barrier")
stamp(9)
def gather(b, pair):
    return [f"buffer_load_dwordx4 {v(G[b],4)}, {v(pair,2)}, {s(srdBP,4)}, 0 idxen offen",
            f"buffer_load_dwordx4 {v(G[b]+4,4)}, {v(pair,2)}, {s(srdBP,4)}, 0 idxen offen offset:64"]
def build1():
    return [f"v_mul_u32_u24_sdwa v{BT}, 6, v{REC+1} {SD} src0_sel:DWORD src1_sel:WORD_0",
            f"ds_read2st64_b32 {v(PDV,2)}, v{REC} offset0:{PD//256} offset1:{PD//256+1}",
            f"ds_read_u16_d16_hi v{PS}, v{BT} offset:{POS}",
            f"ds_read_u16_d16_hi v{PS+1}, v{BT} offset:{POS+2}",
            f"ds_read_u16_d16_hi v{PS+2}, v{BT} offset:{POS+4}",
            f"ds_read_b32 v{PDV+2}, v{REC} offset:{PD+512}",
            f"v_readlane_b32 s{sNF}, v{REC}, 0",
            f"v_readlane_b32 s{sNL}, v{REC}, 63",
            f"v_cmp_ne_u32 vcc, 60000, v{BT}",
            f"v_add_u32 v{BT+1}, v{REC}, v{REC}",
            f"s_and_b32 s60, s{sNF}, -8",
            f"s_mul_i32 s{sNEG}, s60, -4",
            f"s_lshr_b32 s60, s60, 1",
            f"s_mov_b64 {s(sVAL,2)}, vcc",
            f"v_lshl_add_u32 v{BT+2}, v{REC}, 2, s{sNEG}",
            f"v_add_u32 v{aAT}, s60, v{aATb}",
            f"v_lshlrev_b64 {v(REC+2,2)}, v{BT+2}, {s(sOHC,2)}"]
def build2():
    return [f"v_sub_f32 v{PDV}, v{PDV}, v{PS}",
            f"v_sub_f32 v{PDV+1}, v{PDV+1}, v{PS+1}",
            f"v_sub_f32 v{PDV+2}, v{PDV+2}, v{PS+2}",
            f"v_cvt_pk_bf16_f32 v{R2V}, v{PDV}, v{PDV+1}",
            f"v_cvt_pk_bf16_f32 v{R2V+1}, v{PDV+2}, 1.0",
            f"v_dot2_f32_bf16 v{BT}, v{R2V}, v{R2V}, 0",
            f"v_lshlrev_b32 v{BT+2}, 16, v{R2V+1}",
            None, None,
            f"v_fmac_f32 v{BT}, v{BT+2}, v{BT+2}",
            f"v_cvt_pk_bf16_f32 v{REC}, v{BT}, v{BT}"]
def build3():
    return [f"ds_write_b64 v{aR2}, {v(ZP,2)}",
            f"v_bitop3_b32 v{aR2}, v{BT+1}, 56, v{aR2b} bitop3:0x6a",
            f"ds_write_b128 v{aR1w}, {v(REC,4)}",
            f"s_mov_b64 exec, {s(sVAL,2)}\nds_write_b64 v{aR2}, {v(R2V,2)}\ns_mov_b64 exec, -1",
            f"ds_read2_b32 {v(WX+2,2)}, v{aAT} offset1:1"]
def opreads(n):
    return [f"ds_read_b128 {v(R1OP,4)}, v{aR1r} offset:{n*256}",
            f"ds_read_b64_tr_b16 {v(S[n],2)}, v{aS0} offset:{n*1024}",
            f"ds_read_b64_tr_b16 {v(S[n]+2,2)}, v{aS1} offset:{n*1024}"]
def stage1(n):
    t = T[n & 1]
    return [f"v_mfma_f32_32x32x16_bf16 {v(t,16)}, {v(R1OP,4)}, {v(WX,4)}, 0",
            f"v_mfma_f32_32x32x16_bf16 {v(t,16)}, {v(G[n],4)}, {v(I0,4)}, {v(t,16)}",
            f"v_mfma_f32_32x32x16_bf16 {v(t,16)}, {v(G[n]+4,4)}, {v(I1,4)}, {v(t,16)}"]
def stage2(n):
    return [f"v_mfma_f32_32x32x16_bf16 {v(AC[c],16)}, {v(M[c],4)}, {v(S[n],4)}, {v(AC[c],16)}" for c in range(2)]
def mulcvt(q):
    L_ = []
    for a in range(4):
        if 4*a >= 16 - OPT["lut"]:
            for c in range(2): L_.append(f"v_or_b32 v{M[c]+a}, v{T[q]+4*a+c}, v{T[q]+4*a+2+c}")
            continue
        for r in range(4): L_.append(f"v_mul_f32 v{E[q]+4*a+r}, v{E[q]+4*a+r}, v{T[q]+4*a+r}")
        for c in range(2): L_.append(f"v_cvt_pk_bf16_f32 v{M[c]+a}, v{E[q]+4*a+c}, v{E[q]+4*a+2+c}")
    return L_
def flushchk(lbl):
    e(f"s_min_u32 s60, s{sNL}, s{sNLW}")
    e(f"s_sub_u32 s60, s60, s{sBASE}")
    e("s_cmp_ge_u32 s60, 32")
    e(f"s_cbranch_scc1 L_flush_{lbl}")
    e.label(f"L_flret_{lbl}")
def mmask():
    e("s_mov_b32 exec_lo, 0x88888888")
    e("s_mov_b32 exec_hi, 0x88888888")
def flush_slow():
    e("s_nop 7")
    e("v_mov_b32 v2, 0")
    for i in range(8):
        e(f"ds_read_b128 v[4:7], v{vWxa} offset:{WXT+16*i}")
        e("s_waitcnt lgkmcnt(0)")
        for r in range(4): e(f"v_fmac_f32 v2, v{AC[0]+4*i+r}, v{4+r}")
    e(f"ds_add_f32 v{vRowP}, v2 offset:256")
    mmask()
    for i in range(32): e(f"ds_add_f32 v{vRowM}, v{AC[0]+i} offset:{(i//4)*32+(i%4)*4}")
    e("s_mov_b64 exec, -1")

def pkmul(q): return [f"v_pk_mul_f32 {v(E[q]+2*i,2)}, {v(E[q]+2*i,2)}, {v(T[q]+2*i,2)}" for i in range(8)]
def mul(q): return [f"v_mul_f32 v{E[q]+i}, v{E[q]+i}, v{T[q]+i}" for i in range(16)]
def cvt(q): return [f"v_cvt_pk_bf16_f32 v{M[c]+a}, v{E[q]+4*a+c}, v{E[q]+4*a+2+c}" for a in range(4) for c in range(2)]

def ramp(start):
    R = OPT.get("ramp")
    if not R: return
    body = e.lines[start:]
    out = ["s_setprio 0"]; n = -1; lvl = 0
    for l in body:
        if n < 0 and l.startswith("v_exp"): n = 0
        if n >= 0 and l.startswith("v_"):
            if lvl < len(R) and n == R[lvl]:
                lvl += 1
                if out[-1] == "s_nop 0": out.pop()
                out.append(f"s_setprio {lvl}")
            n += 1
        out.append(l)
    e.lines[start:] = out

def step(sidx, first=False):
    st0 = len(e.lines)
    step_(sidx, first)
    ramp(st0)

def step_(sidx, first=False):
    q = sidx & 1; n1 = (sidx + 1) & 3
    side = gather((sidx + DEP) & 3, IDX) + [f"ds_read_u16 v{IDX}, v{aIdx} offset:{(sidx+DEP+1)*128}"]
    if sidx == 3:
        side += build3()
    side += opreads(n1)
    if sidx == 0: side += [f"ds_read_b64 {v(REC,2)}, v{aRec} offset:512"]
    if sidx == 1: side += build1()
    if sidx == 2: side += build2()
    if sidx == 3: side += [f"v_add_u32 v{aIdx}, 512, v{aIdx}", f"v_add_u32 v{aRec}, 512, v{aRec}"]
    if sidx == 1: flushchk("mid")
    if OPT["prio"] and not first:
        e(f"s_cmp_gt_u32 s{sCNT}, {OPT['pr'][0]}")
        e(f"s_cbranch_scc0 L_prio{sidx}")
        e.label(f"L_prret{sidx}")
    exps = [f"v_exp_f32 v{E[q]+i}, v{T[q]+i}" for i in range(16)]
    pre = [y for y in side if y is not None and ("sdwa" in y or "readlane" in y or "v_cmp" in y)]
    mem = [y for y in side if y is not None and (y.startswith(("ds_", "buffer_", "s_")) or "bitop3" in y)]
    oth = [y for y in side if y is None or (y not in pre and y not in mem)]
    for y in pre: e(y)
    for y in mem: e(y)
    k = 0
    for i, x in enumerate(exps):
        e(x)
        if k < len(oth):
            if oth[k] is not None: e(oth[k])
            k += 1
    assert k == len(oth)
    addone = f"v_mfma_f32_32x32x8_bf16 {v(E[q],16)}, {v(ONE,2)}, {v(ONE,2)}, {v(E[q],16)}"
    if first:
        e("s_nop 1"); e(addone); e("s_nop 7")
    elif OPT["pk"]:
        for x in pkmul(1 - q): e(x)
        e(addone)
        for x in cvt(1 - q): e(x)
    else:
        mc = mulcvt(1 - q)
        e(mc[0]); e(mc[1]); e(addone)
        for x in mc[2:]: e(x)
    e(f"s_sub_u32 s{sCNT}, s{sCNT}, 1")
    e(f"s_waitcnt vmcnt({2*DEP-2}) lgkmcnt(0)")
    mf = stage1(n1) + ([] if first else stage2((sidx - 1) & 3))
    rc = [f"v_rcp_f32 v{E[q]+i}, v{E[q]+i}" for i in range(16)]
    for i, x in enumerate(rc):
        if i % 3 == 0 and i // 3 < len(mf):
            e(mf[i // 3])
            if i == 0 and (OPT["pk"] or first): e("s_nop 0")
        e(x)
    if first: e("s_nop 0")
    e(f"s_cbranch_scc1 L_evt{sidx}")

def bfaddr():
    return [f"v_ffbl_b32 v5, v{vMask}",
            f"v_add_u32 v6, -1, v{vMask}",
            f"v_min_u32 v5, {OOB//256}, v5",
            f"v_and_b32 v{vMask}, v6, v{vMask}",
            f"v_mul_u32_u24 v5, {ACCS}, v5",
            f"v_add_u32 v{vFB}, v{vFO}, v5"]
e(f"ds_read_u16 v{PI}, v{aIdx}")
e(f"ds_read_b64 {v(REC,2)}, v{aRec}")
for n in range(1, DEP): e(f"ds_read_u16 v{PI+2*n}, v{aIdx} offset:{n*128}")
e(f"ds_read_u16 v{IDX}, v{aIdx} offset:{DEP*128}")
e(f"s_waitcnt lgkmcnt({DEP})")
b1 = build1()
for x in b1[:6]: e(x)
for x in gather(0, PI): e(x)
for x in b1[6:]: e(x)
e("s_waitcnt lgkmcnt(0)")
b2 = build2(); g1 = gather(1, PI + 2)
for x in b2:
    e(x if x else g1.pop(0))
for x in build3(): e(x)
for x in opreads(0): e(x)
e(f"ds_read_b32 v{vMask}, v{vAItem} offset:{LNK}")
e(f"ds_write_b32 v1, v{ZP} offset:{CNT2}")
e("s_waitcnt vmcnt(2) lgkmcnt(4)")
for x in stage1(0): e(x)
for n in range(2, DEP):
    for x in gather(n, PI + 2*n): e(x)
e("s_waitcnt lgkmcnt(0)")
for x in bfaddr(): e(x)
for x in rowaddr(): e(x)
stamp(10)
step(0, first=True)
e("s_branch L_s1")
e.label("L_s0")
step(0)
e.label("L_s1")
step(1)
e.label("L_s2")
step(2)
e.label("L_s3")
step(3)
e("s_branch L_s0")
if OPT["prio"]:
    for sidx in range(4):
        p3, p2, p1 = OPT["pr"]
        e.label(f"L_prio{sidx}")
        e("s_setprio 2")
        e(f"s_cmp_gt_i32 s{sCNT}, {p2}")
        e(f"s_cbranch_scc1 L_prret{sidx}")
        e("s_setprio 1")
        e(f"s_cmp_gt_i32 s{sCNT}, {p1}")
        e(f"s_cbranch_scc1 L_prret{sidx}")
        e("s_setprio 0")
        e(f"s_branch L_prret{sidx}")
for sidx in range(4):
    q = sidx & 1
    e.label(f"L_evt{sidx}")
    e(f"s_cmp_eq_u32 s{srdBP+2}, 0")
    e(f"s_mov_b32 s{srdBP+2}, 0")
    e(f"s_mov_b32 s{sCNT}, {DEP-1}")
    e(f"s_cbranch_scc0 L_s{(sidx+1)&3}")
    e.label(f"L_drain{sidx}")
    if sidx == 0: flushchk("dr")
    for i in range(4): e(f"ds_read_b128 {v(E[1-q]+4*i,4)}, v{vWxa} offset:{WXT+16*i}")
    for i in range(4): e(f"ds_read_b128 {v(T[1-q]+4*i,4)}, v{vWxa} offset:{WXT+64+16*i}")
    for x in pkmul(q) + cvt(q): e(x)
    e(f"s_cmp_lg_u32 s{sSLOW}, 0")
    e("s_nop 0")
    for x in stage2(sidx): e(x)
    e("s_cbranch_scc1 L_slow_final")
    if sidx < 2: e(f"s_branch L_final_flush{q}")
    else:
        e.label(f"L_final_flush{q}")
        stamp(11)
        e("s_waitcnt lgkmcnt(0)")
        e("s_nop 6")
        mmask()
        for i in range(8): e(f"ds_write_b128 v{vRowM}, {v(AC[0]+4*i,4)} offset:{i*32}")
        e("s_mov_b64 exec, -1")
        e(f"v_pk_mul_f32 v[4:5], {v(AC[0],2)}, {v(E[1-q],2)}")
        e(f"v_pk_mul_f32 v[6:7], {v(AC[1],2)}, {v(T[1-q],2)}")
        for i in range(1, 8):
            e(f"v_pk_fma_f32 v[4:5], {v(AC[0]+2*i,2)}, {v(E[1-q]+2*i,2)}, v[4:5]")
            e(f"v_pk_fma_f32 v[6:7], {v(AC[1]+2*i,2)}, {v(T[1-q]+2*i,2)}, v[6:7]")
        e("v_pk_add_f32 v[4:5], v[4:5], v[6:7]")
        e("v_add_f32 v4, v4, v5")
        e(f"ds_write_b32 v{vRowP}, v4 offset:256")
        if sidx == 2: e("s_branch L_b6")
e.label("L_b6")
MR = 16; MB = 32; Y = 40; YE = 48; HU = 56; MX = 64
e(f"s_cmp_lg_u32 s{sMORE}, 0")
e(f"v_cmp_ne_u32 vcc, 0, v{vMask}")
e("s_waitcnt lgkmcnt(0)")
e("s_barrier")
stamp(12)
e("s_cbranch_scc1 L_more")
e(f"s_cmp_ge_u32 s{sW}, 6")
e("s_cbranch_scc1 L_finpos")
for i in range(4):
    e(f"ds_read_b128 {v(MR+4*i,4)}, v{vFA} offset:{(i>>1)*128+(i&1)*16}")
    e(f"ds_read_b128 {v(MX+4*i,4)}, v{vFB} offset:{(i>>1)*128+(i&1)*16}")
for d in range(4):
    e(f"v_lshlrev_b32 v{HU+2*d}, 16, v{HRES+d}")
    e(f"v_and_b32 v{HU+2*d+1}, 0xffff0000, v{HRES+d}")
e(f"s_mov_b32 s60, {NLN2}")
if OPT["otr"]:
    e(f"v_and_b32 v8, 15, v{L}")
    e(f"v_lshrrev_b32 v9, 4, v{L}")
    e("v_lshl_add_u32 v8, v8, 2, v9")
    e(f"v_sub_u32 v8, v8, v{L}")
    e(f"v_lshl_add_u32 v8, v8, 4, v{aR1w}")
e("s_cbranch_vccnz L_finbf_more")
e.label("L_finbf")
for i in range(4):
    e(f"s_waitcnt lgkmcnt({6-2*i})")
    for d in range(2): e(f"v_pk_add_f32 {v(MR+4*i+2*d,2)}, {v(MR+4*i+2*d,2)}, {v(MX+4*i+2*d,2)}")
    for d in range(2): e(f"v_cvt_pk_bf16_f32 v{MB+2*i+d}, v{MR+4*i+2*d}, v{MR+4*i+2*d+1}")
for t in range(2): e(f"v_mfma_f32_16x16x32_bf16 {v(Y+4*t,4)}, {v(WH2+8*t,4)}, {v(MB,4)}, {v(H1+4*t,4)}")
for t in range(2): e(f"v_mfma_f32_16x16x32_bf16 {v(Y+4*t,4)}, {v(WH2+8*t+4,4)}, {v(MB+4,4)}, {v(Y+4*t,4)}")
e("s_nop 6")
for i in range(8): e(f"v_exp_f32 v{YE+i}, v{Y+i}")
for i in range(4): e(f"v_pk_add_f32 {v(YE+2*i,2)}, {v(YE+2*i,2)}, 1.0 op_sel_hi:[1,0]")
for i in range(4): e(f"v_pk_mul_f32 {v(Y+2*i,2)}, {v(Y+2*i,2)}, s[60:61] op_sel_hi:[1,0]")
for i in range(8): e(f"v_rcp_f32 v{YE+i}, v{YE+i}")
for i in range(4):
    e(f"v_pk_fma_f32 {v(HU+2*i,2)}, {v(Y+2*i,2)}, {v(YE+2*i,2)}, {v(HU+2*i,2)}")
for d in range(4): e(f"v_cvt_pk_bf16_f32 v{Y+d}, v{HU+2*d}, v{HU+2*d+1}")
if OPT["otr"]:
    e(f"ds_write_b128 v8, {v(Y,4)}")
    e(f"ds_read_b128 {v(Y,4)}, v{aR1w}")
    e("s_waitcnt lgkmcnt(0)")
e(f"s_mov_b64 exec, {s(sOM,2)}")
e(f"global_store_dwordx4 v{vOA}, {v(Y,4)}, {s(sOUT,2)} {OPT.get('ost','')}")
if OPT.get("ackst"): e("s_waitcnt vmcnt(0)")
stamp(13, last=True)
e("s_endpgm")
e.label("L_finpos")
e(f"ds_read_b64 v[16:17], v{vFA}")
e.label("L_posbf")
e(f"ds_read_b64 v[18:19], v{vFB}")
e("s_waitcnt lgkmcnt(0)")
e("v_add_f32 v16, v16, v18")
e("v_add_f32 v17, v17, v19")
e("s_cbranch_vccnz L_posbf_more")
e("v_add_f32 v16, v16, v17")
e(f"v_add_f32 v{vPosOwn}, v{vPosOwn}, v16")
e(f"v_cvt_pk_bf16_f32 v2, v{vPosOwn}, v{vPosOwn}")
e(f"v_mov_b32 v7, s{sTAG}")
e(f"s_mov_b64 exec, {s(sOM,2)}")
e(f"global_store_short v{vOA}, v2, {s(sOUT,2)} {OPT.get('pst','')}")
if OPT.get("ackst"): e("s_waitcnt vmcnt(0)")
e("s_cmp_lg_u32 s2, 0")
e("s_cbranch_scc1 L_noep")
e("s_mov_b64 exec, 1")
e(f"global_store_dword v{ZP}, v7, {s(sWS,2)}")
e.label("L_noep")
stamp(13, last=True)
e("s_endpgm")
for lbl in ("mid", "dr"):
    e.label(f"L_flush_{lbl}")
    flush_slow()
    e("s_waitcnt lgkmcnt(0)")
    for i in range(32): e(f"v_mov_b32 v{AC[0]+i}, 0")
    e(f"s_mov_b32 s{sBASE}, s{sNF}")
    e(f"s_mov_b32 s{sSLOW}, 1")
    for x in rowaddr(): e(x)
    e(f"s_branch L_flret_{lbl}")
e.label("L_slow_final")
flush_slow()
e("s_branch L_b6")
e.label("L_finbf_more")
e("s_waitcnt lgkmcnt(0)")
for i in range(16): e(f"v_add_f32 v{MR+i}, v{MR+i}, v{MX+i}")
for x in bfaddr(): e(x)
for i in range(4): e(f"ds_read_b128 {v(MX+4*i,4)}, v{vFB} offset:{(i>>1)*128+(i&1)*16}")
e(f"v_cmp_ne_u32 vcc, 0, v{vMask}")
e("s_waitcnt lgkmcnt(0)")
e("s_cbranch_vccnz L_finbf_more")
e("s_branch L_finbf")
e.label("L_posbf_more")
for x in bfaddr(): e(x)
e(f"v_cmp_ne_u32 vcc, 0, v{vMask}")
e("s_branch L_posbf")
e.label("L_pollout")
e(f"s_mov_b32 s{sBUD}, 0")
e("s_branch L_gotoff")
e.label("L_stale")
e(f"s_cmp_eq_u32 s{sBUD}, 0")
e("s_cbranch_scc1 L_gotrec")
e(f"s_sub_u32 s{sBUD}, s{sBUD}, 1")
presets()
e("s_branch L_fetch")
e.label("L_pad0")
e("v_mov_b32 v8, v1")
e("v_mov_b32 v9, 10000")
e("s_mov_b64 exec, vcc")
e.label("L_pad")
e("v_add_u32 v7, v6, v2")
e("v_add_u32 v2, 8, v2")
e(f"ds_write_b64 v7, v[8:9] offset:{SORT2}")
e("v_cmp_lt_u32 vcc, v2, v4")
e("s_and_b64 exec, vcc, vcc")
e("s_cbranch_scc1 L_pad")
e("s_mov_b64 exec, -1")
e("s_branch L_nopad")
e.label("L_more")
e("s_waitcnt vmcnt(0)")
e(f"s_add_u32 s{sR0}, s{sR0}, s{sS}")
e(f"s_mov_b32 s{sS}, 256")
e.label("L_batch")
e(f"s_mov_b64 {s(sPF,2)}, 0")
e("s_setprio 0")
e(f"s_mov_b32 s{srdBP+2}, 10000")
batchsetup(True)
e("s_branch L_fetch")
e.label("L_redo")
e(f"s_cmp_eq_u32 s{sS}, {SFALL}")
e("s_cbranch_scc1 L_end")
e("s_waitcnt vmcnt(0) lgkmcnt(0)")
e("s_barrier")
e(f"ds_write_b32 v1, v{ZP} offset:{CNT2}")
e(f"s_mov_b32 s{sS}, {SFALL}")
e("s_waitcnt lgkmcnt(0)")
e("s_barrier")
e("s_branch L_batch")
e.label("L_end")
e("s_endpgm")

probs = check_cfg(e.lines)
for p in probs: print("HAZARD", p, file=sys.stderr)

ref = open("cdna_kernels/" + KN + ".s.ref").read().split("\n")
hdr = []
for l in ref:
    if l.startswith("; Override launch"): break
    hdr.append(l)
out = "\n".join(hdr) + f"""
; One persistent launch: 250 workgroups (one per CU) bin the edges by destination bucket, hand the bins
; over through d_ws (tagged with a per-launch epoch), then each workgroup updates its 40 nodes.
; @launch grid=({NWG},1,1) block=(512,1,1) lds={LDS_SIZE}
.amdgcn_target "amdgcn-amd-amdhsa--gfx950"
.text
.globl {KN}_kernel
.p2align 8
.type {KN}_kernel,@function
{KN}_kernel:
{e.text()}.section .rodata,"a"
.p2align 6
.amdhsa_kernel {KN}_kernel
  .amdhsa_next_free_vgpr 256
  .amdhsa_next_free_sgpr 102
  .amdhsa_accum_offset 256
  .amdhsa_group_segment_fixed_size 0
  .amdhsa_kernarg_size 88
  .amdhsa_user_sgpr_count 2
  .amdhsa_user_sgpr_kernarg_segment_ptr 1
  .amdhsa_system_sgpr_workgroup_id_x 1
  .amdhsa_float_denorm_mode_32 3
.end_amdhsa_kernel
"""
open(sys.argv[1], "w").write(out)
print("wrote", sys.argv[1], len(e.lines), "lines;", len(probs), "hazards", file=sys.stderr)
```

```python
import sys, struct
from asmlib import Emit, v, s, check_cfg

KN = "standalone__cheap_equivariant_egnn__graph"
OPT = dict(stamps=False, ramp=(3, 16, 34), bpf=1, pollat=1, lcat="win", posat=(1,0), poslo=0)
for a in sys.argv[2:]:
    k, _, val = a.partition("=")
    try: OPT[k] = eval(val) if val else True
    except Exception: OPT[k] = val

def fbits(x): return struct.unpack("<I", struct.pack("<f", x))[0]
LOG2E = 1.4426950408889634; LN2 = 0.6931471805599453
NL2E = hex(fbits(-LOG2E)); NLN2 = hex(fbits(-LN2))

NWG = 250; CH = 2560; NB = 40; DEP = 2
CHB = 13696
CNT1 = 0x0; OFF1 = 0x400; CNT2 = 0x800; LNK = 0x900; BASE2 = 0xA00; PD = 0xB00; WXT = 0xE00
R2 = 0x1000; STG = R2; STB = STG + 16384; ACC = R2 + 32768; ACCS = 304
BF = ACC + NB * ACCS; AT = BF + 8 * ACCS; ATS = 104; WL = AT + 64 * ATS; WXL = WL + 256
POS = WL + 384; SORT2 = POS + 61440; CAPB = 4400 * 8; R1 = SORT2 + CAPB + 512; LDS_END = R1 + 8192
PADB = 32 * 8; NARROW = 48
assert NWG * 9 * 8 + NB * PADB <= CAPB and POS + 4 < 65536
WE = SORT2; WH = WE + 16384; HB = WH + 16384
OOB = 0x100000
LDS_SIZE = 163840
assert LDS_END <= LDS_SIZE and HB + 6144 <= LDS_END and R2 % 64 == 0 and WE % 128 == 0
WS_OFF = 0x10000; WS_BP = 0x80000; WS_REC = 0x200000; WS_STAMP = 0x1000000
TAGC = 0x9E3779B1; M3 = 0xFF030303
sH, sPOS, sE, sSRC, sDST, sWE, sWX, sWH, sOUT, sDBG, sWS = 4, 6, 8, 10, 12, 14, 16, 18, 20, 22, 24
sW, sB = 26, 27
srdBP, srdPOS, srdH = 28, 32, 36
sTAG, sMULTI, sBUD, sWID, sM01, sN0, sNG, sCHF = 40, 41, 42, 43, 44, 45, 46, 47
sOHC, sNFW, sNLW, sCNT, sBASE, sNF, sNL, sNEG, sMORE, sVAL = 48, 50, 51, 52, 53, 54, 55, 56, 57, 58
sT = 36
sOM = 4; sPF = 6; sRB = 8; sSLOW = 16; sANYB = 17; sC10K = 18
sMK = 64
T = [16, 32]; E = [48, 64]; AC = [80, 96]; M = [112, 116]; G = [120, 128]; S = [152, 156, 160, 164]
R1OP = 168; WX = 172; I0 = 176; I1 = 180; ONE = 184; IDX = 186
aIdx, aRec, aR1r, aS0, aS1, aR1w, aR2b, aR2, aATb, aAT = 188, 189, 190, 191, 192, 193, 194, 195, 196, 197
vRowM, vRowP = 198, 199
REC = 200; R2V = 204; PS = 206; vSrc = 208; vFO = 209; PDV = 210; BT = 213; ZP = 216; vIdxL = 218; vFA = 219
SEG = 220; vMask = 224; vWxa = 225; H1 = 226; vPosOwn = 230; HRES = 234; WH2 = 238; vLane = 254; vAItem = 255
vOA = 12; vFB = 3
L = vLane
SD = "dst_sel:DWORD dst_unused:UNUSED_PAD"

e = Emit()
def stamp(i, last=False, wait=False):
    if OPT.get("diag") is not None:
        if i == 0:
            e("s_memrealtime s[98:99]\ns_waitcnt lgkmcnt(0)\ns_mov_b32 s100, s98\ns_mov_b32 s101, s98")
        elif i == OPT["diag"]:
            e("s_memrealtime s[98:99]\ns_waitcnt lgkmcnt(0)\ns_mov_b32 s101, s98")
        if last:
            stamp.n = getattr(stamp, "n", 0) + 1
            e("s_sub_u32 s101, s101, s100\ns_lshl_b32 s101, s101, 2\ns_add_u32 s101, s101, 3000")
            e.label(f"L_spin{stamp.n}")
            e("s_memrealtime s[98:99]\ns_waitcnt lgkmcnt(0)\ns_sub_u32 s98, s98, s100\ns_cmp_lt_u32 s98, s101")
            e(f"s_cbranch_scc1 L_spin{stamp.n}")
        return
    if not OPT["stamps"]: return
    if wait: e("s_waitcnt lgkmcnt(0)")
    if i > 0:
        e("s_mov_b32 m0, s101\nv_writelane_b32 v15, s98, m0\nv_writelane_b32 v14, s22, m0")
    e("s_memrealtime s[98:99]")
    if i > 0: e("s_memtime s[22:23]")
    e(f"s_mov_b32 s101, {i}")
    if i in (6, 7, 9): e(f"v_writelane_b32 v15, s{sBUD}, {16+i}")
    if i == 10: e(f"s_add_u32 s100, s{sCNT}, {DEP-4}\nv_writelane_b32 v15, s100, 26")
    if last:
        e("s_mov_b64 exec, -1\ns_waitcnt lgkmcnt(0)")
        e(f"v_writelane_b32 v15, s98, {i}\nv_writelane_b32 v14, s22, {i}")
        e(f"s_lshl_b32 s100, s2, 3\ns_add_u32 s100, s100, s{sW}\ns_lshl_b32 s100, s100, 7\ns_add_u32 s100, s100, {WS_STAMP}")
        e(f"v_lshl_add_u32 v13, v{L}, 2, s100\ns_mov_b32 exec_hi, 0")
        e(f"global_store_dword v13, v15, {s(sWS,2)}\nv_add_u32 v13, 0x100000, v13\nglobal_store_dword v13, v14, {s(sWS,2)}")

def fine(i):
    if OPT.get("fine"): e(f"s_memtime s[{72+2*i}:{73+2*i}]")
def finedump(n):
    if OPT.get("fine"):
        for i in range(n): e(f"s_nop 0\nv_writelane_b32 v14, s{72+2*i}, {16+i}")
def scan(r, fill=()):
    fill = list(fill)
    for m in ("row_shr:1 row_mask:0xf bank_mask:0xf bound_ctrl:1", "row_shr:2 row_mask:0xf bank_mask:0xf bound_ctrl:1",
              "row_shr:4 row_mask:0xf bank_mask:0xf bound_ctrl:1", "row_shr:8 row_mask:0xf bank_mask:0xf bound_ctrl:1",
              "row_bcast:15 row_mask:0xa bank_mask:0xf", "row_bcast:31 row_mask:0xc bank_mask:0xf"):
        if len(fill) >= 2:
            e(fill.pop(0)); e(fill.pop(0))
        else: e("s_nop 1")
        e(f"v_add_u32_dpp v{r}, v{r}, v{r} {m}")
    assert not fill

DSTR = 16; SRCR = 24; ER = 32; XB = 36; QQ = 42; B4 = 48; RK = 56
WA0 = 64; WA1 = 65; WA2 = 66; HA = 67; CA0 = 68; PBA = 69; TCH = 70; vTG = 71; HF = 72
WT = 80; DT = 112; W1T = 128; aWH = 144; aWT = 148; PB = 152; ZQ = 156
stamp(0)
e(f"s_cmp_ge_u32 s2, {NWG}")
e("s_cbranch_scc1 L_end")
e("s_load_dwordx16 s[4:19], s[0:1], 0")
e("s_load_dwordx4 s[20:23], s[0:1], 64")
e("s_load_dwordx2 s[24:25], s[0:1], 80")
e("s_getpc_b64 s[62:63]")
e.label("L_pc")
e("v_lshlrev_b32 v5, 5, v0")
e("v_min_u32 v5, L_end-L_pc, v5")
e("s_mov_b32 exec_lo, 0x11111111")
e("s_mov_b32 exec_hi, 0x11111111")
e(f"global_load_dword v{TCH}, v5, s[62:63]")
e("s_mov_b64 exec, -1")
e(f"s_mul_i32 s3, s2, {CH*4}")
e("v_lshl_add_u32 v8, v0, 4, s3")
e(f"s_add_u32 s60, s3, 8192")
e("v_lshl_add_u32 v9, v0, 2, s60")
e("s_lshr_b32 s3, s3, 1")
e("v_lshl_add_u32 v10, v0, 3, s3")
e("s_add_u32 s60, s3, 4096")
e("v_lshl_add_u32 v11, v0, 1, s60")
e("v_lshrrev_b32 v5, 6, v0")
e(f"v_and_b32 v{L}, 63, v0")
e(f"v_readfirstlane_b32 s{sW}, v5")
e(f"v_mov_b32 v{ZP}, 0")
e(f"v_mov_b32 v{ZP+1}, 0")
e("v_lshlrev_b32 v12, 4, v0")
e("v_lshlrev_b32 v5, 3, v0")
e(f"ds_write_b64 v5, {v(ZP,2)}")
e("s_and_b32 s60, s2, 7")
e(f"s_mul_i32 s{sB}, s60, 31")
e("s_min_u32 s60, s60, 2")
e(f"s_add_u32 s{sB}, s{sB}, s60")
e("s_lshr_b32 s96, s2, 3")
e(f"s_add_u32 s{sB}, s{sB}, s96")
e(f"s_mul_i32 s{sN0}, s{sB}, {NB}")
e(f"v_and_b32 v5, 16, v{L}")
e("v_and_b32 v6, 64, v0")
e("v_lshl_or_b32 v5, v5, 1, v6")
e(f"v_xor_b32 v{WA0}, v5, v12")
e(f"v_add_u32 v{WA1}, 8192, v{WA0}")
e(f"v_lshlrev_b32 v5, 1, v{L}")
e(f"s_lshl_b32 s60, s{sN0}, 7")
e("v_and_b32 v5, 0x70, v5")
e(f"v_xad_u32 v{HA}, v5, v12, s60")
e(f"s_lshl_b32 s60, s{sW}, 10")
e(f"s_add_u32 m0, s60, {WE+8192}")
e("s_waitcnt lgkmcnt(0)")
e(f"global_load_dwordx4 {v(DSTR,4)}, v8, {s(sDST,2)}")
e(f"global_load_dword v{DSTR+4}, v9, {s(sDST,2)}")
e(f"s_mov_b32 s{srdH}, s{sH}")
e(f"s_and_b32 s{srdH+1}, s{sH+1}, 0xffff")
e(f"s_mov_b32 s{srdH+2}, 1280000")
e(f"s_mov_b32 s{srdH+3}, 0x20000")
e(f"s_cmp_ge_u32 s{sW}, 6")
e(f"global_load_lds_dwordx4 v{WA1}, {s(sWE,2)}")
e("s_cbranch_scc1 L_d67")
e(f"s_add_u32 m0, s60, {HB}")
e("s_nop 0")
e(f"buffer_load_dwordx4 v{HA}, {s(srdH,4)}, 0 offen lds")
e("s_branch L_ddone")
e.label("L_d67")
e(f"s_add_u32 s62, s{sWE}, 16384")
e(f"s_addc_u32 s63, s{sWE+1}, 0")
e(f"v_lshlrev_b32 v5, 4, v{L}")
e(f"s_cmp_eq_u32 s{sW}, 7")
e(f"s_cselect_b64 s[62:63], {s(sWX,2)}, s[62:63]")
e(f"s_cselect_b32 s61, 256, 0")
e(f"s_cselect_b32 s97, 8, 16")
e(f"s_add_u32 m0, s61, {WL}")
e("s_bfm_b64 exec, s97, 0")
e(f"global_load_lds_dwordx4 v5, s[62:63]")
e("s_mov_b64 exec, -1")
e.label("L_ddone")
e("s_barrier")
e(f"global_load_dwordx4 {v(SRCR,4)}, v8, {s(sSRC,2)}")
e(f"global_load_dword v{SRCR+4}, v9, {s(sSRC,2)}")
e(f"global_load_dwordx2 {v(ER,2)}, v10, {s(sE,2)}")
e(f"global_load_short_d16_hi v{ER+2}, v11, {s(sE,2)}")
e(f"global_load_dword v{vTG}, v{ZP}, {s(sWS,2)}")
stamp(1)
for i in range(4): e(f"v_mov_b32 v{ZQ+i}, 0")
e(f"ds_write_b128 v{ZP}, {v(ZQ,4)} offset:{STG+853*16}")
e(f"s_mul_i32 s{sCHF}, s{sW}, 86")
e(f"s_lshr_b32 s{sCHF}, s{sCHF}, 8")
e(f"s_mul_i32 s61, s{sCHF}, 3")
e(f"s_sub_u32 s{sNG}, s{sW}, s61")
e(f"s_and_b32 s61, s{sW}, 3")
e("s_lshl_b32 s61, s61, 1")
e(f"s_lshr_b32 s62, s{sW}, 2")
e("s_add_u32 s61, s61, s62")
e("s_lshl_b32 s61, s61, 8")
e("s_add_u32 s61, s61, 8192")
e(f"v_and_b32 v5, 0x70, v{WA0}")
e(f"v_bfe_u32 v6, v{L}, 3, 2")
e("v_lshl_add_u32 v5, v6, 11, v5")
e(f"v_lshrrev_b32 v6, 5, v{L}")
e("v_lshl_add_u32 v5, v6, 7, v5")
e(f"v_add_u32 v{WA2}, s61, v5")
e(f"v_and_b32 v1, 15, v{L}")
e(f"v_lshrrev_b32 v3, 4, v{L}")
e(f"s_lshl_b32 s61, s{sNG}, 11")
e(f"s_add_u32 s61, s61, {HB}")
e(f"v_and_b32 v2, 7, v{L}")
e("v_xor_b32 v2, v2, v3")
e("v_lshl_add_u32 v4, v1, 7, s61")
e(f"v_lshl_add_u32 v{aWH+1}, v2, 4, v4")
e(f"v_xor_b32 v{aWH+2}, 64, v{aWH+1}")
e(f"v_bfe_u32 v6, v{L}, 2, 2")
e(f"v_and_b32 v2, 3, v{L}")
e("v_lshl_add_u32 v4, v3, 3, v6")
e(f"v_lshlrev_b32 v7, 2, v{L}")
e("v_and_b32 v7, 0x60, v7")
e(f"s_xor_b32 s61, s{sCHF}, 1")
e("s_lshl_b32 s61, s61, 13")
e(f"s_add_u32 s61, s61, {WE}")
e("v_lshl_add_u32 v5, v4, 7, s61")
e("v_lshl_add_u32 v5, v2, 3, v5")
e(f"v_xor_b32 v{aWT}, v7, v5")
for t in range(1, 4): e(f"v_xor_b32 v{aWT+t}, {32*t}, v{aWT}")
e(f"s_lshl_b32 s61, s{sCHF}, 6")
e(f"s_add_u32 s61, s61, {WH}")
e("v_lshl_add_u32 v6, v2, 4, s61")
e("v_lshl_add_u32 v5, v4, 7, v6")
e(f"v_xor_b32 v{aWH}, v7, v5")
e(f"s_lshl_b32 s61, s{sNG}, 4")
e(f"s_add_u32 s61, s61, s{sN0}")
e("s_lshl_b32 s61, s61, 7")
e(f"s_add_u32 s61, s61, {WS_BP}")
e("v_lshl_add_u32 v2, v3, 9, s61")
e(f"v_lshl_add_u32 v{aWH+3}, v1, 3, v2")
e(f"v_lshrrev_b32 v1, 5, v{L}")
e(f"v_and_b32 v7, 3, v{L}")
e(f"v_bfe_u32 v6, v{L}, 3, 2")
e("v_lshlrev_b32 v6, 2, v6")
e("v_lshl_add_u32 v7, v7, 4, v6")
e(f"v_bfe_u32 v6, v{L}, 2, 1")
e("v_add_u32 v7, v7, v6")
e("v_lshl_add_u32 v7, v1, 1, v7")
e(f"v_lshlrev_b32 v{CA0}, 1, v7")
e(f"v_mul_u32_u24 v{aATb}, {ATS}, v7")
e(f"v_add_u32 v{aATb}, {AT}, v{aATb}")

def laneconsts():
    assert R2 + 6*8192 >= AT and R2 + 5*8192 <= AT
    for i in range(3, 5): e(f"ds_write_b128 v12, {v(ZQ,4)} offset:{R2+i*8192}")
    e(f"v_cmp_gt_u32 vcc, {(AT - R2 - 5*8192)//16}, v0")
    e("s_mov_b64 exec, vcc")
    e(f"ds_write_b128 v12, {v(ZQ,4)} offset:{R2+5*8192}")
    e("s_mov_b64 exec, -1")
    e(f"s_add_u32 s{srdBP}, s{sWS}, {WS_BP}")
    e(f"s_addc_u32 s{srdBP+1}, s{sWS+1}, 0")
    e(f"s_and_b32 s{srdBP+1}, s{srdBP+1}, 0xffff")
    e(f"s_or_b32 s{srdBP+1}, s{srdBP+1}, 0x800000")
    e(f"s_mov_b32 s{srdBP+2}, 10000")
    e(f"s_mov_b32 s{srdBP+3}, 0x20000")
    e(f"s_mov_b32 s{sMULTI}, 0")
    e(f"s_mov_b32 s{sOHC}, 0x3f80")
    e(f"s_mov_b32 s{sOHC+1}, 0")
    e(f"s_movk_i32 s{sWID}, 0x80")
    e(f"v_lshrrev_b32 v1, 5, v{L}")
    e(f"v_and_b32 v2, 1, v{L}")
    e(f"v_lshlrev_b32 v{vWxa}, 7, v1")
    e(f"v_lshlrev_b32 v3, 5, v1")
    e(f"v_lshl_add_u32 v{IDX+1}, v2, 4, v3")
    e(f"v_bfe_u32 v4, v{L}, 3, 2")
    e(f"v_bfe_u32 v5, v{L}, 1, 1")
    e("v_lshl_add_u32 v4, v4, 1, v5")
    e(f"v_bfe_u32 v5, v{L}, 2, 1")
    e("v_lshl_add_u32 v4, v5, 3, v4")
    e(f"v_lshlrev_b32 v{vIdxL}, 3, v4")
    e(f"s_lshl_b32 s61, s{sW}, 10")
    e(f"s_add_u32 s61, s61, {R1}")
    e(f"v_lshl_add_u32 v{aR1r}, v4, 4, s61")
    e("v_xor_b32 v5, v1, v2")
    e(f"v_lshl_add_u32 v{aR1r}, v5, 20, v{aR1r}")
    e(f"v_lshl_add_u32 v{aR1w}, v{L}, 4, s61")
    e(f"s_lshl_b32 s61, s{sW}, 12")
    e(f"s_add_u32 s61, s61, {R2}")
    e(f"v_bfe_u32 v3, v{L}, 1, 3")
    e(f"v_lshl_add_u32 v4, v{L}, 6, s61")
    e(f"v_lshl_add_u32 v{aR2b}, v3, 3, v4")
    e(f"v_mov_b32 v{aR2}, v{aR2b}")
    e(f"v_bfe_u32 v3, v{L}, 2, 2")
    e(f"v_and_b32 v4, 3, v{L}")
    e(f"v_bfe_u32 v5, v{L}, 4, 1")
    e("v_lshl_add_u32 v5, v5, 2, v4")
    e("v_lshrrev_b32 v7, 1, v3")
    e("v_lshl_add_u32 v7, v1, 2, v7")
    e("v_xor_b32 v5, v5, v7")
    e("v_lshl_add_u32 v7, v1, 3, v3")
    e("v_lshl_add_u32 v7, v7, 6, s61")
    e(f"v_lshl_add_u32 v{aS0}, v5, 3, v7")
    e(f"v_xor_b32 v{aS1}, 16, v{aS0}")
    e(f"v_add_u32 v{aS1}, 256, v{aS1}")
    e(f"v_and_b32 v4, 31, v{L}")
    e("v_lshlrev_b32 v7, 3, v1")
    e("v_sub_u32 v7, v4, v7")
    e("v_lshlrev_b32 v4, 4, v2")
    e(f"v_lshlrev_b32 v4, v4, s{sOHC}")
    e("v_ashrrev_i32 v7, 1, v7")
    for u, I in ((0, I0), (1, I1)):
        for d in range(4): e(f"v_cmp_eq_u32 {s(sMK+2*d,2)}, {8*u+d}, v7")
        for d in range(4): e(f"v_cndmask_b32 v{I+d}, 0, v4, {s(sMK+2*d,2)}")
    e("v_xor_b32 v7, 1, v1")
    e(f"v_mul_u32_u24 v{ONE}, 0x3f80, v7")
    e(f"v_mov_b32 v{ONE+1}, 0")
if OPT["lcat"] == "start": laneconsts()
e("v_mov_b32 v13, 1")
e("s_mov_b32 s61, 52429")
e("s_movk_i32 s62, -40")
e(f"v_lshlrev_b32 v1, 4, v{L}")
e(f"s_lshl_b32 s63, s2, 10")
e(f"s_add_u32 s63, s63, {WS_OFF}")
e(f"v_add_u32 v{PBA}, s63, v1")
e("s_waitcnt vmcnt(7)")
stamp(14, wait=True)
for i in range(5): e(f"v_mul_u32_u24 v{B4+i}, s61, v{DSTR+i}")
for i in range(5): e(f"v_lshrrev_b32 v{B4+i}, 21, v{B4+i}")
for i in range(5):
    e(f"v_lshlrev_b32 v{B4+i}, 2, v{B4+i}")
    e(f"ds_add_rtn_u32 v{RK+i}, v{B4+i}, v13 offset:{CNT1}")
e(f"s_cmp_ge_u32 s{sW}, 3")
e("s_waitcnt vmcnt(5) lgkmcnt(0)")
e("s_barrier")
stamp(2)
def nodeprod_reads():
    e(f"ds_read_b128 {v(HF,4)}, v{aWH+1}")
    e(f"ds_read_b128 {v(HF+4,4)}, v{aWH+2}")
    for t in range(4):
        for ks in range(2):
            for rd in range(2):
                e(f"ds_read_b64_tr_b16 {v(WT+8*t+4*ks+2*rd,2)}, v{aWT+t} offset:{ks*4096+rd*512}")
def nodeprod(extra=0):
    e(f"s_mov_b32 s96, {NL2E}")
    for t in range(4):
        e(f"s_waitcnt lgkmcnt({12-4*t+extra})")
        e(f"v_mfma_f32_16x16x32_bf16 {v(DT+4*t,4)}, {v(HF,4)}, {v(WT+8*t,4)}, 0")
        e(f"v_mfma_f32_16x16x32_bf16 {v(DT+4*t,4)}, {v(HF+4,4)}, {v(WT+8*t+4,4)}, {v(DT+4*t,4)}")
def nodescale():
    for i in range(8): e(f"v_pk_mul_f32 {v(DT+2*i,2)}, {v(DT+2*i,2)}, s[96:97] op_sel_hi:[1,0]")
def wdma():
    for base, a, ptr in ((WE, WA0, sWE), (WH, WA0, sWH), (WH+8192, WA2, sWH)):
        e(f"s_add_u32 m0, s60, {base}")
        e("s_nop 0")
        e(f"global_load_lds_dwordx4 v{a}, {s(ptr,2)}")
e("s_cbranch_scc1 L_nobp")
nodeprod_reads()
e(f"ds_read_b128 v[4:7], v1 offset:{CNT1}")
wdma()
nodeprod(1)
e(f"s_cmp_eq_u32 s{sNG}, 2")
e("s_cselect_b32 s63, 0, -1")
nodescale()
for r in range(4):
    e(f"v_cvt_pk_bf16_f32 v{WT+2*r}, v{DT+r}, v{DT+4+r}")
    e(f"v_cvt_pk_bf16_f32 v{WT+2*r+1}, v{DT+8+r}, v{DT+12+r}")
e("s_mov_b32 exec_hi, s63")
for r in range(4): e(f"global_store_dwordx2 v{aWH+3}, {v(WT+2*r,2)}, {s(sWS,2)} offset:{r*128} sc1")
e("s_mov_b64 exec, -1")
e("s_branch L_bpdone")
e.label("L_nobp")
e(f"ds_read_b128 v[4:7], v1 offset:{CNT1}")
wdma()
e.label("L_bpdone")
fine(0)
e("s_waitcnt lgkmcnt(0)")
fine(1)
e("v_add_u32 v5, v4, v5")
e("v_add_u32 v6, v5, v6")
e("v_add_u32 v7, v6, v7")
e("v_mov_b32 v3, v7")
scan(3, [f"v_lshlrev_b32 v{XB+i}, 2, v{DSTR+i}" for i in range(5)] +
        [f"v_mad_i32_i24 v{XB+i}, v{B4+i}, s62, v{XB+i}" for i in range(5)] +
        ["s_mov_b32 s63, 0xffff0000", "s_movk_i32 s61, 21846"])
e("v_sub_u32 v8, v3, v7")
e("v_add_u32 v9, v8, v4")
e("v_add_u32 v10, v8, v5")
e("v_add_u32 v11, v8, v6")
e(f"ds_write_b128 v1, v[8:11] offset:{OFF1}")
for i in range(5): e(f"ds_read_b32 v{B4+i}, v{B4+i} offset:{OFF1}")
fine(2)
e(f"s_cmp_ge_u32 s{sW}, 3")
e("s_waitcnt vmcnt(8)")
e("s_cbranch_scc0 L_srcin")
e("s_waitcnt vmcnt(4)")
e.label("L_srcin")
fine(3)
e(f"v_lshl_or_b32 v{SRCR}, v{ER}, 16, v{SRCR}")
e(f"v_and_or_b32 v{SRCR+1}, v{ER}, s63, v{SRCR+1}")
e(f"v_lshl_or_b32 v{SRCR+2}, v{ER+1}, 16, v{SRCR+2}")
e(f"v_and_or_b32 v{SRCR+3}, v{ER+1}, s63, v{SRCR+3}")
e(f"v_or_b32 v{SRCR+4}, v{ER+2}, v{SRCR+4}")
for i in range(5):
    e(f"s_waitcnt lgkmcnt({4+i})")
    e(f"v_add_u32 v{B4+i}, v{B4+i}, v{RK+i}")
    e(f"v_mul_u32_u24 v{QQ+i}, s61, v{B4+i}")
    e(f"v_add_u32_sdwa v{QQ+i}, v{B4+i}, v{QQ+i} {SD} src0_sel:DWORD src1_sel:WORD_1")
    e(f"v_lshlrev_b32 v{RK+i}, 2, v{QQ+i}")
    e(f"ds_write_b8 v{QQ+i}, v{XB+i} offset:{STB}")
    e(f"ds_write_b32 v{RK+i}, v{SRCR+i} offset:{STG}")
fine(4)
e(f"s_cmp_lg_u32 s{sW}, 7")
e("s_cbranch_scc1 L_nopb")
for r in (8, 9, 10, 11, 3):
    e(f"v_mul_u32_u24 v2, s61, v{r}")
    e("v_lshrrev_b32 v2, 16, v2")
    e(f"v_add_lshl_u32 v{r}, v{r}, v2, 2")
e(f"v_lshl_or_b32 v{PB}, v9, 16, v8")
e(f"v_lshl_or_b32 v{PB+1}, v11, 16, v10")
e(f"v_mov_b32 v{PB+2}, v3")
e.label("L_nopb")
e(f"s_mul_i32 s60, s2, {CHB}")
e(f"s_add_u32 s60, s60, {WS_REC+4096}")
e("v_add_u32 v2, s60, v12")
e("v_add_u32 v3, 8192, v2")
e(f"v_cmp_gt_u32 vcc, {(CHB-12288)//16}, v0")
e("v_lshlrev_b32 v4, 2, v0")
e("v_mov_b32 v5, 0xfcfcfc")
fine(5)
e("s_waitcnt vmcnt(0)")
fine(6)
e(f"v_readfirstlane_b32 s{sTAG}, v{vTG}")
e(f"v_add_u32 v{PB+3}, {TAGC}, v{vTG}")
e(f"s_add_u32 s{sTAG}, s{sTAG}, {TAGC}")
e(f"s_and_b32 s{sT}, s{sTAG}, 0xc000")
e(f"s_lshl_b32 s60, s{sTAG}, 2")
e(f"s_and_b32 s{sT+1}, s60, 0xc000")
e(f"s_lshl_b32 s60, s{sTAG}, 4")
e(f"s_and_b32 s{sT+2}, s60, 0xc000")
e(f"s_and_b32 s{sT+3}, s{sTAG}, {M3}")
e(f"s_cmp_ge_u32 s{sW}, 4")
e("s_waitcnt lgkmcnt(0)")
fine(7)
e("s_barrier")
stamp(3)
ST = 48
e("s_cbranch_scc1 L_nost")
for i in range(4):
    e(f"ds_read_b128 {v(ST+4*i,4)}, v12 offset:{STG+i*4096}")
    e(f"ds_read_b32 v{8+i}, v4 offset:{STB+i*1024}")
for i, (a, o) in enumerate(((2, -4096), (2, 0), (3, -4096), (3, 0))):
    e(f"s_waitcnt lgkmcnt({6-2*i})")
    for k in range(3): e(f"v_or_b32 v{ST+4*i+k}, s{sT+k}, v{ST+4*i+k}")
    e(f"v_and_or_b32 v{ST+4*i+3}, v{8+i}, v5, s{sT+3}")
    if i == 3: e("s_mov_b64 exec, vcc")
    e(f"global_store_dwordx4 v{a}, {v(ST+4*i,4)}, {s(sWS,2)} offset:{o} sc1")
e("s_mov_b64 exec, -1")
for i in range(4): e(f"ds_write_b128 v12, {v(ZQ,4)} offset:{STG+i*4096}")
for i in range(4): e(f"ds_write_b32 v4, v{ZP} offset:{STB+i*1024}")
e(f"ds_write_b128 v12, {v(ZQ,4)} offset:{STB+4096}")
e.label("L_nost")
e(f"s_cmp_lg_u32 s{sW}, 7")
e("s_cbranch_scc1 L_nopub")
e(f"global_store_dwordx4 v{PBA}, {v(PB,4)}, {s(sWS,2)} sc1")
e.label("L_nopub")
stamp(15, wait=True)
finedump(8)
PL = 160; vPA = 164; vPW = 165
def posdma(lo):
    e(f"s_cmp_lt_u32 s{sW}, 4")
    e(f"s_cbranch_scc{0 if lo else 1} L_nopos")
    e(f"s_and_b32 s97, s{sW}, 3")
    e("s_mul_i32 s97, s97, 15360")
    e(f"v_lshlrev_b32 v1, 4, v{L}")
    for g_ in range(4):
        if g_: e("s_add_u32 s97, s97, 4096")
        e(f"s_add_u32 m0, s97, {POS}")
        e("s_nop 0")
        for i in range(4 if g_ < 3 else 3): e(f"buffer_load_dwordx4 v1, {s(srdPOS,4)}, s97 offen offset:{i*1024} lds")
    e.label("L_nopos")
def site(n):
    if OPT["posat"] == (n, 0): posdma(OPT["poslo"])
    if OPT["pollat"] == n: pollsetup()
    if OPT["posat"] == (n, 1): posdma(OPT["poslo"])
def pollsetup():
    e("v_and_b32 v1, 255, v0")
    e(f"s_lshr_b32 s60, s{sB}, 2")
    e("s_lshl_b32 s60, s60, 4")
    e(f"s_add_u32 s60, s60, {WS_OFF}")
    e(f"v_lshl_add_u32 v{vPA}, v1, 10, s60")
    e(f"s_cmp_lt_u32 s{sW}, 4")
    e("s_cbranch_scc1 L_nops")
    e(f"v_cmp_gt_u32 vcc, {NWG}, v1")
    for i in range(3): e(f"v_mov_b32 v{PL+i}, 0")
    e(f"v_mov_b32 v{PL+3}, s{sTAG}")
    e(f"v_lshlrev_b32 v{vPW}, 2, v1")
    e("s_mov_b64 exec, vcc")
    e(f"global_load_dwordx4 {v(PL,4)}, v{vPA}, {s(sWS,2)} sc1")
    e("s_mov_b64 exec, -1")
    e.label("L_nops")
e(f"s_mov_b32 s{sBUD}, 2000000")
e(f"s_mov_b32 s{srdPOS}, s{sPOS}")
e(f"s_and_b32 s{srdPOS+1}, s{sPOS+1}, 0xffff")
e(f"s_mov_b32 s{srdPOS+2}, 60000")
e(f"s_mov_b32 s{srdPOS+3}, 0x20000")
e(f"ds_read_u16_d16_hi v{WX}, v{CA0} offset:{WL}")
e(f"ds_read_u16_d16_hi v{WX+1}, v{CA0} offset:{WL+128}")
site(0)
e(f"s_cmp_ge_u32 s{sW}, 6")
e("s_cbranch_scc1 L_w67")
e(f"s_cmp_ge_u32 s{sW}, 3")
e("s_cbranch_scc1 L_w345")
for i in range(4): e(f"v_mov_b32 v{HRES+i}, v{HF+i}")
e("s_branch L_w05")
e.label("L_w345")
nodeprod_reads()
e(f"v_and_b32 v1, 15, v{L}")
e(f"v_lshrrev_b32 v3, 4, v{L}")
e(f"s_lshl_b32 s60, s{sNG}, 5")
e(f"s_add_u32 s60, s60, {AT}")
e("v_lshl_add_u32 v2, v3, 3, s60")
e(f"v_mul_u32_u24 v1, {ATS}, v1")
e("v_add_u32 v2, v1, v2")
nodeprod()
e("s_nop 1")
nodescale()
for t in range(4):
    e(f"v_cvt_pk_bf16_f32 v{WT+2*t}, v{DT+4*t}, v{DT+4*t+1}")
    e(f"v_cvt_pk_bf16_f32 v{WT+2*t+1}, v{DT+4*t+2}, v{DT+4*t+3}")
for i in range(4): e(f"v_mov_b32 v{HRES+i}, v{HF+4+i}")
for t in range(4): e(f"ds_write_b64 v2, {v(WT+2*t,2)} offset:{t*16*ATS}")
e.label("L_w05")
for t in range(2):
    for ks in range(2):
        for rd in range(2):
            e(f"ds_read_b64_tr_b16 {v(W1T+8*t+4*ks+2*rd,2)}, v{aWH} offset:{ks*4096+rd*512+t*8}")
for t in range(2):
    for c in range(2):
        for rd in range(2):
            e(f"ds_read_b64_tr_b16 {v(WH2+8*t+4*c+2*rd,2)}, v{aWH} offset:{(2+c)*4096+rd*512+t*8}")
e(f"s_lshl_b32 s60, s{sNG}, 4")
e(f"v_and_b32 v1, 15, v{L}")
e(f"v_add_lshl_u32 v{vAItem}, v1, s60, 2")
e("s_waitcnt lgkmcnt(8)")
for t in range(2):
    e(f"v_mfma_f32_16x16x32_bf16 {v(H1+4*t,4)}, {v(W1T+8*t,4)}, {v(HF,4)}, 0")
    e(f"v_mfma_f32_16x16x32_bf16 {v(H1+4*t,4)}, {v(W1T+8*t+4,4)}, {v(HF+4,4)}, {v(H1+4*t,4)}")
e(f"v_and_b32 v2, 48, v{L}")
e(f"v_lshlrev_b32 v{vFO}, 1, v2")
e(f"v_add_u32 v{vFO}, {BF}, v{vFO}")
e(f"s_lshl_b32 s60, s{sN0}, 1")
e(f"s_add_u32 s60, s60, s{sCHF}")
e("s_lshl_b32 s60, s60, 6")
e(f"v_lshl_add_u32 v2, v{vAItem}, 5, v2")
e(f"v_add_u32 v11, s60, v2")
e(f"s_movk_i32 s60, {NB*4}")
e(f"v_cmp_gt_u32 {s(sOM,2)}, s60, v{vAItem}")
for i in range(4): e(f"v_pk_mul_f32 {v(H1+2*i,2)}, {v(H1+2*i,2)}, s[96:97] op_sel_hi:[1,0]")
e("s_branch L_wdone")
e.label("L_w67")
e(f"ds_read_u16_d16_hi v4, v{CA0} offset:{WXL}")
e("v_and_b32 v6, 127, v0")
e(f"v_min_u32 v7, 119, v6")
e(f"s_mul_i32 s60, s{sB}, 240")
e(f"v_lshl_add_u32 v1, v7, 1, s60")
e(f"global_load_short_d16_hi v{vPosOwn}, v1, {s(sPOS,2)}")
e("s_add_u32 s60, s60, 1280000")
e("v_lshl_add_u32 v11, v6, 1, s60")
e("s_movk_i32 s60, 120")
e(f"v_cmp_gt_u32 {s(sOM,2)}, s60, v6")
e(f"v_mul_u32_u24 v1, 171, v7")
e("v_lshrrev_b32 v1, 9, v1")
e(f"v_mad_i32_i24 v2, v1, -3, v7")
e(f"v_lshlrev_b32 v{vAItem}, 2, v1")
e(f"v_lshl_add_u32 v{H1}, v2, 8, v{vAItem}")
e(f"v_lshlrev_b32 v{vFO}, 3, v2")
e(f"v_add_u32 v{vFO}, {BF+256}, v{vFO}")
e(f"v_bfe_u32 v1, v{L}, 2, 1")
e(f"v_lshrrev_b32 v2, 3, v{L}")
e(f"v_and_b32 v3, 3, v{L}")
e("v_lshl_add_u32 v2, v2, 2, v3")
e("v_lshl_add_u32 v2, v1, 5, v2")
e("v_lshlrev_b32 v2, 2, v2")
e("s_waitcnt lgkmcnt(0)")
e(f"v_mul_f32 v4, {NLN2}, v4")
e(f"ds_write_b32 v2, v4 offset:{WXT}")
e.label("L_wdone")
stamp(4, wait=True)
site(1)
e(f"v_mul_u32_u24 v1, {ACCS//4}, v{vAItem}")
e(f"v_add_u32 v1, {ACC-BF}, v1")
e(f"v_add_u32 v{vFA}, v1, v{vFO}")
e(f"v_mul_f32 v{WX}, {NL2E}, v{WX}")
e(f"v_mul_f32 v{WX+1}, {NL2E}, v{WX+1}")
e(f"v_cvt_pk_bf16_f32 v1, v{WX}, v{WX}")
e("v_and_b32 v1, 0xffff0000, v1")
e(f"v_sub_f32 v2, v{WX}, v1")
e(f"v_cvt_pk_bf16_f32 v{WX}, v1, v2")
e(f"v_cvt_pk_bf16_f32 v{WX+1}, 0, v{WX+1}")
if OPT["lcat"] == "win": laneconsts()
e(f"v_mov_b32 v{vOA}, v11")
RA = 16; XP = 36; KA = 80; LK = 96; AD = 112; RR = 117; DD = 122; LN = 127; vSB = 132; vJ = 133; vPF = 134
mk = lambda p, k: sMK + 2 * (3 * p + k)
sLB = sMK + 30
def presets(ps):
    for p in ps:
        for k in range(4): e(f"v_mov_b32 v{RA+4*p+k}, s{sT+k}")
def batchsetup():
    e("v_lshrrev_b32 v1, 3, v0")
    e("v_and_b32 v2, 7, v0")
    e(f"v_lshlrev_b32 v{vJ}, 4, v2")
    e(f"v_mul_u32_u24 v1, {CHB}, v1")
    e(f"v_add_u32 v{vSB}, v1, v{vJ}")
    presets(range(4))
batchsetup()
for p in range(4):
    e(f"s_add_u32 s{sRB+2*p}, s{sWS}, {WS_REC + p*64*CHB}")
    e(f"s_addc_u32 s{sRB+2*p+1}, s{sWS+1}, 0")
e("s_andn2_b32 s60, s2, 7")
e(f"s_add_u32 s60, s60, s{sW}")
e("s_mul_i32 s60, s60, 41")
e(f"v_add_u32 v{vPF}, s60, v{L}")
e(f"s_bfm_b64 {s(sPF,2)}, {OPT.get('pfn', 26)}, 0")
e(f"s_mov_b32 s{sC10K}, 60000")
e("v_lshrrev_b32 v6, 3, v0")
e("v_lshlrev_b32 v6, 2, v6")
site(2)
stamp(5, wait=True)
e(f"s_cmp_lt_u32 s{sW}, 4")
e("s_cbranch_scc1 L_b3")
e(f"s_and_b32 s3, s{sB}, 1")
e("s_lshl_b32 s3, s3, 4")
e.label("L_poll")
e(f"s_sub_u32 s{sBUD}, s{sBUD}, 1")
e("s_waitcnt vmcnt(0)")
e(f"v_cmp_ne_u32 vcc, s{sTAG}, v{PL+3}")
e("s_cbranch_scc1 L_pollout")
e("s_cbranch_vccz L_gotoff")
e("s_mov_b64 exec, vcc")
e(f"global_load_dwordx4 {v(PL,4)}, v{vPA}, {s(sWS,2)} sc1")
e("s_branch L_poll")
e.label("L_gotoff")
e("s_mov_b64 exec, -1")
e(f"s_bitcmp1_b32 s{sB}, 1")
e(f"v_alignbit_b32 v3, v{PL+1}, v{PL}, s3")
e(f"v_alignbit_b32 v4, v{PL+2}, v{PL+1}, s3")
e("s_cselect_b64 vcc, -1, 0")
e("v_cndmask_b32 v3, v3, v4, vcc")
e(f"ds_write_b32 v{vPW}, v3 offset:{OFF1}")
e(f"s_cmp_lt_u32 s{sW}, 6")
e("s_cbranch_scc1 L_b3")
e(f"ds_write_b32 v{H1}, v{vPosOwn} offset:{PD}")
e.label("L_b3")
e("s_waitcnt lgkmcnt(0)")
e("s_barrier")
e(f"ds_read2st64_b32 {v(SEG,2)}, v6 offset0:{OFF1//256} offset1:{OFF1//256+1}")
e(f"ds_read2st64_b32 {v(SEG+2,2)}, v6 offset0:{OFF1//256+2} offset1:{OFF1//256+3}")
e("s_waitcnt lgkmcnt(0)")
stamp(6)
e.label("L_fetch")
for p in range(4):
    e(f"v_and_b32 v{AD+p}, 0xfff0, v{SEG+p}")
    e(f"v_sub_u32_sdwa v{RR+p}, v{SEG+p}, v{AD+p} {SD} src0_sel:WORD_1 src1_sel:DWORD")
    e(f"v_add_u32 v{AD+p}, v{AD+p}, v{vSB}")
    e(f"v_cmp_lt_i32 vcc, v{vJ}, v{RR+p}")
    e("s_mov_b64 exec, vcc")
    e(f"global_load_dwordx4 {v(RA+4*p,4)}, v{AD+p}, {s(sRB+2*p,2)} sc1")
    e("s_mov_b64 exec, -1")
e(f"v_max3_i32 v3, v{RR}, v{RR+1}, v{RR+2}")
e(f"v_max_i32 v3, v3, v{RR+3}")
e("v_mov_b32 v13, 8")
e(f"v_cmp_lt_i32 vcc, s{sWID}, v3")
e(f"s_or_b32 s{sANYB}, vcc_lo, vcc_hi")
e("s_cbranch_scc0 L_nob0")
e(f"s_cmp_eq_u32 s{sWID}, {NARROW}")
e("s_cbranch_scc1 L_narrow")
e(f"v_mov_b32 v{RR+4}, 0")
e(f"v_mov_b32 v{AD+4}, 0")
e("v_mov_b32 v4, 0")
for p in (3, 2, 1, 0):
    e(f"v_cmp_lt_i32 vcc, 0x80, v{RR+p}")
    e(f"v_add_u32 v5, {p*64*CHB}, v{AD+p}")
    e("s_nop 0")
    e(f"v_cndmask_b32 v{RR+4}, v{RR+4}, v{RR+p}, vcc")
    e(f"v_cndmask_b32 v{AD+4}, v{AD+4}, v5, vcc")
    e("v_addc_co_u32 v4, vcc, 0, v4, vcc")
e(f"v_subrev_u32 v{LN+4}, 0x80, v{RR+4}")
e(f"v_max_i32 v{LN+4}, 0, v{LN+4}")
presets([4])
e(f"v_cmp_lt_i32 {s(sLB,2)}, v{vJ}, v{LN+4}")
e("v_cmp_lt_i32 vcc, 0x100, v3")
e("v_cmp_lt_i32 s[60:61], 1, v4")
e(f"s_mov_b64 exec, {s(sLB,2)}")
e(f"global_load_dwordx4 {v(RA+16,4)}, v{AD+4}, {s(sRB,2)} offset:128 sc1")
e("s_or_b64 exec, vcc, s[60:61]")
e(f"ds_write_b32 v{ZP}, v13 offset:{CNT2+252}")
e("s_mov_b64 exec, -1")
for k in range(3):
    e(f"v_add_u32 v5, {4*k}, v{vJ}")
    e(f"v_cmp_lt_u32 {s(mk(4,k),2)}, v5, v{LN+4}")
e.label("L_nob0")
for p in range(4):
    e(f"v_and_b32 v4, 15, v{SEG+p}")
    e(f"v_sub_u32 v{LN+p}, v{RR+p}, v4")
    e(f"v_sub_u32 v4, v{vJ}, v4")
    e("v_add_u32 v5, 4, v4")
    e("v_add_u32 v6, 8, v4")
    for k in range(3): e(f"v_cmp_lt_u32 {s(mk(p,k),2)}, v{4+k}, v{LN+p}")
e(f"v_lshlrev_b32 v1, 2, v{L}")
e(f"v_cmp_gt_u32 {s(sVAL,2)}, {NB}, v{L}")
e("v_mov_b32 v4, 0")
e("v_mov_b32 v5, 0")
e("s_movk_i32 s62, 0xfc")
e(f"s_mov_b32 s63, {M3}")
def bpf(at):
    if OPT["bpf"] != at: return
    e(f"s_mov_b64 exec, {s(sPF,2)}")
    e(f"buffer_load_dword v{vPF+1}, v{vPF}, {s(srdBP,4)}, 0 idxen")
    e("s_mov_b64 exec, -1")
bpf(2)
XV = 1 if OPT["bpf"] == 2 else 0
def five(name, body):
    for p in range(4): body(p)
    e(f"s_cmp_eq_u32 s{sANYB}, 0")
    e(f"s_cbranch_scc1 L_{name}")
    body(4)
    e.label(f"L_{name}")
def chk(p):
    if p < 4: e(f"s_waitcnt vmcnt({3-p+XV})")
    for k in range(4): e(f"v_bitop3_b32 v{4 if k < 3 else 5}, v{4 if k < 3 else 5}, v{RA+4*p+k}, s{sT+k} bitop3:0xf6")
five("bx", chk)
e("v_and_b32 v4, 0xc000, v4")
e("v_and_or_b32 v4, v5, s63, v4")
e("v_cmp_ne_u32 vcc, 0, v4")
e("s_cbranch_vccnz L_stale")
e.label("L_gotrec")
stamp(7, wait=True)
def atom(p):
    if p: e("s_mov_b64 exec, -1")
    for k in range(3): e(f"v_and_b32_sdwa v{XP+6*p+2*k}, s62, v{RA+4*p+3} {SD} src0_sel:DWORD src1_sel:BYTE_{k}")
    for k in range(3):
        e(f"s_mov_b64 exec, {s(mk(p,k),2)}")
        e(f"ds_add_rtn_u32 v{KA+3*p+k}, v{XP+6*p+2*k}, v13 offset:{CNT2}")
five("ba", atom)
bpf(1)
e("s_mov_b64 exec, -1")
e("s_waitcnt lgkmcnt(0)")
e("s_barrier")
stamp(8)
e(f"ds_read_b32 v2, v1 offset:{CNT2}")
clean = [f"v_xor_b32 v{XP+6*p+2*k+1}, s{sT+k}, v{RA+4*p+k}" for p in range(5) for k in range(3)]
for x in clean[:5]: e(x)
e("s_waitcnt lgkmcnt(0)")
e(f"v_max_u32 v4, {PADB}, v2")
e(f"v_cndmask_b32 v5, 0, v4, {s(sVAL,2)}")
e(f"v_subrev_u32 v6, {SORT2}, v4")
scan(5, [f"v_readlane_b32 s{sMORE}, v2, 63", "v_cmp_lt_u32 vcc, v2, v4"] + clean[5:])
e(f"v_sub_u32 v6, v5, v6")
e(f"ds_write_b32 v1, v6 offset:{BASE2}")
def look(p):
    for k in range(3): e(f"ds_read_b32 v{LK+3*p+k}, v{XP+6*p+2*k} offset:{BASE2}")
five("bl", look)
e(f"v_readlane_b32 s3, v5, 63")
e(f"s_cmp_gt_u32 s3, {CAPB}")
e("s_cbranch_scc1 L_redo")
e(f"s_and_b64 vcc, vcc, {s(sVAL,2)}")
e("s_cbranch_scc1 L_pad0")
e.label("L_nopad")
e("s_add_u32 s96, s3, 127")
e("s_lshr_b32 s60, s96, 10")
e("s_bfe_u32 s61, s96, 0x30007")
e(f"s_mul_i32 s62, s60, s{sW}")
e(f"s_min_u32 s63, s61, s{sW}")
e("s_add_u32 s62, s62, s63")
e(f"s_cmp_lt_u32 s{sW}, s61")
e(f"s_addc_u32 s{sCNT}, s60, 0")
e("s_lshl_b32 s62, s62, 7")
e("v_cmp_ge_u32 vcc, s62, v5")
e(f"s_lshl_b32 s63, s{sCNT}, 7")
e("s_add_u32 s63, s63, s62")
e("v_cmp_gt_u32 s[60:61], s63, v5")
e("s_waitcnt lgkmcnt(0)")
def put(p):
    for k in range(3):
        e(f"s_mov_b64 exec, {s(mk(p,k),2)}")
        e(f"v_add_u32 v{LK+3*p+k}, v{LK+3*p+k}, v{KA+3*p+k}")
        e(f"ds_write_b64 v{LK+3*p+k}, {v(XP+6*p+2*k,2)}")
five("bw", put)
e("s_mov_b64 exec, -1")
e(f"s_bcnt1_i32_b64 s{sNFW}, vcc")
e(f"s_lshl_b32 s{sBASE}, s{sNFW}, 2")
e(f"s_or_b32 s{sSLOW}, s{sMULTI}, s{sMORE}")
e(f"s_cselect_b32 s{sNFW}, 252, s{sBASE}")
e(f"s_lshl_b32 s63, 1, s{sW}")
e(f"v_mov_b32 v7, s{sNFW}")
e("v_mov_b32 v8, s63")
e(f"s_lshl_b32 s63, s{sW}, 6")
e("s_add_u32 s3, s3, s63")
e(f"s_add_u32 s3, s3, {SORT2}")
e("v_lshl_add_u32 v9, v1, 1, s3")
e(f"v_mov_b32 v10, {(NB-1)*4}")
e("v_mov_b32 v11, 10000")
e("s_mov_b64 exec, 1")
e(f"ds_or_b32 v7, v8 offset:{LNK}")
e("s_mov_b64 exec, 0xff")
e("ds_write_b64 v9, v[10:11]")
e("s_mov_b64 exec, -1")
e(f"s_add_u32 s62, s62, {SORT2}")
e(f"v_lshl_add_u32 v{aRec}, v{L}, 3, s62")
e(f"v_add3_u32 v{aIdx}, s62, 4, v{vIdxL}")
PI = E[1] + 8
for n in range(DEP): e(f"v_mov_b32 v{PI+2*n+1}, v{IDX+1}")
for c in range(2): e(f"v_mfma_f32_32x32x8_bf16 {v(AC[c],16)}, {v(ZP,2)}, {v(ZP,2)}, 0")
e(f"s_bcnt1_i32_b64 s{sNLW}, s[60:61]")
e(f"s_min_u32 s{sNLW}, s{sNLW}, {NB-1}")
e(f"s_lshl_b32 s{sNLW}, s{sNLW}, 2")
e(f"s_sub_u32 s{sCNT}, s{sCNT}, {DEP+1}")
e("s_setprio 3")
e("s_waitcnt lgkmcnt(0)")
e("s_barrier")
stamp(9)
def gather(b, pair):
    return [f"buffer_load_dwordx4 {v(G[b&1],4)}, {v(pair,2)}, {s(srdBP,4)}, 0 idxen offen",
            f"buffer_load_dwordx4 {v(G[b&1]+4,4)}, {v(pair,2)}, {s(srdBP,4)}, 0 idxen offen offset:64"]
recread = lambda o: f"ds_read_b64 {v(REC,2)}, v{aRec} offset:{o}"
posaddr = f"v_mul_u32_u24_sdwa v{BT}, 6, v{REC+1} {SD} src0_sel:DWORD src1_sel:WORD_0"
posreads = [f"ds_read_u16_d16_hi v{PS+i}, v{BT} offset:{POS+2*i}" for i in range(3)] + \
           [f"ds_read2st64_b32 {v(PDV,2)}, v{REC} offset0:{PD//256} offset1:{PD//256+1}",
            f"ds_read_b32 v{PDV+2}, v{REC} offset:{PD+512}"]
build1 = [f"v_readlane_b32 s{sNF}, v{REC}, 0",
          f"v_readlane_b32 s{sNL}, v{REC}, 63",
          f"v_cmp_ne_u32 {s(sVAL,2)}, s{sC10K}, v{BT}",
          f"v_add_u32 v{BT+1}, v{REC}, v{REC}",
          f"s_and_b32 s60, s{sNF}, -8\ns_mul_i32 s{sNEG}, s60, -4\ns_lshr_b32 s60, s60, 1",
          f"v_lshl_add_u32 v{BT+2}, v{REC}, 2, s{sNEG}",
          f"v_add_u32 v{aAT}, s60, v{aATb}",
          f"v_lshlrev_b64 {v(REC+2,2)}, v{BT+2}, {s(sOHC,2)}",
          f"v_bitop3_b32 v{BT+1}, v{BT+1}, 56, v{aR2b} bitop3:0x6a"]
build2 = [f"v_sub_f32 v{PDV+2}, v{PDV+2}, v{PS+2}",
          f"v_sub_f32 v{PDV}, v{PDV}, v{PS}",
          f"v_sub_f32 v{PDV+1}, v{PDV+1}, v{PS+1}",
          f"v_cvt_pk_bf16_f32 v{R2V+1}, v{PDV+2}, 1.0",
          f"v_cvt_pk_bf16_f32 v{R2V}, v{PDV}, v{PDV+1}",
          f"v_lshlrev_b32 v{BT+2}, 16, v{R2V+1}",
          f"v_mul_f32 v{BT}, v{BT+2}, v{BT+2}",
          f"v_dot2_f32_bf16 v{BT}, v{R2V}, v{R2V}, v{BT}",
          None, None, None,
          f"v_cvt_pk_bf16_f32 v{REC}, v{BT}, v{BT}"]
build3 = [f"ds_write_b64 v{aR2}, {v(ZP,2)}",
          f"ds_write_b128 v{aR1w}, {v(REC,4)}",
          f"s_mov_b64 exec, {s(sVAL,2)}\nds_write_b64 v{BT+1}, {v(R2V,2)}\ns_mov_b64 exec, -1",
          f"ds_read2_b32 {v(WX+2,2)}, v{aAT} offset1:1"]
keepaddr = f"v_mov_b32 v{aR2}, v{BT+1}"
def opreads(n):
    return [f"ds_read_b128 {v(R1OP,4)}, v{aR1r} offset:{n*256}",
            f"ds_read_b64_tr_b16 {v(S[n],2)}, v{aS0} offset:{n*1024}",
            f"ds_read_b64_tr_b16 {v(S[n]+2,2)}, v{aS1} offset:{n*1024}"]
def stage1(n):
    t = T[n & 1]
    return [f"v_mfma_f32_32x32x16_bf16 {v(t,16)}, {v(R1OP,4)}, {v(WX,4)}, 0",
            f"v_mfma_f32_32x32x16_bf16 {v(t,16)}, {v(G[n&1],4)}, {v(I0,4)}, {v(t,16)}",
            f"v_mfma_f32_32x32x16_bf16 {v(t,16)}, {v(G[n&1]+4,4)}, {v(I1,4)}, {v(t,16)}"]
def stage2(n):
    return [f"v_mfma_f32_32x32x16_bf16 {v(AC[c],16)}, {v(M[c],4)}, {v(S[n],4)}, {v(AC[c],16)}" for c in range(2)]
def pkmul(q): return [f"v_pk_mul_f32 {v(E[q]+2*i,2)}, {v(E[q]+2*i,2)}, {v(T[q]+2*i,2)}" for i in range(8)]
def cvt(q): return [f"v_cvt_pk_bf16_f32 v{M[c]+a}, v{E[q]+4*a+c}, v{E[q]+4*a+2+c}" for a in range(4) for c in range(2)]
def flushchk(lbl):
    e(f"s_min_u32 s60, s{sNL}, s{sNLW}")
    e(f"s_sub_u32 s60, s60, s{sBASE}")
    e("s_cmp_ge_u32 s60, 32")
    e(f"s_cbranch_scc1 L_flush_{lbl}")
    e.label(f"L_flret_{lbl}")
def rowaddr():
    return [f"v_subrev_u32 v4, s{sBASE}, v{L}",
            "v_and_b32 v4, 28, v4",
            f"v_add_u32 v4, s{sBASE}, v4",
            f"v_cmp_eq_u32 vcc, s{sNFW}, v4",
            f"v_cmp_lt_u32 s[62:63], s{sNLW}, v4",
            f"s_lshl_b32 s61, s{sW}, 2",
            f"s_add_u32 s61, s61, {NB*4}",
            "v_mov_b32 v7, s61",
            "v_cndmask_b32 v4, v4, v7, vcc",
            f"v_mov_b32 v7, {OOB//64}",
            "v_cndmask_b32 v4, v4, v7, s[62:63]",
            f"v_mul_u32_u24 v4, {ACCS//4}, v4",
            f"v_add_u32 v4, {ACC}, v4",
            f"v_lshrrev_b32 v7, 5, v{L}",
            f"v_lshl_add_u32 v{vRowM}, v7, 4, v4",
            f"v_lshl_add_u32 v4, v7, 2, v4",
            f"v_and_b32 v7, 3, v{L}",
            f"v_lshl_add_u32 v{vRowP}, v7, 3, v4"]
def bfaddr():
    return [f"v_ffbl_b32 v5, v{vMask}",
            f"v_add_u32 v6, -1, v{vMask}",
            f"v_min_u32 v5, {OOB//256}, v5",
            f"v_and_b32 v{vMask}, v6, v{vMask}",
            f"v_mul_u32_u24 v5, {ACCS}, v5",
            f"v_add_u32 v{vFB}, v{vFO}, v5"]
def mmask():
    e("s_mov_b32 exec_lo, 0x88888888")
    e("s_mov_b32 exec_hi, 0x88888888")
def flush_slow():
    e("s_nop 7")
    e("v_mov_b32 v2, 0")
    for i in range(8):
        e(f"ds_read_b128 v[4:7], v{vWxa} offset:{WXT+16*i}")
        e("s_waitcnt lgkmcnt(0)")
        for r in range(4): e(f"v_fmac_f32 v2, v{AC[0]+4*i+r}, v{4+r}")
    e(f"ds_add_f32 v{vRowP}, v2 offset:256")
    mmask()
    for i in range(32): e(f"ds_add_f32 v{vRowM}, v{AC[0]+i} offset:{(i//4)*32+(i%4)*4}")
    e("s_mov_b64 exec, -1")

def step(sidx, first=False):
    q = sidx & 1; n1 = (sidx + 1) & 3
    R = OPT["ramp"]
    e("s_setprio 0")
    if sidx == 1: flushchk("mid")
    mem = gather(sidx + DEP, IDX) + [f"ds_read_u16 v{IDX}, v{aIdx} offset:{(sidx+DEP+1)*128}"]
    if sidx == 3: mem += build3
    mem += opreads(n1)
    if sidx == 3: mem += [recread(1024)]
    if sidx == 1: mem += posreads
    oth = {0: [posaddr], 1: build1, 2: build2, 3: [keepaddr, f"v_add_u32 v{aIdx}, 512, v{aIdx}", f"v_add_u32 v{aRec}, 512, v{aRec}"]}[sidx]
    for y in mem: e(y)
    oth = list(oth)
    for i in range(16):
        if i == R[0]: e("s_setprio 1")
        e(f"v_exp_f32 v{E[q]+i}, v{T[q]+i}")
        if i >= R[0] - 1 and oth:
            y = oth.pop(0)
            if y: e(y)
    assert not oth
    addone = f"v_mfma_f32_32x32x8_bf16 {v(E[q],16)}, {v(ONE,2)}, {v(ONE,2)}, {v(E[q],16)}"
    e("s_setprio 2")
    if first:
        e("s_nop 0"); e(addone); e("s_nop 7")
    else:
        for x in pkmul(1 - q): e(x)
        e(addone)
        for x in cvt(1 - q): e(x)
    e(f"s_sub_u32 s{sCNT}, s{sCNT}, 1")
    e("s_waitcnt vmcnt(2) lgkmcnt(0)")
    mf = stage1(n1) + ([] if first else stage2((sidx - 1) & 3))
    for i in range(16):
        if i % 3 == 0 and i // 3 < len(mf):
            e(mf[i // 3])
            if i == 0: e("s_setprio 3")
        e(f"v_rcp_f32 v{E[q]+i}, v{E[q]+i}")
    e(f"s_cbranch_scc1 L_evt{sidx}")

e(recread(0))
e(f"ds_read_u16 v{PI}, v{aIdx}")
e(f"ds_read_u16 v{PI+2}, v{aIdx} offset:128")
e(f"ds_read_u16 v{IDX}, v{aIdx} offset:{DEP*128}")
e("s_waitcnt lgkmcnt(2)")
e(posaddr)
for x in posreads: e(x)
for x in gather(0, PI): e(x)
for x in build1: e(x)
e("s_waitcnt lgkmcnt(0)")
g1 = gather(1, PI + 2) + ["s_nop 0"]
for x in build2: e(x if x else g1.pop(0))
for x in build3: e(x)
for x in opreads(0): e(x)
e(recread(512))
e(f"ds_read_b32 v{vMask}, v{vAItem} offset:{LNK}")
e(f"ds_write_b32 v1, v{ZP} offset:{CNT2}")
e(keepaddr)
e("s_waitcnt vmcnt(2) lgkmcnt(5)")
for x in stage1(0): e(x)
for x in rowaddr(): e(x)
e("s_waitcnt lgkmcnt(0)")
for x in bfaddr(): e(x)
stamp(10)
step(0, first=True)
e("s_branch L_s1")
for sidx in range(4):
    e.label(f"L_s{sidx}")
    step(sidx)
e("s_branch L_s0")
for sidx in range(4):
    q = sidx & 1
    e.label(f"L_evt{sidx}")
    e(f"s_cmp_eq_u32 s{srdBP+2}, 0")
    e(f"s_mov_b32 s{srdBP+2}, 0")
    e(f"s_mov_b32 s{sCNT}, {DEP-1}")
    e(f"s_cbranch_scc0 L_s{(sidx+1)&3}")
    if sidx == 0: flushchk("dr")
    for i in range(4): e(f"ds_read_b128 {v(E[1-q]+4*i,4)}, v{vWxa} offset:{WXT+16*i}")
    for i in range(4): e(f"ds_read_b128 {v(T[1-q]+4*i,4)}, v{vWxa} offset:{WXT+64+16*i}")
    for x in pkmul(q) + cvt(q): e(x)
    e(f"s_cmp_lg_u32 s{sSLOW}, 0")
    e("s_nop 0")
    for x in stage2(sidx): e(x)
    e("s_cbranch_scc1 L_slow_final")
    if sidx < 2: e(f"s_branch L_final_flush{q}")
    else:
        e.label(f"L_final_flush{q}")
        stamp(11)
        e("s_waitcnt lgkmcnt(0)")
        e("s_nop 6")
        mmask()
        for i in range(8): e(f"ds_write_b128 v{vRowM}, {v(AC[0]+4*i,4)} offset:{i*32}")
        e("s_mov_b64 exec, -1")
        e(f"v_pk_mul_f32 v[4:5], {v(AC[0],2)}, {v(E[1-q],2)}")
        e(f"v_pk_mul_f32 v[6:7], {v(AC[1],2)}, {v(T[1-q],2)}")
        for i in range(1, 8):
            e(f"v_pk_fma_f32 v[4:5], {v(AC[0]+2*i,2)}, {v(E[1-q]+2*i,2)}, v[4:5]")
            e(f"v_pk_fma_f32 v[6:7], {v(AC[1]+2*i,2)}, {v(T[1-q]+2*i,2)}, v[6:7]")
        e("v_pk_add_f32 v[4:5], v[4:5], v[6:7]")
        e("v_add_f32 v4, v4, v5")
        e(f"ds_write_b32 v{vRowP}, v4 offset:256")
        if sidx == 2: e("s_branch L_b6")
e.label("L_b6")
MR = 16; MB = 32; Y = 40; YE = 48; HU = 56; MX = 64
e(f"s_cmp_lg_u32 s{sMORE}, 0")
e(f"v_cmp_ne_u32 vcc, 0, v{vMask}")
e("s_waitcnt lgkmcnt(0)")
e("s_barrier")
stamp(12)
e("s_cbranch_scc1 L_more")
e(f"s_cmp_ge_u32 s{sW}, 6")
e("s_cbranch_scc1 L_finpos")
for i in range(4):
    e(f"ds_read_b128 {v(MR+4*i,4)}, v{vFA} offset:{(i>>1)*128+(i&1)*16}")
    e(f"ds_read_b128 {v(MX+4*i,4)}, v{vFB} offset:{(i>>1)*128+(i&1)*16}")
for d in range(4):
    e(f"v_lshlrev_b32 v{HU+2*d}, 16, v{HRES+d}")
    e(f"v_and_b32 v{HU+2*d+1}, 0xffff0000, v{HRES+d}")
e(f"s_mov_b32 s60, {NLN2}")
e("s_cbranch_vccnz L_finbf_more")
e.label("L_finbf")
for i in range(4):
    e(f"s_waitcnt lgkmcnt({6-2*i})")
    for d in range(2): e(f"v_pk_add_f32 {v(MR+4*i+2*d,2)}, {v(MR+4*i+2*d,2)}, {v(MX+4*i+2*d,2)}")
    for d in range(2): e(f"v_cvt_pk_bf16_f32 v{MB+2*i+d}, v{MR+4*i+2*d}, v{MR+4*i+2*d+1}")
for t in range(2): e(f"v_mfma_f32_16x16x32_bf16 {v(Y+4*t,4)}, {v(WH2+8*t,4)}, {v(MB,4)}, {v(H1+4*t,4)}")
for t in range(2): e(f"v_mfma_f32_16x16x32_bf16 {v(Y+4*t,4)}, {v(WH2+8*t+4,4)}, {v(MB+4,4)}, {v(Y+4*t,4)}")
e("s_nop 6")
for i in range(8): e(f"v_exp_f32 v{YE+i}, v{Y+i}")
for i in range(4): e(f"v_pk_add_f32 {v(YE+2*i,2)}, {v(YE+2*i,2)}, 1.0 op_sel_hi:[1,0]")
for i in range(4): e(f"v_pk_mul_f32 {v(Y+2*i,2)}, {v(Y+2*i,2)}, s[60:61] op_sel_hi:[1,0]")
for i in range(8): e(f"v_rcp_f32 v{YE+i}, v{YE+i}")
for i in range(4): e(f"v_pk_fma_f32 {v(HU+2*i,2)}, {v(Y+2*i,2)}, {v(YE+2*i,2)}, {v(HU+2*i,2)}")
for d in range(4): e(f"v_cvt_pk_bf16_f32 v{Y+d}, v{HU+2*d}, v{HU+2*d+1}")
e(f"s_mov_b64 exec, {s(sOM,2)}")
e(f"global_store_dwordx4 v{vOA}, {v(Y,4)}, {s(sOUT,2)} sc1")
stamp(13, last=True)
e("s_endpgm")
e.label("L_finpos")
e(f"ds_read_b64 v[16:17], v{vFA}")
e.label("L_posbf")
e(f"ds_read_b64 v[18:19], v{vFB}")
e("s_waitcnt lgkmcnt(0)")
e("v_add_f32 v16, v16, v18")
e("v_add_f32 v17, v17, v19")
e("s_cbranch_vccnz L_posbf_more")
e("v_add_f32 v16, v16, v17")
e(f"v_add_f32 v{vPosOwn}, v{vPosOwn}, v16")
e(f"v_cvt_pk_bf16_f32 v2, v{vPosOwn}, v{vPosOwn}")
e(f"v_mov_b32 v7, s{sTAG}")
e(f"s_mov_b64 exec, {s(sOM,2)}")
e(f"global_store_short v{vOA}, v2, {s(sOUT,2)} sc1")
e("s_cmp_lg_u32 s2, 0")
e("s_cbranch_scc1 L_noep")
e("s_mov_b64 exec, 1")
e(f"global_store_dword v{ZP}, v7, {s(sWS,2)} sc1")
e.label("L_noep")
stamp(13, last=True)
e("s_endpgm")
for lbl in ("mid", "dr"):
    e.label(f"L_flush_{lbl}")
    flush_slow()
    e("s_waitcnt lgkmcnt(0)")
    for i in range(32): e(f"v_mov_b32 v{AC[0]+i}, 0")
    e(f"s_mov_b32 s{sBASE}, s{sNF}")
    e(f"s_mov_b32 s{sSLOW}, 1")
    for x in rowaddr(): e(x)
    e(f"s_branch L_flret_{lbl}")
e.label("L_slow_final")
flush_slow()
e("s_branch L_b6")
e.label("L_finbf_more")
e("s_waitcnt lgkmcnt(0)")
for i in range(16): e(f"v_add_f32 v{MR+i}, v{MR+i}, v{MX+i}")
for x in bfaddr(): e(x)
for i in range(4): e(f"ds_read_b128 {v(MX+4*i,4)}, v{vFB} offset:{(i>>1)*128+(i&1)*16}")
e(f"v_cmp_ne_u32 vcc, 0, v{vMask}")
e("s_waitcnt lgkmcnt(0)")
e("s_cbranch_vccnz L_finbf_more")
e("s_branch L_finbf")
e.label("L_posbf_more")
for x in bfaddr(): e(x)
e(f"v_cmp_ne_u32 vcc, 0, v{vMask}")
e("s_branch L_posbf")
e.label("L_pollout")
e(f"s_mov_b32 s{sBUD}, 0")
e("s_branch L_gotoff")
e.label("L_stale")
e(f"s_cmp_eq_u32 s{sBUD}, 0")
e("s_cbranch_scc1 L_gotrec")
e(f"s_sub_u32 s{sBUD}, s{sBUD}, 1")
e("s_branch L_fetch")
e.label("L_pad0")
e("v_mov_b32 v8, v1")
e("v_mov_b32 v9, 10000")
e("s_mov_b64 exec, vcc")
e.label("L_pad")
e("v_add_u32 v7, v6, v2")
e("v_add_u32 v2, 8, v2")
e("ds_write_b64 v7, v[8:9]")
e("v_cmp_lt_u32 vcc, v2, v4")
e("s_and_b64 exec, vcc, vcc")
e("s_cbranch_scc1 L_pad")
e("s_mov_b64 exec, -1")
e("s_branch L_nopad")
e.label("L_more")
e("s_waitcnt vmcnt(0)")
e("s_setprio 0")
e(f"s_mov_b32 s{srdBP+2}, 10000")
e(f"s_mov_b64 {s(sPF,2)}, 0")
e(f"s_mov_b32 s{sMULTI}, 1")
e(f"s_cmp_eq_u32 s{sWID}, {NARROW}")
e(f"s_cselect_b32 s60, {NARROW}, 0x100")
e("v_mov_b32 v4, s60")
for p in range(4):
    e(f"v_and_b32 v5, 0xfff0, v{SEG+p}")
    e(f"v_lshrrev_b32 v6, 16, v{SEG+p}")
    e(f"v_add_u32 v7, s{sWID}, v5")
    e("v_cmp_lt_u32 vcc, v7, v6")
    e("v_add_u32 v5, v4, v5")
    e("v_min_u32 v5, v5, v6")
    e(f"v_lshl_or_b32 v{SEG+p}, v6, 16, v5")
    e(f"v_mov_b32 v7, s{sWID}")
    e("v_cndmask_b32 v4, v4, v7, vcc")
e(f"s_movk_i32 s{sWID}, 0x80")
batchsetup()
e(f"v_mov_b32 v{vPF}, 0")
e("s_branch L_fetch")
e.label("L_narrow")
e(f"s_mov_b32 s{sANYB}, 0")
e("s_mov_b64 exec, vcc")
e(f"ds_write_b32 v{ZP}, v13 offset:{CNT2+252}")
e("s_mov_b64 exec, -1")
e("s_branch L_nob0")
e.label("L_redo")
e(f"s_cmp_eq_u32 s{sWID}, {NARROW}")
e("s_cbranch_scc1 L_end")
e("s_waitcnt vmcnt(0) lgkmcnt(0)")
e("s_barrier")
e(f"ds_write_b32 v1, v{ZP} offset:{CNT2}")
e(f"s_movk_i32 s{sWID}, {NARROW}")
batchsetup()
e(f"v_cmp_gt_u32 vcc, {NARROW}, v{vJ}")
e(f"v_mov_b32 v1, {OOB}")
e("s_waitcnt lgkmcnt(0)")
e(f"v_cndmask_b32 v{vJ}, v1, v{vJ}, vcc")
e("s_barrier")
e("s_branch L_fetch")
e.label("L_end")
e("s_endpgm")

probs = check_cfg(e.lines)
for p in probs: print("HAZARD", p, file=sys.stderr)

ref = open("cdna_kernels/" + KN + ".s.ref").read().split("\n")
hdr = []
for l in ref:
    if l.startswith("; Override launch"): break
    hdr.append(l)
out = "\n".join(hdr) + f"""
; One persistent launch: 250 workgroups (one per CU) bin the edges by destination bucket, hand the bins
; over through d_ws (tagged with a per-launch epoch), then each workgroup updates its 40 nodes.
; @launch grid=({NWG},1,1) block=(512,1,1) lds={LDS_SIZE}
.amdgcn_target "amdgcn-amd-amdhsa--gfx950"
.text
.globl {KN}_kernel
.p2align 8
.type {KN}_kernel,@function
{KN}_kernel:
{e.text()}.section .rodata,"a"
.p2align 6
.amdhsa_kernel {KN}_kernel
  .amdhsa_next_free_vgpr 256
  .amdhsa_next_free_sgpr 102
  .amdhsa_accum_offset 256
  .amdhsa_group_segment_fixed_size 0
  .amdhsa_kernarg_size 88
  .amdhsa_user_sgpr_count 2
  .amdhsa_user_sgpr_kernarg_segment_ptr 1
  .amdhsa_system_sgpr_workgroup_id_x 1
  .amdhsa_float_denorm_mode_32 3
.end_amdhsa_kernel
"""
open(sys.argv[1], "w").write(out)
print("wrote", sys.argv[1], len(e.lines), "lines;", len(probs), "hazards; LDS end", LDS_END, file=sys.stderr)
```

```python
import sys, struct
from asmlib import Emit, v, s, check_cfg

KN = "standalone__cheap_equivariant_egnn__graph"
OPT = dict(stamps=False, ramp=(3, 16, 34), bpf=1, pollat=2, lcat="fetch", posat=("b2",3,1), zs=(2,6), wdat=-1, p2at="win", pall=0)
for a in sys.argv[2:]:
    k, _, val = a.partition("=")
    try: OPT[k] = eval(val) if val else True
    except Exception: OPT[k] = val

def fbits(x): return struct.unpack("<I", struct.pack("<f", x))[0]
LOG2E = 1.4426950408889634; LN2 = 0.6931471805599453
NL2E = hex(fbits(-LOG2E)); NLN2 = hex(fbits(-LN2))

NWG = 250; CH = 2560; NB = 40; DEP = 2
CHB = 13696
CNT1 = 0x0; OFF1 = 0x400; CNT2 = 0x800; LNK = 0x900; BASE2 = 0xA00; PD = 0xB00; WXT = 0xE00
STB = 0x1000; R2 = 0x2000; ACC = R2 + 32768; ACCS = 304
BF = ACC + NB * ACCS; AT = BF + 8 * ACCS; ATS = 104; WL = AT + 64 * ATS; WXL = WL + 256
POS = WL + 384; STG = R2; SORT2 = POS + 61440; CAPB = 3888 * 8; R1 = SORT2 + CAPB + 512; LDS_END = R1 + 8192
PADB = 32 * 8; NARROW = 48
assert NWG * 9 * 8 + NB * PADB <= CAPB and POS + 4 < 65536
WE = SORT2; WH = WE + 16384; HB = WH + 16384
OOB = 0x100000
LDS_SIZE = 163840
assert LDS_END <= LDS_SIZE and HB + 6144 <= LDS_END and R2 % 64 == 0 and WE % 128 == 0
WS_OFF = 0x10000; WS_BP = 0x80000; WS_REC = 0x200000; WS_STAMP = 0x1000000
TAGC = 0x9E3779B1; M3 = 0xFF030303
sH, sPOS, sE, sSRC, sDST, sWE, sWX, sWH, sOUT, sDBG, sWS = 4, 6, 8, 10, 12, 14, 16, 18, 20, 22, 24
sW, sB = 26, 27
srdBP, srdPOS, srdH = 28, 32, 36
sTAG, sMULTI, sBUD, sWID, sONCE, sN0, sNG, sCHF = 40, 41, 42, 43, 44, 45, 46, 47
sOHC, sNFW, sNLW, sCNT, sBASE, sNF, sNL, sNEG, sMORE, sVAL = 48, 50, 51, 52, 53, 54, 55, 56, 57, 58
sT = 36
sOM = 4; sPF = 6; sRB = 8; sSLOW = 16; sANYB = 17; sC10K = 18
sMK = 64
T = [16, 32]; E = [48, 64]; AC = [80, 96]; M = [112, 116]; G = [120, 128]; S = [152, 156, 160, 164]
R1OP = 168; WX = 172; I0 = 176; I1 = 180; ONE = 184; IDX = 186
aIdx, aRec, aR1r, aS0, aS1, aR1w, aR2b, aR2, aATb, aAT = 188, 189, 190, 191, 192, 193, 194, 195, 196, 197
vRowM, vRowP = 198, 199
REC = 200; R2V = 204; PS = 206; vSrc = 208; vFO = 209; PDV = 210; BT = 213; ZP = 216; vIdxL = 218; vFA = 219
SEG = 220; vMask = 224; vWxa = 225; H1 = 226; vPosOwn = 230; HRES = 234; WH2 = 238; vLane = 254; vAItem = 255
vOA = 12; vFB = 3
L = vLane
SD = "dst_sel:DWORD dst_unused:UNUSED_PAD"

e = Emit()
def stamp(i, last=False, wait=False):
    if OPT.get("diag") is not None:
        if i == 0:
            e("s_memrealtime s[98:99]\ns_waitcnt lgkmcnt(0)\ns_mov_b32 s100, s98\ns_mov_b32 s101, s98")
        elif i == OPT["diag"]:
            e("s_memrealtime s[98:99]\ns_waitcnt lgkmcnt(0)\ns_mov_b32 s101, s98")
        if last:
            stamp.n = getattr(stamp, "n", 0) + 1
            e("s_sub_u32 s101, s101, s100\ns_lshl_b32 s101, s101, 2\ns_add_u32 s101, s101, 3000")
            e.label(f"L_spin{stamp.n}")
            e("s_memrealtime s[98:99]\ns_waitcnt lgkmcnt(0)\ns_sub_u32 s98, s98, s100\ns_cmp_lt_u32 s98, s101")
            e(f"s_cbranch_scc1 L_spin{stamp.n}")
        return
    if not OPT["stamps"]: return
    if wait: e("s_waitcnt lgkmcnt(0)")
    if i > 0:
        e("s_mov_b32 m0, s101\nv_writelane_b32 v15, s98, m0\nv_writelane_b32 v14, s22, m0")
    e("s_memrealtime s[98:99]")
    if i > 0: e("s_memtime s[22:23]")
    e(f"s_mov_b32 s101, {i}")
    if i in (6, 7, 9): e(f"v_writelane_b32 v15, s{sBUD}, {16+i}")
    if i == 10: e(f"s_add_u32 s100, s{sCNT}, {DEP-4}\nv_writelane_b32 v15, s100, 26")
    if last:
        e("s_mov_b64 exec, -1\ns_waitcnt lgkmcnt(0)")
        e(f"v_writelane_b32 v15, s98, {i}\nv_writelane_b32 v14, s22, {i}")
        e(f"s_lshl_b32 s100, s2, 3\ns_add_u32 s100, s100, s{sW}\ns_lshl_b32 s100, s100, 7\ns_add_u32 s100, s100, {WS_STAMP}")
        e(f"v_lshl_add_u32 v13, v{L}, 2, s100\ns_mov_b32 exec_hi, 0")
        e(f"global_store_dword v13, v15, {s(sWS,2)}\nv_add_u32 v13, 0x100000, v13\nglobal_store_dword v13, v14, {s(sWS,2)}")

def fine(i, g=1):
    if OPT.get("fine") == g: e(f"s_memtime s[{72+2*i}:{73+2*i}]")
def finedump(n, g=1):
    if OPT.get("fine") == g:
        for i in range(n): e(f"s_nop 0\nv_writelane_b32 v14, s{72+2*i}, {16+i}")
def scan(r, fill=()):
    fill = list(fill)
    for m in ("row_shr:1 row_mask:0xf bank_mask:0xf bound_ctrl:1", "row_shr:2 row_mask:0xf bank_mask:0xf bound_ctrl:1",
              "row_shr:4 row_mask:0xf bank_mask:0xf bound_ctrl:1", "row_shr:8 row_mask:0xf bank_mask:0xf bound_ctrl:1",
              "row_bcast:15 row_mask:0xa bank_mask:0xf", "row_bcast:31 row_mask:0xc bank_mask:0xf"):
        if len(fill) >= 2:
            e(fill.pop(0)); e(fill.pop(0))
        else: e("s_nop 1")
        e(f"v_add_u32_dpp v{r}, v{r}, v{r} {m}")
    assert not fill

DSTR = 16; SRCR = 24; ER = 32; XB = 36; QQ = 42; B4 = 48; RK = 56
WA0 = 64; WA1 = 65; WA2 = 66; HA = 67; CA0 = 68; PBA = 69; TCH = 70; vTG = 71; HF = 72
WT = 80; DT = 112; W1T = 96; aWH = 144; aWT = 148; PB = 152; ZQ = 156
stamp(0)
e(f"s_cmp_ge_u32 s2, {NWG}")
e("s_cbranch_scc1 L_end")
e("s_load_dwordx16 s[4:19], s[0:1], 0")
e("s_load_dwordx4 s[20:23], s[0:1], 64")
e("s_load_dwordx2 s[24:25], s[0:1], 80")
e("s_getpc_b64 s[62:63]")
e.label("L_pc")
e("v_lshlrev_b32 v5, 5, v0")
e("v_min_u32 v5, L_end-L_pc, v5")
e("s_mov_b32 exec_lo, 0x11111111")
e("s_mov_b32 exec_hi, 0x11111111")
e(f"global_load_dword v{TCH}, v5, s[62:63]")
e("s_mov_b64 exec, -1")
e(f"s_mul_i32 s3, s2, {CH*4}")
e("v_lshl_add_u32 v8, v0, 4, s3")
e(f"s_add_u32 s60, s3, 8192")
e("v_lshl_add_u32 v9, v0, 2, s60")
e("s_lshr_b32 s3, s3, 1")
e("v_lshl_add_u32 v10, v0, 3, s3")
e("s_add_u32 s60, s3, 4096")
e("v_lshl_add_u32 v11, v0, 1, s60")
e("v_lshrrev_b32 v5, 6, v0")
e(f"v_and_b32 v{L}, 63, v0")
e(f"v_readfirstlane_b32 s{sW}, v5")
e(f"v_mov_b32 v{ZP}, 0")
e(f"v_mov_b32 v{ZP+1}, 0")
e("v_lshlrev_b32 v12, 4, v0")
e("v_lshlrev_b32 v5, 3, v0")
e(f"ds_write_b64 v5, {v(ZP,2)}")
e("s_and_b32 s60, s2, 7")
e(f"s_mul_i32 s{sB}, s60, 31")
e("s_min_u32 s60, s60, 2")
e(f"s_add_u32 s{sB}, s{sB}, s60")
e("s_lshr_b32 s96, s2, 3")
e(f"s_add_u32 s{sB}, s{sB}, s96")
e(f"s_mul_i32 s{sN0}, s{sB}, {NB}")
e(f"v_and_b32 v5, 16, v{L}")
e("v_and_b32 v6, 64, v0")
e("v_lshl_or_b32 v5, v5, 1, v6")
e(f"v_xor_b32 v{WA0}, v5, v12")
e(f"v_add_u32 v{WA1}, 8192, v{WA0}")
e(f"v_lshlrev_b32 v5, 1, v{L}")
e(f"s_lshl_b32 s60, s{sN0}, 7")
e("v_and_b32 v5, 0x70, v5")
e(f"v_xad_u32 v{HA}, v5, v12, s60")
e(f"s_lshl_b32 s60, s{sW}, 10")
e(f"s_add_u32 m0, s60, {WE+8192}")
e("s_waitcnt lgkmcnt(0)")
e(f"global_load_dwordx4 {v(DSTR,4)}, v8, {s(sDST,2)}")
e(f"global_load_dword v{DSTR+4}, v9, {s(sDST,2)}")
e(f"s_mov_b32 s{srdH}, s{sH}")
e(f"s_and_b32 s{srdH+1}, s{sH+1}, 0xffff")
e(f"s_mov_b32 s{srdH+2}, 1280000")
e(f"s_mov_b32 s{srdH+3}, 0x20000")
e(f"s_cmp_ge_u32 s{sW}, 6")
e(f"global_load_lds_dwordx4 v{WA1}, {s(sWE,2)}")
e("s_cbranch_scc1 L_d67")
e(f"s_add_u32 m0, s60, {HB}")
e("s_nop 0")
e(f"buffer_load_dwordx4 v{HA}, {s(srdH,4)}, 0 offen lds")
e("s_branch L_ddone")
e.label("L_d67")
e(f"s_add_u32 s62, s{sWE}, 16384")
e(f"s_addc_u32 s63, s{sWE+1}, 0")
e(f"v_lshlrev_b32 v5, 4, v{L}")
e(f"s_cmp_eq_u32 s{sW}, 7")
e(f"s_cselect_b64 s[62:63], {s(sWX,2)}, s[62:63]")
e(f"s_cselect_b32 s61, 256, 0")
e(f"s_cselect_b32 s97, 8, 16")
e(f"s_add_u32 m0, s61, {WL}")
e("s_bfm_b64 exec, s97, 0")
e(f"global_load_lds_dwordx4 v5, s[62:63]")
e("s_mov_b64 exec, -1")
e.label("L_ddone")
e("s_barrier")
e(f"global_load_dwordx4 {v(SRCR,4)}, v8, {s(sSRC,2)}")
e(f"global_load_dword v{SRCR+4}, v9, {s(sSRC,2)}")
e(f"global_load_dwordx2 {v(ER,2)}, v10, {s(sE,2)}")
e(f"global_load_short_d16_hi v{ER+2}, v11, {s(sE,2)}")
e(f"global_load_dword v{vTG}, v{ZP}, {s(sWS,2)}")
stamp(1)
for i in range(4): e(f"v_mov_b32 v{ZQ+i}, 0")
assert R2 + 6*8192 >= AT and R2 + 6*8192 <= WL
e(f"ds_write_b128 v{ZP}, {v(ZQ,4)} offset:{STG+853*16}")
def zero(lo, hi):
    e("v_lshlrev_b32 v5, 4, v0")
    for i in range(lo, hi):
        if i == 5:
            e(f"v_cmp_gt_u32 vcc, {(AT - R2 - 5*8192)//16}, v0")
            e("s_mov_b64 exec, vcc")
        e(f"ds_write_b128 v5, {v(ZQ,4)} offset:{R2+i*8192}")
    if hi == 6: e("s_mov_b64 exec, -1")
Z0, Z1 = OPT["zs"]
if Z0 > 2: zero(2, Z0)
e(f"s_mov_b32 s{srdPOS}, s{sPOS}")
e(f"s_and_b32 s{srdPOS+1}, s{sPOS+1}, 0xffff")
e(f"s_mov_b32 s{srdPOS+2}, 60000")
e(f"s_mov_b32 s{srdPOS+3}, 0x20000")
PT = 1 if OPT.get("ptouch") else 0
if PT:
    e("s_lshl_b32 s61, s96, 11")
    e("v_lshl_add_u32 v5, v0, 2, s61")
    e("s_mov_b32 exec_lo, 1")
    e("s_mov_b32 exec_hi, 1")
    e(f"buffer_load_dword v{TCH}, v5, {s(srdPOS,4)}, 0 offen")
    e("s_mov_b64 exec, -1")
e(f"s_mul_i32 s{sCHF}, s{sW}, 86")
e(f"s_lshr_b32 s{sCHF}, s{sCHF}, 8")
e(f"s_mul_i32 s61, s{sCHF}, 3")
e(f"s_sub_u32 s{sNG}, s{sW}, s61")
e(f"s_and_b32 s61, s{sW}, 3")
e("s_lshl_b32 s61, s61, 1")
e(f"s_lshr_b32 s62, s{sW}, 2")
e("s_add_u32 s61, s61, s62")
e("s_lshl_b32 s61, s61, 8")
e("s_add_u32 s61, s61, 8192")
e(f"v_and_b32 v5, 0x70, v{WA0}")
e(f"v_bfe_u32 v6, v{L}, 3, 2")
e("v_lshl_add_u32 v5, v6, 11, v5")
e(f"v_lshrrev_b32 v6, 5, v{L}")
e("v_lshl_add_u32 v5, v6, 7, v5")
e(f"v_add_u32 v{WA2}, s61, v5")
e(f"v_and_b32 v1, 15, v{L}")
e(f"v_lshrrev_b32 v3, 4, v{L}")
e(f"s_lshl_b32 s61, s{sNG}, 11")
e(f"s_add_u32 s61, s61, {HB}")
e(f"v_and_b32 v2, 7, v{L}")
e("v_xor_b32 v2, v2, v3")
e("v_lshl_add_u32 v4, v1, 7, s61")
e(f"v_lshl_add_u32 v{aWH+1}, v2, 4, v4")
e(f"v_xor_b32 v{aWH+2}, 64, v{aWH+1}")
e(f"v_bfe_u32 v6, v{L}, 2, 2")
e(f"v_and_b32 v2, 3, v{L}")
e("v_lshl_add_u32 v4, v3, 3, v6")
e(f"v_lshlrev_b32 v7, 2, v{L}")
e("v_and_b32 v7, 0x60, v7")
e(f"s_xor_b32 s61, s{sCHF}, 1")
e("s_lshl_b32 s61, s61, 13")
e(f"s_add_u32 s61, s61, {WE}")
e("v_lshl_add_u32 v5, v4, 7, s61")
e("v_lshl_add_u32 v5, v2, 3, v5")
e(f"v_xor_b32 v{aWT}, v7, v5")
for t in range(1, 4): e(f"v_xor_b32 v{aWT+t}, {32*t}, v{aWT}")
e(f"s_lshl_b32 s61, s{sCHF}, 6")
e(f"s_add_u32 s61, s61, {WH}")
e("v_lshl_add_u32 v6, v2, 4, s61")
e("v_lshl_add_u32 v5, v4, 7, v6")
e(f"v_xor_b32 v{aWH}, v7, v5")
e(f"s_lshl_b32 s61, s{sNG}, 4")
e(f"s_add_u32 s61, s61, s{sN0}")
e("s_lshl_b32 s61, s61, 7")
e(f"s_add_u32 s61, s61, {WS_BP}")
e("v_lshl_add_u32 v2, v3, 9, s61")
e(f"v_lshl_add_u32 v{aWH+3}, v1, 3, v2")
e(f"v_lshrrev_b32 v1, 5, v{L}")
e(f"v_and_b32 v7, 3, v{L}")
e(f"v_bfe_u32 v6, v{L}, 3, 2")
e("v_lshlrev_b32 v6, 2, v6")
e("v_lshl_add_u32 v7, v7, 4, v6")
e(f"v_bfe_u32 v6, v{L}, 2, 1")
e("v_add_u32 v7, v7, v6")
e("v_lshl_add_u32 v7, v1, 1, v7")
e(f"v_lshlrev_b32 v{CA0}, 1, v7")
e(f"v_mul_u32_u24 v{aATb}, {ATS}, v7")
e(f"v_add_u32 v{aATb}, {AT}, v{aATb}")

def laneconsts():
    e(f"s_add_u32 s{srdBP}, s{sWS}, {WS_BP}")
    e(f"s_addc_u32 s{srdBP+1}, s{sWS+1}, 0")
    e(f"s_and_b32 s{srdBP+1}, s{srdBP+1}, 0xffff")
    e(f"s_or_b32 s{srdBP+1}, s{srdBP+1}, 0x800000")
    e(f"s_mov_b32 s{srdBP+2}, 10000")
    e(f"s_mov_b32 s{srdBP+3}, 0x20000")
    e(f"s_mov_b32 s{sMULTI}, 0")
    e(f"s_mov_b32 s{sOHC}, 0x3f80")
    e(f"s_mov_b32 s{sOHC+1}, 0")
    e(f"s_movk_i32 s{sWID}, 0x80")
    e(f"s_mov_b32 s{sONCE}, 0")
def laneconsts2():
    e(f"v_lshrrev_b32 v1, 5, v{L}")
    e(f"v_and_b32 v2, 1, v{L}")
    e(f"v_lshlrev_b32 v{vWxa}, 7, v1")
    e(f"v_lshlrev_b32 v3, 5, v1")
    e(f"v_lshl_add_u32 v{IDX+1}, v2, 4, v3")
    e(f"v_bfe_u32 v4, v{L}, 3, 2")
    e(f"v_bfe_u32 v5, v{L}, 1, 1")
    e("v_lshl_add_u32 v4, v4, 1, v5")
    e(f"v_bfe_u32 v5, v{L}, 2, 1")
    e("v_lshl_add_u32 v4, v5, 3, v4")
    e(f"v_lshlrev_b32 v{vIdxL}, 3, v4")
    e(f"s_lshl_b32 s61, s{sW}, 10")
    e(f"s_add_u32 s61, s61, {R1}")
    e(f"v_lshl_add_u32 v{aR1r}, v4, 4, s61")
    e("v_xor_b32 v5, v1, v2")
    e(f"v_lshl_add_u32 v{aR1r}, v5, 20, v{aR1r}")
    e(f"v_lshl_add_u32 v{aR1w}, v{L}, 4, s61")
    e(f"s_lshl_b32 s61, s{sW}, 12")
    e(f"s_add_u32 s61, s61, {R2}")
    e(f"v_bfe_u32 v3, v{L}, 1, 3")
    e(f"v_lshl_add_u32 v4, v{L}, 6, s61")
    e(f"v_lshl_add_u32 v{aR2b}, v3, 3, v4")
    e(f"v_mov_b32 v{aR2}, v{aR2b}")
    e(f"v_bfe_u32 v3, v{L}, 2, 2")
    e(f"v_and_b32 v4, 3, v{L}")
    e(f"v_bfe_u32 v5, v{L}, 4, 1")
    e("v_lshl_add_u32 v5, v5, 2, v4")
    e("v_lshrrev_b32 v7, 1, v3")
    e("v_lshl_add_u32 v7, v1, 2, v7")
    e("v_xor_b32 v5, v5, v7")
    e("v_lshl_add_u32 v7, v1, 3, v3")
    e("v_lshl_add_u32 v7, v7, 6, s61")
    e(f"v_lshl_add_u32 v{aS0}, v5, 3, v7")
    e(f"v_xor_b32 v{aS1}, 16, v{aS0}")
    e(f"v_add_u32 v{aS1}, 256, v{aS1}")
    e(f"v_and_b32 v4, 31, v{L}")
    e("v_lshlrev_b32 v7, 3, v1")
    e("v_sub_u32 v7, v4, v7")
    e("v_lshlrev_b32 v4, 4, v2")
    e(f"v_lshlrev_b32 v4, v4, s{sOHC}")
    e("v_ashrrev_i32 v7, 1, v7")
    for u, I in ((0, I0), (1, I1)):
        for d in range(4): e(f"v_cmp_eq_u32 {s(sMK+2*d,2)}, {8*u+d}, v7")
        for d in range(4): e(f"v_cndmask_b32 v{I+d}, 0, v4, {s(sMK+2*d,2)}")
    e("v_xor_b32 v7, 1, v1")
    e(f"v_mul_u32_u24 v{ONE}, {OPT.get('aov', 0x3f80)}, v7")
    if OPT.get("aoall"): e(f"v_mov_b32 v{ONE}, 0x3f80")
    e(f"v_mov_b32 v{ONE+1}, 0")
if OPT["lcat"] == "start": laneconsts(); laneconsts2()
e("v_mov_b32 v13, 1")
e("s_mov_b32 s61, 52429")
e("s_movk_i32 s62, -40")
e(f"v_lshlrev_b32 v1, 4, v{L}")
e(f"s_lshl_b32 s63, s2, 10")
e(f"s_add_u32 s63, s63, {WS_OFF}")
e(f"v_add_u32 v{PBA}, s63, v1")
def wdma():
    for base, a, ptr in ((WE, WA0, sWE), (WH, WA0, sWH), (WH+8192, WA2, sWH)):
        e(f"s_add_u32 m0, s60, {base}")
        e("s_nop 0")
        e(f"global_load_lds_dwordx4 v{a}, {s(ptr,2)}")
W0 = 3 if OPT["wdat"] == -1 else 0
W1 = 3 if OPT["wdat"] <= 0 else 0
if OPT["wdat"] == -1: wdma()
e(f"s_waitcnt vmcnt({7+W0+PT})")
stamp(14, wait=True)
for i in range(5): e(f"v_mul_u32_u24 v{B4+i}, s61, v{DSTR+i}")
for i in range(5): e(f"v_lshrrev_b32 v{B4+i}, 21, v{B4+i}")
for i in range(5):
    e(f"v_lshlrev_b32 v{B4+i}, 2, v{B4+i}")
    e(f"ds_add_rtn_u32 v{RK+i}, v{B4+i}, v13 offset:{CNT1}")
if OPT["wdat"] == 0: wdma()
e(f"s_cmp_ge_u32 s{sW}, 3")
e(f"s_waitcnt vmcnt({5+W1+PT}) lgkmcnt(0)")
e("s_barrier")
stamp(2)
def nodeprod_reads():
    e(f"ds_read_b128 {v(HF,4)}, v{aWH+1}")
    e(f"ds_read_b128 {v(HF+4,4)}, v{aWH+2}")
    for t in range(4):
        for ks in range(2):
            for rd in range(2):
                e(f"ds_read_b64_tr_b16 {v(WT+8*t+4*ks+2*rd,2)}, v{aWT+t} offset:{ks*4096+rd*512}")
def nodeprod(extra=0):
    e(f"s_mov_b32 s96, {NL2E}")
    for t in range(4):
        e(f"s_waitcnt lgkmcnt({12-4*t+extra})")
        e(f"v_mfma_f32_16x16x32_bf16 {v(DT+4*t,4)}, {v(HF,4)}, {v(WT+8*t,4)}, 0")
        e(f"v_mfma_f32_16x16x32_bf16 {v(DT+4*t,4)}, {v(HF+4,4)}, {v(WT+8*t+4,4)}, {v(DT+4*t,4)}")
def nodescale():
    for i in range(8): e(f"v_pk_mul_f32 {v(DT+2*i,2)}, {v(DT+2*i,2)}, s[96:97] op_sel_hi:[1,0]")
e("s_cbranch_scc1 L_nobp")
nodeprod_reads()
e(f"ds_read_b128 v[4:7], v1 offset:{CNT1}")
if OPT["wdat"] == 1: wdma()
nodeprod(1)
e(f"s_cmp_eq_u32 s{sNG}, 2")
e("s_cselect_b32 s63, 0, -1")
nodescale()
for r in range(4):
    e(f"v_cvt_pk_bf16_f32 v{WT+2*r}, v{DT+r}, v{DT+4+r}")
    e(f"v_cvt_pk_bf16_f32 v{WT+2*r+1}, v{DT+8+r}, v{DT+12+r}")
e("s_mov_b32 exec_hi, s63")
for r in range(4): e(f"global_store_dwordx2 v{aWH+3}, {v(WT+2*r,2)}, {s(sWS,2)} offset:{r*128} sc1")
e("s_mov_b64 exec, -1")
e("s_branch L_bpdone")
e.label("L_nobp")
e(f"ds_read_b128 v[4:7], v1 offset:{CNT1}")
if OPT.get("prew"):
    e(f"s_cmp_lg_u32 s{sW}, 7")
    e("s_cbranch_scc1 L_bpdone")
    e(f"global_store_dwordx4 v{PBA}, {v(ZQ,4)}, {s(sWS,2)} sc1")
if OPT["wdat"] == 1: wdma()
e.label("L_bpdone")
fine(0)
e("s_waitcnt lgkmcnt(0)")
fine(1)
e("v_add_u32 v5, v4, v5")
e("v_add_u32 v6, v5, v6")
e("v_add_u32 v7, v6, v7")
e("v_mov_b32 v3, v7")
scan(3, [f"v_lshlrev_b32 v{XB+i}, 2, v{DSTR+i}" for i in range(5)] +
        [f"v_mad_i32_i24 v{XB+i}, v{B4+i}, s62, v{XB+i}" for i in range(5)] +
        ["s_mov_b32 s63, 0xffff0000", "s_movk_i32 s61, 21846"])
e("v_sub_u32 v8, v3, v7")
e("v_add_u32 v9, v8, v4")
e("v_add_u32 v10, v8, v5")
e("v_add_u32 v11, v8, v6")
e(f"ds_write_b128 v1, v[8:11] offset:{OFF1}")
for i in range(5): e(f"ds_read_b32 v{B4+i}, v{B4+i} offset:{OFF1}")
fine(2)
PN = OPT["pall"]
if PN:
    e(f"s_mul_i32 s97, s{sW}, {PN*1024}")
    e(f"s_add_u32 m0, s97, {POS}")
e(f"s_cmp_ge_u32 s{sW}, 3")
for i in range(PN): e(f"buffer_load_dwordx4 v1, {s(srdPOS,4)}, s97 offen offset:{i*1024} lds")
e(f"s_waitcnt vmcnt({8+PN+PT})")
e("s_cbranch_scc0 L_srcin")
e(f"s_waitcnt vmcnt({4+PN+PT})")
e.label("L_srcin")
fine(3)
e(f"v_lshl_or_b32 v{SRCR}, v{ER}, 16, v{SRCR}")
e(f"v_and_or_b32 v{SRCR+1}, v{ER}, s63, v{SRCR+1}")
e(f"v_lshl_or_b32 v{SRCR+2}, v{ER+1}, 16, v{SRCR+2}")
e(f"v_and_or_b32 v{SRCR+3}, v{ER+1}, s63, v{SRCR+3}")
e(f"v_or_b32 v{SRCR+4}, v{ER+2}, v{SRCR+4}")
for i in range(5):
    e(f"s_waitcnt lgkmcnt({4+i})")
    e(f"v_add_u32 v{B4+i}, v{B4+i}, v{RK+i}")
    e(f"v_mul_u32_u24 v{QQ+i}, s61, v{B4+i}")
    e(f"v_add_u32_sdwa v{QQ+i}, v{B4+i}, v{QQ+i} {SD} src0_sel:DWORD src1_sel:WORD_1")
    e(f"v_lshlrev_b32 v{RK+i}, 2, v{QQ+i}")
    e(f"ds_write_b8 v{QQ+i}, v{XB+i} offset:{STB}")
    e(f"ds_write_b32 v{RK+i}, v{SRCR+i} offset:{STG}")
fine(4)
e(f"s_cmp_lg_u32 s{sW}, 7")
e("s_cbranch_scc1 L_nopb")
for r in (8, 9, 10, 11, 3):
    e(f"v_mul_u32_u24 v2, s61, v{r}")
    e("v_lshrrev_b32 v2, 16, v2")
    e(f"v_add_lshl_u32 v{r}, v{r}, v2, 2")
e(f"v_lshl_or_b32 v{PB}, v9, 16, v8")
e(f"v_lshl_or_b32 v{PB+1}, v11, 16, v10")
e(f"v_mov_b32 v{PB+2}, v3")
e.label("L_nopb")
e(f"s_mul_i32 s60, s2, {CHB}")
e(f"s_lshl_b32 s97, s{sW}, 12")
e("s_add_u32 s60, s60, s97")
e(f"s_add_u32 s60, s60, {WS_REC}")
e("v_add_u32 v2, s60, v1")
e("v_add_u32 v4, s97, v1")
e(f"v_add_u32 v3, {STG}, v4")
e("v_lshrrev_b32 v4, 2, v4")
e("v_mov_b32 v5, 0xfcfcfc")
e(f"s_cmp_eq_u32 s{sW}, 3")
e(f"s_cselect_b64 vcc, {(1 << ((CHB-13312)//16)) - 1}, -1")
e("s_cselect_b64 s[62:63], 0, -1")
fine(5)
e(f"s_waitcnt vmcnt({PN})")
fine(6)
def posloop(name, w0, nw):
    e(f"s_sub_u32 s61, s{sW}, {w0}")
    e(f"s_cmp_ge_u32 s61, {nw}")
    e(f"s_cbranch_scc1 L_{name}e")
    e("s_lshl_b32 s61, s61, 12")
    if PN: e(f"s_add_u32 s61, s61, {PN*8192}")
    e(f"v_lshlrev_b32 v6, 4, v{L}")
    e.label(f"L_{name}")
    e(f"s_add_u32 m0, s61, {POS}")
    e("s_nop 0")
    for i in range(4): e(f"buffer_load_dwordx4 v6, {s(srdPOS,4)}, s61 offen offset:{i*1024} lds")
    e(f"s_add_u32 s61, s61, {4096*nw}")
    e("s_cmp_lt_u32 s61, 61440")
    e(f"s_cbranch_scc1 L_{name}")
    e.label(f"L_{name}e")
if OPT["posat"][0] == "b2": posloop("pl", *OPT["posat"][1:])
e(f"v_readfirstlane_b32 s{sTAG}, v{vTG}")
e(f"v_add_u32 v{PB+3}, {TAGC}, v{vTG}")
e(f"s_add_u32 s{sTAG}, s{sTAG}, {TAGC}")
e(f"s_and_b32 s{sT}, s{sTAG}, 0xc000")
e(f"s_lshl_b32 s60, s{sTAG}, 2")
e(f"s_and_b32 s{sT+1}, s60, 0xc000")
e(f"s_lshl_b32 s60, s{sTAG}, 4")
e(f"s_and_b32 s{sT+2}, s60, 0xc000")
e(f"s_and_b32 s{sT+3}, s{sTAG}, {M3}")
e(f"s_cmp_ge_u32 s{sW}, 4")
e("s_waitcnt lgkmcnt(0)")
fine(7)
e("s_barrier")
stamp(3)
ST = 48
e("s_cbranch_scc1 L_nost")
for i in range(4):
    e(f"ds_read_b128 {v(ST+4*i,4)}, v3 offset:{i*1024}")
    e(f"ds_read_b32 v{8+i}, v4 offset:{STB+i*256}")
for i in range(4):
    e(f"s_waitcnt lgkmcnt({6-2*i})")
    if i == 1: e("s_mov_b64 exec, vcc")
    if i == 2: e("s_mov_b64 exec, s[62:63]")
    for k in range(3): e(f"v_or_b32 v{ST+4*i+k}, s{sT+k}, v{ST+4*i+k}")
    e(f"v_and_or_b32 v{ST+4*i+3}, v{8+i}, v5, s{sT+3}")
    e(f"global_store_dwordx4 v2, {v(ST+4*i,4)}, {s(sWS,2)} offset:{i*1024} sc1")
e("s_mov_b64 exec, -1")
fine(1, 2)
e.label("L_nost")
fine(0, 2)
e(f"s_cmp_lg_u32 s{sW}, 7")
e("s_cbranch_scc1 L_nopub")
e(f"global_store_dwordx4 v{PBA}, {v(PB,4)}, {s(sWS,2)} sc1")
e.label("L_nopub")
stamp(15, wait=True)
finedump(8)
PL = 160; vPA = 164; vPW = 165
def site(n):
    if OPT["posat"][0] == f"pre{n}": posloop("pl", *OPT["posat"][1:])
    if OPT["pollat"] == n:
        pollsetup()
        fine(3, 2)
    if OPT["posat"][0] == f"post{n}": posloop("pl", *OPT["posat"][1:])
def pollsetup():
    e("v_and_b32 v1, 255, v0")
    e(f"s_lshr_b32 s60, s{sB}, 2")
    e("s_lshl_b32 s60, s60, 4")
    e(f"s_add_u32 s60, s60, {WS_OFF}")
    e(f"v_lshl_add_u32 v{vPA}, v1, 10, s60")
    e(f"s_cmp_lt_u32 s{sW}, 4")
    e("s_cbranch_scc1 L_nops")
    e(f"v_cmp_gt_u32 vcc, {NWG}, v1")
    for i in range(3): e(f"v_mov_b32 v{PL+i}, 0")
    e(f"v_mov_b32 v{PL+3}, s{sTAG}")
    e(f"v_lshlrev_b32 v{vPW}, 2, v1")
    e("s_mov_b64 exec, vcc")
    e(f"global_load_dwordx4 {v(PL,4)}, v{vPA}, {s(sWS,2)} sc1")
    e("s_mov_b64 exec, -1")
    e.label("L_nops")
e(f"s_mov_b32 s{sBUD}, 2000000")
e(f"ds_read_u16_d16_hi v{WX}, v{CA0} offset:{WL}")
e(f"ds_read_u16_d16_hi v{WX+1}, v{CA0} offset:{WL+128}")
site(0)
e(f"s_cmp_ge_u32 s{sW}, 6")
e("s_cbranch_scc1 L_w67")
e(f"s_cmp_ge_u32 s{sW}, 3")
e("s_cbranch_scc1 L_w345")
for i in range(4): e(f"v_mov_b32 v{HRES+i}, v{HF+i}")
e("s_branch L_w05")
e.label("L_w345")
nodeprod_reads()
e(f"v_and_b32 v1, 15, v{L}")
e(f"v_lshrrev_b32 v3, 4, v{L}")
e(f"s_lshl_b32 s60, s{sNG}, 5")
e(f"s_add_u32 s60, s60, {AT}")
e("v_lshl_add_u32 v2, v3, 3, s60")
e(f"v_mul_u32_u24 v1, {ATS}, v1")
e("v_add_u32 v2, v1, v2")
nodeprod()
e("s_nop 1")
nodescale()
for t in range(4):
    e(f"v_cvt_pk_bf16_f32 v{WT+2*t}, v{DT+4*t}, v{DT+4*t+1}")
    e(f"v_cvt_pk_bf16_f32 v{WT+2*t+1}, v{DT+4*t+2}, v{DT+4*t+3}")
for i in range(4): e(f"v_mov_b32 v{HRES+i}, v{HF+4+i}")
for t in range(4): e(f"ds_write_b64 v2, {v(WT+2*t,2)} offset:{t*16*ATS}")
e.label("L_w05")
def part2():
    for t in range(2):
        for ks in range(2):
            for rd in range(2):
                e(f"ds_read_b64_tr_b16 {v(W1T+8*t+4*ks+2*rd,2)}, v{aWH} offset:{ks*4096+rd*512+t*8}")
    for t in range(2):
        for c in range(2):
            for rd in range(2):
                e(f"ds_read_b64_tr_b16 {v(WH2+8*t+4*c+2*rd,2)}, v{aWH} offset:{(2+c)*4096+rd*512+t*8}")
    e(f"s_lshl_b32 s60, s{sNG}, 4")
    e(f"v_and_b32 v1, 15, v{L}")
    e(f"v_add_lshl_u32 v{vAItem}, v1, s60, 2")
    e("s_waitcnt lgkmcnt(8)")
    for t in range(2):
        e(f"v_mfma_f32_16x16x32_bf16 {v(H1+4*t,4)}, {v(W1T+8*t,4)}, {v(HF,4)}, 0")
        e(f"v_mfma_f32_16x16x32_bf16 {v(H1+4*t,4)}, {v(W1T+8*t+4,4)}, {v(HF+4,4)}, {v(H1+4*t,4)}")
    e(f"v_and_b32 v2, 48, v{L}")
    e(f"v_lshlrev_b32 v{vFO}, 1, v2")
    e(f"v_add_u32 v{vFO}, {BF}, v{vFO}")
    e(f"s_lshl_b32 s60, s{sN0}, 1")
    e(f"s_add_u32 s60, s60, s{sCHF}")
    e("s_lshl_b32 s60, s60, 6")
    e(f"v_lshl_add_u32 v2, v{vAItem}, 5, v2")
    e(f"v_add_u32 v{vOA}, s60, v2")
    e(f"s_movk_i32 s60, {NB*4}")
    e(f"v_cmp_gt_u32 {s(sOM,2)}, s60, v{vAItem}")
    for i in range(4): e(f"v_pk_mul_f32 {v(H1+2*i,2)}, {v(H1+2*i,2)}, s[96:97] op_sel_hi:[1,0]")
def part3():
    e(f"v_mul_u32_u24 v1, {ACCS//4}, v{vAItem}")
    e(f"v_add_u32 v1, {ACC-BF}, v1")
    e(f"v_add_u32 v{vFA}, v1, v{vFO}")
    e(f"v_mul_f32 v{WX}, {NL2E}, v{WX}")
    e(f"v_mul_f32 v{WX+1}, {NL2E}, v{WX+1}")
    e(f"v_cvt_pk_bf16_f32 v1, v{WX}, v{WX}")
    e("v_and_b32 v1, 0xffff0000, v1")
    e(f"v_sub_f32 v2, v{WX}, v1")
    e(f"v_cvt_pk_bf16_f32 v{WX}, v1, v2")
    e(f"v_cvt_pk_bf16_f32 v{WX+1}, 0, v{WX+1}")
if OPT["p2at"] == "win": part2()
e("s_branch L_wdone")
e.label("L_w67")
e(f"ds_read_u16_d16_hi v4, v{CA0} offset:{WXL}")
e("v_and_b32 v6, 127, v0")
e(f"v_min_u32 v7, 119, v6")
e(f"s_mul_i32 s60, s{sB}, 240")
e(f"v_lshl_add_u32 v1, v7, 1, s60")
e(f"global_load_short_d16_hi v{vPosOwn}, v1, {s(sPOS,2)}")
e("s_add_u32 s60, s60, 1280000")
e(f"v_lshl_add_u32 v{vOA}, v6, 1, s60")
e("s_movk_i32 s60, 120")
e(f"v_cmp_gt_u32 {s(sOM,2)}, s60, v6")
e(f"v_mul_u32_u24 v1, 171, v7")
e("v_lshrrev_b32 v1, 9, v1")
e(f"v_mad_i32_i24 v2, v1, -3, v7")
e(f"v_lshlrev_b32 v{vAItem}, 2, v1")
e(f"v_lshl_add_u32 v{H1}, v2, 8, v{vAItem}")
e(f"v_lshlrev_b32 v{vFO}, 3, v2")
e(f"v_add_u32 v{vFO}, {BF+256}, v{vFO}")
e(f"v_bfe_u32 v1, v{L}, 2, 1")
e(f"v_lshrrev_b32 v2, 3, v{L}")
e(f"v_and_b32 v3, 3, v{L}")
e("v_lshl_add_u32 v2, v2, 2, v3")
e("v_lshl_add_u32 v2, v1, 5, v2")
e("v_lshlrev_b32 v2, 2, v2")
e("s_waitcnt lgkmcnt(0)")
e(f"v_mul_f32 v4, {NLN2}, v4")
e(f"ds_write_b32 v2, v4 offset:{WXT}")
e.label("L_wdone")
stamp(4, wait=True)
site(1)
if OPT["p2at"] == "win": part3()
if OPT["lcat"] != "start": laneconsts()
if OPT["lcat"] == "win": laneconsts2()
RA = 16; XP = 36; KA = 80; LK = 96; AD = 112; RR = 117; DD = 122; LN = 127; vSB = 132; vJ = 133; vPF = 134
mk = lambda p, k: sMK + 2 * (3 * p + k)
sLB = sMK + 30
def presets(ps):
    for p in ps:
        for k in range(4): e(f"v_mov_b32 v{RA+4*p+k}, s{sT+k}")
def batchsetup():
    e("v_lshrrev_b32 v1, 3, v0")
    e("v_and_b32 v2, 7, v0")
    e(f"v_lshlrev_b32 v{vJ}, 4, v2")
    e(f"v_mul_u32_u24 v1, {CHB}, v1")
    e(f"v_add_u32 v{vSB}, v1, v{vJ}")
    presets(range(4))
batchsetup()
for p in range(4):
    e(f"s_add_u32 s{sRB+2*p}, s{sWS}, {WS_REC + p*64*CHB}")
    e(f"s_addc_u32 s{sRB+2*p+1}, s{sWS+1}, 0")
e("s_andn2_b32 s60, s2, 7")
e(f"s_add_u32 s60, s60, s{sW}")
e("s_mul_i32 s60, s60, 41")
e(f"v_add_u32 v{vPF}, s60, v{L}")
e(f"s_bfm_b64 {s(sPF,2)}, {OPT.get('pfn', 26)}, 0")
e(f"s_mov_b32 s{sC10K}, 60000")
if Z1 > Z0: zero(Z0, Z1)
site(2)
e("v_lshrrev_b32 v6, 3, v0")
e("v_lshlrev_b32 v6, 2, v6")
stamp(5, wait=True)
fine(4, 2)
if OPT.get("fine") == 2:
    e("s_waitcnt vmcnt(1)")
    fine(5, 2)
    e("s_waitcnt vmcnt(0)")
    fine(6, 2)
e(f"s_cmp_lt_u32 s{sW}, 4")
e("s_cbranch_scc1 L_b3")
e(f"s_and_b32 s3, s{sB}, 1")
e("s_lshl_b32 s3, s3, 4")
e.label("L_poll")
e(f"s_sub_u32 s{sBUD}, s{sBUD}, 1")
e("s_waitcnt vmcnt(0)")
e(f"v_cmp_ne_u32 vcc, s{sTAG}, v{PL+3}")
e("s_cbranch_scc1 L_pollout")
e("s_cbranch_vccz L_gotoff")
e("s_mov_b64 exec, vcc")
e(f"global_load_dwordx4 {v(PL,4)}, v{vPA}, {s(sWS,2)} sc1")
e("s_branch L_poll")
e.label("L_gotoff")
e("s_mov_b64 exec, -1")
e(f"s_bitcmp1_b32 s{sB}, 1")
e(f"v_alignbit_b32 v3, v{PL+1}, v{PL}, s3")
e(f"v_alignbit_b32 v4, v{PL+2}, v{PL+1}, s3")
e("s_cselect_b64 vcc, -1, 0")
e("v_cndmask_b32 v3, v3, v4, vcc")
e(f"ds_write_b32 v{vPW}, v3 offset:{OFF1}")
e(f"s_cmp_lt_u32 s{sW}, 6")
e("s_cbranch_scc1 L_b3")
e(f"ds_write_b32 v{H1}, v{vPosOwn} offset:{PD}")
e.label("L_b3")
fine(7, 2)
e("s_waitcnt lgkmcnt(0)")
e("s_barrier")
e(f"ds_read2st64_b32 {v(SEG,2)}, v6 offset0:{OFF1//256} offset1:{OFF1//256+1}")
e(f"ds_read2st64_b32 {v(SEG+2,2)}, v6 offset0:{OFF1//256+2} offset1:{OFF1//256+3}")
e("s_waitcnt lgkmcnt(0)")
stamp(6)
finedump(8, 2)
e.label("L_fetch")
for p in range(4):
    e(f"v_and_b32 v{AD+p}, 0xfff0, v{SEG+p}")
    e(f"v_sub_u32_sdwa v{RR+p}, v{SEG+p}, v{AD+p} {SD} src0_sel:WORD_1 src1_sel:DWORD")
    e(f"v_add_u32 v{AD+p}, v{AD+p}, v{vSB}")
    e(f"v_cmp_lt_i32 vcc, v{vJ}, v{RR+p}")
    e("s_mov_b64 exec, vcc")
    e(f"global_load_dwordx4 {v(RA+4*p,4)}, v{AD+p}, {s(sRB+2*p,2)} sc1")
    e("s_mov_b64 exec, -1")
e(f"v_max3_i32 v3, v{RR}, v{RR+1}, v{RR+2}")
e(f"v_max_i32 v3, v3, v{RR+3}")
e("v_mov_b32 v13, 8")
e(f"v_cmp_lt_i32 vcc, s{sWID}, v3")
e(f"s_or_b32 s{sANYB}, vcc_lo, vcc_hi")
e("s_cbranch_scc0 L_nob0")
e(f"s_cmp_eq_u32 s{sWID}, {NARROW}")
e("s_cbranch_scc1 L_narrow")
e(f"v_mov_b32 v{RR+4}, 0")
e(f"v_mov_b32 v{AD+4}, 0")
e("v_mov_b32 v4, 0")
for p in (3, 2, 1, 0):
    e(f"v_cmp_lt_i32 vcc, 0x80, v{RR+p}")
    e(f"v_add_u32 v5, {p*64*CHB}, v{AD+p}")
    e("s_nop 0")
    e(f"v_cndmask_b32 v{RR+4}, v{RR+4}, v{RR+p}, vcc")
    e(f"v_cndmask_b32 v{AD+4}, v{AD+4}, v5, vcc")
    e("v_addc_co_u32 v4, vcc, 0, v4, vcc")
e(f"v_subrev_u32 v{LN+4}, 0x80, v{RR+4}")
e(f"v_max_i32 v{LN+4}, 0, v{LN+4}")
presets([4])
e(f"v_cmp_lt_i32 {s(sLB,2)}, v{vJ}, v{LN+4}")
e("v_cmp_lt_i32 vcc, 0x100, v3")
e("v_cmp_lt_i32 s[60:61], 1, v4")
e(f"s_mov_b64 exec, {s(sLB,2)}")
e(f"global_load_dwordx4 {v(RA+16,4)}, v{AD+4}, {s(sRB,2)} offset:128 sc1")
e("s_or_b64 exec, vcc, s[60:61]")
e(f"ds_write_b32 v{ZP}, v13 offset:{CNT2+252}")
e("s_mov_b64 exec, -1")
for k in range(3):
    e(f"v_add_u32 v5, {4*k}, v{vJ}")
    e(f"v_cmp_lt_u32 {s(mk(4,k),2)}, v5, v{LN+4}")
e.label("L_nob0")
e(f"s_cmp_lg_u32 s{sONCE}, 0")
e("s_cbranch_scc1 L_once")
e(f"s_mov_b32 s{sONCE}, 1")
zero(0, 2)
if Z1 < 6: zero(Z1, 6)
if OPT["p2at"] == "fetch":
    e(f"s_cmp_ge_u32 s{sW}, 6")
    e("s_cbranch_scc1 L_nop2")
    part2()
    e.label("L_nop2")
    part3()
if OPT["lcat"] == "fetch": laneconsts2()
e.label("L_once")
for p in range(4):
    e(f"v_and_b32 v4, 15, v{SEG+p}")
    e(f"v_sub_u32 v{LN+p}, v{RR+p}, v4")
    e(f"v_sub_u32 v4, v{vJ}, v4")
    e("v_add_u32 v5, 4, v4")
    e("v_add_u32 v6, 8, v4")
    for k in range(3): e(f"v_cmp_lt_u32 {s(mk(p,k),2)}, v{4+k}, v{LN+p}")
e(f"v_lshlrev_b32 v1, 2, v{L}")
e(f"v_cmp_gt_u32 {s(sVAL,2)}, {NB}, v{L}")
e("v_mov_b32 v4, 0")
e("v_mov_b32 v5, 0")
e("s_movk_i32 s62, 0xfc")
e(f"s_mov_b32 s63, {M3}")
def bpf(at):
    if OPT["bpf"] != at: return
    e(f"s_mov_b64 exec, {s(sPF,2)}")
    e(f"buffer_load_dword v{vPF+1}, v{vPF}, {s(srdBP,4)}, 0 idxen")
    e("s_mov_b64 exec, -1")
bpf(2)
XV = 1 if OPT["bpf"] == 2 else 0
def five(name, body):
    for p in range(4): body(p)
    e(f"s_cmp_eq_u32 s{sANYB}, 0")
    e(f"s_cbranch_scc1 L_{name}")
    body(4)
    e.label(f"L_{name}")
def chk(p):
    if p < 4: e(f"s_waitcnt vmcnt({3-p+XV})")
    for k in range(4): e(f"v_bitop3_b32 v{4 if k < 3 else 5}, v{4 if k < 3 else 5}, v{RA+4*p+k}, s{sT+k} bitop3:0xf6")
five("bx", chk)
e("v_and_b32 v4, 0xc000, v4")
e("v_and_or_b32 v4, v5, s63, v4")
e("v_cmp_ne_u32 vcc, 0, v4")
e("s_cbranch_vccnz L_stale")
e.label("L_gotrec")
stamp(7, wait=True)
def atom(p):
    if p: e("s_mov_b64 exec, -1")
    for k in range(3): e(f"v_and_b32_sdwa v{XP+6*p+2*k}, s62, v{RA+4*p+3} {SD} src0_sel:DWORD src1_sel:BYTE_{k}")
    for k in range(3):
        e(f"s_mov_b64 exec, {s(mk(p,k),2)}")
        e(f"ds_add_rtn_u32 v{KA+3*p+k}, v{XP+6*p+2*k}, v13 offset:{CNT2}")
five("ba", atom)
bpf(1)
e("s_mov_b64 exec, -1")
e("s_waitcnt lgkmcnt(0)")
e("s_barrier")
stamp(8)
e(f"ds_read_b32 v2, v1 offset:{CNT2}")
clean = [f"v_xor_b32 v{XP+6*p+2*k+1}, s{sT+k}, v{RA+4*p+k}" for p in range(5) for k in range(3)]
for x in clean[:5]: e(x)
e("s_waitcnt lgkmcnt(0)")
e(f"v_max_u32 v4, {PADB}, v2")
e(f"v_cndmask_b32 v5, 0, v4, {s(sVAL,2)}")
e(f"v_subrev_u32 v6, {SORT2}, v4")
scan(5, [f"v_readlane_b32 s{sMORE}, v2, 63", "v_cmp_lt_u32 vcc, v2, v4"] + clean[5:])
e(f"v_sub_u32 v6, v5, v6")
e(f"ds_write_b32 v1, v6 offset:{BASE2}")
def look(p):
    for k in range(3): e(f"ds_read_b32 v{LK+3*p+k}, v{XP+6*p+2*k} offset:{BASE2}")
five("bl", look)
e(f"v_readlane_b32 s3, v5, 63")
e(f"s_cmp_gt_u32 s3, {CAPB}")
e("s_cbranch_scc1 L_redo")
e(f"s_and_b64 vcc, vcc, {s(sVAL,2)}")
e("s_cbranch_scc1 L_pad0")
e.label("L_nopad")
e("s_add_u32 s96, s3, 127")
e("s_lshr_b32 s60, s96, 10")
e("s_bfe_u32 s61, s96, 0x30007")
e(f"s_mul_i32 s62, s60, s{sW}")
e(f"s_min_u32 s63, s61, s{sW}")
e("s_add_u32 s62, s62, s63")
e(f"s_cmp_lt_u32 s{sW}, s61")
e(f"s_addc_u32 s{sCNT}, s60, 0")
e("s_lshl_b32 s62, s62, 7")
e("v_cmp_ge_u32 vcc, s62, v5")
e(f"s_lshl_b32 s63, s{sCNT}, 7")
e("s_add_u32 s63, s63, s62")
e("v_cmp_gt_u32 s[60:61], s63, v5")
e("s_waitcnt lgkmcnt(0)")
def put(p):
    for k in range(3):
        e(f"s_mov_b64 exec, {s(mk(p,k),2)}")
        e(f"v_add_u32 v{LK+3*p+k}, v{LK+3*p+k}, v{KA+3*p+k}")
        e(f"ds_write_b64 v{LK+3*p+k}, {v(XP+6*p+2*k,2)}")
five("bw", put)
e("s_mov_b64 exec, -1")
e(f"s_bcnt1_i32_b64 s{sNFW}, vcc")
e(f"s_lshl_b32 s{sBASE}, s{sNFW}, 2")
e(f"s_or_b32 s{sSLOW}, s{sMULTI}, s{sMORE}")
e(f"s_cselect_b32 s{sNFW}, 252, s{sBASE}")
e(f"s_lshl_b32 s63, 1, s{sW}")
e(f"v_mov_b32 v7, s{sNFW}")
e("v_mov_b32 v8, s63")
e(f"s_lshl_b32 s63, s{sW}, 6")
e("s_add_u32 s3, s3, s63")
e(f"s_add_u32 s3, s3, {SORT2}")
e("v_lshl_add_u32 v9, v1, 1, s3")
e(f"v_mov_b32 v10, {(NB-1)*4}")
e("v_mov_b32 v11, 10000")
e("s_mov_b64 exec, 1")
e(f"ds_or_b32 v7, v8 offset:{LNK}")
e("s_mov_b64 exec, 0xff")
e("ds_write_b64 v9, v[10:11]")
e("s_mov_b64 exec, -1")
e(f"s_add_u32 s62, s62, {SORT2}")
e(f"v_lshl_add_u32 v{aRec}, v{L}, 3, s62")
e(f"v_add3_u32 v{aIdx}, s62, 4, v{vIdxL}")
PI = E[1] + 8
for n in range(DEP): e(f"v_mov_b32 v{PI+2*n+1}, v{IDX+1}")
for c in range(2): e(f"v_mfma_f32_32x32x8_bf16 {v(AC[c],16)}, {v(ZP,2)}, {v(ZP,2)}, 0")
e(f"s_bcnt1_i32_b64 s{sNLW}, s[60:61]")
e(f"s_min_u32 s{sNLW}, s{sNLW}, {NB-1}")
e(f"s_lshl_b32 s{sNLW}, s{sNLW}, 2")
e(f"s_sub_u32 s{sCNT}, s{sCNT}, {DEP+1}")
e("s_setprio 3")
e("s_waitcnt lgkmcnt(0)")
e("s_barrier")
stamp(9)
def gather(b, pair):
    return [f"buffer_load_dwordx4 {v(G[b&1],4)}, {v(pair,2)}, {s(srdBP,4)}, 0 idxen offen",
            f"buffer_load_dwordx4 {v(G[b&1]+4,4)}, {v(pair,2)}, {s(srdBP,4)}, 0 idxen offen offset:64"]
recread = lambda o: f"ds_read_b64 {v(REC,2)}, v{aRec} offset:{o}"
posaddr = f"v_mul_u32_u24_sdwa v{BT}, 6, v{REC+1} {SD} src0_sel:DWORD src1_sel:WORD_0"
posreads = [f"ds_read_u16_d16_hi v{PS+i}, v{BT} offset:{POS+2*i}" for i in range(3)] + \
           [f"ds_read2st64_b32 {v(PDV,2)}, v{REC} offset0:{PD//256} offset1:{PD//256+1}",
            f"ds_read_b32 v{PDV+2}, v{REC} offset:{PD+512}"]
build1 = [f"v_readlane_b32 s{sNF}, v{REC}, 0",
          f"v_readlane_b32 s{sNL}, v{REC}, 63",
          f"v_cmp_ne_u32 {s(sVAL,2)}, s{sC10K}, v{BT}",
          f"v_add_u32 v{BT+1}, v{REC}, v{REC}",
          f"s_and_b32 s60, s{sNF}, -8\ns_mul_i32 s{sNEG}, s60, -4\ns_lshr_b32 s60, s60, 1",
          f"v_lshl_add_u32 v{BT+2}, v{REC}, 2, s{sNEG}",
          f"v_add_u32 v{aAT}, s60, v{aATb}",
          f"v_lshlrev_b64 {v(REC+2,2)}, v{BT+2}, {s(sOHC,2)}",
          f"v_bitop3_b32 v{BT+1}, v{BT+1}, 56, v{aR2b} bitop3:0x6a"]
build2 = [f"v_sub_f32 v{PDV+2}, v{PDV+2}, v{PS+2}",
          f"v_sub_f32 v{PDV}, v{PDV}, v{PS}",
          f"v_sub_f32 v{PDV+1}, v{PDV+1}, v{PS+1}",
          f"v_cvt_pk_bf16_f32 v{R2V+1}, v{PDV+2}, 1.0",
          f"v_cvt_pk_bf16_f32 v{R2V}, v{PDV}, v{PDV+1}",
          f"v_lshlrev_b32 v{BT+2}, 16, v{R2V+1}",
          f"v_mul_f32 v{BT}, v{BT+2}, v{BT+2}",
          f"v_dot2_f32_bf16 v{BT}, v{R2V}, v{R2V}, v{BT}",
          None, None, None,
          f"v_cvt_pk_bf16_f32 v{REC}, v{BT}, v{BT}"]
build3 = [f"ds_write_b64 v{aR2}, {v(ZP,2)}",
          f"ds_write_b128 v{aR1w}, {v(REC,4)}",
          f"s_mov_b64 exec, {s(sVAL,2)}\nds_write_b64 v{BT+1}, {v(R2V,2)}\ns_mov_b64 exec, -1",
          f"ds_read2_b32 {v(WX+2,2)}, v{aAT} offset1:1"]
keepaddr = f"v_mov_b32 v{aR2}, v{BT+1}"
def opreads(n):
    return [f"ds_read_b128 {v(R1OP,4)}, v{aR1r} offset:{n*256}",
            f"ds_read_b64_tr_b16 {v(S[n],2)}, v{aS0} offset:{n*1024}",
            f"ds_read_b64_tr_b16 {v(S[n]+2,2)}, v{aS1} offset:{n*1024}"]
def stage1(n):
    t = T[n & 1]
    return [f"v_mfma_f32_32x32x16_bf16 {v(t,16)}, {v(R1OP,4)}, {v(WX,4)}, 0",
            f"v_mfma_f32_32x32x16_bf16 {v(t,16)}, {v(G[n&1],4)}, {v(I0,4)}, {v(t,16)}",
            f"v_mfma_f32_32x32x16_bf16 {v(t,16)}, {v(G[n&1]+4,4)}, {v(I1,4)}, {v(t,16)}"]
def stage2(n):
    return [f"v_mfma_f32_32x32x16_bf16 {v(AC[c],16)}, {v(M[c],4)}, {v(S[n],4)}, {v(AC[c],16)}" for c in range(2)]
def pkmul(q): return [f"v_pk_mul_f32 {v(E[q]+2*i,2)}, {v(E[q]+2*i,2)}, {v(T[q]+2*i,2)}" for i in range(8)]
def cvt(q): return [f"v_cvt_pk_bf16_f32 v{M[c]+a}, v{E[q]+4*a+c}, v{E[q]+4*a+2+c}" for a in range(4) for c in range(2)]
def flushchk(lbl):
    e(f"s_min_u32 s60, s{sNL}, s{sNLW}")
    e(f"s_sub_u32 s60, s60, s{sBASE}")
    e("s_cmp_ge_u32 s60, 32")
    e(f"s_cbranch_scc1 L_flush_{lbl}")
    e.label(f"L_flret_{lbl}")
def rowaddr():
    return [f"v_subrev_u32 v4, s{sBASE}, v{L}",
            "v_and_b32 v4, 28, v4",
            f"v_add_u32 v4, s{sBASE}, v4",
            f"v_cmp_eq_u32 vcc, s{sNFW}, v4",
            f"v_cmp_lt_u32 s[62:63], s{sNLW}, v4",
            f"s_lshl_b32 s61, s{sW}, 2",
            f"s_add_u32 s61, s61, {NB*4}",
            "v_mov_b32 v7, s61",
            "v_cndmask_b32 v4, v4, v7, vcc",
            f"v_mov_b32 v7, {OOB//64}",
            "v_cndmask_b32 v4, v4, v7, s[62:63]",
            f"v_mul_u32_u24 v4, {ACCS//4}, v4",
            f"v_add_u32 v4, {ACC}, v4",
            f"v_lshrrev_b32 v7, 5, v{L}",
            f"v_lshl_add_u32 v{vRowM}, v7, 4, v4",
            f"v_lshl_add_u32 v4, v7, 2, v4",
            f"v_and_b32 v7, 3, v{L}",
            f"v_lshl_add_u32 v{vRowP}, v7, 3, v4"]
def bfaddr():
    return [f"v_ffbl_b32 v5, v{vMask}",
            f"v_add_u32 v6, -1, v{vMask}",
            f"v_min_u32 v5, {OOB//256}, v5",
            f"v_and_b32 v{vMask}, v6, v{vMask}",
            f"v_mul_u32_u24 v5, {ACCS}, v5",
            f"v_add_u32 v{vFB}, v{vFO}, v5"]
def mmask():
    e("s_mov_b32 exec_lo, 0x88888888")
    e("s_mov_b32 exec_hi, 0x88888888")
def flush_slow():
    e("s_nop 7")
    e("v_mov_b32 v2, 0")
    for i in range(8):
        e(f"ds_read_b128 v[4:7], v{vWxa} offset:{WXT+16*i}")
        e("s_waitcnt lgkmcnt(0)")
        for r in range(4): e(f"v_fmac_f32 v2, v{AC[0]+4*i+r}, v{4+r}")
    e(f"ds_add_f32 v{vRowP}, v2 offset:256")
    mmask()
    for i in range(32): e(f"ds_add_f32 v{vRowM}, v{AC[0]+i} offset:{(i//4)*32+(i%4)*4}")
    e("s_mov_b64 exec, -1")

def step(sidx, first=False):
    q = sidx & 1; n1 = (sidx + 1) & 3
    R = OPT["ramp"]
    e("s_setprio 0")
    if sidx == 1: flushchk("mid")
    mem = gather(sidx + DEP, IDX) + [f"ds_read_u16 v{IDX}, v{aIdx} offset:{(sidx+DEP+1)*128}"]
    if sidx == 3: mem += build3
    mem += opreads(n1)
    if sidx == 3: mem += [recread(1024)]
    if sidx == 1: mem += posreads
    oth = {0: [posaddr], 1: build1, 2: build2, 3: [keepaddr, f"v_add_u32 v{aIdx}, 512, v{aIdx}", f"v_add_u32 v{aRec}, 512, v{aRec}"]}[sidx]
    for y in mem: e(y)
    oth = list(oth)
    for i in range(16):
        if i == R[0]: e("s_setprio 1")
        e(f"v_exp_f32 v{E[q]+i}, v{T[q]+i}")
        if i >= R[0] - 1 and oth:
            y = oth.pop(0)
            if y: e(y)
    assert not oth
    addone = f"{OPT.get('ao', 'v_mfma_f32_32x32x8_bf16')} {v(E[q],16)}, {v(ONE,2)}, {v(ONE,2)}, {v(E[q],16)}"
    e("s_setprio 2")
    if first:
        e("s_nop 0"); e(addone); e("s_nop 7")
    else:
        for x in pkmul(1 - q): e(x)
        e(addone)
        for x in cvt(1 - q): e(x)
    e(f"s_sub_u32 s{sCNT}, s{sCNT}, 1")
    e("s_waitcnt vmcnt(2) lgkmcnt(0)")
    mf = stage1(n1) + ([] if first else stage2((sidx - 1) & 3))
    for i in range(16):
        if i % 3 == 0 and i // 3 < len(mf):
            e(mf[i // 3])
            if i == 0: e("s_setprio 3")
        e(f"v_rcp_f32 v{E[q]+i}, v{E[q]+i}")
    e(f"s_cbranch_scc1 L_evt{sidx}")

e(recread(0))
e(f"ds_read_u16 v{PI}, v{aIdx}")
e(f"ds_read_u16 v{PI+2}, v{aIdx} offset:128")
e(f"ds_read_u16 v{IDX}, v{aIdx} offset:{DEP*128}")
e("s_waitcnt lgkmcnt(2)")
e(posaddr)
for x in posreads: e(x)
for x in gather(0, PI): e(x)
for x in build1: e(x)
e("s_waitcnt lgkmcnt(0)")
g1 = gather(1, PI + 2) + ["s_nop 0"]
for x in build2: e(x if x else g1.pop(0))
for x in build3: e(x)
for x in opreads(0): e(x)
e(recread(512))
e(f"ds_read_b32 v{vMask}, v{vAItem} offset:{LNK}")
e(f"ds_write_b32 v1, v{ZP} offset:{CNT2}")
e(keepaddr)
e("s_waitcnt vmcnt(2) lgkmcnt(5)")
for x in stage1(0): e(x)
for x in rowaddr(): e(x)
e("s_waitcnt lgkmcnt(0)")
for x in bfaddr(): e(x)
stamp(10)
step(0, first=True)
e("s_branch L_s1")
for sidx in range(4):
    e.label(f"L_s{sidx}")
    step(sidx)
e("s_branch L_s0")
for sidx in range(4):
    q = sidx & 1
    e.label(f"L_evt{sidx}")
    e(f"s_cmp_eq_u32 s{srdBP+2}, 0")
    e(f"s_mov_b32 s{srdBP+2}, 0")
    e(f"s_mov_b32 s{sCNT}, {DEP-1}")
    e(f"s_cbranch_scc0 L_s{(sidx+1)&3}")
    if sidx == 0: flushchk("dr")
    for i in range(4): e(f"ds_read_b128 {v(E[1-q]+4*i,4)}, v{vWxa} offset:{WXT+16*i}")
    for i in range(4): e(f"ds_read_b128 {v(T[1-q]+4*i,4)}, v{vWxa} offset:{WXT+64+16*i}")
    for x in pkmul(q) + cvt(q): e(x)
    e(f"s_cmp_lg_u32 s{sSLOW}, 0")
    e("s_nop 0")
    for x in stage2(sidx): e(x)
    e("s_cbranch_scc1 L_slow_final")
    if sidx < 2: e(f"s_branch L_final_flush{q}")
    else:
        e.label(f"L_final_flush{q}")
        stamp(11)
        e("s_waitcnt lgkmcnt(0)")
        e("s_nop 6")
        mmask()
        for i in range(8): e(f"ds_write_b128 v{vRowM}, {v(AC[0]+4*i,4)} offset:{i*32}")
        e("s_mov_b64 exec, -1")
        e(f"v_pk_mul_f32 v[4:5], {v(AC[0],2)}, {v(E[1-q],2)}")
        e(f"v_pk_mul_f32 v[6:7], {v(AC[1],2)}, {v(T[1-q],2)}")
        for i in range(1, 8):
            e(f"v_pk_fma_f32 v[4:5], {v(AC[0]+2*i,2)}, {v(E[1-q]+2*i,2)}, v[4:5]")
            e(f"v_pk_fma_f32 v[6:7], {v(AC[1]+2*i,2)}, {v(T[1-q]+2*i,2)}, v[6:7]")
        e("v_pk_add_f32 v[4:5], v[4:5], v[6:7]")
        e("v_add_f32 v4, v4, v5")
        e(f"ds_write_b32 v{vRowP}, v4 offset:256")
        if sidx == 2: e("s_branch L_b6")
e.label("L_b6")
MR = 16; MB = 32; Y = 40; YE = 48; HU = 56; MX = 64
e(f"s_cmp_lg_u32 s{sMORE}, 0")
e(f"v_cmp_ne_u32 vcc, 0, v{vMask}")
e("s_waitcnt lgkmcnt(0)")
e("s_barrier")
stamp(12)
e("s_cbranch_scc1 L_more")
e(f"s_cmp_ge_u32 s{sW}, 6")
e("s_cbranch_scc1 L_finpos")
for i in range(4):
    e(f"ds_read_b128 {v(MR+4*i,4)}, v{vFA} offset:{(i>>1)*128+(i&1)*16}")
    e(f"ds_read_b128 {v(MX+4*i,4)}, v{vFB} offset:{(i>>1)*128+(i&1)*16}")
for d in range(4):
    e(f"v_lshlrev_b32 v{HU+2*d}, 16, v{HRES+d}")
    e(f"v_and_b32 v{HU+2*d+1}, 0xffff0000, v{HRES+d}")
e(f"s_mov_b32 s60, {NLN2}")
e("s_cbranch_vccnz L_finbf_more")
e.label("L_finbf")
for i in range(4):
    e(f"s_waitcnt lgkmcnt({6-2*i})")
    for d in range(2): e(f"v_pk_add_f32 {v(MR+4*i+2*d,2)}, {v(MR+4*i+2*d,2)}, {v(MX+4*i+2*d,2)}")
    for d in range(2): e(f"v_cvt_pk_bf16_f32 v{MB+2*i+d}, v{MR+4*i+2*d}, v{MR+4*i+2*d+1}")
for t in range(2): e(f"v_mfma_f32_16x16x32_bf16 {v(Y+4*t,4)}, {v(WH2+8*t,4)}, {v(MB,4)}, {v(H1+4*t,4)}")
for t in range(2): e(f"v_mfma_f32_16x16x32_bf16 {v(Y+4*t,4)}, {v(WH2+8*t+4,4)}, {v(MB+4,4)}, {v(Y+4*t,4)}")
e("s_nop 6")
for i in range(8): e(f"v_exp_f32 v{YE+i}, v{Y+i}")
for i in range(4): e(f"v_pk_add_f32 {v(YE+2*i,2)}, {v(YE+2*i,2)}, 1.0 op_sel_hi:[1,0]")
for i in range(4): e(f"v_pk_mul_f32 {v(Y+2*i,2)}, {v(Y+2*i,2)}, s[60:61] op_sel_hi:[1,0]")
for i in range(8): e(f"v_rcp_f32 v{YE+i}, v{YE+i}")
for i in range(4): e(f"v_pk_fma_f32 {v(HU+2*i,2)}, {v(Y+2*i,2)}, {v(YE+2*i,2)}, {v(HU+2*i,2)}")
for d in range(4): e(f"v_cvt_pk_bf16_f32 v{Y+d}, v{HU+2*d}, v{HU+2*d+1}")
e(f"s_mov_b64 exec, {s(sOM,2)}")
e(f"global_store_dwordx4 v{vOA}, {v(Y,4)}, {s(sOUT,2)} sc1")
stamp(13, last=True)
e("s_endpgm")
e.label("L_finpos")
e(f"ds_read_b64 v[16:17], v{vFA}")
e.label("L_posbf")
e(f"ds_read_b64 v[18:19], v{vFB}")
e("s_waitcnt lgkmcnt(0)")
e("v_add_f32 v16, v16, v18")
e("v_add_f32 v17, v17, v19")
e("s_cbranch_vccnz L_posbf_more")
e("v_add_f32 v16, v16, v17")
e(f"v_add_f32 v{vPosOwn}, v{vPosOwn}, v16")
e(f"v_cvt_pk_bf16_f32 v2, v{vPosOwn}, v{vPosOwn}")
e(f"v_mov_b32 v7, s{sTAG}")
e(f"s_mov_b64 exec, {s(sOM,2)}")
e(f"global_store_short v{vOA}, v2, {s(sOUT,2)} sc1")
e("s_cmp_lg_u32 s2, 0")
e("s_cbranch_scc1 L_noep")
e("s_mov_b64 exec, 1")
e(f"global_store_dword v{ZP}, v7, {s(sWS,2)} sc1")
e.label("L_noep")
stamp(13, last=True)
e("s_endpgm")
for lbl in ("mid", "dr"):
    e.label(f"L_flush_{lbl}")
    flush_slow()
    e("s_waitcnt lgkmcnt(0)")
    for i in range(32): e(f"v_mov_b32 v{AC[0]+i}, 0")
    e(f"s_mov_b32 s{sBASE}, s{sNF}")
    e(f"s_mov_b32 s{sSLOW}, 1")
    for x in rowaddr(): e(x)
    e(f"s_branch L_flret_{lbl}")
e.label("L_slow_final")
flush_slow()
e("s_branch L_b6")
e.label("L_finbf_more")
e("s_waitcnt lgkmcnt(0)")
for i in range(16): e(f"v_add_f32 v{MR+i}, v{MR+i}, v{MX+i}")
for x in bfaddr(): e(x)
for i in range(4): e(f"ds_read_b128 {v(MX+4*i,4)}, v{vFB} offset:{(i>>1)*128+(i&1)*16}")
e(f"v_cmp_ne_u32 vcc, 0, v{vMask}")
e("s_waitcnt lgkmcnt(0)")
e("s_cbranch_vccnz L_finbf_more")
e("s_branch L_finbf")
e.label("L_posbf_more")
for x in bfaddr(): e(x)
e(f"v_cmp_ne_u32 vcc, 0, v{vMask}")
e("s_branch L_posbf")
e.label("L_pollout")
e(f"s_mov_b32 s{sBUD}, 0")
e("s_branch L_gotoff")
e.label("L_stale")
e(f"s_cmp_eq_u32 s{sBUD}, 0")
e("s_cbranch_scc1 L_gotrec")
e(f"s_sub_u32 s{sBUD}, s{sBUD}, 1")
e("s_branch L_fetch")
e.label("L_pad0")
e("v_mov_b32 v8, v1")
e("v_mov_b32 v9, 10000")
e("s_mov_b64 exec, vcc")
e.label("L_pad")
e("v_add_u32 v7, v6, v2")
e("v_add_u32 v2, 8, v2")
e("ds_write_b64 v7, v[8:9]")
e("v_cmp_lt_u32 vcc, v2, v4")
e("s_and_b64 exec, vcc, vcc")
e("s_cbranch_scc1 L_pad")
e("s_mov_b64 exec, -1")
e("s_branch L_nopad")
e.label("L_more")
e("s_waitcnt vmcnt(0)")
e("s_setprio 0")
e(f"s_mov_b32 s{srdBP+2}, 10000")
e(f"s_mov_b64 {s(sPF,2)}, 0")
e(f"s_mov_b32 s{sMULTI}, 1")
e(f"s_cmp_eq_u32 s{sWID}, {NARROW}")
e(f"s_cselect_b32 s60, {NARROW}, 0x100")
e("v_mov_b32 v4, s60")
for p in range(4):
    e(f"v_and_b32 v5, 0xfff0, v{SEG+p}")
    e(f"v_lshrrev_b32 v6, 16, v{SEG+p}")
    e(f"v_add_u32 v7, s{sWID}, v5")
    e("v_cmp_lt_u32 vcc, v7, v6")
    e("v_add_u32 v5, v4, v5")
    e("v_min_u32 v5, v5, v6")
    e(f"v_lshl_or_b32 v{SEG+p}, v6, 16, v5")
    e(f"v_mov_b32 v7, s{sWID}")
    e("v_cndmask_b32 v4, v4, v7, vcc")
e(f"s_movk_i32 s{sWID}, 0x80")
batchsetup()
e(f"v_mov_b32 v{vPF}, 0")
e("s_branch L_fetch")
e.label("L_narrow")
e(f"s_mov_b32 s{sANYB}, 0")
e("s_mov_b64 exec, vcc")
e(f"ds_write_b32 v{ZP}, v13 offset:{CNT2+252}")
e("s_mov_b64 exec, -1")
e("s_branch L_nob0")
e.label("L_redo")
e(f"s_cmp_eq_u32 s{sWID}, {NARROW}")
e("s_cbranch_scc1 L_end")
e("s_waitcnt vmcnt(0) lgkmcnt(0)")
e("s_barrier")
e(f"ds_write_b32 v1, v{ZP} offset:{CNT2}")
e(f"s_movk_i32 s{sWID}, {NARROW}")
batchsetup()
e(f"v_cmp_gt_u32 vcc, {NARROW}, v{vJ}")
e(f"v_mov_b32 v1, {OOB}")
e("s_waitcnt lgkmcnt(0)")
e(f"v_cndmask_b32 v{vJ}, v1, v{vJ}, vcc")
e("s_barrier")
e("s_branch L_fetch")
e.label("L_end")
e("s_endpgm")

probs = check_cfg(e.lines)
for p in probs: print("HAZARD", p, file=sys.stderr)

ref = open("cdna_kernels/" + KN + ".s.ref").read().split("\n")
hdr = []
for l in ref:
    if l.startswith("; Override launch"): break
    hdr.append(l)
out = "\n".join(hdr) + f"""
; One persistent launch: 250 workgroups (one per CU) bin the edges by destination bucket, hand the bins
; over through d_ws (tagged with a per-launch epoch), then each workgroup updates its 40 nodes.
; @launch grid=({NWG},1,1) block=(512,1,1) lds={LDS_SIZE}
.amdgcn_target "amdgcn-amd-amdhsa--gfx950"
.text
.globl {KN}_kernel
.p2align 8
.type {KN}_kernel,@function
{KN}_kernel:
{e.text()}.section .rodata,"a"
.p2align 6
.amdhsa_kernel {KN}_kernel
  .amdhsa_next_free_vgpr 256
  .amdhsa_next_free_sgpr 102
  .amdhsa_accum_offset 256
  .amdhsa_group_segment_fixed_size 0
  .amdhsa_kernarg_size 88
  .amdhsa_user_sgpr_count 2
  .amdhsa_user_sgpr_kernarg_segment_ptr 1
  .amdhsa_system_sgpr_workgroup_id_x 1
  .amdhsa_float_denorm_mode_32 3
.end_amdhsa_kernel
"""
open(sys.argv[1], "w").write(out)
print("wrote", sys.argv[1], len(e.lines), "lines;", len(probs), "hazards; LDS end", LDS_END, file=sys.stderr)
```

```python
import sys, struct
from asmlib import Emit, v, s, check_cfg

KN = "standalone__cheap_equivariant_egnn__graph"
OPT = dict(stamps=False, ramp=(3, 16, 34), bpf=1, pollat=2, lcat="fetch", posat=("b2",3,1), zs=(2,6), wdat=-1, p2at="win", pall=0)
for a in sys.argv[2:]:
    k, _, val = a.partition("=")
    try: OPT[k] = eval(val) if val else True
    except Exception: OPT[k] = val

def fbits(x): return struct.unpack("<I", struct.pack("<f", x))[0]
LOG2E = 1.4426950408889634; LN2 = 0.6931471805599453
NL2E = hex(fbits(-LOG2E)); NLN2 = hex(fbits(-LN2))

NWG = 250; CH = 2560; NB = 40; DEP = 2
CHB = 13696
CNT1 = 0x0; OFF1 = 0x400; CNT2 = 0x800; LNK = 0x900; BASE2 = 0xA00; PD = 0xB00; WXT = 0xE00
STB = 0x1000; R2 = 0x2000; ACC = R2 + 32768; ACCS = 304
BF = ACC + NB * ACCS; AT = BF + 8 * ACCS; ATS = 104; WL = AT + 64 * ATS; WXL = WL + 256
POS = WL + 384; STG = R2; SORT2 = POS + 61440; CAPB = 3888 * 8; R1 = SORT2 + CAPB + 512; LDS_END = R1 + 8192
PADB = 32 * 8; NARROW = 48
assert NWG * 9 * 8 + NB * PADB <= CAPB and POS + 4 < 65536
WE = SORT2; WH = WE + 16384; HB = WH + 16384
OOB = 0x100000
LDS_SIZE = 163840
assert LDS_END <= LDS_SIZE and HB + 6144 <= LDS_END and R2 % 64 == 0 and WE % 128 == 0
WS_OFF = 0x10000; WS_BP = 0x80000; WS_REC = 0x200000; WS_STAMP = 0x1000000
TAGC = 0x9E3779B1; M3 = 0xFF030303
sH, sPOS, sE, sSRC, sDST, sWE, sWX, sWH, sOUT, sDBG, sWS = 4, 6, 8, 10, 12, 14, 16, 18, 20, 22, 24
sW, sB = 26, 27
srdBP, srdPOS, srdH = 28, 32, 36
sTAG, sMULTI, sBUD, sWID, sONCE, sN0, sNG, sCHF = 40, 41, 42, 43, 44, 45, 46, 47
sOHC, sNFW, sNLW, sCNT, sBASE, sNF, sNL, sNEG, sMORE, sVAL = 48, 50, 51, 52, 53, 54, 55, 56, 57, 58
sT = 36
sOM = 4; sPF = 6; sRB = 8; sSLOW = 16; sANYB = 17; sC10K = 18
sMK = 64
T = [16, 32]; E = [48, 64]; AC = [80, 96]; M = [112, 116]; G = [120, 128]; S = [152, 156, 160, 164]
R1OP = 168; WX = 172; I0 = 176; I1 = 180; ONE = 184; IDX = 186
aIdx, aRec, aR1r, aS0, aS1, aR1w, aR2b, aR2, aATb, aAT = 188, 189, 190, 191, 192, 193, 194, 195, 196, 197
vRowM, vRowP = 198, 199
REC = 200; R2V = 204; PS = 206; vSrc = 208; vFO = 209; PDV = 210; BT = 213; ZP = 216; vIdxL = 218; vFA = 219
SEG = 220; vMask = 224; vWxa = 225; H1 = 226; vPosOwn = 230; HRES = 234; WH2 = 238; vLane = 254; vAItem = 255
vOA = 12; vFB = 3
L = vLane
SD = "dst_sel:DWORD dst_unused:UNUSED_PAD"

e = Emit()
def stamp(i, last=False, wait=False):
    if OPT.get("diag") is not None:
        a_, b_, neg = OPT["diag"]
        if i == 0: e("s_memrealtime s[98:99]")
        if i == a_: e("s_memrealtime s[100:101]")
        if i == b_: e("s_memrealtime s[22:23]")
        if last:
            stamp.n = getattr(stamp, "n", 0) + 1
            if b_ == 99: e("s_waitcnt vmcnt(0)\ns_memrealtime s[22:23]")
            e("s_waitcnt lgkmcnt(0)\ns_sub_u32 s101, s22, s100")
            if neg: e(f"s_sub_u32 s101, {neg}, s101\ns_max_i32 s101, s101, 0")
            e("s_min_u32 s101, s101, 5000\ns_lshl_b32 s101, s101, 3\ns_add_u32 s101, s101, 3000")
            e.label(f"L_spin{stamp.n}")
            e("s_memrealtime s[22:23]\ns_waitcnt lgkmcnt(0)\ns_sub_u32 s22, s22, s98\ns_cmp_lt_u32 s22, s101")
            e(f"s_cbranch_scc1 L_spin{stamp.n}")
        return
    if not OPT["stamps"]: return
    if wait: e("s_waitcnt lgkmcnt(0)")
    if i > 0:
        e("s_mov_b32 m0, s101\nv_writelane_b32 v15, s98, m0\nv_writelane_b32 v14, s22, m0")
    e("s_memrealtime s[98:99]")
    if i > 0: e("s_memtime s[22:23]")
    e(f"s_mov_b32 s101, {i}")
    if i in (6, 7, 9): e(f"v_writelane_b32 v15, s{sBUD}, {16+i}")
    if i == 10: e(f"s_add_u32 s100, s{sCNT}, {DEP-4}\nv_writelane_b32 v15, s100, 26")
    if last:
        e("s_mov_b64 exec, -1\ns_waitcnt lgkmcnt(0)")
        e(f"v_writelane_b32 v15, s98, {i}\nv_writelane_b32 v14, s22, {i}")
        e(f"s_lshl_b32 s100, s2, 3\ns_add_u32 s100, s100, s{sW}\ns_lshl_b32 s100, s100, 7\ns_add_u32 s100, s100, {WS_STAMP}")
        e(f"v_lshl_add_u32 v13, v{L}, 2, s100\ns_mov_b32 exec_hi, 0")
        e(f"global_store_dword v13, v15, {s(sWS,2)}\nv_add_u32 v13, 0x100000, v13\nglobal_store_dword v13, v14, {s(sWS,2)}")

def fine(i, g=1):
    if OPT.get("fine") == g: e(f"s_memtime s[{72+2*i}:{73+2*i}]")
def finedump(n, g=1):
    if OPT.get("fine") == g:
        for i in range(n): e(f"s_nop 0\nv_writelane_b32 v14, s{72+2*i}, {16+i}")
def scan(r, fill=()):
    fill = list(fill)
    for m in ("row_shr:1 row_mask:0xf bank_mask:0xf bound_ctrl:1", "row_shr:2 row_mask:0xf bank_mask:0xf bound_ctrl:1",
              "row_shr:4 row_mask:0xf bank_mask:0xf bound_ctrl:1", "row_shr:8 row_mask:0xf bank_mask:0xf bound_ctrl:1",
              "row_bcast:15 row_mask:0xa bank_mask:0xf", "row_bcast:31 row_mask:0xc bank_mask:0xf"):
        if len(fill) >= 2:
            e(fill.pop(0)); e(fill.pop(0))
        else: e("s_nop 1")
        e(f"v_add_u32_dpp v{r}, v{r}, v{r} {m}")
    assert not fill

DSTR = 16; SRCR = 24; ER = 32; XB = 36; QQ = 42; B4 = 48; RK = 56
WA0 = 64; WA1 = 65; WA2 = 66; HA = 67; CA0 = 68; PBA = 69; TCH = 70; vTG = 71; HF = 72
WT = 80; DT = 112; W1T = 96; aWH = 144; aWT = 148; PB = 152; ZQ = 156
stamp(0)
e(f"s_cmp_ge_u32 s2, {NWG}")
e("s_cbranch_scc1 L_end")
e("s_load_dwordx16 s[4:19], s[0:1], 0")
e("s_load_dwordx4 s[20:23], s[0:1], 64")
e("s_load_dwordx2 s[24:25], s[0:1], 80")
e("s_getpc_b64 s[62:63]")
e.label("L_pc")
e("v_lshlrev_b32 v5, 5, v0")
e("v_min_u32 v5, L_end-L_pc, v5")
e("s_mov_b32 exec_lo, 0x11111111")
e("s_mov_b32 exec_hi, 0x11111111")
e(f"global_load_dword v{TCH}, v5, s[62:63]")
e("s_mov_b64 exec, -1")
e(f"s_mul_i32 s3, s2, {CH*4}")
e("v_lshl_add_u32 v8, v0, 4, s3")
e(f"s_add_u32 s60, s3, 8192")
e("v_lshl_add_u32 v9, v0, 2, s60")
e("s_lshr_b32 s3, s3, 1")
e("v_lshl_add_u32 v10, v0, 3, s3")
e("s_add_u32 s60, s3, 4096")
e("v_lshl_add_u32 v11, v0, 1, s60")
e("v_lshrrev_b32 v5, 6, v0")
e(f"v_and_b32 v{L}, 63, v0")
e(f"v_readfirstlane_b32 s{sW}, v5")
e(f"v_mov_b32 v{ZP}, 0")
e(f"v_mov_b32 v{ZP+1}, 0")
e("v_lshlrev_b32 v12, 4, v0")
e("v_lshlrev_b32 v5, 3, v0")
e(f"ds_write_b64 v5, {v(ZP,2)}")
e("s_and_b32 s60, s2, 7")
e(f"s_mul_i32 s{sB}, s60, 31")
e("s_min_u32 s60, s60, 2")
e(f"s_add_u32 s{sB}, s{sB}, s60")
e("s_lshr_b32 s96, s2, 3")
e(f"s_add_u32 s{sB}, s{sB}, s96")
e(f"s_mul_i32 s{sN0}, s{sB}, {NB}")
e(f"v_and_b32 v5, 16, v{L}")
e("v_and_b32 v6, 64, v0")
e("v_lshl_or_b32 v5, v5, 1, v6")
e(f"v_xor_b32 v{WA0}, v5, v12")
e(f"v_add_u32 v{WA1}, 8192, v{WA0}")
e(f"v_lshlrev_b32 v5, 1, v{L}")
e(f"s_lshl_b32 s60, s{sN0}, 7")
e("v_and_b32 v5, 0x70, v5")
e(f"v_xad_u32 v{HA}, v5, v12, s60")
e(f"s_lshl_b32 s60, s{sW}, 10")
e(f"s_add_u32 m0, s60, {WE+8192}")
e("s_waitcnt lgkmcnt(0)")
e(f"global_load_dwordx4 {v(DSTR,4)}, v8, {s(sDST,2)}")
e(f"global_load_dword v{DSTR+4}, v9, {s(sDST,2)}")
e(f"s_mov_b32 s{srdH}, s{sH}")
e(f"s_and_b32 s{srdH+1}, s{sH+1}, 0xffff")
e(f"s_mov_b32 s{srdH+2}, 1280000")
e(f"s_mov_b32 s{srdH+3}, 0x20000")
e(f"s_cmp_ge_u32 s{sW}, 6")
e(f"global_load_lds_dwordx4 v{WA1}, {s(sWE,2)}")
e("s_cbranch_scc1 L_d67")
e(f"s_add_u32 m0, s60, {HB}")
e("s_nop 0")
e(f"buffer_load_dwordx4 v{HA}, {s(srdH,4)}, 0 offen lds")
e("s_branch L_ddone")
e.label("L_d67")
e(f"s_add_u32 s62, s{sWE}, 16384")
e(f"s_addc_u32 s63, s{sWE+1}, 0")
e(f"v_lshlrev_b32 v5, 4, v{L}")
e(f"s_cmp_eq_u32 s{sW}, 7")
e(f"s_cselect_b64 s[62:63], {s(sWX,2)}, s[62:63]")
e(f"s_cselect_b32 s61, 256, 0")
e(f"s_cselect_b32 s97, 8, 16")
e(f"s_add_u32 m0, s61, {WL}")
e("s_bfm_b64 exec, s97, 0")
e(f"global_load_lds_dwordx4 v5, s[62:63]")
e("s_mov_b64 exec, -1")
e.label("L_ddone")
e("s_barrier")
e(f"global_load_dwordx4 {v(SRCR,4)}, v8, {s(sSRC,2)}")
e(f"global_load_dword v{SRCR+4}, v9, {s(sSRC,2)}")
e(f"global_load_dwordx2 {v(ER,2)}, v10, {s(sE,2)}")
e(f"global_load_short_d16_hi v{ER+2}, v11, {s(sE,2)}")
e(f"global_load_dword v{vTG}, v{ZP}, {s(sWS,2)}")
stamp(1)
for i in range(4): e(f"v_mov_b32 v{ZQ+i}, 0")
assert R2 + 6*8192 >= AT and R2 + 6*8192 <= WL
e(f"ds_write_b128 v{ZP}, {v(ZQ,4)} offset:{STG+853*16}")
def zero(lo, hi):
    e("v_lshlrev_b32 v5, 4, v0")
    for i in range(lo, hi):
        if i == 5:
            e(f"v_cmp_gt_u32 vcc, {(AT - R2 - 5*8192)//16}, v0")
            e("s_mov_b64 exec, vcc")
        e(f"ds_write_b128 v5, {v(ZQ,4)} offset:{R2+i*8192}")
    if hi == 6: e("s_mov_b64 exec, -1")
Z0, Z1 = OPT["zs"]
if Z0 > 2: zero(2, Z0)
e(f"s_mov_b32 s{srdPOS}, s{sPOS}")
e(f"s_and_b32 s{srdPOS+1}, s{sPOS+1}, 0xffff")
e(f"s_mov_b32 s{srdPOS+2}, 60000")
e(f"s_mov_b32 s{srdPOS+3}, 0x20000")
PT = 1 if OPT.get("ptouch") else 0
if PT:
    e("s_lshl_b32 s61, s96, 11")
    e("v_lshl_add_u32 v5, v0, 2, s61")
    e("s_mov_b32 exec_lo, 1")
    e("s_mov_b32 exec_hi, 1")
    e(f"buffer_load_dword v{TCH}, v5, {s(srdPOS,4)}, 0 offen")
    e("s_mov_b64 exec, -1")
e(f"s_mul_i32 s{sCHF}, s{sW}, 86")
e(f"s_lshr_b32 s{sCHF}, s{sCHF}, 8")
e(f"s_mul_i32 s61, s{sCHF}, 3")
e(f"s_sub_u32 s{sNG}, s{sW}, s61")
e(f"s_and_b32 s61, s{sW}, 3")
e("s_lshl_b32 s61, s61, 1")
e(f"s_lshr_b32 s62, s{sW}, 2")
e("s_add_u32 s61, s61, s62")
e("s_lshl_b32 s61, s61, 8")
e("s_add_u32 s61, s61, 8192")
e(f"v_and_b32 v5, 0x70, v{WA0}")
e(f"v_bfe_u32 v6, v{L}, 3, 2")
e("v_lshl_add_u32 v5, v6, 11, v5")
e(f"v_lshrrev_b32 v6, 5, v{L}")
e("v_lshl_add_u32 v5, v6, 7, v5")
e(f"v_add_u32 v{WA2}, s61, v5")
e(f"v_and_b32 v1, 15, v{L}")
e(f"v_lshrrev_b32 v3, 4, v{L}")
e(f"s_lshl_b32 s61, s{sNG}, 11")
e(f"s_add_u32 s61, s61, {HB}")
e(f"v_and_b32 v2, 7, v{L}")
e("v_xor_b32 v2, v2, v3")
e("v_lshl_add_u32 v4, v1, 7, s61")
e(f"v_lshl_add_u32 v{aWH+1}, v2, 4, v4")
e(f"v_xor_b32 v{aWH+2}, 64, v{aWH+1}")
e(f"v_bfe_u32 v6, v{L}, 2, 2")
e(f"v_and_b32 v2, 3, v{L}")
e("v_lshl_add_u32 v4, v3, 3, v6")
e(f"v_lshlrev_b32 v7, 2, v{L}")
e("v_and_b32 v7, 0x60, v7")
e(f"s_xor_b32 s61, s{sCHF}, 1")
e("s_lshl_b32 s61, s61, 13")
e(f"s_add_u32 s61, s61, {WE}")
e("v_lshl_add_u32 v5, v4, 7, s61")
e("v_lshl_add_u32 v5, v2, 3, v5")
e(f"v_xor_b32 v{aWT}, v7, v5")
for t in range(1, 4): e(f"v_xor_b32 v{aWT+t}, {32*t}, v{aWT}")
e(f"s_lshl_b32 s61, s{sCHF}, 6")
e(f"s_add_u32 s61, s61, {WH}")
e("v_lshl_add_u32 v6, v2, 4, s61")
e("v_lshl_add_u32 v5, v4, 7, v6")
e(f"v_xor_b32 v{aWH}, v7, v5")
e(f"s_lshl_b32 s61, s{sNG}, 4")
e(f"s_add_u32 s61, s61, s{sN0}")
e("s_lshl_b32 s61, s61, 7")
e(f"s_add_u32 s61, s61, {WS_BP}")
e("v_lshl_add_u32 v2, v3, 9, s61")
e(f"v_lshl_add_u32 v{aWH+3}, v1, 3, v2")
e(f"v_lshrrev_b32 v1, 5, v{L}")
e(f"v_and_b32 v7, 3, v{L}")
e(f"v_bfe_u32 v6, v{L}, 3, 2")
e("v_lshlrev_b32 v6, 2, v6")
e("v_lshl_add_u32 v7, v7, 4, v6")
e(f"v_bfe_u32 v6, v{L}, 2, 1")
e("v_add_u32 v7, v7, v6")
e("v_lshl_add_u32 v7, v1, 1, v7")
e(f"v_lshlrev_b32 v{CA0}, 1, v7")
e(f"v_mul_u32_u24 v{aATb}, {ATS}, v7")
e(f"v_add_u32 v{aATb}, {AT}, v{aATb}")

def laneconsts():
    e(f"s_add_u32 s{srdBP}, s{sWS}, {WS_BP}")
    e(f"s_addc_u32 s{srdBP+1}, s{sWS+1}, 0")
    e(f"s_and_b32 s{srdBP+1}, s{srdBP+1}, 0xffff")
    e(f"s_or_b32 s{srdBP+1}, s{srdBP+1}, 0x800000")
    e(f"s_mov_b32 s{srdBP+2}, 10000")
    e(f"s_mov_b32 s{srdBP+3}, 0x20000")
    e(f"s_mov_b32 s{sMULTI}, 0")
    e(f"s_mov_b32 s{sOHC}, 0x3f80")
    e(f"s_mov_b32 s{sOHC+1}, 0")
    e(f"s_movk_i32 s{sWID}, 0x80")
    e(f"s_mov_b32 s{sONCE}, 0")
def laneconsts2():
    e(f"v_lshrrev_b32 v1, 5, v{L}")
    e(f"v_and_b32 v2, 1, v{L}")
    e(f"v_lshlrev_b32 v{vWxa}, 7, v1")
    e(f"v_lshlrev_b32 v3, 5, v1")
    e(f"v_lshl_add_u32 v{IDX+1}, v2, 4, v3")
    e(f"v_bfe_u32 v4, v{L}, 3, 2")
    e(f"v_bfe_u32 v5, v{L}, 1, 1")
    e("v_lshl_add_u32 v4, v4, 1, v5")
    e(f"v_bfe_u32 v5, v{L}, 2, 1")
    e("v_lshl_add_u32 v4, v5, 3, v4")
    e(f"v_lshlrev_b32 v{vIdxL}, 3, v4")
    e(f"s_lshl_b32 s61, s{sW}, 10")
    e(f"s_add_u32 s61, s61, {R1}")
    e(f"v_lshl_add_u32 v{aR1r}, v4, 4, s61")
    e("v_xor_b32 v5, v1, v2")
    e(f"v_lshl_add_u32 v{aR1r}, v5, 20, v{aR1r}")
    e(f"v_lshl_add_u32 v{aR1w}, v{L}, 4, s61")
    e(f"s_lshl_b32 s61, s{sW}, 12")
    e(f"s_add_u32 s61, s61, {R2}")
    e(f"v_bfe_u32 v3, v{L}, 1, 3")
    e(f"v_lshl_add_u32 v4, v{L}, 6, s61")
    e(f"v_lshl_add_u32 v{aR2b}, v3, 3, v4")
    e(f"v_mov_b32 v{aR2}, v{aR2b}")
    e(f"v_bfe_u32 v3, v{L}, 2, 2")
    e(f"v_and_b32 v4, 3, v{L}")
    e(f"v_bfe_u32 v5, v{L}, 4, 1")
    e("v_lshl_add_u32 v5, v5, 2, v4")
    e("v_lshrrev_b32 v7, 1, v3")
    e("v_lshl_add_u32 v7, v1, 2, v7")
    e("v_xor_b32 v5, v5, v7")
    e("v_lshl_add_u32 v7, v1, 3, v3")
    e("v_lshl_add_u32 v7, v7, 6, s61")
    e(f"v_lshl_add_u32 v{aS0}, v5, 3, v7")
    e(f"v_xor_b32 v{aS1}, 16, v{aS0}")
    e(f"v_add_u32 v{aS1}, 256, v{aS1}")
    e(f"v_and_b32 v4, 31, v{L}")
    e("v_lshlrev_b32 v7, 3, v1")
    e("v_sub_u32 v7, v4, v7")
    e("v_lshlrev_b32 v4, 4, v2")
    e(f"v_lshlrev_b32 v4, v4, s{sOHC}")
    e("v_ashrrev_i32 v7, 1, v7")
    for u, I in ((0, I0), (1, I1)):
        for d in range(4): e(f"v_cmp_eq_u32 {s(sMK+2*d,2)}, {8*u+d}, v7")
        for d in range(4): e(f"v_cndmask_b32 v{I+d}, 0, v4, {s(sMK+2*d,2)}")
    e("v_xor_b32 v7, 1, v1")
    e(f"v_mul_u32_u24 v{ONE}, {OPT.get('aov', 0x3f80)}, v7")
    if OPT.get("aoall"): e(f"v_mov_b32 v{ONE}, 0x3f80")
    e(f"v_mov_b32 v{ONE+1}, 0")
if OPT["lcat"] == "start": laneconsts(); laneconsts2()
e("v_mov_b32 v13, 1")
e("s_mov_b32 s61, 52429")
e("s_movk_i32 s62, -40")
e(f"v_lshlrev_b32 v1, 4, v{L}")
e(f"s_lshl_b32 s63, s2, 10")
e(f"s_add_u32 s63, s63, {WS_OFF}")
e(f"v_add_u32 v{PBA}, s63, v1")
def wdma():
    for base, a, ptr in ((WE, WA0, sWE), (WH, WA0, sWH), (WH+8192, WA2, sWH)):
        e(f"s_add_u32 m0, s60, {base}")
        e("s_nop 0")
        e(f"global_load_lds_dwordx4 v{a}, {s(ptr,2)}")
W0 = 3 if OPT["wdat"] == -1 else 0
W1 = 3 if OPT["wdat"] <= 0 else 0
if OPT["wdat"] == -1: wdma()
e(f"s_waitcnt vmcnt({7+W0+PT})")
stamp(14, wait=True)
for i in range(5): e(f"v_mul_u32_u24 v{B4+i}, s61, v{DSTR+i}")
for i in range(5): e(f"v_lshrrev_b32 v{B4+i}, 21, v{B4+i}")
for i in range(5):
    e(f"v_lshlrev_b32 v{B4+i}, 2, v{B4+i}")
    e(f"ds_add_rtn_u32 v{RK+i}, v{B4+i}, v13 offset:{CNT1}")
if OPT["wdat"] == 0: wdma()
e(f"s_cmp_ge_u32 s{sW}, 3")
e(f"s_waitcnt vmcnt({5+W1+PT}) lgkmcnt(0)")
e("s_barrier")
stamp(2)
def nodeprod_reads():
    e(f"ds_read_b128 {v(HF,4)}, v{aWH+1}")
    e(f"ds_read_b128 {v(HF+4,4)}, v{aWH+2}")
    for t in range(4):
        for ks in range(2):
            for rd in range(2):
                e(f"ds_read_b64_tr_b16 {v(WT+8*t+4*ks+2*rd,2)}, v{aWT+t} offset:{ks*4096+rd*512}")
def nodeprod(extra=0):
    e(f"s_mov_b32 s96, {NL2E}")
    for t in range(4):
        e(f"s_waitcnt lgkmcnt({12-4*t+extra})")
        e(f"v_mfma_f32_16x16x32_bf16 {v(DT+4*t,4)}, {v(HF,4)}, {v(WT+8*t,4)}, 0")
        e(f"v_mfma_f32_16x16x32_bf16 {v(DT+4*t,4)}, {v(HF+4,4)}, {v(WT+8*t+4,4)}, {v(DT+4*t,4)}")
def nodescale():
    for i in range(8): e(f"v_pk_mul_f32 {v(DT+2*i,2)}, {v(DT+2*i,2)}, s[96:97] op_sel_hi:[1,0]")
e("s_cbranch_scc1 L_nobp")
nodeprod_reads()
e(f"ds_read_b128 v[4:7], v1 offset:{CNT1}")
if OPT["wdat"] == 1: wdma()
nodeprod(1)
e(f"s_cmp_eq_u32 s{sNG}, 2")
e("s_cselect_b32 s63, 0, -1")
nodescale()
for r in range(4):
    e(f"v_cvt_pk_bf16_f32 v{WT+2*r}, v{DT+r}, v{DT+4+r}")
    e(f"v_cvt_pk_bf16_f32 v{WT+2*r+1}, v{DT+8+r}, v{DT+12+r}")
e("s_mov_b32 exec_hi, s63")
for r in range(4): e(f"global_store_dwordx2 v{aWH+3}, {v(WT+2*r,2)}, {s(sWS,2)} offset:{r*128} sc1")
e("s_mov_b64 exec, -1")
e("s_branch L_bpdone")
e.label("L_nobp")
e(f"ds_read_b128 v[4:7], v1 offset:{CNT1}")
if OPT.get("prew"):
    e(f"s_cmp_lg_u32 s{sW}, 7")
    e("s_cbranch_scc1 L_bpdone")
    e(f"global_store_dwordx4 v{PBA}, {v(ZQ,4)}, {s(sWS,2)} sc1")
if OPT["wdat"] == 1: wdma()
e.label("L_bpdone")
fine(0)
e("s_waitcnt lgkmcnt(0)")
fine(1)
e("v_add_u32 v5, v4, v5")
e("v_add_u32 v6, v5, v6")
e("v_add_u32 v7, v6, v7")
e("v_mov_b32 v3, v7")
scan(3, [f"v_lshlrev_b32 v{XB+i}, 2, v{DSTR+i}" for i in range(5)] +
        [f"v_mad_i32_i24 v{XB+i}, v{B4+i}, s62, v{XB+i}" for i in range(5)] +
        ["s_mov_b32 s63, 0xffff0000", "s_movk_i32 s61, 21846"])
e("v_sub_u32 v8, v3, v7")
e("v_add_u32 v9, v8, v4")
e("v_add_u32 v10, v8, v5")
e("v_add_u32 v11, v8, v6")
e(f"ds_write_b128 v1, v[8:11] offset:{OFF1}")
for i in range(5): e(f"ds_read_b32 v{B4+i}, v{B4+i} offset:{OFF1}")
fine(2)
PN = OPT["pall"]
if PN:
    e(f"s_mul_i32 s97, s{sW}, {PN*1024}")
    e(f"s_add_u32 m0, s97, {POS}")
e(f"s_cmp_ge_u32 s{sW}, 3")
for i in range(PN): e(f"buffer_load_dwordx4 v1, {s(srdPOS,4)}, s97 offen offset:{i*1024} lds")
e(f"s_waitcnt vmcnt({8+PN+PT})")
e("s_cbranch_scc0 L_srcin")
e(f"s_waitcnt vmcnt({4+PN+PT})")
e.label("L_srcin")
fine(3)
e(f"v_lshl_or_b32 v{SRCR}, v{ER}, 16, v{SRCR}")
e(f"v_and_or_b32 v{SRCR+1}, v{ER}, s63, v{SRCR+1}")
e(f"v_lshl_or_b32 v{SRCR+2}, v{ER+1}, 16, v{SRCR+2}")
e(f"v_and_or_b32 v{SRCR+3}, v{ER+1}, s63, v{SRCR+3}")
e(f"v_or_b32 v{SRCR+4}, v{ER+2}, v{SRCR+4}")
for i in range(5):
    e(f"s_waitcnt lgkmcnt({4+i})")
    e(f"v_add_u32 v{B4+i}, v{B4+i}, v{RK+i}")
    e(f"v_mul_u32_u24 v{QQ+i}, s61, v{B4+i}")
    e(f"v_add_u32_sdwa v{QQ+i}, v{B4+i}, v{QQ+i} {SD} src0_sel:DWORD src1_sel:WORD_1")
    e(f"v_lshlrev_b32 v{RK+i}, 2, v{QQ+i}")
    e(f"ds_write_b8 v{QQ+i}, v{XB+i} offset:{STB}")
    e(f"ds_write_b32 v{RK+i}, v{SRCR+i} offset:{STG}")
fine(4)
e(f"s_cmp_lg_u32 s{sW}, 7")
e("s_cbranch_scc1 L_nopb")
for r in (8, 9, 10, 11, 3):
    e(f"v_mul_u32_u24 v2, s61, v{r}")
    e("v_lshrrev_b32 v2, 16, v2")
    e(f"v_add_lshl_u32 v{r}, v{r}, v2, 2")
e(f"v_lshl_or_b32 v{PB}, v9, 16, v8")
e(f"v_lshl_or_b32 v{PB+1}, v11, 16, v10")
e(f"v_mov_b32 v{PB+2}, v3")
e.label("L_nopb")
e(f"s_mul_i32 s60, s2, {CHB}")
e(f"s_lshl_b32 s97, s{sW}, 12")
e("s_add_u32 s60, s60, s97")
e(f"s_add_u32 s60, s60, {WS_REC}")
e("v_add_u32 v2, s60, v1")
e("v_add_u32 v4, s97, v1")
e(f"v_add_u32 v3, {STG}, v4")
e("v_lshrrev_b32 v4, 2, v4")
e("v_mov_b32 v5, 0xfcfcfc")
e(f"s_cmp_eq_u32 s{sW}, 3")
e(f"s_cselect_b64 vcc, {(1 << ((CHB-13312)//16)) - 1}, -1")
e("s_cselect_b64 s[62:63], 0, -1")
fine(5)
e(f"s_waitcnt vmcnt({PN})")
fine(6)
def posloop(name, w0, nw):
    e(f"s_sub_u32 s61, s{sW}, {w0}")
    e(f"s_cmp_ge_u32 s61, {nw}")
    e(f"s_cbranch_scc1 L_{name}e")
    e("s_lshl_b32 s61, s61, 12")
    if PN: e(f"s_add_u32 s61, s61, {PN*8192}")
    e(f"v_lshlrev_b32 v6, 4, v{L}")
    e.label(f"L_{name}")
    e(f"s_add_u32 m0, s61, {POS}")
    e("s_nop 0")
    for i in range(4): e(f"buffer_load_dwordx4 v6, {s(srdPOS,4)}, s61 offen offset:{i*1024} lds")
    e(f"s_add_u32 s61, s61, {4096*nw}")
    e("s_cmp_lt_u32 s61, 61440")
    e(f"s_cbranch_scc1 L_{name}")
    e.label(f"L_{name}e")
if OPT["posat"][0] == "b2": posloop("pl", *OPT["posat"][1:])
e(f"v_readfirstlane_b32 s{sTAG}, v{vTG}")
e(f"v_add_u32 v{PB+3}, {TAGC}, v{vTG}")
e(f"s_add_u32 s{sTAG}, s{sTAG}, {TAGC}")
e(f"s_and_b32 s{sT}, s{sTAG}, 0xc000")
e(f"s_lshl_b32 s60, s{sTAG}, 2")
e(f"s_and_b32 s{sT+1}, s60, 0xc000")
e(f"s_lshl_b32 s60, s{sTAG}, 4")
e(f"s_and_b32 s{sT+2}, s60, 0xc000")
e(f"s_and_b32 s{sT+3}, s{sTAG}, {M3}")
e(f"s_cmp_ge_u32 s{sW}, 4")
e("s_waitcnt lgkmcnt(0)")
fine(7)
e("s_barrier")
stamp(3)
ST = 48
e("s_cbranch_scc1 L_nost")
for i in range(4):
    e(f"ds_read_b128 {v(ST+4*i,4)}, v3 offset:{i*1024}")
    e(f"ds_read_b32 v{8+i}, v4 offset:{STB+i*256}")
for i in range(4):
    e(f"s_waitcnt lgkmcnt({6-2*i})")
    if i == 1: e("s_mov_b64 exec, vcc")
    if i == 2: e("s_mov_b64 exec, s[62:63]")
    for k in range(3): e(f"v_or_b32 v{ST+4*i+k}, s{sT+k}, v{ST+4*i+k}")
    e(f"v_and_or_b32 v{ST+4*i+3}, v{8+i}, v5, s{sT+3}")
    e(f"global_store_dwordx4 v2, {v(ST+4*i,4)}, {s(sWS,2)} offset:{i*1024} sc1")
e("s_mov_b64 exec, -1")
fine(1, 2)
e.label("L_nost")
fine(0, 2)
e(f"s_cmp_lg_u32 s{sW}, 7")
e("s_cbranch_scc1 L_nopub")
e(f"global_store_dwordx4 v{PBA}, {v(PB,4)}, {s(sWS,2)} sc1")
e.label("L_nopub")
stamp(15, wait=True)
finedump(8)
PL = 160; vPA = 164; vPW = 165
def site(n):
    if OPT["posat"][0] == f"pre{n}": posloop("pl", *OPT["posat"][1:])
    if OPT["pollat"] == n:
        pollsetup()
        fine(3, 2)
    if OPT["posat"][0] == f"post{n}": posloop("pl", *OPT["posat"][1:])
def pollsetup():
    e("v_and_b32 v1, 255, v0")
    e(f"s_lshr_b32 s60, s{sB}, 2")
    e("s_lshl_b32 s60, s60, 4")
    e(f"s_add_u32 s60, s60, {WS_OFF}")
    e(f"v_lshl_add_u32 v{vPA}, v1, 10, s60")
    e(f"s_cmp_lt_u32 s{sW}, 4")
    e("s_cbranch_scc1 L_nops")
    e(f"v_cmp_gt_u32 vcc, {NWG}, v1")
    for i in range(3): e(f"v_mov_b32 v{PL+i}, 0")
    e(f"v_mov_b32 v{PL+3}, s{sTAG}")
    e(f"v_lshlrev_b32 v{vPW}, 2, v1")
    e("s_mov_b64 exec, vcc")
    e(f"global_load_dwordx4 {v(PL,4)}, v{vPA}, {s(sWS,2)} sc1")
    e("s_mov_b64 exec, -1")
    e.label("L_nops")
e(f"s_mov_b32 s{sBUD}, 2000000")
e(f"ds_read_u16_d16_hi v{WX}, v{CA0} offset:{WL}")
e(f"ds_read_u16_d16_hi v{WX+1}, v{CA0} offset:{WL+128}")
site(0)
e(f"s_cmp_ge_u32 s{sW}, 6")
e("s_cbranch_scc1 L_w67")
e(f"s_cmp_ge_u32 s{sW}, 3")
e("s_cbranch_scc1 L_w345")
for i in range(4): e(f"v_mov_b32 v{HRES+i}, v{HF+i}")
e("s_branch L_w05")
e.label("L_w345")
nodeprod_reads()
e(f"v_and_b32 v1, 15, v{L}")
e(f"v_lshrrev_b32 v3, 4, v{L}")
e(f"s_lshl_b32 s60, s{sNG}, 5")
e(f"s_add_u32 s60, s60, {AT}")
e("v_lshl_add_u32 v2, v3, 3, s60")
e(f"v_mul_u32_u24 v1, {ATS}, v1")
e("v_add_u32 v2, v1, v2")
nodeprod()
e("s_nop 1")
nodescale()
for t in range(4):
    e(f"v_cvt_pk_bf16_f32 v{WT+2*t}, v{DT+4*t}, v{DT+4*t+1}")
    e(f"v_cvt_pk_bf16_f32 v{WT+2*t+1}, v{DT+4*t+2}, v{DT+4*t+3}")
for i in range(4): e(f"v_mov_b32 v{HRES+i}, v{HF+4+i}")
for t in range(4): e(f"ds_write_b64 v2, {v(WT+2*t,2)} offset:{t*16*ATS}")
e.label("L_w05")
def part2():
    for t in range(2):
        for ks in range(2):
            for rd in range(2):
                e(f"ds_read_b64_tr_b16 {v(W1T+8*t+4*ks+2*rd,2)}, v{aWH} offset:{ks*4096+rd*512+t*8}")
    for t in range(2):
        for c in range(2):
            for rd in range(2):
                e(f"ds_read_b64_tr_b16 {v(WH2+8*t+4*c+2*rd,2)}, v{aWH} offset:{(2+c)*4096+rd*512+t*8}")
    e(f"s_lshl_b32 s60, s{sNG}, 4")
    e(f"v_and_b32 v1, 15, v{L}")
    e(f"v_add_lshl_u32 v{vAItem}, v1, s60, 2")
    e("s_waitcnt lgkmcnt(8)")
    for t in range(2):
        e(f"v_mfma_f32_16x16x32_bf16 {v(H1+4*t,4)}, {v(W1T+8*t,4)}, {v(HF,4)}, 0")
        e(f"v_mfma_f32_16x16x32_bf16 {v(H1+4*t,4)}, {v(W1T+8*t+4,4)}, {v(HF+4,4)}, {v(H1+4*t,4)}")
    e(f"v_and_b32 v2, 48, v{L}")
    e(f"v_lshlrev_b32 v{vFO}, 1, v2")
    e(f"v_add_u32 v{vFO}, {BF}, v{vFO}")
    e(f"s_lshl_b32 s60, s{sN0}, 1")
    e(f"s_add_u32 s60, s60, s{sCHF}")
    e("s_lshl_b32 s60, s60, 6")
    e(f"v_lshl_add_u32 v2, v{vAItem}, 5, v2")
    e(f"v_add_u32 v{vOA}, s60, v2")
    e(f"s_movk_i32 s60, {NB*4}")
    e(f"v_cmp_gt_u32 {s(sOM,2)}, s60, v{vAItem}")
    for i in range(4): e(f"v_pk_mul_f32 {v(H1+2*i,2)}, {v(H1+2*i,2)}, s[96:97] op_sel_hi:[1,0]")
def part3():
    e(f"v_mul_u32_u24 v1, {ACCS//4}, v{vAItem}")
    e(f"v_add_u32 v1, {ACC-BF}, v1")
    e(f"v_add_u32 v{vFA}, v1, v{vFO}")
    e(f"v_mul_f32 v{WX}, {NL2E}, v{WX}")
    e(f"v_mul_f32 v{WX+1}, {NL2E}, v{WX+1}")
    e(f"v_cvt_pk_bf16_f32 v1, v{WX}, v{WX}")
    e("v_and_b32 v1, 0xffff0000, v1")
    e(f"v_sub_f32 v2, v{WX}, v1")
    e(f"v_cvt_pk_bf16_f32 v{WX}, v1, v2")
    e(f"v_cvt_pk_bf16_f32 v{WX+1}, 0, v{WX+1}")
if OPT["p2at"] == "win": part2()
e("s_branch L_wdone")
e.label("L_w67")
e(f"ds_read_u16_d16_hi v4, v{CA0} offset:{WXL}")
e("v_and_b32 v6, 127, v0")
e(f"v_min_u32 v7, 119, v6")
e(f"s_mul_i32 s60, s{sB}, 240")
e(f"v_lshl_add_u32 v1, v7, 1, s60")
e(f"global_load_short_d16_hi v{vPosOwn}, v1, {s(sPOS,2)}")
e("s_add_u32 s60, s60, 1280000")
e(f"v_lshl_add_u32 v{vOA}, v6, 1, s60")
e("s_movk_i32 s60, 120")
e(f"v_cmp_gt_u32 {s(sOM,2)}, s60, v6")
e(f"v_mul_u32_u24 v1, 171, v7")
e("v_lshrrev_b32 v1, 9, v1")
e(f"v_mad_i32_i24 v2, v1, -3, v7")
e(f"v_lshlrev_b32 v{vAItem}, 2, v1")
e(f"v_lshl_add_u32 v{H1}, v2, 8, v{vAItem}")
e(f"v_lshlrev_b32 v{vFO}, 3, v2")
e(f"v_add_u32 v{vFO}, {BF+256}, v{vFO}")
e(f"v_bfe_u32 v1, v{L}, 2, 1")
e(f"v_lshrrev_b32 v2, 3, v{L}")
e(f"v_and_b32 v3, 3, v{L}")
e("v_lshl_add_u32 v2, v2, 2, v3")
e("v_lshl_add_u32 v2, v1, 5, v2")
e("v_lshlrev_b32 v2, 2, v2")
e("s_waitcnt lgkmcnt(0)")
e(f"v_mul_f32 v4, {NLN2}, v4")
e(f"ds_write_b32 v2, v4 offset:{WXT}")
e.label("L_wdone")
stamp(4, wait=True)
site(1)
if OPT["p2at"] == "win": part3()
if OPT["lcat"] != "start": laneconsts()
if OPT["lcat"] == "win": laneconsts2()
RA = 16; XP = 36; KA = 80; LK = 96; AD = 112; RR = 117; DD = 122; LN = 127; vSB = 132; vJ = 133; vPF = 134
mk = lambda p, k: sMK + 2 * (3 * p + k)
sLB = sMK + 30
def presets(ps):
    for p in ps:
        for k in range(4): e(f"v_mov_b32 v{RA+4*p+k}, s{sT+k}")
def batchsetup():
    e("v_lshrrev_b32 v1, 3, v0")
    e("v_and_b32 v2, 7, v0")
    e(f"v_lshlrev_b32 v{vJ}, 4, v2")
    e(f"v_mul_u32_u24 v1, {CHB}, v1")
    e(f"v_add_u32 v{vSB}, v1, v{vJ}")
    presets(range(4))
batchsetup()
for p in range(4):
    e(f"s_add_u32 s{sRB+2*p}, s{sWS}, {WS_REC + p*64*CHB}")
    e(f"s_addc_u32 s{sRB+2*p+1}, s{sWS+1}, 0")
e("s_andn2_b32 s60, s2, 7")
e(f"s_add_u32 s60, s60, s{sW}")
e("s_mul_i32 s60, s60, 41")
e(f"v_add_u32 v{vPF}, s60, v{L}")
e(f"s_bfm_b64 {s(sPF,2)}, {OPT.get('pfn', 26)}, 0")
e(f"s_mov_b32 s{sC10K}, 60000")
if Z1 > Z0: zero(Z0, Z1)
site(2)
e("v_lshrrev_b32 v6, 3, v0")
e("v_lshlrev_b32 v6, 2, v6")
stamp(5, wait=True)
fine(4, 2)
if OPT.get("fine") == 2:
    e("s_waitcnt vmcnt(1)")
    fine(5, 2)
    e("s_waitcnt vmcnt(0)")
    fine(6, 2)
e(f"s_cmp_lt_u32 s{sW}, 4")
e("s_cbranch_scc1 L_b3")
e(f"s_and_b32 s3, s{sB}, 1")
e("s_lshl_b32 s3, s3, 4")
e.label("L_poll")
e(f"s_sub_u32 s{sBUD}, s{sBUD}, 1")
e("s_waitcnt vmcnt(0)")
e(f"v_cmp_ne_u32 vcc, s{sTAG}, v{PL+3}")
e("s_cbranch_scc1 L_pollout")
e("s_cbranch_vccz L_gotoff")
e("s_mov_b64 exec, vcc")
e(f"global_load_dwordx4 {v(PL,4)}, v{vPA}, {s(sWS,2)} sc1")
e("s_branch L_poll")
e.label("L_gotoff")
e("s_mov_b64 exec, -1")
e(f"s_bitcmp1_b32 s{sB}, 1")
e(f"v_alignbit_b32 v3, v{PL+1}, v{PL}, s3")
e(f"v_alignbit_b32 v4, v{PL+2}, v{PL+1}, s3")
e("s_cselect_b64 vcc, -1, 0")
e("v_cndmask_b32 v3, v3, v4, vcc")
e(f"ds_write_b32 v{vPW}, v3 offset:{OFF1}")
e(f"s_cmp_lt_u32 s{sW}, 6")
e("s_cbranch_scc1 L_b3")
e(f"ds_write_b32 v{H1}, v{vPosOwn} offset:{PD}")
e.label("L_b3")
fine(7, 2)
e("s_waitcnt lgkmcnt(0)")
e("s_barrier")
e(f"ds_read2st64_b32 {v(SEG,2)}, v6 offset0:{OFF1//256} offset1:{OFF1//256+1}")
e(f"ds_read2st64_b32 {v(SEG+2,2)}, v6 offset0:{OFF1//256+2} offset1:{OFF1//256+3}")
e("s_waitcnt lgkmcnt(0)")
stamp(6)
finedump(8, 2)
e.label("L_fetch")
for p in range(4):
    e(f"v_and_b32 v{AD+p}, 0xfff0, v{SEG+p}")
    e(f"v_sub_u32_sdwa v{RR+p}, v{SEG+p}, v{AD+p} {SD} src0_sel:WORD_1 src1_sel:DWORD")
    e(f"v_add_u32 v{AD+p}, v{AD+p}, v{vSB}")
    e(f"v_cmp_lt_i32 vcc, v{vJ}, v{RR+p}")
    e("s_mov_b64 exec, vcc")
    e(f"global_load_dwordx4 {v(RA+4*p,4)}, v{AD+p}, {s(sRB+2*p,2)} sc1")
    e("s_mov_b64 exec, -1")
e(f"v_max3_i32 v3, v{RR}, v{RR+1}, v{RR+2}")
e(f"v_max_i32 v3, v3, v{RR+3}")
e("v_mov_b32 v13, 8")
e(f"v_cmp_lt_i32 vcc, s{sWID}, v3")
e(f"s_or_b32 s{sANYB}, vcc_lo, vcc_hi")
e("s_cbranch_scc0 L_nob0")
e(f"s_cmp_eq_u32 s{sWID}, {NARROW}")
e("s_cbranch_scc1 L_narrow")
e(f"v_mov_b32 v{RR+4}, 0")
e(f"v_mov_b32 v{AD+4}, 0")
e("v_mov_b32 v4, 0")
for p in (3, 2, 1, 0):
    e(f"v_cmp_lt_i32 vcc, 0x80, v{RR+p}")
    e(f"v_add_u32 v5, {p*64*CHB}, v{AD+p}")
    e("s_nop 0")
    e(f"v_cndmask_b32 v{RR+4}, v{RR+4}, v{RR+p}, vcc")
    e(f"v_cndmask_b32 v{AD+4}, v{AD+4}, v5, vcc")
    e("v_addc_co_u32 v4, vcc, 0, v4, vcc")
e(f"v_subrev_u32 v{LN+4}, 0x80, v{RR+4}")
e(f"v_max_i32 v{LN+4}, 0, v{LN+4}")
presets([4])
e(f"v_cmp_lt_i32 {s(sLB,2)}, v{vJ}, v{LN+4}")
e("v_cmp_lt_i32 vcc, 0x100, v3")
e("v_cmp_lt_i32 s[60:61], 1, v4")
e(f"s_mov_b64 exec, {s(sLB,2)}")
e(f"global_load_dwordx4 {v(RA+16,4)}, v{AD+4}, {s(sRB,2)} offset:128 sc1")
e("s_or_b64 exec, vcc, s[60:61]")
e(f"ds_write_b32 v{ZP}, v13 offset:{CNT2+252}")
e("s_mov_b64 exec, -1")
for k in range(3):
    e(f"v_add_u32 v5, {4*k}, v{vJ}")
    e(f"v_cmp_lt_u32 {s(mk(4,k),2)}, v5, v{LN+4}")
e.label("L_nob0")
e(f"s_cmp_lg_u32 s{sONCE}, 0")
e("s_cbranch_scc1 L_once")
e(f"s_mov_b32 s{sONCE}, 1")
zero(0, 2)
if Z1 < 6: zero(Z1, 6)
if OPT["p2at"] == "fetch":
    e(f"s_cmp_ge_u32 s{sW}, 6")
    e("s_cbranch_scc1 L_nop2")
    part2()
    e.label("L_nop2")
    part3()
if OPT["lcat"] == "fetch": laneconsts2()
e.label("L_once")
for p in range(4):
    e(f"v_and_b32 v4, 15, v{SEG+p}")
    e(f"v_sub_u32 v{LN+p}, v{RR+p}, v4")
    e(f"v_sub_u32 v4, v{vJ}, v4")
    e("v_add_u32 v5, 4, v4")
    e("v_add_u32 v6, 8, v4")
    for k in range(3): e(f"v_cmp_lt_u32 {s(mk(p,k),2)}, v{4+k}, v{LN+p}")
e(f"v_lshlrev_b32 v1, 2, v{L}")
e(f"v_cmp_gt_u32 {s(sVAL,2)}, {NB}, v{L}")
e("v_mov_b32 v4, 0")
e("v_mov_b32 v5, 0")
e("s_movk_i32 s62, 0xfc")
e(f"s_mov_b32 s63, {M3}")
def bpf(at):
    if OPT["bpf"] != at: return
    e(f"s_mov_b64 exec, {s(sPF,2)}")
    e(f"buffer_load_dword v{vPF+1}, v{vPF}, {s(srdBP,4)}, 0 idxen")
    e("s_mov_b64 exec, -1")
bpf(2)
XV = 1 if OPT["bpf"] == 2 else 0
def five(name, body):
    for p in range(4): body(p)
    e(f"s_cmp_eq_u32 s{sANYB}, 0")
    e(f"s_cbranch_scc1 L_{name}")
    body(4)
    e.label(f"L_{name}")
def chk(p):
    if p < 4: e(f"s_waitcnt vmcnt({3-p+XV})")
    for k in range(4): e(f"v_bitop3_b32 v{4 if k < 3 else 5}, v{4 if k < 3 else 5}, v{RA+4*p+k}, s{sT+k} bitop3:0xf6")
five("bx", chk)
e("v_and_b32 v4, 0xc000, v4")
e("v_and_or_b32 v4, v5, s63, v4")
e("v_cmp_ne_u32 vcc, 0, v4")
e("s_cbranch_vccnz L_stale")
e.label("L_gotrec")
stamp(7, wait=True)
def atom(p):
    if p: e("s_mov_b64 exec, -1")
    for k in range(3): e(f"v_and_b32_sdwa v{XP+6*p+2*k}, s62, v{RA+4*p+3} {SD} src0_sel:DWORD src1_sel:BYTE_{k}")
    for k in range(3):
        e(f"s_mov_b64 exec, {s(mk(p,k),2)}")
        e(f"ds_add_rtn_u32 v{KA+3*p+k}, v{XP+6*p+2*k}, v13 offset:{CNT2}")
five("ba", atom)
bpf(1)
e("s_mov_b64 exec, -1")
e("s_waitcnt lgkmcnt(0)")
e("s_barrier")
stamp(8)
e(f"ds_read_b32 v2, v1 offset:{CNT2}")
clean = [f"v_xor_b32 v{XP+6*p+2*k+1}, s{sT+k}, v{RA+4*p+k}" for p in range(5) for k in range(3)]
for x in clean[:5]: e(x)
e("s_waitcnt lgkmcnt(0)")
e(f"v_max_u32 v4, {PADB}, v2")
e(f"v_cndmask_b32 v5, 0, v4, {s(sVAL,2)}")
e(f"v_subrev_u32 v6, {SORT2}, v4")
scan(5, [f"v_readlane_b32 s{sMORE}, v2, 63", "v_cmp_lt_u32 vcc, v2, v4"] + clean[5:])
e(f"v_sub_u32 v6, v5, v6")
e(f"ds_write_b32 v1, v6 offset:{BASE2}")
def look(p):
    for k in range(3): e(f"ds_read_b32 v{LK+3*p+k}, v{XP+6*p+2*k} offset:{BASE2}")
five("bl", look)
e(f"v_readlane_b32 s3, v5, 63")
e(f"s_cmp_gt_u32 s3, {CAPB}")
e("s_cbranch_scc1 L_redo")
e(f"s_and_b64 vcc, vcc, {s(sVAL,2)}")
e("s_cbranch_scc1 L_pad0")
e.label("L_nopad")
e("s_add_u32 s96, s3, 127")
e("s_lshr_b32 s60, s96, 10")
e("s_bfe_u32 s61, s96, 0x30007")
e(f"s_mul_i32 s62, s60, s{sW}")
e(f"s_min_u32 s63, s61, s{sW}")
e("s_add_u32 s62, s62, s63")
e(f"s_cmp_lt_u32 s{sW}, s61")
e(f"s_addc_u32 s{sCNT}, s60, 0")
e("s_lshl_b32 s62, s62, 7")
e("v_cmp_ge_u32 vcc, s62, v5")
e(f"s_lshl_b32 s63, s{sCNT}, 7")
e("s_add_u32 s63, s63, s62")
e("v_cmp_gt_u32 s[60:61], s63, v5")
e("s_waitcnt lgkmcnt(0)")
def put(p):
    for k in range(3):
        e(f"s_mov_b64 exec, {s(mk(p,k),2)}")
        e(f"v_add_u32 v{LK+3*p+k}, v{LK+3*p+k}, v{KA+3*p+k}")
        e(f"ds_write_b64 v{LK+3*p+k}, {v(XP+6*p+2*k,2)}")
five("bw", put)
e("s_mov_b64 exec, -1")
e(f"s_bcnt1_i32_b64 s{sNFW}, vcc")
e(f"s_lshl_b32 s{sBASE}, s{sNFW}, 2")
e(f"s_or_b32 s{sSLOW}, s{sMULTI}, s{sMORE}")
e(f"s_cselect_b32 s{sNFW}, 252, s{sBASE}")
e(f"s_lshl_b32 s63, 1, s{sW}")
e(f"v_mov_b32 v7, s{sNFW}")
e("v_mov_b32 v8, s63")
e(f"s_lshl_b32 s63, s{sW}, 6")
e("s_add_u32 s3, s3, s63")
e(f"s_add_u32 s3, s3, {SORT2}")
e("v_lshl_add_u32 v9, v1, 1, s3")
e(f"v_mov_b32 v10, {(NB-1)*4}")
e("v_mov_b32 v11, 10000")
e("s_mov_b64 exec, 1")
e(f"ds_or_b32 v7, v8 offset:{LNK}")
e("s_mov_b64 exec, 0xff")
e("ds_write_b64 v9, v[10:11]")
e("s_mov_b64 exec, -1")
e(f"s_add_u32 s62, s62, {SORT2}")
e(f"v_lshl_add_u32 v{aRec}, v{L}, 3, s62")
e(f"v_add3_u32 v{aIdx}, s62, 4, v{vIdxL}")
PI = E[1] + 8
for n in range(DEP): e(f"v_mov_b32 v{PI+2*n+1}, v{IDX+1}")
for c in range(2): e(f"v_mfma_f32_32x32x8_bf16 {v(AC[c],16)}, {v(ZP,2)}, {v(ZP,2)}, 0")
e(f"s_bcnt1_i32_b64 s{sNLW}, s[60:61]")
e(f"s_min_u32 s{sNLW}, s{sNLW}, {NB-1}")
e(f"s_lshl_b32 s{sNLW}, s{sNLW}, 2")
e(f"s_sub_u32 s{sCNT}, s{sCNT}, {DEP+1}")
e("s_setprio 3")
e("s_waitcnt lgkmcnt(0)")
e("s_barrier")
stamp(9)
def gather(b, pair):
    return [f"buffer_load_dwordx4 {v(G[b&1],4)}, {v(pair,2)}, {s(srdBP,4)}, 0 idxen offen",
            f"buffer_load_dwordx4 {v(G[b&1]+4,4)}, {v(pair,2)}, {s(srdBP,4)}, 0 idxen offen offset:64"]
recread = lambda o: f"ds_read_b64 {v(REC,2)}, v{aRec} offset:{o}"
posaddr = f"v_mul_u32_u24_sdwa v{BT}, 6, v{REC+1} {SD} src0_sel:DWORD src1_sel:WORD_0"
posreads = [f"ds_read_u16_d16_hi v{PS+i}, v{BT} offset:{POS+2*i}" for i in range(3)] + \
           [f"ds_read2st64_b32 {v(PDV,2)}, v{REC} offset0:{PD//256} offset1:{PD//256+1}",
            f"ds_read_b32 v{PDV+2}, v{REC} offset:{PD+512}"]
build1 = [f"v_readlane_b32 s{sNF}, v{REC}, 0",
          f"v_readlane_b32 s{sNL}, v{REC}, 63",
          f"v_cmp_ne_u32 {s(sVAL,2)}, s{sC10K}, v{BT}",
          f"v_add_u32 v{BT+1}, v{REC}, v{REC}",
          f"s_and_b32 s60, s{sNF}, -8\ns_mul_i32 s{sNEG}, s60, -4\ns_lshr_b32 s60, s60, 1",
          f"v_lshl_add_u32 v{BT+2}, v{REC}, 2, s{sNEG}",
          f"v_add_u32 v{aAT}, s60, v{aATb}",
          f"v_lshlrev_b64 {v(REC+2,2)}, v{BT+2}, {s(sOHC,2)}",
          f"v_bitop3_b32 v{BT+1}, v{BT+1}, 56, v{aR2b} bitop3:0x6a"]
build2 = [f"v_sub_f32 v{PDV+2}, v{PDV+2}, v{PS+2}",
          f"v_sub_f32 v{PDV}, v{PDV}, v{PS}",
          f"v_sub_f32 v{PDV+1}, v{PDV+1}, v{PS+1}",
          f"v_cvt_pk_bf16_f32 v{R2V+1}, v{PDV+2}, 1.0",
          f"v_cvt_pk_bf16_f32 v{R2V}, v{PDV}, v{PDV+1}",
          f"v_lshlrev_b32 v{BT+2}, 16, v{R2V+1}",
          f"v_mul_f32 v{BT}, v{BT+2}, v{BT+2}",
          f"v_dot2_f32_bf16 v{BT}, v{R2V}, v{R2V}, v{BT}",
          None, None, None,
          f"v_cvt_pk_bf16_f32 v{REC}, v{BT}, v{BT}"]
build3 = [f"ds_write_b64 v{aR2}, {v(ZP,2)}",
          f"ds_write_b128 v{aR1w}, {v(REC,4)}",
          f"s_mov_b64 exec, {s(sVAL,2)}\nds_write_b64 v{BT+1}, {v(R2V,2)}\ns_mov_b64 exec, -1",
          f"ds_read2_b32 {v(WX+2,2)}, v{aAT} offset1:1"]
keepaddr = f"v_mov_b32 v{aR2}, v{BT+1}"
def opreads(n):
    return [f"ds_read_b128 {v(R1OP,4)}, v{aR1r} offset:{n*256}",
            f"ds_read_b64_tr_b16 {v(S[n],2)}, v{aS0} offset:{n*1024}",
            f"ds_read_b64_tr_b16 {v(S[n]+2,2)}, v{aS1} offset:{n*1024}"]
def stage1(n):
    t = T[n & 1]
    return [f"v_mfma_f32_32x32x16_bf16 {v(t,16)}, {v(R1OP,4)}, {v(WX,4)}, 0",
            f"v_mfma_f32_32x32x16_bf16 {v(t,16)}, {v(G[n&1],4)}, {v(I0,4)}, {v(t,16)}",
            f"v_mfma_f32_32x32x16_bf16 {v(t,16)}, {v(G[n&1]+4,4)}, {v(I1,4)}, {v(t,16)}"]
def stage2(n):
    return [f"v_mfma_f32_32x32x16_bf16 {v(AC[c],16)}, {v(M[c],4)}, {v(S[n],4)}, {v(AC[c],16)}" for c in range(2)]
def pkmul(q): return [f"v_pk_mul_f32 {v(E[q]+2*i,2)}, {v(E[q]+2*i,2)}, {v(T[q]+2*i,2)}" for i in range(8)]
def cvt(q): return [f"v_cvt_pk_bf16_f32 v{M[c]+a}, v{E[q]+4*a+c}, v{E[q]+4*a+2+c}" for a in range(4) for c in range(2)]
def flushchk(lbl):
    e(f"s_min_u32 s60, s{sNL}, s{sNLW}")
    e(f"s_sub_u32 s60, s60, s{sBASE}")
    e("s_cmp_ge_u32 s60, 32")
    e(f"s_cbranch_scc1 L_flush_{lbl}")
    e.label(f"L_flret_{lbl}")
def rowaddr():
    return [f"v_subrev_u32 v4, s{sBASE}, v{L}",
            "v_and_b32 v4, 28, v4",
            f"v_add_u32 v4, s{sBASE}, v4",
            f"v_cmp_eq_u32 vcc, s{sNFW}, v4",
            f"v_cmp_lt_u32 s[62:63], s{sNLW}, v4",
            f"s_lshl_b32 s61, s{sW}, 2",
            f"s_add_u32 s61, s61, {NB*4}",
            "v_mov_b32 v7, s61",
            "v_cndmask_b32 v4, v4, v7, vcc",
            f"v_mov_b32 v7, {OOB//64}",
            "v_cndmask_b32 v4, v4, v7, s[62:63]",
            f"v_mul_u32_u24 v4, {ACCS//4}, v4",
            f"v_add_u32 v4, {ACC}, v4",
            f"v_lshrrev_b32 v7, 5, v{L}",
            f"v_lshl_add_u32 v{vRowM}, v7, 4, v4",
            f"v_lshl_add_u32 v4, v7, 2, v4",
            f"v_and_b32 v7, 3, v{L}",
            f"v_lshl_add_u32 v{vRowP}, v7, 3, v4"]
def bfaddr():
    return [f"v_ffbl_b32 v5, v{vMask}",
            f"v_add_u32 v6, -1, v{vMask}",
            f"v_min_u32 v5, {OOB//256}, v5",
            f"v_and_b32 v{vMask}, v6, v{vMask}",
            f"v_mul_u32_u24 v5, {ACCS}, v5",
            f"v_add_u32 v{vFB}, v{vFO}, v5"]
def mmask():
    e("s_mov_b32 exec_lo, 0x88888888")
    e("s_mov_b32 exec_hi, 0x88888888")
def flush_slow():
    e("s_nop 7")
    e("v_mov_b32 v2, 0")
    for i in range(8):
        e(f"ds_read_b128 v[4:7], v{vWxa} offset:{WXT+16*i}")
        e("s_waitcnt lgkmcnt(0)")
        for r in range(4): e(f"v_fmac_f32 v2, v{AC[0]+4*i+r}, v{4+r}")
    e(f"ds_add_f32 v{vRowP}, v2 offset:256")
    mmask()
    for i in range(32): e(f"ds_add_f32 v{vRowM}, v{AC[0]+i} offset:{(i//4)*32+(i%4)*4}")
    e("s_mov_b64 exec, -1")

def step(sidx, first=False):
    q = sidx & 1; n1 = (sidx + 1) & 3
    R = OPT["ramp"]
    e("s_setprio 0")
    if sidx == 1: flushchk("mid")
    mem = gather(sidx + DEP, IDX) + [f"ds_read_u16 v{IDX}, v{aIdx} offset:{(sidx+DEP+1)*128}"]
    if sidx == 3: mem += build3
    mem += opreads(n1)
    if sidx == 3: mem += [recread(1024)]
    if sidx == 1: mem += posreads
    oth = {0: [posaddr], 1: build1, 2: build2, 3: [keepaddr, f"v_add_u32 v{aIdx}, 512, v{aIdx}", f"v_add_u32 v{aRec}, 512, v{aRec}"]}[sidx]
    for y in mem: e(y)
    oth = list(oth)
    for i in range(16):
        if i == R[0]: e("s_setprio 1")
        e(f"v_exp_f32 v{E[q]+i}, v{T[q]+i}")
        if i >= R[0] - 1 and oth:
            y = oth.pop(0)
            if y: e(y)
    assert not oth
    addone = f"{OPT.get('ao', 'v_mfma_f32_32x32x8_bf16')} {v(E[q],16)}, {v(ONE,2)}, {v(ONE,2)}, {v(E[q],16)}"
    e("s_setprio 2")
    if first:
        e("s_nop 0"); e(addone); e("s_nop 7")
    else:
        for x in pkmul(1 - q): e(x)
        e(addone)
        for x in cvt(1 - q): e(x)
    e(f"s_sub_u32 s{sCNT}, s{sCNT}, 1")
    e("s_waitcnt vmcnt(2) lgkmcnt(0)")
    mf = stage1(n1) + ([] if first else stage2((sidx - 1) & 3))
    for i in range(16):
        if i % 3 == 0 and i // 3 < len(mf):
            e(mf[i // 3])
            if i == 0: e("s_setprio 3")
        e(f"v_rcp_f32 v{E[q]+i}, v{E[q]+i}")
    e(f"s_cbranch_scc1 L_evt{sidx}")

e(recread(0))
e(f"ds_read_u16 v{PI}, v{aIdx}")
e(f"ds_read_u16 v{PI+2}, v{aIdx} offset:128")
e(f"ds_read_u16 v{IDX}, v{aIdx} offset:{DEP*128}")
e("s_waitcnt lgkmcnt(2)")
e(posaddr)
for x in posreads: e(x)
for x in gather(0, PI): e(x)
for x in build1: e(x)
e("s_waitcnt lgkmcnt(0)")
g1 = gather(1, PI + 2) + ["s_nop 0"]
for x in build2: e(x if x else g1.pop(0))
for x in build3: e(x)
for x in opreads(0): e(x)
e(recread(512))
e(f"ds_read_b32 v{vMask}, v{vAItem} offset:{LNK}")
e(f"ds_write_b32 v1, v{ZP} offset:{CNT2}")
e(keepaddr)
e("s_waitcnt vmcnt(2) lgkmcnt(5)")
for x in stage1(0): e(x)
for x in rowaddr(): e(x)
e("s_waitcnt lgkmcnt(0)")
for x in bfaddr(): e(x)
stamp(10)
step(0, first=True)
e("s_branch L_s1")
for sidx in range(4):
    e.label(f"L_s{sidx}")
    step(sidx)
e("s_branch L_s0")
for sidx in range(4):
    q = sidx & 1
    e.label(f"L_evt{sidx}")
    e(f"s_cmp_eq_u32 s{srdBP+2}, 0")
    e(f"s_mov_b32 s{srdBP+2}, 0")
    e(f"s_mov_b32 s{sCNT}, {DEP-1}")
    e(f"s_cbranch_scc0 L_s{(sidx+1)&3}")
    if sidx == 0: flushchk("dr")
    for i in range(4): e(f"ds_read_b128 {v(E[1-q]+4*i,4)}, v{vWxa} offset:{WXT+16*i}")
    for i in range(4): e(f"ds_read_b128 {v(T[1-q]+4*i,4)}, v{vWxa} offset:{WXT+64+16*i}")
    for x in pkmul(q) + cvt(q): e(x)
    e(f"s_cmp_lg_u32 s{sSLOW}, 0")
    e("s_nop 0")
    for x in stage2(sidx): e(x)
    e("s_cbranch_scc1 L_slow_final")
    if sidx < 2: e(f"s_branch L_final_flush{q}")
    else:
        e.label(f"L_final_flush{q}")
        stamp(11)
        e("s_waitcnt lgkmcnt(0)")
        e("s_nop 6")
        mmask()
        for i in range(8): e(f"ds_write_b128 v{vRowM}, {v(AC[0]+4*i,4)} offset:{i*32}")
        e("s_mov_b64 exec, -1")
        e(f"v_pk_mul_f32 v[4:5], {v(AC[0],2)}, {v(E[1-q],2)}")
        e(f"v_pk_mul_f32 v[6:7], {v(AC[1],2)}, {v(T[1-q],2)}")
        for i in range(1, 8):
            e(f"v_pk_fma_f32 v[4:5], {v(AC[0]+2*i,2)}, {v(E[1-q]+2*i,2)}, v[4:5]")
            e(f"v_pk_fma_f32 v[6:7], {v(AC[1]+2*i,2)}, {v(T[1-q]+2*i,2)}, v[6:7]")
        e("v_pk_add_f32 v[4:5], v[4:5], v[6:7]")
        e("v_add_f32 v4, v4, v5")
        e(f"ds_write_b32 v{vRowP}, v4 offset:256")
        if sidx == 2: e("s_branch L_b6")
e.label("L_b6")
MR = 16; MB = 32; Y = 40; YE = 48; HU = 56; MX = 64
e(f"s_cmp_lg_u32 s{sMORE}, 0")
e(f"v_cmp_ne_u32 vcc, 0, v{vMask}")
e("s_waitcnt lgkmcnt(0)")
e("s_barrier")
stamp(12)
e("s_cbranch_scc1 L_more")
e(f"s_cmp_ge_u32 s{sW}, 6")
e("s_cbranch_scc1 L_finpos")
for i in range(4):
    e(f"ds_read_b128 {v(MR+4*i,4)}, v{vFA} offset:{(i>>1)*128+(i&1)*16}")
    e(f"ds_read_b128 {v(MX+4*i,4)}, v{vFB} offset:{(i>>1)*128+(i&1)*16}")
for d in range(4):
    e(f"v_lshlrev_b32 v{HU+2*d}, 16, v{HRES+d}")
    e(f"v_and_b32 v{HU+2*d+1}, 0xffff0000, v{HRES+d}")
e(f"s_mov_b32 s60, {NLN2}")
e("s_cbranch_vccnz L_finbf_more")
e.label("L_finbf")
for i in range(4):
    e(f"s_waitcnt lgkmcnt({6-2*i})")
    for d in range(2): e(f"v_pk_add_f32 {v(MR+4*i+2*d,2)}, {v(MR+4*i+2*d,2)}, {v(MX+4*i+2*d,2)}")
    for d in range(2): e(f"v_cvt_pk_bf16_f32 v{MB+2*i+d}, v{MR+4*i+2*d}, v{MR+4*i+2*d+1}")
for t in range(2): e(f"v_mfma_f32_16x16x32_bf16 {v(Y+4*t,4)}, {v(WH2+8*t,4)}, {v(MB,4)}, {v(H1+4*t,4)}")
for t in range(2): e(f"v_mfma_f32_16x16x32_bf16 {v(Y+4*t,4)}, {v(WH2+8*t+4,4)}, {v(MB+4,4)}, {v(Y+4*t,4)}")
e("s_nop 6")
for i in range(8): e(f"v_exp_f32 v{YE+i}, v{Y+i}")
for i in range(4): e(f"v_pk_add_f32 {v(YE+2*i,2)}, {v(YE+2*i,2)}, 1.0 op_sel_hi:[1,0]")
for i in range(4): e(f"v_pk_mul_f32 {v(Y+2*i,2)}, {v(Y+2*i,2)}, s[60:61] op_sel_hi:[1,0]")
for i in range(8): e(f"v_rcp_f32 v{YE+i}, v{YE+i}")
for i in range(4): e(f"v_pk_fma_f32 {v(HU+2*i,2)}, {v(Y+2*i,2)}, {v(YE+2*i,2)}, {v(HU+2*i,2)}")
for d in range(4): e(f"v_cvt_pk_bf16_f32 v{Y+d}, v{HU+2*d}, v{HU+2*d+1}")
e(f"s_mov_b64 exec, {s(sOM,2)}")
e(f"global_store_dwordx4 v{vOA}, {v(Y,4)}, {s(sOUT,2)} sc1")
stamp(13, last=True)
e("s_endpgm")
e.label("L_finpos")
e(f"ds_read_b64 v[16:17], v{vFA}")
e.label("L_posbf")
e(f"ds_read_b64 v[18:19], v{vFB}")
e("s_waitcnt lgkmcnt(0)")
e("v_add_f32 v16, v16, v18")
e("v_add_f32 v17, v17, v19")
e("s_cbranch_vccnz L_posbf_more")
e("v_add_f32 v16, v16, v17")
e(f"v_add_f32 v{vPosOwn}, v{vPosOwn}, v16")
e(f"v_cvt_pk_bf16_f32 v2, v{vPosOwn}, v{vPosOwn}")
e(f"v_mov_b32 v7, s{sTAG}")
e(f"s_mov_b64 exec, {s(sOM,2)}")
e(f"global_store_short v{vOA}, v2, {s(sOUT,2)} sc1")
e("s_cmp_lg_u32 s2, 0")
e("s_cbranch_scc1 L_noep")
e("s_mov_b64 exec, 1")
e(f"global_store_dword v{ZP}, v7, {s(sWS,2)} sc1")
e.label("L_noep")
stamp(13, last=True)
e("s_endpgm")
for lbl in ("mid", "dr"):
    e.label(f"L_flush_{lbl}")
    flush_slow()
    e("s_waitcnt lgkmcnt(0)")
    for i in range(32): e(f"v_mov_b32 v{AC[0]+i}, 0")
    e(f"s_mov_b32 s{sBASE}, s{sNF}")
    e(f"s_mov_b32 s{sSLOW}, 1")
    for x in rowaddr(): e(x)
    e(f"s_branch L_flret_{lbl}")
e.label("L_slow_final")
flush_slow()
e("s_branch L_b6")
e.label("L_finbf_more")
e("s_waitcnt lgkmcnt(0)")
for i in range(16): e(f"v_add_f32 v{MR+i}, v{MR+i}, v{MX+i}")
for x in bfaddr(): e(x)
for i in range(4): e(f"ds_read_b128 {v(MX+4*i,4)}, v{vFB} offset:{(i>>1)*128+(i&1)*16}")
e(f"v_cmp_ne_u32 vcc, 0, v{vMask}")
e("s_waitcnt lgkmcnt(0)")
e("s_cbranch_vccnz L_finbf_more")
e("s_branch L_finbf")
e.label("L_posbf_more")
for x in bfaddr(): e(x)
e(f"v_cmp_ne_u32 vcc, 0, v{vMask}")
e("s_branch L_posbf")
e.label("L_pollout")
e(f"s_mov_b32 s{sBUD}, 0")
e("s_branch L_gotoff")
e.label("L_stale")
e(f"s_cmp_eq_u32 s{sBUD}, 0")
e("s_cbranch_scc1 L_gotrec")
e(f"s_sub_u32 s{sBUD}, s{sBUD}, 1")
e("s_branch L_fetch")
e.label("L_pad0")
e("v_mov_b32 v8, v1")
e("v_mov_b32 v9, 10000")
e("s_mov_b64 exec, vcc")
e.label("L_pad")
e("v_add_u32 v7, v6, v2")
e("v_add_u32 v2, 8, v2")
e("ds_write_b64 v7, v[8:9]")
e("v_cmp_lt_u32 vcc, v2, v4")
e("s_and_b64 exec, vcc, vcc")
e("s_cbranch_scc1 L_pad")
e("s_mov_b64 exec, -1")
e("s_branch L_nopad")
e.label("L_more")
e("s_waitcnt vmcnt(0)")
e("s_setprio 0")
e(f"s_mov_b32 s{srdBP+2}, 10000")
e(f"s_mov_b64 {s(sPF,2)}, 0")
e(f"s_mov_b32 s{sMULTI}, 1")
e(f"s_cmp_eq_u32 s{sWID}, {NARROW}")
e(f"s_cselect_b32 s60, {NARROW}, 0x100")
e("v_mov_b32 v4, s60")
for p in range(4):
    e(f"v_and_b32 v5, 0xfff0, v{SEG+p}")
    e(f"v_lshrrev_b32 v6, 16, v{SEG+p}")
    e(f"v_add_u32 v7, s{sWID}, v5")
    e("v_cmp_lt_u32 vcc, v7, v6")
    e("v_add_u32 v5, v4, v5")
    e("v_min_u32 v5, v5, v6")
    e(f"v_lshl_or_b32 v{SEG+p}, v6, 16, v5")
    e(f"v_mov_b32 v7, s{sWID}")
    e("v_cndmask_b32 v4, v4, v7, vcc")
e(f"s_movk_i32 s{sWID}, 0x80")
batchsetup()
e(f"v_mov_b32 v{vPF}, 0")
e("s_branch L_fetch")
e.label("L_narrow")
e(f"s_mov_b32 s{sANYB}, 0")
e("s_mov_b64 exec, vcc")
e(f"ds_write_b32 v{ZP}, v13 offset:{CNT2+252}")
e("s_mov_b64 exec, -1")
e("s_branch L_nob0")
e.label("L_redo")
e(f"s_cmp_eq_u32 s{sWID}, {NARROW}")
e("s_cbranch_scc1 L_end")
e("s_waitcnt vmcnt(0) lgkmcnt(0)")
e("s_barrier")
e(f"ds_write_b32 v1, v{ZP} offset:{CNT2}")
e(f"s_movk_i32 s{sWID}, {NARROW}")
batchsetup()
e(f"v_cmp_gt_u32 vcc, {NARROW}, v{vJ}")
e(f"v_mov_b32 v1, {OOB}")
e("s_waitcnt lgkmcnt(0)")
e(f"v_cndmask_b32 v{vJ}, v1, v{vJ}, vcc")
e("s_barrier")
e("s_branch L_fetch")
e.label("L_end")
e("s_endpgm")

probs = check_cfg(e.lines)
for p in probs: print("HAZARD", p, file=sys.stderr)

ref = open("cdna_kernels/" + KN + ".s.ref").read().split("\n")
hdr = []
for l in ref:
    if l.startswith("; Override launch"): break
    hdr.append(l)
out = "\n".join(hdr) + f"""
; One persistent launch: 250 workgroups (one per CU) bin the edges by destination bucket, hand the bins
; over through d_ws (tagged with a per-launch epoch), then each workgroup updates its 40 nodes.
; @launch grid=({NWG},1,1) block=(512,1,1) lds={LDS_SIZE}
.amdgcn_target "amdgcn-amd-amdhsa--gfx950"
.text
.globl {KN}_kernel
.p2align 8
.type {KN}_kernel,@function
{KN}_kernel:
{e.text()}.section .rodata,"a"
.p2align 6
.amdhsa_kernel {KN}_kernel
  .amdhsa_next_free_vgpr 256
  .amdhsa_next_free_sgpr 102
  .amdhsa_accum_offset 256
  .amdhsa_group_segment_fixed_size 0
  .amdhsa_kernarg_size 88
  .amdhsa_user_sgpr_count 2
  .amdhsa_user_sgpr_kernarg_segment_ptr 1
  .amdhsa_system_sgpr_workgroup_id_x 1
  .amdhsa_float_denorm_mode_32 3
.end_amdhsa_kernel
"""
open(sys.argv[1], "w").write(out)
print("wrote", sys.argv[1], len(e.lines), "lines;", len(probs), "hazards; LDS end", LDS_END, file=sys.stderr)
```

```python
import sys, struct
from asmlib import Emit, v, s, check_cfg

KN = "standalone__cheap_equivariant_egnn__graph"
OPT = dict(stamps=False, ramp=(3, 16, 34), bpf=1, pollat=2, lcat="fetch", posat=("b2",3,1), zs=(2,6), wdat=-1, p2at="win", pall=0)
for a in sys.argv[2:]:
    k, _, val = a.partition("=")
    try: OPT[k] = eval(val) if val else True
    except Exception: OPT[k] = val

def fbits(x): return struct.unpack("<I", struct.pack("<f", x))[0]
LOG2E = 1.4426950408889634; LN2 = 0.6931471805599453
NL2E = hex(fbits(-LOG2E)); NLN2 = hex(fbits(-LN2))

NWG = 250; CH = 2560; NB = 40; DEP = 2
CHB = 13696
CNT1 = 0x0; OFF1 = 0x400; CNT2 = 0x800; LNK = 0x900; BASE2 = 0xA00; PD = 0xB00; WXT = 0xE00
STB = 0x1000; R2 = 0x2000; ACC = R2 + 32768; ACCS = 304
BF = ACC + NB * ACCS; AT = BF + 8 * ACCS; ATS = 104; WL = AT + 64 * ATS; WXL = WL + 256
POS = WL + 384; STG = R2; SORT2 = POS + 61440; CAPB = 3888 * 8; R1 = SORT2 + CAPB + 512; LDS_END = R1 + 8192
PADB = 32 * 8; NARROW = 48
assert NWG * 9 * 8 + NB * PADB <= CAPB and POS + 4 < 65536
WE = SORT2; WH = WE + 16384; HB = WH + 16384
OOB = 0x100000
LDS_SIZE = 163840
assert LDS_END <= LDS_SIZE and HB + 6144 <= LDS_END and R2 % 64 == 0 and WE % 128 == 0
WS_OFF = 0x10000; WS_BP = 0x80000; WS_REC = 0x200000; WS_STAMP = 0x1000000
TAGC = 0x9E3779B1; M3 = 0xFF030303
sH, sPOS, sE, sSRC, sDST, sWE, sWX, sWH, sOUT, sDBG, sWS = 4, 6, 8, 10, 12, 14, 16, 18, 20, 22, 24
sW, sB = 26, 27
srdBP, srdPOS, srdH = 28, 32, 36
sTAG, sMULTI, sBUD, sWID, sONCE, sN0, sNG, sCHF = 40, 41, 42, 43, 44, 45, 46, 47
sOHC, sNFW, sNLW, sCNT, sBASE, sNF, sNL, sNEG, sMORE, sVAL = 48, 50, 51, 52, 53, 54, 55, 56, 57, 58
sT = 36
sOM = 4; sPF = 6; sRB = 8; sSLOW = 16; sANYB = 17; sC10K = 18
sMK = 64
T = [16, 32]; E = [48, 64]; AC = [80, 96]; M = [112, 116]; G = [120, 128]; S = [152, 156, 160, 164]
R1OP = 168; WX = 172; I0 = 176; I1 = 180; ONE = 184; IDX = 186
aIdx, aRec, aR1r, aS0, aS1, aR1w, aR2b, aR2, aATb, aAT = 188, 189, 190, 191, 192, 193, 194, 195, 196, 197
vRowM, vRowP = 198, 199
REC = 200; R2V = 204; PS = 206; vSrc = 208; vFO = 209; PDV = 210; BT = 213; ZP = 216; vIdxL = 218; vFA = 219
SEG = 220; vMask = 224; vWxa = 225; H1 = 226; vPosOwn = 230; HRES = 234; WH2 = 238; vLane = 254; vAItem = 255
vOA = 12; vFB = 3
L = vLane
SD = "dst_sel:DWORD dst_unused:UNUSED_PAD"

e = Emit()
def stamp(i, last=False, wait=False):
    if OPT.get("diag") is not None:
        a_, b_, neg = OPT["diag"]
        if i == 0: e("s_memrealtime s[98:99]")
        tm = "s_memtime" if OPT.get("dcyc") else "s_memrealtime"
        if i == a_: e(tm + " s[100:101]")
        if i == b_: e(tm + " s[22:23]")
        if last:
            stamp.n = getattr(stamp, "n", 0) + 1
            if b_ == 99: e("s_waitcnt vmcnt(0)\ns_memrealtime s[22:23]")
            e("s_waitcnt lgkmcnt(0)\ns_sub_u32 s101, s22, s100")
            if OPT.get("dcyc"): e("s_lshr_b32 s101, s101, 4")
            if OPT.get("dwg") is not None: e(f"s_cmp_eq_u32 s2, {OPT['dwg']}\ns_cselect_b32 s101, s101, 0")
            if neg: e(f"s_sub_u32 s101, {neg}, s101\ns_max_i32 s101, s101, 0")
            e("s_min_u32 s101, s101, 5000\ns_lshl_b32 s101, s101, 3\ns_add_u32 s101, s101, 3000")
            e.label(f"L_spin{stamp.n}")
            e("s_memrealtime s[22:23]\ns_waitcnt lgkmcnt(0)\ns_sub_u32 s22, s22, s98\ns_cmp_lt_u32 s22, s101")
            e(f"s_cbranch_scc1 L_spin{stamp.n}")
        return
    if not OPT["stamps"]: return
    if wait: e("s_waitcnt lgkmcnt(0)")
    if i > 0:
        e("s_mov_b32 m0, s101\nv_writelane_b32 v15, s98, m0\nv_writelane_b32 v14, s22, m0")
    e("s_memrealtime s[98:99]")
    if i > 0: e("s_memtime s[22:23]")
    e(f"s_mov_b32 s101, {i}")
    if i in (6, 7, 9): e(f"v_writelane_b32 v15, s{sBUD}, {16+i}")
    if i == 10: e(f"s_add_u32 s100, s{sCNT}, {DEP-4}\nv_writelane_b32 v15, s100, 26")
    if last:
        e("s_mov_b64 exec, -1\ns_waitcnt lgkmcnt(0)")
        e(f"v_writelane_b32 v15, s98, {i}\nv_writelane_b32 v14, s22, {i}")
        e(f"s_lshl_b32 s100, s2, 3\ns_add_u32 s100, s100, s{sW}\ns_lshl_b32 s100, s100, 7\ns_add_u32 s100, s100, {WS_STAMP}")
        e(f"v_lshl_add_u32 v13, v{L}, 2, s100\ns_mov_b32 exec_hi, 0")
        e(f"global_store_dword v13, v15, {s(sWS,2)}\nv_add_u32 v13, 0x100000, v13\nglobal_store_dword v13, v14, {s(sWS,2)}")

def fine(i, g=1):
    if OPT.get("diag") is not None: stamp(10 + 10*g + i)
    if OPT.get("fine") == g: e(f"s_memtime s[{72+2*i}:{73+2*i}]")
def finedump(n, g=1):
    if OPT.get("fine") == g:
        for i in range(n): e(f"s_nop 0\nv_writelane_b32 v14, s{72+2*i}, {16+i}")
def scan(r, fill=()):
    fill = list(fill)
    for m in ("row_shr:1 row_mask:0xf bank_mask:0xf bound_ctrl:1", "row_shr:2 row_mask:0xf bank_mask:0xf bound_ctrl:1",
              "row_shr:4 row_mask:0xf bank_mask:0xf bound_ctrl:1", "row_shr:8 row_mask:0xf bank_mask:0xf bound_ctrl:1",
              "row_bcast:15 row_mask:0xa bank_mask:0xf", "row_bcast:31 row_mask:0xc bank_mask:0xf"):
        if len(fill) >= 2:
            e(fill.pop(0)); e(fill.pop(0))
        else: e("s_nop 1")
        e(f"v_add_u32_dpp v{r}, v{r}, v{r} {m}")
    assert not fill

DSTR = 16; SRCR = 24; ER = 32; XB = 36; QQ = 42; B4 = 48; RK = 56
WA0 = 64; WA1 = 65; WA2 = 66; HA = 67; CA0 = 68; PBA = 69; TCH = 70; vTG = 71; HF = 72
WT = 80; DT = 112; W1T = 96; aWH = 144; aWT = 148; PB = 152; ZQ = 156
stamp(0)
e(f"s_cmp_ge_u32 s2, {NWG}")
e("s_cbranch_scc1 L_end")
e("s_load_dwordx16 s[4:19], s[0:1], 0")
e("s_load_dwordx4 s[20:23], s[0:1], 64")
e("s_load_dwordx2 s[24:25], s[0:1], 80")
e("s_getpc_b64 s[62:63]")
e.label("L_pc")
e("v_lshlrev_b32 v5, 5, v0")
e("v_min_u32 v5, L_end-L_pc, v5")
e("s_mov_b32 exec_lo, 0x11111111")
e("s_mov_b32 exec_hi, 0x11111111")
e(f"global_load_dword v{TCH}, v5, s[62:63]")
e("s_mov_b64 exec, -1")
e(f"s_mul_i32 s3, s2, {CH*4}")
e("v_lshl_add_u32 v8, v0, 4, s3")
e(f"s_add_u32 s60, s3, 8192")
e("v_lshl_add_u32 v9, v0, 2, s60")
e("s_lshr_b32 s3, s3, 1")
e("v_lshl_add_u32 v10, v0, 3, s3")
e("s_add_u32 s60, s3, 4096")
e("v_lshl_add_u32 v11, v0, 1, s60")
e("v_lshrrev_b32 v5, 6, v0")
e(f"v_and_b32 v{L}, 63, v0")
e(f"v_readfirstlane_b32 s{sW}, v5")
e(f"v_mov_b32 v{ZP}, 0")
e(f"v_mov_b32 v{ZP+1}, 0")
e("v_lshlrev_b32 v12, 4, v0")
e("v_lshlrev_b32 v5, 3, v0")
e(f"ds_write_b64 v5, {v(ZP,2)}")
e("s_and_b32 s60, s2, 7")
e(f"s_mul_i32 s{sB}, s60, 31")
e("s_min_u32 s60, s60, 2")
e(f"s_add_u32 s{sB}, s{sB}, s60")
e("s_lshr_b32 s96, s2, 3")
e(f"s_add_u32 s{sB}, s{sB}, s96")
e(f"s_mul_i32 s{sN0}, s{sB}, {NB}")
e(f"v_and_b32 v5, 16, v{L}")
e("v_and_b32 v6, 64, v0")
e("v_lshl_or_b32 v5, v5, 1, v6")
e(f"v_xor_b32 v{WA0}, v5, v12")
e(f"v_add_u32 v{WA1}, 8192, v{WA0}")
e(f"v_lshlrev_b32 v5, 1, v{L}")
e(f"s_lshl_b32 s60, s{sN0}, 7")
e("v_and_b32 v5, 0x70, v5")
e(f"v_xad_u32 v{HA}, v5, v12, s60")
e(f"s_lshl_b32 s60, s{sW}, 10")
e(f"s_add_u32 m0, s60, {WE+8192}")
e("s_waitcnt lgkmcnt(0)")
e(f"global_load_dwordx4 {v(DSTR,4)}, v8, {s(sDST,2)}")
e(f"global_load_dword v{DSTR+4}, v9, {s(sDST,2)}")
e(f"s_mov_b32 s{srdH}, s{sH}")
e(f"s_and_b32 s{srdH+1}, s{sH+1}, 0xffff")
e(f"s_mov_b32 s{srdH+2}, 1280000")
e(f"s_mov_b32 s{srdH+3}, 0x20000")
e(f"s_cmp_ge_u32 s{sW}, 6")
e(f"global_load_lds_dwordx4 v{WA1}, {s(sWE,2)}")
e("s_cbranch_scc1 L_d67")
e(f"s_add_u32 m0, s60, {HB}")
e("s_nop 0")
e(f"buffer_load_dwordx4 v{HA}, {s(srdH,4)}, 0 offen lds")
e("s_branch L_ddone")
e.label("L_d67")
e(f"s_add_u32 s62, s{sWE}, 16384")
e(f"s_addc_u32 s63, s{sWE+1}, 0")
e(f"v_lshlrev_b32 v5, 4, v{L}")
e(f"s_cmp_eq_u32 s{sW}, 7")
e(f"s_cselect_b64 s[62:63], {s(sWX,2)}, s[62:63]")
e(f"s_cselect_b32 s61, 256, 0")
e(f"s_cselect_b32 s97, 8, 16")
e(f"s_add_u32 m0, s61, {WL}")
e("s_bfm_b64 exec, s97, 0")
e(f"global_load_lds_dwordx4 v5, s[62:63]")
e("s_mov_b64 exec, -1")
e.label("L_ddone")
e("s_barrier")
e(f"global_load_dwordx4 {v(SRCR,4)}, v8, {s(sSRC,2)}")
e(f"global_load_dword v{SRCR+4}, v9, {s(sSRC,2)}")
e(f"global_load_dwordx2 {v(ER,2)}, v10, {s(sE,2)}")
e(f"global_load_short_d16_hi v{ER+2}, v11, {s(sE,2)}")
e(f"global_load_dword v{vTG}, v{ZP}, {s(sWS,2)}")
stamp(1)
for i in range(4): e(f"v_mov_b32 v{ZQ+i}, 0")
assert R2 + 6*8192 >= AT and R2 + 6*8192 <= WL
e(f"ds_write_b128 v{ZP}, {v(ZQ,4)} offset:{STG+853*16}")
def zero(lo, hi):
    e("v_lshlrev_b32 v5, 4, v0")
    for i in range(lo, hi):
        if i == 5:
            e(f"v_cmp_gt_u32 vcc, {(AT - R2 - 5*8192)//16}, v0")
            e("s_mov_b64 exec, vcc")
        e(f"ds_write_b128 v5, {v(ZQ,4)} offset:{R2+i*8192}")
    if hi == 6: e("s_mov_b64 exec, -1")
Z0, Z1 = OPT["zs"]
if Z0 > 2: zero(2, Z0)
e(f"s_mov_b32 s{srdPOS}, s{sPOS}")
e(f"s_and_b32 s{srdPOS+1}, s{sPOS+1}, 0xffff")
e(f"s_mov_b32 s{srdPOS+2}, 60000")
e(f"s_mov_b32 s{srdPOS+3}, 0x20000")
PT = 1 if OPT.get("ptouch") else 0
if PT:
    e("s_lshl_b32 s61, s96, 11")
    e("v_lshl_add_u32 v5, v0, 2, s61")
    e("s_mov_b32 exec_lo, 1")
    e("s_mov_b32 exec_hi, 1")
    e(f"buffer_load_dword v{TCH}, v5, {s(srdPOS,4)}, 0 offen")
    e("s_mov_b64 exec, -1")
e(f"s_mul_i32 s{sCHF}, s{sW}, 86")
e(f"s_lshr_b32 s{sCHF}, s{sCHF}, 8")
e(f"s_mul_i32 s61, s{sCHF}, 3")
e(f"s_sub_u32 s{sNG}, s{sW}, s61")
e(f"s_and_b32 s61, s{sW}, 3")
e("s_lshl_b32 s61, s61, 1")
e(f"s_lshr_b32 s62, s{sW}, 2")
e("s_add_u32 s61, s61, s62")
e("s_lshl_b32 s61, s61, 8")
e("s_add_u32 s61, s61, 8192")
e(f"v_and_b32 v5, 0x70, v{WA0}")
e(f"v_bfe_u32 v6, v{L}, 3, 2")
e("v_lshl_add_u32 v5, v6, 11, v5")
e(f"v_lshrrev_b32 v6, 5, v{L}")
e("v_lshl_add_u32 v5, v6, 7, v5")
e(f"v_add_u32 v{WA2}, s61, v5")
e(f"v_and_b32 v1, 15, v{L}")
e(f"v_lshrrev_b32 v3, 4, v{L}")
e(f"s_lshl_b32 s61, s{sNG}, 11")
e(f"s_add_u32 s61, s61, {HB}")
e(f"v_and_b32 v2, 7, v{L}")
e("v_xor_b32 v2, v2, v3")
e("v_lshl_add_u32 v4, v1, 7, s61")
e(f"v_lshl_add_u32 v{aWH+1}, v2, 4, v4")
e(f"v_xor_b32 v{aWH+2}, 64, v{aWH+1}")
e(f"v_bfe_u32 v6, v{L}, 2, 2")
e(f"v_and_b32 v2, 3, v{L}")
e("v_lshl_add_u32 v4, v3, 3, v6")
e(f"v_lshlrev_b32 v7, 2, v{L}")
e("v_and_b32 v7, 0x60, v7")
e(f"s_xor_b32 s61, s{sCHF}, 1")
e("s_lshl_b32 s61, s61, 13")
e(f"s_add_u32 s61, s61, {WE}")
e("v_lshl_add_u32 v5, v4, 7, s61")
e("v_lshl_add_u32 v5, v2, 3, v5")
e(f"v_xor_b32 v{aWT}, v7, v5")
for t in range(1, 4): e(f"v_xor_b32 v{aWT+t}, {32*t}, v{aWT}")
e(f"s_lshl_b32 s61, s{sCHF}, 6")
e(f"s_add_u32 s61, s61, {WH}")
e("v_lshl_add_u32 v6, v2, 4, s61")
e("v_lshl_add_u32 v5, v4, 7, v6")
e(f"v_xor_b32 v{aWH}, v7, v5")
e(f"s_lshl_b32 s61, s{sNG}, 4")
e(f"s_add_u32 s61, s61, s{sN0}")
e("s_lshl_b32 s61, s61, 7")
e(f"s_add_u32 s61, s61, {WS_BP}")
e("v_lshl_add_u32 v2, v3, 9, s61")
e(f"v_lshl_add_u32 v{aWH+3}, v1, 3, v2")
e(f"v_lshrrev_b32 v1, 5, v{L}")
e(f"v_and_b32 v7, 3, v{L}")
e(f"v_bfe_u32 v6, v{L}, 3, 2")
e("v_lshlrev_b32 v6, 2, v6")
e("v_lshl_add_u32 v7, v7, 4, v6")
e(f"v_bfe_u32 v6, v{L}, 2, 1")
e("v_add_u32 v7, v7, v6")
e("v_lshl_add_u32 v7, v1, 1, v7")
e(f"v_lshlrev_b32 v{CA0}, 1, v7")
e(f"v_mul_u32_u24 v{aATb}, {ATS}, v7")
e(f"v_add_u32 v{aATb}, {AT}, v{aATb}")

def laneconsts():
    e(f"s_add_u32 s{srdBP}, s{sWS}, {WS_BP}")
    e(f"s_addc_u32 s{srdBP+1}, s{sWS+1}, 0")
    e(f"s_and_b32 s{srdBP+1}, s{srdBP+1}, 0xffff")
    e(f"s_or_b32 s{srdBP+1}, s{srdBP+1}, 0x800000")
    e(f"s_mov_b32 s{srdBP+2}, 10000")
    e(f"s_mov_b32 s{srdBP+3}, 0x20000")
    e(f"s_mov_b32 s{sMULTI}, 0")
    e(f"s_mov_b32 s{sOHC}, 0x3f80")
    e(f"s_mov_b32 s{sOHC+1}, 0")
    e(f"s_movk_i32 s{sWID}, 0x80")
    e(f"s_mov_b32 s{sONCE}, 0")
def laneconsts2():
    e(f"v_lshrrev_b32 v1, 5, v{L}")
    e(f"v_and_b32 v2, 1, v{L}")
    e(f"v_lshlrev_b32 v{vWxa}, 7, v1")
    e(f"v_lshlrev_b32 v3, 5, v1")
    e(f"v_lshl_add_u32 v{IDX+1}, v2, 4, v3")
    e(f"v_bfe_u32 v4, v{L}, 3, 2")
    e(f"v_bfe_u32 v5, v{L}, 1, 1")
    e("v_lshl_add_u32 v4, v4, 1, v5")
    e(f"v_bfe_u32 v5, v{L}, 2, 1")
    e("v_lshl_add_u32 v4, v5, 3, v4")
    e(f"v_lshlrev_b32 v{vIdxL}, 3, v4")
    e(f"s_lshl_b32 s61, s{sW}, 10")
    e(f"s_add_u32 s61, s61, {R1}")
    e(f"v_lshl_add_u32 v{aR1r}, v4, 4, s61")
    e("v_xor_b32 v5, v1, v2")
    e(f"v_lshl_add_u32 v{aR1r}, v5, 20, v{aR1r}")
    e(f"v_lshl_add_u32 v{aR1w}, v{L}, 4, s61")
    e(f"s_lshl_b32 s61, s{sW}, 12")
    e(f"s_add_u32 s61, s61, {R2}")
    e(f"v_bfe_u32 v3, v{L}, 1, 3")
    e(f"v_lshl_add_u32 v4, v{L}, 6, s61")
    e(f"v_lshl_add_u32 v{aR2b}, v3, 3, v4")
    e(f"v_mov_b32 v{aR2}, v{aR2b}")
    e(f"v_bfe_u32 v3, v{L}, 2, 2")
    e(f"v_and_b32 v4, 3, v{L}")
    e(f"v_bfe_u32 v5, v{L}, 4, 1")
    e("v_lshl_add_u32 v5, v5, 2, v4")
    e("v_lshrrev_b32 v7, 1, v3")
    e("v_lshl_add_u32 v7, v1, 2, v7")
    e("v_xor_b32 v5, v5, v7")
    e("v_lshl_add_u32 v7, v1, 3, v3")
    e("v_lshl_add_u32 v7, v7, 6, s61")
    e(f"v_lshl_add_u32 v{aS0}, v5, 3, v7")
    e(f"v_xor_b32 v{aS1}, 16, v{aS0}")
    e(f"v_add_u32 v{aS1}, 256, v{aS1}")
    e(f"v_and_b32 v4, 31, v{L}")
    e("v_lshlrev_b32 v7, 3, v1")
    e("v_sub_u32 v7, v4, v7")
    e("v_lshlrev_b32 v4, 4, v2")
    e(f"v_lshlrev_b32 v4, v4, s{sOHC}")
    e("v_ashrrev_i32 v7, 1, v7")
    for u, I in ((0, I0), (1, I1)):
        for d in range(4): e(f"v_cmp_eq_u32 {s(sMK+2*d,2)}, {8*u+d}, v7")
        for d in range(4): e(f"v_cndmask_b32 v{I+d}, 0, v4, {s(sMK+2*d,2)}")
    e("v_xor_b32 v7, 1, v1")
    e(f"v_mul_u32_u24 v{ONE}, {OPT.get('aov', 0x3f80)}, v7")
    if OPT.get("aoall"): e(f"v_mov_b32 v{ONE}, 0x3f80")
    e(f"v_mov_b32 v{ONE+1}, 0")
if OPT["lcat"] == "start": laneconsts(); laneconsts2()
e("v_mov_b32 v13, 1")
e("s_mov_b32 s61, 52429")
e("s_movk_i32 s62, -40")
e(f"v_lshlrev_b32 v1, 4, v{L}")
e(f"s_lshl_b32 s63, s2, 10")
e(f"s_add_u32 s63, s63, {WS_OFF}")
e(f"v_add_u32 v{PBA}, s63, v1")
def wdma():
    for base, a, ptr in ((WE, WA0, sWE), (WH, WA0, sWH), (WH+8192, WA2, sWH)):
        e(f"s_add_u32 m0, s60, {base}")
        e("s_nop 0")
        e(f"global_load_lds_dwordx4 v{a}, {s(ptr,2)}")
W0 = 3 if OPT["wdat"] == -1 else 0
W1 = 3 if OPT["wdat"] <= 0 else 0
if OPT["wdat"] == -1: wdma()
e(f"s_waitcnt vmcnt({7+W0+PT})")
stamp(14, wait=True)
for i in range(5): e(f"v_mul_u32_u24 v{B4+i}, s61, v{DSTR+i}")
for i in range(5): e(f"v_lshrrev_b32 v{B4+i}, 21, v{B4+i}")
for i in range(5):
    e(f"v_lshlrev_b32 v{B4+i}, 2, v{B4+i}")
    e(f"ds_add_rtn_u32 v{RK+i}, v{B4+i}, v13 offset:{CNT1}")
if OPT["wdat"] == 0: wdma()
e(f"s_cmp_ge_u32 s{sW}, 3")
e(f"s_waitcnt vmcnt({5+W1+PT}) lgkmcnt(0)")
e("s_barrier")
stamp(2)
def nodeprod_reads():
    e(f"ds_read_b128 {v(HF,4)}, v{aWH+1}")
    e(f"ds_read_b128 {v(HF+4,4)}, v{aWH+2}")
    for t in range(4):
        for ks in range(2):
            for rd in range(2):
                e(f"ds_read_b64_tr_b16 {v(WT+8*t+4*ks+2*rd,2)}, v{aWT+t} offset:{ks*4096+rd*512}")
def nodeprod(extra=0):
    e(f"s_mov_b32 s96, {NL2E}")
    for t in range(4):
        e(f"s_waitcnt lgkmcnt({12-4*t+extra})")
        e(f"v_mfma_f32_16x16x32_bf16 {v(DT+4*t,4)}, {v(HF,4)}, {v(WT+8*t,4)}, 0")
        e(f"v_mfma_f32_16x16x32_bf16 {v(DT+4*t,4)}, {v(HF+4,4)}, {v(WT+8*t+4,4)}, {v(DT+4*t,4)}")
def nodescale():
    for i in range(8): e(f"v_pk_mul_f32 {v(DT+2*i,2)}, {v(DT+2*i,2)}, s[96:97] op_sel_hi:[1,0]")
e("s_cbranch_scc1 L_nobp")
nodeprod_reads()
e(f"ds_read_b128 v[4:7], v1 offset:{CNT1}")
if OPT["wdat"] == 1: wdma()
nodeprod(1)
e(f"s_cmp_eq_u32 s{sNG}, 2")
e("s_cselect_b32 s63, 0, -1")
nodescale()
for r in range(4):
    e(f"v_cvt_pk_bf16_f32 v{WT+2*r}, v{DT+r}, v{DT+4+r}")
    e(f"v_cvt_pk_bf16_f32 v{WT+2*r+1}, v{DT+8+r}, v{DT+12+r}")
e("s_mov_b32 exec_hi, s63")
for r in range(4): e(f"global_store_dwordx2 v{aWH+3}, {v(WT+2*r,2)}, {s(sWS,2)} offset:{r*128} sc1")
e("s_mov_b64 exec, -1")
e("s_branch L_bpdone")
e.label("L_nobp")
e(f"ds_read_b128 v[4:7], v1 offset:{CNT1}")
if OPT.get("prew"):
    e(f"s_cmp_lg_u32 s{sW}, 7")
    e("s_cbranch_scc1 L_bpdone")
    e(f"global_store_dwordx4 v{PBA}, {v(ZQ,4)}, {s(sWS,2)} sc1")
if OPT["wdat"] == 1: wdma()
e.label("L_bpdone")
fine(0)
e("s_waitcnt lgkmcnt(0)")
fine(1)
e("v_add_u32 v5, v4, v5")
e("v_add_u32 v6, v5, v6")
e("v_add_u32 v7, v6, v7")
e("v_mov_b32 v3, v7")
scan(3, [f"v_lshlrev_b32 v{XB+i}, 2, v{DSTR+i}" for i in range(5)] +
        [f"v_mad_i32_i24 v{XB+i}, v{B4+i}, s62, v{XB+i}" for i in range(5)] +
        ["s_mov_b32 s63, 0xffff0000", "s_movk_i32 s61, 21846"])
e("v_sub_u32 v8, v3, v7")
e("v_add_u32 v9, v8, v4")
e("v_add_u32 v10, v8, v5")
e("v_add_u32 v11, v8, v6")
e(f"ds_write_b128 v1, v[8:11] offset:{OFF1}")
for i in range(5): e(f"ds_read_b32 v{B4+i}, v{B4+i} offset:{OFF1}")
fine(2)
PN = OPT["pall"]
if PN:
    e(f"s_mul_i32 s97, s{sW}, {PN*1024}")
    e(f"s_add_u32 m0, s97, {POS}")
e(f"s_cmp_ge_u32 s{sW}, 3")
for i in range(PN): e(f"buffer_load_dwordx4 v1, {s(srdPOS,4)}, s97 offen offset:{i*1024} lds")
e(f"s_waitcnt vmcnt({8+PN+PT})")
e("s_cbranch_scc0 L_srcin")
e(f"s_waitcnt vmcnt({4+PN+PT})")
e.label("L_srcin")
fine(3)
e(f"v_lshl_or_b32 v{SRCR}, v{ER}, 16, v{SRCR}")
e(f"v_and_or_b32 v{SRCR+1}, v{ER}, s63, v{SRCR+1}")
e(f"v_lshl_or_b32 v{SRCR+2}, v{ER+1}, 16, v{SRCR+2}")
e(f"v_and_or_b32 v{SRCR+3}, v{ER+1}, s63, v{SRCR+3}")
e(f"v_or_b32 v{SRCR+4}, v{ER+2}, v{SRCR+4}")
for i in range(5):
    e(f"s_waitcnt lgkmcnt({4+i})")
    e(f"v_add_u32 v{B4+i}, v{B4+i}, v{RK+i}")
    e(f"v_mul_u32_u24 v{QQ+i}, s61, v{B4+i}")
    e(f"v_add_u32_sdwa v{QQ+i}, v{B4+i}, v{QQ+i} {SD} src0_sel:DWORD src1_sel:WORD_1")
    e(f"v_lshlrev_b32 v{RK+i}, 2, v{QQ+i}")
    e(f"ds_write_b8 v{QQ+i}, v{XB+i} offset:{STB}")
    e(f"ds_write_b32 v{RK+i}, v{SRCR+i} offset:{STG}")
fine(4)
e(f"s_cmp_lg_u32 s{sW}, 7")
e("s_cbranch_scc1 L_nopb")
for r in (8, 9, 10, 11, 3):
    e(f"v_mul_u32_u24 v2, s61, v{r}")
    e("v_lshrrev_b32 v2, 16, v2")
    e(f"v_add_lshl_u32 v{r}, v{r}, v2, 2")
e(f"v_lshl_or_b32 v{PB}, v9, 16, v8")
e(f"v_lshl_or_b32 v{PB+1}, v11, 16, v10")
e(f"v_mov_b32 v{PB+2}, v3")
e.label("L_nopb")
e(f"s_mul_i32 s60, s2, {CHB}")
e(f"s_lshl_b32 s97, s{sW}, 12")
e("s_add_u32 s60, s60, s97")
e(f"s_add_u32 s60, s60, {WS_REC}")
e("v_add_u32 v2, s60, v1")
e("v_add_u32 v4, s97, v1")
e(f"v_add_u32 v3, {STG}, v4")
e("v_lshrrev_b32 v4, 2, v4")
e("v_mov_b32 v5, 0xfcfcfc")
e(f"s_cmp_eq_u32 s{sW}, 3")
e(f"s_cselect_b64 vcc, {(1 << ((CHB-13312)//16)) - 1}, -1")
e("s_cselect_b64 s[62:63], 0, -1")
fine(5)
e(f"s_waitcnt vmcnt({PN})")
fine(6)
def posloop(name, w0, nw):
    e(f"s_sub_u32 s61, s{sW}, {w0}")
    e(f"s_cmp_ge_u32 s61, {nw}")
    e(f"s_cbranch_scc1 L_{name}e")
    e("s_lshl_b32 s61, s61, 12")
    if PN: e(f"s_add_u32 s61, s61, {PN*8192}")
    e(f"v_lshlrev_b32 v6, 4, v{L}")
    e.label(f"L_{name}")
    e(f"s_add_u32 m0, s61, {POS}")
    e("s_nop 0")
    for i in range(4): e(f"buffer_load_dwordx4 v6, {s(srdPOS,4)}, s61 offen offset:{i*1024} lds")
    e(f"s_add_u32 s61, s61, {4096*nw}")
    e("s_cmp_lt_u32 s61, 61440")
    e(f"s_cbranch_scc1 L_{name}")
    e.label(f"L_{name}e")
if OPT["posat"][0] == "b2": posloop("pl", *OPT["posat"][1:])
e(f"v_readfirstlane_b32 s{sTAG}, v{vTG}")
e(f"v_add_u32 v{PB+3}, {TAGC}, v{vTG}")
e(f"s_add_u32 s{sTAG}, s{sTAG}, {TAGC}")
e(f"s_and_b32 s{sT}, s{sTAG}, 0xc000")
e(f"s_lshl_b32 s60, s{sTAG}, 2")
e(f"s_and_b32 s{sT+1}, s60, 0xc000")
e(f"s_lshl_b32 s60, s{sTAG}, 4")
e(f"s_and_b32 s{sT+2}, s60, 0xc000")
e(f"s_and_b32 s{sT+3}, s{sTAG}, {M3}")
e(f"s_cmp_ge_u32 s{sW}, 4")
e("s_waitcnt lgkmcnt(0)")
fine(7)
e("s_barrier")
stamp(3)
ST = 48
e("s_cbranch_scc1 L_nost")
for i in range(4):
    e(f"ds_read_b128 {v(ST+4*i,4)}, v3 offset:{i*1024}")
    e(f"ds_read_b32 v{8+i}, v4 offset:{STB+i*256}")
for i in range(4):
    e(f"s_waitcnt lgkmcnt({6-2*i})")
    if i == 1: e("s_mov_b64 exec, vcc")
    if i == 2: e("s_mov_b64 exec, s[62:63]")
    for k in range(3): e(f"v_or_b32 v{ST+4*i+k}, s{sT+k}, v{ST+4*i+k}")
    e(f"v_and_or_b32 v{ST+4*i+3}, v{8+i}, v5, s{sT+3}")
    e(f"global_store_dwordx4 v2, {v(ST+4*i,4)}, {s(sWS,2)} offset:{i*1024} sc1")
e("s_mov_b64 exec, -1")
fine(1, 2)
e.label("L_nost")
fine(0, 2)
e(f"s_cmp_lg_u32 s{sW}, 7")
e("s_cbranch_scc1 L_nopub")
e(f"global_store_dwordx4 v{PBA}, {v(PB,4)}, {s(sWS,2)} sc1")
e.label("L_nopub")
stamp(15, wait=True)
finedump(8)
PL = 160; vPA = 164; vPW = 165
def site(n):
    if OPT["posat"][0] == f"pre{n}": posloop("pl", *OPT["posat"][1:])
    if OPT["pollat"] == n:
        pollsetup()
        fine(3, 2)
    if OPT["posat"][0] == f"post{n}": posloop("pl", *OPT["posat"][1:])
def pollsetup():
    e("v_and_b32 v1, 255, v0")
    e(f"s_lshr_b32 s60, s{sB}, 2")
    e("s_lshl_b32 s60, s60, 4")
    e(f"s_add_u32 s60, s60, {WS_OFF}")
    e(f"v_lshl_add_u32 v{vPA}, v1, 10, s60")
    e(f"s_cmp_lt_u32 s{sW}, 4")
    e("s_cbranch_scc1 L_nops")
    e(f"v_cmp_gt_u32 vcc, {NWG}, v1")
    for i in range(3): e(f"v_mov_b32 v{PL+i}, 0")
    e(f"v_mov_b32 v{PL+3}, s{sTAG}")
    e(f"v_lshlrev_b32 v{vPW}, 2, v1")
    e("s_mov_b64 exec, vcc")
    e(f"global_load_dwordx4 {v(PL,4)}, v{vPA}, {s(sWS,2)} sc1")
    e("s_mov_b64 exec, -1")
    e.label("L_nops")
e(f"s_mov_b32 s{sBUD}, 2000000")
e(f"ds_read_u16_d16_hi v{WX}, v{CA0} offset:{WL}")
e(f"ds_read_u16_d16_hi v{WX+1}, v{CA0} offset:{WL+128}")
site(0)
e(f"s_cmp_ge_u32 s{sW}, 6")
e("s_cbranch_scc1 L_w67")
e(f"s_cmp_ge_u32 s{sW}, 3")
e("s_cbranch_scc1 L_w345")
for i in range(4): e(f"v_mov_b32 v{HRES+i}, v{HF+i}")
e("s_branch L_w05")
e.label("L_w345")
nodeprod_reads()
e(f"v_and_b32 v1, 15, v{L}")
e(f"v_lshrrev_b32 v3, 4, v{L}")
e(f"s_lshl_b32 s60, s{sNG}, 5")
e(f"s_add_u32 s60, s60, {AT}")
e("v_lshl_add_u32 v2, v3, 3, s60")
e(f"v_mul_u32_u24 v1, {ATS}, v1")
e("v_add_u32 v2, v1, v2")
nodeprod()
e("s_nop 1")
nodescale()
for t in range(4):
    e(f"v_cvt_pk_bf16_f32 v{WT+2*t}, v{DT+4*t}, v{DT+4*t+1}")
    e(f"v_cvt_pk_bf16_f32 v{WT+2*t+1}, v{DT+4*t+2}, v{DT+4*t+3}")
for i in range(4): e(f"v_mov_b32 v{HRES+i}, v{HF+4+i}")
for t in range(4): e(f"ds_write_b64 v2, {v(WT+2*t,2)} offset:{t*16*ATS}")
e.label("L_w05")
def part2():
    for t in range(2):
        for ks in range(2):
            for rd in range(2):
                e(f"ds_read_b64_tr_b16 {v(W1T+8*t+4*ks+2*rd,2)}, v{aWH} offset:{ks*4096+rd*512+t*8}")
    for t in range(2):
        for c in range(2):
            for rd in range(2):
                e(f"ds_read_b64_tr_b16 {v(WH2+8*t+4*c+2*rd,2)}, v{aWH} offset:{(2+c)*4096+rd*512+t*8}")
    e(f"s_lshl_b32 s60, s{sNG}, 4")
    e(f"v_and_b32 v1, 15, v{L}")
    e(f"v_add_lshl_u32 v{vAItem}, v1, s60, 2")
    e("s_waitcnt lgkmcnt(8)")
    for t in range(2):
        e(f"v_mfma_f32_16x16x32_bf16 {v(H1+4*t,4)}, {v(W1T+8*t,4)}, {v(HF,4)}, 0")
        e(f"v_mfma_f32_16x16x32_bf16 {v(H1+4*t,4)}, {v(W1T+8*t+4,4)}, {v(HF+4,4)}, {v(H1+4*t,4)}")
    e(f"v_and_b32 v2, 48, v{L}")
    e(f"v_lshlrev_b32 v{vFO}, 1, v2")
    e(f"v_add_u32 v{vFO}, {BF}, v{vFO}")
    e(f"s_lshl_b32 s60, s{sN0}, 1")
    e(f"s_add_u32 s60, s60, s{sCHF}")
    e("s_lshl_b32 s60, s60, 6")
    e(f"v_lshl_add_u32 v2, v{vAItem}, 5, v2")
    e(f"v_add_u32 v{vOA}, s60, v2")
    e(f"s_movk_i32 s60, {NB*4}")
    e(f"v_cmp_gt_u32 {s(sOM,2)}, s60, v{vAItem}")
    for i in range(4): e(f"v_pk_mul_f32 {v(H1+2*i,2)}, {v(H1+2*i,2)}, s[96:97] op_sel_hi:[1,0]")
def part3():
    e(f"v_mul_u32_u24 v1, {ACCS//4}, v{vAItem}")
    e(f"v_add_u32 v1, {ACC-BF}, v1")
    e(f"v_add_u32 v{vFA}, v1, v{vFO}")
    e(f"v_mul_f32 v{WX}, {NL2E}, v{WX}")
    e(f"v_mul_f32 v{WX+1}, {NL2E}, v{WX+1}")
    e(f"v_cvt_pk_bf16_f32 v1, v{WX}, v{WX}")
    e("v_and_b32 v1, 0xffff0000, v1")
    e(f"v_sub_f32 v2, v{WX}, v1")
    e(f"v_cvt_pk_bf16_f32 v{WX}, v1, v2")
    e(f"v_cvt_pk_bf16_f32 v{WX+1}, 0, v{WX+1}")
if OPT["p2at"] == "win": part2()
e("s_branch L_wdone")
e.label("L_w67")
e(f"ds_read_u16_d16_hi v4, v{CA0} offset:{WXL}")
e("v_and_b32 v6, 127, v0")
e(f"v_min_u32 v7, 119, v6")
e(f"s_mul_i32 s60, s{sB}, 240")
e(f"v_lshl_add_u32 v1, v7, 1, s60")
e(f"global_load_short_d16_hi v{vPosOwn}, v1, {s(sPOS,2)}")
e("s_add_u32 s60, s60, 1280000")
e(f"v_lshl_add_u32 v{vOA}, v6, 1, s60")
e("s_movk_i32 s60, 120")
e(f"v_cmp_gt_u32 {s(sOM,2)}, s60, v6")
e(f"v_mul_u32_u24 v1, 171, v7")
e("v_lshrrev_b32 v1, 9, v1")
e(f"v_mad_i32_i24 v2, v1, -3, v7")
e(f"v_lshlrev_b32 v{vAItem}, 2, v1")
e(f"v_lshl_add_u32 v{H1}, v2, 8, v{vAItem}")
e(f"v_lshlrev_b32 v{vFO}, 3, v2")
e(f"v_add_u32 v{vFO}, {BF+256}, v{vFO}")
e(f"v_bfe_u32 v1, v{L}, 2, 1")
e(f"v_lshrrev_b32 v2, 3, v{L}")
e(f"v_and_b32 v3, 3, v{L}")
e("v_lshl_add_u32 v2, v2, 2, v3")
e("v_lshl_add_u32 v2, v1, 5, v2")
e("v_lshlrev_b32 v2, 2, v2")
e("s_waitcnt lgkmcnt(0)")
e(f"v_mul_f32 v4, {NLN2}, v4")
e(f"ds_write_b32 v2, v4 offset:{WXT}")
e.label("L_wdone")
stamp(4, wait=True)
site(1)
if OPT["p2at"] == "win": part3()
if OPT["lcat"] != "start": laneconsts()
if OPT["lcat"] == "win": laneconsts2()
RA = 16; XP = 36; KA = 80; LK = 96; AD = 112; RR = 117; DD = 122; LN = 127; vSB = 132; vJ = 133; vPF = 134
mk = lambda p, k: sMK + 2 * (3 * p + k)
sLB = sMK + 30
def presets(ps):
    for p in ps:
        for k in range(4): e(f"v_mov_b32 v{RA+4*p+k}, s{sT+k}")
def batchsetup():
    e("v_lshrrev_b32 v1, 3, v0")
    e("v_and_b32 v2, 7, v0")
    e(f"v_lshlrev_b32 v{vJ}, 4, v2")
    e(f"v_mul_u32_u24 v1, {CHB}, v1")
    e(f"v_add_u32 v{vSB}, v1, v{vJ}")
    presets(range(4))
batchsetup()
for p in range(4):
    e(f"s_add_u32 s{sRB+2*p}, s{sWS}, {WS_REC + p*64*CHB}")
    e(f"s_addc_u32 s{sRB+2*p+1}, s{sWS+1}, 0")
e("s_andn2_b32 s60, s2, 7")
e(f"s_add_u32 s60, s60, s{sW}")
e("s_mul_i32 s60, s60, 41")
e(f"v_add_u32 v{vPF}, s60, v{L}")
e(f"s_bfm_b64 {s(sPF,2)}, {OPT.get('pfn', 26)}, 0")
e(f"s_mov_b32 s{sC10K}, 60000")
if Z1 > Z0: zero(Z0, Z1)
site(2)
e("v_lshrrev_b32 v6, 3, v0")
e("v_lshlrev_b32 v6, 2, v6")
stamp(5, wait=True)
fine(4, 2)
if OPT.get("fine") == 2:
    e("s_waitcnt vmcnt(1)")
    fine(5, 2)
    e("s_waitcnt vmcnt(0)")
    fine(6, 2)
e(f"s_cmp_lt_u32 s{sW}, 4")
e("s_cbranch_scc1 L_b3")
e(f"s_and_b32 s3, s{sB}, 1")
e("s_lshl_b32 s3, s3, 4")
e.label("L_poll")
e(f"s_sub_u32 s{sBUD}, s{sBUD}, 1")
e("s_waitcnt vmcnt(0)")
e(f"v_cmp_ne_u32 vcc, s{sTAG}, v{PL+3}")
e("s_cbranch_scc1 L_pollout")
e("s_cbranch_vccz L_gotoff")
e("s_mov_b64 exec, vcc")
e(f"global_load_dwordx4 {v(PL,4)}, v{vPA}, {s(sWS,2)} sc1")
e("s_branch L_poll")
e.label("L_gotoff")
e("s_mov_b64 exec, -1")
e(f"s_bitcmp1_b32 s{sB}, 1")
e(f"v_alignbit_b32 v3, v{PL+1}, v{PL}, s3")
e(f"v_alignbit_b32 v4, v{PL+2}, v{PL+1}, s3")
e("s_cselect_b64 vcc, -1, 0")
e("v_cndmask_b32 v3, v3, v4, vcc")
e(f"ds_write_b32 v{vPW}, v3 offset:{OFF1}")
e(f"s_cmp_lt_u32 s{sW}, 6")
e("s_cbranch_scc1 L_b3")
e(f"ds_write_b32 v{H1}, v{vPosOwn} offset:{PD}")
e.label("L_b3")
fine(7, 2)
e("s_waitcnt lgkmcnt(0)")
e("s_barrier")
e(f"ds_read2st64_b32 {v(SEG,2)}, v6 offset0:{OFF1//256} offset1:{OFF1//256+1}")
e(f"ds_read2st64_b32 {v(SEG+2,2)}, v6 offset0:{OFF1//256+2} offset1:{OFF1//256+3}")
e("s_waitcnt lgkmcnt(0)")
stamp(6)
finedump(8, 2)
e.label("L_fetch")
for p in range(4):
    e(f"v_and_b32 v{AD+p}, 0xfff0, v{SEG+p}")
    e(f"v_sub_u32_sdwa v{RR+p}, v{SEG+p}, v{AD+p} {SD} src0_sel:WORD_1 src1_sel:DWORD")
    e(f"v_add_u32 v{AD+p}, v{AD+p}, v{vSB}")
    e(f"v_cmp_lt_i32 vcc, v{vJ}, v{RR+p}")
    e("s_mov_b64 exec, vcc")
    e(f"global_load_dwordx4 {v(RA+4*p,4)}, v{AD+p}, {s(sRB+2*p,2)} sc1")
    e("s_mov_b64 exec, -1")
e(f"v_max3_i32 v3, v{RR}, v{RR+1}, v{RR+2}")
e(f"v_max_i32 v3, v3, v{RR+3}")
e("v_mov_b32 v13, 8")
e(f"v_cmp_lt_i32 vcc, s{sWID}, v3")
e(f"s_or_b32 s{sANYB}, vcc_lo, vcc_hi")
e("s_cbranch_scc0 L_nob0")
e(f"s_cmp_eq_u32 s{sWID}, {NARROW}")
e("s_cbranch_scc1 L_narrow")
e(f"v_mov_b32 v{RR+4}, 0")
e(f"v_mov_b32 v{AD+4}, 0")
e("v_mov_b32 v4, 0")
for p in (3, 2, 1, 0):
    e(f"v_cmp_lt_i32 vcc, 0x80, v{RR+p}")
    e(f"v_add_u32 v5, {p*64*CHB}, v{AD+p}")
    e("s_nop 0")
    e(f"v_cndmask_b32 v{RR+4}, v{RR+4}, v{RR+p}, vcc")
    e(f"v_cndmask_b32 v{AD+4}, v{AD+4}, v5, vcc")
    e("v_addc_co_u32 v4, vcc, 0, v4, vcc")
e(f"v_subrev_u32 v{LN+4}, 0x80, v{RR+4}")
e(f"v_max_i32 v{LN+4}, 0, v{LN+4}")
presets([4])
e(f"v_cmp_lt_i32 {s(sLB,2)}, v{vJ}, v{LN+4}")
e("v_cmp_lt_i32 vcc, 0x100, v3")
e("v_cmp_lt_i32 s[60:61], 1, v4")
e(f"s_mov_b64 exec, {s(sLB,2)}")
e(f"global_load_dwordx4 {v(RA+16,4)}, v{AD+4}, {s(sRB,2)} offset:128 sc1")
e("s_or_b64 exec, vcc, s[60:61]")
e(f"ds_write_b32 v{ZP}, v13 offset:{CNT2+252}")
e("s_mov_b64 exec, -1")
for k in range(3):
    e(f"v_add_u32 v5, {4*k}, v{vJ}")
    e(f"v_cmp_lt_u32 {s(mk(4,k),2)}, v5, v{LN+4}")
e.label("L_nob0")
e(f"s_cmp_lg_u32 s{sONCE}, 0")
e("s_cbranch_scc1 L_once")
e(f"s_mov_b32 s{sONCE}, 1")
zero(0, 2)
if Z1 < 6: zero(Z1, 6)
if OPT["p2at"] == "fetch":
    e(f"s_cmp_ge_u32 s{sW}, 6")
    e("s_cbranch_scc1 L_nop2")
    part2()
    e.label("L_nop2")
    part3()
if OPT["lcat"] == "fetch": laneconsts2()
e.label("L_once")
for p in range(4):
    e(f"v_and_b32 v4, 15, v{SEG+p}")
    e(f"v_sub_u32 v{LN+p}, v{RR+p}, v4")
    e(f"v_sub_u32 v4, v{vJ}, v4")
    e("v_add_u32 v5, 4, v4")
    e("v_add_u32 v6, 8, v4")
    for k in range(3): e(f"v_cmp_lt_u32 {s(mk(p,k),2)}, v{4+k}, v{LN+p}")
e(f"v_lshlrev_b32 v1, 2, v{L}")
e(f"v_cmp_gt_u32 {s(sVAL,2)}, {NB}, v{L}")
e("v_mov_b32 v4, 0")
e("v_mov_b32 v5, 0")
e("s_movk_i32 s62, 0xfc")
e(f"s_mov_b32 s63, {M3}")
def bpf(at):
    if OPT["bpf"] != at: return
    e(f"s_mov_b64 exec, {s(sPF,2)}")
    e(f"buffer_load_dword v{vPF+1}, v{vPF}, {s(srdBP,4)}, 0 idxen")
    e("s_mov_b64 exec, -1")
bpf(2)
XV = 1 if OPT["bpf"] == 2 else 0
def five(name, body):
    for p in range(4): body(p)
    e(f"s_cmp_eq_u32 s{sANYB}, 0")
    e(f"s_cbranch_scc1 L_{name}")
    body(4)
    e.label(f"L_{name}")
def chk(p):
    if p < 4: e(f"s_waitcnt vmcnt({3-p+XV})")
    for k in range(4): e(f"v_bitop3_b32 v{4 if k < 3 else 5}, v{4 if k < 3 else 5}, v{RA+4*p+k}, s{sT+k} bitop3:0xf6")
five("bx", chk)
e("v_and_b32 v4, 0xc000, v4")
e("v_and_or_b32 v4, v5, s63, v4")
e("v_cmp_ne_u32 vcc, 0, v4")
e("s_cbranch_vccnz L_stale")
e.label("L_gotrec")
stamp(7, wait=True)
def atom(p):
    if p: e("s_mov_b64 exec, -1")
    for k in range(3): e(f"v_and_b32_sdwa v{XP+6*p+2*k}, s62, v{RA+4*p+3} {SD} src0_sel:DWORD src1_sel:BYTE_{k}")
    for k in range(3):
        e(f"s_mov_b64 exec, {s(mk(p,k),2)}")
        e(f"ds_add_rtn_u32 v{KA+3*p+k}, v{XP+6*p+2*k}, v13 offset:{CNT2}")
five("ba", atom)
bpf(1)
e("s_mov_b64 exec, -1")
e("s_waitcnt lgkmcnt(0)")
e("s_barrier")
stamp(8)
e(f"ds_read_b32 v2, v1 offset:{CNT2}")
clean = [f"v_xor_b32 v{XP+6*p+2*k+1}, s{sT+k}, v{RA+4*p+k}" for p in range(5) for k in range(3)]
for x in clean[:5]: e(x)
e("s_waitcnt lgkmcnt(0)")
e(f"v_max_u32 v4, {PADB}, v2")
e(f"v_cndmask_b32 v5, 0, v4, {s(sVAL,2)}")
e(f"v_subrev_u32 v6, {SORT2}, v4")
scan(5, [f"v_readlane_b32 s{sMORE}, v2, 63", "v_cmp_lt_u32 vcc, v2, v4"] + clean[5:])
e(f"v_sub_u32 v6, v5, v6")
e(f"ds_write_b32 v1, v6 offset:{BASE2}")
def look(p):
    for k in range(3): e(f"ds_read_b32 v{LK+3*p+k}, v{XP+6*p+2*k} offset:{BASE2}")
five("bl", look)
e(f"v_readlane_b32 s3, v5, 63")
e(f"s_cmp_gt_u32 s3, {CAPB}")
e("s_cbranch_scc1 L_redo")
e(f"s_and_b64 vcc, vcc, {s(sVAL,2)}")
e("s_cbranch_scc1 L_pad0")
e.label("L_nopad")
e("s_add_u32 s96, s3, 127")
e("s_lshr_b32 s60, s96, 10")
e("s_bfe_u32 s61, s96, 0x30007")
e(f"s_mul_i32 s62, s60, s{sW}")
e(f"s_min_u32 s63, s61, s{sW}")
e("s_add_u32 s62, s62, s63")
e(f"s_cmp_lt_u32 s{sW}, s61")
e(f"s_addc_u32 s{sCNT}, s60, 0")
e("s_lshl_b32 s62, s62, 7")
e("v_cmp_ge_u32 vcc, s62, v5")
e(f"s_lshl_b32 s63, s{sCNT}, 7")
e("s_add_u32 s63, s63, s62")
e("v_cmp_gt_u32 s[60:61], s63, v5")
e("s_waitcnt lgkmcnt(0)")
def put(p):
    for k in range(3):
        e(f"s_mov_b64 exec, {s(mk(p,k),2)}")
        e(f"v_add_u32 v{LK+3*p+k}, v{LK+3*p+k}, v{KA+3*p+k}")
        e(f"ds_write_b64 v{LK+3*p+k}, {v(XP+6*p+2*k,2)}")
five("bw", put)
e("s_mov_b64 exec, -1")
e(f"s_bcnt1_i32_b64 s{sNFW}, vcc")
e(f"s_lshl_b32 s{sBASE}, s{sNFW}, 2")
e(f"s_or_b32 s{sSLOW}, s{sMULTI}, s{sMORE}")
e(f"s_cselect_b32 s{sNFW}, 252, s{sBASE}")
e(f"s_lshl_b32 s63, 1, s{sW}")
e(f"v_mov_b32 v7, s{sNFW}")
e("v_mov_b32 v8, s63")
e(f"s_lshl_b32 s63, s{sW}, 6")
e("s_add_u32 s3, s3, s63")
e(f"s_add_u32 s3, s3, {SORT2}")
e("v_lshl_add_u32 v9, v1, 1, s3")
e(f"v_mov_b32 v10, {(NB-1)*4}")
e("v_mov_b32 v11, 10000")
e("s_mov_b64 exec, 1")
e(f"ds_or_b32 v7, v8 offset:{LNK}")
e("s_mov_b64 exec, 0xff")
e("ds_write_b64 v9, v[10:11]")
e("s_mov_b64 exec, -1")
e(f"s_add_u32 s62, s62, {SORT2}")
e(f"v_lshl_add_u32 v{aRec}, v{L}, 3, s62")
e(f"v_add3_u32 v{aIdx}, s62, 4, v{vIdxL}")
PI = E[1] + 8
for n in range(DEP): e(f"v_mov_b32 v{PI+2*n+1}, v{IDX+1}")
for c in range(2): e(f"v_mfma_f32_32x32x8_bf16 {v(AC[c],16)}, {v(ZP,2)}, {v(ZP,2)}, 0")
e(f"s_bcnt1_i32_b64 s{sNLW}, s[60:61]")
e(f"s_min_u32 s{sNLW}, s{sNLW}, {NB-1}")
e(f"s_lshl_b32 s{sNLW}, s{sNLW}, 2")
e(f"s_sub_u32 s{sCNT}, s{sCNT}, {DEP+1}")
e("s_setprio 3")
e("s_waitcnt lgkmcnt(0)")
e("s_barrier")
stamp(9)
def gather(b, pair):
    return [f"buffer_load_dwordx4 {v(G[b&1],4)}, {v(pair,2)}, {s(srdBP,4)}, 0 idxen offen",
            f"buffer_load_dwordx4 {v(G[b&1]+4,4)}, {v(pair,2)}, {s(srdBP,4)}, 0 idxen offen offset:64"]
recread = lambda o: f"ds_read_b64 {v(REC,2)}, v{aRec} offset:{o}"
posaddr = f"v_mul_u32_u24_sdwa v{BT}, 6, v{REC+1} {SD} src0_sel:DWORD src1_sel:WORD_0"
posreads = [f"ds_read_u16_d16_hi v{PS+i}, v{BT} offset:{POS+2*i}" for i in range(3)] + \
           [f"ds_read2st64_b32 {v(PDV,2)}, v{REC} offset0:{PD//256} offset1:{PD//256+1}",
            f"ds_read_b32 v{PDV+2}, v{REC} offset:{PD+512}"]
build1 = [f"v_readlane_b32 s{sNF}, v{REC}, 0",
          f"v_readlane_b32 s{sNL}, v{REC}, 63",
          f"v_cmp_ne_u32 {s(sVAL,2)}, s{sC10K}, v{BT}",
          f"v_add_u32 v{BT+1}, v{REC}, v{REC}",
          f"s_and_b32 s60, s{sNF}, -8\ns_mul_i32 s{sNEG}, s60, -4\ns_lshr_b32 s60, s60, 1",
          f"v_lshl_add_u32 v{BT+2}, v{REC}, 2, s{sNEG}",
          f"v_add_u32 v{aAT}, s60, v{aATb}",
          f"v_lshlrev_b64 {v(REC+2,2)}, v{BT+2}, {s(sOHC,2)}",
          f"v_bitop3_b32 v{BT+1}, v{BT+1}, 56, v{aR2b} bitop3:0x6a"]
build2 = [f"v_sub_f32 v{PDV+2}, v{PDV+2}, v{PS+2}",
          f"v_sub_f32 v{PDV}, v{PDV}, v{PS}",
          f"v_sub_f32 v{PDV+1}, v{PDV+1}, v{PS+1}",
          f"v_cvt_pk_bf16_f32 v{R2V+1}, v{PDV+2}, 1.0",
          f"v_cvt_pk_bf16_f32 v{R2V}, v{PDV}, v{PDV+1}",
          f"v_lshlrev_b32 v{BT+2}, 16, v{R2V+1}",
          f"v_mul_f32 v{BT}, v{BT+2}, v{BT+2}",
          f"v_dot2_f32_bf16 v{BT}, v{R2V}, v{R2V}, v{BT}",
          None, None, None,
          f"v_cvt_pk_bf16_f32 v{REC}, v{BT}, v{BT}"]
build3 = [f"ds_write_b64 v{aR2}, {v(ZP,2)}",
          f"ds_write_b128 v{aR1w}, {v(REC,4)}",
          f"s_mov_b64 exec, {s(sVAL,2)}\nds_write_b64 v{BT+1}, {v(R2V,2)}\ns_mov_b64 exec, -1",
          f"ds_read2_b32 {v(WX+2,2)}, v{aAT} offset1:1"]
keepaddr = f"v_mov_b32 v{aR2}, v{BT+1}"
def opreads(n):
    return [f"ds_read_b128 {v(R1OP,4)}, v{aR1r} offset:{n*256}",
            f"ds_read_b64_tr_b16 {v(S[n],2)}, v{aS0} offset:{n*1024}",
            f"ds_read_b64_tr_b16 {v(S[n]+2,2)}, v{aS1} offset:{n*1024}"]
def stage1(n):
    t = T[n & 1]
    return [f"v_mfma_f32_32x32x16_bf16 {v(t,16)}, {v(R1OP,4)}, {v(WX,4)}, 0",
            f"v_mfma_f32_32x32x16_bf16 {v(t,16)}, {v(G[n&1],4)}, {v(I0,4)}, {v(t,16)}",
            f"v_mfma_f32_32x32x16_bf16 {v(t,16)}, {v(G[n&1]+4,4)}, {v(I1,4)}, {v(t,16)}"]
def stage2(n):
    return [f"v_mfma_f32_32x32x16_bf16 {v(AC[c],16)}, {v(M[c],4)}, {v(S[n],4)}, {v(AC[c],16)}" for c in range(2)]
def pkmul(q): return [f"v_pk_mul_f32 {v(E[q]+2*i,2)}, {v(E[q]+2*i,2)}, {v(T[q]+2*i,2)}" for i in range(8)]
def cvt(q): return [f"v_cvt_pk_bf16_f32 v{M[c]+a}, v{E[q]+4*a+c}, v{E[q]+4*a+2+c}" for a in range(4) for c in range(2)]
def flushchk(lbl):
    e(f"s_min_u32 s60, s{sNL}, s{sNLW}")
    e(f"s_sub_u32 s60, s60, s{sBASE}")
    e("s_cmp_ge_u32 s60, 32")
    e(f"s_cbranch_scc1 L_flush_{lbl}")
    e.label(f"L_flret_{lbl}")
def rowaddr():
    return [f"v_subrev_u32 v4, s{sBASE}, v{L}",
            "v_and_b32 v4, 28, v4",
            f"v_add_u32 v4, s{sBASE}, v4",
            f"v_cmp_eq_u32 vcc, s{sNFW}, v4",
            f"v_cmp_lt_u32 s[62:63], s{sNLW}, v4",
            f"s_lshl_b32 s61, s{sW}, 2",
            f"s_add_u32 s61, s61, {NB*4}",
            "v_mov_b32 v7, s61",
            "v_cndmask_b32 v4, v4, v7, vcc",
            f"v_mov_b32 v7, {OOB//64}",
            "v_cndmask_b32 v4, v4, v7, s[62:63]",
            f"v_mul_u32_u24 v4, {ACCS//4}, v4",
            f"v_add_u32 v4, {ACC}, v4",
            f"v_lshrrev_b32 v7, 5, v{L}",
            f"v_lshl_add_u32 v{vRowM}, v7, 4, v4",
            f"v_lshl_add_u32 v4, v7, 2, v4",
            f"v_and_b32 v7, 3, v{L}",
            f"v_lshl_add_u32 v{vRowP}, v7, 3, v4"]
def bfaddr():
    return [f"v_ffbl_b32 v5, v{vMask}",
            f"v_add_u32 v6, -1, v{vMask}",
            f"v_min_u32 v5, {OOB//256}, v5",
            f"v_and_b32 v{vMask}, v6, v{vMask}",
            f"v_mul_u32_u24 v5, {ACCS}, v5",
            f"v_add_u32 v{vFB}, v{vFO}, v5"]
def mmask():
    e("s_mov_b32 exec_lo, 0x88888888")
    e("s_mov_b32 exec_hi, 0x88888888")
def flush_slow():
    e("s_nop 7")
    e("v_mov_b32 v2, 0")
    for i in range(8):
        e(f"ds_read_b128 v[4:7], v{vWxa} offset:{WXT+16*i}")
        e("s_waitcnt lgkmcnt(0)")
        for r in range(4): e(f"v_fmac_f32 v2, v{AC[0]+4*i+r}, v{4+r}")
    e(f"ds_add_f32 v{vRowP}, v2 offset:256")
    mmask()
    for i in range(32): e(f"ds_add_f32 v{vRowM}, v{AC[0]+i} offset:{(i//4)*32+(i%4)*4}")
    e("s_mov_b64 exec, -1")

def step(sidx, first=False):
    q = sidx & 1; n1 = (sidx + 1) & 3
    R = OPT["ramp"]
    e("s_setprio 0")
    if sidx == 1: flushchk("mid")
    mem = gather(sidx + DEP, IDX) + [f"ds_read_u16 v{IDX}, v{aIdx} offset:{(sidx+DEP+1)*128}"]
    if sidx == 3: mem += build3
    mem += opreads(n1)
    if sidx == 3: mem += [recread(1024)]
    if sidx == 1: mem += posreads
    oth = {0: [posaddr], 1: build1, 2: build2, 3: [keepaddr, f"v_add_u32 v{aIdx}, 512, v{aIdx}", f"v_add_u32 v{aRec}, 512, v{aRec}"]}[sidx]
    for y in mem: e(y)
    oth = list(oth)
    for i in range(16):
        if i == R[0]: e("s_setprio 1")
        e(f"v_exp_f32 v{E[q]+i}, v{T[q]+i}")
        if i >= R[0] - 1 and oth:
            y = oth.pop(0)
            if y: e(y)
    assert not oth
    addone = f"{OPT.get('ao', 'v_mfma_f32_32x32x8_bf16')} {v(E[q],16)}, {v(ONE,2)}, {v(ONE,2)}, {v(E[q],16)}"
    e("s_setprio 2")
    if first:
        e("s_nop 0"); e(addone); e("s_nop 7")
    else:
        for x in pkmul(1 - q): e(x)
        e(addone)
        for x in cvt(1 - q): e(x)
    e(f"s_sub_u32 s{sCNT}, s{sCNT}, 1")
    e("s_waitcnt vmcnt(2) lgkmcnt(0)")
    mf = stage1(n1) + ([] if first else stage2((sidx - 1) & 3))
    for i in range(16):
        if i % 3 == 0 and i // 3 < len(mf):
            e(mf[i // 3])
            if i == 0: e("s_setprio 3")
        e(f"v_rcp_f32 v{E[q]+i}, v{E[q]+i}")
    e(f"s_cbranch_scc1 L_evt{sidx}")

if OPT.get("x"):
    step0 = step
    def step(sidx, first=False):
        st = len(e.lines); step0(sidx, first)
        X = OPT["x"]; out = []
        for l in e.lines[st:]:
            if "N" in X and "32x32x8" in l: continue
            if "2" in X and l.startswith("v_mfma") and (l.split()[1].startswith(f"v[{AC[0]}:") or l.split()[1].startswith(f"v[{AC[1]}:")): continue
            if "E" in X and l.startswith("v_mfma") and l.endswith(", 0"): continue
            if "E" in X and f"v[{I0}:" in l: l = l.rsplit(",", 1)[0] + ", 0"
            if "I" in X and l.startswith("v_mfma") and (f"v[{I0}:" in l or f"v[{I1}:" in l): continue
            if "J" in X and l.startswith("v_mfma") and (f"v[{I1}:" in l): continue
            if "S" in X and l.startswith("v_mfma") and f"v[{I1}:" in l: continue
            if "S" in X and l.startswith("v_mfma") and f"v[{I0}:" in l:
                t_ = l.split()[1]; g_ = int(l.split()[2][2:].split(":")[0])
                l = f"v_smfmac_f32_32x32x32_bf16 {t_} {v(I0,4)}, {v(g_,8)}, v8"
            if "Z" in X and l.startswith("v_mfma") and l.split()[1].startswith(f"v[{AC[1]}:"): continue
            if "Z" in X and l.startswith("v_mfma") and l.split()[1].startswith(f"v[{AC[0]}:"):
                l = f"v_smfmac_f32_32x32x32_bf16 {v(AC[0],16)}, {l.split()[3]} {v(M[0],8)}, v8"
            if "K" in X and l.startswith("v_mfma") and l.endswith(", 0"):
                l = f"v_mfma_f32_32x32x8_bf16 {l.split()[1]} {v(R1OP,2)}, {v(WX,2)}, 0"
            if "D" in X and l.startswith("buffer_load_dwordx4"):
                g_ = int(l.split()[1][2:].split(":")[0])
                l = "\n".join(f"buffer_load_dword v{g_+i}, v[10:11], s[{srdBP}:{srdBP+3}], 0 idxen offen offset:{(g_%8+i)*384}" for i in range(4))
            if "D" in X and l.startswith(f"ds_read_u16 v{IDX}"): l = l.replace(f"v{IDX}", "v10").replace(f"v{aIdx}", "v9") + f"\nds_read_b128 v[136:139], v{vWxa}\nds_read_b128 v[140:143], v{vWxa} offset:16"
            if "D" in X and l.startswith(f"v_add_u32 v{aIdx}"): l = "v_add_u32 v9, 512, v9"
            if "D" in X and "vmcnt(2)" in l: l = l.replace("vmcnt(2)", "vmcnt(8)")
            if "G" in X and l.startswith("buffer_load"): continue
            if "T" in X and l.startswith("ds_read_b64_tr"): continue
            if "P" in X and l.startswith("v_pk_mul"): continue
            if "C" in X and l.startswith("v_cvt_pk") and int(l.split()[1][1:-1]) < 200: continue
            if "R" in X and l.startswith("v_rcp"): l = "v_nop\nv_nop"
            if "X" in X and l.startswith("v_exp"): l = "v_nop\nv_nop"
            out += l.split("\n")
        e.lines[st:] = out

e(recread(0))
e(f"ds_read_u16 v{PI}, v{aIdx}")
e(f"ds_read_u16 v{PI+2}, v{aIdx} offset:128")
e(f"ds_read_u16 v{IDX}, v{aIdx} offset:{DEP*128}")
e("s_waitcnt lgkmcnt(2)")
e(posaddr)
for x in posreads: e(x)
for x in gather(0, PI): e(x)
for x in build1: e(x)
e("s_waitcnt lgkmcnt(0)")
g1 = gather(1, PI + 2) + ["s_nop 0"]
for x in build2: e(x if x else g1.pop(0))
for x in build3: e(x)
for x in opreads(0): e(x)
e(recread(512))
e(f"ds_read_b32 v{vMask}, v{vAItem} offset:{LNK}")
e(f"ds_write_b32 v1, v{ZP} offset:{CNT2}")
e(keepaddr)
e("s_waitcnt vmcnt(2) lgkmcnt(5)")
for x in stage1(0): e(x)
for x in rowaddr(): e(x)
e("s_waitcnt lgkmcnt(0)")
for x in bfaddr(): e(x)
if OPT.get("x"):
    e("v_mov_b32 v8, 0x44444444")
    e(f"v_sub_u32 v9, v{aIdx}, v{vIdxL}")
    e(f"v_and_b32 v10, 32, v{L}")
    e("v_add_u32 v9, v9, v10")
    e(f"v_and_b32 v11, 31, v{L}")
    e("v_lshlrev_b32 v11, 2, v11")
stamp(10)
step(0, first=True)
e("s_branch L_s1")
for sidx in range(4):
    e.label(f"L_s{sidx}")
    step(sidx)
e("s_branch L_s0")
for sidx in range(4):
    q = sidx & 1
    e.label(f"L_evt{sidx}")
    e(f"s_cmp_eq_u32 s{srdBP+2}, 0")
    e(f"s_mov_b32 s{srdBP+2}, 0")
    e(f"s_mov_b32 s{sCNT}, {DEP-1}")
    e(f"s_cbranch_scc0 L_s{(sidx+1)&3}")
    if sidx == 0: flushchk("dr")
    for i in range(4): e(f"ds_read_b128 {v(E[1-q]+4*i,4)}, v{vWxa} offset:{WXT+16*i}")
    for i in range(4): e(f"ds_read_b128 {v(T[1-q]+4*i,4)}, v{vWxa} offset:{WXT+64+16*i}")
    for x in pkmul(q) + cvt(q): e(x)
    e(f"s_cmp_lg_u32 s{sSLOW}, 0")
    e("s_nop 0")
    for x in stage2(sidx): e(x)
    e("s_cbranch_scc1 L_slow_final")
    if sidx < 2: e(f"s_branch L_final_flush{q}")
    else:
        e.label(f"L_final_flush{q}")
        stamp(11)
        e("s_waitcnt lgkmcnt(0)")
        e("s_nop 6")
        mmask()
        for i in range(8): e(f"ds_write_b128 v{vRowM}, {v(AC[0]+4*i,4)} offset:{i*32}")
        e("s_mov_b64 exec, -1")
        e(f"v_pk_mul_f32 v[4:5], {v(AC[0],2)}, {v(E[1-q],2)}")
        e(f"v_pk_mul_f32 v[6:7], {v(AC[1],2)}, {v(T[1-q],2)}")
        for i in range(1, 8):
            e(f"v_pk_fma_f32 v[4:5], {v(AC[0]+2*i,2)}, {v(E[1-q]+2*i,2)}, v[4:5]")
            e(f"v_pk_fma_f32 v[6:7], {v(AC[1]+2*i,2)}, {v(T[1-q]+2*i,2)}, v[6:7]")
        e("v_pk_add_f32 v[4:5], v[4:5], v[6:7]")
        e("v_add_f32 v4, v4, v5")
        e(f"ds_write_b32 v{vRowP}, v4 offset:256")
        if sidx == 2: e("s_branch L_b6")
e.label("L_b6")
MR = 16; MB = 32; Y = 40; YE = 48; HU = 56; MX = 64
e(f"s_cmp_lg_u32 s{sMORE}, 0")
e(f"v_cmp_ne_u32 vcc, 0, v{vMask}")
e("s_waitcnt lgkmcnt(0)")
e("s_barrier")
stamp(12)
e("s_cbranch_scc1 L_more")
e(f"s_cmp_ge_u32 s{sW}, 6")
e("s_cbranch_scc1 L_finpos")
for i in range(4):
    e(f"ds_read_b128 {v(MR+4*i,4)}, v{vFA} offset:{(i>>1)*128+(i&1)*16}")
    e(f"ds_read_b128 {v(MX+4*i,4)}, v{vFB} offset:{(i>>1)*128+(i&1)*16}")
for d in range(4):
    e(f"v_lshlrev_b32 v{HU+2*d}, 16, v{HRES+d}")
    e(f"v_and_b32 v{HU+2*d+1}, 0xffff0000, v{HRES+d}")
e(f"s_mov_b32 s60, {NLN2}")
e("s_cbranch_vccnz L_finbf_more")
e.label("L_finbf")
for i in range(4):
    e(f"s_waitcnt lgkmcnt({6-2*i})")
    for d in range(2): e(f"v_pk_add_f32 {v(MR+4*i+2*d,2)}, {v(MR+4*i+2*d,2)}, {v(MX+4*i+2*d,2)}")
    for d in range(2): e(f"v_cvt_pk_bf16_f32 v{MB+2*i+d}, v{MR+4*i+2*d}, v{MR+4*i+2*d+1}")
for t in range(2): e(f"v_mfma_f32_16x16x32_bf16 {v(Y+4*t,4)}, {v(WH2+8*t,4)}, {v(MB,4)}, {v(H1+4*t,4)}")
for t in range(2): e(f"v_mfma_f32_16x16x32_bf16 {v(Y+4*t,4)}, {v(WH2+8*t+4,4)}, {v(MB+4,4)}, {v(Y+4*t,4)}")
e("s_nop 6")
for i in range(8): e(f"v_exp_f32 v{YE+i}, v{Y+i}")
for i in range(4): e(f"v_pk_add_f32 {v(YE+2*i,2)}, {v(YE+2*i,2)}, 1.0 op_sel_hi:[1,0]")
for i in range(4): e(f"v_pk_mul_f32 {v(Y+2*i,2)}, {v(Y+2*i,2)}, s[60:61] op_sel_hi:[1,0]")
for i in range(8): e(f"v_rcp_f32 v{YE+i}, v{YE+i}")
for i in range(4): e(f"v_pk_fma_f32 {v(HU+2*i,2)}, {v(Y+2*i,2)}, {v(YE+2*i,2)}, {v(HU+2*i,2)}")
for d in range(4): e(f"v_cvt_pk_bf16_f32 v{Y+d}, v{HU+2*d}, v{HU+2*d+1}")
e(f"s_mov_b64 exec, {s(sOM,2)}")
e(f"global_store_dwordx4 v{vOA}, {v(Y,4)}, {s(sOUT,2)} sc1")
stamp(13, last=True)
e("s_endpgm")
e.label("L_finpos")
e(f"ds_read_b64 v[16:17], v{vFA}")
e.label("L_posbf")
e(f"ds_read_b64 v[18:19], v{vFB}")
e("s_waitcnt lgkmcnt(0)")
e("v_add_f32 v16, v16, v18")
e("v_add_f32 v17, v17, v19")
e("s_cbranch_vccnz L_posbf_more")
e("v_add_f32 v16, v16, v17")
e(f"v_add_f32 v{vPosOwn}, v{vPosOwn}, v16")
e(f"v_cvt_pk_bf16_f32 v2, v{vPosOwn}, v{vPosOwn}")
e(f"v_mov_b32 v7, s{sTAG}")
e(f"s_mov_b64 exec, {s(sOM,2)}")
e(f"global_store_short v{vOA}, v2, {s(sOUT,2)} sc1")
e("s_cmp_lg_u32 s2, 0")
e("s_cbranch_scc1 L_noep")
e("s_mov_b64 exec, 1")
e(f"global_store_dword v{ZP}, v7, {s(sWS,2)} sc1")
e.label("L_noep")
stamp(13, last=True)
e("s_endpgm")
for lbl in ("mid", "dr"):
    e.label(f"L_flush_{lbl}")
    flush_slow()
    e("s_waitcnt lgkmcnt(0)")
    for i in range(32): e(f"v_mov_b32 v{AC[0]+i}, 0")
    e(f"s_mov_b32 s{sBASE}, s{sNF}")
    e(f"s_mov_b32 s{sSLOW}, 1")
    for x in rowaddr(): e(x)
    e(f"s_branch L_flret_{lbl}")
e.label("L_slow_final")
flush_slow()
e("s_branch L_b6")
e.label("L_finbf_more")
e("s_waitcnt lgkmcnt(0)")
for i in range(16): e(f"v_add_f32 v{MR+i}, v{MR+i}, v{MX+i}")
for x in bfaddr(): e(x)
for i in range(4): e(f"ds_read_b128 {v(MX+4*i,4)}, v{vFB} offset:{(i>>1)*128+(i&1)*16}")
e(f"v_cmp_ne_u32 vcc, 0, v{vMask}")
e("s_waitcnt lgkmcnt(0)")
e("s_cbranch_vccnz L_finbf_more")
e("s_branch L_finbf")
e.label("L_posbf_more")
for x in bfaddr(): e(x)
e(f"v_cmp_ne_u32 vcc, 0, v{vMask}")
e("s_branch L_posbf")
e.label("L_pollout")
e(f"s_mov_b32 s{sBUD}, 0")
e("s_branch L_gotoff")
e.label("L_stale")
e(f"s_cmp_eq_u32 s{sBUD}, 0")
e("s_cbranch_scc1 L_gotrec")
e(f"s_sub_u32 s{sBUD}, s{sBUD}, 1")
e("s_branch L_fetch")
e.label("L_pad0")
e("v_mov_b32 v8, v1")
e("v_mov_b32 v9, 10000")
e("s_mov_b64 exec, vcc")
e.label("L_pad")
e("v_add_u32 v7, v6, v2")
e("v_add_u32 v2, 8, v2")
e("ds_write_b64 v7, v[8:9]")
e("v_cmp_lt_u32 vcc, v2, v4")
e("s_and_b64 exec, vcc, vcc")
e("s_cbranch_scc1 L_pad")
e("s_mov_b64 exec, -1")
e("s_branch L_nopad")
e.label("L_more")
e("s_waitcnt vmcnt(0)")
e("s_setprio 0")
e(f"s_mov_b32 s{srdBP+2}, 10000")
e(f"s_mov_b64 {s(sPF,2)}, 0")
e(f"s_mov_b32 s{sMULTI}, 1")
e(f"s_cmp_eq_u32 s{sWID}, {NARROW}")
e(f"s_cselect_b32 s60, {NARROW}, 0x100")
e("v_mov_b32 v4, s60")
for p in range(4):
    e(f"v_and_b32 v5, 0xfff0, v{SEG+p}")
    e(f"v_lshrrev_b32 v6, 16, v{SEG+p}")
    e(f"v_add_u32 v7, s{sWID}, v5")
    e("v_cmp_lt_u32 vcc, v7, v6")
    e("v_add_u32 v5, v4, v5")
    e("v_min_u32 v5, v5, v6")
    e(f"v_lshl_or_b32 v{SEG+p}, v6, 16, v5")
    e(f"v_mov_b32 v7, s{sWID}")
    e("v_cndmask_b32 v4, v4, v7, vcc")
e(f"s_movk_i32 s{sWID}, 0x80")
batchsetup()
e(f"v_mov_b32 v{vPF}, 0")
e("s_branch L_fetch")
e.label("L_narrow")
e(f"s_mov_b32 s{sANYB}, 0")
e("s_mov_b64 exec, vcc")
e(f"ds_write_b32 v{ZP}, v13 offset:{CNT2+252}")
e("s_mov_b64 exec, -1")
e("s_branch L_nob0")
e.label("L_redo")
e(f"s_cmp_eq_u32 s{sWID}, {NARROW}")
e("s_cbranch_scc1 L_end")
e("s_waitcnt vmcnt(0) lgkmcnt(0)")
e("s_barrier")
e(f"ds_write_b32 v1, v{ZP} offset:{CNT2}")
e(f"s_movk_i32 s{sWID}, {NARROW}")
batchsetup()
e(f"v_cmp_gt_u32 vcc, {NARROW}, v{vJ}")
e(f"v_mov_b32 v1, {OOB}")
e("s_waitcnt lgkmcnt(0)")
e(f"v_cndmask_b32 v{vJ}, v1, v{vJ}, vcc")
e("s_barrier")
e("s_branch L_fetch")
e.label("L_end")
e("s_endpgm")

probs = check_cfg(e.lines)
for p in probs: print("HAZARD", p, file=sys.stderr)

ref = open("cdna_kernels/" + KN + ".s.ref").read().split("\n")
hdr = []
for l in ref:
    if l.startswith("; Override launch"): break
    hdr.append(l)
out = "\n".join(hdr) + f"""
; One persistent launch: 250 workgroups (one per CU) bin the edges by destination bucket, hand the bins
; over through d_ws (tagged with a per-launch epoch), then each workgroup updates its 40 nodes.
; @launch grid=({NWG},1,1) block=(512,1,1) lds={LDS_SIZE}
.amdgcn_target "amdgcn-amd-amdhsa--gfx950"
.text
.globl {KN}_kernel
.p2align 8
.type {KN}_kernel,@function
{KN}_kernel:
{e.text()}.section .rodata,"a"
.p2align 6
.amdhsa_kernel {KN}_kernel
  .amdhsa_next_free_vgpr 256
  .amdhsa_next_free_sgpr 102
  .amdhsa_accum_offset 256
  .amdhsa_group_segment_fixed_size 0
  .amdhsa_kernarg_size 88
  .amdhsa_user_sgpr_count 2
  .amdhsa_user_sgpr_kernarg_segment_ptr 1
  .amdhsa_system_sgpr_workgroup_id_x 1
  .amdhsa_float_denorm_mode_32 3
.end_amdhsa_kernel
"""
open(sys.argv[1], "w").write(out)
print("wrote", sys.argv[1], len(e.lines), "lines;", len(probs), "hazards; LDS end", LDS_END, file=sys.stderr)
```

```python
import sys, struct
from asmlib import Emit, v, s, check_cfg

KN = "standalone__cheap_equivariant_egnn__graph"
OPT = dict(stamps=False, ramp=(3, 16, 34), bpf=1, pollat=2, lcat="fetch", posat=("b2",3,1), zs=(2,6), wdat=-1, p2at="win", pall=0, stag=True)
for a in sys.argv[2:]:
    k, _, val = a.partition("=")
    try: OPT[k] = eval(val) if val else True
    except Exception: OPT[k] = val

def fbits(x): return struct.unpack("<I", struct.pack("<f", x))[0]
LOG2E = 1.4426950408889634; LN2 = 0.6931471805599453
NL2E = hex(fbits(-LOG2E)); NLN2 = hex(fbits(-LN2))

NWG = 250; CH = 2560; NB = 40; DEP = 2
CHB = 13696
CNT1 = 0x0; OFF1 = 0x400; CNT2 = 0x800; LNK = 0x900; BASE2 = 0xA00; PD = 0xB00; WXT = 0xE00
STB = 0x1000; R2 = 0x2000; ACC = R2 + 32768; ACCS = 304
BF = ACC + NB * ACCS; AT = BF + 8 * ACCS; ATS = 104; WL = AT + 64 * ATS; WXL = WL + 256
POS = WL + 384; STG = R2; SORT2 = POS + 61440; CAPB = 3888 * 8; R1 = SORT2 + CAPB + 512; LDS_END = R1 + 8192
PADB = 32 * 8; NARROW = 48
assert NWG * 9 * 8 + NB * PADB <= CAPB and POS + 4 < 65536
WE = SORT2; WH = WE + 16384; HB = WH + 16384
OOB = 0x100000
LDS_SIZE = 163840
assert LDS_END <= LDS_SIZE and HB + 6144 <= LDS_END and R2 % 64 == 0 and WE % 128 == 0
WS_OFF = 0x10000; WS_BP = 0x80000; WS_REC = 0x200000; WS_STAMP = 0x1000000
TAGC = 0x9E3779B1; M3 = 0xFF030303
sH, sPOS, sE, sSRC, sDST, sWE, sWX, sWH, sOUT, sDBG, sWS = 4, 6, 8, 10, 12, 14, 16, 18, 20, 22, 24
sW, sB = 26, 27
srdBP, srdPOS, srdH = 28, 32, 36
sTAG, sMULTI, sBUD, sWID, sONCE, sN0, sNG, sCHF = 40, 41, 42, 43, 44, 45, 46, 47
sOHC, sNFW, sNLW, sCNT, sBASE, sNF, sNL, sNEG, sMORE, sVAL = 48, 50, 51, 52, 53, 54, 55, 56, 57, 58
sT = 36
sOM = 4; sPF = 6; sRB = 8; sSLOW = 16; sANYB = 17; sC10K = 18
sMK = 64
T = [16, 32]; E = [48, 64]; AC = [80, 96]; M = [112, 116]; G = [120, 128]; S = [152, 156, 160, 164]
R1OP = 168; WX = 172; I0 = 176; I1 = 180; ONE = 184; IDX = 186
aIdx, aRec, aR1r, aS0, aS1, aR1w, aR2b, aR2, aATb, aAT = 188, 189, 190, 191, 192, 193, 194, 195, 196, 197
vRowM, vRowP = 198, 199
REC = 200; R2V = 204; PS = 206; vSrc = 208; vFO = 209; PDV = 210; BT = 213; ZP = 216; vIdxL = 218; vFA = 219
SEG = 220; vMask = 224; vWxa = 225; H1 = 226; vPosOwn = 230; HRES = 234; WH2 = 238; vLane = 254; vAItem = 255
vOA = 12; vFB = 3
L = vLane
SD = "dst_sel:DWORD dst_unused:UNUSED_PAD"

e = Emit()
def stamp(i, last=False, wait=False):
    if OPT.get("diag") is not None:
        a_, b_, neg = OPT["diag"]
        if i == 0: e("s_memrealtime s[98:99]")
        tm = "s_memtime" if OPT.get("dcyc") else "s_memrealtime"
        if i == a_: e(tm + " s[100:101]")
        if i == b_: e(tm + " s[22:23]")
        if last:
            stamp.n = getattr(stamp, "n", 0) + 1
            if b_ == 99: e("s_waitcnt vmcnt(0)\ns_memrealtime s[22:23]")
            e("s_waitcnt lgkmcnt(0)\ns_sub_u32 s101, s22, s100")
            if OPT.get("dcyc"): e("s_lshr_b32 s101, s101, 4")
            if OPT.get("dwg") is not None: e(f"s_cmp_eq_u32 s2, {OPT['dwg']}\ns_cselect_b32 s101, s101, 0")
            if neg: e(f"s_sub_u32 s101, {neg}, s101\ns_max_i32 s101, s101, 0")
            e("s_min_u32 s101, s101, 5000\ns_lshl_b32 s101, s101, 3\ns_add_u32 s101, s101, 3000")
            e.label(f"L_spin{stamp.n}")
            e("s_memrealtime s[22:23]\ns_waitcnt lgkmcnt(0)\ns_sub_u32 s22, s22, s98\ns_cmp_lt_u32 s22, s101")
            e(f"s_cbranch_scc1 L_spin{stamp.n}")
        return
    if not OPT["stamps"]: return
    if wait: e("s_waitcnt lgkmcnt(0)")
    if i > 0:
        e("s_mov_b32 m0, s101\nv_writelane_b32 v15, s98, m0\nv_writelane_b32 v14, s22, m0")
    e("s_memrealtime s[98:99]")
    if i > 0: e("s_memtime s[22:23]")
    e(f"s_mov_b32 s101, {i}")
    if i in (6, 7, 9): e(f"v_writelane_b32 v15, s{sBUD}, {16+i}")
    if i == 10: e(f"s_add_u32 s100, s{sCNT}, {DEP-4}\nv_writelane_b32 v15, s100, 26")
    if last:
        e("s_mov_b64 exec, -1\ns_waitcnt lgkmcnt(0)")
        e(f"v_writelane_b32 v15, s98, {i}\nv_writelane_b32 v14, s22, {i}")
        e(f"s_lshl_b32 s100, s2, 3\ns_add_u32 s100, s100, s{sW}\ns_lshl_b32 s100, s100, 7\ns_add_u32 s100, s100, {WS_STAMP}")
        e(f"v_lshl_add_u32 v13, v{L}, 2, s100\ns_mov_b32 exec_hi, 0")
        e(f"global_store_dword v13, v15, {s(sWS,2)}\nv_add_u32 v13, 0x100000, v13\nglobal_store_dword v13, v14, {s(sWS,2)}")

def fine(i, g=1):
    if OPT.get("diag") is not None: stamp(10 + 10*g + i)
    if OPT.get("fine") == g: e(f"s_memtime s[{72+2*i}:{73+2*i}]")
def finedump(n, g=1):
    if OPT.get("fine") == g:
        for i in range(n): e(f"s_nop 0\nv_writelane_b32 v14, s{72+2*i}, {16+i}")
def scan(r, fill=()):
    fill = list(fill)
    for m in ("row_shr:1 row_mask:0xf bank_mask:0xf bound_ctrl:1", "row_shr:2 row_mask:0xf bank_mask:0xf bound_ctrl:1",
              "row_shr:4 row_mask:0xf bank_mask:0xf bound_ctrl:1", "row_shr:8 row_mask:0xf bank_mask:0xf bound_ctrl:1",
              "row_bcast:15 row_mask:0xa bank_mask:0xf", "row_bcast:31 row_mask:0xc bank_mask:0xf"):
        if len(fill) >= 2:
            e(fill.pop(0)); e(fill.pop(0))
        else: e("s_nop 1")
        e(f"v_add_u32_dpp v{r}, v{r}, v{r} {m}")
    assert not fill

DSTR = 16; SRCR = 24; ER = 32; XB = 36; QQ = 42; B4 = 48; RK = 56
WA0 = 64; WA1 = 65; WA2 = 66; HA = 67; CA0 = 68; PBA = 69; TCH = 70; vTG = 71; HF = 72
WT = 80; DT = 112; W1T = 96; aWH = 144; aWT = 148; PB = 152; ZQ = 156
stamp(0)
e(f"s_cmp_ge_u32 s2, {NWG}")
e("s_cbranch_scc1 L_end")
e("s_load_dwordx16 s[4:19], s[0:1], 0")
e("s_load_dwordx4 s[20:23], s[0:1], 64")
e("s_load_dwordx2 s[24:25], s[0:1], 80")
e("s_getpc_b64 s[62:63]")
e.label("L_pc")
e("v_lshlrev_b32 v5, 5, v0")
e("v_min_u32 v5, L_end-L_pc, v5")
e("s_mov_b32 exec_lo, 0x11111111")
e("s_mov_b32 exec_hi, 0x11111111")
e(f"global_load_dword v{TCH}, v5, s[62:63]")
e("s_mov_b64 exec, -1")
e(f"s_mul_i32 s3, s2, {CH*4}")
e("v_lshl_add_u32 v8, v0, 4, s3")
e(f"s_add_u32 s60, s3, 8192")
e("v_lshl_add_u32 v9, v0, 2, s60")
e("s_lshr_b32 s3, s3, 1")
e("v_lshl_add_u32 v10, v0, 3, s3")
e("s_add_u32 s60, s3, 4096")
e("v_lshl_add_u32 v11, v0, 1, s60")
e("v_lshrrev_b32 v5, 6, v0")
e(f"v_and_b32 v{L}, 63, v0")
e(f"v_readfirstlane_b32 s{sW}, v5")
e(f"v_mov_b32 v{ZP}, 0")
e(f"v_mov_b32 v{ZP+1}, 0")
e("v_lshlrev_b32 v12, 4, v0")
e("v_lshlrev_b32 v5, 3, v0")
e(f"ds_write_b64 v5, {v(ZP,2)}")
e("s_and_b32 s60, s2, 7")
e(f"s_mul_i32 s{sB}, s60, 31")
e("s_min_u32 s60, s60, 2")
e(f"s_add_u32 s{sB}, s{sB}, s60")
e("s_lshr_b32 s96, s2, 3")
e(f"s_add_u32 s{sB}, s{sB}, s96")
e(f"s_mul_i32 s{sN0}, s{sB}, {NB}")
e(f"v_and_b32 v5, 16, v{L}")
e("v_and_b32 v6, 64, v0")
e("v_lshl_or_b32 v5, v5, 1, v6")
e(f"v_xor_b32 v{WA0}, v5, v12")
e(f"v_add_u32 v{WA1}, 8192, v{WA0}")
e(f"v_lshlrev_b32 v5, 1, v{L}")
e(f"s_lshl_b32 s60, s{sN0}, 7")
e("v_and_b32 v5, 0x70, v5")
e(f"v_xad_u32 v{HA}, v5, v12, s60")
e(f"s_lshl_b32 s60, s{sW}, 10")
e(f"s_add_u32 m0, s60, {WE+8192}")
e("s_waitcnt lgkmcnt(0)")
e(f"global_load_dwordx4 {v(DSTR,4)}, v8, {s(sDST,2)}")
e(f"global_load_dword v{DSTR+4}, v9, {s(sDST,2)}")
if OPT["stag"]: e(f"s_load_dword s{sTAG}, {s(sWS,2)}, 0")
e(f"s_mov_b32 s{srdH}, s{sH}")
e(f"s_and_b32 s{srdH+1}, s{sH+1}, 0xffff")
e(f"s_mov_b32 s{srdH+2}, 1280000")
e(f"s_mov_b32 s{srdH+3}, 0x20000")
e(f"s_cmp_ge_u32 s{sW}, 6")
e(f"global_load_lds_dwordx4 v{WA1}, {s(sWE,2)}")
e("s_cbranch_scc1 L_d67")
e(f"s_add_u32 m0, s60, {HB}")
e("s_nop 0")
e(f"buffer_load_dwordx4 v{HA}, {s(srdH,4)}, 0 offen lds")
e("s_branch L_ddone")
e.label("L_d67")
e(f"s_add_u32 s62, s{sWE}, 16384")
e(f"s_addc_u32 s63, s{sWE+1}, 0")
e(f"v_lshlrev_b32 v5, 4, v{L}")
e(f"s_cmp_eq_u32 s{sW}, 7")
e(f"s_cselect_b64 s[62:63], {s(sWX,2)}, s[62:63]")
e(f"s_cselect_b32 s61, 256, 0")
e(f"s_cselect_b32 s97, 8, 16")
e(f"s_add_u32 m0, s61, {WL}")
e("s_bfm_b64 exec, s97, 0")
e(f"global_load_lds_dwordx4 v5, s[62:63]")
e("s_mov_b64 exec, -1")
e.label("L_ddone")
e("s_barrier")
e(f"global_load_dwordx4 {v(SRCR,4)}, v8, {s(sSRC,2)}")
e(f"global_load_dword v{SRCR+4}, v9, {s(sSRC,2)}")
e(f"global_load_dwordx2 {v(ER,2)}, v10, {s(sE,2)}")
e(f"global_load_short_d16_hi v{ER+2}, v11, {s(sE,2)}")
TV = 0 if OPT["stag"] else 1
if TV: e(f"global_load_dword v{vTG}, v{ZP}, {s(sWS,2)}")
stamp(1)
for i in range(4): e(f"v_mov_b32 v{ZQ+i}, 0")
assert R2 + 6*8192 >= AT and R2 + 6*8192 <= WL
e(f"ds_write_b128 v{ZP}, {v(ZQ,4)} offset:{STG+853*16}")
def zero(lo, hi):
    e("v_lshlrev_b32 v5, 4, v0")
    for i in range(lo, hi):
        if i == 5:
            e(f"v_cmp_gt_u32 vcc, {(AT - R2 - 5*8192)//16}, v0")
            e("s_mov_b64 exec, vcc")
        e(f"ds_write_b128 v5, {v(ZQ,4)} offset:{R2+i*8192}")
    if hi == 6: e("s_mov_b64 exec, -1")
Z0, Z1 = OPT["zs"]
if Z0 > 2: zero(2, Z0)
e(f"s_mov_b32 s{srdPOS}, s{sPOS}")
e(f"s_and_b32 s{srdPOS+1}, s{sPOS+1}, 0xffff")
e(f"s_mov_b32 s{srdPOS+2}, 60000")
e(f"s_mov_b32 s{srdPOS+3}, 0x20000")
PT = 1 if OPT.get("ptouch") else 0
if PT:
    e("s_lshl_b32 s61, s96, 11")
    e("v_lshl_add_u32 v5, v0, 2, s61")
    e("s_mov_b32 exec_lo, 1")
    e("s_mov_b32 exec_hi, 1")
    e(f"buffer_load_dword v{TCH}, v5, {s(srdPOS,4)}, 0 offen")
    e("s_mov_b64 exec, -1")
e(f"s_mul_i32 s{sCHF}, s{sW}, 86")
e(f"s_lshr_b32 s{sCHF}, s{sCHF}, 8")
e(f"s_mul_i32 s61, s{sCHF}, 3")
e(f"s_sub_u32 s{sNG}, s{sW}, s61")
e(f"s_and_b32 s61, s{sW}, 3")
e("s_lshl_b32 s61, s61, 1")
e(f"s_lshr_b32 s62, s{sW}, 2")
e("s_add_u32 s61, s61, s62")
e("s_lshl_b32 s61, s61, 8")
e("s_add_u32 s61, s61, 8192")
e(f"v_and_b32 v5, 0x70, v{WA0}")
e(f"v_bfe_u32 v6, v{L}, 3, 2")
e("v_lshl_add_u32 v5, v6, 11, v5")
e(f"v_lshrrev_b32 v6, 5, v{L}")
e("v_lshl_add_u32 v5, v6, 7, v5")
e(f"v_add_u32 v{WA2}, s61, v5")
e(f"v_and_b32 v1, 15, v{L}")
e(f"v_lshrrev_b32 v3, 4, v{L}")
e(f"s_lshl_b32 s61, s{sNG}, 11")
e(f"s_add_u32 s61, s61, {HB}")
e(f"v_and_b32 v2, 7, v{L}")
e("v_xor_b32 v2, v2, v3")
e("v_lshl_add_u32 v4, v1, 7, s61")
e(f"v_lshl_add_u32 v{aWH+1}, v2, 4, v4")
e(f"v_xor_b32 v{aWH+2}, 64, v{aWH+1}")
e(f"v_bfe_u32 v6, v{L}, 2, 2")
e(f"v_and_b32 v2, 3, v{L}")
e("v_lshl_add_u32 v4, v3, 3, v6")
e(f"v_lshlrev_b32 v7, 2, v{L}")
e("v_and_b32 v7, 0x60, v7")
e(f"s_xor_b32 s61, s{sCHF}, 1")
e("s_lshl_b32 s61, s61, 13")
e(f"s_add_u32 s61, s61, {WE}")
e("v_lshl_add_u32 v5, v4, 7, s61")
e("v_lshl_add_u32 v5, v2, 3, v5")
e(f"v_xor_b32 v{aWT}, v7, v5")
for t in range(1, 4): e(f"v_xor_b32 v{aWT+t}, {32*t}, v{aWT}")
e(f"s_lshl_b32 s61, s{sCHF}, 6")
e(f"s_add_u32 s61, s61, {WH}")
e("v_lshl_add_u32 v6, v2, 4, s61")
e("v_lshl_add_u32 v5, v4, 7, v6")
e(f"v_xor_b32 v{aWH}, v7, v5")
e(f"s_lshl_b32 s61, s{sNG}, 4")
e(f"s_add_u32 s61, s61, s{sN0}")
e("s_lshl_b32 s61, s61, 7")
e(f"s_add_u32 s61, s61, {WS_BP}")
e("v_lshl_add_u32 v2, v3, 9, s61")
e(f"v_lshl_add_u32 v{aWH+3}, v1, 3, v2")
e(f"v_lshrrev_b32 v1, 5, v{L}")
e(f"v_and_b32 v7, 3, v{L}")
e(f"v_bfe_u32 v6, v{L}, 3, 2")
e("v_lshlrev_b32 v6, 2, v6")
e("v_lshl_add_u32 v7, v7, 4, v6")
e(f"v_bfe_u32 v6, v{L}, 2, 1")
e("v_add_u32 v7, v7, v6")
e("v_lshl_add_u32 v7, v1, 1, v7")
e(f"v_lshlrev_b32 v{CA0}, 1, v7")
e(f"v_mul_u32_u24 v{aATb}, {ATS}, v7")
e(f"v_add_u32 v{aATb}, {AT}, v{aATb}")

def laneconsts():
    e(f"s_add_u32 s{srdBP}, s{sWS}, {WS_BP}")
    e(f"s_addc_u32 s{srdBP+1}, s{sWS+1}, 0")
    e(f"s_and_b32 s{srdBP+1}, s{srdBP+1}, 0xffff")
    e(f"s_or_b32 s{srdBP+1}, s{srdBP+1}, 0x800000")
    e(f"s_mov_b32 s{srdBP+2}, 10000")
    e(f"s_mov_b32 s{srdBP+3}, 0x20000")
    e(f"s_mov_b32 s{sMULTI}, 0")
    e(f"s_mov_b32 s{sOHC}, 0x3f80")
    e(f"s_mov_b32 s{sOHC+1}, 0")
    e(f"s_movk_i32 s{sWID}, 0x80")
    e(f"s_mov_b32 s{sONCE}, 0")
def laneconsts2():
    e(f"v_lshrrev_b32 v1, 5, v{L}")
    e(f"v_and_b32 v2, 1, v{L}")
    e(f"v_lshlrev_b32 v{vWxa}, 7, v1")
    e(f"v_lshlrev_b32 v3, 5, v1")
    e(f"v_lshl_add_u32 v{IDX+1}, v2, 4, v3")
    e(f"v_bfe_u32 v4, v{L}, 3, 2")
    e(f"v_bfe_u32 v5, v{L}, 1, 1")
    e("v_lshl_add_u32 v4, v4, 1, v5")
    e(f"v_bfe_u32 v5, v{L}, 2, 1")
    e("v_lshl_add_u32 v4, v5, 3, v4")
    e(f"v_lshlrev_b32 v{vIdxL}, 3, v4")
    e(f"s_lshl_b32 s61, s{sW}, 10")
    e(f"s_add_u32 s61, s61, {R1}")
    e(f"v_lshl_add_u32 v{aR1r}, v4, 4, s61")
    e("v_xor_b32 v5, v1, v2")
    e(f"v_lshl_add_u32 v{aR1r}, v5, 20, v{aR1r}")
    e(f"v_lshl_add_u32 v{aR1w}, v{L}, 4, s61")
    e(f"s_lshl_b32 s61, s{sW}, 12")
    e(f"s_add_u32 s61, s61, {R2}")
    e(f"v_bfe_u32 v3, v{L}, 1, 3")
    e(f"v_lshl_add_u32 v4, v{L}, 6, s61")
    e(f"v_lshl_add_u32 v{aR2b}, v3, 3, v4")
    e(f"v_mov_b32 v{aR2}, v{aR2b}")
    e(f"v_bfe_u32 v3, v{L}, 2, 2")
    e(f"v_and_b32 v4, 3, v{L}")
    e(f"v_bfe_u32 v5, v{L}, 4, 1")
    e("v_lshl_add_u32 v5, v5, 2, v4")
    e("v_lshrrev_b32 v7, 1, v3")
    e("v_lshl_add_u32 v7, v1, 2, v7")
    e("v_xor_b32 v5, v5, v7")
    e("v_lshl_add_u32 v7, v1, 3, v3")
    e("v_lshl_add_u32 v7, v7, 6, s61")
    e(f"v_lshl_add_u32 v{aS0}, v5, 3, v7")
    e(f"v_xor_b32 v{aS1}, 16, v{aS0}")
    e(f"v_add_u32 v{aS1}, 256, v{aS1}")
    e(f"v_and_b32 v4, 31, v{L}")
    e("v_lshlrev_b32 v7, 3, v1")
    e("v_sub_u32 v7, v4, v7")
    e("v_lshlrev_b32 v4, 4, v2")
    e(f"v_lshlrev_b32 v4, v4, s{sOHC}")
    e("v_ashrrev_i32 v7, 1, v7")
    for u, I in ((0, I0), (1, I1)):
        for d in range(4): e(f"v_cmp_eq_u32 {s(sMK+2*d,2)}, {8*u+d}, v7")
        for d in range(4): e(f"v_cndmask_b32 v{I+d}, 0, v4, {s(sMK+2*d,2)}")
    e("v_xor_b32 v7, 1, v1")
    e(f"v_mul_u32_u24 v{ONE}, {OPT.get('aov', 0x3f80)}, v7")
    if OPT.get("aoall"): e(f"v_mov_b32 v{ONE}, 0x3f80")
    e(f"v_mov_b32 v{ONE+1}, 0")
if OPT["lcat"] == "start": laneconsts(); laneconsts2()
e("v_mov_b32 v13, 1")
e("s_mov_b32 s61, 52429")
e("s_movk_i32 s62, -40")
e(f"v_lshlrev_b32 v1, 4, v{L}")
e(f"s_lshl_b32 s63, s2, 10")
e(f"s_add_u32 s63, s63, {WS_OFF}")
e(f"v_add_u32 v{PBA}, s63, v1")
def wdma():
    for base, a, ptr in ((WE, WA0, sWE), (WH, WA0, sWH), (WH+8192, WA2, sWH)):
        e(f"s_add_u32 m0, s60, {base}")
        e("s_nop 0")
        e(f"global_load_lds_dwordx4 v{a}, {s(ptr,2)}")
W0 = 3 if OPT["wdat"] == -1 else 0
W1 = 3 if OPT["wdat"] <= 0 else 0
if OPT["wdat"] == -1: wdma()
e(f"s_waitcnt vmcnt({6+TV+W0+PT})")
stamp(14)
for i in range(5): e(f"v_mul_u32_u24 v{B4+i}, s61, v{DSTR+i}")
for i in range(5): e(f"v_lshrrev_b32 v{B4+i}, 21, v{B4+i}")
for i in range(5):
    e(f"v_lshlrev_b32 v{B4+i}, 2, v{B4+i}")
    e(f"ds_add_rtn_u32 v{RK+i}, v{B4+i}, v13 offset:{CNT1}")
if OPT["wdat"] == 0: wdma()
e(f"s_cmp_ge_u32 s{sW}, 3")
spare = f"ds_read_b32 v{vTG}, v{ZP}"
if not TV: e(spare)
e(f"s_waitcnt vmcnt({4+TV+W1+PT}) lgkmcnt({1-TV})")
e("s_barrier")
stamp(2)
def nodeprod_reads():
    e(f"ds_read_b128 {v(HF,4)}, v{aWH+1}")
    e(f"ds_read_b128 {v(HF+4,4)}, v{aWH+2}")
    for t in range(4):
        for ks in range(2):
            for rd in range(2):
                e(f"ds_read_b64_tr_b16 {v(WT+8*t+4*ks+2*rd,2)}, v{aWT+t} offset:{ks*4096+rd*512}")
def nodeprod(extra=0):
    e(f"s_mov_b32 s96, {NL2E}")
    for t in range(4):
        e(f"s_waitcnt lgkmcnt({12-4*t+extra})")
        e(f"v_mfma_f32_16x16x32_bf16 {v(DT+4*t,4)}, {v(HF,4)}, {v(WT+8*t,4)}, 0")
        e(f"v_mfma_f32_16x16x32_bf16 {v(DT+4*t,4)}, {v(HF+4,4)}, {v(WT+8*t+4,4)}, {v(DT+4*t,4)}")
def nodescale():
    for i in range(8): e(f"v_pk_mul_f32 {v(DT+2*i,2)}, {v(DT+2*i,2)}, s[96:97] op_sel_hi:[1,0]")
e("s_cbranch_scc1 L_nobp")
nodeprod_reads()
e(f"ds_read_b128 v[4:7], v1 offset:{CNT1}")
if not TV: e(spare)
if OPT["wdat"] == 1: wdma()
nodeprod(2-TV)
e(f"s_cmp_eq_u32 s{sNG}, 2")
e("s_cselect_b32 s63, 0, -1")
nodescale()
for r in range(4):
    e(f"v_cvt_pk_bf16_f32 v{WT+2*r}, v{DT+r}, v{DT+4+r}")
    e(f"v_cvt_pk_bf16_f32 v{WT+2*r+1}, v{DT+8+r}, v{DT+12+r}")
e("s_mov_b32 exec_hi, s63")
for r in range(4): e(f"global_store_dwordx2 v{aWH+3}, {v(WT+2*r,2)}, {s(sWS,2)} offset:{r*128} sc1")
e("s_mov_b64 exec, -1")
e("s_branch L_bpdone")
e.label("L_nobp")
e(f"ds_read_b128 v[4:7], v1 offset:{CNT1}")
if not TV: e(spare)
if OPT.get("prew"):
    e(f"s_cmp_lg_u32 s{sW}, 7")
    e("s_cbranch_scc1 L_bpdone")
    e(f"global_store_dwordx4 v{PBA}, {v(ZQ,4)}, {s(sWS,2)} sc1")
if OPT["wdat"] == 1: wdma()
e.label("L_bpdone")
fine(0)
e(f"s_waitcnt lgkmcnt({1-TV})")
fine(1)
e("v_add_u32 v5, v4, v5")
e("v_add_u32 v6, v5, v6")
e("v_add_u32 v7, v6, v7")
e("v_mov_b32 v3, v7")
scan(3, [f"v_lshlrev_b32 v{XB+i}, 2, v{DSTR+i}" for i in range(5)] +
        [f"v_mad_i32_i24 v{XB+i}, v{B4+i}, s62, v{XB+i}" for i in range(5)] +
        ["s_mov_b32 s63, 0xffff0000", "s_movk_i32 s61, 21846"])
e("v_sub_u32 v8, v3, v7")
e("v_add_u32 v9, v8, v4")
e("v_add_u32 v10, v8, v5")
e("v_add_u32 v11, v8, v6")
e(f"ds_write_b128 v1, v[8:11] offset:{OFF1}")
for i in range(5): e(f"ds_read_b32 v{B4+i}, v{B4+i} offset:{OFF1}")
fine(2)
PN = OPT["pall"]
if PN:
    e(f"s_mul_i32 s97, s{sW}, {PN*1024}")
    e(f"s_add_u32 m0, s97, {POS}")
e(f"s_cmp_ge_u32 s{sW}, 3")
for i in range(PN): e(f"buffer_load_dwordx4 v1, {s(srdPOS,4)}, s97 offen offset:{i*1024} lds")
e(f"s_waitcnt vmcnt({7+TV+PN+PT})")
e("s_cbranch_scc0 L_srcin")
e(f"s_waitcnt vmcnt({3+TV+PN+PT})")
e.label("L_srcin")
fine(3)
e(f"v_lshl_or_b32 v{SRCR}, v{ER}, 16, v{SRCR}")
e(f"v_and_or_b32 v{SRCR+1}, v{ER}, s63, v{SRCR+1}")
e(f"v_lshl_or_b32 v{SRCR+2}, v{ER+1}, 16, v{SRCR+2}")
e(f"v_and_or_b32 v{SRCR+3}, v{ER+1}, s63, v{SRCR+3}")
e(f"v_or_b32 v{SRCR+4}, v{ER+2}, v{SRCR+4}")
for i in range(5):
    e(f"s_waitcnt lgkmcnt({4+i})")
    e(f"v_add_u32 v{B4+i}, v{B4+i}, v{RK+i}")
    e(f"v_mul_u32_u24 v{QQ+i}, s61, v{B4+i}")
    e(f"v_add_u32_sdwa v{QQ+i}, v{B4+i}, v{QQ+i} {SD} src0_sel:DWORD src1_sel:WORD_1")
    e(f"v_lshlrev_b32 v{RK+i}, 2, v{QQ+i}")
    e(f"ds_write_b8 v{QQ+i}, v{XB+i} offset:{STB}")
    e(f"ds_write_b32 v{RK+i}, v{SRCR+i} offset:{STG}")
fine(4)
e(f"s_cmp_lg_u32 s{sW}, 7")
e("s_cbranch_scc1 L_nopb")
for r in (8, 9, 10, 11, 3):
    e(f"v_mul_u32_u24 v2, s61, v{r}")
    e("v_lshrrev_b32 v2, 16, v2")
    e(f"v_add_lshl_u32 v{r}, v{r}, v2, 2")
e(f"v_lshl_or_b32 v{PB}, v9, 16, v8")
e(f"v_lshl_or_b32 v{PB+1}, v11, 16, v10")
e(f"v_mov_b32 v{PB+2}, v3")
e.label("L_nopb")
e(f"s_mul_i32 s60, s2, {CHB}")
e(f"s_lshl_b32 s97, s{sW}, 12")
e("s_add_u32 s60, s60, s97")
e(f"s_add_u32 s60, s60, {WS_REC}")
e("v_add_u32 v2, s60, v1")
e("v_add_u32 v4, s97, v1")
e(f"v_add_u32 v3, {STG}, v4")
e("v_lshrrev_b32 v4, 2, v4")
e("v_mov_b32 v5, 0xfcfcfc")
e(f"s_cmp_eq_u32 s{sW}, 3")
e(f"s_cselect_b64 vcc, {(1 << ((CHB-13312)//16)) - 1}, -1")
e("s_cselect_b64 s[62:63], 0, -1")
fine(5)
e(f"s_waitcnt vmcnt({PN})")
fine(6)
def posloop(name, w0, nw):
    e(f"s_sub_u32 s61, s{sW}, {w0}")
    e(f"s_cmp_ge_u32 s61, {nw}")
    e(f"s_cbranch_scc1 L_{name}e")
    e("s_lshl_b32 s61, s61, 12")
    if PN: e(f"s_add_u32 s61, s61, {PN*8192}")
    e(f"v_lshlrev_b32 v6, 4, v{L}")
    e.label(f"L_{name}")
    e(f"s_add_u32 m0, s61, {POS}")
    e("s_nop 0")
    for i in range(4): e(f"buffer_load_dwordx4 v6, {s(srdPOS,4)}, s61 offen offset:{i*1024} lds")
    e(f"s_add_u32 s61, s61, {4096*nw}")
    e("s_cmp_lt_u32 s61, 61440")
    e(f"s_cbranch_scc1 L_{name}")
    e.label(f"L_{name}e")
if OPT["posat"][0] == "b2": posloop("pl", *OPT["posat"][1:])
if TV: e(f"v_readfirstlane_b32 s{sTAG}, v{vTG}\ns_nop 0")
else: e("s_waitcnt lgkmcnt(0)")
e(f"s_add_u32 s{sTAG}, s{sTAG}, {TAGC}")
e(f"v_mov_b32 v{PB+3}, s{sTAG}")
e(f"s_and_b32 s{sT}, s{sTAG}, 0xc000")
e(f"s_lshl_b32 s60, s{sTAG}, 2")
e(f"s_and_b32 s{sT+1}, s60, 0xc000")
e(f"s_lshl_b32 s60, s{sTAG}, 4")
e(f"s_and_b32 s{sT+2}, s60, 0xc000")
e(f"s_and_b32 s{sT+3}, s{sTAG}, {M3}")
e(f"s_cmp_ge_u32 s{sW}, 4")
e("s_waitcnt lgkmcnt(0)")
fine(7)
e("s_barrier")
stamp(3)
ST = 48
e("s_cbranch_scc1 L_nost")
for i in range(4):
    e(f"ds_read_b128 {v(ST+4*i,4)}, v3 offset:{i*1024}")
    e(f"ds_read_b32 v{8+i}, v4 offset:{STB+i*256}")
for i in range(4):
    e(f"s_waitcnt lgkmcnt({6-2*i})")
    if i == 1: e("s_mov_b64 exec, vcc")
    if i == 2: e("s_mov_b64 exec, s[62:63]")
    for k in range(3): e(f"v_or_b32 v{ST+4*i+k}, s{sT+k}, v{ST+4*i+k}")
    e(f"v_and_or_b32 v{ST+4*i+3}, v{8+i}, v5, s{sT+3}")
    e(f"global_store_dwordx4 v2, {v(ST+4*i,4)}, {s(sWS,2)} offset:{i*1024} sc1")
e("s_mov_b64 exec, -1")
fine(1, 2)
e.label("L_nost")
fine(0, 2)
e(f"s_cmp_lg_u32 s{sW}, 7")
e("s_cbranch_scc1 L_nopub")
e(f"global_store_dwordx4 v{PBA}, {v(PB,4)}, {s(sWS,2)} sc1")
e.label("L_nopub")
stamp(15, wait=True)
finedump(8)
PL = 160; vPA = 164; vPW = 165
def site(n):
    if OPT["posat"][0] == f"pre{n}": posloop("pl", *OPT["posat"][1:])
    if OPT["pollat"] == n:
        pollsetup()
        fine(3, 2)
    if OPT["posat"][0] == f"post{n}": posloop("pl", *OPT["posat"][1:])
def pollsetup():
    e("v_and_b32 v1, 255, v0")
    e(f"s_lshr_b32 s60, s{sB}, 2")
    e("s_lshl_b32 s60, s60, 4")
    e(f"s_add_u32 s60, s60, {WS_OFF}")
    e(f"v_lshl_add_u32 v{vPA}, v1, 10, s60")
    e(f"s_cmp_lt_u32 s{sW}, 4")
    e("s_cbranch_scc1 L_nops")
    e(f"v_cmp_gt_u32 vcc, {NWG}, v1")
    for i in range(3): e(f"v_mov_b32 v{PL+i}, 0")
    e(f"v_mov_b32 v{PL+3}, s{sTAG}")
    e(f"v_lshlrev_b32 v{vPW}, 2, v1")
    e("s_mov_b64 exec, vcc")
    e(f"global_load_dwordx4 {v(PL,4)}, v{vPA}, {s(sWS,2)} sc1")
    e("s_mov_b64 exec, -1")
    e.label("L_nops")
e(f"s_mov_b32 s{sBUD}, 2000000")
e(f"ds_read_u16_d16_hi v{WX}, v{CA0} offset:{WL}")
e(f"ds_read_u16_d16_hi v{WX+1}, v{CA0} offset:{WL+128}")
site(0)
e(f"s_cmp_ge_u32 s{sW}, 6")
e("s_cbranch_scc1 L_w67")
e(f"s_cmp_ge_u32 s{sW}, 3")
e("s_cbranch_scc1 L_w345")
for i in range(4): e(f"v_mov_b32 v{HRES+i}, v{HF+i}")
e("s_branch L_w05")
e.label("L_w345")
nodeprod_reads()
e(f"v_and_b32 v1, 15, v{L}")
e(f"v_lshrrev_b32 v3, 4, v{L}")
e(f"s_lshl_b32 s60, s{sNG}, 5")
e(f"s_add_u32 s60, s60, {AT}")
e("v_lshl_add_u32 v2, v3, 3, s60")
e(f"v_mul_u32_u24 v1, {ATS}, v1")
e("v_add_u32 v2, v1, v2")
nodeprod()
e("s_nop 1")
nodescale()
for t in range(4):
    e(f"v_cvt_pk_bf16_f32 v{WT+2*t}, v{DT+4*t}, v{DT+4*t+1}")
    e(f"v_cvt_pk_bf16_f32 v{WT+2*t+1}, v{DT+4*t+2}, v{DT+4*t+3}")
for i in range(4): e(f"v_mov_b32 v{HRES+i}, v{HF+4+i}")
for t in range(4): e(f"ds_write_b64 v2, {v(WT+2*t,2)} offset:{t*16*ATS}")
e.label("L_w05")
def part2():
    for t in range(2):
        for ks in range(2):
            for rd in range(2):
                e(f"ds_read_b64_tr_b16 {v(W1T+8*t+4*ks+2*rd,2)}, v{aWH} offset:{ks*4096+rd*512+t*8}")
    for t in range(2):
        for c in range(2):
            for rd in range(2):
                e(f"ds_read_b64_tr_b16 {v(WH2+8*t+4*c+2*rd,2)}, v{aWH} offset:{(2+c)*4096+rd*512+t*8}")
    e(f"s_lshl_b32 s60, s{sNG}, 4")
    e(f"v_and_b32 v1, 15, v{L}")
    e(f"v_add_lshl_u32 v{vAItem}, v1, s60, 2")
    e("s_waitcnt lgkmcnt(8)")
    for t in range(2):
        e(f"v_mfma_f32_16x16x32_bf16 {v(H1+4*t,4)}, {v(W1T+8*t,4)}, {v(HF,4)}, 0")
        e(f"v_mfma_f32_16x16x32_bf16 {v(H1+4*t,4)}, {v(W1T+8*t+4,4)}, {v(HF+4,4)}, {v(H1+4*t,4)}")
    e(f"v_and_b32 v2, 48, v{L}")
    e(f"v_lshlrev_b32 v{vFO}, 1, v2")
    e(f"v_add_u32 v{vFO}, {BF}, v{vFO}")
    e(f"s_lshl_b32 s60, s{sN0}, 1")
    e(f"s_add_u32 s60, s60, s{sCHF}")
    e("s_lshl_b32 s60, s60, 6")
    e(f"v_lshl_add_u32 v2, v{vAItem}, 5, v2")
    e(f"v_add_u32 v{vOA}, s60, v2")
    e(f"s_movk_i32 s60, {NB*4}")
    e(f"v_cmp_gt_u32 {s(sOM,2)}, s60, v{vAItem}")
    for i in range(4): e(f"v_pk_mul_f32 {v(H1+2*i,2)}, {v(H1+2*i,2)}, s[96:97] op_sel_hi:[1,0]")
def part3():
    e(f"v_mul_u32_u24 v1, {ACCS//4}, v{vAItem}")
    e(f"v_add_u32 v1, {ACC-BF}, v1")
    e(f"v_add_u32 v{vFA}, v1, v{vFO}")
    e(f"v_mul_f32 v{WX}, {NL2E}, v{WX}")
    e(f"v_mul_f32 v{WX+1}, {NL2E}, v{WX+1}")
    e(f"v_cvt_pk_bf16_f32 v1, v{WX}, v{WX}")
    e("v_and_b32 v1, 0xffff0000, v1")
    e(f"v_sub_f32 v2, v{WX}, v1")
    e(f"v_cvt_pk_bf16_f32 v{WX}, v1, v2")
    e(f"v_cvt_pk_bf16_f32 v{WX+1}, 0, v{WX+1}")
if OPT["p2at"] == "win": part2()
e("s_branch L_wdone")
e.label("L_w67")
e(f"ds_read_u16_d16_hi v4, v{CA0} offset:{WXL}")
e("v_and_b32 v6, 127, v0")
e(f"v_min_u32 v7, 119, v6")
e(f"s_mul_i32 s60, s{sB}, 240")
e(f"v_lshl_add_u32 v1, v7, 1, s60")
e(f"global_load_short_d16_hi v{vPosOwn}, v1, {s(sPOS,2)}")
e("s_add_u32 s60, s60, 1280000")
e(f"v_lshl_add_u32 v{vOA}, v6, 1, s60")
e("s_movk_i32 s60, 120")
e(f"v_cmp_gt_u32 {s(sOM,2)}, s60, v6")
e(f"v_mul_u32_u24 v1, 171, v7")
e("v_lshrrev_b32 v1, 9, v1")
e(f"v_mad_i32_i24 v2, v1, -3, v7")
e(f"v_lshlrev_b32 v{vAItem}, 2, v1")
e(f"v_lshl_add_u32 v{H1}, v2, 8, v{vAItem}")
e(f"v_lshlrev_b32 v{vFO}, 3, v2")
e(f"v_add_u32 v{vFO}, {BF+256}, v{vFO}")
e(f"v_bfe_u32 v1, v{L}, 2, 1")
e(f"v_lshrrev_b32 v2, 3, v{L}")
e(f"v_and_b32 v3, 3, v{L}")
e("v_lshl_add_u32 v2, v2, 2, v3")
e("v_lshl_add_u32 v2, v1, 5, v2")
e("v_lshlrev_b32 v2, 2, v2")
e("s_waitcnt lgkmcnt(0)")
e(f"v_mul_f32 v4, {NLN2}, v4")
e(f"ds_write_b32 v2, v4 offset:{WXT}")
e.label("L_wdone")
stamp(4, wait=True)
site(1)
if OPT["p2at"] == "win": part3()
if OPT["lcat"] != "start": laneconsts()
if OPT["lcat"] == "win": laneconsts2()
RA = 16; XP = 36; KA = 80; LK = 96; AD = 112; RR = 117; DD = 122; LN = 127; vSB = 132; vJ = 133; vPF = 134
mk = lambda p, k: sMK + 2 * (3 * p + k)
sLB = sMK + 30
def presets(ps):
    for p in ps:
        for k in range(4): e(f"v_mov_b32 v{RA+4*p+k}, s{sT+k}")
def batchsetup():
    e("v_lshrrev_b32 v1, 3, v0")
    e("v_and_b32 v2, 7, v0")
    e(f"v_lshlrev_b32 v{vJ}, 4, v2")
    e(f"v_mul_u32_u24 v1, {CHB}, v1")
    e(f"v_add_u32 v{vSB}, v1, v{vJ}")
    presets(range(4))
batchsetup()
for p in range(4):
    e(f"s_add_u32 s{sRB+2*p}, s{sWS}, {WS_REC + p*64*CHB}")
    e(f"s_addc_u32 s{sRB+2*p+1}, s{sWS+1}, 0")
e("s_andn2_b32 s60, s2, 7")
e(f"s_add_u32 s60, s60, s{sW}")
e("s_mul_i32 s60, s60, 41")
e(f"v_add_u32 v{vPF}, s60, v{L}")
e(f"s_bfm_b64 {s(sPF,2)}, {OPT.get('pfn', 26)}, 0")
e(f"s_mov_b32 s{sC10K}, 60000")
if Z1 > Z0: zero(Z0, Z1)
site(2)
e("v_lshrrev_b32 v6, 3, v0")
e("v_lshlrev_b32 v6, 2, v6")
stamp(5, wait=True)
fine(4, 2)
if OPT.get("fine") == 2:
    e("s_waitcnt vmcnt(1)")
    fine(5, 2)
    e("s_waitcnt vmcnt(0)")
    fine(6, 2)
e(f"s_cmp_lt_u32 s{sW}, 4")
e("s_cbranch_scc1 L_b3")
e(f"s_and_b32 s3, s{sB}, 1")
e("s_lshl_b32 s3, s3, 4")
e.label("L_poll")
e(f"s_sub_u32 s{sBUD}, s{sBUD}, 1")
e("s_waitcnt vmcnt(0)")
e(f"v_cmp_ne_u32 vcc, s{sTAG}, v{PL+3}")
e("s_cbranch_scc1 L_pollout")
e("s_cbranch_vccz L_gotoff")
e("s_mov_b64 exec, vcc")
e(f"global_load_dwordx4 {v(PL,4)}, v{vPA}, {s(sWS,2)} sc1")
e("s_branch L_poll")
e.label("L_gotoff")
e("s_mov_b64 exec, -1")
e(f"s_bitcmp1_b32 s{sB}, 1")
e(f"v_alignbit_b32 v3, v{PL+1}, v{PL}, s3")
e(f"v_alignbit_b32 v4, v{PL+2}, v{PL+1}, s3")
e("s_cselect_b64 vcc, -1, 0")
e("v_cndmask_b32 v3, v3, v4, vcc")
e(f"ds_write_b32 v{vPW}, v3 offset:{OFF1}")
e(f"s_cmp_lt_u32 s{sW}, 6")
e("s_cbranch_scc1 L_b3")
e(f"ds_write_b32 v{H1}, v{vPosOwn} offset:{PD}")
e.label("L_b3")
fine(7, 2)
e("s_waitcnt lgkmcnt(0)")
e("s_barrier")
e(f"ds_read2st64_b32 {v(SEG,2)}, v6 offset0:{OFF1//256} offset1:{OFF1//256+1}")
e(f"ds_read2st64_b32 {v(SEG+2,2)}, v6 offset0:{OFF1//256+2} offset1:{OFF1//256+3}")
e("s_waitcnt lgkmcnt(0)")
stamp(6)
finedump(8, 2)
e.label("L_fetch")
for p in range(4):
    e(f"v_and_b32 v{AD+p}, 0xfff0, v{SEG+p}")
    e(f"v_sub_u32_sdwa v{RR+p}, v{SEG+p}, v{AD+p} {SD} src0_sel:WORD_1 src1_sel:DWORD")
    e(f"v_add_u32 v{AD+p}, v{AD+p}, v{vSB}")
    e(f"v_cmp_lt_i32 vcc, v{vJ}, v{RR+p}")
    e("s_mov_b64 exec, vcc")
    e(f"global_load_dwordx4 {v(RA+4*p,4)}, v{AD+p}, {s(sRB+2*p,2)} sc1")
    e("s_mov_b64 exec, -1")
e(f"v_max3_i32 v3, v{RR}, v{RR+1}, v{RR+2}")
e(f"v_max_i32 v3, v3, v{RR+3}")
e("v_mov_b32 v13, 8")
e(f"v_cmp_lt_i32 vcc, s{sWID}, v3")
e(f"s_or_b32 s{sANYB}, vcc_lo, vcc_hi")
e("s_cbranch_scc0 L_nob0")
e(f"s_cmp_eq_u32 s{sWID}, {NARROW}")
e("s_cbranch_scc1 L_narrow")
e(f"v_mov_b32 v{RR+4}, 0")
e(f"v_mov_b32 v{AD+4}, 0")
e("v_mov_b32 v4, 0")
for p in (3, 2, 1, 0):
    e(f"v_cmp_lt_i32 vcc, 0x80, v{RR+p}")
    e(f"v_add_u32 v5, {p*64*CHB}, v{AD+p}")
    e("s_nop 0")
    e(f"v_cndmask_b32 v{RR+4}, v{RR+4}, v{RR+p}, vcc")
    e(f"v_cndmask_b32 v{AD+4}, v{AD+4}, v5, vcc")
    e("v_addc_co_u32 v4, vcc, 0, v4, vcc")
e(f"v_subrev_u32 v{LN+4}, 0x80, v{RR+4}")
e(f"v_max_i32 v{LN+4}, 0, v{LN+4}")
presets([4])
e(f"v_cmp_lt_i32 {s(sLB,2)}, v{vJ}, v{LN+4}")
e("v_cmp_lt_i32 vcc, 0x100, v3")
e("v_cmp_lt_i32 s[60:61], 1, v4")
e(f"s_mov_b64 exec, {s(sLB,2)}")
e(f"global_load_dwordx4 {v(RA+16,4)}, v{AD+4}, {s(sRB,2)} offset:128 sc1")
e("s_or_b64 exec, vcc, s[60:61]")
e(f"ds_write_b32 v{ZP}, v13 offset:{CNT2+252}")
e("s_mov_b64 exec, -1")
for k in range(3):
    e(f"v_add_u32 v5, {4*k}, v{vJ}")
    e(f"v_cmp_lt_u32 {s(mk(4,k),2)}, v5, v{LN+4}")
e.label("L_nob0")
e(f"s_cmp_lg_u32 s{sONCE}, 0")
e("s_cbranch_scc1 L_once")
e(f"s_mov_b32 s{sONCE}, 1")
zero(0, 2)
if Z1 < 6: zero(Z1, 6)
if OPT["p2at"] == "fetch":
    e(f"s_cmp_ge_u32 s{sW}, 6")
    e("s_cbranch_scc1 L_nop2")
    part2()
    e.label("L_nop2")
    part3()
if OPT["lcat"] == "fetch": laneconsts2()
e.label("L_once")
for p in range(4):
    e(f"v_and_b32 v4, 15, v{SEG+p}")
    e(f"v_sub_u32 v{LN+p}, v{RR+p}, v4")
    e(f"v_sub_u32 v4, v{vJ}, v4")
    e("v_add_u32 v5, 4, v4")
    e("v_add_u32 v6, 8, v4")
    for k in range(3): e(f"v_cmp_lt_u32 {s(mk(p,k),2)}, v{4+k}, v{LN+p}")
e(f"v_lshlrev_b32 v1, 2, v{L}")
e(f"v_cmp_gt_u32 {s(sVAL,2)}, {NB}, v{L}")
e("v_mov_b32 v4, 0")
e("v_mov_b32 v5, 0")
e("s_movk_i32 s62, 0xfc")
e(f"s_mov_b32 s63, {M3}")
def bpf(at):
    if OPT["bpf"] != at: return
    e(f"s_mov_b64 exec, {s(sPF,2)}")
    e(f"buffer_load_dword v{vPF+1}, v{vPF}, {s(srdBP,4)}, 0 idxen")
    e("s_mov_b64 exec, -1")
bpf(2)
XV = 1 if OPT["bpf"] == 2 else 0
def five(name, body):
    for p in range(4): body(p)
    e(f"s_cmp_eq_u32 s{sANYB}, 0")
    e(f"s_cbranch_scc1 L_{name}")
    body(4)
    e.label(f"L_{name}")
def chk(p):
    if p < 4: e(f"s_waitcnt vmcnt({3-p+XV})")
    for k in range(4): e(f"v_bitop3_b32 v{4 if k < 3 else 5}, v{4 if k < 3 else 5}, v{RA+4*p+k}, s{sT+k} bitop3:0xf6")
five("bx", chk)
e("v_and_b32 v4, 0xc000, v4")
e("v_and_or_b32 v4, v5, s63, v4")
e("v_cmp_ne_u32 vcc, 0, v4")
e("s_cbranch_vccnz L_stale")
e.label("L_gotrec")
stamp(7, wait=True)
def atom(p):
    if p: e("s_mov_b64 exec, -1")
    for k in range(3): e(f"v_and_b32_sdwa v{XP+6*p+2*k}, s62, v{RA+4*p+3} {SD} src0_sel:DWORD src1_sel:BYTE_{k}")
    for k in range(3):
        e(f"s_mov_b64 exec, {s(mk(p,k),2)}")
        e(f"ds_add_rtn_u32 v{KA+3*p+k}, v{XP+6*p+2*k}, v13 offset:{CNT2}")
five("ba", atom)
bpf(1)
e("s_mov_b64 exec, -1")
e("s_waitcnt lgkmcnt(0)")
e("s_barrier")
stamp(8)
e(f"ds_read_b32 v2, v1 offset:{CNT2}")
clean = [f"v_xor_b32 v{XP+6*p+2*k+1}, s{sT+k}, v{RA+4*p+k}" for p in range(5) for k in range(3)]
for x in clean[:5]: e(x)
e("s_waitcnt lgkmcnt(0)")
e(f"v_max_u32 v4, {PADB}, v2")
e(f"v_cndmask_b32 v5, 0, v4, {s(sVAL,2)}")
e(f"v_subrev_u32 v6, {SORT2}, v4")
scan(5, [f"v_readlane_b32 s{sMORE}, v2, 63", "v_cmp_lt_u32 vcc, v2, v4"] + clean[5:])
e(f"v_sub_u32 v6, v5, v6")
e(f"ds_write_b32 v1, v6 offset:{BASE2}")
def look(p):
    for k in range(3): e(f"ds_read_b32 v{LK+3*p+k}, v{XP+6*p+2*k} offset:{BASE2}")
five("bl", look)
e(f"v_readlane_b32 s3, v5, 63")
e(f"s_cmp_gt_u32 s3, {CAPB}")
e("s_cbranch_scc1 L_redo")
e(f"s_and_b64 vcc, vcc, {s(sVAL,2)}")
e("s_cbranch_scc1 L_pad0")
e.label("L_nopad")
e("s_add_u32 s96, s3, 127")
e("s_lshr_b32 s60, s96, 10")
e("s_bfe_u32 s61, s96, 0x30007")
e(f"s_mul_i32 s62, s60, s{sW}")
e(f"s_min_u32 s63, s61, s{sW}")
e("s_add_u32 s62, s62, s63")
e(f"s_cmp_lt_u32 s{sW}, s61")
e(f"s_addc_u32 s{sCNT}, s60, 0")
e("s_lshl_b32 s62, s62, 7")
e("v_cmp_ge_u32 vcc, s62, v5")
e(f"s_lshl_b32 s63, s{sCNT}, 7")
e("s_add_u32 s63, s63, s62")
e("v_cmp_gt_u32 s[60:61], s63, v5")
e("s_waitcnt lgkmcnt(0)")
def put(p):
    for k in range(3):
        e(f"s_mov_b64 exec, {s(mk(p,k),2)}")
        e(f"v_add_u32 v{LK+3*p+k}, v{LK+3*p+k}, v{KA+3*p+k}")
        e(f"ds_write_b64 v{LK+3*p+k}, {v(XP+6*p+2*k,2)}")
five("bw", put)
e("s_mov_b64 exec, -1")
e(f"s_bcnt1_i32_b64 s{sNFW}, vcc")
e(f"s_lshl_b32 s{sBASE}, s{sNFW}, 2")
e(f"s_or_b32 s{sSLOW}, s{sMULTI}, s{sMORE}")
e(f"s_cselect_b32 s{sNFW}, 252, s{sBASE}")
e(f"s_lshl_b32 s63, 1, s{sW}")
e(f"v_mov_b32 v7, s{sNFW}")
e("v_mov_b32 v8, s63")
e(f"s_lshl_b32 s63, s{sW}, 6")
e("s_add_u32 s3, s3, s63")
e(f"s_add_u32 s3, s3, {SORT2}")
e("v_lshl_add_u32 v9, v1, 1, s3")
e(f"v_mov_b32 v10, {(NB-1)*4}")
e("v_mov_b32 v11, 10000")
e("s_mov_b64 exec, 1")
e(f"ds_or_b32 v7, v8 offset:{LNK}")
e("s_mov_b64 exec, 0xff")
e("ds_write_b64 v9, v[10:11]")
e("s_mov_b64 exec, -1")
e(f"s_add_u32 s62, s62, {SORT2}")
e(f"v_lshl_add_u32 v{aRec}, v{L}, 3, s62")
e(f"v_add3_u32 v{aIdx}, s62, 4, v{vIdxL}")
PI = E[1] + 8
for n in range(DEP): e(f"v_mov_b32 v{PI+2*n+1}, v{IDX+1}")
for c in range(2): e(f"v_mfma_f32_32x32x8_bf16 {v(AC[c],16)}, {v(ZP,2)}, {v(ZP,2)}, 0")
e(f"s_bcnt1_i32_b64 s{sNLW}, s[60:61]")
e(f"s_min_u32 s{sNLW}, s{sNLW}, {NB-1}")
e(f"s_lshl_b32 s{sNLW}, s{sNLW}, 2")
e(f"s_sub_u32 s{sCNT}, s{sCNT}, {DEP+1}")
e("s_setprio 3")
e("s_waitcnt lgkmcnt(0)")
e("s_barrier")
stamp(9)
def gather(b, pair):
    return [f"buffer_load_dwordx4 {v(G[b&1],4)}, {v(pair,2)}, {s(srdBP,4)}, 0 idxen offen",
            f"buffer_load_dwordx4 {v(G[b&1]+4,4)}, {v(pair,2)}, {s(srdBP,4)}, 0 idxen offen offset:64"]
recread = lambda o: f"ds_read_b64 {v(REC,2)}, v{aRec} offset:{o}"
posaddr = f"v_mul_u32_u24_sdwa v{BT}, 6, v{REC+1} {SD} src0_sel:DWORD src1_sel:WORD_0"
posreads = [f"ds_read_u16_d16_hi v{PS+i}, v{BT} offset:{POS+2*i}" for i in range(3)] + \
           [f"ds_read2st64_b32 {v(PDV,2)}, v{REC} offset0:{PD//256} offset1:{PD//256+1}",
            f"ds_read_b32 v{PDV+2}, v{REC} offset:{PD+512}"]
build1 = [f"v_readlane_b32 s{sNF}, v{REC}, 0",
          f"v_readlane_b32 s{sNL}, v{REC}, 63",
          f"v_cmp_ne_u32 {s(sVAL,2)}, s{sC10K}, v{BT}",
          f"v_add_u32 v{BT+1}, v{REC}, v{REC}",
          f"s_and_b32 s60, s{sNF}, -8\ns_mul_i32 s{sNEG}, s60, -4\ns_lshr_b32 s60, s60, 1",
          f"v_lshl_add_u32 v{BT+2}, v{REC}, 2, s{sNEG}",
          f"v_add_u32 v{aAT}, s60, v{aATb}",
          f"v_lshlrev_b64 {v(REC+2,2)}, v{BT+2}, {s(sOHC,2)}",
          f"v_bitop3_b32 v{BT+1}, v{BT+1}, 56, v{aR2b} bitop3:0x6a"]
build2 = [f"v_sub_f32 v{PDV+2}, v{PDV+2}, v{PS+2}",
          f"v_sub_f32 v{PDV}, v{PDV}, v{PS}",
          f"v_sub_f32 v{PDV+1}, v{PDV+1}, v{PS+1}",
          f"v_cvt_pk_bf16_f32 v{R2V+1}, v{PDV+2}, 1.0",
          f"v_cvt_pk_bf16_f32 v{R2V}, v{PDV}, v{PDV+1}",
          f"v_lshlrev_b32 v{BT+2}, 16, v{R2V+1}",
          f"v_mul_f32 v{BT}, v{BT+2}, v{BT+2}",
          f"v_dot2_f32_bf16 v{BT}, v{R2V}, v{R2V}, v{BT}",
          None, None, None,
          f"v_cvt_pk_bf16_f32 v{REC}, v{BT}, v{BT}"]
build3 = [f"ds_write_b64 v{aR2}, {v(ZP,2)}",
          f"ds_write_b128 v{aR1w}, {v(REC,4)}",
          f"s_mov_b64 exec, {s(sVAL,2)}\nds_write_b64 v{BT+1}, {v(R2V,2)}\ns_mov_b64 exec, -1",
          f"ds_read2_b32 {v(WX+2,2)}, v{aAT} offset1:1"]
keepaddr = f"v_mov_b32 v{aR2}, v{BT+1}"
def opreads(n):
    return [f"ds_read_b128 {v(R1OP,4)}, v{aR1r} offset:{n*256}",
            f"ds_read_b64_tr_b16 {v(S[n],2)}, v{aS0} offset:{n*1024}",
            f"ds_read_b64_tr_b16 {v(S[n]+2,2)}, v{aS1} offset:{n*1024}"]
def stage1(n):
    t = T[n & 1]
    return [f"v_mfma_f32_32x32x16_bf16 {v(t,16)}, {v(R1OP,4)}, {v(WX,4)}, 0",
            f"v_mfma_f32_32x32x16_bf16 {v(t,16)}, {v(G[n&1],4)}, {v(I0,4)}, {v(t,16)}",
            f"v_mfma_f32_32x32x16_bf16 {v(t,16)}, {v(G[n&1]+4,4)}, {v(I1,4)}, {v(t,16)}"]
def stage2(n):
    return [f"v_mfma_f32_32x32x16_bf16 {v(AC[c],16)}, {v(M[c],4)}, {v(S[n],4)}, {v(AC[c],16)}" for c in range(2)]
def pkmul(q): return [f"v_pk_mul_f32 {v(E[q]+2*i,2)}, {v(E[q]+2*i,2)}, {v(T[q]+2*i,2)}" for i in range(8)]
def cvt(q): return [f"v_cvt_pk_bf16_f32 v{M[c]+a}, v{E[q]+4*a+c}, v{E[q]+4*a+2+c}" for a in range(4) for c in range(2)]
def flushchk(lbl):
    e(f"s_min_u32 s60, s{sNL}, s{sNLW}")
    e(f"s_sub_u32 s60, s60, s{sBASE}")
    e("s_cmp_ge_u32 s60, 32")
    e(f"s_cbranch_scc1 L_flush_{lbl}")
    e.label(f"L_flret_{lbl}")
def rowaddr():
    return [f"v_subrev_u32 v4, s{sBASE}, v{L}",
            "v_and_b32 v4, 28, v4",
            f"v_add_u32 v4, s{sBASE}, v4",
            f"v_cmp_eq_u32 vcc, s{sNFW}, v4",
            f"v_cmp_lt_u32 s[62:63], s{sNLW}, v4",
            f"s_lshl_b32 s61, s{sW}, 2",
            f"s_add_u32 s61, s61, {NB*4}",
            "v_mov_b32 v7, s61",
            "v_cndmask_b32 v4, v4, v7, vcc",
            f"v_mov_b32 v7, {OOB//64}",
            "v_cndmask_b32 v4, v4, v7, s[62:63]",
            f"v_mul_u32_u24 v4, {ACCS//4}, v4",
            f"v_add_u32 v4, {ACC}, v4",
            f"v_lshrrev_b32 v7, 5, v{L}",
            f"v_lshl_add_u32 v{vRowM}, v7, 4, v4",
            f"v_lshl_add_u32 v4, v7, 2, v4",
            f"v_and_b32 v7, 3, v{L}",
            f"v_lshl_add_u32 v{vRowP}, v7, 3, v4"]
def bfaddr():
    return [f"v_ffbl_b32 v5, v{vMask}",
            f"v_add_u32 v6, -1, v{vMask}",
            f"v_min_u32 v5, {OOB//256}, v5",
            f"v_and_b32 v{vMask}, v6, v{vMask}",
            f"v_mul_u32_u24 v5, {ACCS}, v5",
            f"v_add_u32 v{vFB}, v{vFO}, v5"]
def mmask():
    e("s_mov_b32 exec_lo, 0x88888888")
    e("s_mov_b32 exec_hi, 0x88888888")
def flush_slow():
    e("s_nop 7")
    e("v_mov_b32 v2, 0")
    for i in range(8):
        e(f"ds_read_b128 v[4:7], v{vWxa} offset:{WXT+16*i}")
        e("s_waitcnt lgkmcnt(0)")
        for r in range(4): e(f"v_fmac_f32 v2, v{AC[0]+4*i+r}, v{4+r}")
    e(f"ds_add_f32 v{vRowP}, v2 offset:256")
    mmask()
    for i in range(32): e(f"ds_add_f32 v{vRowM}, v{AC[0]+i} offset:{(i//4)*32+(i%4)*4}")
    e("s_mov_b64 exec, -1")

def step(sidx, first=False):
    q = sidx & 1; n1 = (sidx + 1) & 3
    R = OPT["ramp"]
    e("s_setprio 0")
    if sidx == 1: flushchk("mid")
    mem = gather(sidx + DEP, IDX) + [f"ds_read_u16 v{IDX}, v{aIdx} offset:{(sidx+DEP+1)*128}"]
    if sidx == 3: mem += build3
    mem += opreads(n1)
    if sidx == 3: mem += [recread(1024)]
    if sidx == 1: mem += posreads
    oth = {0: [posaddr], 1: build1, 2: build2, 3: [keepaddr, f"v_add_u32 v{aIdx}, 512, v{aIdx}", f"v_add_u32 v{aRec}, 512, v{aRec}"]}[sidx]
    for y in mem: e(y)
    oth = list(oth)
    for i in range(16):
        if i == R[0]: e("s_setprio 1")
        e(f"v_exp_f32 v{E[q]+i}, v{T[q]+i}")
        if i >= R[0] - 1 and oth:
            y = oth.pop(0)
            if y: e(y)
    assert not oth
    addone = f"{OPT.get('ao', 'v_mfma_f32_32x32x8_bf16')} {v(E[q],16)}, {v(ONE,2)}, {v(ONE,2)}, {v(E[q],16)}"
    e("s_setprio 2")
    if first:
        e("s_nop 0"); e(addone); e("s_nop 7")
    else:
        for x in pkmul(1 - q): e(x)
        e(addone)
        for x in cvt(1 - q): e(x)
    e(f"s_sub_u32 s{sCNT}, s{sCNT}, 1")
    e("s_waitcnt vmcnt(2) lgkmcnt(0)")
    mf = stage1(n1) + ([] if first else stage2((sidx - 1) & 3))
    for i in range(16):
        if i % 3 == 0 and i // 3 < len(mf):
            e(mf[i // 3])
            if i == 0: e("s_setprio 3")
        e(f"v_rcp_f32 v{E[q]+i}, v{E[q]+i}")
    e(f"s_cbranch_scc1 L_evt{sidx}")

if OPT.get("x"):
    step0 = step
    def step(sidx, first=False):
        st = len(e.lines); step0(sidx, first)
        X = OPT["x"]; out = []
        for l in e.lines[st:]:
            if "N" in X and "32x32x8" in l: continue
            if "2" in X and l.startswith("v_mfma") and (l.split()[1].startswith(f"v[{AC[0]}:") or l.split()[1].startswith(f"v[{AC[1]}:")): continue
            if "E" in X and l.startswith("v_mfma") and l.endswith(", 0"): continue
            if "E" in X and f"v[{I0}:" in l: l = l.rsplit(",", 1)[0] + ", 0"
            if "I" in X and l.startswith("v_mfma") and (f"v[{I0}:" in l or f"v[{I1}:" in l): continue
            if "J" in X and l.startswith("v_mfma") and (f"v[{I1}:" in l): continue
            if "S" in X and l.startswith("v_mfma") and f"v[{I1}:" in l: continue
            if "S" in X and l.startswith("v_mfma") and f"v[{I0}:" in l:
                t_ = l.split()[1]; g_ = int(l.split()[2][2:].split(":")[0])
                l = f"v_smfmac_f32_32x32x32_bf16 {t_} {v(I0,4)}, {v(g_,8)}, v8"
            if "Z" in X and l.startswith("v_mfma") and l.split()[1].startswith(f"v[{AC[1]}:"): continue
            if "Z" in X and l.startswith("v_mfma") and l.split()[1].startswith(f"v[{AC[0]}:"):
                l = f"v_smfmac_f32_32x32x32_bf16 {v(AC[0],16)}, {l.split()[3]} {v(M[0],8)}, v8"
            if "K" in X and l.startswith("v_mfma") and l.endswith(", 0"):
                l = f"v_mfma_f32_32x32x8_bf16 {l.split()[1]} {v(R1OP,2)}, {v(WX,2)}, 0"
            if "D" in X and l.startswith("buffer_load_dwordx4"):
                g_ = int(l.split()[1][2:].split(":")[0])
                l = "\n".join(f"buffer_load_dword v{g_+i}, v[10:11], s[{srdBP}:{srdBP+3}], 0 idxen offen offset:{(g_%8+i)*384}" for i in range(4))
            if "D" in X and l.startswith(f"ds_read_u16 v{IDX}"): l = l.replace(f"v{IDX}", "v10").replace(f"v{aIdx}", "v9") + f"\nds_read_b128 v[136:139], v{vWxa}\nds_read_b128 v[140:143], v{vWxa} offset:16"
            if "D" in X and l.startswith(f"v_add_u32 v{aIdx}"): l = "v_add_u32 v9, 512, v9"
            if "D" in X and "vmcnt(2)" in l: l = l.replace("vmcnt(2)", "vmcnt(8)")
            if "G" in X and l.startswith("buffer_load"): continue
            if "T" in X and l.startswith("ds_read_b64_tr"): continue
            if "P" in X and l.startswith("v_pk_mul"): continue
            if "C" in X and l.startswith("v_cvt_pk") and int(l.split()[1][1:-1]) < 200: continue
            if "R" in X and l.startswith("v_rcp"): l = "v_nop\nv_nop"
            if "X" in X and l.startswith("v_exp"): l = "v_nop\nv_nop"
            out += l.split("\n")
        e.lines[st:] = out

e(recread(0))
e(f"ds_read_u16 v{PI}, v{aIdx}")
e(f"ds_read_u16 v{PI+2}, v{aIdx} offset:128")
e(f"ds_read_u16 v{IDX}, v{aIdx} offset:{DEP*128}")
e("s_waitcnt lgkmcnt(2)")
e(posaddr)
for x in posreads: e(x)
for x in gather(0, PI): e(x)
for x in build1: e(x)
e("s_waitcnt lgkmcnt(0)")
g1 = gather(1, PI + 2) + ["s_nop 0"]
for x in build2: e(x if x else g1.pop(0))
for x in build3: e(x)
for x in opreads(0): e(x)
e(recread(512))
e(f"ds_read_b32 v{vMask}, v{vAItem} offset:{LNK}")
e(f"ds_write_b32 v1, v{ZP} offset:{CNT2}")
e(keepaddr)
e("s_waitcnt vmcnt(2) lgkmcnt(5)")
for x in stage1(0): e(x)
for x in rowaddr(): e(x)
e("s_waitcnt lgkmcnt(0)")
for x in bfaddr(): e(x)
if OPT.get("x"):
    e("v_mov_b32 v8, 0x44444444")
    e(f"v_sub_u32 v9, v{aIdx}, v{vIdxL}")
    e(f"v_and_b32 v10, 32, v{L}")
    e("v_add_u32 v9, v9, v10")
    e(f"v_and_b32 v11, 31, v{L}")
    e("v_lshlrev_b32 v11, 2, v11")
stamp(10)
step(0, first=True)
e("s_branch L_s1")
for sidx in range(4):
    e.label(f"L_s{sidx}")
    step(sidx)
e("s_branch L_s0")
for sidx in range(4):
    q = sidx & 1
    e.label(f"L_evt{sidx}")
    e(f"s_cmp_eq_u32 s{srdBP+2}, 0")
    e(f"s_mov_b32 s{srdBP+2}, 0")
    e(f"s_mov_b32 s{sCNT}, {DEP-1}")
    e(f"s_cbranch_scc0 L_s{(sidx+1)&3}")
    if sidx == 0: flushchk("dr")
    for i in range(4): e(f"ds_read_b128 {v(E[1-q]+4*i,4)}, v{vWxa} offset:{WXT+16*i}")
    for i in range(4): e(f"ds_read_b128 {v(T[1-q]+4*i,4)}, v{vWxa} offset:{WXT+64+16*i}")
    for x in pkmul(q) + cvt(q): e(x)
    e(f"s_cmp_lg_u32 s{sSLOW}, 0")
    e("s_nop 0")
    for x in stage2(sidx): e(x)
    e("s_cbranch_scc1 L_slow_final")
    if sidx < 2: e(f"s_branch L_final_flush{q}")
    else:
        e.label(f"L_final_flush{q}")
        stamp(11)
        e("s_waitcnt lgkmcnt(0)")
        e("s_nop 6")
        mmask()
        for i in range(8): e(f"ds_write_b128 v{vRowM}, {v(AC[0]+4*i,4)} offset:{i*32}")
        e("s_mov_b64 exec, -1")
        e(f"v_pk_mul_f32 v[4:5], {v(AC[0],2)}, {v(E[1-q],2)}")
        e(f"v_pk_mul_f32 v[6:7], {v(AC[1],2)}, {v(T[1-q],2)}")
        for i in range(1, 8):
            e(f"v_pk_fma_f32 v[4:5], {v(AC[0]+2*i,2)}, {v(E[1-q]+2*i,2)}, v[4:5]")
            e(f"v_pk_fma_f32 v[6:7], {v(AC[1]+2*i,2)}, {v(T[1-q]+2*i,2)}, v[6:7]")
        e("v_pk_add_f32 v[4:5], v[4:5], v[6:7]")
        e("v_add_f32 v4, v4, v5")
        e(f"ds_write_b32 v{vRowP}, v4 offset:256")
        if sidx == 2: e("s_branch L_b6")
e.label("L_b6")
MR = 16; MB = 32; Y = 40; YE = 48; HU = 56; MX = 64
e(f"s_cmp_lg_u32 s{sMORE}, 0")
e(f"v_cmp_ne_u32 vcc, 0, v{vMask}")
e("s_waitcnt lgkmcnt(0)")
e("s_barrier")
stamp(12)
e("s_cbranch_scc1 L_more")
e(f"s_cmp_ge_u32 s{sW}, 6")
e("s_cbranch_scc1 L_finpos")
for i in range(4):
    e(f"ds_read_b128 {v(MR+4*i,4)}, v{vFA} offset:{(i>>1)*128+(i&1)*16}")
    e(f"ds_read_b128 {v(MX+4*i,4)}, v{vFB} offset:{(i>>1)*128+(i&1)*16}")
for d in range(4):
    e(f"v_lshlrev_b32 v{HU+2*d}, 16, v{HRES+d}")
    e(f"v_and_b32 v{HU+2*d+1}, 0xffff0000, v{HRES+d}")
e(f"s_mov_b32 s60, {NLN2}")
e("s_cbranch_vccnz L_finbf_more")
e.label("L_finbf")
for i in range(4):
    e(f"s_waitcnt lgkmcnt({6-2*i})")
    for d in range(2): e(f"v_pk_add_f32 {v(MR+4*i+2*d,2)}, {v(MR+4*i+2*d,2)}, {v(MX+4*i+2*d,2)}")
    for d in range(2): e(f"v_cvt_pk_bf16_f32 v{MB+2*i+d}, v{MR+4*i+2*d}, v{MR+4*i+2*d+1}")
for t in range(2): e(f"v_mfma_f32_16x16x32_bf16 {v(Y+4*t,4)}, {v(WH2+8*t,4)}, {v(MB,4)}, {v(H1+4*t,4)}")
for t in range(2): e(f"v_mfma_f32_16x16x32_bf16 {v(Y+4*t,4)}, {v(WH2+8*t+4,4)}, {v(MB+4,4)}, {v(Y+4*t,4)}")
e("s_nop 6")
for i in range(8): e(f"v_exp_f32 v{YE+i}, v{Y+i}")
for i in range(4): e(f"v_pk_add_f32 {v(YE+2*i,2)}, {v(YE+2*i,2)}, 1.0 op_sel_hi:[1,0]")
for i in range(4): e(f"v_pk_mul_f32 {v(Y+2*i,2)}, {v(Y+2*i,2)}, s[60:61] op_sel_hi:[1,0]")
for i in range(8): e(f"v_rcp_f32 v{YE+i}, v{YE+i}")
for i in range(4): e(f"v_pk_fma_f32 {v(HU+2*i,2)}, {v(Y+2*i,2)}, {v(YE+2*i,2)}, {v(HU+2*i,2)}")
for d in range(4): e(f"v_cvt_pk_bf16_f32 v{Y+d}, v{HU+2*d}, v{HU+2*d+1}")
e(f"s_mov_b64 exec, {s(sOM,2)}")
e(f"global_store_dwordx4 v{vOA}, {v(Y,4)}, {s(sOUT,2)} sc1")
stamp(13, last=True)
e("s_endpgm")
e.label("L_finpos")
e(f"ds_read_b64 v[16:17], v{vFA}")
e.label("L_posbf")
e(f"ds_read_b64 v[18:19], v{vFB}")
e("s_waitcnt lgkmcnt(0)")
e("v_add_f32 v16, v16, v18")
e("v_add_f32 v17, v17, v19")
e("s_cbranch_vccnz L_posbf_more")
e("v_add_f32 v16, v16, v17")
e(f"v_add_f32 v{vPosOwn}, v{vPosOwn}, v16")
e(f"v_cvt_pk_bf16_f32 v2, v{vPosOwn}, v{vPosOwn}")
e(f"v_mov_b32 v7, s{sTAG}")
e(f"s_mov_b64 exec, {s(sOM,2)}")
e(f"global_store_short v{vOA}, v2, {s(sOUT,2)} sc1")
e("s_cmp_lg_u32 s2, 0")
e("s_cbranch_scc1 L_noep")
e("s_mov_b64 exec, 1")
e(f"global_store_dword v{ZP}, v7, {s(sWS,2)} sc1")
e.label("L_noep")
stamp(13, last=True)
e("s_endpgm")
for lbl in ("mid", "dr"):
    e.label(f"L_flush_{lbl}")
    flush_slow()
    e("s_waitcnt lgkmcnt(0)")
    for i in range(32): e(f"v_mov_b32 v{AC[0]+i}, 0")
    e(f"s_mov_b32 s{sBASE}, s{sNF}")
    e(f"s_mov_b32 s{sSLOW}, 1")
    for x in rowaddr(): e(x)
    e(f"s_branch L_flret_{lbl}")
e.label("L_slow_final")
flush_slow()
e("s_branch L_b6")
e.label("L_finbf_more")
e("s_waitcnt lgkmcnt(0)")
for i in range(16): e(f"v_add_f32 v{MR+i}, v{MR+i}, v{MX+i}")
for x in bfaddr(): e(x)
for i in range(4): e(f"ds_read_b128 {v(MX+4*i,4)}, v{vFB} offset:{(i>>1)*128+(i&1)*16}")
e(f"v_cmp_ne_u32 vcc, 0, v{vMask}")
e("s_waitcnt lgkmcnt(0)")
e("s_cbranch_vccnz L_finbf_more")
e("s_branch L_finbf")
e.label("L_posbf_more")
for x in bfaddr(): e(x)
e(f"v_cmp_ne_u32 vcc, 0, v{vMask}")
e("s_branch L_posbf")
e.label("L_pollout")
e(f"s_mov_b32 s{sBUD}, 0")
e("s_branch L_gotoff")
e.label("L_stale")
e(f"s_cmp_eq_u32 s{sBUD}, 0")
e("s_cbranch_scc1 L_gotrec")
e(f"s_sub_u32 s{sBUD}, s{sBUD}, 1")
e("s_branch L_fetch")
e.label("L_pad0")
e("v_mov_b32 v8, v1")
e("v_mov_b32 v9, 10000")
e("s_mov_b64 exec, vcc")
e.label("L_pad")
e("v_add_u32 v7, v6, v2")
e("v_add_u32 v2, 8, v2")
e("ds_write_b64 v7, v[8:9]")
e("v_cmp_lt_u32 vcc, v2, v4")
e("s_and_b64 exec, vcc, vcc")
e("s_cbranch_scc1 L_pad")
e("s_mov_b64 exec, -1")
e("s_branch L_nopad")
e.label("L_more")
e("s_waitcnt vmcnt(0)")
e("s_setprio 0")
e(f"s_mov_b32 s{srdBP+2}, 10000")
e(f"s_mov_b64 {s(sPF,2)}, 0")
e(f"s_mov_b32 s{sMULTI}, 1")
e(f"s_cmp_eq_u32 s{sWID}, {NARROW}")
e(f"s_cselect_b32 s60, {NARROW}, 0x100")
e("v_mov_b32 v4, s60")
for p in range(4):
    e(f"v_and_b32 v5, 0xfff0, v{SEG+p}")
    e(f"v_lshrrev_b32 v6, 16, v{SEG+p}")
    e(f"v_add_u32 v7, s{sWID}, v5")
    e("v_cmp_lt_u32 vcc, v7, v6")
    e("v_add_u32 v5, v4, v5")
    e("v_min_u32 v5, v5, v6")
    e(f"v_lshl_or_b32 v{SEG+p}, v6, 16, v5")
    e(f"v_mov_b32 v7, s{sWID}")
    e("v_cndmask_b32 v4, v4, v7, vcc")
e(f"s_movk_i32 s{sWID}, 0x80")
batchsetup()
e(f"v_mov_b32 v{vPF}, 0")
e("s_branch L_fetch")
e.label("L_narrow")
e(f"s_mov_b32 s{sANYB}, 0")
e("s_mov_b64 exec, vcc")
e(f"ds_write_b32 v{ZP}, v13 offset:{CNT2+252}")
e("s_mov_b64 exec, -1")
e("s_branch L_nob0")
e.label("L_redo")
e(f"s_cmp_eq_u32 s{sWID}, {NARROW}")
e("s_cbranch_scc1 L_end")
e("s_waitcnt vmcnt(0) lgkmcnt(0)")
e("s_barrier")
e(f"ds_write_b32 v1, v{ZP} offset:{CNT2}")
e(f"s_movk_i32 s{sWID}, {NARROW}")
batchsetup()
e(f"v_cmp_gt_u32 vcc, {NARROW}, v{vJ}")
e(f"v_mov_b32 v1, {OOB}")
e("s_waitcnt lgkmcnt(0)")
e(f"v_cndmask_b32 v{vJ}, v1, v{vJ}, vcc")
e("s_barrier")
e("s_branch L_fetch")
e.label("L_end")
e("s_endpgm")

probs = check_cfg(e.lines)
for p in probs: print("HAZARD", p, file=sys.stderr)

ref = open("cdna_kernels/" + KN + ".s.ref").read().split("\n")
hdr = []
for l in ref:
    if l.startswith("; Override launch"): break
    hdr.append(l)
out = "\n".join(hdr) + f"""
; One persistent launch: 250 workgroups (one per CU) bin the edges by destination bucket, hand the bins
; over through d_ws (tagged with a per-launch epoch), then each workgroup updates its 40 nodes.
; @launch grid=({NWG},1,1) block=(512,1,1) lds={LDS_SIZE}
.amdgcn_target "amdgcn-amd-amdhsa--gfx950"
.text
.globl {KN}_kernel
.p2align 8
.type {KN}_kernel,@function
{KN}_kernel:
{e.text()}.section .rodata,"a"
.p2align 6
.amdhsa_kernel {KN}_kernel
  .amdhsa_next_free_vgpr 256
  .amdhsa_next_free_sgpr 102
  .amdhsa_accum_offset 256
  .amdhsa_group_segment_fixed_size 0
  .amdhsa_kernarg_size 88
  .amdhsa_user_sgpr_count 2
  .amdhsa_user_sgpr_kernarg_segment_ptr 1
  .amdhsa_system_sgpr_workgroup_id_x 1
  .amdhsa_float_denorm_mode_32 3
.end_amdhsa_kernel
"""
open(sys.argv[1], "w").write(out)
print("wrote", sys.argv[1], len(e.lines), "lines;", len(probs), "hazards; LDS end", LDS_END, file=sys.stderr)
```

```python
import sys, struct
from asmlib import Emit, v, s, check_cfg

KN = "standalone__cheap_equivariant_egnn__graph"
OPT = dict(stamps=False, ramp=(3, 16, 34), bpf=1, pollat=2, lcat="fetch", posat=("b2",3,1), zs=(2,6), wdat=0, otr=False, otouch=0, p2at="win", pall=0, stag=True)
for a in sys.argv[2:]:
    k, _, val = a.partition("=")
    try: OPT[k] = eval(val) if val else True
    except Exception: OPT[k] = val

def fbits(x): return struct.unpack("<I", struct.pack("<f", x))[0]
LOG2E = 1.4426950408889634; LN2 = 0.6931471805599453
NL2E = hex(fbits(-LOG2E)); NLN2 = hex(fbits(-LN2))

NWG = 250; CH = 2560; NB = 40; DEP = 2
CHB = 13696
CNT1 = 0x0; OFF1 = 0x400; CNT2 = 0x800; LNK = 0x900; BASE2 = 0xA00; PD = 0xB00; WXT = 0xE00
STB = 0x1000; R2 = 0x2000; ACC = R2 + 32768; ACCS = 304
BF = ACC + NB * ACCS; AT = BF + 8 * ACCS; ATS = 104; WL = AT + 64 * ATS; WXL = WL + 256
POS = WL + 384; STG = R2; SORT2 = POS + 61440; CAPB = 3888 * 8; R1 = SORT2 + CAPB + 512; LDS_END = R1 + 8192
PADB = 32 * 8; NARROW = 48
assert NWG * 9 * 8 + NB * PADB <= CAPB and POS + 4 < 65536
WE = SORT2; WH = WE + 16384; HB = WH + 16384
OOB = 0x100000
LDS_SIZE = 163840
assert LDS_END <= LDS_SIZE and HB + 6144 <= LDS_END and R2 % 64 == 0 and WE % 128 == 0
WS_OFF = 0x10000; WS_BP = 0x80000; WS_REC = 0x200000; WS_STAMP = 0x1000000
TAGC = 0x9E3779B1; M3 = 0xFF030303
sH, sPOS, sE, sSRC, sDST, sWE, sWX, sWH, sOUT, sDBG, sWS = 4, 6, 8, 10, 12, 14, 16, 18, 20, 22, 24
sW, sB = 26, 27
srdBP, srdPOS, srdH = 28, 32, 36
sTAG, sMULTI, sBUD, sWID, sONCE, sN0, sNG, sCHF = 40, 41, 42, 43, 44, 45, 46, 47
sOHC, sNFW, sNLW, sCNT, sBASE, sNF, sNL, sNEG, sMORE, sVAL = 48, 50, 51, 52, 53, 54, 55, 56, 57, 58
sT = 36
sOM = 4; sPF = 6; sRB = 8; sSLOW = 16; sANYB = 17; sC10K = 18
sMK = 64
T = [16, 32]; E = [48, 64]; AC = [80, 96]; M = [112, 116]; G = [120, 128]; S = [152, 156, 160, 164]
R1OP = 168; WX = 172; I0 = 176; I1 = 180; ONE = 184; IDX = 186
aIdx, aRec, aR1r, aS0, aS1, aR1w, aR2b, aR2, aATb, aAT = 188, 189, 190, 191, 192, 193, 194, 195, 196, 197
vRowM, vRowP = 198, 199
REC = 200; R2V = 204; PS = 206; vSrc = 208; vFO = 209; PDV = 210; BT = 213; ZP = 216; vIdxL = 218; vFA = 219
SEG = 220; vMask = 224; vWxa = 225; H1 = 226; vPosOwn = 230; HRES = 234; WH2 = 238; vLane = 254; vAItem = 255
vOA = 12; vFB = 3
L = vLane
SD = "dst_sel:DWORD dst_unused:UNUSED_PAD"

e = Emit()
def stamp(i, last=False, wait=False):
    if OPT.get("diag") is not None:
        a_, b_, neg = OPT["diag"]
        if i == 0: e("s_memrealtime s[98:99]")
        tm = "s_memtime" if OPT.get("dcyc") else "s_memrealtime"
        if i == a_: e(tm + " s[100:101]")
        if i == b_: e(tm + " s[22:23]")
        if last:
            stamp.n = getattr(stamp, "n", 0) + 1
            if b_ == 99: e("s_waitcnt vmcnt(0)\ns_memrealtime s[22:23]")
            e("s_waitcnt lgkmcnt(0)\ns_sub_u32 s101, s22, s100")
            if OPT.get("dcyc"): e("s_lshr_b32 s101, s101, 4")
            if OPT.get("dwg") is not None: e(f"s_cmp_eq_u32 s2, {OPT['dwg']}\ns_cselect_b32 s101, s101, 0")
            if neg: e(f"s_sub_u32 s101, {neg}, s101\ns_max_i32 s101, s101, 0")
            e("s_min_u32 s101, s101, 5000\ns_lshl_b32 s101, s101, 3\ns_add_u32 s101, s101, 3000")
            e.label(f"L_spin{stamp.n}")
            e("s_memrealtime s[22:23]\ns_waitcnt lgkmcnt(0)\ns_sub_u32 s22, s22, s98\ns_cmp_lt_u32 s22, s101")
            e(f"s_cbranch_scc1 L_spin{stamp.n}")
        return
    if not OPT["stamps"]: return
    if wait: e("s_waitcnt lgkmcnt(0)")
    if i > 0:
        e("s_mov_b32 m0, s101\nv_writelane_b32 v15, s98, m0\nv_writelane_b32 v14, s22, m0")
    e("s_memrealtime s[98:99]")
    if i > 0: e("s_memtime s[22:23]")
    e(f"s_mov_b32 s101, {i}")
    if i in (6, 7, 9): e(f"v_writelane_b32 v15, s{sBUD}, {16+i}")
    if i == 10: e(f"s_add_u32 s100, s{sCNT}, {DEP-4}\nv_writelane_b32 v15, s100, 26")
    if last:
        e("s_mov_b64 exec, -1\ns_waitcnt lgkmcnt(0)")
        e(f"v_writelane_b32 v15, s98, {i}\nv_writelane_b32 v14, s22, {i}")
        e(f"s_lshl_b32 s100, s2, 3\ns_add_u32 s100, s100, s{sW}\ns_lshl_b32 s100, s100, 7\ns_add_u32 s100, s100, {WS_STAMP}")
        e(f"v_lshl_add_u32 v13, v{L}, 2, s100\ns_mov_b32 exec_hi, 0")
        e(f"global_store_dword v13, v15, {s(sWS,2)}\nv_add_u32 v13, 0x100000, v13\nglobal_store_dword v13, v14, {s(sWS,2)}")

def fine(i, g=1):
    if OPT.get("diag") is not None: stamp(10 + 10*g + i)
    if OPT.get("fine") == g: e(f"s_memtime s[{72+2*i}:{73+2*i}]")
def finedump(n, g=1):
    if OPT.get("fine") == g:
        for i in range(n): e(f"s_nop 0\nv_writelane_b32 v14, s{72+2*i}, {16+i}")
def scan(r, fill=()):
    fill = list(fill)
    for m in ("row_shr:1 row_mask:0xf bank_mask:0xf bound_ctrl:1", "row_shr:2 row_mask:0xf bank_mask:0xf bound_ctrl:1",
              "row_shr:4 row_mask:0xf bank_mask:0xf bound_ctrl:1", "row_shr:8 row_mask:0xf bank_mask:0xf bound_ctrl:1",
              "row_bcast:15 row_mask:0xa bank_mask:0xf", "row_bcast:31 row_mask:0xc bank_mask:0xf"):
        if len(fill) >= 2:
            e(fill.pop(0)); e(fill.pop(0))
        else: e("s_nop 1")
        e(f"v_add_u32_dpp v{r}, v{r}, v{r} {m}")
    assert not fill

DSTR = 16; SRCR = 24; ER = 32; XB = 36; QQ = 42; B4 = 48; RK = 56
WA0 = 64; WA1 = 65; WA2 = 66; HA = 67; CA0 = 68; PBA = 69; TCH = 70; vTG = 71; HF = 72
WT = 80; DT = 112; W1T = 96; aWH = 144; aWT = 148; PB = 152; ZQ = 156
stamp(0)
e(f"s_cmp_ge_u32 s2, {NWG}")
e("s_cbranch_scc1 L_end")
e("s_load_dwordx16 s[4:19], s[0:1], 0")
e("s_load_dwordx4 s[20:23], s[0:1], 64")
e("s_load_dwordx2 s[24:25], s[0:1], 80")
e("s_getpc_b64 s[62:63]")
e.label("L_pc")
e("v_lshlrev_b32 v5, 5, v0")
e("v_min_u32 v5, L_end-L_pc, v5")
e("s_mov_b32 exec_lo, 0x11111111")
e("s_mov_b32 exec_hi, 0x11111111")
e(f"global_load_dword v{TCH}, v5, s[62:63]")
e("s_mov_b64 exec, -1")
e(f"s_mul_i32 s3, s2, {CH*4}")
e("v_lshl_add_u32 v8, v0, 4, s3")
e(f"s_add_u32 s60, s3, 8192")
e("v_lshl_add_u32 v9, v0, 2, s60")
e("s_lshr_b32 s3, s3, 1")
e("v_lshl_add_u32 v10, v0, 3, s3")
e("s_add_u32 s60, s3, 4096")
e("v_lshl_add_u32 v11, v0, 1, s60")
e("v_lshrrev_b32 v5, 6, v0")
e(f"v_and_b32 v{L}, 63, v0")
e(f"v_readfirstlane_b32 s{sW}, v5")
e(f"v_mov_b32 v{ZP}, 0")
e(f"v_mov_b32 v{ZP+1}, 0")
e("v_lshlrev_b32 v12, 4, v0")
e("v_lshlrev_b32 v5, 3, v0")
e(f"ds_write_b64 v5, {v(ZP,2)}")
e("s_and_b32 s60, s2, 7")
e(f"s_mul_i32 s{sB}, s60, 31")
e("s_min_u32 s60, s60, 2")
e(f"s_add_u32 s{sB}, s{sB}, s60")
e("s_lshr_b32 s96, s2, 3")
e(f"s_add_u32 s{sB}, s{sB}, s96")
e(f"s_mul_i32 s{sN0}, s{sB}, {NB}")
e(f"v_and_b32 v5, 16, v{L}")
e("v_and_b32 v6, 64, v0")
e("v_lshl_or_b32 v5, v5, 1, v6")
e(f"v_xor_b32 v{WA0}, v5, v12")
e(f"v_add_u32 v{WA1}, 8192, v{WA0}")
e(f"v_lshlrev_b32 v5, 1, v{L}")
e(f"s_lshl_b32 s60, s{sN0}, 7")
e("v_and_b32 v5, 0x70, v5")
e(f"v_xad_u32 v{HA}, v5, v12, s60")
e(f"s_lshl_b32 s60, s{sW}, 10")
e(f"s_add_u32 m0, s60, {WE+8192}")
e("s_waitcnt lgkmcnt(0)")
e(f"global_load_dwordx4 {v(DSTR,4)}, v8, {s(sDST,2)}")
e(f"global_load_dword v{DSTR+4}, v9, {s(sDST,2)}")
if OPT["stag"]: e(f"s_load_dword s{sTAG}, {s(sWS,2)}, 0")
e(f"s_mov_b32 s{srdH}, s{sH}")
e(f"s_and_b32 s{srdH+1}, s{sH+1}, 0xffff")
e(f"s_mov_b32 s{srdH+2}, 1280000")
e(f"s_mov_b32 s{srdH+3}, 0x20000")
e(f"s_cmp_ge_u32 s{sW}, 6")
e(f"global_load_lds_dwordx4 v{WA1}, {s(sWE,2)}")
e("s_cbranch_scc1 L_d67")
e(f"s_add_u32 m0, s60, {HB}")
e("s_nop 0")
e(f"buffer_load_dwordx4 v{HA}, {s(srdH,4)}, 0 offen lds")
e("s_branch L_ddone")
e.label("L_d67")
e(f"s_add_u32 s62, s{sWE}, 16384")
e(f"s_addc_u32 s63, s{sWE+1}, 0")
e(f"v_lshlrev_b32 v5, 4, v{L}")
e(f"s_cmp_eq_u32 s{sW}, 7")
e(f"s_cselect_b64 s[62:63], {s(sWX,2)}, s[62:63]")
e(f"s_cselect_b32 s61, 256, 0")
e(f"s_cselect_b32 s97, 8, 16")
e(f"s_add_u32 m0, s61, {WL}")
e("s_bfm_b64 exec, s97, 0")
e(f"global_load_lds_dwordx4 v5, s[62:63]")
e("s_mov_b64 exec, -1")
e.label("L_ddone")
e("s_barrier")
e(f"global_load_dwordx4 {v(SRCR,4)}, v8, {s(sSRC,2)}")
e(f"global_load_dword v{SRCR+4}, v9, {s(sSRC,2)}")
e(f"global_load_dwordx2 {v(ER,2)}, v10, {s(sE,2)}")
e(f"global_load_short_d16_hi v{ER+2}, v11, {s(sE,2)}")
TV = 0 if OPT["stag"] else 1
if TV: e(f"global_load_dword v{vTG}, v{ZP}, {s(sWS,2)}")
stamp(1)
for i in range(4): e(f"v_mov_b32 v{ZQ+i}, 0")
assert R2 + 6*8192 >= AT and R2 + 6*8192 <= WL
e(f"ds_write_b128 v{ZP}, {v(ZQ,4)} offset:{STG+853*16}")
def zero(lo, hi):
    e("v_lshlrev_b32 v5, 4, v0")
    for i in range(lo, hi):
        if i == 5:
            e(f"v_cmp_gt_u32 vcc, {(AT - R2 - 5*8192)//16}, v0")
            e("s_mov_b64 exec, vcc")
        e(f"ds_write_b128 v5, {v(ZQ,4)} offset:{R2+i*8192}")
    if hi == 6: e("s_mov_b64 exec, -1")
Z0, Z1 = OPT["zs"]
if Z0 > 2: zero(2, Z0)
e(f"s_mov_b32 s{srdPOS}, s{sPOS}")
e(f"s_and_b32 s{srdPOS+1}, s{sPOS+1}, 0xffff")
e(f"s_mov_b32 s{srdPOS+2}, 60000")
e(f"s_mov_b32 s{srdPOS+3}, 0x20000")
PT = 1 if OPT.get("ptouch") else 0
if PT:
    e("s_lshl_b32 s61, s96, 11")
    e("v_lshl_add_u32 v5, v0, 2, s61")
    e("s_mov_b32 exec_lo, 1")
    e("s_mov_b32 exec_hi, 1")
    e(f"buffer_load_dword v{TCH}, v5, {s(srdPOS,4)}, 0 offen")
    e("s_mov_b64 exec, -1")
e(f"s_mul_i32 s{sCHF}, s{sW}, 86")
e(f"s_lshr_b32 s{sCHF}, s{sCHF}, 8")
e(f"s_mul_i32 s61, s{sCHF}, 3")
e(f"s_sub_u32 s{sNG}, s{sW}, s61")
e(f"s_and_b32 s61, s{sW}, 3")
e("s_lshl_b32 s61, s61, 1")
e(f"s_lshr_b32 s62, s{sW}, 2")
e("s_add_u32 s61, s61, s62")
e("s_lshl_b32 s61, s61, 8")
e("s_add_u32 s61, s61, 8192")
e(f"v_and_b32 v5, 0x70, v{WA0}")
e(f"v_bfe_u32 v6, v{L}, 3, 2")
e("v_lshl_add_u32 v5, v6, 11, v5")
e(f"v_lshrrev_b32 v6, 5, v{L}")
e("v_lshl_add_u32 v5, v6, 7, v5")
e(f"v_add_u32 v{WA2}, s61, v5")
e(f"v_and_b32 v1, 15, v{L}")
e(f"v_lshrrev_b32 v3, 4, v{L}")
e(f"s_lshl_b32 s61, s{sNG}, 11")
e(f"s_add_u32 s61, s61, {HB}")
e(f"v_and_b32 v2, 7, v{L}")
e("v_xor_b32 v2, v2, v3")
e("v_lshl_add_u32 v4, v1, 7, s61")
e(f"v_lshl_add_u32 v{aWH+1}, v2, 4, v4")
e(f"v_xor_b32 v{aWH+2}, 64, v{aWH+1}")
e(f"v_bfe_u32 v6, v{L}, 2, 2")
e(f"v_and_b32 v2, 3, v{L}")
e("v_lshl_add_u32 v4, v3, 3, v6")
e(f"v_lshlrev_b32 v7, 2, v{L}")
e("v_and_b32 v7, 0x60, v7")
e(f"s_xor_b32 s61, s{sCHF}, 1")
e("s_lshl_b32 s61, s61, 13")
e(f"s_add_u32 s61, s61, {WE}")
e("v_lshl_add_u32 v5, v4, 7, s61")
e("v_lshl_add_u32 v5, v2, 3, v5")
e(f"v_xor_b32 v{aWT}, v7, v5")
for t in range(1, 4): e(f"v_xor_b32 v{aWT+t}, {32*t}, v{aWT}")
e(f"s_lshl_b32 s61, s{sCHF}, 6")
e(f"s_add_u32 s61, s61, {WH}")
e("v_lshl_add_u32 v6, v2, 4, s61")
e("v_lshl_add_u32 v5, v4, 7, v6")
e(f"v_xor_b32 v{aWH}, v7, v5")
e(f"s_lshl_b32 s61, s{sNG}, 4")
e(f"s_add_u32 s61, s61, s{sN0}")
e("s_lshl_b32 s61, s61, 7")
e(f"s_add_u32 s61, s61, {WS_BP}")
e("v_lshl_add_u32 v2, v3, 9, s61")
e(f"v_lshl_add_u32 v{aWH+3}, v1, 3, v2")
e(f"v_lshrrev_b32 v1, 5, v{L}")
e(f"v_and_b32 v7, 3, v{L}")
e(f"v_bfe_u32 v6, v{L}, 3, 2")
e("v_lshlrev_b32 v6, 2, v6")
e("v_lshl_add_u32 v7, v7, 4, v6")
e(f"v_bfe_u32 v6, v{L}, 2, 1")
e("v_add_u32 v7, v7, v6")
e("v_lshl_add_u32 v7, v1, 1, v7")
e(f"v_lshlrev_b32 v{CA0}, 1, v7")
e(f"v_mul_u32_u24 v{aATb}, {ATS}, v7")
e(f"v_add_u32 v{aATb}, {AT}, v{aATb}")

def laneconsts():
    e(f"s_add_u32 s{srdBP}, s{sWS}, {WS_BP}")
    e(f"s_addc_u32 s{srdBP+1}, s{sWS+1}, 0")
    e(f"s_and_b32 s{srdBP+1}, s{srdBP+1}, 0xffff")
    e(f"s_or_b32 s{srdBP+1}, s{srdBP+1}, 0x800000")
    e(f"s_mov_b32 s{srdBP+2}, 10000")
    e(f"s_mov_b32 s{srdBP+3}, 0x20000")
    e(f"s_mov_b32 s{sMULTI}, 0")
    e(f"s_mov_b32 s{sOHC}, 0x3f80")
    e(f"s_mov_b32 s{sOHC+1}, 0")
    e(f"s_movk_i32 s{sWID}, 0x80")
    e(f"s_mov_b32 s{sONCE}, 0")
def laneconsts2():
    e(f"v_lshrrev_b32 v1, 5, v{L}")
    e(f"v_and_b32 v2, 1, v{L}")
    e(f"v_lshlrev_b32 v{vWxa}, 7, v1")
    e(f"v_lshlrev_b32 v3, 5, v1")
    e(f"v_lshl_add_u32 v{IDX+1}, v2, 4, v3")
    e(f"v_bfe_u32 v4, v{L}, 3, 2")
    e(f"v_bfe_u32 v5, v{L}, 1, 1")
    e("v_lshl_add_u32 v4, v4, 1, v5")
    e(f"v_bfe_u32 v5, v{L}, 2, 1")
    e("v_lshl_add_u32 v4, v5, 3, v4")
    e(f"v_lshlrev_b32 v{vIdxL}, 3, v4")
    e(f"s_lshl_b32 s61, s{sW}, 10")
    e(f"s_add_u32 s61, s61, {R1}")
    e(f"v_lshl_add_u32 v{aR1r}, v4, 4, s61")
    e("v_xor_b32 v5, v1, v2")
    e(f"v_lshl_add_u32 v{aR1r}, v5, 20, v{aR1r}")
    e(f"v_lshl_add_u32 v{aR1w}, v{L}, 4, s61")
    e(f"s_lshl_b32 s61, s{sW}, 12")
    e(f"s_add_u32 s61, s61, {R2}")
    e(f"v_bfe_u32 v3, v{L}, 1, 3")
    e(f"v_lshl_add_u32 v4, v{L}, 6, s61")
    e(f"v_lshl_add_u32 v{aR2b}, v3, 3, v4")
    e(f"v_mov_b32 v{aR2}, v{aR2b}")
    e(f"v_bfe_u32 v3, v{L}, 2, 2")
    e(f"v_and_b32 v4, 3, v{L}")
    e(f"v_bfe_u32 v5, v{L}, 4, 1")
    e("v_lshl_add_u32 v5, v5, 2, v4")
    e("v_lshrrev_b32 v7, 1, v3")
    e("v_lshl_add_u32 v7, v1, 2, v7")
    e("v_xor_b32 v5, v5, v7")
    e("v_lshl_add_u32 v7, v1, 3, v3")
    e("v_lshl_add_u32 v7, v7, 6, s61")
    e(f"v_lshl_add_u32 v{aS0}, v5, 3, v7")
    e(f"v_xor_b32 v{aS1}, 16, v{aS0}")
    e(f"v_add_u32 v{aS1}, 256, v{aS1}")
    e(f"v_and_b32 v4, 31, v{L}")
    e("v_lshlrev_b32 v7, 3, v1")
    e("v_sub_u32 v7, v4, v7")
    e("v_lshlrev_b32 v4, 4, v2")
    e(f"v_lshlrev_b32 v4, v4, s{sOHC}")
    e("v_ashrrev_i32 v7, 1, v7")
    for u, I in ((0, I0), (1, I1)):
        for d in range(4): e(f"v_cmp_eq_u32 {s(sMK+2*d,2)}, {8*u+d}, v7")
        for d in range(4): e(f"v_cndmask_b32 v{I+d}, 0, v4, {s(sMK+2*d,2)}")
    e("v_xor_b32 v7, 1, v1")
    e(f"v_mul_u32_u24 v{ONE}, {OPT.get('aov', 0x3f80)}, v7")
    if OPT.get("aoall"): e(f"v_mov_b32 v{ONE}, 0x3f80")
    e(f"v_mov_b32 v{ONE+1}, 0")
if OPT["lcat"] == "start": laneconsts(); laneconsts2()
e("v_mov_b32 v13, 1")
e("s_mov_b32 s61, 52429")
e("s_movk_i32 s62, -40")
e(f"v_lshlrev_b32 v1, 4, v{L}")
e(f"s_lshl_b32 s63, s2, 10")
e(f"s_add_u32 s63, s63, {WS_OFF}")
e(f"v_add_u32 v{PBA}, s63, v1")
def wdma():
    for base, a, ptr in ((WE, WA0, sWE), (WH, WA0, sWH), (WH+8192, WA2, sWH)):
        e(f"s_add_u32 m0, s60, {base}")
        e("s_nop 0")
        e(f"global_load_lds_dwordx4 v{a}, {s(ptr,2)}")
W0 = 3 if OPT["wdat"] == -1 else 0
W1 = 3 if OPT["wdat"] <= 0 else 0
if OPT["wdat"] == -1: wdma()
e(f"s_waitcnt vmcnt({6+TV+W0+PT})")
stamp(14)
for i in range(5): e(f"v_mul_u32_u24 v{B4+i}, s61, v{DSTR+i}")
for i in range(5): e(f"v_lshrrev_b32 v{B4+i}, 21, v{B4+i}")
for i in range(5):
    e(f"v_lshlrev_b32 v{B4+i}, 2, v{B4+i}")
    e(f"ds_add_rtn_u32 v{RK+i}, v{B4+i}, v13 offset:{CNT1}")
if OPT["wdat"] == 0: wdma()
e(f"s_cmp_ge_u32 s{sW}, 3")
spare = f"ds_read_b32 v{vTG}, v{ZP}"
if not TV: e(spare)
e(f"s_waitcnt vmcnt({4+TV+W1+PT}) lgkmcnt({1-TV})")
e("s_barrier")
stamp(2)
def nodeprod_reads():
    e(f"ds_read_b128 {v(HF,4)}, v{aWH+1}")
    e(f"ds_read_b128 {v(HF+4,4)}, v{aWH+2}")
    for t in range(4):
        for ks in range(2):
            for rd in range(2):
                e(f"ds_read_b64_tr_b16 {v(WT+8*t+4*ks+2*rd,2)}, v{aWT+t} offset:{ks*4096+rd*512}")
def nodeprod(extra=0):
    e(f"s_mov_b32 s96, {NL2E}")
    for t in range(4):
        e(f"s_waitcnt lgkmcnt({12-4*t+extra})")
        e(f"v_mfma_f32_16x16x32_bf16 {v(DT+4*t,4)}, {v(HF,4)}, {v(WT+8*t,4)}, 0")
        e(f"v_mfma_f32_16x16x32_bf16 {v(DT+4*t,4)}, {v(HF+4,4)}, {v(WT+8*t+4,4)}, {v(DT+4*t,4)}")
def nodescale():
    for i in range(8): e(f"v_pk_mul_f32 {v(DT+2*i,2)}, {v(DT+2*i,2)}, s[96:97] op_sel_hi:[1,0]")
e("s_cbranch_scc1 L_nobp")
nodeprod_reads()
e(f"ds_read_b128 v[4:7], v1 offset:{CNT1}")
if not TV: e(spare)
if OPT["wdat"] == 1: wdma()
nodeprod(2-TV)
e(f"s_cmp_eq_u32 s{sNG}, 2")
e("s_cselect_b32 s63, 0, -1")
nodescale()
for r in range(4):
    e(f"v_cvt_pk_bf16_f32 v{WT+2*r}, v{DT+r}, v{DT+4+r}")
    e(f"v_cvt_pk_bf16_f32 v{WT+2*r+1}, v{DT+8+r}, v{DT+12+r}")
e("s_mov_b32 exec_hi, s63")
for r in range(4): e(f"global_store_dwordx2 v{aWH+3}, {v(WT+2*r,2)}, {s(sWS,2)} offset:{r*128} sc1")
e("s_mov_b64 exec, -1")
e("s_branch L_bpdone")
e.label("L_nobp")
e(f"ds_read_b128 v[4:7], v1 offset:{CNT1}")
if not TV: e(spare)
if OPT.get("prew"):
    e(f"s_cmp_lg_u32 s{sW}, 7")
    e("s_cbranch_scc1 L_bpdone")
    e(f"global_store_dwordx4 v{PBA}, {v(ZQ,4)}, {s(sWS,2)} sc1")
if OPT["wdat"] == 1: wdma()
e.label("L_bpdone")
fine(0)
e(f"s_waitcnt lgkmcnt({1-TV})")
fine(1)
e("v_add_u32 v5, v4, v5")
e("v_add_u32 v6, v5, v6")
e("v_add_u32 v7, v6, v7")
e("v_mov_b32 v3, v7")
scan(3, [f"v_lshlrev_b32 v{XB+i}, 2, v{DSTR+i}" for i in range(5)] +
        [f"v_mad_i32_i24 v{XB+i}, v{B4+i}, s62, v{XB+i}" for i in range(5)] +
        ["s_mov_b32 s63, 0xffff0000", "s_movk_i32 s61, 21846"])
e("v_sub_u32 v8, v3, v7")
e("v_add_u32 v9, v8, v4")
e("v_add_u32 v10, v8, v5")
e("v_add_u32 v11, v8, v6")
e(f"ds_write_b128 v1, v[8:11] offset:{OFF1}")
for i in range(5): e(f"ds_read_b32 v{B4+i}, v{B4+i} offset:{OFF1}")
fine(2)
PN = OPT["pall"]
if PN:
    e(f"s_mul_i32 s97, s{sW}, {PN*1024}")
    e(f"s_add_u32 m0, s97, {POS}")
e(f"s_cmp_ge_u32 s{sW}, 3")
for i in range(PN): e(f"buffer_load_dwordx4 v1, {s(srdPOS,4)}, s97 offen offset:{i*1024} lds")
e(f"s_waitcnt vmcnt({7+TV+PN+PT})")
e("s_cbranch_scc0 L_srcin")
e(f"s_waitcnt vmcnt({3+TV+PN+PT})")
e.label("L_srcin")
fine(3)
e(f"v_lshl_or_b32 v{SRCR}, v{ER}, 16, v{SRCR}")
e(f"v_and_or_b32 v{SRCR+1}, v{ER}, s63, v{SRCR+1}")
e(f"v_lshl_or_b32 v{SRCR+2}, v{ER+1}, 16, v{SRCR+2}")
e(f"v_and_or_b32 v{SRCR+3}, v{ER+1}, s63, v{SRCR+3}")
e(f"v_or_b32 v{SRCR+4}, v{ER+2}, v{SRCR+4}")
for i in range(5):
    e(f"s_waitcnt lgkmcnt({4+i})")
    e(f"v_add_u32 v{B4+i}, v{B4+i}, v{RK+i}")
    e(f"v_mul_u32_u24 v{QQ+i}, s61, v{B4+i}")
    e(f"v_add_u32_sdwa v{QQ+i}, v{B4+i}, v{QQ+i} {SD} src0_sel:DWORD src1_sel:WORD_1")
    e(f"v_lshlrev_b32 v{RK+i}, 2, v{QQ+i}")
    e(f"ds_write_b8 v{QQ+i}, v{XB+i} offset:{STB}")
    e(f"ds_write_b32 v{RK+i}, v{SRCR+i} offset:{STG}")
fine(4)
e(f"s_cmp_lg_u32 s{sW}, 7")
e("s_cbranch_scc1 L_nopb")
for r in (8, 9, 10, 11, 3):
    e(f"v_mul_u32_u24 v2, s61, v{r}")
    e("v_lshrrev_b32 v2, 16, v2")
    e(f"v_add_lshl_u32 v{r}, v{r}, v2, 2")
e(f"v_lshl_or_b32 v{PB}, v9, 16, v8")
e(f"v_lshl_or_b32 v{PB+1}, v11, 16, v10")
e(f"v_mov_b32 v{PB+2}, v3")
e.label("L_nopb")
e(f"s_mul_i32 s60, s2, {CHB}")
e(f"s_lshl_b32 s97, s{sW}, 12")
e("s_add_u32 s60, s60, s97")
e(f"s_add_u32 s60, s60, {WS_REC}")
e("v_add_u32 v2, s60, v1")
e("v_add_u32 v4, s97, v1")
e(f"v_add_u32 v3, {STG}, v4")
e("v_lshrrev_b32 v4, 2, v4")
e("v_mov_b32 v5, 0xfcfcfc")
e(f"s_cmp_eq_u32 s{sW}, 3")
e(f"s_cselect_b64 vcc, {(1 << ((CHB-13312)//16)) - 1}, -1")
e("s_cselect_b64 s[62:63], 0, -1")
fine(5)
e(f"s_waitcnt vmcnt({PN})")
fine(6)
def posloop(name, w0, nw):
    e(f"s_sub_u32 s61, s{sW}, {w0}")
    e(f"s_cmp_ge_u32 s61, {nw}")
    e(f"s_cbranch_scc1 L_{name}e")
    e("s_lshl_b32 s61, s61, 12")
    if PN: e(f"s_add_u32 s61, s61, {PN*8192}")
    e(f"v_lshlrev_b32 v6, 4, v{L}")
    e.label(f"L_{name}")
    e(f"s_add_u32 m0, s61, {POS}")
    e("s_nop 0")
    for i in range(4): e(f"buffer_load_dwordx4 v6, {s(srdPOS,4)}, s61 offen offset:{i*1024} lds")
    e(f"s_add_u32 s61, s61, {4096*nw}")
    e("s_cmp_lt_u32 s61, 61440")
    e(f"s_cbranch_scc1 L_{name}")
    e.label(f"L_{name}e")
if OPT["posat"][0] == "b2": posloop("pl", *OPT["posat"][1:])
if TV: e(f"v_readfirstlane_b32 s{sTAG}, v{vTG}\ns_nop 0")
else: e("s_waitcnt lgkmcnt(0)")
e(f"s_add_u32 s{sTAG}, s{sTAG}, {TAGC}")
e(f"v_mov_b32 v{PB+3}, s{sTAG}")
e(f"s_and_b32 s{sT}, s{sTAG}, 0xc000")
e(f"s_lshl_b32 s60, s{sTAG}, 2")
e(f"s_and_b32 s{sT+1}, s60, 0xc000")
e(f"s_lshl_b32 s60, s{sTAG}, 4")
e(f"s_and_b32 s{sT+2}, s60, 0xc000")
e(f"s_and_b32 s{sT+3}, s{sTAG}, {M3}")
e(f"s_cmp_ge_u32 s{sW}, 4")
e("s_waitcnt lgkmcnt(0)")
fine(7)
e("s_barrier")
stamp(3)
ST = 48
e("s_cbranch_scc1 L_nost")
for i in range(4):
    e(f"ds_read_b128 {v(ST+4*i,4)}, v3 offset:{i*1024}")
    e(f"ds_read_b32 v{8+i}, v4 offset:{STB+i*256}")
for i in range(4):
    e(f"s_waitcnt lgkmcnt({6-2*i})")
    if i == 1: e("s_mov_b64 exec, vcc")
    if i == 2: e("s_mov_b64 exec, s[62:63]")
    for k in range(3): e(f"v_or_b32 v{ST+4*i+k}, s{sT+k}, v{ST+4*i+k}")
    e(f"v_and_or_b32 v{ST+4*i+3}, v{8+i}, v5, s{sT+3}")
    e(f"global_store_dwordx4 v2, {v(ST+4*i,4)}, {s(sWS,2)} offset:{i*1024} sc1")
e("s_mov_b64 exec, -1")
fine(1, 2)
e.label("L_nost")
fine(0, 2)
e(f"s_cmp_lg_u32 s{sW}, 7")
e("s_cbranch_scc1 L_nopub")
e(f"global_store_dwordx4 v{PBA}, {v(PB,4)}, {s(sWS,2)} sc1")
e.label("L_nopub")
stamp(15, wait=True)
finedump(8)
PL = 160; vPA = 164; vPW = 165
def site(n):
    if OPT["posat"][0] == f"pre{n}": posloop("pl", *OPT["posat"][1:])
    if OPT["pollat"] == n:
        pollsetup()
        fine(3, 2)
    if OPT["posat"][0] == f"post{n}": posloop("pl", *OPT["posat"][1:])
def pollsetup():
    e("v_and_b32 v1, 255, v0")
    e(f"s_lshr_b32 s60, s{sB}, 2")
    e("s_lshl_b32 s60, s60, 4")
    e(f"s_add_u32 s60, s60, {WS_OFF}")
    e(f"v_lshl_add_u32 v{vPA}, v1, 10, s60")
    e(f"s_cmp_lt_u32 s{sW}, 4")
    e("s_cbranch_scc1 L_nops")
    e(f"v_cmp_gt_u32 vcc, {NWG}, v1")
    for i in range(3): e(f"v_mov_b32 v{PL+i}, 0")
    e(f"v_mov_b32 v{PL+3}, s{sTAG}")
    e(f"v_lshlrev_b32 v{vPW}, 2, v1")
    e("s_mov_b64 exec, vcc")
    e(f"global_load_dwordx4 {v(PL,4)}, v{vPA}, {s(sWS,2)} sc1")
    e("s_mov_b64 exec, -1")
    e.label("L_nops")
e(f"s_mov_b32 s{sBUD}, 2000000")
e(f"ds_read_u16_d16_hi v{WX}, v{CA0} offset:{WL}")
e(f"ds_read_u16_d16_hi v{WX+1}, v{CA0} offset:{WL+128}")
site(0)
e(f"s_cmp_ge_u32 s{sW}, 6")
e("s_cbranch_scc1 L_w67")
e(f"s_cmp_ge_u32 s{sW}, 3")
e("s_cbranch_scc1 L_w345")
for i in range(4): e(f"v_mov_b32 v{HRES+i}, v{HF+i}")
e("s_branch L_w05")
e.label("L_w345")
nodeprod_reads()
e(f"v_and_b32 v1, 15, v{L}")
e(f"v_lshrrev_b32 v3, 4, v{L}")
e(f"s_lshl_b32 s60, s{sNG}, 5")
e(f"s_add_u32 s60, s60, {AT}")
e("v_lshl_add_u32 v2, v3, 3, s60")
e(f"v_mul_u32_u24 v1, {ATS}, v1")
e("v_add_u32 v2, v1, v2")
nodeprod()
e("s_nop 1")
nodescale()
for t in range(4):
    e(f"v_cvt_pk_bf16_f32 v{WT+2*t}, v{DT+4*t}, v{DT+4*t+1}")
    e(f"v_cvt_pk_bf16_f32 v{WT+2*t+1}, v{DT+4*t+2}, v{DT+4*t+3}")
for i in range(4): e(f"v_mov_b32 v{HRES+i}, v{HF+4+i}")
for t in range(4): e(f"ds_write_b64 v2, {v(WT+2*t,2)} offset:{t*16*ATS}")
e.label("L_w05")
def part2():
    for t in range(2):
        for ks in range(2):
            for rd in range(2):
                e(f"ds_read_b64_tr_b16 {v(W1T+8*t+4*ks+2*rd,2)}, v{aWH} offset:{ks*4096+rd*512+t*8}")
    for t in range(2):
        for c in range(2):
            for rd in range(2):
                e(f"ds_read_b64_tr_b16 {v(WH2+8*t+4*c+2*rd,2)}, v{aWH} offset:{(2+c)*4096+rd*512+t*8}")
    e(f"s_lshl_b32 s60, s{sNG}, 4")
    e(f"v_and_b32 v1, 15, v{L}")
    e(f"v_add_lshl_u32 v{vAItem}, v1, s60, 2")
    e("s_waitcnt lgkmcnt(8)")
    for t in range(2):
        e(f"v_mfma_f32_16x16x32_bf16 {v(H1+4*t,4)}, {v(W1T+8*t,4)}, {v(HF,4)}, 0")
        e(f"v_mfma_f32_16x16x32_bf16 {v(H1+4*t,4)}, {v(W1T+8*t+4,4)}, {v(HF+4,4)}, {v(H1+4*t,4)}")
    e(f"v_and_b32 v2, 48, v{L}")
    e(f"v_lshlrev_b32 v{vFO}, 1, v2")
    e(f"v_add_u32 v{vFO}, {BF}, v{vFO}")
    e(f"s_lshl_b32 s60, s{sN0}, 1")
    e(f"s_add_u32 s60, s60, s{sCHF}")
    e("s_lshl_b32 s60, s60, 6")
    if OPT["otr"]:
        e(f"s_lshl_b32 s61, s{sNG}, 4")
        e(f"v_lshrrev_b32 v2, 2, v{L}")
        e("v_add_u32 v2, s61, v2")
        e(f"v_cmp_gt_u32 {s(sOM,2)}, {NB}, v2")
        e("v_lshl_add_u32 v2, v2, 7, s60")
        e(f"v_and_b32 v1, 3, v{L}")
        e(f"v_lshl_add_u32 v{vOA}, v1, 4, v2")
    else:
        e(f"v_lshl_add_u32 v2, v{vAItem}, 5, v2")
        e(f"v_add_u32 v{vOA}, s60, v2")
        e(f"s_movk_i32 s60, {NB*4}")
        e(f"v_cmp_gt_u32 {s(sOM,2)}, s60, v{vAItem}")
    for i in range(4): e(f"v_pk_mul_f32 {v(H1+2*i,2)}, {v(H1+2*i,2)}, s[96:97] op_sel_hi:[1,0]")
def part3():
    e(f"v_mul_u32_u24 v1, {ACCS//4}, v{vAItem}")
    e(f"v_add_u32 v1, {ACC-BF}, v1")
    e(f"v_add_u32 v{vFA}, v1, v{vFO}")
    e(f"v_mul_f32 v{WX}, {NL2E}, v{WX}")
    e(f"v_mul_f32 v{WX+1}, {NL2E}, v{WX+1}")
    e(f"v_cvt_pk_bf16_f32 v1, v{WX}, v{WX}")
    e("v_and_b32 v1, 0xffff0000, v1")
    e(f"v_sub_f32 v2, v{WX}, v1")
    e(f"v_cvt_pk_bf16_f32 v{WX}, v1, v2")
    e(f"v_cvt_pk_bf16_f32 v{WX+1}, 0, v{WX+1}")
if OPT["p2at"] == "win": part2()
e("s_branch L_wdone")
e.label("L_w67")
e(f"ds_read_u16_d16_hi v4, v{CA0} offset:{WXL}")
e("v_and_b32 v6, 127, v0")
e(f"v_min_u32 v7, 119, v6")
e(f"s_mul_i32 s60, s{sB}, 240")
e(f"v_lshl_add_u32 v1, v7, 1, s60")
e(f"global_load_short_d16_hi v{vPosOwn}, v1, {s(sPOS,2)}")
e("s_add_u32 s60, s60, 1280000")
e(f"v_lshl_add_u32 v{vOA}, v6, 1, s60")
e("s_movk_i32 s60, 120")
e(f"v_cmp_gt_u32 {s(sOM,2)}, s60, v6")
e(f"v_mul_u32_u24 v1, 171, v7")
e("v_lshrrev_b32 v1, 9, v1")
e(f"v_mad_i32_i24 v2, v1, -3, v7")
e(f"v_lshlrev_b32 v{vAItem}, 2, v1")
e(f"v_lshl_add_u32 v{H1}, v2, 8, v{vAItem}")
e(f"v_lshlrev_b32 v{vFO}, 3, v2")
e(f"v_add_u32 v{vFO}, {BF+256}, v{vFO}")
e(f"v_bfe_u32 v1, v{L}, 2, 1")
e(f"v_lshrrev_b32 v2, 3, v{L}")
e(f"v_and_b32 v3, 3, v{L}")
e("v_lshl_add_u32 v2, v2, 2, v3")
e("v_lshl_add_u32 v2, v1, 5, v2")
e("v_lshlrev_b32 v2, 2, v2")
e("s_waitcnt lgkmcnt(0)")
e(f"v_mul_f32 v4, {NLN2}, v4")
e(f"ds_write_b32 v2, v4 offset:{WXT}")
e.label("L_wdone")
stamp(4, wait=True)
site(1)
if OPT["p2at"] == "win": part3()
if OPT["lcat"] != "start": laneconsts()
if OPT["lcat"] == "win": laneconsts2()
RA = 16; XP = 36; KA = 80; LK = 96; AD = 112; RR = 117; DD = 122; LN = 127; vSB = 132; vJ = 133; vPF = 134
mk = lambda p, k: sMK + 2 * (3 * p + k)
sLB = sMK + 30
def presets(ps):
    for p in ps:
        for k in range(4): e(f"v_mov_b32 v{RA+4*p+k}, s{sT+k}")
def batchsetup():
    e("v_lshrrev_b32 v1, 3, v0")
    e("v_and_b32 v2, 7, v0")
    e(f"v_lshlrev_b32 v{vJ}, 4, v2")
    e(f"v_mul_u32_u24 v1, {CHB}, v1")
    e(f"v_add_u32 v{vSB}, v1, v{vJ}")
    presets(range(4))
batchsetup()
for p in range(4):
    e(f"s_add_u32 s{sRB+2*p}, s{sWS}, {WS_REC + p*64*CHB}")
    e(f"s_addc_u32 s{sRB+2*p+1}, s{sWS+1}, 0")
e("s_andn2_b32 s60, s2, 7")
e(f"s_add_u32 s60, s60, s{sW}")
e("s_mul_i32 s60, s60, 41")
e(f"v_add_u32 v{vPF}, s60, v{L}")
e(f"s_bfm_b64 {s(sPF,2)}, {OPT.get('pfn', 26)}, 0")
e(f"s_mov_b32 s{sC10K}, 60000")
if Z1 > Z0: zero(Z0, Z1)
site(2)
e("v_lshrrev_b32 v6, 3, v0")
e("v_lshlrev_b32 v6, 2, v6")
stamp(5, wait=True)
fine(4, 2)
if OPT.get("fine") == 2:
    e("s_waitcnt vmcnt(1)")
    fine(5, 2)
    e("s_waitcnt vmcnt(0)")
    fine(6, 2)
e(f"s_cmp_lt_u32 s{sW}, 4")
e("s_cbranch_scc1 L_b3")
e(f"s_and_b32 s3, s{sB}, 1")
e("s_lshl_b32 s3, s3, 4")
e.label("L_poll")
e(f"s_sub_u32 s{sBUD}, s{sBUD}, 1")
e("s_waitcnt vmcnt(0)")
e(f"v_cmp_ne_u32 vcc, s{sTAG}, v{PL+3}")
e("s_cbranch_scc1 L_pollout")
e("s_cbranch_vccz L_gotoff")
e("s_mov_b64 exec, vcc")
e(f"global_load_dwordx4 {v(PL,4)}, v{vPA}, {s(sWS,2)} sc1")
e("s_branch L_poll")
e.label("L_gotoff")
e("s_mov_b64 exec, -1")
e(f"s_bitcmp1_b32 s{sB}, 1")
e(f"v_alignbit_b32 v3, v{PL+1}, v{PL}, s3")
e(f"v_alignbit_b32 v4, v{PL+2}, v{PL+1}, s3")
e("s_cselect_b64 vcc, -1, 0")
e("v_cndmask_b32 v3, v3, v4, vcc")
e(f"ds_write_b32 v{vPW}, v3 offset:{OFF1}")
e(f"s_cmp_lt_u32 s{sW}, 6")
e("s_cbranch_scc1 L_b3")
e(f"ds_write_b32 v{H1}, v{vPosOwn} offset:{PD}")
e.label("L_b3")
fine(7, 2)
e("s_waitcnt lgkmcnt(0)")
e("s_barrier")
e(f"ds_read2st64_b32 {v(SEG,2)}, v6 offset0:{OFF1//256} offset1:{OFF1//256+1}")
e(f"ds_read2st64_b32 {v(SEG+2,2)}, v6 offset0:{OFF1//256+2} offset1:{OFF1//256+3}")
e("s_waitcnt lgkmcnt(0)")
stamp(6)
finedump(8, 2)
e.label("L_fetch")
for p in range(4):
    e(f"v_and_b32 v{AD+p}, 0xfff0, v{SEG+p}")
    e(f"v_sub_u32_sdwa v{RR+p}, v{SEG+p}, v{AD+p} {SD} src0_sel:WORD_1 src1_sel:DWORD")
    e(f"v_add_u32 v{AD+p}, v{AD+p}, v{vSB}")
    e(f"v_cmp_lt_i32 vcc, v{vJ}, v{RR+p}")
    e("s_mov_b64 exec, vcc")
    e(f"global_load_dwordx4 {v(RA+4*p,4)}, v{AD+p}, {s(sRB+2*p,2)} sc1")
    e("s_mov_b64 exec, -1")
e(f"v_max3_i32 v3, v{RR}, v{RR+1}, v{RR+2}")
e(f"v_max_i32 v3, v3, v{RR+3}")
e("v_mov_b32 v13, 8")
e(f"v_cmp_lt_i32 vcc, s{sWID}, v3")
e(f"s_or_b32 s{sANYB}, vcc_lo, vcc_hi")
e("s_cbranch_scc0 L_nob0")
e(f"s_cmp_eq_u32 s{sWID}, {NARROW}")
e("s_cbranch_scc1 L_narrow")
e(f"v_mov_b32 v{RR+4}, 0")
e(f"v_mov_b32 v{AD+4}, 0")
e("v_mov_b32 v4, 0")
for p in (3, 2, 1, 0):
    e(f"v_cmp_lt_i32 vcc, 0x80, v{RR+p}")
    e(f"v_add_u32 v5, {p*64*CHB}, v{AD+p}")
    e("s_nop 0")
    e(f"v_cndmask_b32 v{RR+4}, v{RR+4}, v{RR+p}, vcc")
    e(f"v_cndmask_b32 v{AD+4}, v{AD+4}, v5, vcc")
    e("v_addc_co_u32 v4, vcc, 0, v4, vcc")
e(f"v_subrev_u32 v{LN+4}, 0x80, v{RR+4}")
e(f"v_max_i32 v{LN+4}, 0, v{LN+4}")
presets([4])
e(f"v_cmp_lt_i32 {s(sLB,2)}, v{vJ}, v{LN+4}")
e("v_cmp_lt_i32 vcc, 0x100, v3")
e("v_cmp_lt_i32 s[60:61], 1, v4")
e(f"s_mov_b64 exec, {s(sLB,2)}")
e(f"global_load_dwordx4 {v(RA+16,4)}, v{AD+4}, {s(sRB,2)} offset:128 sc1")
e("s_or_b64 exec, vcc, s[60:61]")
e(f"ds_write_b32 v{ZP}, v13 offset:{CNT2+252}")
e("s_mov_b64 exec, -1")
for k in range(3):
    e(f"v_add_u32 v5, {4*k}, v{vJ}")
    e(f"v_cmp_lt_u32 {s(mk(4,k),2)}, v5, v{LN+4}")
e.label("L_nob0")
e(f"s_cmp_lg_u32 s{sONCE}, 0")
e("s_cbranch_scc1 L_once")
e(f"s_mov_b32 s{sONCE}, 1")
zero(0, 2)
if Z1 < 6: zero(Z1, 6)
if OPT["p2at"] == "fetch":
    e(f"s_cmp_ge_u32 s{sW}, 6")
    e("s_cbranch_scc1 L_nop2")
    part2()
    e.label("L_nop2")
    part3()
if OPT["lcat"] == "fetch": laneconsts2()
e.label("L_once")
for p in range(4):
    e(f"v_and_b32 v4, 15, v{SEG+p}")
    e(f"v_sub_u32 v{LN+p}, v{RR+p}, v4")
    e(f"v_sub_u32 v4, v{vJ}, v4")
    e("v_add_u32 v5, 4, v4")
    e("v_add_u32 v6, 8, v4")
    for k in range(3): e(f"v_cmp_lt_u32 {s(mk(p,k),2)}, v{4+k}, v{LN+p}")
e(f"v_lshlrev_b32 v1, 2, v{L}")
e(f"v_cmp_gt_u32 {s(sVAL,2)}, {NB}, v{L}")
e("v_mov_b32 v4, 0")
e("v_mov_b32 v5, 0")
e("s_movk_i32 s62, 0xfc")
e(f"s_mov_b32 s63, {M3}")
def bpf(at):
    if OPT["bpf"] != at: return
    e(f"s_mov_b64 exec, {s(sPF,2)}")
    e(f"buffer_load_dword v{vPF+1}, v{vPF}, {s(srdBP,4)}, 0 idxen")
    e("s_mov_b64 exec, -1")
bpf(2)
XV = 1 if OPT["bpf"] == 2 else 0
def five(name, body):
    for p in range(4): body(p)
    e(f"s_cmp_eq_u32 s{sANYB}, 0")
    e(f"s_cbranch_scc1 L_{name}")
    body(4)
    e.label(f"L_{name}")
def chk(p):
    if p < 4: e(f"s_waitcnt vmcnt({3-p+XV})")
    for k in range(4): e(f"v_bitop3_b32 v{4 if k < 3 else 5}, v{4 if k < 3 else 5}, v{RA+4*p+k}, s{sT+k} bitop3:0xf6")
five("bx", chk)
e("v_and_b32 v4, 0xc000, v4")
e("v_and_or_b32 v4, v5, s63, v4")
e("v_cmp_ne_u32 vcc, 0, v4")
e("s_cbranch_vccnz L_stale")
e.label("L_gotrec")
stamp(7, wait=True)
def atom(p):
    if p: e("s_mov_b64 exec, -1")
    for k in range(3): e(f"v_and_b32_sdwa v{XP+6*p+2*k}, s62, v{RA+4*p+3} {SD} src0_sel:DWORD src1_sel:BYTE_{k}")
    for k in range(3):
        e(f"s_mov_b64 exec, {s(mk(p,k),2)}")
        e(f"ds_add_rtn_u32 v{KA+3*p+k}, v{XP+6*p+2*k}, v13 offset:{CNT2}")
five("ba", atom)
bpf(1)
e("s_mov_b64 exec, -1")
e("s_waitcnt lgkmcnt(0)")
e("s_barrier")
stamp(8)
e(f"ds_read_b32 v2, v1 offset:{CNT2}")
clean = [f"v_xor_b32 v{XP+6*p+2*k+1}, s{sT+k}, v{RA+4*p+k}" for p in range(5) for k in range(3)]
for x in clean[:5]: e(x)
e("s_waitcnt lgkmcnt(0)")
e(f"v_max_u32 v4, {PADB}, v2")
e(f"v_cndmask_b32 v5, 0, v4, {s(sVAL,2)}")
e(f"v_subrev_u32 v6, {SORT2}, v4")
scan(5, [f"v_readlane_b32 s{sMORE}, v2, 63", "v_cmp_lt_u32 vcc, v2, v4"] + clean[5:])
e(f"v_sub_u32 v6, v5, v6")
e(f"ds_write_b32 v1, v6 offset:{BASE2}")
def look(p):
    for k in range(3): e(f"ds_read_b32 v{LK+3*p+k}, v{XP+6*p+2*k} offset:{BASE2}")
five("bl", look)
e(f"v_readlane_b32 s3, v5, 63")
e(f"s_cmp_gt_u32 s3, {CAPB}")
e("s_cbranch_scc1 L_redo")
e(f"s_and_b64 vcc, vcc, {s(sVAL,2)}")
e("s_cbranch_scc1 L_pad0")
e.label("L_nopad")
e("s_add_u32 s96, s3, 127")
e("s_lshr_b32 s60, s96, 10")
e("s_bfe_u32 s61, s96, 0x30007")
e(f"s_mul_i32 s62, s60, s{sW}")
e(f"s_min_u32 s63, s61, s{sW}")
e("s_add_u32 s62, s62, s63")
e(f"s_cmp_lt_u32 s{sW}, s61")
e(f"s_addc_u32 s{sCNT}, s60, 0")
e("s_lshl_b32 s62, s62, 7")
e("v_cmp_ge_u32 vcc, s62, v5")
e(f"s_lshl_b32 s63, s{sCNT}, 7")
e("s_add_u32 s63, s63, s62")
e("v_cmp_gt_u32 s[60:61], s63, v5")
e("s_waitcnt lgkmcnt(0)")
def put(p):
    for k in range(3):
        e(f"s_mov_b64 exec, {s(mk(p,k),2)}")
        e(f"v_add_u32 v{LK+3*p+k}, v{LK+3*p+k}, v{KA+3*p+k}")
        e(f"ds_write_b64 v{LK+3*p+k}, {v(XP+6*p+2*k,2)}")
five("bw", put)
e("s_mov_b64 exec, -1")
e(f"s_bcnt1_i32_b64 s{sNFW}, vcc")
e(f"s_lshl_b32 s{sBASE}, s{sNFW}, 2")
e(f"s_or_b32 s{sSLOW}, s{sMULTI}, s{sMORE}")
e(f"s_cselect_b32 s{sNFW}, 252, s{sBASE}")
e(f"s_lshl_b32 s63, 1, s{sW}")
e(f"v_mov_b32 v7, s{sNFW}")
e("v_mov_b32 v8, s63")
e(f"s_lshl_b32 s63, s{sW}, 6")
e("s_add_u32 s3, s3, s63")
e(f"s_add_u32 s3, s3, {SORT2}")
e("v_lshl_add_u32 v9, v1, 1, s3")
e(f"v_mov_b32 v10, {(NB-1)*4}")
e("v_mov_b32 v11, 10000")
e("s_mov_b64 exec, 1")
e(f"ds_or_b32 v7, v8 offset:{LNK}")
e("s_mov_b64 exec, 0xff")
e("ds_write_b64 v9, v[10:11]")
e("s_mov_b64 exec, -1")
e(f"s_add_u32 s62, s62, {SORT2}")
e(f"v_lshl_add_u32 v{aRec}, v{L}, 3, s62")
e(f"v_add3_u32 v{aIdx}, s62, 4, v{vIdxL}")
PI = E[1] + 8
for n in range(DEP): e(f"v_mov_b32 v{PI+2*n+1}, v{IDX+1}")
for c in range(2): e(f"v_mfma_f32_32x32x8_bf16 {v(AC[c],16)}, {v(ZP,2)}, {v(ZP,2)}, 0")
e(f"s_bcnt1_i32_b64 s{sNLW}, s[60:61]")
e(f"s_min_u32 s{sNLW}, s{sNLW}, {NB-1}")
e(f"s_lshl_b32 s{sNLW}, s{sNLW}, 2")
e(f"s_sub_u32 s{sCNT}, s{sCNT}, {DEP+1}")
e("s_setprio 3")
e("s_waitcnt lgkmcnt(0)")
e("s_barrier")
stamp(9)
def gather(b, pair):
    return [f"buffer_load_dwordx4 {v(G[b&1],4)}, {v(pair,2)}, {s(srdBP,4)}, 0 idxen offen",
            f"buffer_load_dwordx4 {v(G[b&1]+4,4)}, {v(pair,2)}, {s(srdBP,4)}, 0 idxen offen offset:64"]
recread = lambda o: f"ds_read_b64 {v(REC,2)}, v{aRec} offset:{o}"
posaddr = f"v_mul_u32_u24_sdwa v{BT}, 6, v{REC+1} {SD} src0_sel:DWORD src1_sel:WORD_0"
posreads = [f"ds_read_u16_d16_hi v{PS+i}, v{BT} offset:{POS+2*i}" for i in range(3)] + \
           [f"ds_read2st64_b32 {v(PDV,2)}, v{REC} offset0:{PD//256} offset1:{PD//256+1}",
            f"ds_read_b32 v{PDV+2}, v{REC} offset:{PD+512}"]
build1 = [f"v_readlane_b32 s{sNF}, v{REC}, 0",
          f"v_readlane_b32 s{sNL}, v{REC}, 63",
          f"v_cmp_ne_u32 {s(sVAL,2)}, s{sC10K}, v{BT}",
          f"v_add_u32 v{BT+1}, v{REC}, v{REC}",
          f"s_and_b32 s60, s{sNF}, -8\ns_mul_i32 s{sNEG}, s60, -4\ns_lshr_b32 s60, s60, 1",
          f"v_lshl_add_u32 v{BT+2}, v{REC}, 2, s{sNEG}",
          f"v_add_u32 v{aAT}, s60, v{aATb}",
          f"v_lshlrev_b64 {v(REC+2,2)}, v{BT+2}, {s(sOHC,2)}",
          f"v_bitop3_b32 v{BT+1}, v{BT+1}, 56, v{aR2b} bitop3:0x6a"]
build2 = [f"v_sub_f32 v{PDV+2}, v{PDV+2}, v{PS+2}",
          f"v_sub_f32 v{PDV}, v{PDV}, v{PS}",
          f"v_sub_f32 v{PDV+1}, v{PDV+1}, v{PS+1}",
          f"v_cvt_pk_bf16_f32 v{R2V+1}, v{PDV+2}, 1.0",
          f"v_cvt_pk_bf16_f32 v{R2V}, v{PDV}, v{PDV+1}",
          f"v_lshlrev_b32 v{BT+2}, 16, v{R2V+1}",
          f"v_mul_f32 v{BT}, v{BT+2}, v{BT+2}",
          f"v_dot2_f32_bf16 v{BT}, v{R2V}, v{R2V}, v{BT}",
          None, None, None,
          f"v_cvt_pk_bf16_f32 v{REC}, v{BT}, v{BT}"]
build3 = [f"ds_write_b64 v{aR2}, {v(ZP,2)}",
          f"ds_write_b128 v{aR1w}, {v(REC,4)}",
          f"s_mov_b64 exec, {s(sVAL,2)}\nds_write_b64 v{BT+1}, {v(R2V,2)}\ns_mov_b64 exec, -1",
          f"ds_read2_b32 {v(WX+2,2)}, v{aAT} offset1:1"]
keepaddr = f"v_mov_b32 v{aR2}, v{BT+1}"
def opreads(n):
    return [f"ds_read_b128 {v(R1OP,4)}, v{aR1r} offset:{n*256}",
            f"ds_read_b64_tr_b16 {v(S[n],2)}, v{aS0} offset:{n*1024}",
            f"ds_read_b64_tr_b16 {v(S[n]+2,2)}, v{aS1} offset:{n*1024}"]
def stage1(n):
    t = T[n & 1]
    return [f"v_mfma_f32_32x32x16_bf16 {v(t,16)}, {v(R1OP,4)}, {v(WX,4)}, 0",
            f"v_mfma_f32_32x32x16_bf16 {v(t,16)}, {v(G[n&1],4)}, {v(I0,4)}, {v(t,16)}",
            f"v_mfma_f32_32x32x16_bf16 {v(t,16)}, {v(G[n&1]+4,4)}, {v(I1,4)}, {v(t,16)}"]
def stage2(n):
    return [f"v_mfma_f32_32x32x16_bf16 {v(AC[c],16)}, {v(M[c],4)}, {v(S[n],4)}, {v(AC[c],16)}" for c in range(2)]
def pkmul(q): return [f"v_pk_mul_f32 {v(E[q]+2*i,2)}, {v(E[q]+2*i,2)}, {v(T[q]+2*i,2)}" for i in range(8)]
def cvt(q): return [f"v_cvt_pk_bf16_f32 v{M[c]+a}, v{E[q]+4*a+c}, v{E[q]+4*a+2+c}" for a in range(4) for c in range(2)]
def flushchk(lbl):
    e(f"s_min_u32 s60, s{sNL}, s{sNLW}")
    e(f"s_sub_u32 s60, s60, s{sBASE}")
    e("s_cmp_ge_u32 s60, 32")
    e(f"s_cbranch_scc1 L_flush_{lbl}")
    e.label(f"L_flret_{lbl}")
def rowaddr():
    return [f"v_subrev_u32 v4, s{sBASE}, v{L}",
            "v_and_b32 v4, 28, v4",
            f"v_add_u32 v4, s{sBASE}, v4",
            f"v_cmp_eq_u32 vcc, s{sNFW}, v4",
            f"v_cmp_lt_u32 s[62:63], s{sNLW}, v4",
            f"s_lshl_b32 s61, s{sW}, 2",
            f"s_add_u32 s61, s61, {NB*4}",
            "v_mov_b32 v7, s61",
            "v_cndmask_b32 v4, v4, v7, vcc",
            f"v_mov_b32 v7, {OOB//64}",
            "v_cndmask_b32 v4, v4, v7, s[62:63]",
            f"v_mul_u32_u24 v4, {ACCS//4}, v4",
            f"v_add_u32 v4, {ACC}, v4",
            f"v_lshrrev_b32 v7, 5, v{L}",
            f"v_lshl_add_u32 v{vRowM}, v7, 4, v4",
            f"v_lshl_add_u32 v4, v7, 2, v4",
            f"v_and_b32 v7, 3, v{L}",
            f"v_lshl_add_u32 v{vRowP}, v7, 3, v4"]
def bfaddr():
    return [f"v_ffbl_b32 v5, v{vMask}",
            f"v_add_u32 v6, -1, v{vMask}",
            f"v_min_u32 v5, {OOB//256}, v5",
            f"v_and_b32 v{vMask}, v6, v{vMask}",
            f"v_mul_u32_u24 v5, {ACCS}, v5",
            f"v_add_u32 v{vFB}, v{vFO}, v5"]
def mmask():
    e("s_mov_b32 exec_lo, 0x88888888")
    e("s_mov_b32 exec_hi, 0x88888888")
def flush_slow():
    e("s_nop 7")
    e("v_mov_b32 v2, 0")
    for i in range(8):
        e(f"ds_read_b128 v[4:7], v{vWxa} offset:{WXT+16*i}")
        e("s_waitcnt lgkmcnt(0)")
        for r in range(4): e(f"v_fmac_f32 v2, v{AC[0]+4*i+r}, v{4+r}")
    e(f"ds_add_f32 v{vRowP}, v2 offset:256")
    mmask()
    for i in range(32): e(f"ds_add_f32 v{vRowM}, v{AC[0]+i} offset:{(i//4)*32+(i%4)*4}")
    e("s_mov_b64 exec, -1")

def step(sidx, first=False):
    q = sidx & 1; n1 = (sidx + 1) & 3
    R = OPT["ramp"]
    e("s_setprio 0")
    if sidx == 1: flushchk("mid")
    mem = gather(sidx + DEP, IDX) + [f"ds_read_u16 v{IDX}, v{aIdx} offset:{(sidx+DEP+1)*128}"]
    if sidx == 3: mem += build3
    mem += opreads(n1)
    if sidx == 3: mem += [recread(1024)]
    if sidx == 1: mem += posreads
    oth = {0: [posaddr], 1: build1, 2: build2, 3: [keepaddr, f"v_add_u32 v{aIdx}, 512, v{aIdx}", f"v_add_u32 v{aRec}, 512, v{aRec}"]}[sidx]
    for y in mem: e(y)
    oth = list(oth)
    for i in range(16):
        if i == R[0]: e("s_setprio 1")
        e(f"v_exp_f32 v{E[q]+i}, v{T[q]+i}")
        if i >= R[0] - 1 and oth:
            y = oth.pop(0)
            if y: e(y)
    assert not oth
    addone = f"{OPT.get('ao', 'v_mfma_f32_32x32x8_bf16')} {v(E[q],16)}, {v(ONE,2)}, {v(ONE,2)}, {v(E[q],16)}"
    e("s_setprio 2")
    if first:
        e("s_nop 0"); e(addone); e("s_nop 7")
    else:
        for x in pkmul(1 - q): e(x)
        e(addone)
        for x in cvt(1 - q): e(x)
    e(f"s_sub_u32 s{sCNT}, s{sCNT}, 1")
    e("s_waitcnt vmcnt(2) lgkmcnt(0)")
    mf = stage1(n1) + ([] if first else stage2((sidx - 1) & 3))
    for i in range(16):
        if i % 3 == 0 and i // 3 < len(mf):
            e(mf[i // 3])
            if i == 0: e("s_setprio 3")
        e(f"v_rcp_f32 v{E[q]+i}, v{E[q]+i}")
    e(f"s_cbranch_scc1 L_evt{sidx}")

if OPT.get("x"):
    step0 = step
    def step(sidx, first=False):
        st = len(e.lines); step0(sidx, first)
        X = OPT["x"]; out = []
        for l in e.lines[st:]:
            if "N" in X and "32x32x8" in l: continue
            if "2" in X and l.startswith("v_mfma") and (l.split()[1].startswith(f"v[{AC[0]}:") or l.split()[1].startswith(f"v[{AC[1]}:")): continue
            if "E" in X and l.startswith("v_mfma") and l.endswith(", 0"): continue
            if "E" in X and f"v[{I0}:" in l: l = l.rsplit(",", 1)[0] + ", 0"
            if "I" in X and l.startswith("v_mfma") and (f"v[{I0}:" in l or f"v[{I1}:" in l): continue
            if "J" in X and l.startswith("v_mfma") and (f"v[{I1}:" in l): continue
            if "S" in X and l.startswith("v_mfma") and f"v[{I1}:" in l: continue
            if "S" in X and l.startswith("v_mfma") and f"v[{I0}:" in l:
                t_ = l.split()[1]; g_ = int(l.split()[2][2:].split(":")[0])
                l = f"v_smfmac_f32_32x32x32_bf16 {t_} {v(I0,4)}, {v(g_,8)}, v8"
            if "Z" in X and l.startswith("v_mfma") and l.split()[1].startswith(f"v[{AC[1]}:"): continue
            if "Z" in X and l.startswith("v_mfma") and l.split()[1].startswith(f"v[{AC[0]}:"):
                l = f"v_smfmac_f32_32x32x32_bf16 {v(AC[0],16)}, {l.split()[3]} {v(M[0],8)}, v8"
            if "K" in X and l.startswith("v_mfma") and l.endswith(", 0"):
                l = f"v_mfma_f32_32x32x8_bf16 {l.split()[1]} {v(R1OP,2)}, {v(WX,2)}, 0"
            if "D" in X and l.startswith("buffer_load_dwordx4"):
                g_ = int(l.split()[1][2:].split(":")[0])
                l = "\n".join(f"buffer_load_dword v{g_+i}, v[10:11], s[{srdBP}:{srdBP+3}], 0 idxen offen offset:{(g_%8+i)*384}" for i in range(4))
            if "D" in X and l.startswith(f"ds_read_u16 v{IDX}"): l = l.replace(f"v{IDX}", "v10").replace(f"v{aIdx}", "v9") + f"\nds_read_b128 v[136:139], v{vWxa}\nds_read_b128 v[140:143], v{vWxa} offset:16"
            if "D" in X and l.startswith(f"v_add_u32 v{aIdx}"): l = "v_add_u32 v9, 512, v9"
            if "D" in X and "vmcnt(2)" in l: l = l.replace("vmcnt(2)", "vmcnt(8)")
            if "G" in X and l.startswith("buffer_load"): continue
            if "T" in X and l.startswith("ds_read_b64_tr"): continue
            if "P" in X and l.startswith("v_pk_mul"): continue
            if "C" in X and l.startswith("v_cvt_pk") and int(l.split()[1][1:-1]) < 200: continue
            if "R" in X and l.startswith("v_rcp"): l = "v_nop\nv_nop"
            if "X" in X and l.startswith("v_exp"): l = "v_nop\nv_nop"
            out += l.split("\n")
        e.lines[st:] = out

e(recread(0))
e(f"ds_read_u16 v{PI}, v{aIdx}")
e(f"ds_read_u16 v{PI+2}, v{aIdx} offset:128")
e(f"ds_read_u16 v{IDX}, v{aIdx} offset:{DEP*128}")
e("s_waitcnt lgkmcnt(2)")
e(posaddr)
for x in posreads: e(x)
for x in gather(0, PI): e(x)
for x in build1: e(x)
e("s_waitcnt lgkmcnt(0)")
g1 = gather(1, PI + 2) + ["s_nop 0"]
for x in build2: e(x if x else g1.pop(0))
for x in build3: e(x)
for x in opreads(0): e(x)
e(recread(512))
e(f"ds_read_b32 v{vMask}, v{vAItem} offset:{LNK}")
e(f"ds_write_b32 v1, v{ZP} offset:{CNT2}")
e(keepaddr)
e("s_waitcnt vmcnt(2) lgkmcnt(5)")
for x in stage1(0): e(x)
for x in rowaddr(): e(x)
e("s_waitcnt lgkmcnt(0)")
for x in bfaddr(): e(x)
if OPT.get("x"):
    e("v_mov_b32 v8, 0x44444444")
    e(f"v_sub_u32 v9, v{aIdx}, v{vIdxL}")
    e(f"v_and_b32 v10, 32, v{L}")
    e("v_add_u32 v9, v9, v10")
    e(f"v_and_b32 v11, 31, v{L}")
    e("v_lshlrev_b32 v11, 2, v11")
stamp(10)
step(0, first=True)
e("s_branch L_s1")
for sidx in range(4):
    e.label(f"L_s{sidx}")
    step(sidx)
e("s_branch L_s0")
for sidx in range(4):
    q = sidx & 1
    e.label(f"L_evt{sidx}")
    e(f"s_cmp_eq_u32 s{srdBP+2}, 0")
    e(f"s_mov_b32 s{srdBP+2}, 0")
    e(f"s_mov_b32 s{sCNT}, {DEP-1}")
    if OPT["otouch"]:
        e(f"s_cbranch_scc1 L_dr{sidx}")
        e(f"s_mov_b64 exec, {s(sOM,2) if OPT['otouch'] == 2 else 1}")
        e(f"global_load_ushort v136, v{vOA}, {s(sOUT,2)} sc1")
        e("s_mov_b64 exec, -1")
        e(f"s_branch L_s{(sidx+1)&3}")
        e.label(f"L_dr{sidx}")
    else: e(f"s_cbranch_scc0 L_s{(sidx+1)&3}")
    if sidx == 0: flushchk("dr")
    for i in range(4): e(f"ds_read_b128 {v(E[1-q]+4*i,4)}, v{vWxa} offset:{WXT+16*i}")
    for i in range(4): e(f"ds_read_b128 {v(T[1-q]+4*i,4)}, v{vWxa} offset:{WXT+64+16*i}")
    for x in pkmul(q) + cvt(q): e(x)
    e(f"s_cmp_lg_u32 s{sSLOW}, 0")
    e("s_nop 0")
    for x in stage2(sidx): e(x)
    e("s_cbranch_scc1 L_slow_final")
    if sidx < 2: e(f"s_branch L_final_flush{q}")
    else:
        e.label(f"L_final_flush{q}")
        stamp(11)
        e("s_waitcnt lgkmcnt(0)")
        e("s_nop 6")
        mmask()
        for i in range(8): e(f"ds_write_b128 v{vRowM}, {v(AC[0]+4*i,4)} offset:{i*32}")
        e("s_mov_b64 exec, -1")
        e(f"v_pk_mul_f32 v[4:5], {v(AC[0],2)}, {v(E[1-q],2)}")
        e(f"v_pk_mul_f32 v[6:7], {v(AC[1],2)}, {v(T[1-q],2)}")
        for i in range(1, 8):
            e(f"v_pk_fma_f32 v[4:5], {v(AC[0]+2*i,2)}, {v(E[1-q]+2*i,2)}, v[4:5]")
            e(f"v_pk_fma_f32 v[6:7], {v(AC[1]+2*i,2)}, {v(T[1-q]+2*i,2)}, v[6:7]")
        e("v_pk_add_f32 v[4:5], v[4:5], v[6:7]")
        e("v_add_f32 v4, v4, v5")
        e(f"ds_write_b32 v{vRowP}, v4 offset:256")
        if sidx == 2: e("s_branch L_b6")
e.label("L_b6")
MR = 16; MB = 32; Y = 40; YE = 48; HU = 56; MX = 64
e(f"s_cmp_lg_u32 s{sMORE}, 0")
e(f"v_cmp_ne_u32 vcc, 0, v{vMask}")
e("s_waitcnt lgkmcnt(0)")
e("s_barrier")
stamp(12)
e("s_cbranch_scc1 L_more")
e(f"s_cmp_ge_u32 s{sW}, 6")
e("s_cbranch_scc1 L_finpos")
for i in range(4):
    e(f"ds_read_b128 {v(MR+4*i,4)}, v{vFA} offset:{(i>>1)*128+(i&1)*16}")
    e(f"ds_read_b128 {v(MX+4*i,4)}, v{vFB} offset:{(i>>1)*128+(i&1)*16}")
for d in range(4):
    e(f"v_lshlrev_b32 v{HU+2*d}, 16, v{HRES+d}")
    e(f"v_and_b32 v{HU+2*d+1}, 0xffff0000, v{HRES+d}")
e(f"s_mov_b32 s60, {NLN2}")
if OPT["otr"]:
    e(f"v_and_b32 v8, 15, v{L}")
    e(f"v_lshrrev_b32 v9, 4, v{L}")
    e("v_lshl_add_u32 v8, v8, 2, v9")
    e(f"v_sub_u32 v8, v8, v{L}")
    e(f"v_lshl_add_u32 v8, v8, 4, v{aR1w}")
e("s_cbranch_vccnz L_finbf_more")
e.label("L_finbf")
for i in range(4):
    e(f"s_waitcnt lgkmcnt({6-2*i})")
    for d in range(2): e(f"v_pk_add_f32 {v(MR+4*i+2*d,2)}, {v(MR+4*i+2*d,2)}, {v(MX+4*i+2*d,2)}")
    for d in range(2): e(f"v_cvt_pk_bf16_f32 v{MB+2*i+d}, v{MR+4*i+2*d}, v{MR+4*i+2*d+1}")
for t in range(2): e(f"v_mfma_f32_16x16x32_bf16 {v(Y+4*t,4)}, {v(WH2+8*t,4)}, {v(MB,4)}, {v(H1+4*t,4)}")
for t in range(2): e(f"v_mfma_f32_16x16x32_bf16 {v(Y+4*t,4)}, {v(WH2+8*t+4,4)}, {v(MB+4,4)}, {v(Y+4*t,4)}")
e("s_nop 6")
for i in range(8): e(f"v_exp_f32 v{YE+i}, v{Y+i}")
for i in range(4): e(f"v_pk_add_f32 {v(YE+2*i,2)}, {v(YE+2*i,2)}, 1.0 op_sel_hi:[1,0]")
for i in range(4): e(f"v_pk_mul_f32 {v(Y+2*i,2)}, {v(Y+2*i,2)}, s[60:61] op_sel_hi:[1,0]")
for i in range(8): e(f"v_rcp_f32 v{YE+i}, v{YE+i}")
for i in range(4): e(f"v_pk_fma_f32 {v(HU+2*i,2)}, {v(Y+2*i,2)}, {v(YE+2*i,2)}, {v(HU+2*i,2)}")
for d in range(4): e(f"v_cvt_pk_bf16_f32 v{Y+d}, v{HU+2*d}, v{HU+2*d+1}")
if OPT["otr"]:
    e(f"ds_write_b128 v8, {v(Y,4)}")
    e(f"ds_read_b128 {v(Y,4)}, v{aR1w}")
    e("s_waitcnt lgkmcnt(0)")
e(f"s_mov_b64 exec, {s(sOM,2)}")
e(f"global_store_dwordx4 v{vOA}, {v(Y,4)}, {s(sOUT,2)} {OPT.get('ost', 'sc1')}")
stamp(13, last=True)
e("s_endpgm")
e.label("L_finpos")
e(f"ds_read_b64 v[16:17], v{vFA}")
e.label("L_posbf")
e(f"ds_read_b64 v[18:19], v{vFB}")
e("s_waitcnt lgkmcnt(0)")
e("v_add_f32 v16, v16, v18")
e("v_add_f32 v17, v17, v19")
e("s_cbranch_vccnz L_posbf_more")
e("v_add_f32 v16, v16, v17")
e(f"v_add_f32 v{vPosOwn}, v{vPosOwn}, v16")
e(f"v_cvt_pk_bf16_f32 v2, v{vPosOwn}, v{vPosOwn}")
e(f"v_mov_b32 v7, s{sTAG}")
e(f"s_mov_b64 exec, {s(sOM,2)}")
e(f"global_store_short v{vOA}, v2, {s(sOUT,2)} {OPT.get('pst', 'sc1')}")
e("s_cmp_lg_u32 s2, 0")
e("s_cbranch_scc1 L_noep")
e("s_mov_b64 exec, 1")
e(f"global_store_dword v{ZP}, v7, {s(sWS,2)} sc1")
e.label("L_noep")
stamp(13, last=True)
e("s_endpgm")
for lbl in ("mid", "dr"):
    e.label(f"L_flush_{lbl}")
    flush_slow()
    e("s_waitcnt lgkmcnt(0)")
    for i in range(32): e(f"v_mov_b32 v{AC[0]+i}, 0")
    e(f"s_mov_b32 s{sBASE}, s{sNF}")
    e(f"s_mov_b32 s{sSLOW}, 1")
    for x in rowaddr(): e(x)
    e(f"s_branch L_flret_{lbl}")
e.label("L_slow_final")
flush_slow()
e("s_branch L_b6")
e.label("L_finbf_more")
e("s_waitcnt lgkmcnt(0)")
for i in range(16): e(f"v_add_f32 v{MR+i}, v{MR+i}, v{MX+i}")
for x in bfaddr(): e(x)
for i in range(4): e(f"ds_read_b128 {v(MX+4*i,4)}, v{vFB} offset:{(i>>1)*128+(i&1)*16}")
e(f"v_cmp_ne_u32 vcc, 0, v{vMask}")
e("s_waitcnt lgkmcnt(0)")
e("s_cbranch_vccnz L_finbf_more")
e("s_branch L_finbf")
e.label("L_posbf_more")
for x in bfaddr(): e(x)
e(f"v_cmp_ne_u32 vcc, 0, v{vMask}")
e("s_branch L_posbf")
e.label("L_pollout")
e(f"s_mov_b32 s{sBUD}, 0")
e("s_branch L_gotoff")
e.label("L_stale")
e(f"s_cmp_eq_u32 s{sBUD}, 0")
e("s_cbranch_scc1 L_gotrec")
e(f"s_sub_u32 s{sBUD}, s{sBUD}, 1")
e("s_branch L_fetch")
e.label("L_pad0")
e("v_mov_b32 v8, v1")
e("v_mov_b32 v9, 10000")
e("s_mov_b64 exec, vcc")
e.label("L_pad")
e("v_add_u32 v7, v6, v2")
e("v_add_u32 v2, 8, v2")
e("ds_write_b64 v7, v[8:9]")
e("v_cmp_lt_u32 vcc, v2, v4")
e("s_and_b64 exec, vcc, vcc")
e("s_cbranch_scc1 L_pad")
e("s_mov_b64 exec, -1")
e("s_branch L_nopad")
e.label("L_more")
e("s_waitcnt vmcnt(0)")
e("s_setprio 0")
e(f"s_mov_b32 s{srdBP+2}, 10000")
e(f"s_mov_b64 {s(sPF,2)}, 0")
e(f"s_mov_b32 s{sMULTI}, 1")
e(f"s_cmp_eq_u32 s{sWID}, {NARROW}")
e(f"s_cselect_b32 s60, {NARROW}, 0x100")
e("v_mov_b32 v4, s60")
for p in range(4):
    e(f"v_and_b32 v5, 0xfff0, v{SEG+p}")
    e(f"v_lshrrev_b32 v6, 16, v{SEG+p}")
    e(f"v_add_u32 v7, s{sWID}, v5")
    e("v_cmp_lt_u32 vcc, v7, v6")
    e("v_add_u32 v5, v4, v5")
    e("v_min_u32 v5, v5, v6")
    e(f"v_lshl_or_b32 v{SEG+p}, v6, 16, v5")
    e(f"v_mov_b32 v7, s{sWID}")
    e("v_cndmask_b32 v4, v4, v7, vcc")
e(f"s_movk_i32 s{sWID}, 0x80")
batchsetup()
e(f"v_mov_b32 v{vPF}, 0")
e("s_branch L_fetch")
e.label("L_narrow")
e(f"s_mov_b32 s{sANYB}, 0")
e("s_mov_b64 exec, vcc")
e(f"ds_write_b32 v{ZP}, v13 offset:{CNT2+252}")
e("s_mov_b64 exec, -1")
e("s_branch L_nob0")
e.label("L_redo")
e(f"s_cmp_eq_u32 s{sWID}, {NARROW}")
e("s_cbranch_scc1 L_end")
e("s_waitcnt vmcnt(0) lgkmcnt(0)")
e("s_barrier")
e(f"ds_write_b32 v1, v{ZP} offset:{CNT2}")
e(f"s_movk_i32 s{sWID}, {NARROW}")
batchsetup()
e(f"v_cmp_gt_u32 vcc, {NARROW}, v{vJ}")
e(f"v_mov_b32 v1, {OOB}")
e("s_waitcnt lgkmcnt(0)")
e(f"v_cndmask_b32 v{vJ}, v1, v{vJ}, vcc")
e("s_barrier")
e("s_branch L_fetch")
e.label("L_end")
e("s_endpgm")

probs = check_cfg(e.lines)
for p in probs: print("HAZARD", p, file=sys.stderr)

ref = open("cdna_kernels/" + KN + ".s.ref").read().split("\n")
hdr = []
for l in ref:
    if l.startswith("; Override launch"): break
    hdr.append(l)
out = "\n".join(hdr) + f"""
; One persistent launch: 250 workgroups (one per CU) bin the edges by destination bucket, hand the bins
; over through d_ws (tagged with a per-launch epoch), then each workgroup updates its 40 nodes.
; @launch grid=({NWG},1,1) block=(512,1,1) lds={LDS_SIZE}
.amdgcn_target "amdgcn-amd-amdhsa--gfx950"
.text
.globl {KN}_kernel
.p2align 8
.type {KN}_kernel,@function
{KN}_kernel:
{e.text()}.section .rodata,"a"
.p2align 6
.amdhsa_kernel {KN}_kernel
  .amdhsa_next_free_vgpr 256
  .amdhsa_next_free_sgpr 102
  .amdhsa_accum_offset 256
  .amdhsa_group_segment_fixed_size 0
  .amdhsa_kernarg_size 88
  .amdhsa_user_sgpr_count 2
  .amdhsa_user_sgpr_kernarg_segment_ptr 1
  .amdhsa_system_sgpr_workgroup_id_x 1
  .amdhsa_float_denorm_mode_32 3
.end_amdhsa_kernel
"""
open(sys.argv[1], "w").write(out)
print("wrote", sys.argv[1], len(e.lines), "lines;", len(probs), "hazards; LDS end", LDS_END, file=sys.stderr)
```

```python
import sys, struct
from asmlib import Emit, v, s, check_cfg

KN = "standalone__cheap_equivariant_egnn__graph"
OPT = dict(stamps=False, ramp=(2, 16, 0), bpf=1, pollat=2, lcat="fetch", posat=("b2",3,1), zs=(2,6), wdat=0, otr=False, otouch=0, p2at="win", pall=0, stag=True, pfet=0, early=True)
for a in sys.argv[2:]:
    k, _, val = a.partition("=")
    try: OPT[k] = eval(val) if val else True
    except Exception: OPT[k] = val

def fbits(x): return struct.unpack("<I", struct.pack("<f", x))[0]
LOG2E = 1.4426950408889634; LN2 = 0.6931471805599453
NL2E = hex(fbits(-LOG2E)); NLN2 = hex(fbits(-LN2))

NWG = 250; CH = 2560; NB = 40; DEP = 2
CHB = 13696
CNT1 = 0x0; OFF1 = 0x400; CNT2 = 0x800; LNK = 0x900; BASE2 = 0xA00; PD = 0xB00; WXT = 0xF00
STB = 0x1000; R2 = 0x2000; ACC = R2 + 32768; ACCS = 304
BF = ACC + NB * ACCS; AT = BF + 8 * ACCS; ATS = 104; WL = AT + 64 * ATS; WXL = WL + 256
POS = WL + 384; STG = R2; SORT2 = POS + 61440; CAPB = 3888 * 8; R1 = SORT2 + CAPB + 512; LDS_END = R1 + 8192
PADB = 32 * 8; NARROW = 48
assert NWG * 9 * 8 + NB * PADB <= CAPB and POS + 4 < 65536
WE = SORT2; WH = WE + 16384; HB = WH + 16384
OOB = 0x100000
MARK = 0x7F00
LDS_SIZE = 163840
assert LDS_END <= LDS_SIZE and HB + 6144 <= LDS_END and R2 % 64 == 0 and WE % 128 == 0
WS_OFF = 0x10000; WS_BP = 0x80000; WS_REC = 0x200000; WS_STAMP = 0x1000000
TAGC = 0x9E3779B1; M3 = 0xFF030303
sH, sPOS, sE, sSRC, sDST, sWE, sWX, sWH, sOUT, sDBG, sWS = 4, 6, 8, 10, 12, 14, 16, 18, 20, 22, 24
sW, sB = 26, 27
srdBP, srdPOS, srdH = 28, 32, 36
sTAG, sMULTI, sBUD, sWID, sONCE, sN0, sNG, sCHF = 40, 41, 42, 43, 44, 45, 46, 47
sOHC, sNFW, sNLW, sCNT, sBASE, sNF, sNL, sNEG, sMORE, sVAL = 48, 50, 51, 52, 53, 54, 55, 56, 57, 58
sT = 36
sOM = 4; sPF = 6; sRB = 8; sSLOW = 16; sANYB = 17; sC10K = 18
sMK = 64
T = [16, 32]; E = [48, 64]; AC = [80, 96]; M = [112, 116]; G = [120, 128]; S = [152, 156, 160, 164]
R1OP = 168; WX = 172; I0 = 176; I1 = 180; ONE = 184; IDX = 186
aIdx, aRec, aR1r, aS0, aS1, aR1w, aR2b, aR2, aATb, aAT = 188, 189, 190, 191, 192, 193, 194, 195, 196, 197
vRowM, vRowP = 198, 199
REC = 200; R2V = 204; PS = 206; vSrc = 208; vFO = 209; PDV = 210; BT = 214; ZP = 216; vIdxL = 218; vFA = 219
SEG = 220; vMask = 224; vWxa = 225; H1 = 226; vPosOwn = 230; HRES = 234; WH2 = 238; vLane = 254; vAItem = 255
vOA = 12; vFB = 3
L = vLane
SD = "dst_sel:DWORD dst_unused:UNUSED_PAD"

e = Emit()
def stamp(i, last=False, wait=False):
    if OPT.get("diag") is not None:
        a_, b_, neg = OPT["diag"]
        if i == 0: e("s_memrealtime s[98:99]")
        tm = "s_memtime" if OPT.get("dcyc") else "s_memrealtime"
        if i == a_: e(tm + " s[100:101]")
        if i == b_: e(tm + " s[22:23]")
        if last:
            stamp.n = getattr(stamp, "n", 0) + 1
            if b_ == 99: e("s_waitcnt vmcnt(0)\ns_memrealtime s[22:23]")
            e("s_waitcnt lgkmcnt(0)\ns_sub_u32 s101, s22, s100")
            if OPT.get("dcyc"): e("s_lshr_b32 s101, s101, 4")
            if OPT.get("dwg") is not None: e(f"s_cmp_eq_u32 s2, {OPT['dwg']}\ns_cselect_b32 s101, s101, 0")
            if neg: e(f"s_sub_u32 s101, {neg}, s101\ns_max_i32 s101, s101, 0")
            e("s_min_u32 s101, s101, 5000\ns_lshl_b32 s101, s101, 3\ns_add_u32 s101, s101, 3000")
            e.label(f"L_spin{stamp.n}")
            e("s_memrealtime s[22:23]\ns_waitcnt lgkmcnt(0)\ns_sub_u32 s22, s22, s98\ns_cmp_lt_u32 s22, s101")
            e(f"s_cbranch_scc1 L_spin{stamp.n}")
        return
    if not OPT["stamps"]: return
    if wait: e("s_waitcnt lgkmcnt(0)")
    if i > 0:
        e("s_mov_b32 m0, s101\nv_writelane_b32 v15, s98, m0\nv_writelane_b32 v14, s22, m0")
    e("s_memrealtime s[98:99]")
    if i > 0: e("s_memtime s[22:23]")
    e(f"s_mov_b32 s101, {i}")
    if i in (6, 7, 9): e(f"v_writelane_b32 v15, s{sBUD}, {16+i}")
    if i == 10: e(f"s_add_u32 s100, s{sCNT}, {DEP-4}\nv_writelane_b32 v15, s100, 26")
    if last:
        e("s_mov_b64 exec, -1\ns_waitcnt lgkmcnt(0)")
        e(f"v_writelane_b32 v15, s98, {i}\nv_writelane_b32 v14, s22, {i}")
        e(f"s_lshl_b32 s100, s2, 3\ns_add_u32 s100, s100, s{sW}\ns_lshl_b32 s100, s100, 7\ns_add_u32 s100, s100, {WS_STAMP}")
        e(f"v_lshl_add_u32 v13, v{L}, 2, s100\ns_mov_b32 exec_hi, 0")
        e(f"global_store_dword v13, v15, {s(sWS,2)}\nv_add_u32 v13, 0x100000, v13\nglobal_store_dword v13, v14, {s(sWS,2)}")

def fine(i, g=1):
    if OPT.get("diag") is not None: stamp(10 + 10*g + i)
    if OPT.get("fine") == g: e(f"s_memtime s[{72+2*i}:{73+2*i}]")
def finedump(n, g=1):
    if OPT.get("fine") == g:
        for i in range(n): e(f"s_nop 0\nv_writelane_b32 v14, s{72+2*i}, {16+i}")
def scan(r, fill=()):
    fill = list(fill)
    for m in ("row_shr:1 row_mask:0xf bank_mask:0xf bound_ctrl:1", "row_shr:2 row_mask:0xf bank_mask:0xf bound_ctrl:1",
              "row_shr:4 row_mask:0xf bank_mask:0xf bound_ctrl:1", "row_shr:8 row_mask:0xf bank_mask:0xf bound_ctrl:1",
              "row_bcast:15 row_mask:0xa bank_mask:0xf", "row_bcast:31 row_mask:0xc bank_mask:0xf"):
        if len(fill) >= 2:
            e(fill.pop(0)); e(fill.pop(0))
        else: e("s_nop 1")
        e(f"v_add_u32_dpp v{r}, v{r}, v{r} {m}")
    assert not fill

DSTR = 16; SRCR = 24; ER = 32; XB = 36; QQ = 42; B4 = 48; RK = 56
WA0 = 64; WA1 = 65; WA2 = 66; HA = 67; CA0 = 68; PBA = 69; TCH = 70; vTG = 71; HF = 72
WT = 80; DT = 112; W1T = 96; aWH = 144; aWT = 148; PB = 152; ZQ = 156
stamp(0)
e(f"s_cmp_ge_u32 s2, {NWG}")
e("s_cbranch_scc1 L_end")
e("s_load_dwordx16 s[4:19], s[0:1], 0")
e("s_load_dwordx4 s[20:23], s[0:1], 64")
e("s_load_dwordx2 s[24:25], s[0:1], 80")
e("s_getpc_b64 s[62:63]")
e.label("L_pc")
e("v_lshlrev_b32 v5, 5, v0")
e("v_min_u32 v5, L_end-L_pc, v5")
e("s_mov_b32 exec_lo, 0x11111111")
e("s_mov_b32 exec_hi, 0x11111111")
e(f"global_load_dword v{TCH}, v5, s[62:63]")
e("s_mov_b64 exec, -1")
e(f"s_mul_i32 s3, s2, {CH*4}")
e("v_lshl_add_u32 v8, v0, 4, s3")
e(f"s_add_u32 s60, s3, 8192")
e("v_lshl_add_u32 v9, v0, 2, s60")
e("s_lshr_b32 s3, s3, 1")
e("v_lshl_add_u32 v10, v0, 3, s3")
e("s_add_u32 s60, s3, 4096")
e("v_lshl_add_u32 v11, v0, 1, s60")
e("v_lshrrev_b32 v5, 6, v0")
e(f"v_and_b32 v{L}, 63, v0")
e(f"v_readfirstlane_b32 s{sW}, v5")
e(f"v_mov_b32 v{ZP}, 0")
e(f"v_mov_b32 v{ZP+1}, 0")
e("v_lshlrev_b32 v12, 4, v0")
e("v_lshlrev_b32 v5, 3, v0")
e(f"ds_write_b64 v5, {v(ZP,2)}")
e("s_and_b32 s60, s2, 7")
e(f"s_mul_i32 s{sB}, s60, 31")
e("s_min_u32 s60, s60, 2")
e(f"s_add_u32 s{sB}, s{sB}, s60")
e("s_lshr_b32 s96, s2, 3")
e(f"s_add_u32 s{sB}, s{sB}, s96")
e(f"s_mul_i32 s{sN0}, s{sB}, {NB}")
e(f"v_and_b32 v5, 16, v{L}")
e("v_and_b32 v6, 64, v0")
e("v_lshl_or_b32 v5, v5, 1, v6")
e(f"v_xor_b32 v{WA0}, v5, v12")
e(f"v_add_u32 v{WA1}, 8192, v{WA0}")
e(f"v_lshlrev_b32 v5, 1, v{L}")
e(f"s_lshl_b32 s60, s{sN0}, 7")
e("v_and_b32 v5, 0x70, v5")
e(f"v_xad_u32 v{HA}, v5, v12, s60")
e(f"s_lshl_b32 s60, s{sW}, 10")
e(f"s_add_u32 m0, s60, {WE+8192}")
e("s_waitcnt lgkmcnt(0)")
e(f"global_load_dwordx4 {v(DSTR,4)}, v8, {s(sDST,2)}")
e(f"global_load_dword v{DSTR+4}, v9, {s(sDST,2)}")
if OPT["stag"]: e(f"s_load_dword s{sTAG}, {s(sWS,2)}, 0")
e(f"s_mov_b32 s{srdH}, s{sH}")
e(f"s_and_b32 s{srdH+1}, s{sH+1}, 0xffff")
e(f"s_mov_b32 s{srdH+2}, 1280000")
e(f"s_mov_b32 s{srdH+3}, 0x20000")
e(f"s_cmp_ge_u32 s{sW}, 6")
e(f"global_load_lds_dwordx4 v{WA1}, {s(sWE,2)}")
e("s_cbranch_scc1 L_d67")
e(f"s_add_u32 m0, s60, {HB}")
e("s_nop 0")
e(f"buffer_load_dwordx4 v{HA}, {s(srdH,4)}, 0 offen lds")
e("s_branch L_ddone")
e.label("L_d67")
e(f"s_add_u32 s62, s{sWE}, 16384")
e(f"s_addc_u32 s63, s{sWE+1}, 0")
e(f"v_lshlrev_b32 v5, 4, v{L}")
e(f"s_cmp_eq_u32 s{sW}, 7")
e(f"s_cselect_b64 s[62:63], {s(sWX,2)}, s[62:63]")
e(f"s_cselect_b32 s61, 256, 0")
e(f"s_cselect_b32 s97, 8, 16")
e(f"s_add_u32 m0, s61, {WL}")
e("s_bfm_b64 exec, s97, 0")
e(f"global_load_lds_dwordx4 v5, s[62:63]")
e("s_mov_b64 exec, -1")
e.label("L_ddone")
e("s_barrier")
e(f"global_load_dwordx4 {v(SRCR,4)}, v8, {s(sSRC,2)}")
e(f"global_load_dword v{SRCR+4}, v9, {s(sSRC,2)}")
e(f"global_load_dwordx2 {v(ER,2)}, v10, {s(sE,2)}")
e(f"global_load_short_d16_hi v{ER+2}, v11, {s(sE,2)}")
TV = 0 if OPT["stag"] else 1
if TV: e(f"global_load_dword v{vTG}, v{ZP}, {s(sWS,2)}")
stamp(1)
for i in range(4): e(f"v_mov_b32 v{ZQ+i}, 0")
assert R2 + 6*8192 >= AT and R2 + 6*8192 <= WL
e(f"ds_write_b128 v{ZP}, {v(ZQ,4)} offset:{STG+853*16}")
def zero(lo, hi):
    e("v_lshlrev_b32 v5, 4, v0")
    for i in range(lo, hi):
        if i == 5:
            e(f"v_cmp_gt_u32 vcc, {(AT - R2 - 5*8192)//16}, v0")
            e("s_mov_b64 exec, vcc")
        e(f"ds_write_b128 v5, {v(ZQ,4)} offset:{R2+i*8192}")
    if hi == 6: e("s_mov_b64 exec, -1")
Z0, Z1 = OPT["zs"]
if Z0 > 2: zero(2, Z0)
e(f"s_mov_b32 s{srdPOS}, s{sPOS}")
e(f"s_and_b32 s{srdPOS+1}, s{sPOS+1}, 0xffff")
e(f"s_mov_b32 s{srdPOS+2}, 60000")
e(f"s_mov_b32 s{srdPOS+3}, 0x20000")
PT = 1 if OPT.get("ptouch") else 0
if PT:
    e("s_lshl_b32 s61, s96, 11")
    e("v_lshl_add_u32 v5, v0, 2, s61")
    e("s_mov_b32 exec_lo, 1")
    e("s_mov_b32 exec_hi, 1")
    e(f"buffer_load_dword v{TCH}, v5, {s(srdPOS,4)}, 0 offen")
    e("s_mov_b64 exec, -1")
e(f"s_mul_i32 s{sCHF}, s{sW}, 86")
e(f"s_lshr_b32 s{sCHF}, s{sCHF}, 8")
e(f"s_mul_i32 s61, s{sCHF}, 3")
e(f"s_sub_u32 s{sNG}, s{sW}, s61")
e(f"s_and_b32 s61, s{sW}, 3")
e("s_lshl_b32 s61, s61, 1")
e(f"s_lshr_b32 s62, s{sW}, 2")
e("s_add_u32 s61, s61, s62")
e("s_lshl_b32 s61, s61, 8")
e("s_add_u32 s61, s61, 8192")
e(f"v_and_b32 v5, 0x70, v{WA0}")
e(f"v_bfe_u32 v6, v{L}, 3, 2")
e("v_lshl_add_u32 v5, v6, 11, v5")
e(f"v_lshrrev_b32 v6, 5, v{L}")
e("v_lshl_add_u32 v5, v6, 7, v5")
e(f"v_add_u32 v{WA2}, s61, v5")
e(f"v_and_b32 v1, 15, v{L}")
e(f"v_lshrrev_b32 v3, 4, v{L}")
e(f"s_lshl_b32 s61, s{sNG}, 11")
e(f"s_add_u32 s61, s61, {HB}")
e(f"v_and_b32 v2, 7, v{L}")
e("v_xor_b32 v2, v2, v3")
e("v_lshl_add_u32 v4, v1, 7, s61")
e(f"v_lshl_add_u32 v{aWH+1}, v2, 4, v4")
e(f"v_xor_b32 v{aWH+2}, 64, v{aWH+1}")
e(f"v_bfe_u32 v6, v{L}, 2, 2")
e(f"v_and_b32 v2, 3, v{L}")
e("v_lshl_add_u32 v4, v3, 3, v6")
e(f"v_lshlrev_b32 v7, 2, v{L}")
e("v_and_b32 v7, 0x60, v7")
e(f"s_xor_b32 s61, s{sCHF}, 1")
e("s_lshl_b32 s61, s61, 13")
e(f"s_add_u32 s61, s61, {WE}")
e("v_lshl_add_u32 v5, v4, 7, s61")
e("v_lshl_add_u32 v5, v2, 3, v5")
e(f"v_xor_b32 v{aWT}, v7, v5")
for t in range(1, 4): e(f"v_xor_b32 v{aWT+t}, {32*t}, v{aWT}")
e(f"s_lshl_b32 s61, s{sCHF}, 6")
e(f"s_add_u32 s61, s61, {WH}")
e("v_lshl_add_u32 v6, v2, 4, s61")
e("v_lshl_add_u32 v5, v4, 7, v6")
e(f"v_xor_b32 v{aWH}, v7, v5")
e(f"s_lshl_b32 s61, s{sNG}, 4")
e(f"s_add_u32 s61, s61, s{sN0}")
e("s_lshl_b32 s61, s61, 7")
e(f"s_add_u32 s61, s61, {WS_BP}")
e("v_lshl_add_u32 v2, v3, 9, s61")
e(f"v_lshl_add_u32 v{aWH+3}, v1, 3, v2")
e(f"v_lshrrev_b32 v1, 5, v{L}")
e(f"v_and_b32 v7, 3, v{L}")
e(f"v_bfe_u32 v6, v{L}, 3, 2")
e("v_lshlrev_b32 v6, 2, v6")
e("v_lshl_add_u32 v7, v7, 4, v6")
e(f"v_bfe_u32 v6, v{L}, 2, 1")
e("v_add_u32 v7, v7, v6")
e("v_lshl_add_u32 v7, v1, 1, v7")
e(f"v_lshlrev_b32 v{CA0}, 1, v7")
e(f"v_mul_u32_u24 v{aATb}, {ATS}, v7")
e(f"v_add_u32 v{aATb}, {AT}, v{aATb}")

def laneconsts():
    e(f"s_add_u32 s{srdBP}, s{sWS}, {WS_BP}")
    e(f"s_addc_u32 s{srdBP+1}, s{sWS+1}, 0")
    e(f"s_and_b32 s{srdBP+1}, s{srdBP+1}, 0xffff")
    e(f"s_or_b32 s{srdBP+1}, s{srdBP+1}, 0x800000")
    e(f"s_mov_b32 s{srdBP+2}, 10000")
    e(f"s_mov_b32 s{srdBP+3}, 0x20000")
    e(f"s_mov_b32 s{sMULTI}, 0")
    e(f"s_mov_b32 s{sOHC}, 0x3f80")
    e(f"s_mov_b32 s{sOHC+1}, 0")
    e(f"s_movk_i32 s{sWID}, 0x80")
    e(f"s_mov_b32 s{sONCE}, 0")
def laneconsts2():
    e(f"v_lshrrev_b32 v1, 5, v{L}")
    e(f"v_and_b32 v2, 1, v{L}")
    e(f"v_lshlrev_b32 v{vWxa}, 7, v1")
    e(f"v_lshlrev_b32 v3, 5, v1")
    e(f"v_lshl_add_u32 v{IDX+1}, v2, 4, v3")
    e(f"v_bfe_u32 v4, v{L}, 3, 2")
    e(f"v_bfe_u32 v5, v{L}, 1, 1")
    e("v_lshl_add_u32 v4, v4, 1, v5")
    e(f"v_bfe_u32 v5, v{L}, 2, 1")
    e("v_lshl_add_u32 v4, v5, 3, v4")
    e(f"v_lshlrev_b32 v{vIdxL}, 3, v4")
    e(f"s_lshl_b32 s61, s{sW}, 10")
    e(f"s_add_u32 s61, s61, {R1}")
    e(f"v_lshl_add_u32 v{aR1r}, v4, 4, s61")
    e("v_xor_b32 v5, v1, v2")
    e(f"v_lshl_add_u32 v{aR1r}, v5, 20, v{aR1r}")
    e(f"v_lshl_add_u32 v{aR1w}, v{L}, 4, s61")
    e(f"s_lshl_b32 s61, s{sW}, 12")
    e(f"s_add_u32 s61, s61, {R2}")
    e(f"v_bfe_u32 v3, v{L}, 1, 3")
    e(f"v_lshl_add_u32 v4, v{L}, 6, s61")
    e(f"v_lshl_add_u32 v{aR2b}, v3, 3, v4")
    e(f"v_mov_b32 v{aR2}, v{aR2b}")
    e(f"v_bfe_u32 v3, v{L}, 2, 2")
    e(f"v_and_b32 v4, 3, v{L}")
    e(f"v_bfe_u32 v5, v{L}, 4, 1")
    e("v_lshl_add_u32 v5, v5, 2, v4")
    e("v_lshrrev_b32 v7, 1, v3")
    e("v_lshl_add_u32 v7, v1, 2, v7")
    e("v_xor_b32 v5, v5, v7")
    e("v_lshl_add_u32 v7, v1, 3, v3")
    e("v_lshl_add_u32 v7, v7, 6, s61")
    e(f"v_lshl_add_u32 v{aS0}, v5, 3, v7")
    e(f"v_xor_b32 v{aS1}, 16, v{aS0}")
    e(f"v_add_u32 v{aS1}, 256, v{aS1}")
    e(f"v_and_b32 v4, 31, v{L}")
    e("v_lshlrev_b32 v7, 3, v1")
    e("v_sub_u32 v7, v4, v7")
    e("v_lshlrev_b32 v4, 4, v2")
    e(f"v_lshlrev_b32 v4, v4, s{sOHC}")
    e("v_ashrrev_i32 v7, 1, v7")
    for u, I in ((0, I0), (1, I1)):
        for d in range(4): e(f"v_cmp_eq_u32 {s(sMK+2*d,2)}, {8*u+d}, v7")
        for d in range(4): e(f"v_cndmask_b32 v{I+d}, 0, v4, {s(sMK+2*d,2)}")
    e("v_xor_b32 v7, 1, v1")
    e(f"v_mul_u32_u24 v{ONE}, {OPT.get('aov', 0x3f80)}, v7")
    if OPT.get("aoall"): e(f"v_mov_b32 v{ONE}, 0x3f80")
    e(f"v_mov_b32 v{ONE+1}, 0")
if OPT["lcat"] == "start": laneconsts(); laneconsts2()
e("v_mov_b32 v13, 1")
e("s_mov_b32 s61, 52429")
e("s_movk_i32 s62, -40")
e(f"v_lshlrev_b32 v1, 4, v{L}")
e(f"s_lshl_b32 s63, s2, 10")
e(f"s_add_u32 s63, s63, {WS_OFF}")
e(f"v_add_u32 v{PBA}, s63, v1")
SA = 136
e(f"s_mul_i32 s63, s2, {CHB}")
e(f"s_lshl_b32 s97, s{sW}, 12")
e("s_add_u32 s63, s63, s97")
e(f"s_add_u32 s63, s63, {WS_REC}")
e(f"v_add_u32 v{SA}, s63, v1")
e(f"v_add_u32 v{SA+2}, s97, v1")
e(f"v_add_u32 v{SA+1}, {STG}, v{SA+2}")
e(f"v_lshrrev_b32 v{SA+2}, 2, v{SA+2}")
e(f"v_mov_b32 v{SA+3}, 0xfcfcfc")
e(f"s_cmp_eq_u32 s{sW}, 3")
e(f"s_cselect_b64 s[64:65], {(1 << ((CHB-13312)//16)) - 1}, -1")
e("s_cselect_b64 s[66:67], 0, -1")
def wdma():
    for base, a, ptr in ((WE, WA0, sWE), (WH, WA0, sWH), (WH+8192, WA2, sWH)):
        e(f"s_add_u32 m0, s60, {base}")
        e("s_nop 0")
        e(f"global_load_lds_dwordx4 v{a}, {s(ptr,2)}")
W0 = 3 if OPT["wdat"] == -1 else 0
W1 = 3 if OPT["wdat"] <= 0 else 0
if OPT["wdat"] == -1: wdma()
e(f"s_waitcnt vmcnt({6+TV+W0+PT})")
stamp(14)
for i in range(5): e(f"v_mul_u32_u24 v{B4+i}, s61, v{DSTR+i}")
for i in range(5): e(f"v_lshrrev_b32 v{B4+i}, 21, v{B4+i}")
for i in range(5):
    e(f"v_lshlrev_b32 v{B4+i}, 2, v{B4+i}")
    e(f"ds_add_rtn_u32 v{RK+i}, v{B4+i}, v13 offset:{CNT1}")
if OPT["wdat"] == 0: wdma()
e(f"s_cmp_ge_u32 s{sW}, 3")
spare = f"ds_read_b32 v{vTG}, v{ZP}"
if not TV: e(spare)
e(f"s_waitcnt vmcnt({4+TV+W1+PT}) lgkmcnt({1-TV})")
e("s_barrier")
stamp(2)
def nodeprod_reads():
    e(f"ds_read_b128 {v(HF,4)}, v{aWH+1}")
    e(f"ds_read_b128 {v(HF+4,4)}, v{aWH+2}")
    for t in range(4):
        for ks in range(2):
            for rd in range(2):
                e(f"ds_read_b64_tr_b16 {v(WT+8*t+4*ks+2*rd,2)}, v{aWT+t} offset:{ks*4096+rd*512}")
def nodeprod(extra=0):
    e(f"s_mov_b32 s96, {NL2E}")
    for t in range(4):
        e(f"s_waitcnt lgkmcnt({12-4*t+extra})")
        e(f"v_mfma_f32_16x16x32_bf16 {v(DT+4*t,4)}, {v(HF,4)}, {v(WT+8*t,4)}, 0")
        e(f"v_mfma_f32_16x16x32_bf16 {v(DT+4*t,4)}, {v(HF+4,4)}, {v(WT+8*t+4,4)}, {v(DT+4*t,4)}")
def nodescale():
    for i in range(8): e(f"v_pk_mul_f32 {v(DT+2*i,2)}, {v(DT+2*i,2)}, s[96:97] op_sel_hi:[1,0]")
e("s_cbranch_scc1 L_nobp")
nodeprod_reads()
e(f"ds_read_b128 v[4:7], v1 offset:{CNT1}")
if not TV: e(spare)
if OPT["wdat"] == 1: wdma()
nodeprod(2-TV)
e(f"s_cmp_eq_u32 s{sNG}, 2")
e("s_cselect_b32 s63, 0, -1")
nodescale()
for r in range(4):
    e(f"v_cvt_pk_bf16_f32 v{WT+2*r}, v{DT+r}, v{DT+4+r}")
    e(f"v_cvt_pk_bf16_f32 v{WT+2*r+1}, v{DT+8+r}, v{DT+12+r}")
e("s_mov_b32 exec_hi, s63")
for r in range(4): e(f"global_store_dwordx2 v{aWH+3}, {v(WT+2*r,2)}, {s(sWS,2)} offset:{r*128} sc1")
e("s_mov_b64 exec, -1")
e("s_branch L_bpdone")
e.label("L_nobp")
e(f"ds_read_b128 v[4:7], v1 offset:{CNT1}")
if not TV: e(spare)
if OPT.get("prew"):
    e(f"s_cmp_lg_u32 s{sW}, 7")
    e("s_cbranch_scc1 L_bpdone")
    e(f"global_store_dwordx4 v{PBA}, {v(ZQ,4)}, {s(sWS,2)} sc1")
if OPT["wdat"] == 1: wdma()
e.label("L_bpdone")
fine(0)
e(f"s_waitcnt lgkmcnt({1-TV})")
fine(1)
e("v_add_u32 v5, v4, v5")
e("v_add_u32 v6, v5, v6")
e("v_add_u32 v7, v6, v7")
e("v_mov_b32 v3, v7")
scan(3, [f"v_lshlrev_b32 v{XB+i}, 2, v{DSTR+i}" for i in range(5)] +
        [f"v_mad_i32_i24 v{XB+i}, v{B4+i}, s62, v{XB+i}" for i in range(5)] +
        ["s_mov_b32 s63, 0xffff0000", "s_movk_i32 s61, 21846"])
e("v_sub_u32 v8, v3, v7")
e("v_add_u32 v9, v8, v4")
e("v_add_u32 v10, v8, v5")
e("v_add_u32 v11, v8, v6")
e(f"ds_write_b128 v1, v[8:11] offset:{OFF1}")
for i in range(5): e(f"ds_read_b32 v{B4+i}, v{B4+i} offset:{OFF1}")
fine(2)
PN = OPT["pall"]
if PN:
    e(f"s_mul_i32 s97, s{sW}, {PN*1024}")
    e(f"s_add_u32 m0, s97, {POS}")
e(f"s_cmp_ge_u32 s{sW}, 3")
for i in range(PN): e(f"buffer_load_dwordx4 v1, {s(srdPOS,4)}, s97 offen offset:{i*1024} lds")
e(f"s_waitcnt vmcnt({7+TV+PN+PT})")
e("s_cbranch_scc0 L_srcin")
e(f"s_waitcnt vmcnt({3+TV+PN+PT})")
e.label("L_srcin")
fine(3)
e(f"v_lshl_or_b32 v{SRCR}, v{ER}, 16, v{SRCR}")
e(f"v_and_or_b32 v{SRCR+1}, v{ER}, s63, v{SRCR+1}")
e(f"v_lshl_or_b32 v{SRCR+2}, v{ER+1}, 16, v{SRCR+2}")
e(f"v_and_or_b32 v{SRCR+3}, v{ER+1}, s63, v{SRCR+3}")
e(f"v_or_b32 v{SRCR+4}, v{ER+2}, v{SRCR+4}")
for i in range(5):
    e(f"s_waitcnt lgkmcnt({4+i})")
    e(f"v_add_u32 v{B4+i}, v{B4+i}, v{RK+i}")
    e(f"v_mul_u32_u24 v{QQ+i}, s61, v{B4+i}")
    e(f"v_add_u32_sdwa v{QQ+i}, v{B4+i}, v{QQ+i} {SD} src0_sel:DWORD src1_sel:WORD_1")
    e(f"v_lshlrev_b32 v{RK+i}, 2, v{QQ+i}")
    e(f"ds_write_b8 v{QQ+i}, v{XB+i} offset:{STB}")
    e(f"ds_write_b32 v{RK+i}, v{SRCR+i} offset:{STG}")
fine(4)
e(f"s_cmp_lg_u32 s{sW}, 7")
e("s_cbranch_scc1 L_nopb")
for r in (8, 9, 10, 11, 3):
    e(f"v_mul_u32_u24 v2, s61, v{r}")
    e("v_lshrrev_b32 v2, 16, v2")
    e(f"v_add_lshl_u32 v{r}, v{r}, v2, 2")
e(f"v_lshl_or_b32 v{PB}, v9, 16, v8")
e(f"v_lshl_or_b32 v{PB+1}, v11, 16, v10")
e(f"v_mov_b32 v{PB+2}, v3")
e.label("L_nopb")
fine(5)
e(f"s_waitcnt vmcnt({PN})")
fine(6)
def posloop(name, w0, nw):
    e(f"s_sub_u32 s61, s{sW}, {w0}")
    e(f"s_cmp_ge_u32 s61, {nw}")
    e(f"s_cbranch_scc1 L_{name}e")
    e("s_lshl_b32 s61, s61, 12")
    if PN: e(f"s_add_u32 s61, s61, {PN*8192}")
    e(f"v_lshlrev_b32 v6, 4, v{L}")
    e.label(f"L_{name}")
    e(f"s_add_u32 m0, s61, {POS}")
    e("s_nop 0")
    for i in range(4): e(f"buffer_load_dwordx4 v6, {s(srdPOS,4)}, s61 offen offset:{i*1024} lds")
    e(f"s_add_u32 s61, s61, {4096*nw}")
    e(f"s_cmp_lt_u32 s61, {61440 - OPT['pfet']*8192}")
    e(f"s_cbranch_scc1 L_{name}")
    e.label(f"L_{name}e")
if OPT["posat"][0] == "b2": posloop("pl", *OPT["posat"][1:])
if TV: e(f"v_readfirstlane_b32 s{sTAG}, v{vTG}\ns_nop 0")
else: e("s_waitcnt lgkmcnt(0)")
e(f"s_add_u32 s{sTAG}, s{sTAG}, {TAGC}")
e(f"v_mov_b32 v{PB+3}, s{sTAG}")
e(f"s_cmp_ge_u32 s{sW}, 4")
e("s_waitcnt lgkmcnt(0)")
fine(7)
e("s_barrier")
stamp(3)
ST = 48
e("s_cbranch_scc1 L_nost")
for i in range(4):
    e(f"ds_read_b128 {v(ST+4*i,4)}, v{SA+1} offset:{i*1024}")
    e(f"ds_read_b32 v{8+i}, v{SA+2} offset:{STB+i*256}")
def tagpat():
    e(f"s_and_b32 s{sT}, s{sTAG}, 0xc000")
    e(f"s_lshl_b32 s60, s{sTAG}, 2")
    e(f"s_and_b32 s{sT+1}, s60, 0xc000")
    e(f"s_lshl_b32 s60, s{sTAG}, 4")
    e(f"s_and_b32 s{sT+2}, s60, 0xc000")
    e(f"s_and_b32 s{sT+3}, s{sTAG}, {M3}")
tagpat()
for i in range(4):
    e(f"s_waitcnt lgkmcnt({6-2*i})")
    if i == 1: e("s_mov_b64 exec, s[64:65]")
    if i == 2: e("s_mov_b64 exec, s[66:67]")
    for k in range(3): e(f"v_or_b32 v{ST+4*i+k}, s{sT+k}, v{ST+4*i+k}")
    e(f"v_and_or_b32 v{ST+4*i+3}, v{8+i}, v{SA+3}, s{sT+3}")
    e(f"global_store_dwordx4 v{SA}, {v(ST+4*i,4)}, {s(sWS,2)} offset:{i*1024} sc1")
e("s_mov_b64 exec, -1")
fine(1, 2)
e.label("L_nost")
fine(0, 2)
e(f"s_cmp_lg_u32 s{sW}, 7")
e("s_cbranch_scc1 L_nopub")
e(f"global_store_dwordx4 v{PBA}, {v(PB,4)}, {s(sWS,2)} sc1")
e.label("L_nopub")
tagpat()
stamp(15, wait=True)
finedump(8)
PL = 160; vPA = 164; vPW = 165
def site(n):
    if OPT["posat"][0] == f"pre{n}": posloop("pl", *OPT["posat"][1:])
    if OPT["pollat"] == n:
        pollsetup()
        fine(3, 2)
    if OPT["posat"][0] == f"post{n}": posloop("pl", *OPT["posat"][1:])
def pollsetup():
    e("v_and_b32 v1, 255, v0")
    e(f"s_lshr_b32 s60, s{sB}, 2")
    e("s_lshl_b32 s60, s60, 4")
    e(f"s_add_u32 s60, s60, {WS_OFF}")
    e(f"v_lshl_add_u32 v{vPA}, v1, 10, s60")
    e(f"s_cmp_lt_u32 s{sW}, 4")
    e("s_cbranch_scc1 L_nops")
    e(f"v_cmp_gt_u32 vcc, {NWG}, v1")
    for i in range(3): e(f"v_mov_b32 v{PL+i}, 0")
    e(f"v_mov_b32 v{PL+3}, s{sTAG}")
    e(f"v_lshlrev_b32 v{vPW}, 2, v1")
    e("s_mov_b64 exec, vcc")
    e(f"global_load_dwordx4 {v(PL,4)}, v{vPA}, {s(sWS,2)} sc1")
    e("s_mov_b64 exec, -1")
    e.label("L_nops")
e(f"s_mov_b32 s{sBUD}, 2000000")
e(f"ds_read_u16_d16_hi v{WX}, v{CA0} offset:{WL}")
e(f"ds_read_u16_d16_hi v{WX+1}, v{CA0} offset:{WL+128}")
site(0)
e(f"s_cmp_ge_u32 s{sW}, 6")
e("s_cbranch_scc1 L_w67")
e(f"s_cmp_ge_u32 s{sW}, 3")
e("s_cbranch_scc1 L_w345")
for i in range(4): e(f"v_mov_b32 v{HRES+i}, v{HF+i}")
e("s_branch L_w05")
e.label("L_w345")
nodeprod_reads()
e(f"v_and_b32 v1, 15, v{L}")
e(f"v_lshrrev_b32 v3, 4, v{L}")
e(f"s_lshl_b32 s60, s{sNG}, 5")
e(f"s_add_u32 s60, s60, {AT}")
e("v_lshl_add_u32 v2, v3, 3, s60")
e(f"v_mul_u32_u24 v1, {ATS}, v1")
e("v_add_u32 v2, v1, v2")
nodeprod()
e("s_nop 1")
nodescale()
for t in range(4):
    e(f"v_cvt_pk_bf16_f32 v{WT+2*t}, v{DT+4*t}, v{DT+4*t+1}")
    e(f"v_cvt_pk_bf16_f32 v{WT+2*t+1}, v{DT+4*t+2}, v{DT+4*t+3}")
for i in range(4): e(f"v_mov_b32 v{HRES+i}, v{HF+4+i}")
for t in range(4): e(f"ds_write_b64 v2, {v(WT+2*t,2)} offset:{t*16*ATS}")
e.label("L_w05")
def part2():
    for t in range(2):
        for ks in range(2):
            for rd in range(2):
                e(f"ds_read_b64_tr_b16 {v(W1T+8*t+4*ks+2*rd,2)}, v{aWH} offset:{ks*4096+rd*512+t*8}")
    for t in range(2):
        for c in range(2):
            for rd in range(2):
                e(f"ds_read_b64_tr_b16 {v(WH2+8*t+4*c+2*rd,2)}, v{aWH} offset:{(2+c)*4096+rd*512+t*8}")
    e(f"s_lshl_b32 s60, s{sNG}, 4")
    e(f"v_and_b32 v1, 15, v{L}")
    e(f"v_add_lshl_u32 v{vAItem}, v1, s60, 2")
    e("s_waitcnt lgkmcnt(8)")
    for t in range(2):
        e(f"v_mfma_f32_16x16x32_bf16 {v(H1+4*t,4)}, {v(W1T+8*t,4)}, {v(HF,4)}, 0")
        e(f"v_mfma_f32_16x16x32_bf16 {v(H1+4*t,4)}, {v(W1T+8*t+4,4)}, {v(HF+4,4)}, {v(H1+4*t,4)}")
    e(f"v_and_b32 v2, 48, v{L}")
    e(f"v_lshlrev_b32 v{vFO}, 1, v2")
    e(f"v_add_u32 v{vFO}, {BF}, v{vFO}")
    e(f"s_lshl_b32 s60, s{sN0}, 1")
    e(f"s_add_u32 s60, s60, s{sCHF}")
    e("s_lshl_b32 s60, s60, 6")
    if OPT["otr"]:
        e(f"s_lshl_b32 s61, s{sNG}, 4")
        e(f"v_lshrrev_b32 v2, 2, v{L}")
        e("v_add_u32 v2, s61, v2")
        e(f"v_cmp_gt_u32 {s(sOM,2)}, {NB}, v2")
        e("v_lshl_add_u32 v2, v2, 7, s60")
        e(f"v_and_b32 v1, 3, v{L}")
        e(f"v_lshl_add_u32 v{vOA}, v1, 4, v2")
    else:
        e(f"v_lshl_add_u32 v2, v{vAItem}, 5, v2")
        e(f"v_add_u32 v{vOA}, s60, v2")
        e(f"s_movk_i32 s60, {NB*4}")
        e(f"v_cmp_gt_u32 {s(sOM,2)}, s60, v{vAItem}")
    for i in range(4): e(f"v_pk_mul_f32 {v(H1+2*i,2)}, {v(H1+2*i,2)}, s[96:97] op_sel_hi:[1,0]")
def part3():
    e(f"v_mul_u32_u24 v1, {ACCS//4}, v{vAItem}")
    e(f"v_add_u32 v1, {ACC-BF}, v1")
    e(f"v_add_u32 v{vFA}, v1, v{vFO}")
    e(f"v_mul_f32 v{WX}, {NL2E}, v{WX}")
    e(f"v_mul_f32 v{WX+1}, {NL2E}, v{WX+1}")
    e(f"v_cvt_pk_bf16_f32 v1, v{WX}, v{WX}")
    e("v_and_b32 v1, 0xffff0000, v1")
    e(f"v_sub_f32 v2, v{WX}, v1")
    e(f"v_cvt_pk_bf16_f32 v{WX}, v1, v2")
    e(f"v_mov_b32 v1, {hex((127-60) << 23)}")
    e(f"v_cvt_pk_bf16_f32 v{WX+1}, v1, v{WX+1}")
if OPT["p2at"] == "win": part2()
e("s_branch L_wdone")
e.label("L_w67")
e(f"ds_read_u16_d16_hi v4, v{CA0} offset:{WXL}")
e("v_and_b32 v6, 127, v0")
e(f"v_min_u32 v7, 119, v6")
e(f"s_mul_i32 s60, s{sB}, 240")
e(f"v_lshl_add_u32 v1, v7, 1, s60")
e(f"global_load_short_d16_hi v{vPosOwn}, v1, {s(sPOS,2)}")
e("s_add_u32 s60, s60, 1280000")
e(f"v_lshl_add_u32 v{vOA}, v6, 1, s60")
e("s_movk_i32 s60, 120")
e(f"v_cmp_gt_u32 {s(sOM,2)}, s60, v6")
e(f"v_mul_u32_u24 v1, 171, v7")
e("v_lshrrev_b32 v1, 9, v1")
e(f"v_mad_i32_i24 v2, v1, -3, v7")
e(f"v_lshlrev_b32 v{vAItem}, 2, v1")
e(f"v_lshl_add_u32 v{H1}, v2, 8, v{vAItem}")
e(f"v_lshlrev_b32 v{vFO}, 3, v2")
e(f"v_add_u32 v{vFO}, {BF+256}, v{vFO}")
e(f"v_bfe_u32 v1, v{L}, 2, 1")
e(f"v_lshrrev_b32 v2, 3, v{L}")
e(f"v_and_b32 v3, 3, v{L}")
e("v_lshl_add_u32 v2, v2, 2, v3")
e("v_lshl_add_u32 v2, v1, 5, v2")
e("v_lshlrev_b32 v2, 2, v2")
e("s_waitcnt lgkmcnt(0)")
e(f"v_mul_f32 v4, {NLN2}, v4")
e(f"ds_write_b32 v2, v4 offset:{WXT}")
e(f"v_lshlrev_b32 v2, 2, v{L}")
e(f"v_lshlrev_b32 v4, 3, v{L}")
e(f"ds_write_b32 v2, v4 offset:{PD+768}")
e.label("L_wdone")
stamp(4, wait=True)
site(1)
if OPT["p2at"] == "win": part3()
if OPT["lcat"] != "start": laneconsts()
if OPT["lcat"] == "win": laneconsts2()
RA = 16; XP = 36; KA = 80; LK = 96; AD = 112; RR = 117; DD = 122; LN = 127; vSB = 132; vJ = 133; vPF = 134
mk = lambda p, k: sMK + 2 * (3 * p + k)
sLB = sMK + 30
def presets(ps):
    for p in ps:
        for k in range(4): e(f"v_mov_b32 v{RA+4*p+k}, s{sT+k}")
def batchsetup():
    e("v_lshrrev_b32 v1, 3, v0")
    e("v_and_b32 v2, 7, v0")
    e(f"v_lshlrev_b32 v{vJ}, 4, v2")
    e(f"v_mul_u32_u24 v1, {CHB}, v1")
    e(f"v_add_u32 v{vSB}, v1, v{vJ}")
    presets(range(4))
batchsetup()
for p in range(4):
    e(f"s_add_u32 s{sRB+2*p}, s{sWS}, {WS_REC + p*64*CHB}")
    e(f"s_addc_u32 s{sRB+2*p+1}, s{sWS+1}, 0")
e("s_andn2_b32 s60, s2, 7")
e(f"s_add_u32 s60, s60, s{sW}")
e("s_mul_i32 s60, s60, 41")
e(f"v_add_u32 v{vPF}, s60, v{L}")
e(f"s_bfm_b64 {s(sPF,2)}, {OPT.get('pfn', 26)}, 0")
if Z1 > Z0: zero(Z0, Z1)
site(2)
e("v_lshrrev_b32 v6, 3, v0")
e("v_lshlrev_b32 v6, 2, v6")
stamp(5, wait=True)
fine(4, 2)
if OPT.get("fine") == 2:
    e("s_waitcnt vmcnt(1)")
    fine(5, 2)
    e("s_waitcnt vmcnt(0)")
    fine(6, 2)
e(f"s_cmp_lt_u32 s{sW}, 4")
e("s_cbranch_scc1 L_b3")
e(f"s_and_b32 s3, s{sB}, 1")
e("s_lshl_b32 s3, s3, 4")
e.label("L_poll")
e(f"s_sub_u32 s{sBUD}, s{sBUD}, 1")
e("s_waitcnt vmcnt(0)")
e(f"v_cmp_ne_u32 vcc, s{sTAG}, v{PL+3}")
e("s_cbranch_scc1 L_pollout")
e("s_cbranch_vccz L_gotoff")
e("s_mov_b64 exec, vcc")
e(f"global_load_dwordx4 {v(PL,4)}, v{vPA}, {s(sWS,2)} sc1")
e("s_branch L_poll")
e.label("L_gotoff")
e("s_mov_b64 exec, -1")
e(f"s_bitcmp1_b32 s{sB}, 1")
e(f"v_alignbit_b32 v3, v{PL+1}, v{PL}, s3")
e(f"v_alignbit_b32 v4, v{PL+2}, v{PL+1}, s3")
e("s_cselect_b64 vcc, -1, 0")
e("v_cndmask_b32 v3, v3, v4, vcc")
e(f"ds_write_b32 v{vPW}, v3 offset:{OFF1}")
e(f"s_cmp_lt_u32 s{sW}, 6")
e("s_cbranch_scc1 L_b3")
e(f"ds_write_b32 v{H1}, v{vPosOwn} offset:{PD}")
e.label("L_b3")
fine(7, 2)
e("s_waitcnt lgkmcnt(0)")
e("s_barrier")
e(f"ds_read2st64_b32 {v(SEG,2)}, v6 offset0:{OFF1//256} offset1:{OFF1//256+1}")
e(f"ds_read2st64_b32 {v(SEG+2,2)}, v6 offset0:{OFF1//256+2} offset1:{OFF1//256+3}")
e("s_waitcnt lgkmcnt(0)")
stamp(6)
finedump(8, 2)
e.label("L_fetch")
for p in range(4):
    e(f"v_and_b32 v{AD+p}, 0xfff0, v{SEG+p}")
    e(f"v_sub_u32_sdwa v{RR+p}, v{SEG+p}, v{AD+p} {SD} src0_sel:WORD_1 src1_sel:DWORD")
    e(f"v_add_u32 v{AD+p}, v{AD+p}, v{vSB}")
    e(f"v_cmp_lt_i32 vcc, v{vJ}, v{RR+p}")
    e("s_mov_b64 exec, vcc")
    e(f"global_load_dwordx4 {v(RA+4*p,4)}, v{AD+p}, {s(sRB+2*p,2)} sc1")
    e("s_mov_b64 exec, -1")
e(f"v_max3_i32 v3, v{RR}, v{RR+1}, v{RR+2}")
e(f"v_max_i32 v3, v3, v{RR+3}")
e("v_mov_b32 v13, 8")
e(f"v_cmp_lt_i32 vcc, s{sWID}, v3")
e(f"s_or_b32 s{sANYB}, vcc_lo, vcc_hi")
e("s_cbranch_scc0 L_nob0")
e(f"s_cmp_eq_u32 s{sWID}, {NARROW}")
e("s_cbranch_scc1 L_narrow")
e(f"v_mov_b32 v{RR+4}, 0")
e(f"v_mov_b32 v{AD+4}, 0")
e("v_mov_b32 v4, 0")
for p in (3, 2, 1, 0):
    e(f"v_cmp_lt_i32 vcc, 0x80, v{RR+p}")
    e(f"v_add_u32 v5, {p*64*CHB}, v{AD+p}")
    e("s_nop 0")
    e(f"v_cndmask_b32 v{RR+4}, v{RR+4}, v{RR+p}, vcc")
    e(f"v_cndmask_b32 v{AD+4}, v{AD+4}, v5, vcc")
    e("v_addc_co_u32 v4, vcc, 0, v4, vcc")
e(f"v_subrev_u32 v{LN+4}, 0x80, v{RR+4}")
e(f"v_max_i32 v{LN+4}, 0, v{LN+4}")
presets([4])
e(f"v_cmp_lt_i32 {s(sLB,2)}, v{vJ}, v{LN+4}")
e("v_cmp_lt_i32 vcc, 0x100, v3")
e("v_cmp_lt_i32 s[60:61], 1, v4")
e(f"s_mov_b64 exec, {s(sLB,2)}")
e(f"global_load_dwordx4 {v(RA+16,4)}, v{AD+4}, {s(sRB,2)} offset:128 sc1")
e("s_or_b64 exec, vcc, s[60:61]")
e(f"ds_write_b32 v{ZP}, v13 offset:{CNT2+252}")
e("s_mov_b64 exec, -1")
for k in range(3):
    e(f"v_add_u32 v5, {4*k}, v{vJ}")
    e(f"v_cmp_lt_u32 {s(mk(4,k),2)}, v5, v{LN+4}")
e.label("L_nob0")
e(f"s_cmp_lg_u32 s{sONCE}, 0")
e("s_cbranch_scc1 L_once")
e(f"s_mov_b32 s{sONCE}, 1")
zero(0, 2)
if Z1 < 6: zero(Z1, 6)
if OPT["p2at"] == "fetch":
    e(f"s_cmp_ge_u32 s{sW}, 6")
    e("s_cbranch_scc1 L_nop2")
    part2()
    e.label("L_nop2")
    part3()
if OPT["lcat"] == "fetch": laneconsts2()
e.label("L_once")
PFE = OPT["pfet"]
for p in range(4):
    e(f"v_and_b32 v4, 15, v{SEG+p}")
    e(f"v_sub_u32 v{LN+p}, v{RR+p}, v4")
    e(f"v_sub_u32 v4, v{vJ}, v4")
    e("v_add_u32 v5, 4, v4")
    e("v_add_u32 v6, 8, v4")
    for k in range(3): e(f"v_cmp_lt_u32 {s(mk(p,k),2)}, v{4+k}, v{LN+p}")
e(f"v_lshlrev_b32 v1, 2, v{L}")
e(f"v_cmp_gt_u32 {s(sVAL,2)}, {NB}, v{L}")
e("v_mov_b32 v4, 0")
e("v_mov_b32 v5, 0")
e("s_movk_i32 s62, 0xfc")
e(f"s_mov_b32 s63, {M3}")
def bpf(at):
    if OPT["bpf"] != at: return
    e(f"s_mov_b64 exec, {s(sPF,2)}")
    e(f"buffer_load_dword v{vPF+1}, v{vPF}, {s(srdBP,4)}, 0 idxen")
    e("s_mov_b64 exec, -1")
if PFE:
    e(f"s_mul_i32 s61, s{sW}, {PFE*1024}")
    e(f"s_add_u32 s61, s61, {61440 - PFE*8192}")
    e(f"s_add_u32 m0, s61, {POS}")
    e(f"v_lshlrev_b32 v6, 4, v{L}")
    for i in range(PFE): e(f"buffer_load_dwordx4 v6, {s(srdPOS,4)}, s61 offen offset:{i*1024} lds")
bpf(2)
XV = (1 if OPT["bpf"] == 2 else 0) + PFE
def five(name, body):
    for p in range(4): body(p)
    e(f"s_cmp_eq_u32 s{sANYB}, 0")
    e(f"s_cbranch_scc1 L_{name}")
    body(4)
    e.label(f"L_{name}")
def chk(p):
    if p < 4: e(f"s_waitcnt vmcnt({3-p+XV})")
    for k in range(4): e(f"v_bitop3_b32 v{4 if k < 3 else 5}, v{4 if k < 3 else 5}, v{RA+4*p+k}, s{sT+k} bitop3:0xf6")
five("bx", chk)
e("v_and_b32 v4, 0xc000, v4")
e("v_and_or_b32 v4, v5, s63, v4")
e("v_cmp_ne_u32 vcc, 0, v4")
e("s_cbranch_vccnz L_stale")
e.label("L_gotrec")
stamp(7, wait=True)
def atom(p):
    if p: e("s_mov_b64 exec, -1")
    for k in range(3): e(f"v_and_b32_sdwa v{XP+6*p+2*k}, s62, v{RA+4*p+3} {SD} src0_sel:DWORD src1_sel:BYTE_{k}")
    for k in range(3):
        e(f"s_mov_b64 exec, {s(mk(p,k),2)}")
        e(f"ds_add_rtn_u32 v{KA+3*p+k}, v{XP+6*p+2*k}, v13 offset:{CNT2}")
five("ba", atom)
bpf(1)
e("s_mov_b64 exec, -1")
e("s_waitcnt lgkmcnt(0)")
e("s_barrier")
stamp(8)
e(f"ds_read_b32 v2, v1 offset:{CNT2}")
clean = [f"v_xor_b32 v{XP+6*p+2*k+1}, s{sT+k}, v{RA+4*p+k}" for p in range(5) for k in range(3)]
for x in clean[:5]: e(x)
e("s_waitcnt lgkmcnt(0)")
e(f"v_max_u32 v4, {PADB}, v2")
e(f"v_cndmask_b32 v5, 0, v4, {s(sVAL,2)}")
e(f"v_subrev_u32 v6, {SORT2}, v4")
scan(5, [f"v_readlane_b32 s{sMORE}, v2, 63", "v_cmp_lt_u32 vcc, v2, v4"] + clean[5:])
e(f"v_sub_u32 v6, v5, v6")
e(f"ds_write_b32 v1, v6 offset:{BASE2}")
def look(p):
    for k in range(3): e(f"ds_read_b32 v{LK+3*p+k}, v{XP+6*p+2*k} offset:{BASE2}")
five("bl", look)
e(f"v_readlane_b32 s3, v5, 63")
e(f"s_cmp_gt_u32 s3, {CAPB}")
e("s_cbranch_scc1 L_redo")
e(f"s_and_b64 vcc, vcc, {s(sVAL,2)}")
e("s_cbranch_scc1 L_pad0")
e.label("L_nopad")
e("s_add_u32 s96, s3, 127")
e("s_lshr_b32 s60, s96, 10")
e("s_bfe_u32 s61, s96, 0x30007")
e(f"s_mul_i32 s62, s60, s{sW}")
e(f"s_min_u32 s63, s61, s{sW}")
e("s_add_u32 s62, s62, s63")
e(f"s_cmp_lt_u32 s{sW}, s61")
e(f"s_addc_u32 s{sCNT}, s60, 0")
e("s_lshl_b32 s62, s62, 7")
e("v_cmp_ge_u32 vcc, s62, v5")
e(f"s_lshl_b32 s63, s{sCNT}, 7")
e("s_add_u32 s63, s63, s62")
e("v_cmp_gt_u32 s[60:61], s63, v5")
e("s_waitcnt lgkmcnt(0)")
def put(p):
    for k in range(3):
        e(f"s_mov_b64 exec, {s(mk(p,k),2)}")
        e(f"v_add_u32 v{LK+3*p+k}, v{LK+3*p+k}, v{KA+3*p+k}")
        e(f"ds_write_b64 v{LK+3*p+k}, {v(XP+6*p+2*k,2)}")
five("bw", put)
e("s_mov_b64 exec, -1")
e(f"s_bcnt1_i32_b64 s{sNFW}, vcc")
e(f"s_lshl_b32 s{sBASE}, s{sNFW}, 2")
e(f"s_or_b32 s{sSLOW}, s{sMULTI}, s{sMORE}")
e(f"s_cselect_b32 s{sNFW}, 252, s{sBASE}")
e(f"s_lshl_b32 s63, 1, s{sW}")
e(f"v_mov_b32 v7, s{sNFW}")
e("v_mov_b32 v8, s63")
e(f"s_lshl_b32 s63, s{sW}, 6")
e("s_add_u32 s3, s3, s63")
e(f"s_add_u32 s3, s3, {SORT2}")
e("v_lshl_add_u32 v9, v1, 1, s3")
e(f"v_mov_b32 v10, {(NB-1)*4}")
e(f"v_mov_b32 v11, {MARK}")
e("s_mov_b64 exec, 1")
e(f"ds_or_b32 v7, v8 offset:{LNK}")
e("s_mov_b64 exec, 0xff")
e("ds_write_b64 v9, v[10:11]")
e("s_mov_b64 exec, -1")
e(f"s_add_u32 s62, s62, {SORT2}")
e(f"v_lshl_add_u32 v{aRec}, v{L}, 3, s62")
e(f"v_add3_u32 v{aIdx}, s62, 4, v{vIdxL}")
PI = E[1] + 8
for n in range(DEP): e(f"v_mov_b32 v{PI+2*n+1}, v{IDX+1}")
for c in range(2): e(f"v_mfma_f32_32x32x8_bf16 {v(AC[c],16)}, {v(ZP,2)}, {v(ZP,2)}, 0")
e(f"s_bcnt1_i32_b64 s{sNLW}, s[60:61]")
e(f"s_min_u32 s{sNLW}, s{sNLW}, {NB-1}")
e(f"s_lshl_b32 s{sNLW}, s{sNLW}, 2")
e(f"s_sub_u32 s{sCNT}, s{sCNT}, {DEP+1}")
e("s_setprio 3")
e("s_waitcnt vmcnt(1) lgkmcnt(0)" if PFE else "s_waitcnt lgkmcnt(0)")
e("s_barrier")
stamp(9)
def gather(b, pair):
    return [f"buffer_load_dwordx4 {v(G[b&1],4)}, {v(pair,2)}, {s(srdBP,4)}, 0 idxen offen",
            f"buffer_load_dwordx4 {v(G[b&1]+4,4)}, {v(pair,2)}, {s(srdBP,4)}, 0 idxen offen offset:64"]
recread = lambda o: f"ds_read_b64 {v(REC,2)}, v{aRec} offset:{o}"
posaddr = f"v_mul_u32_u24_sdwa v{BT}, 6, v{REC+1} {SD} src0_sel:DWORD src1_sel:WORD_0"
posreads = [f"ds_read_u16_d16_hi v{PS+i}, v{BT} offset:{POS+2*i}" for i in range(3)] + \
           [f"ds_read2st64_b32 {v(PDV,2)}, v{REC} offset0:{PD//256} offset1:{PD//256+1}",
            f"ds_read2st64_b32 {v(PDV+2,2)}, v{REC} offset0:{PD//256+2} offset1:{PD//256+3}"]
build1 = [f"v_readlane_b32 s{sNF}, v{REC}, 0", None,
          f"s_and_b32 s60, s{sNF}, -8\ns_mul_i32 s{sNEG}, s60, -4\ns_lshr_b32 s60, s60, 1",
          f"v_lshl_add_u32 v{BT+1}, v{REC}, 2, s{sNEG}",
          f"v_add_u32 v{aAT}, s60, v{aATb}",
          f"v_lshlrev_b64 {v(REC+2,2)}, v{BT+1}, {s(sOHC,2)}"]
build2 = [f"v_sub_f32 v{PDV+2}, v{PDV+2}, v{PS+2}",
          f"v_cvt_pk_bf16_f32 v{R2V+1}, v{PDV+2}, 1.0",
          f"v_lshlrev_b32 v{BT+1}, 16, v{R2V+1}",
          f"v_mul_f32 v{BT}, v{BT+1}, v{BT+1}",
          f"v_pk_add_f32 {v(PDV,2)}, {v(PDV,2)}, {v(PS,2)} neg_lo:[0,1] neg_hi:[0,1]",
          f"v_cvt_pk_bf16_f32 v{R2V}, v{PDV}, v{PDV+1}",
          f"v_dot2_f32_bf16 v{BT}, v{R2V}, v{R2V}, v{BT}",
          f"v_bitop3_b32 v{aR2}, v{PDV+3}, 56, v{aR2b} bitop3:0x6a",
          None, None,
          f"v_cvt_pk_bf16_f32 v{REC}, v{BT}, v{BT}"]
clearold = f"ds_write_b64 v{aR2}, {v(ZP,2)}"
build3 = [f"ds_write_b128 v{aR1w}, {v(REC,4)}",
          f"ds_write_b64 v{aR2}, {v(R2V,2)}",
          f"ds_read2_b32 {v(WX+2,2)}, v{aAT} offset1:1"]
def opreads(n):
    return [f"ds_read_b128 {v(R1OP,4)}, v{aR1r} offset:{n*256}",
            f"ds_read_b64_tr_b16 {v(S[n],2)}, v{aS0} offset:{n*1024}",
            f"ds_read_b64_tr_b16 {v(S[n]+2,2)}, v{aS1} offset:{n*1024}"]
def stage1(n):
    t = T[n & 1]
    return [f"v_mfma_f32_32x32x16_bf16 {v(t,16)}, {v(R1OP,4)}, {v(WX,4)}, 0",
            f"v_mfma_f32_32x32x16_bf16 {v(t,16)}, {v(G[n&1],4)}, {v(I0,4)}, {v(t,16)}",
            f"v_mfma_f32_32x32x16_bf16 {v(t,16)}, {v(G[n&1]+4,4)}, {v(I1,4)}, {v(t,16)}"]
def stage2(n):
    return [f"v_mfma_f32_32x32x16_bf16 {v(AC[c],16)}, {v(M[c],4)}, {v(S[n],4)}, {v(AC[c],16)}" for c in range(2)]
def pkmul(q): return [f"v_pk_mul_f32 {v(E[q]+2*i,2)}, {v(E[q]+2*i,2)}, {v(T[q]+2*i,2)}" for i in range(8)]
def cvt(q): return [f"v_cvt_pk_bf16_f32 v{M[c]+a}, v{E[q]+4*a+c}, v{E[q]+4*a+2+c}" for a in range(4) for c in range(2)]
def flushchk(lbl):
    e(f"s_add_u32 s60, s{sNF}, 8")
    e(f"s_min_u32 s60, s60, s{sNLW}")
    e(f"s_sub_u32 s60, s60, s{sBASE}")
    e("s_cmp_ge_u32 s60, 32")
    e(f"s_cbranch_scc1 L_flush_{lbl}")
    e.label(f"L_flret_{lbl}")
def rowaddr():
    return [f"v_subrev_u32 v4, s{sBASE}, v{L}",
            "v_and_b32 v4, 28, v4",
            f"v_add_u32 v4, s{sBASE}, v4",
            f"v_cmp_eq_u32 vcc, s{sNFW}, v4",
            f"v_cmp_lt_u32 s[62:63], s{sNLW}, v4",
            f"s_lshl_b32 s61, s{sW}, 2",
            f"s_add_u32 s61, s61, {NB*4}",
            "v_mov_b32 v7, s61",
            "v_cndmask_b32 v4, v4, v7, vcc",
            f"v_mov_b32 v7, {OOB//64}",
            "v_cndmask_b32 v4, v4, v7, s[62:63]",
            f"v_mul_u32_u24 v4, {ACCS//4}, v4",
            f"v_add_u32 v4, {ACC}, v4",
            f"v_lshrrev_b32 v7, 5, v{L}",
            f"v_lshl_add_u32 v{vRowM}, v7, 4, v4",
            f"v_lshl_add_u32 v4, v7, 2, v4",
            f"v_and_b32 v7, 3, v{L}",
            f"v_lshl_add_u32 v{vRowP}, v7, 3, v4"]
def bfaddr():
    return [f"v_ffbl_b32 v5, v{vMask}",
            f"v_add_u32 v6, -1, v{vMask}",
            f"v_min_u32 v5, {OOB//256}, v5",
            f"v_and_b32 v{vMask}, v6, v{vMask}",
            f"v_mul_u32_u24 v5, {ACCS}, v5",
            f"v_add_u32 v{vFB}, v{vFO}, v5"]
def mmask():
    e("s_mov_b32 exec_lo, 0x88888888")
    e("s_mov_b32 exec_hi, 0x88888888")
def flush_slow():
    e("s_nop 7")
    e("v_mov_b32 v2, 0")
    for i in range(8):
        e(f"ds_read_b128 v[4:7], v{vWxa} offset:{WXT+16*i}")
        e("s_waitcnt lgkmcnt(0)")
        for r in range(4): e(f"v_fmac_f32 v2, v{AC[0]+4*i+r}, v{4+r}")
    e(f"ds_add_f32 v{vRowP}, v2 offset:256")
    mmask()
    for i in range(32): e(f"ds_add_f32 v{vRowM}, v{AC[0]+i} offset:{(i//4)*32+(i%4)*4}")
    e("s_mov_b64 exec, -1")

def step(sidx, first=False):
    q = sidx & 1; n1 = (sidx + 1) & 3
    R = OPT["ramp"]
    e("s_setprio 0")
    if sidx == 1: flushchk("mid")
    mem = gather(sidx + DEP, IDX) + [f"ds_read_u16 v{IDX}, v{aIdx} offset:{(sidx+DEP+1)*128}"]
    if sidx == 3: mem += build3
    mem += opreads(n1)
    if sidx == 3: mem += [recread(1024)]
    if sidx == 1: mem += posreads
    if sidx == 2: mem += [clearold]
    oth = {0: [posaddr], 1: build1, 2: build2, 3: [f"v_add_u32 v{aIdx}, 512, v{aIdx}", f"v_add_u32 v{aRec}, 512, v{aRec}"]}[sidx]
    for y in mem: e(y)
    oth = list(oth)
    for i in range(16):
        if i == R[0]: e("s_setprio 1")
        if i == R[1]: e("s_setprio 2")
        e(f"v_exp_f32 v{E[q]+i}, v{T[q]+i}")
        if i == 6 and OPT.get("addn"):
            for _ in range(OPT["addn"]): e("v_nop")
        if i == 6 and OPT.get("addm"): e(f"v_mfma_f32_32x32x16_bf16 v[136:151], {v(M[0],4)}, {v(I0,4)}, v[136:151]")
        if i >= R[0] - 1 and oth:
            y = oth.pop(0)
            if y: e(y)
    assert not oth
    addone = f"{OPT.get('ao', 'v_mfma_f32_32x32x8_bf16')} {v(E[q],16)}, {v(ONE,2)}, {v(ONE,2)}, {v(E[q],16)}"
    if R[1] >= 16: e("s_setprio 2")
    elif R[2] == 1: e("s_setprio 3")
    elif first: e("s_nop 0")
    if first:
        e("s_nop 0"); e(addone); e("s_nop 7")
    else:
        for x in pkmul(1 - q): e(x)
        e(addone)
        for x in cvt(1 - q): e(x)
    e(f"s_sub_u32 s{sCNT}, s{sCNT}, 1")
    e("s_waitcnt vmcnt(2) lgkmcnt(0)")
    mf = stage1(n1) + ([] if first else stage2((sidx - 1) & 3))
    for i in range(16):
        if i % 3 == 0 and i // 3 < len(mf):
            e(mf[i // 3])
            if i == 0: e("s_setprio 3" if R[2] != 1 else "s_nop 0")
        e(f"v_rcp_f32 v{E[q]+i}, v{E[q]+i}")
    e(f"s_cbranch_scc1 L_evt{sidx}")

e(recread(0))
e(f"ds_read_u16 v{PI}, v{aIdx}")
e(f"ds_read_u16 v{PI+2}, v{aIdx} offset:128")
e(f"ds_read_u16 v{IDX}, v{aIdx} offset:{DEP*128}")
e("s_waitcnt lgkmcnt(2)")
e(posaddr)
for x in posreads: e(x)
for x in gather(0, PI): e(x)
e(clearold)
for x in build1:
    if x: e(x)
e("s_waitcnt lgkmcnt(1)")
g1 = gather(1, PI + 2)
for x in build2: e(x if x else g1.pop(0))
for x in build3: e(x)
for x in opreads(0): e(x)
e(recread(512))
e(f"ds_read_b32 v{vMask}, v{vAItem} offset:{LNK}")
e(f"ds_write_b32 v1, v{ZP} offset:{CNT2}")
e("s_waitcnt vmcnt(2) lgkmcnt(5)")
for x in stage1(0): e(x)
for x in rowaddr(): e(x)
e("s_waitcnt lgkmcnt(0)")
for x in bfaddr(): e(x)
stamp(10)
step(0, first=True)
e("s_branch L_s1")
for sidx in range(4):
    e.label(f"L_s{sidx}")
    step(sidx)
e("s_branch L_s0")
for sidx in range(4):
    q = sidx & 1
    e.label(f"L_evt{sidx}")
    e(f"s_cmp_eq_u32 s{srdBP+2}, 0")
    e(f"s_mov_b32 s{srdBP+2}, 0")
    e(f"s_mov_b32 s{sCNT}, {DEP-1}")
    if OPT["otouch"]:
        e(f"s_cbranch_scc1 L_dr{sidx}")
        e(f"s_mov_b64 exec, {s(sOM,2) if OPT['otouch'] == 2 else 1}")
        e(f"global_load_ushort v136, v{vOA}, {s(sOUT,2)} sc1")
        e("s_mov_b64 exec, -1")
        e(f"s_branch L_s{(sidx+1)&3}")
        e.label(f"L_dr{sidx}")
    else: e(f"s_cbranch_scc0 L_s{(sidx+1)&3}")
    if sidx == 0: flushchk("dr")
    for i in range(4): e(f"ds_read_b128 {v(E[1-q]+4*i,4)}, v{vWxa} offset:{WXT+16*i}")
    for i in range(4): e(f"ds_read_b128 {v(T[1-q]+4*i,4)}, v{vWxa} offset:{WXT+64+16*i}")
    for x in pkmul(q) + cvt(q): e(x)
    e(f"s_cmp_lg_u32 s{sSLOW}, 0")
    e("s_nop 0")
    for x in stage2(sidx): e(x)
    e("s_cbranch_scc1 L_slow_final")
    if sidx < 2: e(f"s_branch L_final_flush{q}")
    else:
        e.label(f"L_final_flush{q}")
        stamp(11)
        e("s_waitcnt lgkmcnt(0)")
        e("s_nop 6")
        mmask()
        for i in range(8): e(f"ds_write_b128 v{vRowM}, {v(AC[0]+4*i,4)} offset:{i*32}")
        e("s_mov_b64 exec, -1")
        e(f"v_pk_mul_f32 v[4:5], {v(AC[0],2)}, {v(E[1-q],2)}")
        e(f"v_pk_mul_f32 v[6:7], {v(AC[1],2)}, {v(T[1-q],2)}")
        for i in range(1, 8):
            e(f"v_pk_fma_f32 v[4:5], {v(AC[0]+2*i,2)}, {v(E[1-q]+2*i,2)}, v[4:5]")
            e(f"v_pk_fma_f32 v[6:7], {v(AC[1]+2*i,2)}, {v(T[1-q]+2*i,2)}, v[6:7]")
        e("v_pk_add_f32 v[4:5], v[4:5], v[6:7]")
        e("v_add_f32 v4, v4, v5")
        e(f"ds_write_b32 v{vRowP}, v4 offset:256")
        if sidx == 2: e("s_branch L_b6")
e.label("L_b6")
MR = 16; MB = 32; Y = 40; YE = 48; HU = 56; MX = 64
e(f"s_cmp_lg_u32 s{sMORE}, 0")
e(f"v_cmp_ne_u32 vcc, 0, v{vMask}")
e("s_waitcnt lgkmcnt(0)")
e("s_barrier")
stamp(12)
e("s_cbranch_scc1 L_more")
e(f"s_cmp_ge_u32 s{sW}, 6")
e("s_cbranch_scc1 L_finpos")
for i in range(4):
    e(f"ds_read_b128 {v(MR+4*i,4)}, v{vFA} offset:{(i>>1)*128+(i&1)*16}")
    e(f"ds_read_b128 {v(MX+4*i,4)}, v{vFB} offset:{(i>>1)*128+(i&1)*16}")
for d in range(4):
    e(f"v_lshlrev_b32 v{HU+2*d}, 16, v{HRES+d}")
    e(f"v_and_b32 v{HU+2*d+1}, 0xffff0000, v{HRES+d}")
e(f"s_mov_b32 s60, {NLN2}")
if OPT["otr"]:
    e(f"v_and_b32 v8, 15, v{L}")
    e(f"v_lshrrev_b32 v9, 4, v{L}")
    e("v_lshl_add_u32 v8, v8, 2, v9")
    e(f"v_sub_u32 v8, v8, v{L}")
    e(f"v_lshl_add_u32 v8, v8, 4, v{aR1w}")
e("s_cbranch_vccnz L_finbf_more")
e.label("L_finbf")
for i in range(4):
    e(f"s_waitcnt lgkmcnt({6-2*i})")
    for d in range(2): e(f"v_pk_add_f32 {v(MR+4*i+2*d,2)}, {v(MR+4*i+2*d,2)}, {v(MX+4*i+2*d,2)}")
    for d in range(2): e(f"v_cvt_pk_bf16_f32 v{MB+2*i+d}, v{MR+4*i+2*d}, v{MR+4*i+2*d+1}")
for t in range(2): e(f"v_mfma_f32_16x16x32_bf16 {v(Y+4*t,4)}, {v(WH2+8*t,4)}, {v(MB,4)}, {v(H1+4*t,4)}")
for t in range(2): e(f"v_mfma_f32_16x16x32_bf16 {v(Y+4*t,4)}, {v(WH2+8*t+4,4)}, {v(MB+4,4)}, {v(Y+4*t,4)}")
e("s_nop 6")
for i in range(8): e(f"v_exp_f32 v{YE+i}, v{Y+i}")
for i in range(4): e(f"v_pk_add_f32 {v(YE+2*i,2)}, {v(YE+2*i,2)}, 1.0 op_sel_hi:[1,0]")
for i in range(4): e(f"v_pk_mul_f32 {v(Y+2*i,2)}, {v(Y+2*i,2)}, s[60:61] op_sel_hi:[1,0]")
for i in range(8): e(f"v_rcp_f32 v{YE+i}, v{YE+i}")
for i in range(4): e(f"v_pk_fma_f32 {v(HU+2*i,2)}, {v(Y+2*i,2)}, {v(YE+2*i,2)}, {v(HU+2*i,2)}")
for d in range(4): e(f"v_cvt_pk_bf16_f32 v{Y+d}, v{HU+2*d}, v{HU+2*d+1}")
if OPT["otr"]:
    e(f"ds_write_b128 v8, {v(Y,4)}")
    e(f"ds_read_b128 {v(Y,4)}, v{aR1w}")
    e("s_waitcnt lgkmcnt(0)")
e(f"s_mov_b64 exec, {s(sOM,2)}")
e(f"global_store_dwordx4 v{vOA}, {v(Y,4)}, {s(sOUT,2)} {OPT.get('ost', 'sc1')}")
stamp(13, last=True)
e("s_endpgm")
e.label("L_finpos")
e(f"ds_read_b64 v[16:17], v{vFA}")
e.label("L_posbf")
e(f"ds_read_b64 v[18:19], v{vFB}")
e("s_waitcnt lgkmcnt(0)")
e("v_add_f32 v16, v16, v18")
e("v_add_f32 v17, v17, v19")
e("s_cbranch_vccnz L_posbf_more")
e("v_add_f32 v16, v16, v17")
e(f"v_add_f32 v{vPosOwn}, v{vPosOwn}, v16")
e(f"v_cvt_pk_bf16_f32 v2, v{vPosOwn}, v{vPosOwn}")
e(f"v_mov_b32 v7, s{sTAG}")
e(f"s_mov_b64 exec, {s(sOM,2)}")
e(f"global_store_short v{vOA}, v2, {s(sOUT,2)} {OPT.get('pst', 'sc1')}")
e("s_cmp_lg_u32 s2, 0")
e("s_cbranch_scc1 L_noep")
e("s_mov_b64 exec, 1")
e(f"global_store_dword v{ZP}, v7, {s(sWS,2)} sc1")
e.label("L_noep")
stamp(13, last=True)
e("s_endpgm")
for lbl in ("mid", "dr"):
    e.label(f"L_flush_{lbl}")
    flush_slow()
    e("s_waitcnt lgkmcnt(0)")
    for i in range(32): e(f"v_mov_b32 v{AC[0]+i}, 0")
    e(f"s_mov_b32 s{sBASE}, s{sNF}")
    e(f"s_mov_b32 s{sSLOW}, 1")
    for x in rowaddr(): e(x)
    e(f"s_branch L_flret_{lbl}")
e.label("L_slow_final")
flush_slow()
e("s_branch L_b6")
e.label("L_finbf_more")
e("s_waitcnt lgkmcnt(0)")
for i in range(16): e(f"v_add_f32 v{MR+i}, v{MR+i}, v{MX+i}")
for x in bfaddr(): e(x)
for i in range(4): e(f"ds_read_b128 {v(MX+4*i,4)}, v{vFB} offset:{(i>>1)*128+(i&1)*16}")
e(f"v_cmp_ne_u32 vcc, 0, v{vMask}")
e("s_waitcnt lgkmcnt(0)")
e("s_cbranch_vccnz L_finbf_more")
e("s_branch L_finbf")
e.label("L_posbf_more")
for x in bfaddr(): e(x)
e(f"v_cmp_ne_u32 vcc, 0, v{vMask}")
e("s_branch L_posbf")
e.label("L_pollout")
e(f"s_mov_b32 s{sBUD}, 0")
e("s_branch L_gotoff")
e.label("L_stale")
e(f"s_cmp_eq_u32 s{sBUD}, 0")
e("s_cbranch_scc1 L_gotrec")
e(f"s_sub_u32 s{sBUD}, s{sBUD}, 1")
e("s_branch L_fetch")
e.label("L_pad0")
e("v_mov_b32 v8, v1")
e(f"v_mov_b32 v9, {MARK}")
e("s_mov_b64 exec, vcc")
e.label("L_pad")
e("v_add_u32 v7, v6, v2")
e("v_add_u32 v2, 8, v2")
e("ds_write_b64 v7, v[8:9]")
e("v_cmp_lt_u32 vcc, v2, v4")
e("s_and_b64 exec, vcc, vcc")
e("s_cbranch_scc1 L_pad")
e("s_mov_b64 exec, -1")
e("s_branch L_nopad")
e.label("L_more")
e("s_waitcnt vmcnt(0)")
e("s_setprio 0")
e(f"s_mov_b32 s{srdBP+2}, 10000")
e(f"s_mov_b64 {s(sPF,2)}, 0")
e(f"s_mov_b32 s{sMULTI}, 1")
e(f"s_cmp_eq_u32 s{sWID}, {NARROW}")
e(f"s_cselect_b32 s60, {NARROW}, 0x100")
e("v_mov_b32 v4, s60")
for p in range(4):
    e(f"v_and_b32 v5, 0xfff0, v{SEG+p}")
    e(f"v_lshrrev_b32 v6, 16, v{SEG+p}")
    e(f"v_add_u32 v7, s{sWID}, v5")
    e("v_cmp_lt_u32 vcc, v7, v6")
    e("v_add_u32 v5, v4, v5")
    e("v_min_u32 v5, v5, v6")
    e(f"v_lshl_or_b32 v{SEG+p}, v6, 16, v5")
    e(f"v_mov_b32 v7, s{sWID}")
    e("v_cndmask_b32 v4, v4, v7, vcc")
e(f"s_movk_i32 s{sWID}, 0x80")
batchsetup()
e(f"v_mov_b32 v{vPF}, 0")
e("s_branch L_fetch")
e.label("L_narrow")
e(f"s_mov_b32 s{sANYB}, 0")
e("s_mov_b64 exec, vcc")
e(f"ds_write_b32 v{ZP}, v13 offset:{CNT2+252}")
e("s_mov_b64 exec, -1")
e("s_branch L_nob0")
e.label("L_redo")
e(f"s_cmp_eq_u32 s{sWID}, {NARROW}")
e("s_cbranch_scc1 L_end")
e("s_waitcnt vmcnt(0) lgkmcnt(0)")
e("s_barrier")
e(f"ds_write_b32 v1, v{ZP} offset:{CNT2}")
e(f"s_movk_i32 s{sWID}, {NARROW}")
batchsetup()
e(f"v_cmp_gt_u32 vcc, {NARROW}, v{vJ}")
e(f"v_mov_b32 v1, {OOB}")
e("s_waitcnt lgkmcnt(0)")
e(f"v_cndmask_b32 v{vJ}, v1, v{vJ}, vcc")
e("s_barrier")
e("s_branch L_fetch")
e.label("L_end")
e("s_endpgm")

probs = check_cfg(e.lines)
for p in probs: print("HAZARD", p, file=sys.stderr)

ref = open("cdna_kernels/" + KN + ".s.ref").read().split("\n")
hdr = []
for l in ref:
    if l.startswith("; Override launch"): break
    hdr.append(l)
out = "\n".join(hdr) + f"""
; One persistent launch: 250 workgroups (one per CU) bin the edges by destination bucket, hand the bins
; over through d_ws (tagged with a per-launch epoch), then each workgroup updates its 40 nodes.
; @launch grid=({NWG},1,1) block=(512,1,1) lds={LDS_SIZE}
.amdgcn_target "amdgcn-amd-amdhsa--gfx950"
.text
.globl {KN}_kernel
.p2align 8
.type {KN}_kernel,@function
{KN}_kernel:
{e.text()}.section .rodata,"a"
.p2align 6
.amdhsa_kernel {KN}_kernel
  .amdhsa_next_free_vgpr 256
  .amdhsa_next_free_sgpr 102
  .amdhsa_accum_offset 256
  .amdhsa_group_segment_fixed_size 0
  .amdhsa_kernarg_size 88
  .amdhsa_user_sgpr_count 2
  .amdhsa_user_sgpr_kernarg_segment_ptr 1
  .amdhsa_system_sgpr_workgroup_id_x 1
  .amdhsa_float_denorm_mode_32 3
.end_amdhsa_kernel
"""
open(sys.argv[1], "w").write(out)
print("wrote", sys.argv[1], len(e.lines), "lines;", len(probs), "hazards; LDS end", LDS_END, file=sys.stderr)
```

```python
import sys, struct
from asmlib import Emit, v, s, check_cfg

KN = "standalone__cheap_equivariant_egnn__graph"
OPT = dict(stamps=False, ramp=(2, 16, 0), bpf=1, pollat=2, lcat="fetch", posat=("b2",3,1), zs=(2,6), wdat=0, otr=False, otouch=0, p2at="win", pall=0, stag=True, pfet=0, early=True)
for a in sys.argv[2:]:
    k, _, val = a.partition("=")
    try: OPT[k] = eval(val) if val else True
    except Exception: OPT[k] = val

def fbits(x): return struct.unpack("<I", struct.pack("<f", x))[0]
LOG2E = 1.4426950408889634; LN2 = 0.6931471805599453
NL2E = hex(fbits(-LOG2E)); NLN2 = hex(fbits(-LN2))

NWG = 250; CH = 2560; NB = 40; DEP = 2
CHB = 13696
CNT1 = 0x0; OFF1 = 0x400; CNT2 = 0x800; LNK = 0x900; BASE2 = 0xA00; PD = 0xB00; WXT = 0xF00
STB = 0x1000; R2 = 0x2000; ACC = R2 + 32768; ACCS = 304
BF = ACC + NB * ACCS; AT = BF + 8 * ACCS; ATS = 104; WL = AT + 64 * ATS; WXL = WL + 256
POS = WL + 384; STG = R2; SORT2 = POS + 61440; CAPB = 3888 * 8; R1 = SORT2 + CAPB + 512; LDS_END = R1 + 8192
PADB = 32 * 8; NARROW = 48
assert NWG * 9 * 8 + NB * PADB <= CAPB and POS + 4 < 65536
WE = SORT2; WH = WE + 16384; HB = WH + 16384
OOB = 0x100000
MARK = 0x7F00
LDS_SIZE = 163840
assert LDS_END <= LDS_SIZE and HB + 6144 <= LDS_END and R2 % 64 == 0 and WE % 128 == 0
WS_OFF = 0x10000; WS_BP = 0x80000; WS_REC = 0x200000; WS_STAMP = 0x1000000
TAGC = 0x9E3779B1; M3 = 0xFF030303
sH, sPOS, sE, sSRC, sDST, sWE, sWX, sWH, sOUT, sDBG, sWS = 4, 6, 8, 10, 12, 14, 16, 18, 20, 22, 24
sW, sB = 26, 27
srdBP, srdPOS, srdH = 28, 32, 36
sTAG, sMULTI, sBUD, sWID, sONCE, sN0, sNG, sCHF = 40, 41, 42, 43, 44, 45, 46, 47
sOHC, sNFW, sNLW, sCNT, sBASE, sNF, sNL, sNEG, sMORE, sVAL = 48, 50, 51, 52, 53, 54, 55, 56, 57, 58
sT = 36
sOM = 4; sPF = 6; sRB = 8; sSLOW = 16; sANYB = 17; sC10K = 18
sMK = 64
T = [16, 32]; E = [48, 64]; AC = [80, 96]; M = [112, 116]; G = [120, 128]; S = [152, 156, 160, 164]
R1OP = 168; WX = 172; I0 = 176; I1 = 180; ONE = 184; IDX = 186
aIdx, aRec, aR1r, aS0, aS1, aR1w, aR2b, aR2, aATb, aAT = 188, 189, 190, 191, 192, 193, 194, 195, 196, 197
vRowM, vRowP = 198, 199
REC = 200; R2V = 204; PS = 206; vSrc = 208; vFO = 209; PDV = 210; BT = 214; ZP = 216; vIdxL = 218; vFA = 219
SEG = 220; vMask = 224; vWxa = 225; H1 = 226; vPosOwn = 230; HRES = 234; WH2 = 238; vLane = 254; vAItem = 255
vOA = 12; vFB = 3
L = vLane
SD = "dst_sel:DWORD dst_unused:UNUSED_PAD"

e = Emit()
def stamp(i, last=False, wait=False):
    if OPT.get("diag") is not None:
        a_, b_, neg = OPT["diag"]
        if i == 0: e("s_memrealtime s[98:99]")
        tm = "s_memtime" if OPT.get("dcyc") else "s_memrealtime"
        if i == a_: e(tm + " s[100:101]")
        if i == b_: e(tm + " s[22:23]")
        if last:
            stamp.n = getattr(stamp, "n", 0) + 1
            if b_ == 99: e("s_waitcnt vmcnt(0)\ns_memrealtime s[22:23]")
            e("s_waitcnt lgkmcnt(0)\ns_sub_u32 s101, s22, s100")
            if OPT.get("dcyc"): e("s_lshr_b32 s101, s101, 4")
            if OPT.get("dwg") is not None: e(f"s_cmp_eq_u32 s2, {OPT['dwg']}\ns_cselect_b32 s101, s101, 0")
            if neg: e(f"s_sub_u32 s101, {neg}, s101\ns_max_i32 s101, s101, 0")
            e("s_min_u32 s101, s101, 5000\ns_lshl_b32 s101, s101, 3\ns_add_u32 s101, s101, 3000")
            e.label(f"L_spin{stamp.n}")
            e("s_memrealtime s[22:23]\ns_waitcnt lgkmcnt(0)\ns_sub_u32 s22, s22, s98\ns_cmp_lt_u32 s22, s101")
            e(f"s_cbranch_scc1 L_spin{stamp.n}")
        return
    if not OPT["stamps"]: return
    if wait: e("s_waitcnt lgkmcnt(0)")
    if i > 0:
        e("s_mov_b32 m0, s101\nv_writelane_b32 v15, s98, m0\nv_writelane_b32 v14, s22, m0")
    e("s_memrealtime s[98:99]")
    if i > 0: e("s_memtime s[22:23]")
    e(f"s_mov_b32 s101, {i}")
    if i in (6, 7, 9): e(f"v_writelane_b32 v15, s{sBUD}, {16+i}")
    if i == 10: e(f"s_add_u32 s100, s{sCNT}, {DEP-4}\nv_writelane_b32 v15, s100, 26")
    if last:
        e("s_mov_b64 exec, -1\ns_waitcnt lgkmcnt(0)")
        e(f"v_writelane_b32 v15, s98, {i}\nv_writelane_b32 v14, s22, {i}")
        e(f"s_lshl_b32 s100, s2, 3\ns_add_u32 s100, s100, s{sW}\ns_lshl_b32 s100, s100, 7\ns_add_u32 s100, s100, {WS_STAMP}")
        e(f"v_lshl_add_u32 v13, v{L}, 2, s100\ns_mov_b32 exec_hi, 0")
        e(f"global_store_dword v13, v15, {s(sWS,2)}\nv_add_u32 v13, 0x100000, v13\nglobal_store_dword v13, v14, {s(sWS,2)}")

def fine(i, g=1):
    if OPT.get("diag") is not None: stamp(10 + 10*g + i)
    if OPT.get("fine") == g: e(f"s_memtime s[{72+2*i}:{73+2*i}]")
def finedump(n, g=1):
    if OPT.get("fine") == g:
        for i in range(n): e(f"s_nop 0\nv_writelane_b32 v14, s{72+2*i}, {16+i}")
def scan(r, fill=()):
    fill = list(fill)
    for m in ("row_shr:1 row_mask:0xf bank_mask:0xf bound_ctrl:1", "row_shr:2 row_mask:0xf bank_mask:0xf bound_ctrl:1",
              "row_shr:4 row_mask:0xf bank_mask:0xf bound_ctrl:1", "row_shr:8 row_mask:0xf bank_mask:0xf bound_ctrl:1",
              "row_bcast:15 row_mask:0xa bank_mask:0xf", "row_bcast:31 row_mask:0xc bank_mask:0xf"):
        if len(fill) >= 2:
            e(fill.pop(0)); e(fill.pop(0))
        else: e("s_nop 1")
        e(f"v_add_u32_dpp v{r}, v{r}, v{r} {m}")
    assert not fill

DSTR = 16; SRCR = 24; ER = 32; XB = 36; QQ = 42; B4 = 48; RK = 56
WA0 = 64; WA1 = 65; WA2 = 66; HA = 67; CA0 = 68; PBA = 69; TCH = 70; vTG = 71; HF = 72
WT = 80; DT = 112; W1T = 96; aWH = 144; aWT = 148; PB = 152; ZQ = 156
stamp(0)
e(f"s_cmp_ge_u32 s2, {NWG}")
e("s_cbranch_scc1 L_end")
e("s_load_dwordx16 s[4:19], s[0:1], 0")
e("s_load_dwordx4 s[20:23], s[0:1], 64")
e("s_load_dwordx2 s[24:25], s[0:1], 80")
e("s_getpc_b64 s[62:63]")
e.label("L_pc")
e("v_lshlrev_b32 v5, 5, v0")
e("v_min_u32 v5, L_end-L_pc, v5")
e("s_mov_b32 exec_lo, 0x11111111")
e("s_mov_b32 exec_hi, 0x11111111")
e(f"global_load_dword v{TCH}, v5, s[62:63]")
e("s_mov_b64 exec, -1")
e(f"s_mul_i32 s3, s2, {CH*4}")
e("v_lshl_add_u32 v8, v0, 4, s3")
e(f"s_add_u32 s60, s3, 8192")
e("v_lshl_add_u32 v9, v0, 2, s60")
e("s_lshr_b32 s3, s3, 1")
e("v_lshl_add_u32 v10, v0, 3, s3")
e("s_add_u32 s60, s3, 4096")
e("v_lshl_add_u32 v11, v0, 1, s60")
e("v_lshrrev_b32 v5, 6, v0")
e(f"v_and_b32 v{L}, 63, v0")
e(f"v_readfirstlane_b32 s{sW}, v5")
e(f"v_mov_b32 v{ZP}, 0")
e(f"v_mov_b32 v{ZP+1}, 0")
e("v_lshlrev_b32 v12, 4, v0")
e("v_lshlrev_b32 v5, 3, v0")
e(f"ds_write_b64 v5, {v(ZP,2)}")
e("s_and_b32 s60, s2, 7")
e(f"s_mul_i32 s{sB}, s60, 31")
e("s_min_u32 s60, s60, 2")
e(f"s_add_u32 s{sB}, s{sB}, s60")
e("s_lshr_b32 s96, s2, 3")
e(f"s_add_u32 s{sB}, s{sB}, s96")
e(f"s_mul_i32 s{sN0}, s{sB}, {NB}")
e(f"v_and_b32 v5, 16, v{L}")
e("v_and_b32 v6, 64, v0")
e("v_lshl_or_b32 v5, v5, 1, v6")
e(f"v_xor_b32 v{WA0}, v5, v12")
e(f"v_add_u32 v{WA1}, 8192, v{WA0}")
e(f"v_lshlrev_b32 v5, 1, v{L}")
e(f"s_lshl_b32 s60, s{sN0}, 7")
e("v_and_b32 v5, 0x70, v5")
e(f"v_xad_u32 v{HA}, v5, v12, s60")
e(f"s_lshl_b32 s60, s{sW}, 10")
e(f"s_add_u32 m0, s60, {WE+8192}")
e("s_waitcnt lgkmcnt(0)")
e(f"global_load_dwordx4 {v(DSTR,4)}, v8, {s(sDST,2)}")
e(f"global_load_dword v{DSTR+4}, v9, {s(sDST,2)}")
if OPT["stag"]: e(f"s_load_dword s{sTAG}, {s(sWS,2)}, 0")
e(f"s_mov_b32 s{srdH}, s{sH}")
e(f"s_and_b32 s{srdH+1}, s{sH+1}, 0xffff")
e(f"s_mov_b32 s{srdH+2}, 1280000")
e(f"s_mov_b32 s{srdH+3}, 0x20000")
e(f"s_cmp_ge_u32 s{sW}, 6")
e(f"global_load_lds_dwordx4 v{WA1}, {s(sWE,2)}")
e("s_cbranch_scc1 L_d67")
e(f"s_add_u32 m0, s60, {HB}")
e("s_nop 0")
e(f"buffer_load_dwordx4 v{HA}, {s(srdH,4)}, 0 offen lds")
e("s_branch L_ddone")
e.label("L_d67")
e(f"s_add_u32 s62, s{sWE}, 16384")
e(f"s_addc_u32 s63, s{sWE+1}, 0")
e(f"v_lshlrev_b32 v5, 4, v{L}")
e(f"s_cmp_eq_u32 s{sW}, 7")
e(f"s_cselect_b64 s[62:63], {s(sWX,2)}, s[62:63]")
e(f"s_cselect_b32 s61, 256, 0")
e(f"s_cselect_b32 s97, 8, 16")
e(f"s_add_u32 m0, s61, {WL}")
e("s_bfm_b64 exec, s97, 0")
e(f"global_load_lds_dwordx4 v5, s[62:63]")
e("s_mov_b64 exec, -1")
e.label("L_ddone")
e("s_barrier")
e(f"global_load_dwordx4 {v(SRCR,4)}, v8, {s(sSRC,2)}")
e(f"global_load_dword v{SRCR+4}, v9, {s(sSRC,2)}")
e(f"global_load_dwordx2 {v(ER,2)}, v10, {s(sE,2)}")
e(f"global_load_short_d16_hi v{ER+2}, v11, {s(sE,2)}")
TV = 0 if OPT["stag"] else 1
if TV: e(f"global_load_dword v{vTG}, v{ZP}, {s(sWS,2)}")
stamp(1)
for i in range(4): e(f"v_mov_b32 v{ZQ+i}, 0")
assert R2 + 6*8192 >= AT and R2 + 6*8192 <= WL
e(f"ds_write_b128 v{ZP}, {v(ZQ,4)} offset:{STG+853*16}")
def zero(lo, hi):
    e("v_lshlrev_b32 v5, 4, v0")
    for i in range(lo, hi):
        if i == 5:
            e(f"v_cmp_gt_u32 vcc, {(AT - R2 - 5*8192)//16}, v0")
            e("s_mov_b64 exec, vcc")
        e(f"ds_write_b128 v5, {v(ZQ,4)} offset:{R2+i*8192}")
    if hi == 6: e("s_mov_b64 exec, -1")
Z0, Z1 = OPT["zs"]
if Z0 > 2: zero(2, Z0)
e(f"s_mov_b32 s{srdPOS}, s{sPOS}")
e(f"s_and_b32 s{srdPOS+1}, s{sPOS+1}, 0xffff")
e(f"s_mov_b32 s{srdPOS+2}, 60000")
e(f"s_mov_b32 s{srdPOS+3}, 0x20000")
PT = 1 if OPT.get("ptouch") else 0
if PT:
    e("s_lshl_b32 s61, s96, 11")
    e("v_lshl_add_u32 v5, v0, 2, s61")
    e("s_mov_b32 exec_lo, 1")
    e("s_mov_b32 exec_hi, 1")
    e(f"buffer_load_dword v{TCH}, v5, {s(srdPOS,4)}, 0 offen")
    e("s_mov_b64 exec, -1")
e(f"s_mul_i32 s{sCHF}, s{sW}, 86")
e(f"s_lshr_b32 s{sCHF}, s{sCHF}, 8")
e(f"s_mul_i32 s61, s{sCHF}, 3")
e(f"s_sub_u32 s{sNG}, s{sW}, s61")
e(f"s_and_b32 s61, s{sW}, 3")
e("s_lshl_b32 s61, s61, 1")
e(f"s_lshr_b32 s62, s{sW}, 2")
e("s_add_u32 s61, s61, s62")
e("s_lshl_b32 s61, s61, 8")
e("s_add_u32 s61, s61, 8192")
e(f"v_and_b32 v5, 0x70, v{WA0}")
e(f"v_bfe_u32 v6, v{L}, 3, 2")
e("v_lshl_add_u32 v5, v6, 11, v5")
e(f"v_lshrrev_b32 v6, 5, v{L}")
e("v_lshl_add_u32 v5, v6, 7, v5")
e(f"v_add_u32 v{WA2}, s61, v5")
e(f"v_and_b32 v1, 15, v{L}")
e(f"v_lshrrev_b32 v3, 4, v{L}")
e(f"s_lshl_b32 s61, s{sNG}, 11")
e(f"s_add_u32 s61, s61, {HB}")
e(f"v_and_b32 v2, 7, v{L}")
e("v_xor_b32 v2, v2, v3")
e("v_lshl_add_u32 v4, v1, 7, s61")
e(f"v_lshl_add_u32 v{aWH+1}, v2, 4, v4")
e(f"v_xor_b32 v{aWH+2}, 64, v{aWH+1}")
e(f"v_bfe_u32 v6, v{L}, 2, 2")
e(f"v_and_b32 v2, 3, v{L}")
e("v_lshl_add_u32 v4, v3, 3, v6")
e(f"v_lshlrev_b32 v7, 2, v{L}")
e("v_and_b32 v7, 0x60, v7")
e(f"s_xor_b32 s61, s{sCHF}, 1")
e("s_lshl_b32 s61, s61, 13")
e(f"s_add_u32 s61, s61, {WE}")
e("v_lshl_add_u32 v5, v4, 7, s61")
e("v_lshl_add_u32 v5, v2, 3, v5")
e(f"v_xor_b32 v{aWT}, v7, v5")
for t in range(1, 4): e(f"v_xor_b32 v{aWT+t}, {32*t}, v{aWT}")
e(f"s_lshl_b32 s61, s{sCHF}, 6")
e(f"s_add_u32 s61, s61, {WH}")
e("v_lshl_add_u32 v6, v2, 4, s61")
e("v_lshl_add_u32 v5, v4, 7, v6")
e(f"v_xor_b32 v{aWH}, v7, v5")
e(f"s_lshl_b32 s61, s{sNG}, 4")
e(f"s_add_u32 s61, s61, s{sN0}")
e("s_lshl_b32 s61, s61, 7")
e(f"s_add_u32 s61, s61, {WS_BP}")
e("v_lshl_add_u32 v2, v3, 9, s61")
e(f"v_lshl_add_u32 v{aWH+3}, v1, 3, v2")
e(f"v_lshrrev_b32 v1, 5, v{L}")
e(f"v_and_b32 v7, 3, v{L}")
e(f"v_bfe_u32 v6, v{L}, 3, 2")
e("v_lshlrev_b32 v6, 2, v6")
e("v_lshl_add_u32 v7, v7, 4, v6")
e(f"v_bfe_u32 v6, v{L}, 2, 1")
e("v_add_u32 v7, v7, v6")
e("v_lshl_add_u32 v7, v1, 1, v7")
e(f"v_lshlrev_b32 v{CA0}, 1, v7")
e(f"v_mul_u32_u24 v{aATb}, {ATS}, v7")
e(f"v_add_u32 v{aATb}, {AT}, v{aATb}")

def laneconsts():
    e(f"s_add_u32 s{srdBP}, s{sWS}, {WS_BP}")
    e(f"s_addc_u32 s{srdBP+1}, s{sWS+1}, 0")
    e(f"s_and_b32 s{srdBP+1}, s{srdBP+1}, 0xffff")
    e(f"s_or_b32 s{srdBP+1}, s{srdBP+1}, 0x800000")
    e(f"s_mov_b32 s{srdBP+2}, 10000")
    e(f"s_mov_b32 s{srdBP+3}, 0x20000")
    e(f"s_mov_b32 s{sMULTI}, 0")
    e(f"s_mov_b32 s{sOHC}, 0x3f80")
    e(f"s_mov_b32 s{sOHC+1}, 0")
    e(f"s_movk_i32 s{sWID}, 0x80")
    e(f"s_mov_b32 s{sONCE}, 0")
def laneconsts2():
    e(f"v_lshrrev_b32 v1, 5, v{L}")
    e(f"v_and_b32 v2, 1, v{L}")
    e(f"v_lshlrev_b32 v{vWxa}, 7, v1")
    e(f"v_lshlrev_b32 v3, 5, v1")
    e(f"v_lshl_add_u32 v{IDX+1}, v2, 4, v3")
    e(f"v_bfe_u32 v4, v{L}, 3, 2")
    e(f"v_bfe_u32 v5, v{L}, 1, 1")
    e("v_lshl_add_u32 v4, v4, 1, v5")
    e(f"v_bfe_u32 v5, v{L}, 2, 1")
    e("v_lshl_add_u32 v4, v5, 3, v4")
    e(f"v_lshlrev_b32 v{vIdxL}, 3, v4")
    e(f"s_lshl_b32 s61, s{sW}, 10")
    e(f"s_add_u32 s61, s61, {R1}")
    e(f"v_lshl_add_u32 v{aR1r}, v4, 4, s61")
    e("v_xor_b32 v5, v1, v2")
    e(f"v_lshl_add_u32 v{aR1r}, v5, 20, v{aR1r}")
    e(f"v_lshl_add_u32 v{aR1w}, v{L}, 4, s61")
    e(f"s_lshl_b32 s61, s{sW}, 12")
    e(f"s_add_u32 s61, s61, {R2}")
    e(f"v_bfe_u32 v3, v{L}, 1, 3")
    e(f"v_lshl_add_u32 v4, v{L}, 6, s61")
    e(f"v_lshl_add_u32 v{aR2b}, v3, 3, v4")
    e(f"v_mov_b32 v{aR2}, v{aR2b}")
    e(f"v_bfe_u32 v3, v{L}, 2, 2")
    e(f"v_and_b32 v4, 3, v{L}")
    e(f"v_bfe_u32 v5, v{L}, 4, 1")
    e("v_lshl_add_u32 v5, v5, 2, v4")
    e("v_lshrrev_b32 v7, 1, v3")
    e("v_lshl_add_u32 v7, v1, 2, v7")
    e("v_xor_b32 v5, v5, v7")
    e("v_lshl_add_u32 v7, v1, 3, v3")
    e("v_lshl_add_u32 v7, v7, 6, s61")
    e(f"v_lshl_add_u32 v{aS0}, v5, 3, v7")
    e(f"v_xor_b32 v{aS1}, 16, v{aS0}")
    e(f"v_add_u32 v{aS1}, 256, v{aS1}")
    e(f"v_and_b32 v4, 31, v{L}")
    e("v_lshlrev_b32 v7, 3, v1")
    e("v_sub_u32 v7, v4, v7")
    e("v_lshlrev_b32 v4, 4, v2")
    e(f"v_lshlrev_b32 v4, v4, s{sOHC}")
    e("v_ashrrev_i32 v7, 1, v7")
    for u, I in ((0, I0), (1, I1)):
        for d in range(4): e(f"v_cmp_eq_u32 {s(sMK+2*d,2)}, {8*u+d}, v7")
        for d in range(4): e(f"v_cndmask_b32 v{I+d}, 0, v4, {s(sMK+2*d,2)}")
    e("v_xor_b32 v7, 1, v1")
    e(f"v_mul_u32_u24 v{ONE}, {OPT.get('aov', 0x3f80)}, v7")
    if OPT.get("aoall"): e(f"v_mov_b32 v{ONE}, 0x3f80")
    e(f"v_mov_b32 v{ONE+1}, 0")
if OPT["lcat"] == "start": laneconsts(); laneconsts2()
e("v_mov_b32 v13, 1")
e("s_mov_b32 s61, 52429")
e("s_movk_i32 s62, -40")
e(f"v_lshlrev_b32 v1, 4, v{L}")
e(f"s_lshl_b32 s63, s2, 10")
e(f"s_add_u32 s63, s63, {WS_OFF}")
e(f"v_add_u32 v{PBA}, s63, v1")
SA = 136
e(f"s_mul_i32 s63, s2, {CHB}")
e(f"s_lshl_b32 s97, s{sW}, 12")
e("s_add_u32 s63, s63, s97")
e(f"s_add_u32 s63, s63, {WS_REC}")
e(f"v_add_u32 v{SA}, s63, v1")
e(f"v_add_u32 v{SA+2}, s97, v1")
e(f"v_add_u32 v{SA+1}, {STG}, v{SA+2}")
e(f"v_lshrrev_b32 v{SA+2}, 2, v{SA+2}")
e(f"v_mov_b32 v{SA+3}, 0xfcfcfc")
e(f"s_cmp_eq_u32 s{sW}, 3")
e(f"s_cselect_b64 s[64:65], {(1 << ((CHB-13312)//16)) - 1}, -1")
e("s_cselect_b64 s[66:67], 0, -1")
def wdma():
    for base, a, ptr in ((WE, WA0, sWE), (WH, WA0, sWH), (WH+8192, WA2, sWH)):
        e(f"s_add_u32 m0, s60, {base}")
        e("s_nop 0")
        e(f"global_load_lds_dwordx4 v{a}, {s(ptr,2)}")
W0 = 3 if OPT["wdat"] == -1 else 0
W1 = 3 if OPT["wdat"] <= 0 else 0
if OPT["wdat"] == -1: wdma()
e(f"s_waitcnt vmcnt({6+TV+W0+PT})")
stamp(14)
for i in range(5): e(f"v_mul_u32_u24 v{B4+i}, s61, v{DSTR+i}")
for i in range(5): e(f"v_lshrrev_b32 v{B4+i}, 21, v{B4+i}")
for i in range(5):
    e(f"v_lshlrev_b32 v{B4+i}, 2, v{B4+i}")
    e(f"ds_add_rtn_u32 v{RK+i}, v{B4+i}, v13 offset:{CNT1}")
if OPT["wdat"] == 0: wdma()
e(f"s_cmp_ge_u32 s{sW}, 3")
spare = f"ds_read_b32 v{vTG}, v{ZP}"
if not TV: e(spare)
e(f"s_waitcnt vmcnt({4+TV+W1+PT}) lgkmcnt({1-TV})")
e("s_barrier")
stamp(2)
def nodeprod_reads():
    e(f"ds_read_b128 {v(HF,4)}, v{aWH+1}")
    e(f"ds_read_b128 {v(HF+4,4)}, v{aWH+2}")
    for t in range(4):
        for ks in range(2):
            for rd in range(2):
                e(f"ds_read_b64_tr_b16 {v(WT+8*t+4*ks+2*rd,2)}, v{aWT+t} offset:{ks*4096+rd*512}")
def nodeprod(extra=0):
    e(f"s_mov_b32 s96, {NL2E}")
    for t in range(4):
        e(f"s_waitcnt lgkmcnt({12-4*t+extra})")
        e(f"v_mfma_f32_16x16x32_bf16 {v(DT+4*t,4)}, {v(HF,4)}, {v(WT+8*t,4)}, 0")
        e(f"v_mfma_f32_16x16x32_bf16 {v(DT+4*t,4)}, {v(HF+4,4)}, {v(WT+8*t+4,4)}, {v(DT+4*t,4)}")
def nodescale():
    for i in range(8): e(f"v_pk_mul_f32 {v(DT+2*i,2)}, {v(DT+2*i,2)}, s[96:97] op_sel_hi:[1,0]")
e("s_cbranch_scc1 L_nobp")
nodeprod_reads()
e(f"ds_read_b128 v[4:7], v1 offset:{CNT1}")
if not TV: e(spare)
if OPT["wdat"] == 1: wdma()
nodeprod(2-TV)
e(f"s_cmp_eq_u32 s{sNG}, 2")
e("s_cselect_b32 s63, 0, -1")
nodescale()
for r in range(4):
    e(f"v_cvt_pk_bf16_f32 v{WT+2*r}, v{DT+r}, v{DT+4+r}")
    e(f"v_cvt_pk_bf16_f32 v{WT+2*r+1}, v{DT+8+r}, v{DT+12+r}")
e("s_mov_b32 exec_hi, s63")
for r in range(4): e(f"global_store_dwordx2 v{aWH+3}, {v(WT+2*r,2)}, {s(sWS,2)} offset:{r*128} sc1")
e("s_mov_b64 exec, -1")
e("s_branch L_bpdone")
e.label("L_nobp")
e(f"ds_read_b128 v[4:7], v1 offset:{CNT1}")
if not TV: e(spare)
if OPT.get("prew"):
    e(f"s_cmp_lg_u32 s{sW}, 7")
    e("s_cbranch_scc1 L_bpdone")
    e(f"global_store_dwordx4 v{PBA}, {v(ZQ,4)}, {s(sWS,2)} sc1")
if OPT["wdat"] == 1: wdma()
e.label("L_bpdone")
fine(0)
e(f"s_waitcnt lgkmcnt({1-TV})")
fine(1)
e("v_add_u32 v5, v4, v5")
e("v_add_u32 v6, v5, v6")
e("v_add_u32 v7, v6, v7")
e("v_mov_b32 v3, v7")
scan(3, [f"v_lshlrev_b32 v{XB+i}, 2, v{DSTR+i}" for i in range(5)] +
        [f"v_mad_i32_i24 v{XB+i}, v{B4+i}, s62, v{XB+i}" for i in range(5)] +
        ["s_mov_b32 s63, 0xffff0000", "s_movk_i32 s61, 21846"])
e("v_sub_u32 v8, v3, v7")
e("v_add_u32 v9, v8, v4")
e("v_add_u32 v10, v8, v5")
e("v_add_u32 v11, v8, v6")
e(f"ds_write_b128 v1, v[8:11] offset:{OFF1}")
for i in range(5): e(f"ds_read_b32 v{B4+i}, v{B4+i} offset:{OFF1}")
fine(2)
PN = OPT["pall"]
if PN:
    e(f"s_mul_i32 s97, s{sW}, {PN*1024}")
    e(f"s_add_u32 m0, s97, {POS}")
e(f"s_cmp_ge_u32 s{sW}, 3")
for i in range(PN): e(f"buffer_load_dwordx4 v1, {s(srdPOS,4)}, s97 offen offset:{i*1024} lds")
e(f"s_waitcnt vmcnt({7+TV+PN+PT})")
e("s_cbranch_scc0 L_srcin")
e(f"s_waitcnt vmcnt({3+TV+PN+PT})")
e.label("L_srcin")
fine(3)
e(f"v_lshl_or_b32 v{SRCR}, v{ER}, 16, v{SRCR}")
e(f"v_and_or_b32 v{SRCR+1}, v{ER}, s63, v{SRCR+1}")
e(f"v_lshl_or_b32 v{SRCR+2}, v{ER+1}, 16, v{SRCR+2}")
e(f"v_and_or_b32 v{SRCR+3}, v{ER+1}, s63, v{SRCR+3}")
e(f"v_or_b32 v{SRCR+4}, v{ER+2}, v{SRCR+4}")
for i in range(5):
    e(f"s_waitcnt lgkmcnt({4+i})")
    e(f"v_add_u32 v{B4+i}, v{B4+i}, v{RK+i}")
    e(f"v_mul_u32_u24 v{QQ+i}, s61, v{B4+i}")
    e(f"v_add_u32_sdwa v{QQ+i}, v{B4+i}, v{QQ+i} {SD} src0_sel:DWORD src1_sel:WORD_1")
    e(f"v_lshlrev_b32 v{RK+i}, 2, v{QQ+i}")
    e(f"ds_write_b8 v{QQ+i}, v{XB+i} offset:{STB}")
    e(f"ds_write_b32 v{RK+i}, v{SRCR+i} offset:{STG}")
fine(4)
e(f"s_cmp_lg_u32 s{sW}, 7")
e("s_cbranch_scc1 L_nopb")
for r in (8, 9, 10, 11, 3):
    e(f"v_mul_u32_u24 v2, s61, v{r}")
    e("v_lshrrev_b32 v2, 16, v2")
    e(f"v_add_lshl_u32 v{r}, v{r}, v2, 2")
e(f"v_lshl_or_b32 v{PB}, v9, 16, v8")
e(f"v_lshl_or_b32 v{PB+1}, v11, 16, v10")
e(f"v_mov_b32 v{PB+2}, v3")
e.label("L_nopb")
fine(5)
e(f"s_waitcnt vmcnt({PN})")
fine(6)
def posloop(name, w0, nw):
    e(f"s_sub_u32 s61, s{sW}, {w0}")
    e(f"s_cmp_ge_u32 s61, {nw}")
    e(f"s_cbranch_scc1 L_{name}e")
    e("s_lshl_b32 s61, s61, 12")
    if PN: e(f"s_add_u32 s61, s61, {PN*8192}")
    e(f"v_lshlrev_b32 v6, 4, v{L}")
    e.label(f"L_{name}")
    e(f"s_add_u32 m0, s61, {POS}")
    e("s_nop 0")
    for i in range(4): e(f"buffer_load_dwordx4 v6, {s(srdPOS,4)}, s61 offen offset:{i*1024} lds")
    e(f"s_add_u32 s61, s61, {4096*nw}")
    e(f"s_cmp_lt_u32 s61, {61440 - OPT['pfet']*8192}")
    e(f"s_cbranch_scc1 L_{name}")
    e.label(f"L_{name}e")
if OPT["posat"][0] == "b2": posloop("pl", *OPT["posat"][1:])
if TV: e(f"v_readfirstlane_b32 s{sTAG}, v{vTG}\ns_nop 0")
else: e("s_waitcnt lgkmcnt(0)")
e(f"s_add_u32 s{sTAG}, s{sTAG}, {TAGC}")
e(f"v_mov_b32 v{PB+3}, s{sTAG}")
e(f"s_cmp_ge_u32 s{sW}, 4")
e("s_waitcnt lgkmcnt(0)")
fine(7)
e("s_barrier")
stamp(3)
ST = 48
e("s_cbranch_scc1 L_nost")
for i in range(4):
    e(f"ds_read_b128 {v(ST+4*i,4)}, v{SA+1} offset:{i*1024}")
    e(f"ds_read_b32 v{8+i}, v{SA+2} offset:{STB+i*256}")
def tagpat():
    e(f"s_and_b32 s{sT}, s{sTAG}, 0xc000")
    e(f"s_lshl_b32 s60, s{sTAG}, 2")
    e(f"s_and_b32 s{sT+1}, s60, 0xc000")
    e(f"s_lshl_b32 s60, s{sTAG}, 4")
    e(f"s_and_b32 s{sT+2}, s60, 0xc000")
    e(f"s_and_b32 s{sT+3}, s{sTAG}, {M3}")
tagpat()
for i in range(4):
    e(f"s_waitcnt lgkmcnt({6-2*i})")
    if i == 1: e("s_mov_b64 exec, s[64:65]")
    if i == 2: e("s_mov_b64 exec, s[66:67]")
    for k in range(3): e(f"v_or_b32 v{ST+4*i+k}, s{sT+k}, v{ST+4*i+k}")
    e(f"v_and_or_b32 v{ST+4*i+3}, v{8+i}, v{SA+3}, s{sT+3}")
    e(f"global_store_dwordx4 v{SA}, {v(ST+4*i,4)}, {s(sWS,2)} offset:{i*1024} sc1")
e("s_mov_b64 exec, -1")
fine(1, 2)
e.label("L_nost")
fine(0, 2)
e(f"s_cmp_lg_u32 s{sW}, 7")
e("s_cbranch_scc1 L_nopub")
e(f"global_store_dwordx4 v{PBA}, {v(PB,4)}, {s(sWS,2)} sc1")
e.label("L_nopub")
tagpat()
stamp(15, wait=True)
finedump(8)
PL = 160; vPA = 164; vPW = 165
def site(n):
    if OPT["posat"][0] == f"pre{n}": posloop("pl", *OPT["posat"][1:])
    if OPT["pollat"] == n:
        pollsetup()
        fine(3, 2)
    if OPT["posat"][0] == f"post{n}": posloop("pl", *OPT["posat"][1:])
def pollsetup():
    e("v_and_b32 v1, 255, v0")
    e(f"s_lshr_b32 s60, s{sB}, 2")
    e("s_lshl_b32 s60, s60, 4")
    e(f"s_add_u32 s60, s60, {WS_OFF}")
    e(f"v_lshl_add_u32 v{vPA}, v1, 10, s60")
    e(f"s_cmp_lt_u32 s{sW}, 4")
    e("s_cbranch_scc1 L_nops")
    e(f"v_cmp_gt_u32 vcc, {NWG}, v1")
    for i in range(3): e(f"v_mov_b32 v{PL+i}, 0")
    e(f"v_mov_b32 v{PL+3}, s{sTAG}")
    e(f"v_lshlrev_b32 v{vPW}, 2, v1")
    e("s_mov_b64 exec, vcc")
    e(f"global_load_dwordx4 {v(PL,4)}, v{vPA}, {s(sWS,2)} sc1")
    e("s_mov_b64 exec, -1")
    e.label("L_nops")
e(f"s_mov_b32 s{sBUD}, 2000000")
e(f"ds_read_u16_d16_hi v{WX}, v{CA0} offset:{WL}")
e(f"ds_read_u16_d16_hi v{WX+1}, v{CA0} offset:{WL+128}")
site(0)
e(f"s_cmp_ge_u32 s{sW}, 6")
e("s_cbranch_scc1 L_w67")
e(f"s_cmp_ge_u32 s{sW}, 3")
e("s_cbranch_scc1 L_w345")
for i in range(4): e(f"v_mov_b32 v{HRES+i}, v{HF+i}")
e("s_branch L_w05")
e.label("L_w345")
nodeprod_reads()
e(f"v_and_b32 v1, 15, v{L}")
e(f"v_lshrrev_b32 v3, 4, v{L}")
e(f"s_lshl_b32 s60, s{sNG}, 5")
e(f"s_add_u32 s60, s60, {AT}")
e("v_lshl_add_u32 v2, v3, 3, s60")
e(f"v_mul_u32_u24 v1, {ATS}, v1")
e("v_add_u32 v2, v1, v2")
nodeprod()
e("s_nop 1")
nodescale()
for t in range(4):
    e(f"v_cvt_pk_bf16_f32 v{WT+2*t}, v{DT+4*t}, v{DT+4*t+1}")
    e(f"v_cvt_pk_bf16_f32 v{WT+2*t+1}, v{DT+4*t+2}, v{DT+4*t+3}")
for i in range(4): e(f"v_mov_b32 v{HRES+i}, v{HF+4+i}")
for t in range(4): e(f"ds_write_b64 v2, {v(WT+2*t,2)} offset:{t*16*ATS}")
e.label("L_w05")
def part2():
    for t in range(2):
        for ks in range(2):
            for rd in range(2):
                e(f"ds_read_b64_tr_b16 {v(W1T+8*t+4*ks+2*rd,2)}, v{aWH} offset:{ks*4096+rd*512+t*8}")
    for t in range(2):
        for c in range(2):
            for rd in range(2):
                e(f"ds_read_b64_tr_b16 {v(WH2+8*t+4*c+2*rd,2)}, v{aWH} offset:{(2+c)*4096+rd*512+t*8}")
    e(f"s_lshl_b32 s60, s{sNG}, 4")
    e(f"v_and_b32 v1, 15, v{L}")
    e(f"v_add_lshl_u32 v{vAItem}, v1, s60, 2")
    e("s_waitcnt lgkmcnt(8)")
    for t in range(2):
        e(f"v_mfma_f32_16x16x32_bf16 {v(H1+4*t,4)}, {v(W1T+8*t,4)}, {v(HF,4)}, 0")
        e(f"v_mfma_f32_16x16x32_bf16 {v(H1+4*t,4)}, {v(W1T+8*t+4,4)}, {v(HF+4,4)}, {v(H1+4*t,4)}")
    e(f"v_and_b32 v2, 48, v{L}")
    e(f"v_lshlrev_b32 v{vFO}, 1, v2")
    e(f"v_add_u32 v{vFO}, {BF}, v{vFO}")
    e(f"s_lshl_b32 s60, s{sN0}, 1")
    e(f"s_add_u32 s60, s60, s{sCHF}")
    e("s_lshl_b32 s60, s60, 6")
    if OPT["otr"]:
        e(f"s_lshl_b32 s61, s{sNG}, 4")
        e(f"v_lshrrev_b32 v2, 2, v{L}")
        e("v_add_u32 v2, s61, v2")
        e(f"v_cmp_gt_u32 {s(sOM,2)}, {NB}, v2")
        e("v_lshl_add_u32 v2, v2, 7, s60")
        e(f"v_and_b32 v1, 3, v{L}")
        e(f"v_lshl_add_u32 v{vOA}, v1, 4, v2")
    else:
        e(f"v_lshl_add_u32 v2, v{vAItem}, 5, v2")
        e(f"v_add_u32 v{vOA}, s60, v2")
        e(f"s_movk_i32 s60, {NB*4}")
        e(f"v_cmp_gt_u32 {s(sOM,2)}, s60, v{vAItem}")
    for i in range(4): e(f"v_pk_mul_f32 {v(H1+2*i,2)}, {v(H1+2*i,2)}, s[96:97] op_sel_hi:[1,0]")
def part3():
    e(f"v_mul_u32_u24 v1, {ACCS//4}, v{vAItem}")
    e(f"v_add_u32 v1, {ACC-BF}, v1")
    e(f"v_add_u32 v{vFA}, v1, v{vFO}")
    e(f"v_mul_f32 v{WX}, {NL2E}, v{WX}")
    e(f"v_mul_f32 v{WX+1}, {NL2E}, v{WX+1}")
    e(f"v_cvt_pk_bf16_f32 v1, v{WX}, v{WX}")
    e("v_and_b32 v1, 0xffff0000, v1")
    e(f"v_sub_f32 v2, v{WX}, v1")
    e(f"v_cvt_pk_bf16_f32 v{WX}, v1, v2")
    e(f"v_mov_b32 v1, {hex((127-60) << 23)}")
    e(f"v_cvt_pk_bf16_f32 v{WX+1}, v1, v{WX+1}")
if OPT["p2at"] == "win": part2()
e("s_branch L_wdone")
e.label("L_w67")
e(f"ds_read_u16_d16_hi v4, v{CA0} offset:{WXL}")
e("v_and_b32 v6, 127, v0")
e(f"v_min_u32 v7, 119, v6")
e(f"s_mul_i32 s60, s{sB}, 240")
e(f"v_lshl_add_u32 v1, v7, 1, s60")
e(f"global_load_short_d16_hi v{vPosOwn}, v1, {s(sPOS,2)}")
e("s_add_u32 s60, s60, 1280000")
e(f"v_lshl_add_u32 v{vOA}, v6, 1, s60")
e("s_movk_i32 s60, 120")
e(f"v_cmp_gt_u32 {s(sOM,2)}, s60, v6")
e(f"v_mul_u32_u24 v1, 171, v7")
e("v_lshrrev_b32 v1, 9, v1")
e(f"v_mad_i32_i24 v2, v1, -3, v7")
e(f"v_lshlrev_b32 v{vAItem}, 2, v1")
e(f"v_lshl_add_u32 v{H1}, v2, 8, v{vAItem}")
e(f"v_lshlrev_b32 v{vFO}, 3, v2")
e(f"v_add_u32 v{vFO}, {BF+256}, v{vFO}")
e(f"v_bfe_u32 v1, v{L}, 2, 1")
e(f"v_lshrrev_b32 v2, 3, v{L}")
e(f"v_and_b32 v3, 3, v{L}")
e("v_lshl_add_u32 v2, v2, 2, v3")
e("v_lshl_add_u32 v2, v1, 5, v2")
e("v_lshlrev_b32 v2, 2, v2")
e("s_waitcnt lgkmcnt(0)")
e(f"v_mul_f32 v4, {NLN2}, v4")
e(f"ds_write_b32 v2, v4 offset:{WXT}")
e(f"v_lshlrev_b32 v2, 2, v{L}")
e(f"v_lshlrev_b32 v4, 3, v{L}")
e(f"ds_write_b32 v2, v4 offset:{PD+768}")
e.label("L_wdone")
stamp(4, wait=True)
site(1)
if OPT["p2at"] == "win": part3()
if OPT["lcat"] != "start": laneconsts()
if OPT["lcat"] == "win": laneconsts2()
RA = 16; XP = 36; KA = 80; LK = 96; AD = 112; RR = 117; DD = 122; LN = 127; vSB = 132; vJ = 133; vPF = 134
mk = lambda p, k: sMK + 2 * (3 * p + k)
sLB = sMK + 30
def presets(ps):
    for p in ps:
        for k in range(4): e(f"v_mov_b32 v{RA+4*p+k}, s{sT+k}")
def batchsetup():
    e("v_lshrrev_b32 v1, 3, v0")
    e("v_and_b32 v2, 7, v0")
    e(f"v_lshlrev_b32 v{vJ}, 4, v2")
    e(f"v_mul_u32_u24 v1, {CHB}, v1")
    e(f"v_add_u32 v{vSB}, v1, v{vJ}")
    presets(range(4))
batchsetup()
for p in range(4):
    e(f"s_add_u32 s{sRB+2*p}, s{sWS}, {WS_REC + p*64*CHB}")
    e(f"s_addc_u32 s{sRB+2*p+1}, s{sWS+1}, 0")
e("s_andn2_b32 s60, s2, 7")
e(f"s_add_u32 s60, s60, s{sW}")
e("s_mul_i32 s60, s60, 41")
e(f"v_add_u32 v{vPF}, s60, v{L}")
e(f"s_bfm_b64 {s(sPF,2)}, {OPT.get('pfn', 26)}, 0")
if Z1 > Z0: zero(Z0, Z1)
site(2)
e("v_lshrrev_b32 v6, 3, v0")
e("v_lshlrev_b32 v6, 2, v6")
stamp(5, wait=True)
fine(4, 2)
if OPT.get("fine") == 2:
    e("s_waitcnt vmcnt(1)")
    fine(5, 2)
    e("s_waitcnt vmcnt(0)")
    fine(6, 2)
e(f"s_cmp_lt_u32 s{sW}, 4")
e("s_cbranch_scc1 L_b3")
e(f"s_and_b32 s3, s{sB}, 1")
e("s_lshl_b32 s3, s3, 4")
e.label("L_poll")
e(f"s_sub_u32 s{sBUD}, s{sBUD}, 1")
e("s_waitcnt vmcnt(0)")
e(f"v_cmp_ne_u32 vcc, s{sTAG}, v{PL+3}")
e("s_cbranch_scc1 L_pollout")
e("s_cbranch_vccz L_gotoff")
e("s_mov_b64 exec, vcc")
e(f"global_load_dwordx4 {v(PL,4)}, v{vPA}, {s(sWS,2)} sc1")
e("s_branch L_poll")
e.label("L_gotoff")
e("s_mov_b64 exec, -1")
e(f"s_bitcmp1_b32 s{sB}, 1")
e(f"v_alignbit_b32 v3, v{PL+1}, v{PL}, s3")
e(f"v_alignbit_b32 v4, v{PL+2}, v{PL+1}, s3")
e("s_cselect_b64 vcc, -1, 0")
e("v_cndmask_b32 v3, v3, v4, vcc")
e(f"ds_write_b32 v{vPW}, v3 offset:{OFF1}")
e(f"s_cmp_lt_u32 s{sW}, 6")
e("s_cbranch_scc1 L_b3")
e(f"ds_write_b32 v{H1}, v{vPosOwn} offset:{PD}")
e.label("L_b3")
fine(7, 2)
e("s_waitcnt lgkmcnt(0)")
e("s_barrier")
e(f"ds_read2st64_b32 {v(SEG,2)}, v6 offset0:{OFF1//256} offset1:{OFF1//256+1}")
e(f"ds_read2st64_b32 {v(SEG+2,2)}, v6 offset0:{OFF1//256+2} offset1:{OFF1//256+3}")
e("s_waitcnt lgkmcnt(0)")
stamp(6)
finedump(8, 2)
e.label("L_fetch")
for p in range(4):
    e(f"v_and_b32 v{AD+p}, 0xfff0, v{SEG+p}")
    e(f"v_sub_u32_sdwa v{RR+p}, v{SEG+p}, v{AD+p} {SD} src0_sel:WORD_1 src1_sel:DWORD")
    e(f"v_add_u32 v{AD+p}, v{AD+p}, v{vSB}")
    e(f"v_cmp_lt_i32 vcc, v{vJ}, v{RR+p}")
    e("s_mov_b64 exec, vcc")
    e(f"global_load_dwordx4 {v(RA+4*p,4)}, v{AD+p}, {s(sRB+2*p,2)} sc1")
    e("s_mov_b64 exec, -1")
e(f"v_max3_i32 v3, v{RR}, v{RR+1}, v{RR+2}")
e(f"v_max_i32 v3, v3, v{RR+3}")
e("v_mov_b32 v13, 8")
e(f"v_cmp_lt_i32 vcc, s{sWID}, v3")
e(f"s_or_b32 s{sANYB}, vcc_lo, vcc_hi")
e("s_cbranch_scc0 L_nob0")
e(f"s_cmp_eq_u32 s{sWID}, {NARROW}")
e("s_cbranch_scc1 L_narrow")
e(f"v_mov_b32 v{RR+4}, 0")
e(f"v_mov_b32 v{AD+4}, 0")
e("v_mov_b32 v4, 0")
for p in (3, 2, 1, 0):
    e(f"v_cmp_lt_i32 vcc, 0x80, v{RR+p}")
    e(f"v_add_u32 v5, {p*64*CHB}, v{AD+p}")
    e("s_nop 0")
    e(f"v_cndmask_b32 v{RR+4}, v{RR+4}, v{RR+p}, vcc")
    e(f"v_cndmask_b32 v{AD+4}, v{AD+4}, v5, vcc")
    e("v_addc_co_u32 v4, vcc, 0, v4, vcc")
e(f"v_subrev_u32 v{LN+4}, 0x80, v{RR+4}")
e(f"v_max_i32 v{LN+4}, 0, v{LN+4}")
presets([4])
e(f"v_cmp_lt_i32 {s(sLB,2)}, v{vJ}, v{LN+4}")
e("v_cmp_lt_i32 vcc, 0x100, v3")
e("v_cmp_lt_i32 s[60:61], 1, v4")
e(f"s_mov_b64 exec, {s(sLB,2)}")
e(f"global_load_dwordx4 {v(RA+16,4)}, v{AD+4}, {s(sRB,2)} offset:128 sc1")
e("s_or_b64 exec, vcc, s[60:61]")
e(f"ds_write_b32 v{ZP}, v13 offset:{CNT2+252}")
e("s_mov_b64 exec, -1")
for k in range(3):
    e(f"v_add_u32 v5, {4*k}, v{vJ}")
    e(f"v_cmp_lt_u32 {s(mk(4,k),2)}, v5, v{LN+4}")
e.label("L_nob0")
e(f"s_cmp_lg_u32 s{sONCE}, 0")
e("s_cbranch_scc1 L_once")
e(f"s_mov_b32 s{sONCE}, 1")
zero(0, 2)
if Z1 < 6: zero(Z1, 6)
if OPT["p2at"] == "fetch":
    e(f"s_cmp_ge_u32 s{sW}, 6")
    e("s_cbranch_scc1 L_nop2")
    part2()
    e.label("L_nop2")
    part3()
if OPT["lcat"] == "fetch": laneconsts2()
e.label("L_once")
PFE = OPT["pfet"]
for p in range(4):
    e(f"v_and_b32 v4, 15, v{SEG+p}")
    e(f"v_sub_u32 v{LN+p}, v{RR+p}, v4")
    e(f"v_sub_u32 v4, v{vJ}, v4")
    e("v_add_u32 v5, 4, v4")
    e("v_add_u32 v6, 8, v4")
    for k in range(3): e(f"v_cmp_lt_u32 {s(mk(p,k),2)}, v{4+k}, v{LN+p}")
e(f"v_lshlrev_b32 v1, 2, v{L}")
e(f"v_cmp_gt_u32 {s(sVAL,2)}, {NB}, v{L}")
e("v_mov_b32 v4, 0")
e("v_mov_b32 v5, 0")
e("s_movk_i32 s62, 0xfc")
e(f"s_mov_b32 s63, {M3}")
def bpf(at):
    if OPT["bpf"] != at: return
    e(f"s_mov_b64 exec, {s(sPF,2)}")
    e(f"buffer_load_dword v{vPF+1}, v{vPF}, {s(srdBP,4)}, 0 idxen")
    e("s_mov_b64 exec, -1")
if PFE:
    e(f"s_mul_i32 s61, s{sW}, {PFE*1024}")
    e(f"s_add_u32 s61, s61, {61440 - PFE*8192}")
    e(f"s_add_u32 m0, s61, {POS}")
    e(f"v_lshlrev_b32 v6, 4, v{L}")
    for i in range(PFE):
        if i == 4:
            e("s_add_u32 s61, s61, 4096")
            e(f"s_add_u32 m0, s61, {POS}")
            e("s_nop 0")
        e(f"buffer_load_dwordx4 v6, {s(srdPOS,4)}, s61 offen offset:{(i%4)*1024} lds")
bpf(2)
XV = (1 if OPT["bpf"] == 2 else 0) + PFE
def five(name, body):
    for p in range(4): body(p)
    e(f"s_cmp_eq_u32 s{sANYB}, 0")
    e(f"s_cbranch_scc1 L_{name}")
    body(4)
    e.label(f"L_{name}")
def chk(p):
    if p < 4: e(f"s_waitcnt vmcnt({3-p+XV})")
    for k in range(4): e(f"v_bitop3_b32 v{4 if k < 3 else 5}, v{4 if k < 3 else 5}, v{RA+4*p+k}, s{sT+k} bitop3:0xf6")
five("bx", chk)
e("v_and_b32 v4, 0xc000, v4")
e("v_and_or_b32 v4, v5, s63, v4")
e("v_cmp_ne_u32 vcc, 0, v4")
e("s_cbranch_vccnz L_stale")
e.label("L_gotrec")
stamp(7, wait=True)
def atom(p):
    if p: e("s_mov_b64 exec, -1")
    for k in range(3): e(f"v_and_b32_sdwa v{XP+6*p+2*k}, s62, v{RA+4*p+3} {SD} src0_sel:DWORD src1_sel:BYTE_{k}")
    for k in range(3):
        e(f"s_mov_b64 exec, {s(mk(p,k),2)}")
        e(f"ds_add_rtn_u32 v{KA+3*p+k}, v{XP+6*p+2*k}, v13 offset:{CNT2}")
five("ba", atom)
bpf(1)
e("s_mov_b64 exec, -1")
e("s_waitcnt lgkmcnt(0)")
e("s_barrier")
stamp(8)
e(f"ds_read_b32 v2, v1 offset:{CNT2}")
clean = [f"v_xor_b32 v{XP+6*p+2*k+1}, s{sT+k}, v{RA+4*p+k}" for p in range(5) for k in range(3)]
for x in clean[:5]: e(x)
e("s_waitcnt lgkmcnt(0)")
e(f"v_max_u32 v4, {PADB}, v2")
e(f"v_cndmask_b32 v5, 0, v4, {s(sVAL,2)}")
e(f"v_subrev_u32 v6, {SORT2}, v4")
scan(5, [f"v_readlane_b32 s{sMORE}, v2, 63", "v_cmp_lt_u32 vcc, v2, v4"] + clean[5:])
e(f"v_sub_u32 v6, v5, v6")
e(f"ds_write_b32 v1, v6 offset:{BASE2}")
def look(p):
    for k in range(3): e(f"ds_read_b32 v{LK+3*p+k}, v{XP+6*p+2*k} offset:{BASE2}")
five("bl", look)
e(f"v_readlane_b32 s3, v5, 63")
e(f"s_cmp_gt_u32 s3, {CAPB}")
e("s_cbranch_scc1 L_redo")
e(f"s_and_b64 vcc, vcc, {s(sVAL,2)}")
e("s_cbranch_scc1 L_pad0")
e.label("L_nopad")
e("s_add_u32 s96, s3, 127")
e("s_lshr_b32 s60, s96, 10")
e("s_bfe_u32 s61, s96, 0x30007")
e(f"s_mul_i32 s62, s60, s{sW}")
e(f"s_min_u32 s63, s61, s{sW}")
e("s_add_u32 s62, s62, s63")
e(f"s_cmp_lt_u32 s{sW}, s61")
e(f"s_addc_u32 s{sCNT}, s60, 0")
e("s_lshl_b32 s62, s62, 7")
e("v_cmp_ge_u32 vcc, s62, v5")
e(f"s_lshl_b32 s63, s{sCNT}, 7")
e("s_add_u32 s63, s63, s62")
e("v_cmp_gt_u32 s[60:61], s63, v5")
e("s_waitcnt lgkmcnt(0)")
def put(p):
    for k in range(3):
        e(f"s_mov_b64 exec, {s(mk(p,k),2)}")
        e(f"v_add_u32 v{LK+3*p+k}, v{LK+3*p+k}, v{KA+3*p+k}")
        e(f"ds_write_b64 v{LK+3*p+k}, {v(XP+6*p+2*k,2)}")
five("bw", put)
e("s_mov_b64 exec, -1")
e(f"s_bcnt1_i32_b64 s{sNFW}, vcc")
e(f"s_lshl_b32 s{sBASE}, s{sNFW}, 2")
e(f"s_or_b32 s{sSLOW}, s{sMULTI}, s{sMORE}")
e(f"s_cselect_b32 s{sNFW}, 252, s{sBASE}")
e(f"s_lshl_b32 s63, 1, s{sW}")
e(f"v_mov_b32 v7, s{sNFW}")
e("v_mov_b32 v8, s63")
e(f"s_lshl_b32 s63, s{sW}, 6")
e("s_add_u32 s3, s3, s63")
e(f"s_add_u32 s3, s3, {SORT2}")
e("v_lshl_add_u32 v9, v1, 1, s3")
e(f"v_mov_b32 v10, {(NB-1)*4}")
e(f"v_mov_b32 v11, {MARK}")
e("s_mov_b64 exec, 1")
e(f"ds_or_b32 v7, v8 offset:{LNK}")
e("s_mov_b64 exec, 0xff")
e("ds_write_b64 v9, v[10:11]")
e("s_mov_b64 exec, -1")
e(f"s_add_u32 s62, s62, {SORT2}")
e(f"v_lshl_add_u32 v{aRec}, v{L}, 3, s62")
e(f"v_add3_u32 v{aIdx}, s62, 4, v{vIdxL}")
PI = E[1] + 8
for n in range(DEP): e(f"v_mov_b32 v{PI+2*n+1}, v{IDX+1}")
for c in range(2): e(f"v_mfma_f32_32x32x8_bf16 {v(AC[c],16)}, {v(ZP,2)}, {v(ZP,2)}, 0")
e(f"s_bcnt1_i32_b64 s{sNLW}, s[60:61]")
e(f"s_min_u32 s{sNLW}, s{sNLW}, {NB-1}")
e(f"s_lshl_b32 s{sNLW}, s{sNLW}, 2")
e(f"s_sub_u32 s{sCNT}, s{sCNT}, {DEP+1}")
e("s_setprio 3")
e("s_waitcnt vmcnt(1) lgkmcnt(0)" if PFE else "s_waitcnt lgkmcnt(0)")
e("s_barrier")
stamp(9)
def gather(b, pair):
    return [f"buffer_load_dwordx4 {v(G[b&1],4)}, {v(pair,2)}, {s(srdBP,4)}, 0 idxen offen",
            f"buffer_load_dwordx4 {v(G[b&1]+4,4)}, {v(pair,2)}, {s(srdBP,4)}, 0 idxen offen offset:64"]
recread = lambda o: f"ds_read_b64 {v(REC,2)}, v{aRec} offset:{o}"
posaddr = f"v_mul_u32_u24_sdwa v{BT}, 6, v{REC+1} {SD} src0_sel:DWORD src1_sel:WORD_0"
posreads = [f"ds_read_u16_d16_hi v{PS+i}, v{BT} offset:{POS+2*i}" for i in range(3)] + \
           [f"ds_read2st64_b32 {v(PDV,2)}, v{REC} offset0:{PD//256} offset1:{PD//256+1}",
            f"ds_read2st64_b32 {v(PDV+2,2)}, v{REC} offset0:{PD//256+2} offset1:{PD//256+3}"]
build1 = [f"v_readlane_b32 s{sNF}, v{REC}, 0", None,
          f"s_and_b32 s60, s{sNF}, -8\ns_mul_i32 s{sNEG}, s60, -4\ns_lshr_b32 s60, s60, 1",
          f"v_lshl_add_u32 v{BT+1}, v{REC}, 2, s{sNEG}",
          f"v_add_u32 v{aAT}, s60, v{aATb}",
          f"v_lshlrev_b64 {v(REC+2,2)}, v{BT+1}, {s(sOHC,2)}"]
build2 = [f"v_sub_f32 v{PDV+2}, v{PDV+2}, v{PS+2}",
          f"v_cvt_pk_bf16_f32 v{R2V+1}, v{PDV+2}, 1.0",
          f"v_lshlrev_b32 v{BT+1}, 16, v{R2V+1}",
          f"v_mul_f32 v{BT}, v{BT+1}, v{BT+1}",
          f"v_pk_add_f32 {v(PDV,2)}, {v(PDV,2)}, {v(PS,2)} neg_lo:[0,1] neg_hi:[0,1]",
          f"v_cvt_pk_bf16_f32 v{R2V}, v{PDV}, v{PDV+1}",
          f"v_dot2_f32_bf16 v{BT}, v{R2V}, v{R2V}, v{BT}",
          f"v_bitop3_b32 v{aR2}, v{PDV+3}, 56, v{aR2b} bitop3:0x6a",
          None, None,
          f"v_cvt_pk_bf16_f32 v{REC}, v{BT}, v{BT}"]
clearold = f"ds_write_b64 v{aR2}, {v(ZP,2)}"
build3 = [f"ds_write_b128 v{aR1w}, {v(REC,4)}",
          f"ds_write_b64 v{aR2}, {v(R2V,2)}",
          f"ds_read2_b32 {v(WX+2,2)}, v{aAT} offset1:1"]
def opreads(n):
    return [f"ds_read_b128 {v(R1OP,4)}, v{aR1r} offset:{n*256}",
            f"ds_read_b64_tr_b16 {v(S[n],2)}, v{aS0} offset:{n*1024}",
            f"ds_read_b64_tr_b16 {v(S[n]+2,2)}, v{aS1} offset:{n*1024}"]
def stage1(n):
    t = T[n & 1]
    return [f"v_mfma_f32_32x32x16_bf16 {v(t,16)}, {v(R1OP,4)}, {v(WX,4)}, 0",
            f"v_mfma_f32_32x32x16_bf16 {v(t,16)}, {v(G[n&1],4)}, {v(I0,4)}, {v(t,16)}",
            f"v_mfma_f32_32x32x16_bf16 {v(t,16)}, {v(G[n&1]+4,4)}, {v(I1,4)}, {v(t,16)}"]
def stage2(n):
    return [f"v_mfma_f32_32x32x16_bf16 {v(AC[c],16)}, {v(M[c],4)}, {v(S[n],4)}, {v(AC[c],16)}" for c in range(2)]
def pkmul(q): return [f"v_pk_mul_f32 {v(E[q]+2*i,2)}, {v(E[q]+2*i,2)}, {v(T[q]+2*i,2)}" for i in range(8)]
def cvt(q): return [f"v_cvt_pk_bf16_f32 v{M[c]+a}, v{E[q]+4*a+c}, v{E[q]+4*a+2+c}" for a in range(4) for c in range(2)]
def flushchk(lbl):
    e(f"s_add_u32 s60, s{sNF}, 8")
    e(f"s_min_u32 s60, s60, s{sNLW}")
    e(f"s_sub_u32 s60, s60, s{sBASE}")
    e("s_cmp_ge_u32 s60, 32")
    e(f"s_cbranch_scc1 L_flush_{lbl}")
    e.label(f"L_flret_{lbl}")
def rowaddr():
    return [f"v_subrev_u32 v4, s{sBASE}, v{L}",
            "v_and_b32 v4, 28, v4",
            f"v_add_u32 v4, s{sBASE}, v4",
            f"v_cmp_eq_u32 vcc, s{sNFW}, v4",
            f"v_cmp_lt_u32 s[62:63], s{sNLW}, v4",
            f"s_lshl_b32 s61, s{sW}, 2",
            f"s_add_u32 s61, s61, {NB*4}",
            "v_mov_b32 v7, s61",
            "v_cndmask_b32 v4, v4, v7, vcc",
            f"v_mov_b32 v7, {OOB//64}",
            "v_cndmask_b32 v4, v4, v7, s[62:63]",
            f"v_mul_u32_u24 v4, {ACCS//4}, v4",
            f"v_add_u32 v4, {ACC}, v4",
            f"v_lshrrev_b32 v7, 5, v{L}",
            f"v_lshl_add_u32 v{vRowM}, v7, 4, v4",
            f"v_lshl_add_u32 v4, v7, 2, v4",
            f"v_and_b32 v7, 3, v{L}",
            f"v_lshl_add_u32 v{vRowP}, v7, 3, v4"]
def bfaddr():
    return [f"v_ffbl_b32 v5, v{vMask}",
            f"v_add_u32 v6, -1, v{vMask}",
            f"v_min_u32 v5, {OOB//256}, v5",
            f"v_and_b32 v{vMask}, v6, v{vMask}",
            f"v_mul_u32_u24 v5, {ACCS}, v5",
            f"v_add_u32 v{vFB}, v{vFO}, v5"]
def mmask():
    e("s_mov_b32 exec_lo, 0x88888888")
    e("s_mov_b32 exec_hi, 0x88888888")
def flush_slow():
    e("s_nop 7")
    e("v_mov_b32 v2, 0")
    for i in range(8):
        e(f"ds_read_b128 v[4:7], v{vWxa} offset:{WXT+16*i}")
        e("s_waitcnt lgkmcnt(0)")
        for r in range(4): e(f"v_fmac_f32 v2, v{AC[0]+4*i+r}, v{4+r}")
    e(f"ds_add_f32 v{vRowP}, v2 offset:256")
    mmask()
    for i in range(32): e(f"ds_add_f32 v{vRowM}, v{AC[0]+i} offset:{(i//4)*32+(i%4)*4}")
    e("s_mov_b64 exec, -1")

def step(sidx, first=False):
    q = sidx & 1; n1 = (sidx + 1) & 3
    R = OPT["ramp"]
    e("s_setprio 0")
    if sidx == 1: flushchk("mid")
    mem = gather(sidx + DEP, IDX) + [f"ds_read_u16 v{IDX}, v{aIdx} offset:{(sidx+DEP+1)*128}"]
    if sidx == 3: mem += build3
    mem += opreads(n1)
    if sidx == 3: mem += [recread(1024)]
    if sidx == 1: mem += posreads
    if sidx == 2: mem += [clearold]
    oth = {0: [posaddr], 1: build1, 2: build2, 3: [f"v_add_u32 v{aIdx}, 512, v{aIdx}", f"v_add_u32 v{aRec}, 512, v{aRec}"]}[sidx]
    for y in mem: e(y)
    oth = list(oth)
    for i in range(16):
        if i == R[0]: e("s_setprio 1")
        if i == R[1]: e("s_setprio 2")
        e(f"v_exp_f32 v{E[q]+i}, v{T[q]+i}")
        if i == 6 and OPT.get("addn"):
            for _ in range(OPT["addn"]): e("v_nop")
        if i == 6 and OPT.get("addm"): e(f"v_mfma_f32_32x32x16_bf16 v[136:151], {v(M[0],4)}, {v(I0,4)}, v[136:151]")
        if i >= R[0] - 1 and oth:
            y = oth.pop(0)
            if y: e(y)
    assert not oth
    addone = f"{OPT.get('ao', 'v_mfma_f32_32x32x8_bf16')} {v(E[q],16)}, {v(ONE,2)}, {v(ONE,2)}, {v(E[q],16)}"
    if R[1] >= 16: e("s_setprio 2")
    elif R[2] == 1: e("s_setprio 3")
    elif first: e("s_nop 0")
    if first:
        e("s_nop 0"); e(addone); e("s_nop 7")
    else:
        for x in pkmul(1 - q): e(x)
        e(addone)
        for x in cvt(1 - q): e(x)
    e(f"s_sub_u32 s{sCNT}, s{sCNT}, 1")
    e("s_waitcnt vmcnt(2) lgkmcnt(0)")
    mf = stage1(n1) + ([] if first else stage2((sidx - 1) & 3))
    for i in range(16):
        if i % 3 == 0 and i // 3 < len(mf):
            e(mf[i // 3])
            if i == 0: e("s_setprio 3" if R[2] != 1 else "s_nop 0")
        e(f"v_rcp_f32 v{E[q]+i}, v{E[q]+i}")
    e(f"s_cbranch_scc1 L_evt{sidx}")

e(recread(0))
e(f"ds_read_u16 v{PI}, v{aIdx}")
e(f"ds_read_u16 v{PI+2}, v{aIdx} offset:128")
e(f"ds_read_u16 v{IDX}, v{aIdx} offset:{DEP*128}")
e("s_waitcnt lgkmcnt(2)")
e(posaddr)
for x in posreads: e(x)
for x in gather(0, PI): e(x)
e(clearold)
for x in build1:
    if x: e(x)
e("s_waitcnt lgkmcnt(1)")
g1 = gather(1, PI + 2)
for x in build2: e(x if x else g1.pop(0))
for x in build3: e(x)
for x in opreads(0): e(x)
e(recread(512))
e(f"ds_read_b32 v{vMask}, v{vAItem} offset:{LNK}")
e(f"ds_write_b32 v1, v{ZP} offset:{CNT2}")
e("s_waitcnt vmcnt(2) lgkmcnt(5)")
for x in stage1(0): e(x)
for x in rowaddr(): e(x)
e("s_waitcnt lgkmcnt(0)")
for x in bfaddr(): e(x)
stamp(10)
step(0, first=True)
e("s_branch L_s1")
for sidx in range(4):
    e.label(f"L_s{sidx}")
    step(sidx)
e("s_branch L_s0")
for sidx in range(4):
    q = sidx & 1
    e.label(f"L_evt{sidx}")
    e(f"s_cmp_eq_u32 s{srdBP+2}, 0")
    e(f"s_mov_b32 s{srdBP+2}, 0")
    e(f"s_mov_b32 s{sCNT}, {DEP-1}")
    if OPT["otouch"]:
        e(f"s_cbranch_scc1 L_dr{sidx}")
        e(f"s_mov_b64 exec, {s(sOM,2) if OPT['otouch'] == 2 else 1}")
        e(f"global_load_ushort v136, v{vOA}, {s(sOUT,2)} sc1")
        e("s_mov_b64 exec, -1")
        e(f"s_branch L_s{(sidx+1)&3}")
        e.label(f"L_dr{sidx}")
    else: e(f"s_cbranch_scc0 L_s{(sidx+1)&3}")
    if sidx == 0: flushchk("dr")
    for i in range(4): e(f"ds_read_b128 {v(E[1-q]+4*i,4)}, v{vWxa} offset:{WXT+16*i}")
    for i in range(4): e(f"ds_read_b128 {v(T[1-q]+4*i,4)}, v{vWxa} offset:{WXT+64+16*i}")
    for x in pkmul(q) + cvt(q): e(x)
    e(f"s_cmp_lg_u32 s{sSLOW}, 0")
    e("s_nop 0")
    for x in stage2(sidx): e(x)
    e("s_cbranch_scc1 L_slow_final")
    if sidx < 2: e(f"s_branch L_final_flush{q}")
    else:
        e.label(f"L_final_flush{q}")
        stamp(11)
        e("s_waitcnt lgkmcnt(0)")
        e("s_nop 6")
        mmask()
        for i in range(8): e(f"ds_write_b128 v{vRowM}, {v(AC[0]+4*i,4)} offset:{i*32}")
        e("s_mov_b64 exec, -1")
        e(f"v_pk_mul_f32 v[4:5], {v(AC[0],2)}, {v(E[1-q],2)}")
        e(f"v_pk_mul_f32 v[6:7], {v(AC[1],2)}, {v(T[1-q],2)}")
        for i in range(1, 8):
            e(f"v_pk_fma_f32 v[4:5], {v(AC[0]+2*i,2)}, {v(E[1-q]+2*i,2)}, v[4:5]")
            e(f"v_pk_fma_f32 v[6:7], {v(AC[1]+2*i,2)}, {v(T[1-q]+2*i,2)}, v[6:7]")
        e("v_pk_add_f32 v[4:5], v[4:5], v[6:7]")
        e("v_add_f32 v4, v4, v5")
        e(f"ds_write_b32 v{vRowP}, v4 offset:256")
        if sidx == 2: e("s_branch L_b6")
e.label("L_b6")
MR = 16; MB = 32; Y = 40; YE = 48; HU = 56; MX = 64
e(f"s_cmp_lg_u32 s{sMORE}, 0")
e(f"v_cmp_ne_u32 vcc, 0, v{vMask}")
e("s_waitcnt lgkmcnt(0)")
e("s_barrier")
stamp(12)
e("s_cbranch_scc1 L_more")
e(f"s_cmp_ge_u32 s{sW}, 6")
e("s_cbranch_scc1 L_finpos")
for i in range(4):
    e(f"ds_read_b128 {v(MR+4*i,4)}, v{vFA} offset:{(i>>1)*128+(i&1)*16}")
    e(f"ds_read_b128 {v(MX+4*i,4)}, v{vFB} offset:{(i>>1)*128+(i&1)*16}")
for d in range(4):
    e(f"v_lshlrev_b32 v{HU+2*d}, 16, v{HRES+d}")
    e(f"v_and_b32 v{HU+2*d+1}, 0xffff0000, v{HRES+d}")
e(f"s_mov_b32 s60, {NLN2}")
if OPT["otr"]:
    e(f"v_and_b32 v8, 15, v{L}")
    e(f"v_lshrrev_b32 v9, 4, v{L}")
    e("v_lshl_add_u32 v8, v8, 2, v9")
    e(f"v_sub_u32 v8, v8, v{L}")
    e(f"v_lshl_add_u32 v8, v8, 4, v{aR1w}")
e("s_cbranch_vccnz L_finbf_more")
e.label("L_finbf")
for i in range(4):
    e(f"s_waitcnt lgkmcnt({6-2*i})")
    for d in range(2): e(f"v_pk_add_f32 {v(MR+4*i+2*d,2)}, {v(MR+4*i+2*d,2)}, {v(MX+4*i+2*d,2)}")
    for d in range(2): e(f"v_cvt_pk_bf16_f32 v{MB+2*i+d}, v{MR+4*i+2*d}, v{MR+4*i+2*d+1}")
for t in range(2): e(f"v_mfma_f32_16x16x32_bf16 {v(Y+4*t,4)}, {v(WH2+8*t,4)}, {v(MB,4)}, {v(H1+4*t,4)}")
for t in range(2): e(f"v_mfma_f32_16x16x32_bf16 {v(Y+4*t,4)}, {v(WH2+8*t+4,4)}, {v(MB+4,4)}, {v(Y+4*t,4)}")
e("s_nop 6")
for i in range(8): e(f"v_exp_f32 v{YE+i}, v{Y+i}")
for i in range(4): e(f"v_pk_add_f32 {v(YE+2*i,2)}, {v(YE+2*i,2)}, 1.0 op_sel_hi:[1,0]")
for i in range(4): e(f"v_pk_mul_f32 {v(Y+2*i,2)}, {v(Y+2*i,2)}, s[60:61] op_sel_hi:[1,0]")
for i in range(8): e(f"v_rcp_f32 v{YE+i}, v{YE+i}")
for i in range(4): e(f"v_pk_fma_f32 {v(HU+2*i,2)}, {v(Y+2*i,2)}, {v(YE+2*i,2)}, {v(HU+2*i,2)}")
for d in range(4): e(f"v_cvt_pk_bf16_f32 v{Y+d}, v{HU+2*d}, v{HU+2*d+1}")
if OPT["otr"]:
    e(f"ds_write_b128 v8, {v(Y,4)}")
    e(f"ds_read_b128 {v(Y,4)}, v{aR1w}")
    e("s_waitcnt lgkmcnt(0)")
e(f"s_mov_b64 exec, {s(sOM,2)}")
e(f"global_store_dwordx4 v{vOA}, {v(Y,4)}, {s(sOUT,2)} {OPT.get('ost', 'sc1')}")
stamp(13, last=True)
e("s_endpgm")
e.label("L_finpos")
e(f"ds_read_b64 v[16:17], v{vFA}")
e.label("L_posbf")
e(f"ds_read_b64 v[18:19], v{vFB}")
e("s_waitcnt lgkmcnt(0)")
e("v_add_f32 v16, v16, v18")
e("v_add_f32 v17, v17, v19")
e("s_cbranch_vccnz L_posbf_more")
e("v_add_f32 v16, v16, v17")
e(f"v_add_f32 v{vPosOwn}, v{vPosOwn}, v16")
e(f"v_cvt_pk_bf16_f32 v2, v{vPosOwn}, v{vPosOwn}")
e(f"v_mov_b32 v7, s{sTAG}")
e(f"s_mov_b64 exec, {s(sOM,2)}")
e(f"global_store_short v{vOA}, v2, {s(sOUT,2)} {OPT.get('pst', 'sc1')}")
e("s_cmp_lg_u32 s2, 0")
e("s_cbranch_scc1 L_noep")
e("s_mov_b64 exec, 1")
e(f"global_store_dword v{ZP}, v7, {s(sWS,2)} sc1")
e.label("L_noep")
stamp(13, last=True)
e("s_endpgm")
for lbl in ("mid", "dr"):
    e.label(f"L_flush_{lbl}")
    flush_slow()
    e("s_waitcnt lgkmcnt(0)")
    for i in range(32): e(f"v_mov_b32 v{AC[0]+i}, 0")
    e(f"s_mov_b32 s{sBASE}, s{sNF}")
    e(f"s_mov_b32 s{sSLOW}, 1")
    for x in rowaddr(): e(x)
    e(f"s_branch L_flret_{lbl}")
e.label("L_slow_final")
flush_slow()
e("s_branch L_b6")
e.label("L_finbf_more")
e("s_waitcnt lgkmcnt(0)")
for i in range(16): e(f"v_add_f32 v{MR+i}, v{MR+i}, v{MX+i}")
for x in bfaddr(): e(x)
for i in range(4): e(f"ds_read_b128 {v(MX+4*i,4)}, v{vFB} offset:{(i>>1)*128+(i&1)*16}")
e(f"v_cmp_ne_u32 vcc, 0, v{vMask}")
e("s_waitcnt lgkmcnt(0)")
e("s_cbranch_vccnz L_finbf_more")
e("s_branch L_finbf")
e.label("L_posbf_more")
for x in bfaddr(): e(x)
e(f"v_cmp_ne_u32 vcc, 0, v{vMask}")
e("s_branch L_posbf")
e.label("L_pollout")
e(f"s_mov_b32 s{sBUD}, 0")
e("s_branch L_gotoff")
e.label("L_stale")
e(f"s_cmp_eq_u32 s{sBUD}, 0")
e("s_cbranch_scc1 L_gotrec")
e(f"s_sub_u32 s{sBUD}, s{sBUD}, 1")
e("s_branch L_fetch")
e.label("L_pad0")
e("v_mov_b32 v8, v1")
e(f"v_mov_b32 v9, {MARK}")
e("s_mov_b64 exec, vcc")
e.label("L_pad")
e("v_add_u32 v7, v6, v2")
e("v_add_u32 v2, 8, v2")
e("ds_write_b64 v7, v[8:9]")
e("v_cmp_lt_u32 vcc, v2, v4")
e("s_and_b64 exec, vcc, vcc")
e("s_cbranch_scc1 L_pad")
e("s_mov_b64 exec, -1")
e("s_branch L_nopad")
e.label("L_more")
e("s_waitcnt vmcnt(0)")
e("s_setprio 0")
e(f"s_mov_b32 s{srdBP+2}, 10000")
e(f"s_mov_b64 {s(sPF,2)}, 0")
e(f"s_mov_b32 s{sMULTI}, 1")
e(f"s_cmp_eq_u32 s{sWID}, {NARROW}")
e(f"s_cselect_b32 s60, {NARROW}, 0x100")
e("v_mov_b32 v4, s60")
for p in range(4):
    e(f"v_and_b32 v5, 0xfff0, v{SEG+p}")
    e(f"v_lshrrev_b32 v6, 16, v{SEG+p}")
    e(f"v_add_u32 v7, s{sWID}, v5")
    e("v_cmp_lt_u32 vcc, v7, v6")
    e("v_add_u32 v5, v4, v5")
    e("v_min_u32 v5, v5, v6")
    e(f"v_lshl_or_b32 v{SEG+p}, v6, 16, v5")
    e(f"v_mov_b32 v7, s{sWID}")
    e("v_cndmask_b32 v4, v4, v7, vcc")
e(f"s_movk_i32 s{sWID}, 0x80")
batchsetup()
e(f"v_mov_b32 v{vPF}, 0")
e("s_branch L_fetch")
e.label("L_narrow")
e(f"s_mov_b32 s{sANYB}, 0")
e("s_mov_b64 exec, vcc")
e(f"ds_write_b32 v{ZP}, v13 offset:{CNT2+252}")
e("s_mov_b64 exec, -1")
e("s_branch L_nob0")
e.label("L_redo")
e(f"s_cmp_eq_u32 s{sWID}, {NARROW}")
e("s_cbranch_scc1 L_end")
e("s_waitcnt vmcnt(0) lgkmcnt(0)")
e("s_barrier")
e(f"ds_write_b32 v1, v{ZP} offset:{CNT2}")
e(f"s_movk_i32 s{sWID}, {NARROW}")
batchsetup()
e(f"v_cmp_gt_u32 vcc, {NARROW}, v{vJ}")
e(f"v_mov_b32 v1, {OOB}")
e("s_waitcnt lgkmcnt(0)")
e(f"v_cndmask_b32 v{vJ}, v1, v{vJ}, vcc")
e("s_barrier")
e("s_branch L_fetch")
e.label("L_end")
e("s_endpgm")

probs = check_cfg(e.lines)
for p in probs: print("HAZARD", p, file=sys.stderr)

ref = open("cdna_kernels/" + KN + ".s.ref").read().split("\n")
hdr = []
for l in ref:
    if l.startswith("; Override launch"): break
    hdr.append(l)
out = "\n".join(hdr) + f"""
; One persistent launch: 250 workgroups (one per CU) bin the edges by destination bucket, hand the bins
; over through d_ws (tagged with a per-launch epoch), then each workgroup updates its 40 nodes.
; @launch grid=({NWG},1,1) block=(512,1,1) lds={LDS_SIZE}
.amdgcn_target "amdgcn-amd-amdhsa--gfx950"
.text
.globl {KN}_kernel
.p2align 8
.type {KN}_kernel,@function
{KN}_kernel:
{e.text()}.section .rodata,"a"
.p2align 6
.amdhsa_kernel {KN}_kernel
  .amdhsa_next_free_vgpr 256
  .amdhsa_next_free_sgpr 102
  .amdhsa_accum_offset 256
  .amdhsa_group_segment_fixed_size 0
  .amdhsa_kernarg_size 88
  .amdhsa_user_sgpr_count 2
  .amdhsa_user_sgpr_kernarg_segment_ptr 1
  .amdhsa_system_sgpr_workgroup_id_x 1
  .amdhsa_float_denorm_mode_32 3
.end_amdhsa_kernel
"""
open(sys.argv[1], "w").write(out)
print("wrote", sys.argv[1], len(e.lines), "lines;", len(probs), "hazards; LDS end", LDS_END, file=sys.stderr)
```
